```python
import torch

def _softmax(x, axis=-1):
    return torch.softmax(x, dim=axis)
def _gelu(x):
    return torch.nn.functional.gelu(x, approximate="tanh")
def _silu(x):
    return torch.nn.functional.silu(x)
def _sigmoid(x):
    return torch.sigmoid(x)
def _layernorm(x, axis=-1, eps=1e-5):
    m = x.mean(dim=axis, keepdim=True)
    v = x.var(dim=axis, keepdim=True, unbiased=False)
    return (x - m) / torch.sqrt(v + eps)
def _scatter_add(tgt, idx, src, axis=0):
    return tgt.clone().index_add_(axis, idx, src)
def _segment_sum(src, seg, n):
    out = torch.zeros((n,) + src.shape[1:], dtype=src.dtype)
    return out.index_add_(0, seg, src)
def _pad(x, pw):
    flat = tuple(v for pair in reversed(pw) for v in pair)
    return torch.nn.functional.pad(x, flat)

kernel_name = 'sequential_preLN__ssm_conv_h3__glu_gated_glu__prompt'

def setup_inputs():

    _w = (lambda a: (lambda t: t.to(torch.bfloat16) if t.is_floating_point() else t)(torch.as_tensor(a)))
    def _A_setup():
        B, S, D = 1, 2048, 512
        ks = 4
        return {
            "q": _w((lambda *s: torch.randn(*s, dtype=torch.bfloat16) * 0.05)(B, S, D)),
            "k": _w((lambda *s: torch.randn(*s, dtype=torch.bfloat16) * 0.4)(B, S, D)),
            "v": _w((lambda *s: torch.randn(*s, dtype=torch.bfloat16) * 0.4)(B, S, D)),
            "shift_k": _w((lambda *s: torch.randn(*s, dtype=torch.bfloat16) * 0.4)(D, ks) * 0.5),
            "ssm_k": _w((lambda *s: torch.randn(*s, dtype=torch.bfloat16) * 0.4)(D, S) * (1.0 / S ** 0.5)),
            "ssm_D": _w((lambda *s: torch.randn(*s, dtype=torch.bfloat16) * 0.4)(D)),
        }
    _A_in = _A_setup()

    def _B_setup():
        B, S, D, F = 1, 2048, 512, 1792
        return {
            "x": _w((lambda *s: torch.randn(*s, dtype=torch.bfloat16) * 0.05)(B, S, D)),
            "w_gate": _w((lambda *s: torch.randn(*s, dtype=torch.bfloat16) * 0.05)(D, F)),
            "w_up": _w((lambda *s: torch.randn(*s, dtype=torch.bfloat16) * 0.05)(D, F)),
            "w_down": _w((lambda *s: torch.randn(*s, dtype=torch.bfloat16) * 0.05)(F, D)),
        }
    _B_in = _B_setup()

    return {
        "A_q": _A_in["q"],
        "A_k": _A_in["k"],
        "A_v": _A_in["v"],
        "A_shift_k": _A_in["shift_k"],
        "A_ssm_k": _A_in["ssm_k"],
        "A_ssm_D": _A_in["ssm_D"],
        "B_x": _B_in["x"],
        "B_w_gate": _B_in["w_gate"],
        "B_w_up": _B_in["w_up"],
        "B_w_down": _B_in["w_down"],
    }

def reference(A_q, A_k, A_v, A_shift_k, A_ssm_k, A_ssm_D, B_x, B_w_gate, B_w_up, B_w_down):
    def _A_ref(q, k, v, shift_k, ssm_k, ssm_D):
        B, S, D = q.shape
        ks = shift_k.shape[-1]
        k_pad = _pad(k, ((0, 0), (ks - 1, 0), (0, 0)))
        k_shift = torch.zeros_like(k)
        for t in range(ks):
            k_shift = k_shift + k_pad[:, t:t + S, :] * shift_k[:, ks - 1 - t][None, None, :]
        kv = k_shift * v
        L = 2 * S
        kv_pad = _pad(kv, ((0, 0), (0, S), (0, 0)))
        kf_pad = _pad(ssm_k, ((0, 0), (0, S)))
        kv_f = (lambda x, axes=(-2,-1): torch.fft.rfft2(x.float(), dim=axes))(kv_pad[:, None, :, :], axes=(1, 2))
        kf_f = (lambda x, axes=(-2,-1): torch.fft.rfft2(x.float(), dim=axes))(kf_pad[:, None, :], axes=(1, 2))
        kf_f = (lambda x, *d: x.permute(*d))(kf_f, 1, 2, 0)
        y_f = kv_f * kf_f[None, :, :, :]
        y = (lambda x, s, axes=(-2,-1): torch.fft.irfft2(x, s=s, dim=axes).to(torch.bfloat16))(y_f, (1, L), axes=(1, 2))[:, 0, :S, :]
        y = y + kv * ssm_D[None, None, :]
        return q * y

    def _B_ref(x, w_gate, w_up, w_down):
        g = torch.einsum("bsd,df->bsf", x, w_gate)
        u = torch.einsum("bsd,df->bsf", x, w_up)
        h = _sigmoid(g) * u
        return torch.einsum("bsf,fd->bsd", h, w_down)

    x = A_q
    h = x + _A_ref(_layernorm(x, axis=-1), A_k, A_v, A_shift_k, A_ssm_k, A_ssm_D)
    h2 = h + _B_ref(_layernorm(h, axis=-1), B_w_gate, B_w_up, B_w_down)
    return h2
```

```python
import re

TRANS = ("v_exp_f32","v_log_f32","v_rcp_f32","v_rsq_f32","v_sqrt_f32","v_sin_f32","v_cos_f32","v_rcp_iflag_f32")
def _regs(tok):
    tok = tok.strip()
    tok = tok.lstrip('-')
    m = re.fullmatch(r"abs\((.*)\)", tok) or re.fullmatch(r"\|(.*)\|", tok)
    if m: tok = m.group(1)
    m = re.fullmatch(r"([vas])(\d+)", tok)
    if m: return {(m.group(1), int(m.group(2)))}
    m = re.fullmatch(r"([vas])\[(\d+):(\d+)\]", tok)
    if m: return {(m.group(1), i) for i in range(int(m.group(2)), int(m.group(3))+1)}
    if tok in ("vcc","vcc_lo","vcc_hi"): return {("s","vcc")}
    if tok in ("exec","exec_lo","exec_hi"): return {("s","exec")}
    if tok == "m0": return {("s","m0")}
    return set()

class Ins:
    def __init__(self, text):
        self.text = text
        t = text.split(";")[0].strip()
        self.label = None; self.op = None
        self.w = set(); self.r = set(); self.kind = None
        self.srcA = set(); self.srcB = set(); self.srcC = set(); self.data = set()
        self.ws = 1; self.dpp = False; self.lds = False
        if not t or t.startswith("."):
            self.kind = "none"; self.ws = 0; return
        if t.endswith(":"):
            self.label = t[:-1]; self.kind = "label"; self.ws = 0; return
        parts = t.split(None, 1)
        op = self.op = parts[0]
        rest = parts[1] if len(parts) > 1 else ""
        ops = []
        depth = 0; cur = ""
        for ch in rest:
            if ch in "[(": depth += 1
            if ch in "])": depth -= 1
            if ch == "," and depth == 0: ops.append(cur.strip()); cur = ""
            else: cur += ch
        if cur.strip(): ops.append(cur.strip())
        mods = ""
        if ops:
            last = ops[-1].split(None, 1)
            ops[-1] = last[0]; mods = last[1] if len(last) > 1 else ""
        self.ops = ops; self.mods = mods
        R = [_regs(o) for o in ops]
        allr = lambda l: set().union(*l) if l else set()
        if op.startswith("v_mfma"):
            self.kind = "mfma"; self.w = R[0]; self.srcA = R[1]; self.srcB = R[2]; self.srcC = R[3]
            self.r = R[1] | R[2] | R[3]
            self.passes = 8 if "32x32x16" in op else (4 if "16x16x32" in op else (2 if "4x4" in op else None))
            assert self.passes, op
        elif op.startswith("v_"):
            self.kind = "valu"
            base = re.sub(r"_(e32|e64|dpp|sdwa)$", "", op)
            self.base = base
            self.dpp = ("_dpp" in op) or any(k in mods for k in ("row_","quad_perm","wave_"))
            if base.startswith("v_permlane") and "swap" in base:
                self.w = R[0] | R[1]; self.r = R[0] | R[1]
            elif base.startswith("v_cmpx"):
                raise ValueError("cmpx unsupported")
            elif base in ("v_add_co_u32","v_sub_co_u32","v_addc_co_u32","v_subb_co_u32","v_subrev_co_u32","v_mad_u64_u32","v_div_scale_f32"):
                self.w = R[0] | R[1]; self.r = allr(R[2:])
            elif base == "v_nop":
                pass
            else:
                self.w = R[0]; self.r = allr(R[1:])
                if base in ("v_fmac_f32","v_dot2c_f32_bf16","v_writelane_b32","v_pk_fmac_f16") or self.dpp or "UNUSED_PRESERVE" in mods:
                    self.r |= R[0]
        elif op.startswith(("buffer_","global_","flat_")):
            self.kind = "vmem"
            self.lds = (" lds" in " "+mods) or "_lds_" in op
            if op in ("buffer_inv","buffer_wbl2"): pass
            elif self.lds:
                self.r = allr(R) | {("s","m0")}
            elif "_load" in op:
                self.w = R[0]; self.r = allr(R[1:])
            elif "_store" in op:
                self.r = allr(R)
                self.data = R[0] if op.startswith("buffer_") else R[1]
            elif "_atomic" in op:
                self.r = allr(R)
                if "sc0" in mods: self.w = R[0]
            else: raise ValueError(op)
        elif op.startswith("ds_"):
            self.kind = "ds"
            if op.startswith(("ds_read","ds_bpermute","ds_permute","ds_swizzle")) or "_rtn" in op:
                self.w = R[0]; self.r = allr(R[1:])
            else: self.r = allr(R)
        elif op.startswith("s_"):
            self.kind = "salu"
            if op == "s_nop": self.ws = int(ops[0], 0) + 1
            elif op.startswith(("s_cmp","s_bitcmp","s_waitcnt","s_barrier","s_branch","s_cbranch","s_endpgm","s_sleep","s_setprio","s_setreg","s_setpc")):
                self.r = allr(R)
            else:
                self.w = R[0]; self.r = allr(R[1:])
                if "saveexec" in op: self.w |= {("s","exec")}
        else:
            raise ValueError("unknown instr: " + text)

def need(p, c):
    n = 0
    vw = {x for x in p.w if x[0] in "va"}; sw = {x for x in p.w if x[0] == "s"}
    if p.kind == "valu":
        isdot = p.base.startswith("v_dot")
        if c.kind == "mfma" and vw & c.r: n = max(n, 3 if isdot else 2)
        if c.kind == "valu":
            if vw & c.r:
                if c.base in ("v_readlane_b32","v_readfirstlane_b32"): n = max(n, 1)
                if c.dpp: n = max(n, 2)
                if c.base.startswith("v_permlane"): n = max(n, 2)
                if p.base in TRANS: n = max(n, 1)
                if "sdwa" in p.op or "op_sel" in p.mods and "pk_" not in p.op: n = max(n, 1)
            if isdot and vw & (c.r | c.w):
                same_c = False
                if c.base == p.base:
                    srcs = [_regs(o) for o in c.ops]
                    ab = srcs[1] | srcs[2]
                    same_c = not (vw & ab)
                if not same_c: n = max(n, 3)
            if sw & c.r:
                n = max(n, 4 if c.base in ("v_readlane_b32","v_writelane_b32") else 2)
        if isdot and c.kind in ("vmem","ds") and vw & c.r: n = max(n, 3)
        if p.base in TRANS and c.kind in ("vmem","ds") and vw & c.r: n = max(n, 1)
        if c.kind == "vmem" and sw & c.r: n = max(n, 5)
        if c.kind == "salu" and sw & c.r: n = max(n, 1)
    if p.kind == "mfma":
        big = {2:5, 4:8, 8:12}[p.passes]
        if c.kind == "mfma":
            if p.w & (c.srcA | c.srcB): n = max(n, big)
            if p.w & c.srcC:
                if c.srcC == p.w and c.passes == p.passes: n = max(n, 2 if p.passes == 2 else 0)
                else: n = max(n, p.passes + 2)
            elif p.w & c.w: n = max(n, p.passes + 2)
        elif c.kind in ("valu","vmem","ds"):
            if p.w & (c.r | c.w): n = max(n, big)
        if c.kind == "valu" and p.srcC & c.w: n = max(n, p.passes - 1)
    if p.kind == "vmem" and len(p.data) >= 3 and p.data & c.w:
        n = max(n, 2 if c.kind == "valu" else 1)
    if p.kind == "salu" and ("s","m0") in p.w and c.kind == "vmem" and c.lds: n = max(n, 1)
    return n

class Prog:
    def __init__(self): self.lines = []
    def __call__(self, text):
        for l in text.split("\n"):
            if l.strip(): self.lines.append(l.rstrip())
    def fix(self, verbose=False):
        ins = [Ins(l) for l in self.lines]
        labels = {x.label: i for i, x in enumerate(ins) if x.label}
        preds = {i: [] for i in range(len(ins))}
        for i, x in enumerate(ins):
            x.pad = 0
            fall = not (x.op in ("s_branch","s_endpgm","s_setpc_b64"))
            if fall and i+1 < len(ins): preds[i+1].append(i)
            if x.op and (x.op == "s_branch" or x.op.startswith("s_cbranch")):
                if x.ops[0] in labels: preds[labels[x.ops[0]]].append(i)
        total = 0
        for i, c in enumerate(ins):
            if c.kind in ("none","label"): continue
            worst = 0
            stack = [(p, 0) for p in preds[i]]; seen = {}
            while stack:
                j, d = stack.pop()
                if d >= 13 or seen.get(j, 99) <= d: continue
                seen[j] = d
                p = ins[j]
                if p.kind not in ("none","label"):
                    k = need(p, c) - d
                    if k > worst: worst = k
                for q in preds[j]: stack.append((q, d + p.ws + p.pad))
            if worst > 0:
                c.pad = worst; total += worst
                if verbose: print(f"; nop {worst} before: {c.text}")
        self.nops = total
        out = []
        for x in ins:
            if x.pad: out.append(f" s_nop {x.pad-1}")
            out.append(x.text)
        return "\n".join(out) + "\n"
```

```python
KVBOX = 0x000000
YBOX  = 0x400000
HN    = 0x800000
HRES  = 0xA00000
HH    = 0xC00000
FLAGS = 0x1400000
WS_BYTES = 0x1500000
SRD = dict(X=8, K=12, V=16, SHK=20, SSMK=24, SSMD=28, WG=32, WU=36, WD=40, OUT=44, WS=48, DBG=52)
KOFF = dict(X=0, K=8, V=16, SHK=24, SSMK=32, SSMD=40, WG=56, WU=64, WD=72, OUT=80, DBG=88, WS=96)
SIZE = dict(X=2097152, K=2097152, V=2097152, SHK=4096, SSMK=2097152, SSMD=1024, WG=1835008, WU=1835008, WD=1835008, OUT=2097152, WS=WS_BYTES, DBG=256)
def srd(n): return f"s[{SRD[n]}:{SRD[n]+3}]"
sW, sP, sC, sG, sJ, sTAG, sLO, sHI, sMASK = "s56", "s57", "s58", "s59", "s60", "s61", "s62", "s63", "s64"
def vr(b, n): return f"v[{b}:{b+n-1}]" if n > 1 else f"v{b}"
def ar(b, n): return f"a[{b}:{b+n-1}]" if n > 1 else f"a{b}"

def prologue(P, exit_label, names):
    P(f" s_cmp_ge_u32 s2, 256\n s_cbranch_scc1 {exit_label}")
    for n in names: P(f" s_load_dwordx2 s[{SRD[n]}:{SRD[n]+1}], s[0:1], {KOFF[n]}")
    for n in names: P(f" s_mov_b32 s{SRD[n]+2}, {SIZE[n]}\n s_mov_b32 s{SRD[n]+3}, 0x20000")
    P(f"""
 v_lshrrev_b32 v1, 6, v0
 s_and_b32 s3, s2, 7
 s_lshl_b32 s3, s3, 1
 v_readfirstlane_b32 {sW}, v1
 s_bfe_u32 s4, s2, 0x10003
 s_add_u32 {sG}, s3, s4
 s_lshr_b32 {sJ}, s2, 4
 s_lshl_b32 {sP}, {sG}, 4
 s_add_u32 {sP}, {sP}, {sJ}
 s_mov_b32 {sC}, s2
 s_mov_b32 {sLO}, 0x05040100
 s_mov_b32 {sHI}, 0x07060302
 s_mov_b32 {sMASK}, 0xffff0000
 s_mov_b32 {sTAG}, 0x12345
""")

vK, vV, vX, vW, vD, vT, vKS, vQ, vq, vu1 = 16, 36, 44, 52, 68, 72, 104, 120, 224, 240
def p0_loads(P):
    P(f"""
 v_and_b32 v1, 3, v0
 v_lshrrev_b32 v2, 2, v0
 s_lshl_b32 s3, {sP}, 13
 v_lshlrev_b32 v3, 11, v1
 v_lshl_add_u32 v3, v2, 4, v3
 v_add_u32 v3, s3, v3
 v_subrev_u32 v4, 3072, v3
 v_subrev_u32 v5, 2048, v3
 v_subrev_u32 v6, 1024, v3
 v_lshlrev_b32 v7, 6, v2
 v_lshlrev_b32 v8, 4, v2
 s_waitcnt lgkmcnt(0)
 buffer_load_dwordx4 {vr(vK,4)}, v4, {srd('K')}, 0 offen
 buffer_load_dwordx4 {vr(vK+4,4)}, v5, {srd('K')}, 0 offen
 buffer_load_dwordx4 {vr(vK+8,4)}, v6, {srd('K')}, 0 offen
 buffer_load_dwordx4 {vr(vK+12,4)}, v3, {srd('K')}, 0 offen
 buffer_load_dwordx4 {vr(vK+16,4)}, v3, {srd('K')}, 0 offen offset:1024
""")
    for i in range(4): P(f" buffer_load_dwordx4 {vr(vW+4*i,4)}, v7, {srd('SHK')}, 0 offen offset:{16*i}")
    P(f"""
 buffer_load_dwordx4 {vr(vV,4)}, v3, {srd('V')}, 0 offen
 buffer_load_dwordx4 {vr(vV+4,4)}, v3, {srd('V')}, 0 offen offset:1024
 buffer_load_dwordx4 {vr(vX,4)}, v3, {srd('X')}, 0 offen
 buffer_load_dwordx4 {vr(vX+4,4)}, v3, {srd('X')}, 0 offen offset:1024
 buffer_load_dwordx4 {vr(vD,4)}, v8, {srd('SSMD')}, 0 offen
""")
    return 14
def p0_kv(P):
    Krow = lambda i, d: vK + 4*i + d
    prs = [(3,2),(1,0),(4,3),(2,1)]
    for ch in range(8):
        d = ch >> 1; sel = sHI if ch & 1 else sLO
        for n,(x,y) in enumerate(prs):
            P(f" v_perm_b32 v{vT+4*ch+n}, v{Krow(y,d)}, v{Krow(x,d)}, {sel}")
    for ch in range(8):
        P(f" v_dot2_f32_bf16 v{vKS+ch}, v{vT+4*ch+1}, v{vW+2*ch+1}, 0")
        P(f" v_dot2_f32_bf16 v{vKS+8+ch}, v{vT+4*ch+3}, v{vW+2*ch+1}, 0")
    for ch in range(8):
        P(f" v_dot2_f32_bf16 v{vKS+ch}, v{vT+4*ch+0}, v{vW+2*ch}, v{vKS+ch}")
        P(f" v_dot2_f32_bf16 v{vKS+8+ch}, v{vT+4*ch+2}, v{vW+2*ch}, v{vKS+8+ch}")
    for i in range(8):
        P(f" v_lshlrev_b32 v{vT+2*i}, 16, v{vV+i}\n v_and_b32 v{vT+2*i+1}, {sMASK}, v{vV+i}")
    for t in range(4): P(f" v_mov_b32 v{vQ+4*t+1}, {sTAG}\n v_mov_b32 v{vQ+4*t+3}, {sTAG}")
    for i in range(8): P(f" v_pk_mul_f32 {vr(vKS+2*i,2)}, {vr(vKS+2*i,2)}, {vr(vT+2*i,2)}")
    for t in range(4):
        P(f" v_cvt_pk_bf16_f32 v{vQ+4*t}, v{vKS+2*t}, v{vKS+2*t+1}")
        P(f" v_cvt_pk_bf16_f32 v{vQ+4*t+2}, v{vKS+8+2*t}, v{vKS+8+2*t+1}")
def p0_store(P, sc):
    P(f"""
 v_lshlrev_b32 v4, 16, v2
 v_lshl_add_u32 v4, v1, 4, v4
 s_lshl_b32 s3, {sP}, 6
""")
    if KVBOX: P(f" s_add_u32 s3, s3, {KVBOX}")
    for t in range(4):
        P(f" buffer_store_dwordx4 {vr(vQ+4*t,4)}, v4, {srd('WS')}, s3 offen {sc}")
        if t < 3: P(f" s_add_u32 s3, s3, 16384")
    return 4

def row_stats(P, src, tmp, lds_off, out_m, out_r):
    S0, Q0, S1, Q1 = tmp, tmp+1, tmp+2, tmp+3
    for (S, Q, b) in ((S0,Q0,src),(S1,Q1,src+8)):
        P(f" v_add_f32 v{S}, v{b}, v{b+1}\n v_mul_f32 v{Q}, v{b}, v{b}")
    for i in range(1, 8):
        for (S, Q, b) in ((S0,Q0,src),(S1,Q1,src+8)):
            if i >= 2: P(f" v_add_f32 v{S}, v{S}, v{b+i}")
            P(f" v_fmac_f32 v{Q}, v{b+i}, v{b+i}")
    P(f"""
 v_permlane32_swap_b32 v{S0}, v{Q0}
 v_permlane32_swap_b32 v{S1}, v{Q1}
 v_bfe_u32 v{tmp+4}, v0, 4, 2
 v_add_f32 v{S0}, v{S0}, v{Q0}
 v_add_f32 v{S1}, v{S1}, v{Q1}
 v_lshl_add_u32 v{tmp+4}, v1, 2, v{tmp+4}
 v_lshlrev_b32 v{tmp+4}, 4, v{tmp+4}
 v_permlane16_swap_b32 v{S0}, v{S1}
 s_lshl_b32 s3, {sW}, 2
 v_add_f32 v{S0}, v{S0}, v{S1}
 v_add_u32 v{tmp+4}, s3, v{tmp+4}
 v_lshlrev_b32 v{tmp+5}, 6, v1
 v_add_f32_dpp v{S0}, v{S0}, v{S0} row_ror:4 row_mask:0xf bank_mask:0xf
 v_add_f32_dpp v{S0}, v{S0}, v{S0} row_ror:8 row_mask:0xf bank_mask:0xf
 ds_write_b32 v{tmp+4}, v{S0} offset:{lds_off}
 s_waitcnt lgkmcnt(0)
 s_barrier
 ds_read_b128 {vr(tmp+8,4)}, v{tmp+5} offset:{lds_off}
 ds_read_b128 {vr(tmp+12,4)}, v{tmp+5} offset:{lds_off+16}
 ds_read_b128 {vr(tmp+16,4)}, v{tmp+5} offset:{lds_off+32}
 ds_read_b128 {vr(tmp+20,4)}, v{tmp+5} offset:{lds_off+48}
 s_waitcnt lgkmcnt(0)
""")
    for k in range(4):
        b = tmp+8+4*k
        P(f" v_pk_add_f32 {vr(b,2)}, {vr(b,2)}, {vr(b+2,2)}")
    for k in range(4):
        b = tmp+8+4*k
        P(f" v_add_f32 v{tmp+k}, v{b}, v{b+1}")
    P(f"""
 v_mul_f32 v{tmp}, 0x3b000000, v{tmp}
 v_mul_f32 v{tmp+1}, 0x3b000000, v{tmp+1}
 v_mul_f32 v{tmp+2}, 0x3b000000, v{tmp+2}
 v_mul_f32 v{tmp+3}, 0x3b000000, v{tmp+3}
 v_fma_f32 v{tmp+2}, -v{tmp}, v{tmp}, v{tmp+2}
 v_fma_f32 v{tmp+3}, -v{tmp+1}, v{tmp+1}, v{tmp+3}
 v_max_f32 v{tmp+2}, 0, v{tmp+2}
 v_max_f32 v{tmp+3}, 0, v{tmp+3}
 v_cvt_pk_bf16_f32 v{tmp+4}, v{tmp}, v{tmp+1}
 v_cvt_pk_bf16_f32 v{tmp+5}, v{tmp+2}, v{tmp+3}
 v_lshlrev_b32 v{out_m}, 16, v{tmp+4}
 v_and_b32 v{out_m+1}, {sMASK}, v{tmp+4}
 v_lshlrev_b32 v{tmp+2}, 16, v{tmp+5}
 v_and_b32 v{tmp+3}, {sMASK}, v{tmp+5}
 v_add_f32 v{tmp+2}, 0x3727c5ac, v{tmp+2}
 v_add_f32 v{tmp+3}, 0x3727c5ac, v{tmp+3}
 v_cvt_pk_bf16_f32 v{tmp+5}, v{tmp+2}, v{tmp+3}
 v_lshlrev_b32 v{tmp+2}, 16, v{tmp+5}
 v_and_b32 v{tmp+3}, {sMASK}, v{tmp+5}
 v_sqrt_f32 v{tmp+2}, v{tmp+2}
 v_sqrt_f32 v{tmp+3}, v{tmp+3}
 v_cvt_pk_bf16_f32 v{tmp+5}, v{tmp+2}, v{tmp+3}
 v_lshlrev_b32 v{tmp+2}, 16, v{tmp+5}
 v_and_b32 v{tmp+3}, {sMASK}, v{tmp+5}
 v_rcp_f32 v{out_r}, v{tmp+2}
 v_rcp_f32 v{out_r+1}, v{tmp+3}
""")

def p0_ln1(P, lds_off):
    for i in range(8):
        P(f" v_lshlrev_b32 v{vu1+2*i}, 16, v{vX+i}\n v_and_b32 v{vu1+2*i+1}, {sMASK}, v{vX+i}")
    row_stats(P, vu1, vT, lds_off, 10, 12)
    for r in range(2):
        for i in range(8):
            P(f" v_sub_f32 v{vq+8*r+i}, v{vu1+8*r+i}, v{10+r}")
    for r in range(2):
        for i in range(8):
            P(f" v_mul_f32 v{vq+8*r+i}, v{vq+8*r+i}, v{12+r}")
    for i in range(4):
        P(f" v_lshlrev_b32 v{vT+2*i}, 16, v{vD+i}\n v_and_b32 v{vT+2*i+1}, {sMASK}, v{vD+i}")
    for r in range(2):
        for t in range(4):
            s = vQ+4*t+2*r
            P(f" v_lshlrev_b32 v{vKS+8*r+2*t}, 16, v{s}\n v_and_b32 v{vKS+8*r+2*t+1}, {sMASK}, v{s}")
    for r in range(2):
        for t in range(4):
            P(f" v_pk_mul_f32 {vr(vKS+8*r+2*t,2)}, {vr(vKS+8*r+2*t,2)}, {vr(vT+2*t,2)}")
    for i in range(8):
        P(f" v_pk_fma_f32 {vr(vu1+2*i,2)}, {vr(vq+2*i,2)}, {vr(vKS+2*i,2)}, {vr(vu1+2*i,2)}")

vY = 16
def ln2_load(P, sc):
    P(f"""
 v_lshlrev_b32 v4, 4, v0
 s_lshl_b32 s3, {sP}, 14
 s_add_u32 s3, s3, {YBOX}
""")
    for t in range(4):
        P(f" buffer_load_dwordx4 {vr(vY+4*t,4)}, v4, {srd('WS')}, s3 offen {sc}")
        if t < 3: P(" s_add_u32 s3, s3, 4096")
def ln2_compute(P, lds_off, sc):
    vh, vhp, vn = 32, 48, 56
    for r in range(2):
        for t in range(4):
            s = vY+4*t+2*r
            P(f" v_lshlrev_b32 v{vh+8*r+2*t}, 16, v{s}\n v_and_b32 v{vh+8*r+2*t+1}, {sMASK}, v{s}")
    for i in range(8):
        P(f" v_pk_fma_f32 {vr(vh+2*i,2)}, {vr(vq+2*i,2)}, {vr(vh+2*i,2)}, {vr(vu1+2*i,2)}")
    for i in range(8):
        P(f" v_cvt_pk_bf16_f32 v{vhp+i}, v{vh+2*i}, v{vh+2*i+1}")
    for i in range(8):
        P(f" v_lshlrev_b32 v{vh+2*i}, 16, v{vhp+i}\n v_and_b32 v{vh+2*i+1}, {sMASK}, v{vhp+i}")
    row_stats(P, vh, vT, lds_off, 10, 12)
    for r in range(2):
        for i in range(8):
            P(f" v_sub_f32 v{vh+8*r+i}, v{vh+8*r+i}, v{10+r}")
    for r in range(2):
        for i in range(8):
            P(f" v_mul_f32 v{vh+8*r+i}, v{vh+8*r+i}, v{12+r}")
    for i in range(8):
        P(f" v_cvt_pk_bf16_f32 v{vn+i}, v{vh+2*i}, v{vh+2*i+1}")
    P(f"""
 v_lshlrev_b32 v4, 9, v2
 v_lshl_add_u32 v4, v1, 4, v4
 s_lshl_b32 s3, {sG}, 17
 s_lshr_b32 s4, {sJ}, 2
 s_lshl_b32 s4, s4, 15
 s_add_u32 s3, s3, s4
 s_and_b32 s4, {sJ}, 3
 s_lshl_b32 s4, s4, 7
 s_add_u32 s3, s3, s4
 s_add_u32 s3, s3, {HN}
 buffer_store_dwordx4 {vr(vn,4)}, v4, {srd('WS')}, s3 offen {sc}
 buffer_store_dwordx4 {vr(vn+4,4)}, v4, {srd('WS')}, s3 offen offset:64 {sc}
 s_mov_b32 s3, {HRES}
 buffer_store_dwordx4 {vr(vhp,4)}, v3, {srd('WS')}, s3 offen {sc}
 buffer_store_dwordx4 {vr(vhp+4,4)}, v3, {srd('WS')}, s3 offen offset:1024 {sc}
""")

CS = 4160; FCch = 8*CS
vA, vB, vF, aC = 16, 144, 208, 224
def conv_filter_load(P):
    P(f"""
 v_lshlrev_b32 v9, 4, v0
 v_subrev_u32 v14, 16, v9
 v_cmp_eq_u32 vcc, 0, v0
 s_lshl_b32 s3, {sC}, 13
 s_add_u32 s4, s3, 4096
 v_mov_b32 v15, 0x7fff0000
 v_cndmask_b32 v14, v14, v15, vcc
 buffer_load_dwordx4 {vr(vF,4)}, v14, {srd('SSMK')}, s3 offen
 buffer_load_dwordx4 {vr(vF+4,4)}, v9, {srd('SSMK')}, s3 offen
 buffer_load_dwordx4 {vr(vF+8,4)}, v14, {srd('SSMK')}, s4 offen
 buffer_load_dwordx4 {vr(vF+12,4)}, v9, {srd('SSMK')}, s4 offen
""")
    return 4
def conv_filter_prep(P, FC, KVR, tmp):
    for ch in range(2):
        w = vF + 8*ch; o = tmp; o2 = tmp+6; w2 = tmp+12
        base = FC + ch*FCch
        for i in range(6): P(f" v_alignbit_b32 v{o+i}, v{w+i+1}, v{w+i}, 16")
        for i in range(1,7): P(f" v_alignbit_b32 v{o2+i-1}, v{w+i+1}, v{w+i}, 16")
        for i in range(1,7): P(f" v_mov_b32 v{w2+i-1}, v{w+i}")
        src = {0: w+4, 1: o, 2: w2, 3: o2, 4: w+2, 5: o+2, 6: w2+2, 7: o2+2}
        if base + 7*CS + 16 > 65535:
            P(f" v_add_u32 v14, {base}, v9"); areg = "v14"; b0 = 0
        else: areg = "v9"; b0 = base
        for a in range(8):
            P(f" ds_write_b128 {areg}, {vr(src[a],4)} offset:{b0 + a*CS + (32 if a == 0 else 16)}")
        if ch == 0: P(" s_waitcnt lgkmcnt(0)")
    z = tmp+20
    P(f"""
 v_mov_b32 v{z}, 0
 v_mov_b32 v{z+1}, 0
 v_mov_b32 v{z+2}, 0
 v_mov_b32 v{z+3}, 0
 v_mul_u32_u24 v14, {CS}, v0
 v_and_b32 v15, 7, v0
 v_cmp_eq_u32 vcc, 0, v15
 v_add_u32 v15, 16, v14
 v_cndmask_b32 v14, v14, v15, vcc
 v_add_u32 v14, {FC}, v14
 v_subrev_u32 v15, 16, v0
 v_lshrrev_b32 v13, 5, v15
 v_mul_u32_u24 v13, {4608-512}, v13
 v_lshl_add_u32 v15, v15, 4, v13
 v_add_u32 v15, {KVR+4096}, v15
 v_cmp_gt_u32 vcc, 16, v0
 s_nop 1
 v_cndmask_b32 v14, v15, v14, vcc
 v_cmp_gt_u32 vcc, 80, v0
 s_and_saveexec_b64 s[4:5], vcc
 ds_write_b128 v14, {vr(z,4)}
 s_mov_b64 exec, s[4:5]
""")
def conv_a_reads(P, FC):
    P(f"""
 v_and_b32 v13, 15, v0
 v_add_u32 v13, 1, v13
 v_and_b32 v14, 7, v13
 v_mul_u32_u24 v14, {CS}, v14
 v_lshrrev_b32 v13, 3, v13
 v_bfe_u32 v15, v0, 4, 2
 v_add_u32 v13, v13, v15
 v_lshl_add_u32 v14, v13, 4, v14
 s_lshr_b32 s3, {sW}, 1
 s_mul_i32 s3, s3, {FCch}
 s_and_b32 s4, {sW}, 1
 s_lshl_b32 s4, s4, 8
 s_add_u32 s3, s3, s4
 s_add_u32 s3, s3, {FC}
 v_add_u32 v14, s3, v14
""")
    n = 0
    for bb in range(4):
        for a in range(8):
            P(f" ds_read_b128 {vr(vA+32*bb+4*a,4)}, v14 offset:{(8*a+bb)*64}")
            n += 1
            if n % 8 == 0: P(" s_waitcnt lgkmcnt(4)")
def conv_kv_load(P, sc):
    P(f" s_lshl_b32 s3, {sC}, 14")
    if KVBOX: P(f" s_add_u32 s3, s3, {KVBOX}")
    for i in range(4):
        P(f" buffer_load_dwordx4 {vr(vF+4*i,4)}, v9, {srd('WS')}, s3 offen {sc}")
        if i < 3: P(" s_add_u32 s3, s3, 4096")
def conv_kv_to_lds(P, KVR):
    P(f" v_lshlrev_b32 v13, 2, v0\n v_sub_u32 v13, {KVR + 255*4}, v13")
    for i in range(4):
        P(f" v_perm_b32 v{vF+4*i+1}, v{vF+4*i}, v{vF+4*i+2}, {sLO}")
        P(f" v_perm_b32 v{vF+4*i+3}, v{vF+4*i}, v{vF+4*i+2}, {sHI}")
    for i in range(4):
        P(f" ds_write_b32 v13, v{vF+4*i+1} offset:{(3-i)*1024}")
        P(f" ds_write_b32 v13, v{vF+4*i+3} offset:{(3-i)*1024+4608}")
def conv_b_addr(P, KVR):
    P(f"""
 v_and_b32 v13, 15, v0
 v_lshlrev_b32 v13, 5, v13
 v_bfe_u32 v15, v0, 4, 2
 v_lshlrev_b32 v15, 4, v15
 v_sub_u32 v15, v15, v13
 s_lshr_b32 s3, {sW}, 1
 s_mul_i32 s3, s3, 4608
 s_and_b32 s4, {sW}, 1
 s_lshl_b32 s4, s4, 8
 s_add_u32 s3, s3, s4
 s_add_u32 s3, s3, {KVR + 480}
 v_add_u32 v15, s3, v15
""")
def conv_mfma(P):
    def rd(bb):
        for d in range(8): P(f" ds_read_b128 {vr(vB+32*(bb&1)+4*d,4)}, v15 offset:{bb*64+(7-d)*512}")
    rd(0)
    for bb in range(4):
        for d in range(8):
            if d == 0 and bb == 0: P(" s_waitcnt lgkmcnt(7)")
            elif bb == 0 and d == 1: P(" s_waitcnt lgkmcnt(0)")
            elif d == 0: P(" s_waitcnt lgkmcnt(0)")
            if d == 1 and bb < 3: rd(bb+1)
            for a in range(8-d):
                j = a + d
                c = "0" if (bb == 0 and d == 0) else ar(aC+4*j,4)
                P(f" v_mfma_f32_16x16x32_bf16 {ar(aC+4*j,4)}, {vr(vA+32*bb+4*a,4)}, {vr(vB+32*(bb&1)+4*d,4)}, {c}")
def conv_epilogue(P, PART, sc):
    P(f"""
 v_bfe_u32 v13, v0, 4, 2
 v_mul_u32_u24 v13, 320, v13
 v_and_b32 v14, 15, v0
 v_lshl_add_u32 v13, v14, 4, v13
 s_mul_i32 s3, {sW}, 10240
 s_add_u32 s3, s3, {PART}
 v_add_u32 v13, s3, v13
 v_lshrrev_b32 v14, 7, v0
 v_mul_u32_u24 v14, 1280, v14
 v_bfe_u32 v15, v0, 1, 2
 v_mul_u32_u24 v15, 320, v15
 v_add_u32 v14, v14, v15
 v_bfe_u32 v15, v0, 3, 4
 v_lshl_add_u32 v14, v15, 4, v14
 v_and_b32 v15, 1, v0
 v_lshl_add_u32 v14, v15, 3, v14
 v_add_u32 v14, {PART}, v14
""")
    for j in range(8): P(f" ds_write_b128 v13, {ar(aC+4*j,4)} offset:{j*1280}")
    P(f"""
 v_lshrrev_b32 v4, 2, v0
 v_lshlrev_b32 v4, 14, v4
 v_and_b32 v5, 3, v0
 v_lshl_add_u32 v4, v5, 4, v4
 s_and_b32 s3, {sC}, 3
 s_lshl_b32 s3, s3, 12
 s_lshr_b32 s4, {sC}, 2
 s_lshl_b32 s4, s4, 6
 s_add_u32 s3, s3, s4
 s_add_u32 s3, s3, {YBOX}
""")
    R = vB; Qd = vB + 32
    for i in range(4): P(f" v_mov_b32 v{Qd+4*i+1}, {sTAG}\n v_mov_b32 v{Qd+4*i+3}, {sTAG}")
    P(" s_waitcnt lgkmcnt(0)\n s_barrier")
    for i in range(4):
        for w in range(4): P(f" ds_read_b64 {vr(R+8*i+2*w,2)}, v14 offset:{i*2560+w*10240}")
        if i == 2: P(" s_waitcnt lgkmcnt(8)")
    for i in range(4):
        P(f" s_waitcnt lgkmcnt({min(12-4*i, 15)})" if i < 3 else " s_waitcnt lgkmcnt(0)")
        b = R+8*i
        P(f""" v_pk_add_f32 {vr(b,2)}, {vr(b,2)}, {vr(b+2,2)}
 v_pk_add_f32 {vr(b+4,2)}, {vr(b+4,2)}, {vr(b+6,2)}
 v_cvt_pk_bf16_f32 v{Qd+4*i}, v{b}, v{b+4}
 v_cvt_pk_bf16_f32 v{Qd+4*i+2}, v{b+1}, v{b+5}
 buffer_store_dwordx4 {vr(Qd+4*i,4)}, v4, {srd('WS')}, s3 offen {sc}""")
        if i < 3: P(f" s_add_u32 s3, s3, {1<<20}")

def unit(jj, t):
    if t < 3: return t if t < jj else t + 4
    return jj + (t - 3)
vHN = 16
SU = 49152 + 128
def g1_lane_consts(P, vS, vR):
    P(f"""
 v_and_b32 v4, 63, v0
 s_mul_i32 s65, {sJ}, 224
 s_and_b32 s66, {sJ}, 3
 s_mov_b32 s4, {(1<<32)//6 + 1}
""")
    for i in range(3):
        P(f"""
 v_add_u32 v5, {64*i}, v4
 v_mul_hi_u32 v6, v5, s4
 v_mul_u32_u24 v7, 6, v6
 v_sub_u32 v7, v5, v7
 v_lshrrev_b32 v8, 1, v7
 v_cmp_le_u32 vcc, s66, v8
 v_lshlrev_b32 v7, 4, v7
 v_add_u32 v8, 128, v7
 v_cndmask_b32 v7, v7, v8, vcc
 v_mul_u32_u24 v6, 3584, v6
 v_add_u32 v{vS+i}, v6, v7
""")
    P(f"""
 v_lshrrev_b32 v5, 3, v4
 v_mul_u32_u24 v6, 3584, v5
 v_and_b32 v7, 7, v4
 v_and_b32 v5, 2, v5
 v_xor_b32 v7, v7, v5
 s_lshl_b32 s4, s66, 5
 v_add_u32 v6, s4, v6
 v_lshl_add_u32 v{vR}, v7, 4, v6
 v_xor_b32 v7, 4, v7
 v_lshl_add_u32 v{vR+1}, v7, 4, v6
""")
def g1_dma_S(P, vS, SB, chunks):
    for idx in chunks:
        P(f" s_mul_i32 s3, {sW}, {32*3584}\n s_add_u32 s3, s3, s65\n s_add_u32 s3, s3, {idx*128*3584}")
        P(f" s_mul_i32 s4, {sW}, 3072\n s_add_u32 s4, s4, {SB + idx*4*3072}")
        for m, name in enumerate(("WG","WU")):
            for i in range(3):
                P(f" s_add_u32 m0, s4, {m*SU + i*1024}\n buffer_load_dwordx4 v{vS+i}, {srd(name)}, s3 offen lds")
def g1_dma_R(P, vR, RB, groups):
    for idx in groups:
        P(f" s_mul_i32 s3, {sW}, {8*3584}\n s_add_u32 s3, s3, s65\n s_add_u32 s3, s3, {idx*32*3584}")
        P(f" s_lshl_b32 s4, {sW}, 10\n s_add_u32 s4, s4, {RB + idx*4096}")
        for m, name in enumerate(("WG","WU")):
            P(f" s_add_u32 m0, s4, {m*65536}\n buffer_load_dwordx4 v{vR+m}, {srd(name)}, s3 offen lds")
def g1_rd_consts(P, vSa, vRa, SB, RB):
    P(f"""
 v_bfe_u32 v4, v0, 5, 1
 v_bfe_u32 v5, v0, 4, 1
 v_bfe_u32 v6, v0, 2, 2
 v_and_b32 v7, 3, v0
 v_lshl_add_u32 v4, v4, 3, v6
 v_mul_u32_u24 v8, 96, v4
 v_lshl_add_u32 v8, v7, 3, v8
 v_mul_u32_u24 v{vSa}, {SU}, v5
 v_add_u32 v8, {SB}, v8
 v_add_u32 v{vSa}, v{vSa}, v8
 v_lshlrev_b32 v8, 7, v4
 v_lshl_add_u32 v8, v7, 3, v8
 v_lshl_add_u32 v8, v5, 16, v8
 v_add_u32 v8, {RB}, v8
 v_lshrrev_b32 v6, 1, v6
 v_lshl_add_u32 v6, v5, 1, v6
""")
    for t in range(4):
        P(f" v_xor_b32 v7, {t}, v6\n v_lshl_add_u32 v{vRa+t}, v7, 5, v8")
def g1_hn_load(P, sc):
    P(f"""
 v_and_b32 v4, 63, v0
 v_lshlrev_b32 v4, 4, v4
 s_lshl_b32 s3, {sG}, 17
 s_lshl_b32 s4, {sW}, 15
 s_add_u32 s3, s3, s4
 s_add_u32 s3, s3, {HN}
""")
    for k in range(32):
        P(f" buffer_load_dwordx4 {vr(vHN+4*k,4)}, v4, {srd('WS')}, s3 offen offset:{(k&3)*1024} {sc}")
        if k & 3 == 3 and k < 31: P(" s_add_u32 s3, s3, 4096")
def g1_epilogue_tile(P, acc, tmp, t, vaddr, sbase, sc):
    for i in range(8): P(f" v_mul_f32 v{tmp+i}, 0xbfb8aa3b, v{acc+i}")
    for i in range(8): P(f" v_exp_f32 v{tmp+i}, v{tmp+i}")
    for i in range(8): P(f" v_add_f32 v{tmp+i}, 1.0, v{tmp+i}")
    for i in range(8): P(f" v_rcp_f32 v{tmp+i}, v{tmp+i}")
    for i in range(8): P(f" v_mul_f32 v{tmp+i}, v{tmp+i}, v{acc+8+i}")
    for i in range(4): P(f" v_cvt_pk_bf16_f32 v{tmp+8+i}, v{tmp+2*i}, v{tmp+2*i+1}")
    if t < 4: P(f" buffer_store_dwordx4 {vr(tmp+8,4)}, {vaddr}, {srd('WS')}, {sbase[0]} offen offset:{t*1024} {sc}")
    else:     P(f" buffer_store_dwordx4 {vr(tmp+8,4)}, {vaddr}, {srd('WS')}, {sbase[1]} offen offset:{(t-4)*1024} {sc}")

def g2_wd_consts(P, vD, vRd, LB):
    P(f"""
 v_and_b32 v4, 63, v0
 v_lshrrev_b32 v5, 3, v4
 v_and_b32 v7, 7, v4
 v_and_b32 v6, 2, v5
 v_lshlrev_b32 v6, 1, v6
 v_xor_b32 v7, v7, v6
 v_lshlrev_b32 v5, 10, v5
 v_lshl_add_u32 v{vD}, v7, 4, v5
 v_bfe_u32 v4, v0, 5, 1
 v_bfe_u32 v5, v0, 4, 1
 v_bfe_u32 v6, v0, 2, 2
 v_and_b32 v7, 3, v0
 v_lshl_add_u32 v4, v4, 2, v6
 v_lshlrev_b32 v8, 7, v4
 v_lshl_add_u32 v8, v7, 3, v8
 v_add_u32 v8, s67, v8
 v_and_b32 v6, 2, v6
 v_or_b32 v6, v6, v5
 v_lshl_add_u32 v{vRd}, v6, 5, v8
 v_xor_b32 v6, 2, v6
 v_lshl_add_u32 v{vRd+1}, v6, 5, v8
""")
def g2_wd_dma(P, vD, jj, loff):
    P(f"""
 s_mul_i32 s3, {sW}, {448*1024}
 s_and_b32 s4, {sJ}, 7
 s_lshl_b32 s4, s4, 7
 s_add_u32 s3, s3, s4
 s_add_u32 s3, s3, {jj*112*1024}
""")
    for i in range(14):
        P(f" s_add_u32 m0, s67, {loff + i*1024}\n buffer_load_dwordx4 v{vD}, {srd('WD')}, s3 offen lds")
        if i < 13: P(" s_add_u32 s3, s3, 8192")
def g2_wd_read(P, vRd, jj, loff):
    n = 0
    for t in range(7):
        U = unit(jj, t)
        for tau in range(2):
            for io in range(2):
                d = ((jj*7+t)*2+tau)*4 + 2*io
                P(f" ds_read_b64_tr_b16 {ar(d,2)}, v{vRd+tau} offset:{loff + U*2048 + io*1024}")
                n += 1
                if n % 8 == 0: P(" s_waitcnt lgkmcnt(4)")
def g2_final(P, acc, RED, tmp, ldsc):
    P(f"""
 v_and_b32 v4, 63, v0
 v_lshlrev_b32 v4, 4, v4
 s_mul_i32 s3, {sW}, 16896
 s_add_u32 s3, s3, {RED}
 v_add_u32 v4, s3, v4
""")
    for blk in range(16):
        P(f" ds_write_b128 v4, {vr(acc+4*blk,4)} offset:{blk*1056}")
    P(f"""
 v_and_b32 v5, 7, v0
 v_lshrrev_b32 v6, 3, v0
 v_mul_u32_u24 v7, 1056, v5
 v_lshl_add_u32 v7, v6, 4, v7
 v_add_u32 v7, {RED}, v7
 s_waitcnt lgkmcnt(0)
 s_barrier
""")
    for ups in range(2):
        for w in range(4):
            for h in range(2):
                P(f" ds_read_b128 {vr(tmp+32*ups+8*w+4*h,4)}, v7 offset:{ups*8*1056 + h*512 + w*16896}")
        if ups == 0: P(" s_waitcnt lgkmcnt(4)")
    for ups in range(2):
        P(f" s_waitcnt lgkmcnt({8 if ups == 0 else 0})")
        b = tmp+32*ups
        for i in range(4): P(f" v_pk_add_f32 {vr(b+2*i,2)}, {vr(b+2*i,2)}, {vr(b+8+2*i,2)}")
        for i in range(4): P(f" v_pk_add_f32 {vr(b+16+2*i,2)}, {vr(b+16+2*i,2)}, {vr(b+24+2*i,2)}")
        for i in range(4): P(f" v_pk_add_f32 {vr(b+2*i,2)}, {vr(b+2*i,2)}, {vr(b+16+2*i,2)}")
        hres = ldsc + 4*ups
        for i in range(4):
            P(f" v_lshlrev_b32 v{b+8+2*i}, 16, v{hres+i}\n v_and_b32 v{b+8+2*i+1}, {sMASK}, v{hres+i}")
        for i in range(4): P(f" v_pk_add_f32 {vr(b+2*i,2)}, {vr(b+2*i,2)}, {vr(b+8+2*i,2)}")
        for i in range(4): P(f" v_cvt_pk_bf16_f32 v{b+16+i}, v{b+2*i}, v{b+2*i+1}")
        P(f" buffer_store_dwordx4 {vr(b+16,4)}, v10, {srd('OUT')}, {'s68' if ups == 0 else 's69'} offen")
def g2_out_addr(P, hres, sc):
    P(f"""
 v_lshrrev_b32 v6, 3, v0
 v_and_b32 v5, 24, v6
 v_and_b32 v7, 3, v6
 v_lshl_add_u32 v5, v7, 1, v5
 v_bfe_u32 v7, v6, 2, 1
 v_add_u32 v5, v5, v7
 v_lshlrev_b32 v5, 10, v5
 v_and_b32 v7, 7, v0
 v_lshl_add_u32 v10, v7, 4, v5
 s_lshl_b32 s68, {sG}, 17
 s_lshr_b32 s4, {sJ}, 3
 s_lshl_b32 s4, s4, 16
 s_add_u32 s68, s68, s4
 s_and_b32 s4, {sJ}, 7
 s_lshl_b32 s4, s4, 7
 s_add_u32 s68, s68, s4
 s_add_u32 s69, s68, 32768
 s_add_u32 s3, s68, {HRES}
 s_add_u32 s4, s69, {HRES}
 buffer_load_dwordx4 {vr(hres,4)}, v10, {srd('WS')}, s3 offen {sc}
 buffer_load_dwordx4 {vr(hres+4,4)}, v10, {srd('WS')}, s4 offen {sc}
""")
```

```python
import sys
sys.path.insert(0, "gen")
from asmlib import Prog
from phases import *

HEAD = open("sequential_preLN__ssm_conv_h3__glu_gated_glu__prompt.s.ref").read().split("; Override launch")[0]
KD = """
.amdhsa_kernel {name}
  .amdhsa_next_free_vgpr 512
  .amdhsa_next_free_sgpr 102
  .amdhsa_accum_offset 256
  .amdhsa_group_segment_fixed_size 0
  .amdhsa_kernarg_size 104
  .amdhsa_user_sgpr_count 2
  .amdhsa_user_sgpr_kernarg_segment_ptr 1
  .amdhsa_system_sgpr_workgroup_id_x 1
.end_amdhsa_kernel
"""
def k1():
    P = Prog(); prologue(P, "L1_end", ["K","V","X","SHK","SSMD","WS"])
    p0_loads(P); P(" s_waitcnt vmcnt(0)"); p0_kv(P); p0_store(P, "")
    P("L1_end:\n s_endpgm"); return P
def k2():
    FC, KVR, PART = 0, 66560, 0
    P = Prog(); prologue(P, "L2_end", ["SSMK","WS"])
    P(" s_waitcnt lgkmcnt(0)")
    conv_filter_load(P); P(" s_waitcnt vmcnt(0)")
    conv_filter_prep(P, FC, KVR, 144)
    P(" s_waitcnt lgkmcnt(0)")
    conv_kv_load(P, "")
    P(" s_barrier")
    conv_a_reads(P, FC)
    P(" s_waitcnt vmcnt(0)")
    conv_kv_to_lds(P, KVR); conv_b_addr(P, KVR)
    P(" s_waitcnt lgkmcnt(0)\n s_barrier")
    conv_mfma(P); conv_epilogue(P, PART, "")
    P("L2_end:\n s_endpgm"); return P
def k3():
    P = Prog(); prologue(P, "L3_end", ["K","V","X","SHK","SSMD","WS"])
    p0_loads(P); P(" s_waitcnt vmcnt(0)"); p0_kv(P); p0_ln1(P, 0)
    ln2_load(P, ""); P(" s_waitcnt vmcnt(0)"); ln2_compute(P, 256, "")
    P("L3_end:\n s_endpgm"); return P
def k4():
    P = Prog(); prologue(P, "L4_end", ["WG","WU","WS"])
    vS, vR, vSa, vRa = 240, 243, 245, 246
    acc = 144; fr = 208; tmp = 224
    g1_lane_consts(P, vS, vR); g1_rd_consts(P, vSa, vRa, 0, 0)
    P(" s_waitcnt lgkmcnt(0)")
    g1_dma_S(P, vS, 0, range(4)); g1_hn_load(P, "")
    P(f"""
 s_lshl_b32 s70, {sG}, 2
 s_add_u32 s70, s70, {sW}
 s_lshl_b32 s70, s70, 4
 s_add_u32 s70, s70, {sJ}
 s_mul_i32 s70, s70, 7168
 s_add_u32 s70, s70, {HH}
 s_add_u32 s71, s70, 4096
 s_waitcnt vmcnt(0)
 s_barrier
""")
    for k in range(32):
        for t in range(3):
            for io in range(2): P(f" ds_read_b64_tr_b16 {vr(fr+4*t+2*io,2)}, v{vSa} offset:{k*1536+io*384+t*32}")
        P(" s_waitcnt lgkmcnt(0)")
        for t in range(3):
            P(f" v_mfma_f32_32x32x16_bf16 {vr(acc+16*t,16)}, {vr(fr+4*t,4)}, {vr(vHN+4*k,4)}, {'0' if k == 0 else vr(acc+16*t,16)}")
        P(" s_nop 7")
    P(" s_barrier")
    g1_dma_R(P, vR, 0, range(16))
    for t in range(3): g1_epilogue_tile(P, acc+16*t, tmp, t, "v4", ("s70","s71"), "")
    P(" s_waitcnt vmcnt(0)\n s_barrier")
    for k in range(32):
        for t in range(4):
            for io in range(2): P(f" ds_read_b64_tr_b16 {vr(fr+4*t+2*io,2)}, v{vRa+t} offset:{k*2048+io*512}")
        P(" s_waitcnt lgkmcnt(0)")
        for t in range(4):
            P(f" v_mfma_f32_32x32x16_bf16 {vr(acc+16*t,16)}, {vr(fr+4*t,4)}, {vr(vHN+4*k,4)}, {'0' if k == 0 else vr(acc+16*t,16)}")
        P(" s_nop 7")
    for t in range(4): g1_epilogue_tile(P, acc+16*t, tmp, 3+t, "v4", ("s70","s71"), "")
    P("L4_end:\n s_endpgm"); return P
def k5():
    P = Prog(); prologue(P, "L5_end", ["WD","WS","OUT"])
    vD, vRd = 12, 14
    acc = 144; ring = 16; hres = 208
    P(f" s_mul_i32 s67, {sW}, 28672")
    g2_wd_consts(P, vD, vRd, 0)
    P(" s_waitcnt lgkmcnt(0)")
    g2_out_addr(P, hres, "")
    g2_wd_dma(P, vD, 0, 0); g2_wd_dma(P, vD, 1, 14336)
    for jj in range(4):
        P(f" s_waitcnt vmcnt({14 if jj < 3 else 0})")
        g2_wd_read(P, vRd, jj, (jj&1)*14336)
        P(" s_waitcnt lgkmcnt(0)")
        if jj < 2: g2_wd_dma(P, vD, jj+2, (jj&1)*14336)
    P(f"""
 v_and_b32 v4, 63, v0
 v_lshlrev_b32 v4, 4, v4
 s_lshl_b32 s70, {sG}, 2
 s_lshr_b32 s4, {sJ}, 3
 s_lshl_b32 s4, s4, 1
 s_add_u32 s70, s70, s4
 s_lshl_b32 s70, s70, 4
 s_lshl_b32 s4, {sW}, 2
 s_add_u32 s70, s70, s4
 s_mul_i32 s70, s70, 7168
 s_add_u32 s70, s70, {HH}
""")
    steps = [(t, jj) for t in range(7) for jj in range(4)]
    def ld(n):
        t, jj = steps[n]
        for ups in range(2):
            P(f" s_add_u32 s3, s70, {ups*16*7168 + jj*7168 + t*1024}")
            P(f" buffer_load_dwordx4 {vr(ring+((2*n+ups)%32)*4,4)}, v4, {srd('WS')}, s3 offen")
    for n in range(16): ld(n)
    for n,(t,jj) in enumerate(steps):
        outstanding = min(28, n+16) - n - 1
        P(f" s_waitcnt vmcnt({2*outstanding})")
        for ups in range(2):
            for tau in range(2):
                a = acc+32*ups+16*tau
                P(f" v_mfma_f32_32x32x16_bf16 {vr(a,16)}, {ar(((jj*7+t)*2+tau)*4,4)}, {vr(ring+((2*n+ups)%32)*4,4)}, {'0' if n == 0 else vr(a,16)}")
        if n+16 < 28:
            P(" s_nop 7")
            ld(n+16)
    P(" s_barrier")
    g2_final(P, acc, 0, 16, hres)
    P("L5_end:\n s_endpgm"); return P

ks = [("p0_kernel", k1, 0), ("conv_kernel", k2, 75776), ("ln_kernel", k3, 1024), ("g1_kernel", k4, 131072), ("g2_kernel", k5, 114688)]
extra = int(sys.argv[2]) if len(sys.argv) > 2 else 0
out = HEAD
for n, f, lds in ks: out += f"; @launch kernel={n} grid=(256,1,1) block=(256,1,1) lds={lds}\n"
for i in range(extra): out += f"; @launch kernel=nop_kernel grid=(256,1,1) block=(256,1,1) lds=0\n"
out += '.amdgcn_target "amdgcn-amd-amdhsa--gfx950"\n.text\n'
for n, f, lds in ks:
    out += f".globl {n}\n.p2align 8\n.type {n},@function\n{n}:\n" + f().fix()
names = [n for n,_,_ in ks]
if extra:
    out += ".globl nop_kernel\n.p2align 8\n.type nop_kernel,@function\nnop_kernel:\n s_endpgm\n"; names.append("nop_kernel")
out += '.section .rodata,"a"\n'
for n in names: out += ".p2align 6\n" + KD.format(name=n).lstrip("\n")
open(sys.argv[1], "w").write(out)
```

```python
import sys, os
sys.path.insert(0, "gen")
from asmlib import Prog

NAME = "sequential_preLN__ssm_conv_h3__glu_gated_glu__prompt_kernel"
TAGSLOT = 0
KVBOX = 0x100000
YBOX  = 0x500000
HN    = 0x900000
HRES  = 0xB00000
HH    = 0xD00000
STAMPS = 0x1480000
WS_BYTES = 0x1500000
SRD = dict(X=8, K=12, V=16, SHK=20, SSMK=24, SSMD=28, WG=32, WU=36, WD=40, OUT=44, WS=48)
KOFF = dict(X=0, K=8, V=16, SHK=24, SSMK=32, SSMD=40, WG=56, WU=64, WD=72, OUT=80, WS=96)
SIZE = dict(X=2097152, K=2097152, V=2097152, SHK=4096, SSMK=4096, SSMD=1024, WG=1835008, WU=1835008, WD=1835008, OUT=2097152, WS=WS_BYTES)
def srd(n): return f"s[{SRD[n]}:{SRD[n]+3}]"
sW, sP, sC, sG, sJ, sTAG, sLO, sHI, sMASK = "s56", "s57", "s58", "s59", "s60", "s61", "s62", "s63", "s64"
sJ224, sJJ, sJL, sO0, sO1, sHS0, sHS1, sSB, sROT, sE, sSPIN, sL3 = "s65", "s66", "s67", "s68", "s69", "s70", "s71", "s72", "s73", "s74", "s75", "s79"
sHNst = "s52"; sHNld = "s53"
def vr(b, n): return f"v[{b}:{b+n-1}]" if n > 1 else f"v{b}"
def ar(b, n): return f"a[{b}:{b+n-1}]" if n > 1 else f"a{b}"
def unit(jj, t):
    if t < 3: return t if t < jj else t + 4
    return jj + (t - 3)

SB = 0; SU = 49152 + 128
XR = 98432
KVR = XR; KVCH = 4608
PART = XR + 10240
K1 = 224
R1G = XR; R1U = R1G + K1*128
R2G = 0; R2U = 49408
STAT = 163840 - 512
BOUNCE = STAT - 8192
RED = 0; BS = 1088; REDW = 16*BS
LDS_BYTES = 163840
SPIN = 20000

class G(Prog):
    def __init__(self, stamps=False):
        super().__init__(); self.nvm = 0; self.marks = {}; self.stamps = stamps; self.tail = []; self.uid = 0
    def __call__(self, text):
        for l in text.split("\n"):
            s = l.strip()
            if not s: continue
            if s.startswith(("buffer_", "global_")): self.nvm += 1
            self.lines.append(l.rstrip())
    def mark(self, name): self.marks[name] = self.nvm
    def vmwait_text(self, name):
        n = self.nvm - self.marks[name]
        return f" s_waitcnt vmcnt({min(n, 63)})"
    def vmwait(self, name): self(self.vmwait_text(name))
    def st(self, i):
        if self.stamps: self(f" s_memrealtime s[98:99]\n s_waitcnt lgkmcnt(0)\n s_mov_b32 s{80+i}, s98")

vK, vW, vV, vX, vD, vQ, vKS, vT = 144, 164, 180, 188, 196, 200, 224, 240
vWD, vS, vST, vDUM = 216, 218, 221, 222
vBB = 208
vq, vu1 = 224, 240
vA, vAx, vB, vIN, aC = 16, 8, 144, 144, 224
vHN = 16

def entry(P, cfg):
    P(" s_cmp_ge_u32 s2, 256\n s_cbranch_scc1 L_end")
    if P.stamps: P(" s_memrealtime s[96:97]")
    for n in ("K","SHK","V","WS","X","SSMD","SSMK","WD","WG","WU","OUT"):
        P(f" s_load_dwordx2 s[{SRD[n]}:{SRD[n]+1}], s[0:1], {KOFF[n]}")
    P(f"""
 v_lshrrev_b32 v4, 6, v0
 s_bfe_u32 {sL3}, s2, 0x20003
 s_bfe_u32 s3, s2, 0x20001
 v_readfirstlane_b32 {sW}, v4
 s_lshl_b32 s3, s3, 2
 s_add_u32 {sG}, s3, {sL3}
 s_lshr_b32 {sJL}, s2, 5
 s_and_b32 s3, s2, 1
 s_lshl_b32 s3, s3, 3
 s_add_u32 {sJ}, s3, {sJL}
 s_lshl_b32 {sP}, {sG}, 4
 s_add_u32 {sP}, {sP}, {sJ}
 v_and_b32 v1, 3, v0
 v_lshrrev_b32 v2, 2, v0
 s_lshl_b32 s3, {sP}, 13
 v_lshlrev_b32 v3, 11, v1
 v_lshl_add_u32 v3, v2, 4, v3
 v_add_u32 v3, s3, v3
 v_subrev_u32 v4, 3072, v3
 v_subrev_u32 v5, 2048, v3
 v_subrev_u32 v6, 1024, v3
 v_lshlrev_b32 v7, 6, v2
""")
    for n in ("K","SHK","V"): P(f" s_mov_b32 s{SRD[n]+2}, {SIZE[n]}\n s_mov_b32 s{SRD[n]+3}, 0x20000")
    P(f"""
 s_waitcnt lgkmcnt(0)
 buffer_load_dwordx4 {vr(vK,4)}, v4, {srd('K')}, 0 offen
 buffer_load_dwordx4 {vr(vK+4,4)}, v5, {srd('K')}, 0 offen
 buffer_load_dwordx4 {vr(vK+8,4)}, v6, {srd('K')}, 0 offen
 buffer_load_dwordx4 {vr(vK+12,4)}, v3, {srd('K')}, 0 offen
 buffer_load_dwordx4 {vr(vK+16,4)}, v3, {srd('K')}, 0 offen offset:1024
 buffer_load_dwordx4 {vr(vV,4)}, v3, {srd('V')}, 0 offen
 buffer_load_dwordx4 {vr(vV+4,4)}, v3, {srd('V')}, 0 offen offset:1024
""")
    for i in range(4): P(f" buffer_load_dwordx4 {vr(vW+4*i,4)}, v7, {srd('SHK')}, 0 offen offset:{16*i}")
    P.mark("L1")
    if P.stamps: P(" s_mov_b32 s80, s96")
    P(f" s_load_dword {sTAG}, s[{SRD['WS']}:{SRD['WS']+1}], {TAGSLOT}")
    P(f"""
 s_getpc_b64 s[4:5]
L_pc:
 v_lshlrev_b32 v4, 7, v0
 v_min_u32 v4, L_codeend-L_pc-4, v4
 global_load_dword v{vDUM}, v4, s[4:5]
""")
    for n in ("WS","X","SSMD","SSMK","WD","WG","WU","OUT"): P(f" s_mov_b32 s{SRD[n]+2}, {SIZE[n]}\n s_mov_b32 s{SRD[n]+3}, 0x20000")
    P(f"""
 v_lshlrev_b32 v5, 4, v2
 buffer_load_dwordx4 {vr(vX,4)}, v3, {srd('X')}, 0 offen
 buffer_load_dwordx4 {vr(vX+4,4)}, v3, {srd('X')}, 0 offen offset:1024
 buffer_load_dwordx4 {vr(vD,4)}, v5, {srd('SSMD')}, 0 offen
 s_mov_b32 {sC}, s2
 s_mov_b32 {sLO}, 0x05040100
 s_mov_b32 {sHI}, 0x07060302
 s_mov_b32 {sMASK}, 0xffff0000
 s_mul_i32 {sJ224}, {sJ}, 224
 s_and_b32 {sJJ}, {sJ}, 3
 s_and_b32 s3, s2, 7
 s_lshl_b32 s3, s3, 2
 s_add_u32 {sSB}, s3, {sL3}
 s_lshl_b32 {sE}, {sJL}, 7
 s_add_u32 {sROT}, {sL3}, {sJL}
 s_and_b32 {sROT}, {sROT}, 3
 s_lshl_b32 s3, {sC}, 1
 s_lshr_b32 s4, {sW}, 1
 s_add_u32 s3, s3, s4
 s_lshl_b32 s3, s3, 12
 s_add_u32 s{SRD['SSMK']}, s{SRD['SSMK']}, s3
 s_addc_u32 s{SRD['SSMK']+1}, s{SRD['SSMK']+1}, 0
""")
    P.mark("L3")

def a_load_ops(P):
    P(f"""
 v_and_b32 v4, 15, v0
 v_subrev_u32 v4, 15, v4
 v_ashrrev_i32 v4, 1, v4
 v_lshlrev_b32 v4, 2, v4
 v_bfe_u32 v5, v0, 4, 3
 v_lshl_add_u32 v4, v5, 6, v4
 v_add_u32 v7, 32, v4
""")
    ops = []
    for i in range(8):
        ops.append(f" v_add_u32 v5, {4*i}, v4\n buffer_load_dword v{vA+i}, v5, {srd('SSMK')}, 0 offen")
    for a in range(8):
        for bb in range(4):
            if a == 0 and bb < 2: continue
            ops.append(f" buffer_load_dwordx4 {vr(vA+16*a+4*bb,4)}, v7, {srd('SSMK')}, 0 offen offset:{512*a+16*bb-32}")
        ops.append(f" buffer_load_dword v{vAx+a}, v7, {srd('SSMK')}, 0 offen offset:{512*a+32}")
    return ops
def a_prep(P):
    out = [" v_not_b32 v4, v0\n v_and_b32 v4, 1, v4\n v_lshlrev_b32 v4, 4, v4"]
    for a in range(8):
        for i in range(16):
            nxt = vA+16*a+i+1 if i < 15 else vAx+a
            out.append(f" v_alignbit_b32 v{vA+16*a+i}, v{nxt}, v{vA+16*a+i}, v4")
    return out

def p0_kv(P):
    Krow = lambda i, d: vK + 4*i + d
    prs = [(3,2),(1,0),(4,3),(2,1)]
    for half in range(2):
        for ch in range(4*half, 4*half+4):
            d = ch >> 1; sel = sHI if ch & 1 else sLO
            for n,(x,y) in enumerate(prs):
                P(f" v_perm_b32 v{vT+4*(ch&3)+n}, v{Krow(y,d)}, v{Krow(x,d)}, {sel}")
        for ch in range(4*half, 4*half+4):
            P(f" v_dot2_f32_bf16 v{vKS+ch}, v{vT+4*(ch&3)+1}, v{vW+2*ch+1}, 0")
            P(f" v_dot2_f32_bf16 v{vKS+8+ch}, v{vT+4*(ch&3)+3}, v{vW+2*ch+1}, 0")
        for ch in range(4*half, 4*half+4):
            P(f" v_dot2_f32_bf16 v{vKS+ch}, v{vT+4*(ch&3)+0}, v{vW+2*ch}, v{vKS+ch}")
            P(f" v_dot2_f32_bf16 v{vKS+8+ch}, v{vT+4*(ch&3)+2}, v{vW+2*ch}, v{vKS+8+ch}")
    for i in range(8):
        P(f" v_lshlrev_b32 v{vK+2*i}, 16, v{vV+i}\n v_and_b32 v{vK+2*i+1}, {sMASK}, v{vV+i}")
    for t in range(4):
        P(f" v_pk_mul_f32 {vr(vKS+2*t,2)}, {vr(vKS+2*t,2)}, {vr(vK+2*t,2)}")
        P(f" v_pk_mul_f32 {vr(vKS+8+2*t,2)}, {vr(vKS+8+2*t,2)}, {vr(vK+8+2*t,2)}")
        P(f" v_cvt_pk_bf16_f32 v{vQ+4*t}, v{vKS+2*t}, v{vKS+2*t+1}")
        P(f" v_cvt_pk_bf16_f32 v{vQ+4*t+2}, v{vKS+8+2*t}, v{vKS+8+2*t+1}")
        P(f" buffer_store_dwordx4 {vr(vQ+4*t,4)}, v{vST}, {srd('WS')}, s{4+t} offen sc1")
def p0_pre(P):
    P(f"""
 v_lshlrev_b32 v{vST}, 16, v2
 v_lshl_add_u32 v{vST}, v1, 4, v{vST}
 s_lshl_b32 s4, {sP}, 6
 s_add_u32 s4, s4, {KVBOX}
 s_add_u32 s5, s4, 16384
 s_add_u32 s6, s4, 32768
 s_add_u32 s7, s4, 49152
 s_mov_b32 {sSPIN}, {SPIN}
 s_waitcnt lgkmcnt(0)
 s_add_u32 {sTAG}, {sTAG}, 0x9E3779B1
""")
    for t in range(4): P(f" v_mov_b32 v{vQ+4*t+1}, {sTAG}\n v_mov_b32 v{vQ+4*t+3}, {sTAG}")

def row_stats(src, tmp, lds_off, out_m, out_r):
    o = []
    S0, Q0, S1, Q1 = tmp, tmp+1, tmp+2, tmp+3
    a = tmp+8
    for r in range(2):
        b = src+8*r
        o.append(f" v_pk_add_f32 {vr(a+4*r,2)}, {vr(b,2)}, {vr(b+2,2)}")
        o.append(f" v_pk_mul_f32 {vr(a+4*r+2,2)}, {vr(b,2)}, {vr(b,2)}")
    for i in range(1, 4):
        for r in range(2):
            b = src+8*r+2*i
            if i >= 2: o.append(f" v_pk_add_f32 {vr(a+4*r,2)}, {vr(a+4*r,2)}, {vr(b,2)}")
            o.append(f" v_pk_fma_f32 {vr(a+4*r+2,2)}, {vr(b,2)}, {vr(b,2)}, {vr(a+4*r+2,2)}")
    for k in range(4): o.append(f" v_add_f32 v{tmp+k}, v{a+2*k}, v{a+2*k+1}")
    o += f"""
 v_bfe_u32 v{tmp+4}, v0, 4, 2
 v_lshl_add_u32 v{tmp+4}, v1, 2, v{tmp+4}
 v_permlane32_swap_b32 v{S0}, v{Q0}
 v_permlane32_swap_b32 v{S1}, v{Q1}
 v_lshlrev_b32 v{tmp+4}, 4, v{tmp+4}
 v_add_f32 v{S0}, v{S0}, v{Q0}
 v_add_f32 v{S1}, v{S1}, v{Q1}
 s_lshl_b32 s3, {sW}, 2
 s_add_u32 s3, s3, {lds_off}
 v_permlane16_swap_b32 v{S0}, v{S1}
 v_add_u32 v{tmp+4}, s3, v{tmp+4}
 v_add_f32 v{S0}, v{S0}, v{S1}
 v_lshlrev_b32 v{tmp+5}, 6, v1
 v_add_u32 v{tmp+5}, {lds_off}, v{tmp+5}
 v_add_f32_dpp v{S0}, v{S0}, v{S0} row_ror:4 row_mask:0xf bank_mask:0xf
 v_add_f32_dpp v{S0}, v{S0}, v{S0} row_ror:8 row_mask:0xf bank_mask:0xf
 ds_write_b32 v{tmp+4}, v{S0}
 s_waitcnt lgkmcnt(0)
 s_barrier
 ds_read_b128 {vr(tmp+8,4)}, v{tmp+5}
 ds_read_b128 {vr(tmp+12,4)}, v{tmp+5} offset:16
 ds_read_b128 {vr(tmp+16,4)}, v{tmp+5} offset:32
 ds_read_b128 {vr(tmp+20,4)}, v{tmp+5} offset:48
 s_mov_b32 s4, 0x3b000000
 s_mov_b32 s5, 0x3b000000
 s_waitcnt lgkmcnt(0)""".strip("\n").split("\n")
    for k in range(4):
        b = tmp+8+4*k
        o.append(f" v_pk_add_f32 {vr(b,2)}, {vr(b,2)}, {vr(b+2,2)}")
    for k in range(4):
        b = tmp+8+4*k
        o.append(f" v_add_f32 v{tmp+k}, v{b}, v{b+1}")
    o += f"""
 v_pk_mul_f32 {vr(tmp,2)}, {vr(tmp,2)}, s[4:5]
 v_pk_mul_f32 {vr(tmp+2,2)}, {vr(tmp+2,2)}, s[4:5]
 v_pk_fma_f32 {vr(tmp+2,2)}, {vr(tmp,2)}, {vr(tmp,2)}, {vr(tmp+2,2)} neg_lo:[1,0,0] neg_hi:[1,0,0]
 v_cvt_pk_bf16_f32 v{tmp+4}, v{tmp}, v{tmp+1}
 v_max_f32 v{tmp+2}, 0, v{tmp+2}
 v_max_f32 v{tmp+3}, 0, v{tmp+3}
 v_cvt_pk_bf16_f32 v{tmp+5}, v{tmp+2}, v{tmp+3}
 v_lshlrev_b32 v{out_m}, 16, v{tmp+4}
 v_and_b32 v{out_m+1}, {sMASK}, v{tmp+4}
 v_lshlrev_b32 v{tmp+2}, 16, v{tmp+5}
 v_and_b32 v{tmp+3}, {sMASK}, v{tmp+5}
 v_add_f32 v{tmp+2}, 0x3727c5ac, v{tmp+2}
 v_add_f32 v{tmp+3}, 0x3727c5ac, v{tmp+3}
 v_cvt_pk_bf16_f32 v{tmp+5}, v{tmp+2}, v{tmp+3}
 v_lshlrev_b32 v{tmp+2}, 16, v{tmp+5}
 v_and_b32 v{tmp+3}, {sMASK}, v{tmp+5}
 v_sqrt_f32 v{tmp+2}, v{tmp+2}
 v_sqrt_f32 v{tmp+3}, v{tmp+3}
 v_cvt_pk_bf16_f32 v{tmp+5}, v{tmp+2}, v{tmp+3}
 v_lshlrev_b32 v{tmp+2}, 16, v{tmp+5}
 v_and_b32 v{tmp+3}, {sMASK}, v{tmp+5}
 v_rcp_f32 v{out_r}, v{tmp+2}
 v_rcp_f32 v{out_r+1}, v{tmp+3}""".strip("\n").split("\n")
    return o
def normalize(dst, src, m, r):
    o = []
    for row in range(2):
        sel = f"op_sel:[0,{row}] op_sel_hi:[1,{row}]"
        for i in range(4):
            o.append(f" v_pk_add_f32 {vr(dst+8*row+2*i,2)}, {vr(src+8*row+2*i,2)}, {vr(m,2)} {sel} neg_lo:[0,1] neg_hi:[0,1]")
    for row in range(2):
        sel = f"op_sel:[0,{row}] op_sel_hi:[1,{row}]"
        for i in range(4):
            o.append(f" v_pk_mul_f32 {vr(dst+8*row+2*i,2)}, {vr(dst+8*row+2*i,2)}, {vr(r,2)} {sel}")
    return o
def ln1():
    tmp = 144; kd = 172; dd = 168
    o = []
    for i in range(8): o.append(f" v_lshlrev_b32 v{vu1+2*i}, 16, v{vX+i}\n v_and_b32 v{vu1+2*i+1}, {sMASK}, v{vX+i}")
    for r in range(2):
        for t in range(4):
            s = vQ+4*t+2*r
            o.append(f" v_lshlrev_b32 v{kd+8*r+2*t}, 16, v{s}\n v_and_b32 v{kd+8*r+2*t+1}, {sMASK}, v{s}")
    for i in range(4): o.append(f" v_lshlrev_b32 v{vX+2*i}, 16, v{vD+i}\n v_and_b32 v{vX+2*i+1}, {sMASK}, v{vD+i}")
    for r in range(2):
        for t in range(4): o.append(f" v_pk_mul_f32 {vr(kd+8*r+2*t,2)}, {vr(kd+8*r+2*t,2)}, {vr(vX+2*t,2)}")
    o += row_stats(vu1, tmp, STAT, dd, dd+2)
    o += normalize(vq, vu1, dd, dd+2)
    for i in range(8): o.append(f" v_pk_fma_f32 {vr(vu1+2*i,2)}, {vr(vq+2*i,2)}, {vr(kd+2*i,2)}, {vr(vu1+2*i,2)}")
    return o

def tagcheck(P, base, ok_label, retry_label):
    P(f" v_xor_b32 v4, {sTAG}, v{base+1}")
    for i in range(1, 8): P(f" v_bitop3_b32 v4, v4, v{base+2*i+1}, {sTAG} bitop3:0xf6")
    P(f"""
 v_cmp_ne_u32 vcc, 0, v4
 s_cbranch_vccz {ok_label}
 s_sub_u32 {sSPIN}, {sSPIN}, 1
 s_cbranch_scc0 {retry_label}
 s_mov_b32 {sSPIN}, 0
{ok_label}:
""")

def bulk_consts(P):
    t = vT
    P(f"""
 v_and_b32 v{t}, 63, v0
 v_lshrrev_b32 v{t+1}, 3, v{t}
 v_and_b32 v{t+2}, 7, v{t}
 v_and_b32 v{t+3}, 2, v{t+1}
 v_lshlrev_b32 v{t+3}, 1, v{t+3}
 v_xor_b32 v{t+2}, v{t+2}, v{t+3}
 v_lshlrev_b32 v{t+1}, 10, v{t+1}
 v_lshl_add_u32 v{vWD}, v{t+2}, 4, v{t+1}
 v_add_u32 v{vWD+1}, 8192, v{vWD}
 s_mov_b32 s3, {(1<<32)//6 + 1}
""")
    for i in range(3):
        P(f"""
 v_add_u32 v{t+1}, {64*i}, v{t}
 v_mul_hi_u32 v{t+2}, v{t+1}, s3
 v_mul_u32_u24 v{t+3}, 6, v{t+2}
 v_sub_u32 v{t+3}, v{t+1}, v{t+3}
 v_lshrrev_b32 v{t+4}, 1, v{t+3}
 v_cmp_le_u32 vcc, {sJJ}, v{t+4}
 v_lshlrev_b32 v{t+3}, 4, v{t+3}
 v_add_u32 v{t+4}, 128, v{t+3}
 v_mul_u32_u24 v{t+2}, 3584, v{t+2}
 v_cndmask_b32 v{t+3}, v{t+3}, v{t+4}, vcc
 v_add_u32 v{vS+i}, v{t+2}, v{t+3}
""")
def wd_ops():
    ops = []
    for i in range(4):
        pre = f""" s_add_u32 s54, {sROT}, {i}
 s_and_b32 s54, s54, 3
 s_lshl_b32 s76, {sW}, 2
 s_add_u32 s76, s76, s54
 s_mul_i32 s76, s76, {112*1024}
 s_add_u32 s76, s76, {sE}
 s_lshl_b32 s77, s54, 14
 s_add_u32 s77, s77, s76
"""
        for t in range(7):
            d = (i*7+t)*8
            if t < 3:
                pre += f" s_cmp_gt_u32 s54, {t}\n s_cselect_b32 s78, 0, 65536\n s_add_u32 s78, s78, s76\n"
                if t: pre += f" s_add_u32 s78, s78, {t*16384}\n"
                so = "s78"
            else:
                if t > 3: pre += f" s_add_u32 s77, s77, 16384\n"
                so = "s77"
            ops.append(pre + f" buffer_load_dwordx4 {ar(d,4)}, v{vWD}, {srd('WD')}, {so} offen")
            ops.append(f" buffer_load_dwordx4 {ar(d+4,4)}, v{vWD+1}, {srd('WD')}, {so} offen")
            pre = ""
    return ops
def s_ops():
    ops = []
    for idx in range(4):
        pre = f""" s_add_u32 s100, {sL3}, {idx}
 s_and_b32 s100, s100, 3
 s_lshl_b32 s100, s100, 2
 s_add_u32 s100, s100, {sW}
 s_mul_i32 s101, s100, 3072
 s_lshl_b32 s55, {sJL}, 1
 s_add_u32 s100, s100, s55
 s_and_b32 s100, s100, 15
 s_mul_i32 s100, s100, {32*3584}
 s_add_u32 s100, s100, {sJ224}
"""
        for m, name in enumerate(("WG","WU")):
            for i in range(3):
                ops.append(pre + f" s_add_u32 m0, s101, {SB + m*SU + i*1024}\n buffer_load_dwordx4 v{vS+i}, {srd(name)}, s100 offen lds")
                pre = ""
    return ops
def r_consts(P, vR, t):
    P(f"""
 v_and_b32 v{t}, 63, v0
 v_lshrrev_b32 v{t+1}, 3, v{t}
 v_mul_u32_u24 v{t+2}, 3584, v{t+1}
 v_and_b32 v{t+3}, 7, v{t}
 v_and_b32 v{t+1}, 2, v{t+1}
 v_xor_b32 v{t+3}, v{t+3}, v{t+1}
 s_lshl_b32 s3, {sJJ}, 5
 s_add_u32 s3, s3, {sJ224}
 v_add_u32 v{t+2}, s3, v{t+2}
 v_lshl_add_u32 v{vR}, v{t+3}, 4, v{t+2}
 v_xor_b32 v{t+3}, 4, v{t+3}
 v_lshl_add_u32 v{vR+1}, v{t+3}, 4, v{t+2}
 s_lshl_b32 s55, {sJL}, 3
 s_add_u32 s55, s55, {sW}
 s_lshl_b32 s54, {sW}, 10
""")
def r_op(vR, idx):
    if idx < K1//32: g, u = R1G + idx*4096, R1U + idx*4096
    else: g, u = R2G + (idx-K1//32)*4096, R2U + (idx-K1//32)*4096
    pre = f" s_add_u32 s100, s55, {4*idx}\n s_and_b32 s100, s100, 63\n s_mul_i32 s100, s100, {8*3584}\n"
    return [pre + f" s_add_u32 m0, s54, {g}\n buffer_load_dwordx4 v{vR}, {srd('WG')}, s100 offen lds",
            f" s_add_u32 m0, s54, {u}\n buffer_load_dwordx4 v{vR+1}, {srd('WU')}, s100 offen lds"]
def interleave(P, work, bulk, every):
    n = 0
    for wk in work:
        P(wk); n += 1
        if bulk and n % every == 0: P(bulk.pop(0))
def take(l, n):
    o = l[:n]; del l[:n]; return o

def clears(P):
    z = 144+16
    P(f"""
 v_mov_b32 v{z}, -1
 v_mov_b32 v{z+1}, -1
 v_mov_b32 v{z+2}, -1
 v_mov_b32 v{z+3}, -1
 v_lshlrev_b32 v5, 9, v2
 v_lshl_add_u32 v5, v1, 4, v5
 s_lshl_b32 {sHNst}, {sG}, 17
 s_lshr_b32 s4, {sJ}, 2
 s_lshl_b32 s4, s4, 15
 s_add_u32 {sHNst}, {sHNst}, s4
 s_lshl_b32 s4, {sJJ}, 7
 s_add_u32 {sHNst}, {sHNst}, s4
 s_add_u32 {sHNst}, {sHNst}, {HN}
 buffer_store_dwordx4 {vr(z,4)}, v5, {srd('WS')}, {sHNst} offen sc1
 buffer_store_dwordx4 {vr(z,4)}, v5, {srd('WS')}, {sHNst} offen offset:64 sc1
 v_and_b32 v6, 63, v0
 v_lshlrev_b32 v6, 4, v6
 s_lshl_b32 {sHS0}, {sG}, 2
 s_add_u32 {sHS0}, {sHS0}, {sW}
 s_lshl_b32 {sHS0}, {sHS0}, 4
 s_add_u32 {sHS0}, {sHS0}, {sJ}
 s_mul_i32 {sHS0}, {sHS0}, 7168
 s_add_u32 {sHS0}, {sHS0}, {HH}
 s_add_u32 {sHS1}, {sHS0}, 4096
""")
    for t in range(7):
        P(f" buffer_store_dwordx4 {vr(z,4)}, v6, {srd('WS')}, {sHS0 if t < 4 else sHS1} offen offset:{(t&3)*1024} sc1")

def conv_setup(P):
    P(f"""
 v_mov_b32 v12, 0
 v_and_b32 v13, 127, v0
 v_lshlrev_b32 v13, 2, v13
 v_lshrrev_b32 v14, 7, v0
 v_mul_u32_u24 v14, {KVCH}, v14
 v_add3_u32 v13, v13, v14, s3
 ds_write_b32 v13, v12
 v_and_b32 v13, 15, v0
 v_lshlrev_b32 v13, 5, v13
 v_bfe_u32 v14, v0, 4, 3
 v_lshlrev_b32 v14, 6, v14
 v_sub_u32 v14, v14, v13
 v_add_u32 v14, 480, v14
 s_lshr_b32 s3, {sW}, 1
 s_mul_i32 s3, s3, {KVCH}
 s_add_u32 s3, s3, {KVR}
""".replace(" v_add3_u32 v13, v13, v14, s3", f" s_mov_b32 s3, {KVR+4096}\n v_add3_u32 v13, v13, v14, s3"))
    for bb in range(4):
        P(f""" v_add_u32 v13, {16*bb}, v14
 v_lshrrev_b32 v15, 4, v13
 v_and_b32 v15, 16, v15
 v_xor_b32 v13, v13, v15
 v_add_u32 v{vBB+bb}, s3, v13""")
    P(f"""
 v_lshlrev_b32 v13, 2, v0
 v_sub_u32 v13, 1020, v13
 v_lshrrev_b32 v15, 4, v13
 v_and_b32 v15, 16, v15
 v_xor_b32 v13, v13, v15
 v_add_u32 v13, {KVR}, v13
 v_lshlrev_b32 v9, 4, v0
""")
def h1_recv(P):
    P(f"""
 s_lshl_b32 s4, {sC}, 14
 s_add_u32 s4, s4, {KVBOX}
 s_add_u32 s5, s4, 4096
 s_add_u32 s6, s4, 8192
 s_add_u32 s7, s4, 12288
L_h1:
""")
    for i in range(4): P(f" buffer_load_dwordx4 {vr(vIN+4*i,4)}, v9, {srd('WS')}, s{4+i} offen sc1")
    P(" s_waitcnt vmcnt(0)")
    tagcheck(P, vIN, "L_h1ok", "L_h1")
    for i in range(4):
        P(f" v_perm_b32 v{vIN+4*i+1}, v{vIN+4*i}, v{vIN+4*i+2}, {sLO}")
        P(f" v_perm_b32 v{vIN+4*i+3}, v{vIN+4*i}, v{vIN+4*i+2}, {sHI}")
        P(f" ds_write2st64_b32 v13, v{vIN+4*i+1}, v{vIN+4*i+3} offset0:{(3-i)*4} offset1:{(3-i)*4+KVCH//256}")
    P(" s_waitcnt lgkmcnt(0)\n s_barrier")
def conv_mfma(P, bulk, every, extra):
    def rd(bb): return [f" ds_read_b128 {vr(vB+32*(bb&1)+4*d,4)}, v{vBB+bb} offset:{(7-d)*512}" for d in range(8)]
    for l in rd(0): P(l)
    n = 0
    for bb in range(4):
        pend = []
        for d in range(8):
            if d == 0 and bb == 0: P(" s_waitcnt lgkmcnt(7)")
            elif bb == 0 and d == 1: P(" s_waitcnt lgkmcnt(0)")
            elif d == 0: P(" s_waitcnt lgkmcnt(0)")
            if d == 1 and bb < 3: pend = rd(bb+1)
            for a in range(8-d):
                j = a + d
                c = "0" if (bb == 0 and d == 0) else ar(aC+4*j,4)
                P(f" v_mfma_f32_16x16x32_bf16 {ar(aC+4*j,4)}, {vr(vA+16*a+4*bb,4)}, {vr(vB+32*(bb&1)+4*d,4)}, {c}")
                n += 1
                if pend: P(pend.pop(0))
                elif bulk and n % every == 0: P(bulk.pop(0))
                elif extra: P(extra.pop(0))
    for l in extra: P(l)
def conv_epi_consts():
    return f"""
 v_bfe_u32 v13, v0, 4, 2
 v_mul_u32_u24 v13, 320, v13
 v_and_b32 v14, 15, v0
 v_lshl_add_u32 v13, v14, 4, v13
 s_mul_i32 s3, {sW}, 10240
 s_add_u32 s3, s3, {PART}
 v_add_u32 v13, s3, v13
 v_lshrrev_b32 v14, 7, v0
 v_mul_u32_u24 v14, 1280, v14
 v_bfe_u32 v15, v0, 1, 2
 v_mul_u32_u24 v15, 320, v15
 v_add_u32 v14, v14, v15
 v_bfe_u32 v15, v0, 3, 4
 v_lshl_add_u32 v14, v15, 4, v14
 v_and_b32 v15, 1, v0
 v_lshl_add_u32 v14, v15, 3, v14
 v_add_u32 v14, {PART}, v14
 v_lshlrev_b32 v12, 14, v2
 v_lshl_add_u32 v12, v1, 4, v12
 s_and_b32 s4, {sC}, 3
 s_lshl_b32 s4, s4, 12
 s_lshr_b32 s3, {sC}, 2
 s_lshl_b32 s3, s3, 6
 s_add_u32 s4, s4, s3
 s_add_u32 s4, s4, {YBOX}
 s_add_u32 s5, s4, {1<<20}
 s_add_u32 s6, s4, {2<<20}
 s_add_u32 s7, s4, {3<<20}""".strip("\n").split("\n")
def conv_epilogue(P):
    R = 16; Qd = 48
    for j in range(8): P(f" ds_write_b128 v13, {ar(aC+4*j,4)} offset:{j*1280}")
    for i in range(4): P(f" v_mov_b32 v{Qd+4*i+1}, {sTAG}\n v_mov_b32 v{Qd+4*i+3}, {sTAG}")
    P(" s_waitcnt lgkmcnt(0)\n s_barrier")
    for i in range(4):
        for w in range(4): P(f" ds_read_b64 {vr(R+8*i+2*w,2)}, v14 offset:{i*2560+w*10240}")
        if i == 2: P(" s_waitcnt lgkmcnt(8)")
    for i in range(4):
        P(f" s_waitcnt lgkmcnt({12-4*i})")
        b = R+8*i
        P(f""" v_pk_add_f32 {vr(b,2)}, {vr(b,2)}, {vr(b+2,2)}
 v_pk_add_f32 {vr(b+4,2)}, {vr(b+4,2)}, {vr(b+6,2)}
 v_cvt_pk_bf16_f32 v{Qd+4*i}, v{b}, v{b+4}
 v_cvt_pk_bf16_f32 v{Qd+4*i+2}, v{b+1}, v{b+5}
 buffer_store_dwordx4 {vr(Qd+4*i,4)}, v12, {srd('WS')}, s{4+i} offen sc1""")

def bounce_consts(P, vw, vr2, t):
    P(f"""
 s_lshl_b32 s3, {sW}, 11
 s_add_u32 s3, s3, {BOUNCE}
 v_add_u32 v{vw}, s3, v6
 v_bfe_u32 v{t}, v0, 5, 1
 v_bfe_u32 v{t+1}, v0, 4, 1
 v_bfe_u32 v{t+2}, v0, 2, 2
 v_lshl_add_u32 v{t}, v{t}, 2, v{t+2}
 v_lshlrev_b32 v{t}, 7, v{t}
 v_lshl_add_u32 v{t}, v1, 3, v{t}
 v_add_u32 v{t}, s3, v{t}
 v_and_b32 v{t+2}, 2, v{t+2}
 v_or_b32 v{t+2}, v{t+2}, v{t+1}
 v_lshl_add_u32 v{vr2}, v{t+2}, 5, v{t}
 v_xor_b32 v{t+2}, 2, v{t+2}
 v_lshl_add_u32 v{vr2+1}, v{t+2}, 5, v{t}
""")
def bounce_unit(u, vw, vr2):
    d = u*8
    o = [f" ds_write_b128 v{vw}, {ar(d,4)}", f" ds_write_b128 v{vw}, {ar(d+4,4)} offset:1024"]
    for tau in range(2):
        for io in range(2):
            o.append(f" ds_read_b64_tr_b16 {ar(d+4*tau+2*io,2)}, v{vr2+tau} offset:{io*1024}")
    return o

def h2a_ln2(P, post_barrier):
    vY, vh, vhp, vn, tmp, mr = 64, 80, 96, 104, 112, 136
    P(f"""
 s_lshl_b32 s4, {sP}, 14
 s_add_u32 s4, s4, {YBOX}
 s_add_u32 s5, s4, 4096
 s_add_u32 s6, s4, 8192
 s_add_u32 s7, s4, 12288
L_h2:
""")
    for i in range(4): P(f" buffer_load_dwordx4 {vr(vY+4*i,4)}, v9, {srd('WS')}, s{4+i} offen sc1")
    P(" s_waitcnt vmcnt(0)")
    tagcheck(P, vY, "L_h2ok", "L_h2")
    P.st(7)
    for r in range(2):
        for t in range(4):
            s = vY+4*t+2*r
            P(f" v_lshlrev_b32 v{vh+8*r+2*t}, 16, v{s}\n v_and_b32 v{vh+8*r+2*t+1}, {sMASK}, v{s}")
    for i in range(8): P(f" v_pk_fma_f32 {vr(vh+2*i,2)}, {vr(vq+2*i,2)}, {vr(vh+2*i,2)}, {vr(vu1+2*i,2)}")
    for i in range(8): P(f" v_cvt_pk_bf16_f32 v{vhp+i}, v{vh+2*i}, v{vh+2*i+1}")
    for i in range(8): P(f" v_lshlrev_b32 v{vh+2*i}, 16, v{vhp+i}\n v_and_b32 v{vh+2*i+1}, {sMASK}, v{vhp+i}")
    for l in row_stats(vh, tmp, STAT+256, mr, mr+2): P(l)
    for l in normalize(vh, vh, mr, mr+2): P(l)
    for r in range(2):
        for i in range(4*r, 4*r+4):
            P(f" v_cvt_pk_bf16_f32 v{vn+i}, v{vh+2*i}, v{vh+2*i+1}\n v_min_u32 v{vn+i}, -2, v{vn+i}")
        P(f" buffer_store_dwordx4 {vr(vn+4*r,4)}, v5, {srd('WS')}, {sHNst} offen offset:{64*r} sc1")
    P(f"""
 s_mov_b32 s3, {HRES}
 buffer_store_dwordx4 {vr(vhp,4)}, v3, {srd('WS')}, s3 offen sc1
 buffer_store_dwordx4 {vr(vhp+4,4)}, v3, {srd('WS')}, s3 offen offset:1024 sc1
""")

vSa, vRa, vRd = 8, 252, 14
accA, accB, accC, acc2, vE = 144, 192, 144, 176, 240
sHL = 12
def g_consts(P):
    t = 224
    P(f"""
 v_bfe_u32 v{t}, v0, 5, 1
 v_bfe_u32 v{t+1}, v0, 4, 1
 v_bfe_u32 v{t+2}, v0, 2, 2
 v_lshl_add_u32 v{t}, v{t}, 3, v{t+2}
 v_mul_u32_u24 v{t+4}, 96, v{t}
 v_lshl_add_u32 v{t+4}, v1, 3, v{t+4}
 v_mul_u32_u24 v{vSa}, {SU}, v{t+1}
 v_add_u32 v{vSa}, v{vSa}, v{t+4}
 v_lshlrev_b32 v{t+4}, 7, v{t}
 v_lshl_add_u32 v{t+4}, v1, 3, v{t+4}
 v_mul_u32_u24 v{t+3}, {R1U-R1G}, v{t+1}
 v_add_u32 v{t+4}, {R1G}, v{t+4}
 v_add_u32 v{t+4}, v{t+4}, v{t+3}
 v_lshrrev_b32 v{t+2}, 1, v{t+2}
 v_lshl_add_u32 v{t+2}, v{t+1}, 1, v{t+2}
 v_mul_u32_u24 v13, {(R2U-R2G)-(R1U-R1G)}, v{t+1}
 v_subrev_u32 v13, {R1G-R2G}, v13
 v_add_u32 v7, 4096, v6
""")
    assert SB == 0
    for k in range(4): P(f" v_xor_b32 v{t+3}, {k}, v{t+2}\n v_lshl_add_u32 v{vRa+k}, v{t+3}, 5, v{t+4}")
    P(f" s_lshl_b32 s3, {sSB}, 5\n s_lshl_b32 s4, {sW}, 2\n s_add_u32 s3, s3, s4")
    for i in range(4):
        P(f""" s_add_u32 s4, {sROT}, {i}
 s_and_b32 s4, s4, 3
 s_add_u32 s4, s4, s3
 s_mul_i32 s4, s4, 7168
 s_add_u32 s{sHL+2*i}, s4, {HH}
 s_add_u32 s{sHL+2*i+1}, s4, {HH+16*7168}""")
    P(f"""
 v_lshrrev_b32 v{t}, 3, v0
 v_and_b32 v{t+1}, 24, v{t}
 v_and_b32 v{t+2}, 3, v{t}
 v_lshl_add_u32 v{t+1}, v{t+2}, 1, v{t+1}
 v_bfe_u32 v{t+2}, v{t}, 2, 1
 v_add_u32 v{t+1}, v{t+1}, v{t+2}
 v_lshlrev_b32 v{t+1}, 10, v{t+1}
 v_and_b32 v{t+2}, 7, v0
 v_lshl_add_u32 v10, v{t+2}, 4, v{t+1}
 s_lshl_b32 {sO0}, {sSB}, 16
 s_add_u32 {sO0}, {sO0}, {sE}
 s_add_u32 {sO1}, {sO0}, 32768
 s_lshl_b32 {sHNld}, {sG}, 17
 s_lshl_b32 s4, {sW}, 15
 s_add_u32 {sHNld}, {sHNld}, s4
 s_add_u32 {sHNld}, {sHNld}, {HN}
""")
    for g in range(8):
        P(f" s_add_u32 s4, {sJL}, {g}\n s_and_b32 s4, s4, 7\n s_lshl_b32 s4, s4, 12\n s_add_u32 s{20+g}, s4, {sHNld}")
def hn_group_loads(g):
    return [f" buffer_load_dwordx4 {vr(vHN+16*g+4*k,4)}, v6, {srd('WS')}, s{20+g} offen offset:{k*1024} sc1" for k in range(4)]
def sent_check(P, regs, loads, name):
    o = [f" v_max3_u32 v4, v{regs[0]}, v{regs[1]}, v{regs[2]}"]
    rest = regs[3:]
    while len(rest) >= 2:
        o.append(f" v_max3_u32 v4, v4, v{rest[0]}, v{rest[1]}"); rest = rest[2:]
    if rest: o.append(f" v_max_u32 v4, v4, v{rest[0]}")
    o.append(" v_cmp_eq_u32 vcc, -1, v4")
    blk = [f"L_{name}_r:", f" s_sub_u32 {sSPIN}, {sSPIN}, 1", f" s_cbranch_scc1 L_{name}_x"] + loads + [" s_waitcnt vmcnt(0)"] + o + [f" s_cbranch_vccnz L_{name}_r", f" s_branch L_{name}_b", f"L_{name}_x:", f" s_mov_b32 {sSPIN}, 0", f" s_branch L_{name}_b"]
    P.tail += blk
    return o + [f" s_cbranch_vccnz L_{name}_r\nL_{name}_b:"]
def epi_tile(acc, t):
    o = []
    for i in range(8): o.append((f" v_mul_f32 v{vE+i}, 0xbfb8aa3b, v{acc+i}", 1))
    for i in range(8): o.append((f" v_exp_f32 v{vE+i}, v{vE+i}", 2))
    for i in range(8): o.append((f" v_add_f32 v{vE+i}, 1.0, v{vE+i}", 1))
    for i in range(8): o.append((f" v_rcp_f32 v{vE+i}, v{vE+i}", 2))
    for i in range(8): o.append((f" v_mul_f32 v{vE+i}, v{vE+i}, v{acc+8+i}", 1))
    for i in range(4): o.append((f" v_cvt_pk_bf16_f32 v{vE+8+i}, v{vE+2*i}, v{vE+2*i+1}", 1))
    for i in range(4): o.append((f" v_min_u32 v{vE+8+i}, -2, v{vE+8+i}", 1))
    o.append((f" buffer_store_dwordx4 {vr(vE+8,4)}, v6, {srd('WS')}, {sHS0 if t < 4 else sHS1} offen offset:{(t&3)*1024} sc1", 1))
    return o
def nins(text): return len([l for l in text.split("\n") if l.strip() and not l.strip().endswith(":")])

def gemm1(P, cfg):
    groups = [[(t, k) for t in range(3)] for k in range(32)]
    for pair in ((3,4),(5,6)):
        groups += [[(t, k) for k in (2*kk, 2*kk+1) for t in pair] for kk in range(16)]
    slot = 0; slots = {}
    for g in groups:
        for tk in g: slots[tk] = slot % 8; slot += 1
    def reads(g):
        o = []
        for (t, k) in g:
            d = aC + 4*slots[(t,k)]
            for io in range(2):
                if t < 3: o.append(f" ds_read_b64_tr_b16 {ar(d+2*io,2)}, v{vSa} offset:{k*1536+io*384+t*32}")
                else:
                    kk = k if k < K1//16 else k - K1//16
                    o.append(f" ds_read_b64_tr_b16 {ar(d+2*io,2)}, v{vRa+t-3} offset:{kk*2048+io*512}")
        return o
    accof = lambda t: accA+16*t if t < 3 else (accB+16*(t-3) if t < 5 else accC+16*(t-5))
    steps = [[(i, t) for t in ts for i in range(4)] for ts in ((0,1,2),(3,4),(5,6))]
    hslot = {}
    for n,(i,t) in enumerate(steps[0]):
        for u in range(2): hslot[(i,t,u)] = vHN + 4*(2*n+u)
    for n,(i,t) in enumerate(steps[1]):
        for u in range(2): hslot[(i,t,u)] = vHN + 4*(24+2*n+u)
    for n,(i,t) in enumerate(steps[2]):
        for u in range(2): hslot[(i,t,u)] = vHN + 4*(2*n+u)
    def hload(i, t, u): return f" buffer_load_dwordx4 {vr(hslot[(i,t,u)],4)}, {'v6' if t < 4 else 'v7'}, {srd('WS')}, s{sHL+2*i+u} offen offset:{(t&3)*1024} sc1"
    P.hslot = hslot; P.hload = hload; P.steps = steps

    fill = []
    r2_bar = cfg["r2_bar"]
    for l in reads(groups[0]): P(l)
    nK = K1//16
    for gi, g in enumerate(groups):
        t0, k0 = g[0]
        pre = []
        if t0 == 0 and k0 % 4 == 0:
            if k0 == 0:
                P.vmwait("hn0")
                for l in sent_check(P, list(range(vHN, vHN+16)), hn_group_loads(0), "hn0"): P(l)
            else:
                while fill: emit_fill(P, fill.pop(0))
            gn = k0//4 + 1
            if gn < 8:
                fill.append(("WAIT:hn%d" % gn, 1))
                fill += [(l, 1) for l in sent_check(P, list(range(vHN+16*gn, vHN+16*gn+16)), hn_group_loads(gn), f"hn{gn}")]
        P(" s_waitcnt lgkmcnt(0)")
        if t0 == 0 and k0 in r2_bar:
            P(" s_barrier")
            ops = []
            for idx in r2_bar[k0]: ops += r_op(vRd, nK//2 + idx)
            fill += [(o, nins(o)) for o in ops] + [("MARK:r2_%d" % k0, 0)]
        if (t0, k0) == (3, 0):
            while fill: x = fill.pop(0); emit_fill(P, x)
            P.st(10)
            fill += [("SKIP", 6)] + epi_tile(accA, 0) + epi_tile(accA+16, 1) + epi_tile(accA+32, 2)
        if (t0, k0) == (5, 0):
            while fill: x = fill.pop(0); emit_fill(P, x)
            P.st(11)
            fill += [("SKIP", 6)] + epi_tile(accB, 3) + epi_tile(accB+16, 4)
        nxt = reads(groups[gi+1]) if gi+1 < len(groups) else []
        if gi+1 < len(groups):
            nt, nk = groups[gi+1][0]
            if nt == 3 and nk in cfg["raw_bar"]:
                P.vmwait(cfg["raw_bar"][nk]); P(" s_barrier")
            if nt >= 3 and nk == nK:
                P(f" v_add_u32 v{vRa+nt-3}, v13, v{vRa+nt-3}\n v_add_u32 v{vRa+nt-2}, v13, v{vRa+nt-2}")
        for mi, (t, k) in enumerate(g):
            a = accof(t)
            P(f" v_mfma_f32_32x32x16_bf16 {vr(a,16)}, {ar(aC+4*slots[(t,k)],4)}, {vr(vHN+4*k,4)}, {'0' if k == 0 else vr(a,16)}")
            budget = 6 - (1 if mi == len(g)-1 else 0)
            nrd = min(len(nxt), 4 if len(g) == 3 else 3)
            for l in take(nxt, nrd): P(l)
            budget -= nrd
            if t == 6 and k >= cfg["hh_start"]:
                q = P.__dict__.setdefault("hq", [(i,tt,u) for (i,tt) in steps[0] for u in range(2)])
                cnt = 0
                while q and hslot[q[0]] + 4 <= vHN + 4*k and cnt < cfg["hh_rate"]:
                    P(hload(*q.pop(0))); budget -= 1; cnt += 1
            while fill and budget >= max(fill[0][1], 1) or (fill and fill[0][1] == 0) or (fill and fill[0][1] > 5 and budget >= 2):
                x = fill.pop(0); emit_fill(P, x); budget -= x[1]
    while fill: emit_fill(P, fill.pop(0))
def emit_fill(P, x):
    s = x[0]
    if s.startswith("WAIT:"): P.vmwait(s[5:])
    elif s.startswith("MARK:"): P.mark(s[5:])
    elif s == "SKIP": pass
    else: P(s)

def gemm2(P, cfg):
    hslot, hload, steps = P.hslot, P.hload, P.steps
    P.st(12)
    q = P.__dict__.get("hq", [(i,tt,u) for (i,tt) in steps[0] for u in range(2)])
    for x in q: P(hload(*x))
    P.mark("b0")
    b1 = [(i,t,u) for (i,t) in steps[1] for u in range(2)]
    for x in b1[:8]: P(hload(*x))
    for x, w in epi_tile(accC, 5) + epi_tile(accC+16, 6): P(x)
    for x in b1[8:]: P(hload(*x))
    P.mark("b1")
    P.st(13)
    b2 = [(i,t,u) for (i,t) in steps[2] for u in range(2)]
    first = True
    allsteps = steps[0] + steps[1] + steps[2]
    pairs = [allsteps[n:n+2] for n in range(0, 28, 2)]
    def chk(pi):
        fr = [(i,t,u) for (i,t) in pairs[pi] for u in range(2)]
        regs = [hslot[f]+e for f in fr for e in range(4)]
        return sent_check(P, regs, [hload(*f) for f in fr], f"hh{pi}")
    P.vmwait("b0")
    for l in chk(0): P(l)
    for pi, pr in enumerate(pairs):
        fill = []
        if pi == 6:
            pass
        if pi+1 < len(pairs):
            if pi+1 == 6: fill.append("WAIT:b1")
            if pi+1 >= 10: fill.append(f"WAIT:b2_{pi+1-10}")
            fill += chk(pi+1)
        post = []
        if pi == cfg["b2_at"]:
            post = ["B2"]
        mf = []
        for (i, t) in pr:
            for u in range(2):
                for tau in range(2):
                    a = acc2+32*u+16*tau
                    mf.append(f" v_mfma_f32_32x32x16_bf16 {vr(a,16)}, {ar(((i*7+t)*2+tau)*4,4)}, {vr(hslot[(i,t,u)],4)}, {'0' if first else vr(a,16)}")
            first = False
        for n, m in enumerate(mf):
            P(m)
            if post and n == 0:
                for c in range(4):
                    for x in b2[4*c:4*c+4]: P(hload(*x))
                    P.mark(f"b2_{c}")
            if pi == 6 and n == 0:
                P(f""" s_barrier
 s_add_u32 s3, {sO0}, {HRES}
 s_add_u32 s4, {sO1}, {HRES}
 buffer_load_dwordx4 {vr(vE,4)}, v10, {srd('WS')}, s3 offen sc1
 buffer_load_dwordx4 {vr(vE+4,4)}, v10, {srd('WS')}, s4 offen sc1""")
            if n >= 4:
                for x in take(fill, 4): emit_fill(P, (x, 1))
        for x in fill: emit_fill(P, (x, 1))
    P.st(14)
def final(P):
    tmp = 16
    P(f"""
 s_mul_i32 s3, {sW}, {REDW}
 v_add_u32 v4, s3, v6
 v_and_b32 v5, 7, v0
 v_lshrrev_b32 v7, 3, v0
 v_mul_u32_u24 v5, {BS}, v5
 v_lshl_add_u32 v7, v7, 4, v5
 v_add_u32 v9, {2*REDW}, v7
""")
    assert RED == 0
    for blk in range(16): P(f" ds_write_b128 v4, {vr(acc2+4*blk,4)} offset:{blk*BS}")
    P(" s_waitcnt vmcnt(0)")
    for ups in range(2):
        for i in range(4): P(f" v_lshlrev_b32 v{80+8*ups+2*i}, 16, v{vE+4*ups+i}\n v_and_b32 v{80+8*ups+2*i+1}, {sMASK}, v{vE+4*ups+i}")
    P(" s_waitcnt lgkmcnt(0)\n s_barrier")
    for ups in range(2):
        for w in range(4):
            for h in range(2):
                P(f" ds_read_b128 {vr(tmp+32*ups+8*w+4*h,4)}, {'v7' if w < 2 else 'v9'} offset:{ups*8*BS + h*512 + (w&1)*REDW}")
        if ups == 0: P(" s_waitcnt lgkmcnt(4)")
    for ups in range(2):
        P(f" s_waitcnt lgkmcnt({8 if ups == 0 else 0})")
        b = tmp+32*ups
        for i in range(4): P(f" v_pk_add_f32 {vr(b+2*i,2)}, {vr(b+2*i,2)}, {vr(b+8+2*i,2)}")
        for i in range(4): P(f" v_pk_add_f32 {vr(b+16+2*i,2)}, {vr(b+16+2*i,2)}, {vr(b+24+2*i,2)}")
        for i in range(4): P(f" v_pk_add_f32 {vr(b+2*i,2)}, {vr(b+2*i,2)}, {vr(80+8*ups+2*i,2)}")
        for i in range(4): P(f" v_pk_add_f32 {vr(b+2*i,2)}, {vr(b+2*i,2)}, {vr(b+16+2*i,2)}")
        for i in range(4): P(f" v_cvt_pk_bf16_f32 v{b+16+i}, v{b+2*i}, v{b+2*i+1}")
        P(f" buffer_store_dwordx4 {vr(b+16,4)}, v10, {srd('OUT')}, {sO0 if ups == 0 else sO1} offen")

def build(cfg, stamps=False):
    P = G(stamps)
    entry(P, cfg)
    aops = a_load_ops(P)
    for o in take(aops, cfg["a_early"]): P(o)
    bulk_consts(P)
    p0_pre(P)
    wd = wd_ops(); so = s_ops()
    P.st(1)
    P.vmwait("L1")
    P.st(2)
    p0_kv(P)
    P.st(3)
    for o in aops: P(o)
    P.mark("A")
    clears(P)
    b1 = take(so, cfg["w1_s"]) + take(wd, cfg["w1_wd"])
    P.vmwait("L3")
    interleave(P, ln1(), b1, cfg["w1_every"])
    P.vmwait("A")
    interleave(P, a_prep(P), b1, cfg["w1_every"])
    for o in b1: P(o)
    conv_setup(P)
    P.st(4)
    h1_recv(P)
    P.st(5)
    b2 = take(so, cfg["w2_s"]) + take(wd, cfg["w2_wd"])
    conv_mfma(P, b2, cfg["w2_every"], conv_epi_consts())
    for o in b2: P(o)
    conv_epilogue(P)
    P.st(6)
    P(" s_barrier")
    for o in so + wd: P(o)
    P.mark("WD")
    r_consts(P, vRd, 64)
    r1 = []
    for idx in range(K1//32 - 1): r1 += r_op(vRd, idx)
    bounce_consts(P, 10, 12, 64)
    for o in r1: P(o)
    P.vmwait("WD")
    for u in range(28):
        for l in bounce_unit(u, 10, 12): P(l)
        if u % 2 == 1: P(" s_waitcnt lgkmcnt(4)")
    h2a_ln2(P, None)
    P.st(8)
    for o in r_op(vRd, K1//32 - 1): P(o)
    P(f"""
 s_or_b32 s3, s2, {sW}
 s_cmp_lg_u32 s3, 0
 s_cbranch_scc1 L_notag
 v_mov_b32 v4, {sTAG}
 v_mov_b32 v11, {TAGSLOT}
 s_mov_b64 exec, 1
 buffer_store_dword v4, v11, {srd('WS')}, 0 offen sc1
 s_mov_b64 exec, -1
L_notag:
""")
    g_consts(P)
    P(" s_waitcnt vmcnt(0)\n s_barrier")
    P.st(9)
    for g in range(8):
        for l in hn_group_loads(g): P(l)
        P.mark(f"hn{g}")
    gemm1(P, cfg)
    gemm2(P, cfg)
    final(P)
    if stamps:
        P(" s_waitcnt vmcnt(0)"); P.st(15)
        P(f" s_lshl_b32 s3, s2, 2\n s_add_u32 s3, s3, {sW}\n s_lshl_b32 s3, s3, 7\n s_add_u32 s3, s3, {STAMPS}\n v_mov_b32 v1, 0\n s_mov_b64 exec, 1")
        for i in range(16): P(f" v_mov_b32 v2, s{80+i}\n buffer_store_dword v2, v1, {srd('WS')}, s3 offen offset:{4*i}")
        P(f" v_mov_b32 v2, {sSPIN}\n buffer_store_dword v2, v1, {srd('WS')}, s3 offen offset:64")
    P("L_end:\n s_endpgm")
    for l in P.tail: P(l)
    P("L_codeend:")
    body = P.fix()
    head = open("sequential_preLN__ssm_conv_h3__glu_gated_glu__prompt.s.ref").read().split("; Override launch")[0]
    out = head + f"; @launch grid=(256,1,1) block=(256,1,1) lds={LDS_BYTES}\n"
    out += f'.amdgcn_target "amdgcn-amd-amdhsa--gfx950"\n.text\n.globl {NAME}\n.p2align 8\n.type {NAME},@function\n{NAME}:\n' + body
    out += f""" s_endpgm
.section .rodata,"a"
.p2align 6
.amdhsa_kernel {NAME}
  .amdhsa_next_free_vgpr 512
  .amdhsa_next_free_sgpr 102
  .amdhsa_accum_offset 256
  .amdhsa_group_segment_fixed_size 0
  .amdhsa_kernarg_size 104
  .amdhsa_user_sgpr_count 2
  .amdhsa_user_sgpr_kernarg_segment_ptr 1
  .amdhsa_system_sgpr_workgroup_id_x 1
.end_amdhsa_kernel
"""
    return out, P
CFG = dict(a_early=8, w1_s=12, w1_wd=0, w1_every=12, w2_s=12, w2_wd=8, w2_every=6,
           r2_bar={12:[0,1,2,3], 26:[4,5,6,7,8]}, raw_bar={14:"r2_12", 22:"r2_26"}, hh_start=8, hh_rate=2, b2_at=6)
if __name__ == "__main__":
    cfg = dict(CFG)
    for a in sys.argv[2:]:
        k, v = a.split("="); cfg[k] = eval(v)
    out, P = build(cfg, bool(os.environ.get("STAMP")))
    open(sys.argv[1], "w").write(out)
    print("lines", len(P.lines), "nops", P.nops)
```

```python
import sys, os
sys.path.insert(0, "gen")
from asmlib import Prog

NAME = "sequential_preLN__ssm_conv_h3__glu_gated_glu__prompt_kernel"
TAGSLOT = 0
KVBOX = 0x100000
YBOX  = 0x500000
HN    = 0x900000
HRES  = 0xB00000
HH    = 0xD00000
STAMPS = 0x1480000
WS_BYTES = 0x1500000
SRD = dict(X=8, K=12, V=16, SHK=20, SSMK=24, SSMD=28, WG=32, WU=36, WD=40, OUT=44, WS=48)
KOFF = dict(X=0, K=8, V=16, SHK=24, SSMK=32, SSMD=40, WG=56, WU=64, WD=72, OUT=80, WS=96)
SIZE = dict(X=2097152, K=2097152, V=2097152, SHK=4096, SSMK=4096, SSMD=1024, WG=1835008, WU=1835008, WD=1835008, OUT=2097152, WS=WS_BYTES)
def srd(n): return f"s[{SRD[n]}:{SRD[n]+3}]"
sW, sP, sC, sG, sJ, sTAG, sLO, sHI, sMASK = "s56", "s57", "s58", "s59", "s60", "s61", "s62", "s63", "s64"
sJ224, sJJ, sJL, sO0, sO1, sHS0, sHS1, sSB, sROT, sE, sSPIN, sL3 = "s65", "s66", "s67", "s68", "s69", "s70", "s71", "s72", "s73", "s74", "s75", "s79"
sHNst = "s52"; sHNld = "s53"
def vr(b, n): return f"v[{b}:{b+n-1}]" if n > 1 else f"v{b}"
def ar(b, n): return f"a[{b}:{b+n-1}]" if n > 1 else f"a{b}"
def unit(jj, t):
    if t < 3: return t if t < jj else t + 4
    return jj + (t - 3)

SB = 0; SU = 49152 + 128
XR = 98432
KVR = XR; KVCH = 4608
PART = XR + 10240
K1 = 224
R1G = XR; R1U = R1G + K1*128
R2G = 0; R2U = 49408
STAT = 163840 - 512
BOUNCE = STAT - 8192
RED = 0; BS = 1088; REDW = 16*BS
LDS_BYTES = 163840
SPIN = 20000

class G(Prog):
    def __init__(self, stamps=False):
        super().__init__(); self.nvm = 0; self.marks = {}; self.stamps = stamps; self.tail = []; self.uid = 0; self.only = None
    def __call__(self, text):
        for l in text.split("\n"):
            s = l.strip()
            if not s: continue
            if s.startswith(("buffer_", "global_")): self.nvm += 1
            self.lines.append(l.rstrip())
    def mark(self, name): self.marks[name] = self.nvm
    def vmwait_text(self, name):
        n = self.nvm - self.marks[name]
        return f" s_waitcnt vmcnt({min(n, 63)})"
    def vmwait(self, name): self(self.vmwait_text(name))
    def st(self, i):
        if self.stamps and (self.only is None or i in self.only):
            self.stn = getattr(self, "stn", ["start"]) + [i]
            self(f" s_memrealtime s[98:99]\n s_waitcnt lgkmcnt(0)\n v_writelane_b32 v11, s98, {len(self.stn)-1}")

vK, vW, vV, vX, vD, vQ, vKS, vT = 144, 164, 180, 188, 196, 200, 224, 240
vWD, vS, vST, vDUM = 216, 218, 221, 222
vBB = 208
vq, vu1 = 224, 240
vA, vAx, vB, vIN, aC = 16, 208, 144, 144, 224
CS2 = 4160; FC = PART
vHN = 16

def entry(P, cfg):
    P(" s_cmp_ge_u32 s2, 256\n s_cbranch_scc1 L_end")
    if P.stamps: P(" s_memrealtime s[96:97]")
    P(f"""
 s_getpc_b64 s[4:5]
L_pc:
 s_bfe_u32 s3, s2, 0x30003
 s_lshl_b32 s3, s3, 12
 v_lshlrev_b32 v4, 7, v0
 v_add_u32 v5, s3, v4
 v_cmp_gt_u32 vcc, 32, v0
 s_nop 1
 v_cndmask_b32 v4, v5, v4, vcc
 v_min_u32 v4, L_codeend-L_pc-4, v4
 v_cmp_gt_u32 vcc, 64, v0
 s_and_saveexec_b64 s[6:7], vcc
 s_cbranch_execz L_nopf
 global_load_dword v{vDUM}, v4, s[4:5]
L_nopf:
 s_mov_b64 exec, s[6:7]
""")
    for n in ("K","SHK","V","WS","X","SSMD","SSMK","WD","WG","WU","OUT"):
        P(f" s_load_dwordx2 s[{SRD[n]}:{SRD[n]+1}], s[0:1], {KOFF[n]}")
    P(f"""
 v_lshrrev_b32 v4, 6, v0
 s_bfe_u32 {sL3}, s2, 0x20003
 s_bfe_u32 s3, s2, 0x20001
 v_readfirstlane_b32 {sW}, v4
 s_lshl_b32 s3, s3, 2
 s_add_u32 {sG}, s3, {sL3}
 s_lshr_b32 {sJL}, s2, 5
 s_and_b32 s3, s2, 1
 s_lshl_b32 s3, s3, 3
 s_add_u32 {sJ}, s3, {sJL}
 s_lshl_b32 {sP}, {sG}, 4
 s_add_u32 {sP}, {sP}, {sJ}
 v_and_b32 v1, 3, v0
 v_lshrrev_b32 v2, 2, v0
 s_lshl_b32 s3, {sP}, 13
 v_lshlrev_b32 v3, 11, v1
 v_lshl_add_u32 v3, v2, 4, v3
 v_add_u32 v3, s3, v3
 v_subrev_u32 v4, 3072, v3
 v_subrev_u32 v5, 2048, v3
 v_subrev_u32 v6, 1024, v3
 v_lshlrev_b32 v7, 6, v2
""")
    for n in ("K","SHK","V"): P(f" s_mov_b32 s{SRD[n]+2}, {SIZE[n]}\n s_mov_b32 s{SRD[n]+3}, 0x20000")
    if P.stamps: P(" v_mov_b32 v11, 0\n s_waitcnt lgkmcnt(0)\n v_writelane_b32 v11, s96, 0"); P.st("karg")
    P(f"""
 s_waitcnt lgkmcnt(0)
 buffer_load_dwordx4 {vr(vK,4)}, v4, {srd('K')}, 0 offen
 buffer_load_dwordx4 {vr(vK+4,4)}, v5, {srd('K')}, 0 offen
 buffer_load_dwordx4 {vr(vK+8,4)}, v6, {srd('K')}, 0 offen
 buffer_load_dwordx4 {vr(vK+12,4)}, v3, {srd('K')}, 0 offen
 buffer_load_dwordx4 {vr(vK+16,4)}, v3, {srd('K')}, 0 offen offset:1024
 buffer_load_dwordx4 {vr(vV,4)}, v3, {srd('V')}, 0 offen
 buffer_load_dwordx4 {vr(vV+4,4)}, v3, {srd('V')}, 0 offen offset:1024
""")
    for i in range(4): P(f" buffer_load_dwordx4 {vr(vW+4*i,4)}, v7, {srd('SHK')}, 0 offen offset:{16*i}")
    P.mark("L1")
    P.st("L1i")
    if not cfg.get("latetag"): P(f" s_load_dword {sTAG}, s[{SRD['WS']}:{SRD['WS']+1}], {TAGSLOT}")
    for n in ("WS","X","SSMD","SSMK","WD","WG","WU","OUT"): P(f" s_mov_b32 s{SRD[n]+2}, {SIZE[n]}\n s_mov_b32 s{SRD[n]+3}, 0x20000")
    P(f"""
 v_lshlrev_b32 v5, 4, v2
 buffer_load_dwordx4 {vr(vX,4)}, v3, {srd('X')}, 0 offen
 buffer_load_dwordx4 {vr(vX+4,4)}, v3, {srd('X')}, 0 offen offset:1024
 buffer_load_dwordx4 {vr(vD,4)}, v5, {srd('SSMD')}, 0 offen
 s_mov_b32 {sC}, s2
 s_mov_b32 {sLO}, 0x05040100
 s_mov_b32 {sHI}, 0x07060302
 s_mov_b32 {sMASK}, 0xffff0000
 s_mul_i32 {sJ224}, {sJ}, 224
 s_and_b32 {sJJ}, {sJ}, 3
 s_and_b32 s3, s2, 7
 s_lshl_b32 s3, s3, 2
 s_add_u32 {sSB}, s3, {sL3}
 s_lshl_b32 {sE}, {sJL}, 7
 s_add_u32 {sROT}, {sL3}, {sJL}
 s_and_b32 {sROT}, {sROT}, 3
 s_lshl_b32 s3, {sC}, 1
 s_lshr_b32 s4, {sW}, 1
 s_add_u32 s3, s3, s4
 s_lshl_b32 s3, s3, 12
 s_add_u32 s{SRD['SSMK']}, s{SRD['SSMK']}, s3
 s_addc_u32 s{SRD['SSMK']+1}, s{SRD['SSMK']+1}, 0
""")
    P.mark("L3")

def a_touch(P):
    P(f""" v_and_b32 v4, 31, v0
 v_lshlrev_b32 v4, 7, v4
 buffer_load_dword v{vDUM+1}, v4, {srd('SSMK')}, 0 offen""")
def a_load(P):
    P(f"""
 v_and_b32 v6, 63, v0
 v_lshlrev_b32 v6, 4, v6
 s_and_b32 s3, {sW}, 1
 s_lshl_b32 s3, s3, 3
 v_add_u32 v4, s3, v6
 v_add_u32 v5, 4, v4
 s_mul_i32 s3, {sW}, {2*CS2}
 s_add_u32 m0, s3, {FC}
""")
    for i in range(4): P(f" buffer_load_dwordx4 v4, {srd('SSMK')}, 0 offen offset:{1024*i} lds")
    P(f" s_add_u32 m0, s3, {FC+CS2}")
    for i in range(4): P(f" buffer_load_dwordx4 v5, {srd('SSMK')}, 0 offen offset:{1024*i} lds")
    P(f"""
 v_and_b32 v4, 15, v0
 v_subrev_u32 v4, 15, v4
 v_ashrrev_i32 v4, 1, v4
 v_lshlrev_b32 v4, 2, v4
 v_bfe_u32 v5, v0, 4, 3
 v_lshl_add_u32 v4, v5, 6, v4
""")
    for i in range(8):
        P(f" v_add_u32 v5, {4*i}, v4\n buffer_load_dword v{vA+i}, v5, {srd('SSMK')}, 0 offen")
def a_reads():
    o = f"""
 v_and_b32 v4, 15, v0
 v_add_u32 v4, 1, v4
 v_bfe_u32 v7, v4, 1, 2
 v_mul_u32_u24 v7, {CS2}, v7
 v_lshrrev_b32 v4, 3, v4
 v_lshl_add_u32 v7, v4, 4, v7
 v_bfe_u32 v4, v0, 4, 3
 v_lshl_add_u32 v7, v4, 6, v7
 s_lshr_b32 s3, {sW}, 1
 s_mul_i32 s3, s3, {4*CS2}
 s_add_u32 s3, s3, {FC}
 v_add_u32 v7, s3, v7""".strip("\n").split("\n")
    for a in range(8):
        for bb in range(4):
            if a == 0 and bb < 2: continue
            o.append(f" ds_read_b128 {vr(vA+16*a+4*bb,4)}, v7 offset:{512*a+16*bb-32}")
        o.append(f" ds_read_b32 v{vAx+a}, v7 offset:{512*a+32}")
        if a % 2 == 1: o.append(" s_waitcnt lgkmcnt(5)")
    o.append(" s_waitcnt lgkmcnt(0)")
    return o
def a_prep(P):
    out = [" v_not_b32 v4, v0\n v_and_b32 v4, 1, v4\n v_lshlrev_b32 v4, 4, v4"]
    for a in range(8):
        for i in range(16):
            nxt = vA+16*a+i+1 if i < 15 else vAx+a
            out.append(f" v_alignbit_b32 v{vA+16*a+i}, v{nxt}, v{vA+16*a+i}, v4")
    return out

def p0_kv(P):
    Krow = lambda i, d: vK + 4*i + d
    prs = [(3,2),(1,0),(4,3),(2,1)]
    for half in range(2):
        for ch in range(4*half, 4*half+4):
            d = ch >> 1; sel = sHI if ch & 1 else sLO
            for n,(x,y) in enumerate(prs):
                P(f" v_perm_b32 v{vT+4*(ch&3)+n}, v{Krow(y,d)}, v{Krow(x,d)}, {sel}")
        for ch in range(4*half, 4*half+4):
            P(f" v_dot2_f32_bf16 v{vKS+ch}, v{vT+4*(ch&3)+1}, v{vW+2*ch+1}, 0")
            P(f" v_dot2_f32_bf16 v{vKS+8+ch}, v{vT+4*(ch&3)+3}, v{vW+2*ch+1}, 0")
        for ch in range(4*half, 4*half+4):
            P(f" v_dot2_f32_bf16 v{vKS+ch}, v{vT+4*(ch&3)+0}, v{vW+2*ch}, v{vKS+ch}")
            P(f" v_dot2_f32_bf16 v{vKS+8+ch}, v{vT+4*(ch&3)+2}, v{vW+2*ch}, v{vKS+8+ch}")
    for i in range(8):
        P(f" v_lshlrev_b32 v{vK+2*i}, 16, v{vV+i}\n v_and_b32 v{vK+2*i+1}, {sMASK}, v{vV+i}")
    for t in range(4):
        P(f" v_pk_mul_f32 {vr(vKS+2*t,2)}, {vr(vKS+2*t,2)}, {vr(vK+2*t,2)}")
        P(f" v_pk_mul_f32 {vr(vKS+8+2*t,2)}, {vr(vKS+8+2*t,2)}, {vr(vK+8+2*t,2)}")
        P(f" v_cvt_pk_bf16_f32 v{vQ+4*t}, v{vKS+2*t}, v{vKS+2*t+1}")
        P(f" v_cvt_pk_bf16_f32 v{vQ+4*t+2}, v{vKS+8+2*t}, v{vKS+8+2*t+1}")
        P(f" buffer_store_dwordx4 {vr(vQ+4*t,4)}, v{vST}, {srd('WS')}, s{4+t} offen sc1")
def p0_pre(P):
    P(f"""
 v_lshlrev_b32 v{vST}, 16, v2
 v_lshl_add_u32 v{vST}, v1, 4, v{vST}
 s_lshl_b32 s4, {sP}, 6
 s_add_u32 s4, s4, {KVBOX}
 s_add_u32 s5, s4, 16384
 s_add_u32 s6, s4, 32768
 s_add_u32 s7, s4, 49152
 s_mov_b32 {sSPIN}, {SPIN}
 s_waitcnt lgkmcnt(0)
 s_add_u32 {sTAG}, {sTAG}, 0x9E3779B1
""")
    for t in range(4): P(f" v_mov_b32 v{vQ+4*t+1}, {sTAG}\n v_mov_b32 v{vQ+4*t+3}, {sTAG}")

def row_stats(src, tmp, lds_off, out_m, out_r):
    o = []
    S0, Q0, S1, Q1 = tmp, tmp+1, tmp+2, tmp+3
    a = tmp+8
    for r in range(2):
        b = src+8*r
        o.append(f" v_pk_add_f32 {vr(a+4*r,2)}, {vr(b,2)}, {vr(b+2,2)}")
        o.append(f" v_pk_mul_f32 {vr(a+4*r+2,2)}, {vr(b,2)}, {vr(b,2)}")
    for i in range(1, 4):
        for r in range(2):
            b = src+8*r+2*i
            if i >= 2: o.append(f" v_pk_add_f32 {vr(a+4*r,2)}, {vr(a+4*r,2)}, {vr(b,2)}")
            o.append(f" v_pk_fma_f32 {vr(a+4*r+2,2)}, {vr(b,2)}, {vr(b,2)}, {vr(a+4*r+2,2)}")
    for k in range(4): o.append(f" v_add_f32 v{tmp+k}, v{a+2*k}, v{a+2*k+1}")
    o += f"""
 v_bfe_u32 v{tmp+4}, v0, 4, 2
 v_lshl_add_u32 v{tmp+4}, v1, 2, v{tmp+4}
 v_permlane32_swap_b32 v{S0}, v{Q0}
 v_permlane32_swap_b32 v{S1}, v{Q1}
 v_lshlrev_b32 v{tmp+4}, 4, v{tmp+4}
 v_add_f32 v{S0}, v{S0}, v{Q0}
 v_add_f32 v{S1}, v{S1}, v{Q1}
 s_lshl_b32 s3, {sW}, 2
 s_add_u32 s3, s3, {lds_off}
 v_permlane16_swap_b32 v{S0}, v{S1}
 v_add_u32 v{tmp+4}, s3, v{tmp+4}
 v_add_f32 v{S0}, v{S0}, v{S1}
 v_lshlrev_b32 v{tmp+5}, 6, v1
 v_add_u32 v{tmp+5}, {lds_off}, v{tmp+5}
 v_add_f32_dpp v{S0}, v{S0}, v{S0} row_ror:4 row_mask:0xf bank_mask:0xf
 v_add_f32_dpp v{S0}, v{S0}, v{S0} row_ror:8 row_mask:0xf bank_mask:0xf
 ds_write_b32 v{tmp+4}, v{S0}
 s_waitcnt lgkmcnt(0)
 s_barrier
 ds_read_b128 {vr(tmp+8,4)}, v{tmp+5}
 ds_read_b128 {vr(tmp+12,4)}, v{tmp+5} offset:16
 ds_read_b128 {vr(tmp+16,4)}, v{tmp+5} offset:32
 ds_read_b128 {vr(tmp+20,4)}, v{tmp+5} offset:48
 s_mov_b32 s4, 0x3b000000
 s_mov_b32 s5, 0x3b000000
 s_waitcnt lgkmcnt(0)""".strip("\n").split("\n")
    for k in range(4):
        b = tmp+8+4*k
        o.append(f" v_pk_add_f32 {vr(b,2)}, {vr(b,2)}, {vr(b+2,2)}")
    for k in range(4):
        b = tmp+8+4*k
        o.append(f" v_add_f32 v{tmp+k}, v{b}, v{b+1}")
    o += f"""
 v_pk_mul_f32 {vr(tmp,2)}, {vr(tmp,2)}, s[4:5]
 v_pk_mul_f32 {vr(tmp+2,2)}, {vr(tmp+2,2)}, s[4:5]
 v_pk_fma_f32 {vr(tmp+2,2)}, {vr(tmp,2)}, {vr(tmp,2)}, {vr(tmp+2,2)} neg_lo:[1,0,0] neg_hi:[1,0,0]
 v_cvt_pk_bf16_f32 v{tmp+4}, v{tmp}, v{tmp+1}
 v_max_f32 v{tmp+2}, 0, v{tmp+2}
 v_max_f32 v{tmp+3}, 0, v{tmp+3}
 v_cvt_pk_bf16_f32 v{tmp+5}, v{tmp+2}, v{tmp+3}
 v_lshlrev_b32 v{out_m}, 16, v{tmp+4}
 v_and_b32 v{out_m+1}, {sMASK}, v{tmp+4}
 v_lshlrev_b32 v{tmp+2}, 16, v{tmp+5}
 v_and_b32 v{tmp+3}, {sMASK}, v{tmp+5}
 v_add_f32 v{tmp+2}, 0x3727c5ac, v{tmp+2}
 v_add_f32 v{tmp+3}, 0x3727c5ac, v{tmp+3}
 v_cvt_pk_bf16_f32 v{tmp+5}, v{tmp+2}, v{tmp+3}
 v_lshlrev_b32 v{tmp+2}, 16, v{tmp+5}
 v_and_b32 v{tmp+3}, {sMASK}, v{tmp+5}
 v_sqrt_f32 v{tmp+2}, v{tmp+2}
 v_sqrt_f32 v{tmp+3}, v{tmp+3}
 v_cvt_pk_bf16_f32 v{tmp+5}, v{tmp+2}, v{tmp+3}
 v_lshlrev_b32 v{tmp+2}, 16, v{tmp+5}
 v_and_b32 v{tmp+3}, {sMASK}, v{tmp+5}
 v_rcp_f32 v{out_r}, v{tmp+2}
 v_rcp_f32 v{out_r+1}, v{tmp+3}""".strip("\n").split("\n")
    return o
def normalize(dst, src, m, r):
    o = []
    for row in range(2):
        sel = f"op_sel:[0,{row}] op_sel_hi:[1,{row}]"
        for i in range(4):
            o.append(f" v_pk_add_f32 {vr(dst+8*row+2*i,2)}, {vr(src+8*row+2*i,2)}, {vr(m,2)} {sel} neg_lo:[0,1] neg_hi:[0,1]")
    for row in range(2):
        sel = f"op_sel:[0,{row}] op_sel_hi:[1,{row}]"
        for i in range(4):
            o.append(f" v_pk_mul_f32 {vr(dst+8*row+2*i,2)}, {vr(dst+8*row+2*i,2)}, {vr(r,2)} {sel}")
    return o
def ln1():
    tmp = 144; kd = 172; dd = 168
    o = []
    for i in range(8): o.append(f" v_lshlrev_b32 v{vu1+2*i}, 16, v{vX+i}\n v_and_b32 v{vu1+2*i+1}, {sMASK}, v{vX+i}")
    for r in range(2):
        for t in range(4):
            s = vQ+4*t+2*r
            o.append(f" v_lshlrev_b32 v{kd+8*r+2*t}, 16, v{s}\n v_and_b32 v{kd+8*r+2*t+1}, {sMASK}, v{s}")
    for i in range(4): o.append(f" v_lshlrev_b32 v{vX+2*i}, 16, v{vD+i}\n v_and_b32 v{vX+2*i+1}, {sMASK}, v{vD+i}")
    for r in range(2):
        for t in range(4): o.append(f" v_pk_mul_f32 {vr(kd+8*r+2*t,2)}, {vr(kd+8*r+2*t,2)}, {vr(vX+2*t,2)}")
    o += row_stats(vu1, tmp, STAT, dd, dd+2)
    o += normalize(vq, vu1, dd, dd+2)
    for i in range(8): o.append(f" v_pk_fma_f32 {vr(vu1+2*i,2)}, {vr(vq+2*i,2)}, {vr(kd+2*i,2)}, {vr(vu1+2*i,2)}")
    return o

def tagcheck(P, base, ok_label, retry_label):
    P(f" v_xor_b32 v4, {sTAG}, v{base+1}")
    for i in range(1, 8): P(f" v_bitop3_b32 v4, v4, v{base+2*i+1}, {sTAG} bitop3:0xf6")
    P(f"""
 v_cmp_ne_u32 vcc, 0, v4
 s_cbranch_vccz {ok_label}
 s_sub_u32 {sSPIN}, {sSPIN}, 1
 s_cbranch_scc0 {retry_label}
 s_mov_b32 {sSPIN}, 0
{ok_label}:
""")

def bulk_consts(P):
    t = vT
    P(f"""
 v_and_b32 v{t}, 63, v0
 v_lshrrev_b32 v{t+1}, 3, v{t}
 v_and_b32 v{t+2}, 7, v{t}
 v_and_b32 v{t+3}, 2, v{t+1}
 v_lshlrev_b32 v{t+3}, 1, v{t+3}
 v_xor_b32 v{t+2}, v{t+2}, v{t+3}
 v_lshlrev_b32 v{t+1}, 10, v{t+1}
 v_lshl_add_u32 v{vWD}, v{t+2}, 4, v{t+1}
 v_add_u32 v{vWD+1}, 8192, v{vWD}
 s_mov_b32 s3, {(1<<32)//6 + 1}
""")
    for i in range(3):
        P(f"""
 v_add_u32 v{t+1}, {64*i}, v{t}
 v_mul_hi_u32 v{t+2}, v{t+1}, s3
 v_mul_u32_u24 v{t+3}, 6, v{t+2}
 v_sub_u32 v{t+3}, v{t+1}, v{t+3}
 v_lshrrev_b32 v{t+4}, 1, v{t+3}
 v_cmp_le_u32 vcc, {sJJ}, v{t+4}
 v_lshlrev_b32 v{t+3}, 4, v{t+3}
 v_add_u32 v{t+4}, 128, v{t+3}
 v_mul_u32_u24 v{t+2}, 3584, v{t+2}
 v_cndmask_b32 v{t+3}, v{t+3}, v{t+4}, vcc
 v_add_u32 v{vS+i}, v{t+2}, v{t+3}
""")
def wd_ops():
    ops = []
    for i in range(4):
        pre = f""" s_add_u32 s54, {sROT}, {i}
 s_and_b32 s54, s54, 3
 s_lshl_b32 s76, {sW}, 2
 s_add_u32 s76, s76, s54
 s_mul_i32 s76, s76, {112*1024}
 s_add_u32 s76, s76, {sE}
 s_lshl_b32 s77, s54, 14
 s_add_u32 s77, s77, s76
"""
        for t in range(7):
            d = (i*7+t)*8
            if t < 3:
                pre += f" s_cmp_gt_u32 s54, {t}\n s_cselect_b32 s78, 0, 65536\n s_add_u32 s78, s78, s76\n"
                if t: pre += f" s_add_u32 s78, s78, {t*16384}\n"
                so = "s78"
            else:
                if t > 3: pre += f" s_add_u32 s77, s77, 16384\n"
                so = "s77"
            ops.append(pre + f" buffer_load_dwordx4 {ar(d,4)}, v{vWD}, {srd('WD')}, {so} offen")
            ops.append(f" buffer_load_dwordx4 {ar(d+4,4)}, v{vWD+1}, {srd('WD')}, {so} offen")
            pre = ""
    return ops
def s_ops():
    ops = []
    for idx in range(4):
        pre = f""" s_add_u32 s100, {sL3}, {idx}
 s_and_b32 s100, s100, 3
 s_lshl_b32 s100, s100, 2
 s_add_u32 s100, s100, {sW}
 s_mul_i32 s101, s100, 3072
 s_lshl_b32 s55, {sJL}, 1
 s_add_u32 s100, s100, s55
 s_and_b32 s100, s100, 15
 s_mul_i32 s100, s100, {32*3584}
 s_add_u32 s100, s100, {sJ224}
"""
        for m, name in enumerate(("WG","WU")):
            for i in range(3):
                ops.append(pre + f" s_add_u32 m0, s101, {SB + m*SU + i*1024}\n buffer_load_dwordx4 v{vS+i}, {srd(name)}, s100 offen lds")
                pre = ""
    return ops
def r_consts(P, vR, t):
    P(f"""
 v_and_b32 v{t}, 63, v0
 v_lshrrev_b32 v{t+1}, 3, v{t}
 v_mul_u32_u24 v{t+2}, 3584, v{t+1}
 v_and_b32 v{t+3}, 7, v{t}
 v_and_b32 v{t+1}, 2, v{t+1}
 v_xor_b32 v{t+3}, v{t+3}, v{t+1}
 s_lshl_b32 s3, {sJJ}, 5
 s_add_u32 s3, s3, {sJ224}
 v_add_u32 v{t+2}, s3, v{t+2}
 v_lshl_add_u32 v{vR}, v{t+3}, 4, v{t+2}
 v_xor_b32 v{t+3}, 4, v{t+3}
 v_lshl_add_u32 v{vR+1}, v{t+3}, 4, v{t+2}
 s_lshl_b32 s55, {sJL}, 3
 s_add_u32 s55, s55, {sW}
 s_lshl_b32 s54, {sW}, 10
""")
def r_op(vR, idx):
    if idx < K1//32: g, u = R1G + idx*4096, R1U + idx*4096
    else: g, u = R2G + (idx-K1//32)*4096, R2U + (idx-K1//32)*4096
    pre = f" s_add_u32 s100, s55, {4*idx}\n s_and_b32 s100, s100, 63\n s_mul_i32 s100, s100, {8*3584}\n"
    return [pre + f" s_add_u32 m0, s54, {g}\n buffer_load_dwordx4 v{vR}, {srd('WG')}, s100 offen lds",
            f" s_add_u32 m0, s54, {u}\n buffer_load_dwordx4 v{vR+1}, {srd('WU')}, s100 offen lds"]
def interleave(P, work, bulk, every):
    n = 0
    for wk in work:
        P(wk); n += 1
        if bulk and n % every == 0: P(bulk.pop(0))
def take(l, n):
    o = l[:n]; del l[:n]; return o

def clears(P):
    z = 12
    P(f"""
 v_mov_b32 v{z}, -1
 v_mov_b32 v{z+1}, -1
 v_mov_b32 v{z+2}, -1
 v_mov_b32 v{z+3}, -1
 v_lshlrev_b32 v5, 9, v2
 v_lshl_add_u32 v5, v1, 4, v5
 s_lshl_b32 {sHNst}, {sG}, 17
 s_lshr_b32 s4, {sJ}, 2
 s_lshl_b32 s4, s4, 15
 s_add_u32 {sHNst}, {sHNst}, s4
 s_lshl_b32 s4, {sJJ}, 7
 s_add_u32 {sHNst}, {sHNst}, s4
 s_add_u32 {sHNst}, {sHNst}, {HN}
 s_lshl_b32 {sHS0}, {sG}, 2
 s_add_u32 {sHS0}, {sHS0}, {sW}
 s_lshl_b32 {sHS0}, {sHS0}, 4
 s_add_u32 {sHS0}, {sHS0}, {sJ}
 s_mul_i32 {sHS0}, {sHS0}, 7168
 s_add_u32 {sHS0}, {sHS0}, {HH}
 s_add_u32 {sHS1}, {sHS0}, 4096
""")
    ops = [f" buffer_store_dwordx4 {vr(z,4)}, v5, {srd('WS')}, {sHNst} offen sc1", f" buffer_store_dwordx4 {vr(z,4)}, v5, {srd('WS')}, {sHNst} offen offset:64 sc1"]
    for t in range(7):
        ops.append(f" buffer_store_dwordx4 {vr(z,4)}, v6, {srd('WS')}, {sHS0 if t < 4 else sHS1} offen offset:{(t&3)*1024} sc1")
    return ops

def conv_setup(P):
    P(f"""
 v_mov_b32 v12, 0
 v_and_b32 v13, 127, v0
 v_lshlrev_b32 v13, 2, v13
 v_lshrrev_b32 v14, 7, v0
 v_mul_u32_u24 v14, {KVCH}, v14
 v_add3_u32 v13, v13, v14, s3
 ds_write_b32 v13, v12
 v_and_b32 v13, 15, v0
 v_lshlrev_b32 v13, 5, v13
 v_bfe_u32 v14, v0, 4, 3
 v_lshlrev_b32 v14, 6, v14
 v_sub_u32 v14, v14, v13
 v_add_u32 v14, 480, v14
 s_lshr_b32 s3, {sW}, 1
 s_mul_i32 s3, s3, {KVCH}
 s_add_u32 s3, s3, {KVR}
""".replace(" v_add3_u32 v13, v13, v14, s3", f" s_mov_b32 s3, {KVR+4096}\n v_add3_u32 v13, v13, v14, s3"))
    for bb in range(4):
        P(f""" v_add_u32 v13, {16*bb}, v14
 v_lshrrev_b32 v15, 4, v13
 v_and_b32 v15, 16, v15
 v_xor_b32 v13, v13, v15
 v_add_u32 v{vBB+bb}, s3, v13""")
    P(f"""
 v_lshlrev_b32 v13, 2, v0
 v_sub_u32 v13, 1020, v13
 v_lshrrev_b32 v15, 4, v13
 v_and_b32 v15, 16, v15
 v_xor_b32 v13, v13, v15
 v_add_u32 v13, {KVR}, v13
 v_lshlrev_b32 v9, 4, v0
 v_mov_b32 v212, -1
 v_mov_b32 v213, -1
 v_mov_b32 v214, -1
 v_mov_b32 v215, -1
""")
def h1_recv(P):
    P(f"""
 s_lshl_b32 s4, {sC}, 14
 s_add_u32 s4, s4, {KVBOX}
 s_add_u32 s5, s4, 4096
 s_add_u32 s6, s4, 8192
 s_add_u32 s7, s4, 12288
L_h1:
""")
    for i in range(4): P(f" buffer_load_dwordx4 {vr(vIN+4*i,4)}, v9, {srd('WS')}, s{4+i} offen sc1")
    P(" s_waitcnt vmcnt(0)")
    tagcheck(P, vIN, "L_h1ok", "L_h1")
    for i in range(4):
        P(f" v_perm_b32 v{vIN+4*i+1}, v{vIN+4*i}, v{vIN+4*i+2}, {sLO}")
        P(f" v_perm_b32 v{vIN+4*i+3}, v{vIN+4*i}, v{vIN+4*i+2}, {sHI}")
        P(f" ds_write2st64_b32 v13, v{vIN+4*i+1}, v{vIN+4*i+3} offset0:{(3-i)*4} offset1:{(3-i)*4+KVCH//256}")
    P(" s_waitcnt lgkmcnt(0)\n s_barrier")
def conv_mfma(P, bulk, every, extra):
    def rd(bb): return [f" ds_read_b128 {vr(vB+32*(bb&1)+4*d,4)}, v{vBB+bb} offset:{(7-d)*512}" for d in range(8)]
    for l in rd(0): P(l)
    n = 0
    for bb in range(4):
        pend = []
        for d in range(8):
            if d == 0 and bb == 0: P(" s_waitcnt lgkmcnt(7)")
            elif bb == 0 and d == 1: P(" s_waitcnt lgkmcnt(0)")
            elif d == 0: P(" s_waitcnt lgkmcnt(0)")
            if d == 1 and bb < 3: pend = rd(bb+1)
            for a in range(8-d):
                j = a + d
                c = "0" if (bb == 0 and d == 0) else ar(aC+4*j,4)
                P(f" v_mfma_f32_16x16x32_bf16 {ar(aC+4*j,4)}, {vr(vA+16*a+4*bb,4)}, {vr(vB+32*(bb&1)+4*d,4)}, {c}")
                n += 1
                if pend: P(pend.pop(0))
                elif bulk and n % every == 0: P(bulk.pop(0))
                elif extra: P(extra.pop(0))
    for l in extra: P(l)
def conv_epi_consts():
    return f"""
 v_bfe_u32 v13, v0, 4, 2
 v_mul_u32_u24 v13, 320, v13
 v_and_b32 v14, 15, v0
 v_lshl_add_u32 v13, v14, 4, v13
 s_mul_i32 s3, {sW}, 10240
 s_add_u32 s3, s3, {PART}
 v_add_u32 v13, s3, v13
 v_lshrrev_b32 v14, 7, v0
 v_mul_u32_u24 v14, 1280, v14
 v_bfe_u32 v15, v0, 1, 2
 v_mul_u32_u24 v15, 320, v15
 v_add_u32 v14, v14, v15
 v_bfe_u32 v15, v0, 3, 4
 v_lshl_add_u32 v14, v15, 4, v14
 v_and_b32 v15, 1, v0
 v_lshl_add_u32 v14, v15, 3, v14
 v_add_u32 v14, {PART}, v14
 v_lshlrev_b32 v12, 14, v2
 v_lshl_add_u32 v12, v1, 4, v12
 s_and_b32 s4, {sC}, 3
 s_lshl_b32 s4, s4, 12
 s_lshr_b32 s3, {sC}, 2
 s_lshl_b32 s3, s3, 6
 s_add_u32 s4, s4, s3
 s_add_u32 s4, s4, {YBOX}
 s_add_u32 s5, s4, {1<<20}
 s_add_u32 s6, s4, {2<<20}
 s_add_u32 s7, s4, {3<<20}""".strip("\n").split("\n")
def conv_epilogue(P):
    R = 16; Qd = 48
    for j in range(8): P(f" ds_write_b128 v13, {ar(aC+4*j,4)} offset:{j*1280}")
    for i in range(4): P(f" v_mov_b32 v{Qd+4*i+1}, {sTAG}\n v_mov_b32 v{Qd+4*i+3}, {sTAG}")
    P.vmwait("CL")
    P(" s_waitcnt lgkmcnt(0)\n s_barrier")
    for i in range(4):
        for w in range(4): P(f" ds_read_b64 {vr(R+8*i+2*w,2)}, v14 offset:{i*2560+w*10240}")
        if i == 2: P(" s_waitcnt lgkmcnt(8)")
    for i in range(4):
        P(f" s_waitcnt lgkmcnt({12-4*i})")
        b = R+8*i
        P(f""" v_pk_add_f32 {vr(b,2)}, {vr(b,2)}, {vr(b+2,2)}
 v_pk_add_f32 {vr(b+4,2)}, {vr(b+4,2)}, {vr(b+6,2)}
 v_cvt_pk_bf16_f32 v{Qd+4*i}, v{b}, v{b+4}
 v_cvt_pk_bf16_f32 v{Qd+4*i+2}, v{b+1}, v{b+5}
 buffer_store_dwordx4 {vr(Qd+4*i,4)}, v12, {srd('WS')}, s{4+i} offen sc1""")

def bounce_consts(P, vw, vr2, t):
    P(f"""
 s_lshl_b32 s3, {sW}, 11
 s_add_u32 s3, s3, {BOUNCE}
 v_add_u32 v{vw}, s3, v6
 v_bfe_u32 v{t}, v0, 5, 1
 v_bfe_u32 v{t+1}, v0, 4, 1
 v_bfe_u32 v{t+2}, v0, 2, 2
 v_lshl_add_u32 v{t}, v{t}, 2, v{t+2}
 v_lshlrev_b32 v{t}, 7, v{t}
 v_lshl_add_u32 v{t}, v1, 3, v{t}
 v_add_u32 v{t}, s3, v{t}
 v_and_b32 v{t+2}, 2, v{t+2}
 v_or_b32 v{t+2}, v{t+2}, v{t+1}
 v_lshl_add_u32 v{vr2}, v{t+2}, 5, v{t}
 v_xor_b32 v{t+2}, 2, v{t+2}
 v_lshl_add_u32 v{vr2+1}, v{t+2}, 5, v{t}
""")
def bounce_unit(u, vw, vr2):
    d = u*8
    o = [f" ds_write_b128 v{vw}, {ar(d,4)}", f" ds_write_b128 v{vw}, {ar(d+4,4)} offset:1024"]
    for tau in range(2):
        for io in range(2):
            o.append(f" ds_read_b64_tr_b16 {ar(d+4*tau+2*io,2)}, v{vr2+tau} offset:{io*1024}")
    return o

def h2a_ln2(P, post_barrier):
    vY, vh, vhp, vn, tmp, mr = 64, 80, 96, 104, 112, 136
    P(f"""
 s_lshl_b32 s4, {sP}, 14
 s_add_u32 s4, s4, {YBOX}
 s_add_u32 s5, s4, 4096
 s_add_u32 s6, s4, 8192
 s_add_u32 s7, s4, 12288
L_h2:
""")
    for i in range(4): P(f" buffer_load_dwordx4 {vr(vY+4*i,4)}, v9, {srd('WS')}, s{4+i} offen sc1")
    P(" s_waitcnt vmcnt(0)")
    tagcheck(P, vY, "L_h2ok", "L_h2")
    P.st("h2")
    for r in range(2):
        for t in range(4):
            s = vY+4*t+2*r
            P(f" v_lshlrev_b32 v{vh+8*r+2*t}, 16, v{s}\n v_and_b32 v{vh+8*r+2*t+1}, {sMASK}, v{s}")
    for i in range(8): P(f" v_pk_fma_f32 {vr(vh+2*i,2)}, {vr(vq+2*i,2)}, {vr(vh+2*i,2)}, {vr(vu1+2*i,2)}")
    for i in range(8): P(f" v_cvt_pk_bf16_f32 v{vhp+i}, v{vh+2*i}, v{vh+2*i+1}")
    for i in range(8): P(f" v_lshlrev_b32 v{vh+2*i}, 16, v{vhp+i}\n v_and_b32 v{vh+2*i+1}, {sMASK}, v{vhp+i}")
    for l in row_stats(vh, tmp, STAT+256, mr, mr+2): P(l)
    for l in normalize(vh, vh, mr, mr+2): P(l)
    for r in range(2):
        for i in range(4*r, 4*r+4):
            P(f" v_cvt_pk_bf16_f32 v{vn+i}, v{vh+2*i}, v{vh+2*i+1}\n v_min_u32 v{vn+i}, -2, v{vn+i}")
        P(f" buffer_store_dwordx4 {vr(vn+4*r,4)}, v5, {srd('WS')}, {sHNst} offen offset:{64*r} sc1")
    P(f"""
 s_mov_b32 s3, {HRES}
 buffer_store_dwordx4 {vr(vhp,4)}, v3, {srd('WS')}, s3 offen sc1
 buffer_store_dwordx4 {vr(vhp+4,4)}, v3, {srd('WS')}, s3 offen offset:1024 sc1
""")

vSa, vRa, vRd = 8, 252, 14
accA, accB, accC, acc2, vE = 144, 192, 144, 176, 240
sHL = 12
def g_consts(P):
    t = 224
    P(f"""
 v_bfe_u32 v{t}, v0, 5, 1
 v_bfe_u32 v{t+1}, v0, 4, 1
 v_bfe_u32 v{t+2}, v0, 2, 2
 v_lshl_add_u32 v{t}, v{t}, 3, v{t+2}
 v_mul_u32_u24 v{t+4}, 96, v{t}
 v_lshl_add_u32 v{t+4}, v1, 3, v{t+4}
 v_mul_u32_u24 v{vSa}, {SU}, v{t+1}
 v_add_u32 v{vSa}, v{vSa}, v{t+4}
 v_lshlrev_b32 v{t+4}, 7, v{t}
 v_lshl_add_u32 v{t+4}, v1, 3, v{t+4}
 v_mul_u32_u24 v{t+3}, {R1U-R1G}, v{t+1}
 v_add_u32 v{t+4}, {R1G}, v{t+4}
 v_add_u32 v{t+4}, v{t+4}, v{t+3}
 v_lshrrev_b32 v{t+2}, 1, v{t+2}
 v_lshl_add_u32 v{t+2}, v{t+1}, 1, v{t+2}
 v_mul_u32_u24 v13, {(R2U-R2G)-(R1U-R1G)}, v{t+1}
 v_subrev_u32 v13, {R1G-R2G}, v13
 v_add_u32 v7, 4096, v6
""")
    assert SB == 0
    for k in range(4): P(f" v_xor_b32 v{t+3}, {k}, v{t+2}\n v_lshl_add_u32 v{vRa+k}, v{t+3}, 5, v{t+4}")
    P(f" s_lshl_b32 s3, {sSB}, 5\n s_lshl_b32 s4, {sW}, 2\n s_add_u32 s3, s3, s4")
    for i in range(4):
        P(f""" s_add_u32 s4, {sROT}, {i}
 s_and_b32 s4, s4, 3
 s_add_u32 s4, s4, s3
 s_mul_i32 s4, s4, 7168
 s_add_u32 s{sHL+2*i}, s4, {HH}
 s_add_u32 s{sHL+2*i+1}, s4, {HH+16*7168}""")
    P(f"""
 v_lshrrev_b32 v{t}, 3, v0
 v_and_b32 v{t+1}, 24, v{t}
 v_and_b32 v{t+2}, 3, v{t}
 v_lshl_add_u32 v{t+1}, v{t+2}, 1, v{t+1}
 v_bfe_u32 v{t+2}, v{t}, 2, 1
 v_add_u32 v{t+1}, v{t+1}, v{t+2}
 v_lshlrev_b32 v{t+1}, 10, v{t+1}
 v_and_b32 v{t+2}, 7, v0
 v_lshl_add_u32 v10, v{t+2}, 4, v{t+1}
 s_lshl_b32 {sO0}, {sSB}, 16
 s_add_u32 {sO0}, {sO0}, {sE}
 s_add_u32 {sO1}, {sO0}, 32768
 s_lshl_b32 {sHNld}, {sG}, 17
 s_lshl_b32 s4, {sW}, 15
 s_add_u32 {sHNld}, {sHNld}, s4
 s_add_u32 {sHNld}, {sHNld}, {HN}
""")
    for g in range(8):
        P(f" s_add_u32 s4, {sJL}, {g}\n s_and_b32 s4, s4, 7\n s_lshl_b32 s4, s4, 12\n s_add_u32 s{20+g}, s4, {sHNld}")
def hn_group_loads(g):
    return [f" buffer_load_dwordx4 {vr(vHN+16*g+4*k,4)}, v6, {srd('WS')}, s{20+g} offen offset:{k*1024} sc1" for k in range(4)]
def sent_check(P, regs, loads, name):
    o = [f" v_max3_u32 v4, v{regs[0]}, v{regs[1]}, v{regs[2]}"]
    rest = regs[3:]
    while len(rest) >= 2:
        o.append(f" v_max3_u32 v4, v4, v{rest[0]}, v{rest[1]}"); rest = rest[2:]
    if rest: o.append(f" v_max_u32 v4, v4, v{rest[0]}")
    o.append(" v_cmp_eq_u32 vcc, -1, v4")
    blk = [f"L_{name}_r:", f" s_sub_u32 {sSPIN}, {sSPIN}, 1", f" s_cbranch_scc1 L_{name}_x"] + loads + [" s_waitcnt vmcnt(0)"] + o + [f" s_cbranch_vccnz L_{name}_r", f" s_branch L_{name}_b", f"L_{name}_x:", f" s_mov_b32 {sSPIN}, 0", f" s_branch L_{name}_b"]
    P.tail += blk
    return o + [f" s_cbranch_vccnz L_{name}_r\nL_{name}_b:"]
def epi_tile(acc, t):
    o = []
    for i in range(8): o.append((f" v_mul_f32 v{vE+i}, 0xbfb8aa3b, v{acc+i}", 1))
    for i in range(8): o.append((f" v_exp_f32 v{vE+i}, v{vE+i}", 2))
    for i in range(8): o.append((f" v_add_f32 v{vE+i}, 1.0, v{vE+i}", 1))
    for i in range(8): o.append((f" v_rcp_f32 v{vE+i}, v{vE+i}", 2))
    for i in range(8): o.append((f" v_mul_f32 v{vE+i}, v{vE+i}, v{acc+8+i}", 1))
    for i in range(4): o.append((f" v_cvt_pk_bf16_f32 v{vE+8+i}, v{vE+2*i}, v{vE+2*i+1}", 1))
    for i in range(4): o.append((f" v_min_u32 v{vE+8+i}, -2, v{vE+8+i}", 1))
    o.append((f" buffer_store_dwordx4 {vr(vE+8,4)}, v6, {srd('WS')}, {sHS0 if t < 4 else sHS1} offen offset:{(t&3)*1024} sc1", 1))
    return o
def nins(text): return len([l for l in text.split("\n") if l.strip() and not l.strip().endswith(":")])

def gemm1(P, cfg):
    groups = [[(t, k) for t in range(3)] for k in range(32)]
    for pair in ((3,4),(5,6)):
        groups += [[(t, k) for k in (2*kk, 2*kk+1) for t in pair] for kk in range(16)]
    slot = 0; slots = {}
    for g in groups:
        for tk in g: slots[tk] = slot % 8; slot += 1
    def reads(g):
        o = []
        for (t, k) in g:
            d = aC + 4*slots[(t,k)]
            for io in range(2):
                if t < 3: o.append(f" ds_read_b64_tr_b16 {ar(d+2*io,2)}, v{vSa} offset:{k*1536+io*384+t*32}")
                else:
                    kk = k if k < K1//16 else k - K1//16
                    o.append(f" ds_read_b64_tr_b16 {ar(d+2*io,2)}, v{vRa+t-3} offset:{kk*2048+io*512}")
        return o
    accof = lambda t: accA+16*t if t < 3 else (accB+16*(t-3) if t < 5 else accC+16*(t-5))
    steps = [[(i, t) for t in ts for i in range(4)] for ts in ((0,1,2),(3,4),(5,6))]
    hslot = {}
    for n,(i,t) in enumerate(steps[0]):
        for u in range(2): hslot[(i,t,u)] = vHN + 4*(2*n+u)
    for n,(i,t) in enumerate(steps[1]):
        for u in range(2): hslot[(i,t,u)] = vHN + 4*(24+2*n+u)
    for n,(i,t) in enumerate(steps[2]):
        for u in range(2): hslot[(i,t,u)] = vHN + 4*(2*n+u)
    def hload(i, t, u): return f" buffer_load_dwordx4 {vr(hslot[(i,t,u)],4)}, {'v6' if t < 4 else 'v7'}, {srd('WS')}, s{sHL+2*i+u} offen offset:{(t&3)*1024} sc1"
    P.hslot = hslot; P.hload = hload; P.steps = steps

    fill = []
    r2_bar = cfg["r2_bar"]
    for l in reads(groups[0]): P(l)
    nK = K1//16
    for gi, g in enumerate(groups):
        t0, k0 = g[0]
        pre = []
        if t0 == 0 and k0 % 4 == 0:
            if k0 == 0:
                P.vmwait("hn0")
                for l in sent_check(P, list(range(vHN, vHN+16)), hn_group_loads(0), "hn0"): P(l)
            else:
                while fill: emit_fill(P, fill.pop(0))
            gn = k0//4 + 1
            if gn < 8:
                fill.append(("WAIT:hn%d" % gn, 1))
                fill += [(l, 1) for l in sent_check(P, list(range(vHN+16*gn, vHN+16*gn+16)), hn_group_loads(gn), f"hn{gn}")]
        P(" s_waitcnt lgkmcnt(0)")
        if t0 == 0 and k0 in r2_bar:
            P(" s_barrier")
            ops = []
            for idx in r2_bar[k0]: ops += r_op(vRd, nK//2 + idx)
            fill += [(o, nins(o)) for o in ops] + [("MARK:r2_%d" % k0, 0)]
        if (t0, k0) == (3, 0):
            while fill: x = fill.pop(0); emit_fill(P, x)
            P.st("pA")
            fill += [("SKIP", 6)] + epi_tile(accA, 0) + epi_tile(accA+16, 1) + epi_tile(accA+32, 2)
        if (t0, k0) == (5, 0):
            while fill: x = fill.pop(0); emit_fill(P, x)
            P.st("pB")
            fill += [("SKIP", 6)] + epi_tile(accB, 3) + epi_tile(accB+16, 4)
        nxt = reads(groups[gi+1]) if gi+1 < len(groups) else []
        if gi+1 < len(groups):
            nt, nk = groups[gi+1][0]
            if nt == 3 and nk in cfg["raw_bar"]:
                P.vmwait(cfg["raw_bar"][nk]); P(" s_barrier")
            if nt >= 3 and nk == nK:
                P(f" v_add_u32 v{vRa+nt-3}, v13, v{vRa+nt-3}\n v_add_u32 v{vRa+nt-2}, v13, v{vRa+nt-2}")
        for mi, (t, k) in enumerate(g):
            a = accof(t)
            P(f" v_mfma_f32_32x32x16_bf16 {vr(a,16)}, {ar(aC+4*slots[(t,k)],4)}, {vr(vHN+4*k,4)}, {'0' if k == 0 else vr(a,16)}")
            budget = 6 - (1 if mi == len(g)-1 else 0)
            nrd = min(len(nxt), 4 if len(g) == 3 else 3)
            for l in take(nxt, nrd): P(l)
            budget -= nrd
            if t == 6 and k >= cfg["hh_start"]:
                q = P.__dict__.setdefault("hq", [(i,tt,u) for (i,tt) in steps[0] for u in range(2)])
                cnt = 0
                while q and hslot[q[0]] + 4 <= vHN + 4*k and cnt < cfg["hh_rate"]:
                    P(hload(*q.pop(0))); budget -= 1; cnt += 1
            while fill and budget >= max(fill[0][1], 1) or (fill and fill[0][1] == 0) or (fill and fill[0][1] > 5 and budget >= 2):
                x = fill.pop(0); emit_fill(P, x); budget -= x[1]
    while fill: emit_fill(P, fill.pop(0))
def emit_fill(P, x):
    s = x[0]
    if s.startswith("WAIT:"): P.vmwait(s[5:])
    elif s.startswith("MARK:"): P.mark(s[5:])
    elif s == "SKIP": pass
    else: P(s)

def gemm2(P, cfg):
    hslot, hload, steps = P.hslot, P.hload, P.steps
    P.st("pC")
    q = P.__dict__.get("hq", [(i,tt,u) for (i,tt) in steps[0] for u in range(2)])
    for x in q: P(hload(*x))
    P.mark("b0")
    b1 = [(i,t,u) for (i,t) in steps[1] for u in range(2)]
    for x in b1[:8]: P(hload(*x))
    for x, w in epi_tile(accC, 5) + epi_tile(accC+16, 6): P(x)
    for x in b1[8:]: P(hload(*x))
    P.mark("b1")
    P.st("epiC")
    b2 = [(i,t,u) for (i,t) in steps[2] for u in range(2)]
    first = True
    allsteps = steps[0] + steps[1] + steps[2]
    pairs = [allsteps[n:n+2] for n in range(0, 28, 2)]
    def chk(pi):
        fr = [(i,t,u) for (i,t) in pairs[pi] for u in range(2)]
        regs = [hslot[f]+e for f in fr for e in range(4)]
        return sent_check(P, regs, [hload(*f) for f in fr], f"hh{pi}")
    P.vmwait("b0")
    for l in chk(0): P(l)
    for pi, pr in enumerate(pairs):
        fill = []
        if pi == 6:
            pass
        if pi+1 < len(pairs):
            if pi+1 == 6: fill.append("WAIT:b1")
            if pi+1 >= 10: fill.append(f"WAIT:b2_{pi+1-10}")
            fill += chk(pi+1)
        post = []
        if pi == cfg["b2_at"]:
            post = ["B2"]
        mf = []
        for (i, t) in pr:
            for u in range(2):
                for tau in range(2):
                    a = acc2+32*u+16*tau
                    mf.append(f" v_mfma_f32_32x32x16_bf16 {vr(a,16)}, {ar(((i*7+t)*2+tau)*4,4)}, {vr(hslot[(i,t,u)],4)}, {'0' if first else vr(a,16)}")
            first = False
        for n, m in enumerate(mf):
            P(m)
            if post and n == 0:
                for c in range(4):
                    for x in b2[4*c:4*c+4]: P(hload(*x))
                    P.mark(f"b2_{c}")
            if pi == 6 and n == 0:
                P(f""" s_barrier
 s_add_u32 s3, {sO0}, {HRES}
 s_add_u32 s4, {sO1}, {HRES}
 buffer_load_dwordx4 {vr(vE,4)}, v10, {srd('WS')}, s3 offen sc1
 buffer_load_dwordx4 {vr(vE+4,4)}, v10, {srd('WS')}, s4 offen sc1""")
            if n >= 4:
                for x in take(fill, 4): emit_fill(P, (x, 1))
        for x in fill: emit_fill(P, (x, 1))
    P.st("g2")
def final(P):
    tmp = 16
    P(f"""
 s_mul_i32 s3, {sW}, {REDW}
 v_add_u32 v4, s3, v6
 v_and_b32 v5, 7, v0
 v_lshrrev_b32 v7, 3, v0
 v_mul_u32_u24 v5, {BS}, v5
 v_lshl_add_u32 v7, v7, 4, v5
 v_add_u32 v9, {2*REDW}, v7
""")
    assert RED == 0
    for blk in range(16): P(f" ds_write_b128 v4, {vr(acc2+4*blk,4)} offset:{blk*BS}")
    P(" s_waitcnt vmcnt(0)")
    for ups in range(2):
        for i in range(4): P(f" v_lshlrev_b32 v{80+8*ups+2*i}, 16, v{vE+4*ups+i}\n v_and_b32 v{80+8*ups+2*i+1}, {sMASK}, v{vE+4*ups+i}")
    P(" s_waitcnt lgkmcnt(0)\n s_barrier")
    for ups in range(2):
        for w in range(4):
            for h in range(2):
                P(f" ds_read_b128 {vr(tmp+32*ups+8*w+4*h,4)}, {'v7' if w < 2 else 'v9'} offset:{ups*8*BS + h*512 + (w&1)*REDW}")
        if ups == 0: P(" s_waitcnt lgkmcnt(4)")
    for ups in range(2):
        P(f" s_waitcnt lgkmcnt({8 if ups == 0 else 0})")
        b = tmp+32*ups
        for i in range(4): P(f" v_pk_add_f32 {vr(b+2*i,2)}, {vr(b+2*i,2)}, {vr(b+8+2*i,2)}")
        for i in range(4): P(f" v_pk_add_f32 {vr(b+16+2*i,2)}, {vr(b+16+2*i,2)}, {vr(b+24+2*i,2)}")
        for i in range(4): P(f" v_pk_add_f32 {vr(b+2*i,2)}, {vr(b+2*i,2)}, {vr(80+8*ups+2*i,2)}")
        for i in range(4): P(f" v_pk_add_f32 {vr(b+2*i,2)}, {vr(b+2*i,2)}, {vr(b+16+2*i,2)}")
        for i in range(4): P(f" v_cvt_pk_bf16_f32 v{b+16+i}, v{b+2*i}, v{b+2*i+1}")
        P(f" buffer_store_dwordx4 {vr(b+16,4)}, v10, {srd('OUT')}, {sO0 if ups == 0 else sO1} offen")

def build(cfg, stamps=False):
    P = G(stamps)
    if cfg.get("dbg"): P.only = cfg["dbg"].split(",")
    entry(P, cfg)
    a_touch(P)
    if cfg.get("tlb"):
        st = cfg["tlb"]
        P(f" v_and_b32 v4, 63, v0\n v_lshlrev_b32 v4, {st}, v4")
        n = (WS_BYTES >> st)
        for i in range((n + 63)//64): P(f" s_mov_b32 s3, {i*(64<<st)}\n buffer_load_dword v{vDUM}, v4, {srd('WS')}, s3 offen")
        for nm in ("OUT","WG","WU","WD"): P(f" buffer_load_dword v{vDUM}, v4, {srd(nm)}, 0 offen")
    bulk_consts(P)
    if cfg.get("latetag"):
        P.st("setup")
        P(f" s_load_dword {sTAG}, s[{SRD['WS']}:{SRD['WS']+1}], {TAGSLOT}")
    p0_pre(P)
    wd = wd_ops(); so = s_ops()
    if cfg.get("nobulk"): del wd[:]; del so[:]
    for o in take(so, cfg["w0_s"]) + take(wd, cfg["w0_wd"]): P(o)
    P.st("pre")
    P.vmwait("L1")
    P.st("L1")
    p0_kv(P)
    P.st("kvst")
    P(" s_barrier")
    P.st("bar")
    a_load(P)
    P.mark("A")
    cl = clears(P)
    if cfg.get("noclear"): del cl[2:]
    b1 = take(cl, cfg["w1_cl"]) + take(so, cfg["w1_s"]) + take(wd, cfg["w1_wd"])
    P.vmwait("L3")
    P.st("X")
    l1 = ln1()
    ib = l1.index(" s_barrier")
    interleave(P, l1[:ib], b1, cfg["w1_every"])
    P.vmwait("A")
    interleave(P, l1[ib:], b1, cfg["w1_every"])
    P.st("ln1")
    interleave(P, a_reads() + a_prep(P), b1, cfg["w1_every"])
    for o in b1: P(o)
    conv_setup(P)
    P.st("aprep")
    h1_recv(P)
    P.st("h1")
    cl = [o.replace("v[12:15]", "v[212:215]") for o in cl]
    b2 = cl + take(so, cfg["w2_s"]) + take(wd, cfg["w2_wd"])
    ncl = len(cl)
    n0 = P.nvm
    conv_mfma(P, b2, cfg["w2_every"], conv_epi_consts())
    for o in b2: P(o)
    P.marks["CL"] = n0 + ncl
    P.st("mfma")
    conv_epilogue(P)
    P.st("yst")
    P(" s_barrier")
    for o in so + wd: P(o)
    P.mark("WD")
    r_consts(P, vRd, 64)
    r1 = []
    for idx in range(K1//32 - 1): r1 += r_op(vRd, idx)
    bounce_consts(P, 10, 12, 64)
    if not cfg.get("nobulk"):
        for o in r1: P(o)
    P.vmwait("WD")
    P.st("wd")
    for u in range(0 if cfg.get("nobulk") else 28):
        for l in bounce_unit(u, 10, 12): P(l)
        if u % 2 == 1: P(" s_waitcnt lgkmcnt(4)")
    P.st("bnc")
    h2a_ln2(P, None)
    P.st("hnst")
    for o in r_op(vRd, K1//32 - 1): P(o)
    P(f"""
 s_or_b32 s3, s2, {sW}
 s_cmp_lg_u32 s3, 0
 s_cbranch_scc1 L_notag
 v_mov_b32 v4, {sTAG}
 v_mov_b32 v12, {TAGSLOT}
 s_mov_b64 exec, 1
 buffer_store_dword v4, v12, {srd('WS')}, 0 offen sc1
 s_mov_b64 exec, -1
L_notag:
""")
    g_consts(P)
    P(" s_waitcnt vmcnt(0)\n s_barrier")
    P.st("g1go")
    for g in range(8):
        for l in hn_group_loads(g): P(l)
        P.mark(f"hn{g}")
    gemm1(P, cfg)
    gemm2(P, cfg)
    final(P)
    if stamps:
        P(" s_waitcnt vmcnt(0)"); P.st("end")
        P(f" v_writelane_b32 v11, {sSPIN}, 63\n s_lshl_b32 s3, s2, 10\n s_add_u32 s3, s3, {STAMPS}\n v_lshlrev_b32 v1, 2, v0\n buffer_store_dword v11, v1, {srd('WS')}, s3 offen")
    if stamps and cfg.get("dbg"):
        P(f"""
 s_load_dwordx2 s[8:9], s[0:1], 88
 s_mov_b32 s10, 256
 s_mov_b32 s11, 0x20000
 v_and_b32 v1, 63, v0
 v_not_b32 v2, v11
 v_cmp_eq_u32 vcc, 0, v1
 v_lshlrev_b32 v1, 2, v1
 s_nop 0
 v_cndmask_b32 v11, v11, v2, vcc
 s_waitcnt lgkmcnt(0)
 s_cmp_lg_u32 {sW}, 1
 s_cbranch_scc1 L_end
 s_mov_b64 exec, 0xffff
 buffer_atomic_umax v11, v1, s[8:11], 0 offen
""")
    P("L_end:\n s_endpgm")
    for l in P.tail: P(l)
    P("L_codeend:")
    body = P.fix()
    head = open("sequential_preLN__ssm_conv_h3__glu_gated_glu__prompt.s.ref").read().split("; Override launch")[0]
    out = head + f"; @launch grid=(256,1,1) block=(256,1,1) lds={LDS_BYTES}\n"
    out += f'.amdgcn_target "amdgcn-amd-amdhsa--gfx950"\n.text\n.globl {NAME}\n.p2align 8\n.type {NAME},@function\n{NAME}:\n' + body
    out += f""" s_endpgm
.section .rodata,"a"
.p2align 6
.amdhsa_kernel {NAME}
  .amdhsa_next_free_vgpr 512
  .amdhsa_next_free_sgpr 102
  .amdhsa_accum_offset 256
  .amdhsa_group_segment_fixed_size 0
  .amdhsa_kernarg_size 104
  .amdhsa_user_sgpr_count 2
  .amdhsa_user_sgpr_kernarg_segment_ptr 1
  .amdhsa_system_sgpr_workgroup_id_x 1
.end_amdhsa_kernel
"""
    return out, P
CFG = dict(w0_s=0, w0_wd=0, w1_cl=0, w1_s=12, w1_wd=0, w1_every=12, w2_s=12, w2_wd=8, w2_every=4,
           r2_bar={12:[0,1,2,3], 26:[4,5,6,7,8]}, raw_bar={14:"r2_12", 22:"r2_26"}, hh_start=8, hh_rate=2, b2_at=6)
if __name__ == "__main__":
    cfg = dict(CFG)
    for a in sys.argv[2:]:
        k, v = a.split("="); cfg[k] = eval(v)
    out, P = build(cfg, bool(os.environ.get("STAMP")))
    open(sys.argv[1], "w").write(out)
    if os.environ.get("STAMP"): open(sys.argv[1] + ".names", "w").write(" ".join(P.stn))
    print("lines", len(P.lines), "nops", P.nops)
```

```python
import sys, os
sys.path.insert(0, "gen")
from asmlib import Prog

NAME = "sequential_preLN__ssm_conv_h3__glu_gated_glu__prompt_kernel"
TAGSLOT = 0
KVBOX = 0x100000
YBOX  = 0x500000
HN    = 0x900000
HRES  = 0xB00000
HH    = 0xD00000
STAMPS = 0x1480000
WS_BYTES = 0x1500000
SRD = dict(X=8, K=12, V=16, SHK=20, SSMK=24, SSMD=28, WG=32, WU=36, WD=40, OUT=44, WS=48)
KOFF = dict(X=0, K=8, V=16, SHK=24, SSMK=32, SSMD=40, WG=56, WU=64, WD=72, OUT=80, WS=96)
SIZE = dict(X=2097152, K=2097152, V=2097152, SHK=4096, SSMK=4096, SSMD=1024, WG=1835008, WU=1835008, WD=1835008, OUT=2097152, WS=WS_BYTES)
def srd(n): return f"s[{SRD[n]}:{SRD[n]+3}]"
sW, sP, sC, sG, sJ, sTAG, sLO, sHI, sMASK = "s56", "s57", "s58", "s59", "s60", "s61", "s62", "s63", "s64"
sJ224, sJJ, sJL, sO0, sO1, sHS0, sHS1, sSB, sROT, sE, sSPIN, sL3 = "s65", "s66", "s67", "s68", "s69", "s70", "s71", "s72", "s73", "s74", "s75", "s79"
sHNst = "s52"; sHNld = "s53"
def vr(b, n): return f"v[{b}:{b+n-1}]" if n > 1 else f"v{b}"
def ar(b, n): return f"a[{b}:{b+n-1}]" if n > 1 else f"a{b}"
def unit(jj, t):
    if t < 3: return t if t < jj else t + 4
    return jj + (t - 3)

SB = 0; SU = 49152 + 128
XR = 98432
KVR = XR; KVCH = 4608
PART = XR + 10240
K1 = 224
R1G = XR; R1U = R1G + K1*128
R2G = 0; R2U = 49408
STAT = 163840 - 512
BOUNCE = STAT - 8192
RED = 0; BS = 1088; REDW = 16*BS
LDS_BYTES = 163840
SPIN = 20000

class G(Prog):
    def __init__(self, stamps=False):
        super().__init__(); self.nvm = 0; self.marks = {}; self.stamps = stamps; self.tail = []; self.uid = 0; self.only = None
    def __call__(self, text):
        for l in text.split("\n"):
            s = l.strip()
            if not s: continue
            if s.startswith(("buffer_", "global_")): self.nvm += 1
            self.lines.append(l.rstrip())
    def mark(self, name): self.marks[name] = self.nvm
    def vmwait_text(self, name):
        n = self.nvm - self.marks[name]
        return f" s_waitcnt vmcnt({min(n, 63)})"
    def vmwait(self, name): self(self.vmwait_text(name))
    def st(self, i):
        if self.stamps and (self.only is None or i in self.only):
            self.stn = getattr(self, "stn", ["start"]) + [i]
            self(f" s_memrealtime s[98:99]\n s_waitcnt lgkmcnt(0)\n v_writelane_b32 v11, s98, {len(self.stn)-1}")

vK, vW, vV, vX, vD, vQ, vKS, vT = 144, 164, 180, 188, 196, 200, 224, 240
vWD, vS, vST, vDUM = 216, 218, 221, 222
vBB = 208
vq, vu1 = 224, 240
vA, vAx, vB, vIN, aC = 16, 208, 144, 144, 224
CS2 = 4160; FC = PART
vHN = 16

def entry(P, cfg):
    P(" s_cmp_ge_u32 s2, 256\n s_cbranch_scc1 L_end")
    if P.stamps: P(" s_memrealtime s[96:97]")
    if cfg.get("scr"): P(" s_lshr_b32 s3, s2, 5\n s_and_b32 s2, s2, 31\n s_lshl_b32 s2, s2, 3\n s_or_b32 s2, s2, s3")
    P(f"""
 s_getpc_b64 s[4:5]
L_pc:
 s_bfe_u32 s3, s2, 0x30003
 s_lshl_b32 s3, s3, 12
 v_lshlrev_b32 v4, 7, v0
 v_add_u32 v5, s3, v4
 v_cmp_gt_u32 vcc, 32, v0
 s_nop 1
 v_cndmask_b32 v4, v5, v4, vcc
 v_min_u32 v4, L_codeend-L_pc-4, v4
 v_cmp_gt_u32 vcc, 64, v0
 s_and_saveexec_b64 s[6:7], vcc
 s_cbranch_execz L_nopf
 global_load_dword v{vDUM}, v4, s[4:5]
L_nopf:
 s_mov_b64 exec, s[6:7]
""")
    for n in ("K","SHK","V","WS","X","SSMD","SSMK","WD","WG","WU","OUT"):
        P(f" s_load_dwordx2 s[{SRD[n]}:{SRD[n]+1}], s[0:1], {KOFF[n]}")
    P(f"""
 v_lshrrev_b32 v4, 6, v0
 s_bfe_u32 {sL3}, s2, 0x20003
 s_bfe_u32 s3, s2, 0x20001
 v_readfirstlane_b32 {sW}, v4
 s_lshl_b32 s3, s3, 2
 s_add_u32 {sG}, s3, {sL3}
 s_lshr_b32 {sJL}, s2, 5
 s_and_b32 s3, s2, 1
 s_lshl_b32 s3, s3, 3
 s_add_u32 {sJ}, s3, {sJL}
 s_lshl_b32 {sP}, {sG}, 4
 s_add_u32 {sP}, {sP}, {sJ}
 v_and_b32 v1, 3, v0
 v_lshrrev_b32 v2, 2, v0
 s_lshl_b32 s3, {sP}, 13
 v_lshlrev_b32 v3, 11, v1
 v_lshl_add_u32 v3, v2, 4, v3
 v_add_u32 v3, s3, v3
 v_subrev_u32 v4, 3072, v3
 v_subrev_u32 v5, 2048, v3
 v_subrev_u32 v6, 1024, v3
 v_lshlrev_b32 v7, 6, v2
""")
    for n in ("K","SHK","V"): P(f" s_mov_b32 s{SRD[n]+2}, {SIZE[n]}\n s_mov_b32 s{SRD[n]+3}, 0x20000")
    if P.stamps: P(" v_mov_b32 v11, 0\n s_waitcnt lgkmcnt(0)\n v_writelane_b32 v11, s96, 0"); P.st("karg")
    P(f"""
 s_waitcnt lgkmcnt(0)
 buffer_load_dwordx4 {vr(vK,4)}, v4, {srd('K')}, 0 offen
 buffer_load_dwordx4 {vr(vK+4,4)}, v5, {srd('K')}, 0 offen
 buffer_load_dwordx4 {vr(vK+8,4)}, v6, {srd('K')}, 0 offen
 buffer_load_dwordx4 {vr(vK+12,4)}, v3, {srd('K')}, 0 offen
 buffer_load_dwordx4 {vr(vK+16,4)}, v3, {srd('K')}, 0 offen offset:1024
 buffer_load_dwordx4 {vr(vV,4)}, v3, {srd('V')}, 0 offen
 buffer_load_dwordx4 {vr(vV+4,4)}, v3, {srd('V')}, 0 offen offset:1024
""")
    for i in range(4): P(f" buffer_load_dwordx4 {vr(vW+4*i,4)}, v7, {srd('SHK')}, 0 offen offset:{16*i}")
    P.mark("L1")
    if cfg.get("wsoff"): P(f" s_add_u32 s{SRD['WS']}, s{SRD['WS']}, {cfg['wsoff']}\n s_addc_u32 s{SRD['WS']+1}, s{SRD['WS']+1}, 0")
    P.st("L1i")
    if not cfg.get("latetag"): P(f" s_load_dword {sTAG}, s[{SRD['WS']}:{SRD['WS']+1}], {TAGSLOT}")
    for n in ("WS","X","SSMD","SSMK","WD","WG","WU","OUT"): P(f" s_mov_b32 s{SRD[n]+2}, {SIZE[n]}\n s_mov_b32 s{SRD[n]+3}, 0x20000")
    P(f"""
 v_lshlrev_b32 v5, 4, v2
 buffer_load_dwordx4 {vr(vX,4)}, v3, {srd('X')}, 0 offen
 buffer_load_dwordx4 {vr(vX+4,4)}, v3, {srd('X')}, 0 offen offset:1024
 buffer_load_dwordx4 {vr(vD,4)}, v5, {srd('SSMD')}, 0 offen
 s_mov_b32 {sC}, s2
 s_mov_b32 {sLO}, 0x05040100
 s_mov_b32 {sHI}, 0x07060302
 s_mov_b32 {sMASK}, 0xffff0000
 s_mul_i32 {sJ224}, {sJ}, 224
 s_and_b32 {sJJ}, {sJ}, 3
 s_and_b32 s3, s2, 7
 s_lshl_b32 s3, s3, 2
 s_add_u32 {sSB}, s3, {sL3}
 s_lshl_b32 {sE}, {sJL}, 7
 s_add_u32 {sROT}, {sL3}, {sJL}
 s_and_b32 {sROT}, {sROT}, 3
 s_lshl_b32 s3, {sC}, 1
 s_lshr_b32 s4, {sW}, 1
 s_add_u32 s3, s3, s4
 s_lshl_b32 s3, s3, 12
 s_add_u32 s{SRD['SSMK']}, s{SRD['SSMK']}, s3
 s_addc_u32 s{SRD['SSMK']+1}, s{SRD['SSMK']+1}, 0
""")
    P.mark("L3")

def a_touch(P):
    P(f""" v_and_b32 v4, 31, v0
 v_lshlrev_b32 v4, 7, v4
 buffer_load_dword v{vDUM+1}, v4, {srd('SSMK')}, 0 offen""")
def a_load(P):
    P(f"""
 v_and_b32 v6, 63, v0
 v_lshlrev_b32 v6, 4, v6
 s_and_b32 s3, {sW}, 1
 s_lshl_b32 s3, s3, 3
 v_add_u32 v4, s3, v6
 v_add_u32 v5, 4, v4
 s_mul_i32 s3, {sW}, {2*CS2}
 s_add_u32 m0, s3, {FC}
""")
    for i in range(4): P(f" buffer_load_dwordx4 v4, {srd('SSMK')}, 0 offen offset:{1024*i} lds")
    P(f" s_add_u32 m0, s3, {FC+CS2}")
    for i in range(4): P(f" buffer_load_dwordx4 v5, {srd('SSMK')}, 0 offen offset:{1024*i} lds")
    P(f"""
 v_and_b32 v4, 15, v0
 v_subrev_u32 v4, 15, v4
 v_ashrrev_i32 v4, 1, v4
 v_lshlrev_b32 v4, 2, v4
 v_bfe_u32 v5, v0, 4, 3
 v_lshl_add_u32 v4, v5, 6, v4
""")
    for i in range(8):
        P(f" v_add_u32 v5, {4*i}, v4\n buffer_load_dword v{vA+i}, v5, {srd('SSMK')}, 0 offen")
def a_reads():
    o = f"""
 v_and_b32 v4, 15, v0
 v_add_u32 v4, 1, v4
 v_bfe_u32 v7, v4, 1, 2
 v_mul_u32_u24 v7, {CS2}, v7
 v_lshrrev_b32 v4, 3, v4
 v_lshl_add_u32 v7, v4, 4, v7
 v_bfe_u32 v4, v0, 4, 3
 v_lshl_add_u32 v7, v4, 6, v7
 s_lshr_b32 s3, {sW}, 1
 s_mul_i32 s3, s3, {4*CS2}
 s_add_u32 s3, s3, {FC}
 v_add_u32 v7, s3, v7""".strip("\n").split("\n")
    for a in range(8):
        for bb in range(4):
            if a == 0 and bb < 2: continue
            o.append(f" ds_read_b128 {vr(vA+16*a+4*bb,4)}, v7 offset:{512*a+16*bb-32}")
        o.append(f" ds_read_b32 v{vAx+a}, v7 offset:{512*a+32}")
        if a % 2 == 1: o.append(" s_waitcnt lgkmcnt(5)")
    o.append(" s_waitcnt lgkmcnt(0)")
    return o
def a_prep(P):
    out = [" v_not_b32 v4, v0\n v_and_b32 v4, 1, v4\n v_lshlrev_b32 v4, 4, v4"]
    for a in range(8):
        for i in range(16):
            nxt = vA+16*a+i+1 if i < 15 else vAx+a
            out.append(f" v_alignbit_b32 v{vA+16*a+i}, v{nxt}, v{vA+16*a+i}, v4")
    return out

def p0_kv(P):
    Krow = lambda i, d: vK + 4*i + d
    prs = [(3,2),(1,0),(4,3),(2,1)]
    for half in range(2):
        for ch in range(4*half, 4*half+4):
            d = ch >> 1; sel = sHI if ch & 1 else sLO
            for n,(x,y) in enumerate(prs):
                P(f" v_perm_b32 v{vT+4*(ch&3)+n}, v{Krow(y,d)}, v{Krow(x,d)}, {sel}")
        for ch in range(4*half, 4*half+4):
            P(f" v_dot2_f32_bf16 v{vKS+ch}, v{vT+4*(ch&3)+1}, v{vW+2*ch+1}, 0")
            P(f" v_dot2_f32_bf16 v{vKS+8+ch}, v{vT+4*(ch&3)+3}, v{vW+2*ch+1}, 0")
        for ch in range(4*half, 4*half+4):
            P(f" v_dot2_f32_bf16 v{vKS+ch}, v{vT+4*(ch&3)+0}, v{vW+2*ch}, v{vKS+ch}")
            P(f" v_dot2_f32_bf16 v{vKS+8+ch}, v{vT+4*(ch&3)+2}, v{vW+2*ch}, v{vKS+8+ch}")
    for i in range(8):
        P(f" v_lshlrev_b32 v{vK+2*i}, 16, v{vV+i}\n v_and_b32 v{vK+2*i+1}, {sMASK}, v{vV+i}")
    for t in range(4):
        P(f" v_pk_mul_f32 {vr(vKS+2*t,2)}, {vr(vKS+2*t,2)}, {vr(vK+2*t,2)}")
        P(f" v_pk_mul_f32 {vr(vKS+8+2*t,2)}, {vr(vKS+8+2*t,2)}, {vr(vK+8+2*t,2)}")
        P(f" v_cvt_pk_bf16_f32 v{vQ+4*t}, v{vKS+2*t}, v{vKS+2*t+1}")
        P(f" v_cvt_pk_bf16_f32 v{vQ+4*t+2}, v{vKS+8+2*t}, v{vKS+8+2*t+1}")
        P(f" buffer_store_dwordx4 {vr(vQ+4*t,4)}, v{vST}, {srd('WS')}, s{4+t} offen sc1")
def p0_pre(P):
    P(f"""
 v_lshlrev_b32 v{vST}, 16, v2
 v_lshl_add_u32 v{vST}, v1, 4, v{vST}
 s_lshl_b32 s4, {sP}, 6
 s_add_u32 s4, s4, {KVBOX}
 s_add_u32 s5, s4, 16384
 s_add_u32 s6, s4, 32768
 s_add_u32 s7, s4, 49152
 s_mov_b32 {sSPIN}, {SPIN}
 s_waitcnt lgkmcnt(0)
 s_add_u32 {sTAG}, {sTAG}, 0x9E3779B1
""")
    for t in range(4): P(f" v_mov_b32 v{vQ+4*t+1}, {sTAG}\n v_mov_b32 v{vQ+4*t+3}, {sTAG}")

def row_stats(src, tmp, lds_off, out_m, out_r):
    o = []
    S0, Q0, S1, Q1 = tmp, tmp+1, tmp+2, tmp+3
    a = tmp+8
    for r in range(2):
        b = src+8*r
        o.append(f" v_pk_add_f32 {vr(a+4*r,2)}, {vr(b,2)}, {vr(b+2,2)}")
        o.append(f" v_pk_mul_f32 {vr(a+4*r+2,2)}, {vr(b,2)}, {vr(b,2)}")
    for i in range(1, 4):
        for r in range(2):
            b = src+8*r+2*i
            if i >= 2: o.append(f" v_pk_add_f32 {vr(a+4*r,2)}, {vr(a+4*r,2)}, {vr(b,2)}")
            o.append(f" v_pk_fma_f32 {vr(a+4*r+2,2)}, {vr(b,2)}, {vr(b,2)}, {vr(a+4*r+2,2)}")
    for k in range(4): o.append(f" v_add_f32 v{tmp+k}, v{a+2*k}, v{a+2*k+1}")
    o += f"""
 v_bfe_u32 v{tmp+4}, v0, 4, 2
 v_lshl_add_u32 v{tmp+4}, v1, 2, v{tmp+4}
 v_permlane32_swap_b32 v{S0}, v{Q0}
 v_permlane32_swap_b32 v{S1}, v{Q1}
 v_lshlrev_b32 v{tmp+4}, 4, v{tmp+4}
 v_add_f32 v{S0}, v{S0}, v{Q0}
 v_add_f32 v{S1}, v{S1}, v{Q1}
 s_lshl_b32 s3, {sW}, 2
 s_add_u32 s3, s3, {lds_off}
 v_permlane16_swap_b32 v{S0}, v{S1}
 v_add_u32 v{tmp+4}, s3, v{tmp+4}
 v_add_f32 v{S0}, v{S0}, v{S1}
 v_lshlrev_b32 v{tmp+5}, 6, v1
 v_add_u32 v{tmp+5}, {lds_off}, v{tmp+5}
 v_add_f32_dpp v{S0}, v{S0}, v{S0} row_ror:4 row_mask:0xf bank_mask:0xf
 v_add_f32_dpp v{S0}, v{S0}, v{S0} row_ror:8 row_mask:0xf bank_mask:0xf
 ds_write_b32 v{tmp+4}, v{S0}
 s_waitcnt lgkmcnt(0)
 s_barrier
 ds_read_b128 {vr(tmp+8,4)}, v{tmp+5}
 ds_read_b128 {vr(tmp+12,4)}, v{tmp+5} offset:16
 ds_read_b128 {vr(tmp+16,4)}, v{tmp+5} offset:32
 ds_read_b128 {vr(tmp+20,4)}, v{tmp+5} offset:48
 s_mov_b32 s4, 0x3b000000
 s_mov_b32 s5, 0x3b000000
 s_waitcnt lgkmcnt(0)""".strip("\n").split("\n")
    for k in range(4):
        b = tmp+8+4*k
        o.append(f" v_pk_add_f32 {vr(b,2)}, {vr(b,2)}, {vr(b+2,2)}")
    for k in range(4):
        b = tmp+8+4*k
        o.append(f" v_add_f32 v{tmp+k}, v{b}, v{b+1}")
    o += f"""
 v_pk_mul_f32 {vr(tmp,2)}, {vr(tmp,2)}, s[4:5]
 v_pk_mul_f32 {vr(tmp+2,2)}, {vr(tmp+2,2)}, s[4:5]
 v_pk_fma_f32 {vr(tmp+2,2)}, {vr(tmp,2)}, {vr(tmp,2)}, {vr(tmp+2,2)} neg_lo:[1,0,0] neg_hi:[1,0,0]
 v_cvt_pk_bf16_f32 v{tmp+4}, v{tmp}, v{tmp+1}
 v_max_f32 v{tmp+2}, 0, v{tmp+2}
 v_max_f32 v{tmp+3}, 0, v{tmp+3}
 v_cvt_pk_bf16_f32 v{tmp+5}, v{tmp+2}, v{tmp+3}
 v_lshlrev_b32 v{out_m}, 16, v{tmp+4}
 v_and_b32 v{out_m+1}, {sMASK}, v{tmp+4}
 v_lshlrev_b32 v{tmp+2}, 16, v{tmp+5}
 v_and_b32 v{tmp+3}, {sMASK}, v{tmp+5}
 v_add_f32 v{tmp+2}, 0x3727c5ac, v{tmp+2}
 v_add_f32 v{tmp+3}, 0x3727c5ac, v{tmp+3}
 v_cvt_pk_bf16_f32 v{tmp+5}, v{tmp+2}, v{tmp+3}
 v_lshlrev_b32 v{tmp+2}, 16, v{tmp+5}
 v_and_b32 v{tmp+3}, {sMASK}, v{tmp+5}
 v_sqrt_f32 v{tmp+2}, v{tmp+2}
 v_sqrt_f32 v{tmp+3}, v{tmp+3}
 v_cvt_pk_bf16_f32 v{tmp+5}, v{tmp+2}, v{tmp+3}
 v_lshlrev_b32 v{tmp+2}, 16, v{tmp+5}
 v_and_b32 v{tmp+3}, {sMASK}, v{tmp+5}
 v_rcp_f32 v{out_r}, v{tmp+2}
 v_rcp_f32 v{out_r+1}, v{tmp+3}""".strip("\n").split("\n")
    return o
def normalize(dst, src, m, r):
    o = []
    for row in range(2):
        sel = f"op_sel:[0,{row}] op_sel_hi:[1,{row}]"
        for i in range(4):
            o.append(f" v_pk_add_f32 {vr(dst+8*row+2*i,2)}, {vr(src+8*row+2*i,2)}, {vr(m,2)} {sel} neg_lo:[0,1] neg_hi:[0,1]")
    for row in range(2):
        sel = f"op_sel:[0,{row}] op_sel_hi:[1,{row}]"
        for i in range(4):
            o.append(f" v_pk_mul_f32 {vr(dst+8*row+2*i,2)}, {vr(dst+8*row+2*i,2)}, {vr(r,2)} {sel}")
    return o
def ln1():
    tmp = 144; kd = 172; dd = 168
    o = []
    for i in range(8): o.append(f" v_lshlrev_b32 v{vu1+2*i}, 16, v{vX+i}\n v_and_b32 v{vu1+2*i+1}, {sMASK}, v{vX+i}")
    for r in range(2):
        for t in range(4):
            s = vQ+4*t+2*r
            o.append(f" v_lshlrev_b32 v{kd+8*r+2*t}, 16, v{s}\n v_and_b32 v{kd+8*r+2*t+1}, {sMASK}, v{s}")
    for i in range(4): o.append(f" v_lshlrev_b32 v{vX+2*i}, 16, v{vD+i}\n v_and_b32 v{vX+2*i+1}, {sMASK}, v{vD+i}")
    for r in range(2):
        for t in range(4): o.append(f" v_pk_mul_f32 {vr(kd+8*r+2*t,2)}, {vr(kd+8*r+2*t,2)}, {vr(vX+2*t,2)}")
    o += row_stats(vu1, tmp, STAT, dd, dd+2)
    o += normalize(vq, vu1, dd, dd+2)
    for i in range(8): o.append(f" v_pk_fma_f32 {vr(vu1+2*i,2)}, {vr(vq+2*i,2)}, {vr(kd+2*i,2)}, {vr(vu1+2*i,2)}")
    return o

def tagcheck(P, base, ok_label, retry_label):
    P(f" v_xor_b32 v4, {sTAG}, v{base+1}")
    for i in range(1, 8): P(f" v_bitop3_b32 v4, v4, v{base+2*i+1}, {sTAG} bitop3:0xf6")
    P(f"""
 v_cmp_ne_u32 vcc, 0, v4
 s_cbranch_vccz {ok_label}
 s_sub_u32 {sSPIN}, {sSPIN}, 1
 s_cbranch_scc0 {retry_label}
 s_mov_b32 {sSPIN}, 0
{ok_label}:
""")

def bulk_consts(P):
    t = vT
    P(f"""
 v_and_b32 v{t}, 63, v0
 v_lshrrev_b32 v{t+1}, 3, v{t}
 v_and_b32 v{t+2}, 7, v{t}
 v_and_b32 v{t+3}, 2, v{t+1}
 v_lshlrev_b32 v{t+3}, 1, v{t+3}
 v_xor_b32 v{t+2}, v{t+2}, v{t+3}
 v_lshlrev_b32 v{t+1}, 10, v{t+1}
 v_lshl_add_u32 v{vWD}, v{t+2}, 4, v{t+1}
 v_add_u32 v{vWD+1}, 8192, v{vWD}
 s_mov_b32 s3, {(1<<32)//6 + 1}
""")
    for i in range(3):
        P(f"""
 v_add_u32 v{t+1}, {64*i}, v{t}
 v_mul_hi_u32 v{t+2}, v{t+1}, s3
 v_mul_u32_u24 v{t+3}, 6, v{t+2}
 v_sub_u32 v{t+3}, v{t+1}, v{t+3}
 v_lshrrev_b32 v{t+4}, 1, v{t+3}
 v_cmp_le_u32 vcc, {sJJ}, v{t+4}
 v_lshlrev_b32 v{t+3}, 4, v{t+3}
 v_add_u32 v{t+4}, 128, v{t+3}
 v_mul_u32_u24 v{t+2}, 3584, v{t+2}
 v_cndmask_b32 v{t+3}, v{t+3}, v{t+4}, vcc
 v_add_u32 v{vS+i}, v{t+2}, v{t+3}
""")
def wd_ops():
    ops = []
    for i in range(4):
        pre = f""" s_add_u32 s54, {sROT}, {i}
 s_and_b32 s54, s54, 3
 s_lshl_b32 s76, {sW}, 2
 s_add_u32 s76, s76, s54
 s_mul_i32 s76, s76, {112*1024}
 s_add_u32 s76, s76, {sE}
 s_lshl_b32 s77, s54, 14
 s_add_u32 s77, s77, s76
"""
        for t in range(7):
            d = (i*7+t)*8
            if t < 3:
                pre += f" s_cmp_gt_u32 s54, {t}\n s_cselect_b32 s78, 0, 65536\n s_add_u32 s78, s78, s76\n"
                if t: pre += f" s_add_u32 s78, s78, {t*16384}\n"
                so = "s78"
            else:
                if t > 3: pre += f" s_add_u32 s77, s77, 16384\n"
                so = "s77"
            ops.append(pre + f" buffer_load_dwordx4 {ar(d,4)}, v{vWD}, {srd('WD')}, {so} offen")
            ops.append(f" buffer_load_dwordx4 {ar(d+4,4)}, v{vWD+1}, {srd('WD')}, {so} offen")
            pre = ""
    return ops
def s_ops():
    ops = []
    for idx in range(4):
        pre = f""" s_add_u32 s100, {sL3}, {idx}
 s_and_b32 s100, s100, 3
 s_lshl_b32 s100, s100, 2
 s_add_u32 s100, s100, {sW}
 s_mul_i32 s101, s100, 3072
 s_lshl_b32 s55, {sJL}, 1
 s_add_u32 s100, s100, s55
 s_and_b32 s100, s100, 15
 s_mul_i32 s100, s100, {32*3584}
 s_add_u32 s100, s100, {sJ224}
"""
        for m, name in enumerate(("WG","WU")):
            for i in range(3):
                ops.append(pre + f" s_add_u32 m0, s101, {SB + m*SU + i*1024}\n buffer_load_dwordx4 v{vS+i}, {srd(name)}, s100 offen lds")
                pre = ""
    return ops
def r_consts(P, vR, t):
    P(f"""
 v_and_b32 v{t}, 63, v0
 v_lshrrev_b32 v{t+1}, 3, v{t}
 v_mul_u32_u24 v{t+2}, 3584, v{t+1}
 v_and_b32 v{t+3}, 7, v{t}
 v_and_b32 v{t+1}, 2, v{t+1}
 v_xor_b32 v{t+3}, v{t+3}, v{t+1}
 s_lshl_b32 s3, {sJJ}, 5
 s_add_u32 s3, s3, {sJ224}
 v_add_u32 v{t+2}, s3, v{t+2}
 v_lshl_add_u32 v{vR}, v{t+3}, 4, v{t+2}
 v_xor_b32 v{t+3}, 4, v{t+3}
 v_lshl_add_u32 v{vR+1}, v{t+3}, 4, v{t+2}
 s_lshl_b32 s55, {sJL}, 3
 s_add_u32 s55, s55, {sW}
 s_lshl_b32 s54, {sW}, 10
""")
def r_op(vR, idx):
    if idx < K1//32: g, u = R1G + idx*4096, R1U + idx*4096
    else: g, u = R2G + (idx-K1//32)*4096, R2U + (idx-K1//32)*4096
    pre = f" s_add_u32 s100, s55, {4*idx}\n s_and_b32 s100, s100, 63\n s_mul_i32 s100, s100, {8*3584}\n"
    return [pre + f" s_add_u32 m0, s54, {g}\n buffer_load_dwordx4 v{vR}, {srd('WG')}, s100 offen lds",
            f" s_add_u32 m0, s54, {u}\n buffer_load_dwordx4 v{vR+1}, {srd('WU')}, s100 offen lds"]
def interleave(P, work, bulk, every):
    n = 0
    for wk in work:
        P(wk); n += 1
        if bulk and n % every == 0: P(bulk.pop(0))
def take(l, n):
    o = l[:n]; del l[:n]; return o

def clears(P):
    z = 12
    P(f"""
 v_mov_b32 v{z}, -1
 v_mov_b32 v{z+1}, -1
 v_mov_b32 v{z+2}, -1
 v_mov_b32 v{z+3}, -1
 v_lshlrev_b32 v5, 9, v2
 v_lshl_add_u32 v5, v1, 4, v5
 s_lshl_b32 {sHNst}, {sG}, 17
 s_lshr_b32 s4, {sJ}, 2
 s_lshl_b32 s4, s4, 15
 s_add_u32 {sHNst}, {sHNst}, s4
 s_lshl_b32 s4, {sJJ}, 7
 s_add_u32 {sHNst}, {sHNst}, s4
 s_add_u32 {sHNst}, {sHNst}, {HN}
 s_lshl_b32 {sHS0}, {sG}, 2
 s_add_u32 {sHS0}, {sHS0}, {sW}
 s_lshl_b32 {sHS0}, {sHS0}, 4
 s_add_u32 {sHS0}, {sHS0}, {sJ}
 s_mul_i32 {sHS0}, {sHS0}, 7168
 s_add_u32 {sHS0}, {sHS0}, {HH}
 s_add_u32 {sHS1}, {sHS0}, 4096
""")
    ops = [f" buffer_store_dwordx4 {vr(z,4)}, v5, {srd('WS')}, {sHNst} offen sc1", f" buffer_store_dwordx4 {vr(z,4)}, v5, {srd('WS')}, {sHNst} offen offset:64 sc1"]
    for t in range(7):
        ops.append(f" buffer_store_dwordx4 {vr(z,4)}, v6, {srd('WS')}, {sHS0 if t < 4 else sHS1} offen offset:{(t&3)*1024} sc1")
    return ops

def conv_setup(P):
    P(f"""
 v_mov_b32 v12, 0
 v_and_b32 v13, 127, v0
 v_lshlrev_b32 v13, 2, v13
 v_lshrrev_b32 v14, 7, v0
 v_mul_u32_u24 v14, {KVCH}, v14
 v_add3_u32 v13, v13, v14, s3
 ds_write_b32 v13, v12
 v_and_b32 v13, 15, v0
 v_lshlrev_b32 v13, 5, v13
 v_bfe_u32 v14, v0, 4, 3
 v_lshlrev_b32 v14, 6, v14
 v_sub_u32 v14, v14, v13
 v_add_u32 v14, 480, v14
 s_lshr_b32 s3, {sW}, 1
 s_mul_i32 s3, s3, {KVCH}
 s_add_u32 s3, s3, {KVR}
""".replace(" v_add3_u32 v13, v13, v14, s3", f" s_mov_b32 s3, {KVR+4096}\n v_add3_u32 v13, v13, v14, s3"))
    for bb in range(4):
        P(f""" v_add_u32 v13, {16*bb}, v14
 v_lshrrev_b32 v15, 4, v13
 v_and_b32 v15, 16, v15
 v_xor_b32 v13, v13, v15
 v_add_u32 v{vBB+bb}, s3, v13""")
    P(f"""
 v_lshlrev_b32 v13, 2, v0
 v_sub_u32 v13, 1020, v13
 v_lshrrev_b32 v15, 4, v13
 v_and_b32 v15, 16, v15
 v_xor_b32 v13, v13, v15
 v_add_u32 v13, {KVR}, v13
 v_lshlrev_b32 v9, 4, v0
 v_mov_b32 v212, -1
 v_mov_b32 v213, -1
 v_mov_b32 v214, -1
 v_mov_b32 v215, -1
""")
def h1_recv(P):
    P(f"""
 s_lshl_b32 s4, {sC}, 14
 s_add_u32 s4, s4, {KVBOX}
 s_add_u32 s5, s4, 4096
 s_add_u32 s6, s4, 8192
 s_add_u32 s7, s4, 12288
L_h1:
""")
    for i in range(4): P(f" buffer_load_dwordx4 {vr(vIN+4*i,4)}, v9, {srd('WS')}, s{4+i} offen sc1")
    P(" s_waitcnt vmcnt(0)")
    tagcheck(P, vIN, "L_h1ok", "L_h1")
    for i in range(4):
        P(f" v_perm_b32 v{vIN+4*i+1}, v{vIN+4*i}, v{vIN+4*i+2}, {sLO}")
        P(f" v_perm_b32 v{vIN+4*i+3}, v{vIN+4*i}, v{vIN+4*i+2}, {sHI}")
        P(f" ds_write2st64_b32 v13, v{vIN+4*i+1}, v{vIN+4*i+3} offset0:{(3-i)*4} offset1:{(3-i)*4+KVCH//256}")
    P(" s_waitcnt lgkmcnt(0)\n s_barrier")
def conv_mfma(P, bulk, every, extra):
    def rd(bb): return [f" ds_read_b128 {vr(vB+32*(bb&1)+4*d,4)}, v{vBB+bb} offset:{(7-d)*512}" for d in range(8)]
    for l in rd(0): P(l)
    n = 0
    for bb in range(4):
        pend = []
        for d in range(8):
            if d == 0 and bb == 0: P(" s_waitcnt lgkmcnt(7)")
            elif bb == 0 and d == 1: P(" s_waitcnt lgkmcnt(0)")
            elif d == 0: P(" s_waitcnt lgkmcnt(0)")
            if d == 1 and bb < 3: pend = rd(bb+1)
            for a in range(8-d):
                j = a + d
                c = "0" if (bb == 0 and d == 0) else ar(aC+4*j,4)
                P(f" v_mfma_f32_16x16x32_bf16 {ar(aC+4*j,4)}, {vr(vA+16*a+4*bb,4)}, {vr(vB+32*(bb&1)+4*d,4)}, {c}")
                n += 1
                if pend: P(pend.pop(0))
                elif bulk and n % every == 0: P(bulk.pop(0))
                elif extra: P(extra.pop(0))
    for l in extra: P(l)
def conv_epi_consts():
    return f"""
 v_bfe_u32 v13, v0, 4, 2
 v_mul_u32_u24 v13, 320, v13
 v_and_b32 v14, 15, v0
 v_lshl_add_u32 v13, v14, 4, v13
 s_mul_i32 s3, {sW}, 10240
 s_add_u32 s3, s3, {PART}
 v_add_u32 v13, s3, v13
 v_lshrrev_b32 v14, 7, v0
 v_mul_u32_u24 v14, 1280, v14
 v_bfe_u32 v15, v0, 1, 2
 v_mul_u32_u24 v15, 320, v15
 v_add_u32 v14, v14, v15
 v_bfe_u32 v15, v0, 3, 4
 v_lshl_add_u32 v14, v15, 4, v14
 v_and_b32 v15, 1, v0
 v_lshl_add_u32 v14, v15, 3, v14
 v_add_u32 v14, {PART}, v14
 v_lshlrev_b32 v12, 14, v2
 v_lshl_add_u32 v12, v1, 4, v12
 s_and_b32 s4, {sC}, 3
 s_lshl_b32 s4, s4, 12
 s_lshr_b32 s3, {sC}, 2
 s_lshl_b32 s3, s3, 6
 s_add_u32 s4, s4, s3
 s_add_u32 s4, s4, {YBOX}
 s_add_u32 s5, s4, {1<<20}
 s_add_u32 s6, s4, {2<<20}
 s_add_u32 s7, s4, {3<<20}""".strip("\n").split("\n")
def conv_epilogue(P):
    R = 16; Qd = 48
    for j in range(8): P(f" ds_write_b128 v13, {ar(aC+4*j,4)} offset:{j*1280}")
    for i in range(4): P(f" v_mov_b32 v{Qd+4*i+1}, {sTAG}\n v_mov_b32 v{Qd+4*i+3}, {sTAG}")
    P.vmwait("CL")
    P(" s_waitcnt lgkmcnt(0)\n s_barrier")
    for i in range(4):
        for w in range(4): P(f" ds_read_b64 {vr(R+8*i+2*w,2)}, v14 offset:{i*2560+w*10240}")
        if i == 2: P(" s_waitcnt lgkmcnt(8)")
    for i in range(4):
        P(f" s_waitcnt lgkmcnt({12-4*i})")
        b = R+8*i
        P(f""" v_pk_add_f32 {vr(b,2)}, {vr(b,2)}, {vr(b+2,2)}
 v_pk_add_f32 {vr(b+4,2)}, {vr(b+4,2)}, {vr(b+6,2)}
 v_cvt_pk_bf16_f32 v{Qd+4*i}, v{b}, v{b+4}
 v_cvt_pk_bf16_f32 v{Qd+4*i+2}, v{b+1}, v{b+5}
 buffer_store_dwordx4 {vr(Qd+4*i,4)}, v12, {srd('WS')}, s{4+i} offen sc1""")

def bounce_consts(P, vw, vr2, t):
    P(f"""
 s_lshl_b32 s3, {sW}, 11
 s_add_u32 s3, s3, {BOUNCE}
 v_add_u32 v{vw}, s3, v6
 v_bfe_u32 v{t}, v0, 5, 1
 v_bfe_u32 v{t+1}, v0, 4, 1
 v_bfe_u32 v{t+2}, v0, 2, 2
 v_lshl_add_u32 v{t}, v{t}, 2, v{t+2}
 v_lshlrev_b32 v{t}, 7, v{t}
 v_lshl_add_u32 v{t}, v1, 3, v{t}
 v_add_u32 v{t}, s3, v{t}
 v_and_b32 v{t+2}, 2, v{t+2}
 v_or_b32 v{t+2}, v{t+2}, v{t+1}
 v_lshl_add_u32 v{vr2}, v{t+2}, 5, v{t}
 v_xor_b32 v{t+2}, 2, v{t+2}
 v_lshl_add_u32 v{vr2+1}, v{t+2}, 5, v{t}
""")
def bounce_unit(u, vw, vr2):
    d = u*8
    o = [f" ds_write_b128 v{vw}, {ar(d,4)}", f" ds_write_b128 v{vw}, {ar(d+4,4)} offset:1024"]
    for tau in range(2):
        for io in range(2):
            o.append(f" ds_read_b64_tr_b16 {ar(d+4*tau+2*io,2)}, v{vr2+tau} offset:{io*1024}")
    return o

def h2a_ln2(P, post_barrier):
    vY, vh, vhp, vn, tmp, mr = 64, 80, 96, 104, 112, 136
    P(f"""
 s_lshl_b32 s4, {sP}, 14
 s_add_u32 s4, s4, {YBOX}
 s_add_u32 s5, s4, 4096
 s_add_u32 s6, s4, 8192
 s_add_u32 s7, s4, 12288
L_h2:
""")
    for i in range(4): P(f" buffer_load_dwordx4 {vr(vY+4*i,4)}, v9, {srd('WS')}, s{4+i} offen sc1")
    P(" s_waitcnt vmcnt(0)")
    tagcheck(P, vY, "L_h2ok", "L_h2")
    P.st("h2")
    for r in range(2):
        for t in range(4):
            s = vY+4*t+2*r
            P(f" v_lshlrev_b32 v{vh+8*r+2*t}, 16, v{s}\n v_and_b32 v{vh+8*r+2*t+1}, {sMASK}, v{s}")
    for i in range(8): P(f" v_pk_fma_f32 {vr(vh+2*i,2)}, {vr(vq+2*i,2)}, {vr(vh+2*i,2)}, {vr(vu1+2*i,2)}")
    for i in range(8): P(f" v_cvt_pk_bf16_f32 v{vhp+i}, v{vh+2*i}, v{vh+2*i+1}")
    for i in range(8): P(f" v_lshlrev_b32 v{vh+2*i}, 16, v{vhp+i}\n v_and_b32 v{vh+2*i+1}, {sMASK}, v{vhp+i}")
    for l in row_stats(vh, tmp, STAT+256, mr, mr+2): P(l)
    for l in normalize(vh, vh, mr, mr+2): P(l)
    for r in range(2):
        for i in range(4*r, 4*r+4):
            P(f" v_cvt_pk_bf16_f32 v{vn+i}, v{vh+2*i}, v{vh+2*i+1}\n v_min_u32 v{vn+i}, -2, v{vn+i}")
        P(f" buffer_store_dwordx4 {vr(vn+4*r,4)}, v5, {srd('WS')}, {sHNst} offen offset:{64*r} sc1")
    P(f"""
 s_mov_b32 s3, {HRES}
 buffer_store_dwordx4 {vr(vhp,4)}, v3, {srd('WS')}, s3 offen sc1
 buffer_store_dwordx4 {vr(vhp+4,4)}, v3, {srd('WS')}, s3 offen offset:1024 sc1
""")

vSa, vRa, vRd = 8, 252, 14
accA, accB, accC, acc2, vE = 144, 192, 144, 176, 240
sHL = 12
def g_consts(P):
    t = 224
    P(f"""
 v_bfe_u32 v{t}, v0, 5, 1
 v_bfe_u32 v{t+1}, v0, 4, 1
 v_bfe_u32 v{t+2}, v0, 2, 2
 v_lshl_add_u32 v{t}, v{t}, 3, v{t+2}
 v_mul_u32_u24 v{t+4}, 96, v{t}
 v_lshl_add_u32 v{t+4}, v1, 3, v{t+4}
 v_mul_u32_u24 v{vSa}, {SU}, v{t+1}
 v_add_u32 v{vSa}, v{vSa}, v{t+4}
 v_lshlrev_b32 v{t+4}, 7, v{t}
 v_lshl_add_u32 v{t+4}, v1, 3, v{t+4}
 v_mul_u32_u24 v{t+3}, {R1U-R1G}, v{t+1}
 v_add_u32 v{t+4}, {R1G}, v{t+4}
 v_add_u32 v{t+4}, v{t+4}, v{t+3}
 v_lshrrev_b32 v{t+2}, 1, v{t+2}
 v_lshl_add_u32 v{t+2}, v{t+1}, 1, v{t+2}
 v_mul_u32_u24 v13, {(R2U-R2G)-(R1U-R1G)}, v{t+1}
 v_subrev_u32 v13, {R1G-R2G}, v13
 v_add_u32 v7, 4096, v6
""")
    assert SB == 0
    for k in range(4): P(f" v_xor_b32 v{t+3}, {k}, v{t+2}\n v_lshl_add_u32 v{vRa+k}, v{t+3}, 5, v{t+4}")
    P(f" s_lshl_b32 s3, {sSB}, 5\n s_lshl_b32 s4, {sW}, 2\n s_add_u32 s3, s3, s4")
    for i in range(4):
        P(f""" s_add_u32 s4, {sROT}, {i}
 s_and_b32 s4, s4, 3
 s_add_u32 s4, s4, s3
 s_mul_i32 s4, s4, 7168
 s_add_u32 s{sHL+2*i}, s4, {HH}
 s_add_u32 s{sHL+2*i+1}, s4, {HH+16*7168}""")
    P(f"""
 v_lshrrev_b32 v{t}, 3, v0
 v_and_b32 v{t+1}, 24, v{t}
 v_and_b32 v{t+2}, 3, v{t}
 v_lshl_add_u32 v{t+1}, v{t+2}, 1, v{t+1}
 v_bfe_u32 v{t+2}, v{t}, 2, 1
 v_add_u32 v{t+1}, v{t+1}, v{t+2}
 v_lshlrev_b32 v{t+1}, 10, v{t+1}
 v_and_b32 v{t+2}, 7, v0
 v_lshl_add_u32 v10, v{t+2}, 4, v{t+1}
 s_lshl_b32 {sO0}, {sSB}, 16
 s_add_u32 {sO0}, {sO0}, {sE}
 s_add_u32 {sO1}, {sO0}, 32768
 s_lshl_b32 {sHNld}, {sG}, 17
 s_lshl_b32 s4, {sW}, 15
 s_add_u32 {sHNld}, {sHNld}, s4
 s_add_u32 {sHNld}, {sHNld}, {HN}
""")
    for g in range(8):
        P(f" s_add_u32 s4, {sJL}, {g}\n s_and_b32 s4, s4, 7\n s_lshl_b32 s4, s4, 12\n s_add_u32 s{20+g}, s4, {sHNld}")
def hn_group_loads(g):
    return [f" buffer_load_dwordx4 {vr(vHN+16*g+4*k,4)}, v6, {srd('WS')}, s{20+g} offen offset:{k*1024} sc1" for k in range(4)]
def sent_check(P, regs, loads, name):
    o = [f" v_max3_u32 v4, v{regs[0]}, v{regs[1]}, v{regs[2]}"]
    rest = regs[3:]
    while len(rest) >= 2:
        o.append(f" v_max3_u32 v4, v4, v{rest[0]}, v{rest[1]}"); rest = rest[2:]
    if rest: o.append(f" v_max_u32 v4, v4, v{rest[0]}")
    o.append(" v_cmp_eq_u32 vcc, -1, v4")
    blk = [f"L_{name}_r:", f" s_sub_u32 {sSPIN}, {sSPIN}, 1", f" s_cbranch_scc1 L_{name}_x"] + loads + [" s_waitcnt vmcnt(0)"] + o + [f" s_cbranch_vccnz L_{name}_r", f" s_branch L_{name}_b", f"L_{name}_x:", f" s_mov_b32 {sSPIN}, 0", f" s_branch L_{name}_b"]
    P.tail += blk
    return o + [f" s_cbranch_vccnz L_{name}_r\nL_{name}_b:"]
def epi_tile(acc, t):
    o = []
    for i in range(8): o.append((f" v_mul_f32 v{vE+i}, 0xbfb8aa3b, v{acc+i}", 1))
    for i in range(8): o.append((f" v_exp_f32 v{vE+i}, v{vE+i}", 2))
    for i in range(8): o.append((f" v_add_f32 v{vE+i}, 1.0, v{vE+i}", 1))
    for i in range(8): o.append((f" v_rcp_f32 v{vE+i}, v{vE+i}", 2))
    for i in range(8): o.append((f" v_mul_f32 v{vE+i}, v{vE+i}, v{acc+8+i}", 1))
    for i in range(4): o.append((f" v_cvt_pk_bf16_f32 v{vE+8+i}, v{vE+2*i}, v{vE+2*i+1}", 1))
    for i in range(4): o.append((f" v_min_u32 v{vE+8+i}, -2, v{vE+8+i}", 1))
    o.append((f" buffer_store_dwordx4 {vr(vE+8,4)}, v6, {srd('WS')}, {sHS0 if t < 4 else sHS1} offen offset:{(t&3)*1024} sc1", 1))
    return o
def nins(text): return len([l for l in text.split("\n") if l.strip() and not l.strip().endswith(":")])

def gemm1(P, cfg):
    groups = [[(t, k) for t in range(3)] for k in range(32)]
    for pair in ((3,4),(5,6)):
        groups += [[(t, k) for k in (2*kk, 2*kk+1) for t in pair] for kk in range(16)]
    slot = 0; slots = {}
    for g in groups:
        for tk in g: slots[tk] = slot % 8; slot += 1
    def reads(g):
        o = []
        for (t, k) in g:
            d = aC + 4*slots[(t,k)]
            for io in range(2):
                if t < 3: o.append(f" ds_read_b64_tr_b16 {ar(d+2*io,2)}, v{vSa} offset:{k*1536+io*384+t*32}")
                else:
                    kk = k if k < K1//16 else k - K1//16
                    o.append(f" ds_read_b64_tr_b16 {ar(d+2*io,2)}, v{vRa+t-3} offset:{kk*2048+io*512}")
        return o
    accof = lambda t: accA+16*t if t < 3 else (accB+16*(t-3) if t < 5 else accC+16*(t-5))
    steps = [[(i, t) for t in ts for i in range(4)] for ts in ((0,1,2),(3,4),(5,6))]
    hslot = {}
    for n,(i,t) in enumerate(steps[0]):
        for u in range(2): hslot[(i,t,u)] = vHN + 4*(2*n+u)
    for n,(i,t) in enumerate(steps[1]):
        for u in range(2): hslot[(i,t,u)] = vHN + 4*(24+2*n+u)
    for n,(i,t) in enumerate(steps[2]):
        for u in range(2): hslot[(i,t,u)] = vHN + 4*(2*n+u)
    def hload(i, t, u): return f" buffer_load_dwordx4 {vr(hslot[(i,t,u)],4)}, {'v6' if t < 4 else 'v7'}, {srd('WS')}, s{sHL+2*i+u} offen offset:{(t&3)*1024} sc1"
    P.hslot = hslot; P.hload = hload; P.steps = steps

    fill = []
    r2_bar = cfg["r2_bar"]
    for l in reads(groups[0]): P(l)
    nK = K1//16
    for gi, g in enumerate(groups):
        t0, k0 = g[0]
        pre = []
        if t0 == 0 and k0 % 4 == 0:
            if k0 == 0:
                P.vmwait("hn0")
                for l in sent_check(P, list(range(vHN, vHN+16)), hn_group_loads(0), "hn0"): P(l)
            else:
                while fill: emit_fill(P, fill.pop(0))
            gn = k0//4 + 1
            if gn < 8:
                fill.append(("WAIT:hn%d" % gn, 1))
                fill += [(l, 1) for l in sent_check(P, list(range(vHN+16*gn, vHN+16*gn+16)), hn_group_loads(gn), f"hn{gn}")]
        P(" s_waitcnt lgkmcnt(0)")
        if t0 == 0 and k0 in r2_bar:
            P(" s_barrier")
            ops = []
            for idx in r2_bar[k0]: ops += r_op(vRd, nK//2 + idx)
            fill += [(o, nins(o)) for o in ops] + [("MARK:r2_%d" % k0, 0)]
        if (t0, k0) == (3, 0):
            while fill: x = fill.pop(0); emit_fill(P, x)
            P.st("pA")
            fill += [("SKIP", 6)] + epi_tile(accA, 0) + epi_tile(accA+16, 1) + epi_tile(accA+32, 2)
        if (t0, k0) == (5, 0):
            while fill: x = fill.pop(0); emit_fill(P, x)
            P.st("pB")
            fill += [("SKIP", 6)] + epi_tile(accB, 3) + epi_tile(accB+16, 4)
        nxt = reads(groups[gi+1]) if gi+1 < len(groups) else []
        if gi+1 < len(groups):
            nt, nk = groups[gi+1][0]
            if nt == 3 and nk in cfg["raw_bar"]:
                P.vmwait(cfg["raw_bar"][nk]); P(" s_barrier")
            if nt >= 3 and nk == nK:
                P(f" v_add_u32 v{vRa+nt-3}, v13, v{vRa+nt-3}\n v_add_u32 v{vRa+nt-2}, v13, v{vRa+nt-2}")
        for mi, (t, k) in enumerate(g):
            a = accof(t)
            P(f" v_mfma_f32_32x32x16_bf16 {vr(a,16)}, {ar(aC+4*slots[(t,k)],4)}, {vr(vHN+4*k,4)}, {'0' if k == 0 else vr(a,16)}")
            budget = 6 - (1 if mi == len(g)-1 else 0)
            nrd = min(len(nxt), 4 if len(g) == 3 else 3)
            for l in take(nxt, nrd): P(l)
            budget -= nrd
            if t == 6 and k >= cfg["hh_start"]:
                q = P.__dict__.setdefault("hq", [(i,tt,u) for (i,tt) in steps[0] for u in range(2)])
                cnt = 0
                while q and hslot[q[0]] + 4 <= vHN + 4*k and cnt < cfg["hh_rate"]:
                    P(hload(*q.pop(0))); budget -= 1; cnt += 1
            while fill and budget >= max(fill[0][1], 1) or (fill and fill[0][1] == 0) or (fill and fill[0][1] > 5 and budget >= 2):
                x = fill.pop(0); emit_fill(P, x); budget -= x[1]
    while fill: emit_fill(P, fill.pop(0))
def emit_fill(P, x):
    s = x[0]
    if s.startswith("WAIT:"): P.vmwait(s[5:])
    elif s.startswith("MARK:"): P.mark(s[5:])
    elif s == "SKIP": pass
    else: P(s)

def gemm2(P, cfg):
    hslot, hload, steps = P.hslot, P.hload, P.steps
    P.st("pC")
    q = P.__dict__.get("hq", [(i,tt,u) for (i,tt) in steps[0] for u in range(2)])
    for x in q: P(hload(*x))
    P.mark("b0")
    b1 = [(i,t,u) for (i,t) in steps[1] for u in range(2)]
    for x in b1[:8]: P(hload(*x))
    for x, w in epi_tile(accC, 5) + epi_tile(accC+16, 6): P(x)
    for x in b1[8:]: P(hload(*x))
    P.mark("b1")
    P.st("epiC")
    b2 = [(i,t,u) for (i,t) in steps[2] for u in range(2)]
    first = True
    allsteps = steps[0] + steps[1] + steps[2]
    pairs = [allsteps[n:n+2] for n in range(0, 28, 2)]
    def chk(pi):
        fr = [(i,t,u) for (i,t) in pairs[pi] for u in range(2)]
        regs = [hslot[f]+e for f in fr for e in range(4)]
        return sent_check(P, regs, [hload(*f) for f in fr], f"hh{pi}")
    P.vmwait("b0")
    for l in chk(0): P(l)
    for pi, pr in enumerate(pairs):
        fill = []
        if pi == 6:
            pass
        if pi+1 < len(pairs):
            if pi+1 == 6: fill.append("WAIT:b1")
            if pi+1 >= 10: fill.append(f"WAIT:b2_{pi+1-10}")
            fill += chk(pi+1)
        post = []
        if pi == cfg["b2_at"]:
            post = ["B2"]
        mf = []
        for (i, t) in pr:
            for u in range(2):
                for tau in range(2):
                    a = acc2+32*u+16*tau
                    mf.append(f" v_mfma_f32_32x32x16_bf16 {vr(a,16)}, {ar(((i*7+t)*2+tau)*4,4)}, {vr(hslot[(i,t,u)],4)}, {'0' if first else vr(a,16)}")
            first = False
        for n, m in enumerate(mf):
            P(m)
            if post and n == 0:
                for c in range(4):
                    for x in b2[4*c:4*c+4]: P(hload(*x))
                    P.mark(f"b2_{c}")
            if pi == 6 and n == 0:
                P(f""" s_barrier
 s_add_u32 s3, {sO0}, {HRES}
 s_add_u32 s4, {sO1}, {HRES}
 buffer_load_dwordx4 {vr(vE,4)}, v10, {srd('WS')}, s3 offen sc1
 buffer_load_dwordx4 {vr(vE+4,4)}, v10, {srd('WS')}, s4 offen sc1""")
            if n >= 4:
                for x in take(fill, 4): emit_fill(P, (x, 1))
        for x in fill: emit_fill(P, (x, 1))
    P.st("g2")
def final(P):
    tmp = 16
    P(f"""
 s_mul_i32 s3, {sW}, {REDW}
 v_add_u32 v4, s3, v6
 v_and_b32 v5, 7, v0
 v_lshrrev_b32 v7, 3, v0
 v_mul_u32_u24 v5, {BS}, v5
 v_lshl_add_u32 v7, v7, 4, v5
 v_add_u32 v9, {2*REDW}, v7
""")
    assert RED == 0
    for blk in range(16): P(f" ds_write_b128 v4, {vr(acc2+4*blk,4)} offset:{blk*BS}")
    P(" s_waitcnt vmcnt(0)")
    for ups in range(2):
        for i in range(4): P(f" v_lshlrev_b32 v{80+8*ups+2*i}, 16, v{vE+4*ups+i}\n v_and_b32 v{80+8*ups+2*i+1}, {sMASK}, v{vE+4*ups+i}")
    P(" s_waitcnt lgkmcnt(0)\n s_barrier")
    for ups in range(2):
        for w in range(4):
            for h in range(2):
                P(f" ds_read_b128 {vr(tmp+32*ups+8*w+4*h,4)}, {'v7' if w < 2 else 'v9'} offset:{ups*8*BS + h*512 + (w&1)*REDW}")
        if ups == 0: P(" s_waitcnt lgkmcnt(4)")
    for ups in range(2):
        P(f" s_waitcnt lgkmcnt({8 if ups == 0 else 0})")
        b = tmp+32*ups
        for i in range(4): P(f" v_pk_add_f32 {vr(b+2*i,2)}, {vr(b+2*i,2)}, {vr(b+8+2*i,2)}")
        for i in range(4): P(f" v_pk_add_f32 {vr(b+16+2*i,2)}, {vr(b+16+2*i,2)}, {vr(b+24+2*i,2)}")
        for i in range(4): P(f" v_pk_add_f32 {vr(b+2*i,2)}, {vr(b+2*i,2)}, {vr(80+8*ups+2*i,2)}")
        for i in range(4): P(f" v_pk_add_f32 {vr(b+2*i,2)}, {vr(b+2*i,2)}, {vr(b+16+2*i,2)}")
        for i in range(4): P(f" v_cvt_pk_bf16_f32 v{b+16+i}, v{b+2*i}, v{b+2*i+1}")
        P(f" buffer_store_dwordx4 {vr(b+16,4)}, v10, {srd('OUT')}, {sO0 if ups == 0 else sO1} offen")

def build(cfg, stamps=False):
    P = G(stamps)
    if cfg.get("dbg"): P.only = cfg["dbg"].split(",")
    entry(P, cfg)
    a_touch(P)
    if cfg.get("tlb"):
        st = cfg["tlb"]
        P(f" v_and_b32 v4, 63, v0\n v_lshlrev_b32 v4, {st}, v4")
        n = (WS_BYTES >> st)
        for i in range((n + 63)//64): P(f" s_mov_b32 s3, {i*(64<<st)}\n buffer_load_dword v{vDUM}, v4, {srd('WS')}, s3 offen")
        for nm in ("OUT","WG","WU","WD"): P(f" buffer_load_dword v{vDUM}, v4, {srd(nm)}, 0 offen")
    bulk_consts(P)
    if cfg.get("latetag"):
        P.st("setup")
        P(f" s_load_dword {sTAG}, s[{SRD['WS']}:{SRD['WS']+1}], {TAGSLOT}")
    p0_pre(P)
    wd = wd_ops(); so = s_ops()
    if cfg.get("nobulk"): del wd[:]; del so[:]
    for o in take(so, cfg["w0_s"]) + take(wd, cfg["w0_wd"]): P(o)
    P.st("pre")
    P.vmwait("L1")
    P.st("L1")
    p0_kv(P)
    P.st("kvst")
    P(" s_barrier")
    P.st("bar")
    a_load(P)
    P.mark("A")
    cl = clears(P)
    if cfg.get("noclear"): del cl[2:]
    b1 = take(cl, cfg["w1_cl"]) + take(so, cfg["w1_s"]) + take(wd, cfg["w1_wd"])
    P.vmwait("L3")
    P.st("X")
    l1 = ln1()
    ib = l1.index(" s_barrier")
    interleave(P, l1[:ib], b1, cfg["w1_every"])
    P.vmwait("A")
    interleave(P, l1[ib:], b1, cfg["w1_every"])
    P.st("ln1")
    interleave(P, a_reads() + a_prep(P), b1, cfg["w1_every"])
    for o in b1: P(o)
    conv_setup(P)
    P.st("aprep")
    h1_recv(P)
    P.st("h1")
    cl = [o.replace("v[12:15]", "v[212:215]") for o in cl]
    b2 = cl + take(so, cfg["w2_s"]) + take(wd, cfg["w2_wd"])
    ncl = len(cl)
    n0 = P.nvm
    conv_mfma(P, b2, cfg["w2_every"], conv_epi_consts())
    for o in b2: P(o)
    P.marks["CL"] = n0 + ncl
    P.st("mfma")
    conv_epilogue(P)
    P.st("yst")
    P(" s_barrier")
    for o in so + wd: P(o)
    P.mark("WD")
    r_consts(P, vRd, 64)
    r1 = []
    for idx in range(K1//32 - 1): r1 += r_op(vRd, idx)
    bounce_consts(P, 10, 12, 64)
    if not cfg.get("nobulk"):
        for o in r1: P(o)
    P.vmwait("WD")
    P.st("wd")
    for u in range(0 if cfg.get("nobulk") else 28):
        for l in bounce_unit(u, 10, 12): P(l)
        if u % 2 == 1: P(" s_waitcnt lgkmcnt(4)")
    P.st("bnc")
    h2a_ln2(P, None)
    P.st("hnst")
    for o in r_op(vRd, K1//32 - 1): P(o)
    P(f"""
 s_or_b32 s3, s2, {sW}
 s_cmp_lg_u32 s3, 0
 s_cbranch_scc1 L_notag
 v_mov_b32 v4, {sTAG}
 v_mov_b32 v12, {TAGSLOT}
 s_mov_b64 exec, 1
 buffer_store_dword v4, v12, {srd('WS')}, 0 offen sc1
 s_mov_b64 exec, -1
L_notag:
""")
    g_consts(P)
    P(" s_waitcnt vmcnt(0)\n s_barrier")
    P.st("g1go")
    for g in range(8):
        for l in hn_group_loads(g): P(l)
        P.mark(f"hn{g}")
    gemm1(P, cfg)
    gemm2(P, cfg)
    final(P)
    if stamps:
        P(" s_waitcnt vmcnt(0)"); P.st("end")
        P(f" v_writelane_b32 v11, {sSPIN}, 63\n s_lshl_b32 s3, s2, 10\n s_add_u32 s3, s3, {STAMPS}\n v_lshlrev_b32 v1, 2, v0\n buffer_store_dword v11, v1, {srd('WS')}, s3 offen")
    if stamps and cfg.get("dbg"):
        P(f"""
 s_load_dwordx2 s[8:9], s[0:1], 88
 s_mov_b32 s10, 256
 s_mov_b32 s11, 0x20000
 v_and_b32 v1, 63, v0
 v_not_b32 v2, v11
 v_cmp_eq_u32 vcc, 0, v1
 v_lshlrev_b32 v1, 2, v1
 s_nop 0
 v_cndmask_b32 v11, v11, v2, vcc
 s_waitcnt lgkmcnt(0)
 s_cmp_lg_u32 {sW}, 1
 s_cbranch_scc1 L_end
 s_mov_b64 exec, 0xffff
 buffer_atomic_umax v11, v1, s[8:11], 0 offen
""")
    P("L_end:\n s_endpgm")
    for l in P.tail: P(l)
    P("L_codeend:")
    body = P.fix()
    head = open("sequential_preLN__ssm_conv_h3__glu_gated_glu__prompt.s.ref").read().split("; Override launch")[0]
    out = head + f"; @launch grid=(256,1,1) block=(256,1,1) lds={LDS_BYTES}\n"
    if cfg.get("prenop"):
        out = head + f"; @launch kernel=nop_kernel grid=(256,1,1) block=(256,1,1) lds=0\n; @launch kernel={NAME} grid=(256,1,1) block=(256,1,1) lds={LDS_BYTES}\n"
    out += f'.amdgcn_target "amdgcn-amd-amdhsa--gfx950"\n.text\n.globl {NAME}\n.p2align 8\n.type {NAME},@function\n{NAME}:\n' + body
    out += f""" s_endpgm
.section .rodata,"a"
.p2align 6
.amdhsa_kernel {NAME}
  .amdhsa_next_free_vgpr 512
  .amdhsa_next_free_sgpr 102
  .amdhsa_accum_offset 256
  .amdhsa_group_segment_fixed_size 0
  .amdhsa_kernarg_size 104
  .amdhsa_user_sgpr_count 2
  .amdhsa_user_sgpr_kernarg_segment_ptr 1
  .amdhsa_system_sgpr_workgroup_id_x 1
.end_amdhsa_kernel
"""
    if cfg.get("prenop"):
        out = out.replace('.section .rodata,"a"', '.globl nop_kernel\n.p2align 8\n.type nop_kernel,@function\nnop_kernel:\n s_endpgm\n.section .rodata,"a"')
        kd = out[out.index(".p2align 6\n.amdhsa_kernel"):]
        out += kd.replace(NAME, "nop_kernel").replace("vgpr 512", "vgpr 8").replace("offset 256", "offset 8")
    return out, P
CFG = dict(w0_s=0, w0_wd=0, w1_cl=0, w1_s=12, w1_wd=0, w1_every=12, w2_s=12, w2_wd=8, w2_every=4,
           r2_bar={12:[0,1,2,3], 26:[4,5,6,7,8]}, raw_bar={14:"r2_12", 22:"r2_26"}, hh_start=8, hh_rate=2, b2_at=6)
if __name__ == "__main__":
    cfg = dict(CFG)
    for a in sys.argv[2:]:
        k, v = a.split("="); cfg[k] = eval(v)
    out, P = build(cfg, bool(os.environ.get("STAMP")))
    open(sys.argv[1], "w").write(out)
    if os.environ.get("STAMP"): open(sys.argv[1] + ".names", "w").write(" ".join(P.stn))
    print("lines", len(P.lines), "nops", P.nops)
```

```python
import sys, os, re
sys.path.insert(0, "gen")
from asmlib import Prog

NAME = "sequential_preLN__ssm_conv_h3__glu_gated_glu__prompt_kernel"
TAGSLOT = 0
KVBOX = 0x100000
YBOX  = 0x500000
HN    = 0x900000
HRES  = 0xB00000
HH    = 0xD00000
GS = 4480
HC    = 0x080000
FL    = 0x0C0000
HI    = 0x040000
STAMPS = 0x1500000
WS_BYTES = 0x1580000
SRD = dict(X=8, K=12, V=16, SHK=20, SSMK=24, SSMD=28, WG=32, WU=36, WD=40, OUT=44, WS=48)
KOFF = dict(X=0, K=8, V=16, SHK=24, SSMK=32, SSMD=40, WG=56, WU=64, WD=72, OUT=80, WS=96)
SIZE = dict(X=2097152, K=2097152, V=2097152, SHK=4096, SSMK=2097152, SSMD=1024, WG=1835008, WU=1835008, WD=1835008, OUT=2097152, WS=WS_BYTES)
def srd(n): return f"s[{SRD[n]}:{SRD[n]+3}]"
sHNst, sWL, sWR, sRING = "s52", "s53", "s54", "s55"
sW, sG, sJ, sTAG, sLO, sHI, sMASK = "s56", "s59", "s60", "s61", "s62", "s63", "s64"
sJL, sO0, sO1, sHS0, sHS1, sSB, sE, sSPIN, sL3 = "s67", "s68", "s69", "s70", "s71", "s72", "s74", "s75", "s79"
sP = sC = "s2"
sWD = 80
sHL = 8
sHC = 87
sHN = 22
def vr(b, n): return f"v[{b}:{b+n-1}]" if n > 1 else f"v{b}"
def ar(b, n): return f"a[{b}:{b+n-1}]" if n > 1 else f"a{b}"
def L(text): return [l for l in text.split("\n") if l.strip()]

WGB, WUB = 0, 65536
PART = 131072; FC = 96256; CS2 = 4352
KVR = 131072; KVCH = 4608
RING = 131072; NR = 7
STAT = 163840 - 512
RED = 0; BS = 1088; REDW = 16*BS
LDS_BYTES = 163840
SPIN = 20000

class G(Prog):
    def __init__(self, stamps=False):
        super().__init__(); self.nvm = 0; self.nds = 0; self.vmdone = 0; self.dsdone = 0; self.marks = {}; self.dmarks = {}; self.stamps = stamps; self.tail = []; self.only = None; self.stn = ["start"]
    def __call__(self, text):
        for l in text.split("\n"):
            s = l.strip()
            if not s: continue
            if s.startswith("WAIT:"): self.vmwait(s[5:]); continue
            if s.startswith("MARK:"): self.mark(s[5:]); continue
            if s.startswith("DWAIT:"): self.dwait(s[6:]); continue
            if s.startswith("DMARK:"): self.dmarks[s[6:]] = self.nds; continue
            if s == "SKIP": continue
            if s.startswith(("buffer_", "global_")): self.nvm += 1
            if s.startswith("ds_"): self.nds += 1
            if s.startswith("s_waitcnt"):
                m = re.search(r"vmcnt\((\d+)\)", s)
                if m: self.vmdone = max(self.vmdone, self.nvm - int(m.group(1)))
                m = re.search(r"lgkmcnt\((\d+)\)", s)
                if m: self.dsdone = max(self.dsdone, self.nds - int(m.group(1)))
            self.lines.append(l.rstrip())
    def mark(self, name): self.marks[name] = self.nvm
    def vmwait(self, name):
        if self.vmdone < self.marks[name]: self(f" s_waitcnt vmcnt({min(self.nvm - self.marks[name], 63)})")
    def dwait(self, name):
        if self.dsdone < self.dmarks[name]: self(f" s_waitcnt lgkmcnt({min(self.nds - self.dmarks[name], 15)})")
    def cost(self, s):
        t = s.strip()
        if t.startswith(("MARK:", "DMARK:")): return 0
        if t.startswith("WAIT:"): return 0 if self.vmdone >= self.marks[t[5:]] else 1
        if t.startswith("DWAIT:"): return 0 if self.dsdone >= self.dmarks[t[6:]] else 1
        if t == "SKIP": return 3
        if t.startswith(("v_exp", "v_rcp")): return 2
        return 1
    def st(self, i):
        if self.stamps and (self.only is None or i in self.only):
            if i not in self.stn: self.stn.append(i)
            self.lines += [" s_memrealtime s[98:99]", " s_waitcnt lgkmcnt(0)", f" v_writelane_b32 v11, s98, {self.stn.index(i)}"]

vK, vW, vV, vKS, vT = 144, 164, 180, 188, 204
vQ, vX, vD = 224, 240, 248
vR, vST, vDUM = 252, 220, 221
vZ = 208
vA, vAx, vB, vIN, aC = 16, 144, 144, 144, 224
vBB = [8, 10, 222, 223]
vq, vu1 = 144, 160
vHN = 16

def entry(P, cfg):
    P(" s_cmp_ge_u32 s2, 256\n s_cbranch_scc1 L_end")
    if P.stamps: P(" s_memrealtime s[96:97]")
    P(f"""
 s_getpc_b64 s[4:5]
L_pc:
 s_bfe_u32 s3, s2, 0x30003
 s_lshl_b32 s3, s3, 12
 v_lshlrev_b32 v4, 7, v0
 v_add_u32 v5, s3, v4
 v_cmp_gt_u32 vcc, 32, v0
 s_nop 1
 v_cndmask_b32 v4, v5, v4, vcc
 v_min_u32 v4, L_codeend-L_pc-4, v4
 v_cmp_gt_u32 vcc, 64, v0
 s_and_saveexec_b64 s[6:7], vcc
 s_cbranch_execz L_nopf
 global_load_dword v{vDUM}, v4, s[4:5]
L_nopf:
 s_mov_b64 exec, s[6:7]
""")
    for n in ("K","SHK","V","WS","SSMK","X","SSMD","WD","WG","WU","OUT"):
        P(f" s_load_dwordx2 s[{SRD[n]}:{SRD[n]+1}], s[0:1], {KOFF[n]}")
    P(f"""
 v_lshrrev_b32 v4, 6, v0
 v_and_b32 v1, 3, v0
 v_readfirstlane_b32 {sW}, v4
 v_lshrrev_b32 v2, 2, v0
 s_lshl_b32 s3, {sP}, 13
 v_lshlrev_b32 v3, 11, v1
 v_lshl_add_u32 v3, v2, 4, v3
 v_add_u32 v3, s3, v3
 v_subrev_u32 v4, 3072, v3
 v_subrev_u32 v5, 2048, v3
 v_subrev_u32 v8, 1024, v3
 v_lshlrev_b32 v9, 4, v0
 v_and_b32 v6, 63, v0
 v_lshlrev_b32 v6, 4, v6
""")
    for n in ("K","SHK","V","SSMK"): P(f" s_mov_b32 s{SRD[n]+2}, {SIZE[n]}\n s_mov_b32 s{SRD[n]+3}, 0x20000")
    P(f"""
 s_lshl_b32 s6, s2, 1
 s_lshr_b32 s7, {sW}, 1
 s_add_u32 s6, s6, s7
 s_lshl_b32 s6, s6, 12
 s_mul_i32 s7, {sW}, {2*CS2}
 s_add_u32 s7, s7, {FC}
 s_bitcmp1_b32 {sW}, 0
 s_cselect_b32 s3, 160, 0
 s_cselect_b32 s4, 32, 128
 s_cselect_b32 s5, 8, 0
 s_add_u32 s3, s3, s7
 s_add_u32 s4, s4, s7
 s_add_u32 s4, s4, {CS2}
 v_mov_b32 v12, 0
 v_and_b32 v14, 7, v0
 v_lshl_add_u32 v13, v14, 2, s3
 v_lshl_add_u32 v14, v14, 2, s4
 ds_write_b32 v13, v12
 ds_write_b32 v14, v12
 s_sub_u32 s3, s3, s5
 s_sub_u32 s4, s4, s5
 s_add_u32 m0, s3, 32
""")
    if P.stamps: P(" v_mov_b32 v11, 0\n s_waitcnt lgkmcnt(0)\n v_writelane_b32 v11, s96, 0"); P.st("karg")
    P(f"""
 s_waitcnt lgkmcnt(0)
 buffer_load_dwordx4 {vr(vK,4)}, v4, {srd('K')}, 0 offen nt
 buffer_load_dwordx4 {vr(vK+4,4)}, v5, {srd('K')}, 0 offen nt
 buffer_load_dwordx4 {vr(vK+8,4)}, v8, {srd('K')}, 0 offen nt
 buffer_load_dwordx4 {vr(vK+12,4)}, v3, {srd('K')}, 0 offen nt
 buffer_load_dwordx4 {vr(vK+16,4)}, v3, {srd('K')}, 0 offen offset:1024 nt
 buffer_load_dwordx4 {vr(vV,4)}, v3, {srd('V')}, 0 offen nt
 buffer_load_dwordx4 {vr(vV+4,4)}, v3, {srd('V')}, 0 offen offset:1024 nt
""")
    P(f" buffer_load_dwordx4 {vr(vW,4)}, v9, {srd('SHK')}, 0 offen")
    P.mark("L1")
    P(f" s_load_dword {sTAG}, s[{SRD['WS']}:{SRD['WS']+1}], {TAGSLOT}")
    nt = cfg.get("fnt", "")
    for i in range(4): P(f" buffer_load_dwordx4 v6, {srd('SSMK')}, s6 offen offset:{1024*i} {nt} lds")
    P(f" s_add_u32 m0, s4, 28")
    for i in range(4): P(f" buffer_load_dwordx4 v6, {srd('SSMK')}, s6 offen offset:{1024*i} {nt} lds")
    P.mark("A")
    for n in ("WS","X","SSMD","WD","WG","WU","OUT"): P(f" s_mov_b32 s{SRD[n]+2}, {SIZE[n]}\n s_mov_b32 s{SRD[n]+3}, 0x20000")
    P(f"""
 s_bfe_u32 {sL3}, s2, 0x20003
 s_lshr_b32 {sJL}, s2, 5
 s_and_b32 s3, s2, 1
 s_lshl_b32 s3, s3, 2
 s_add_u32 {sG}, s3, {sL3}
 s_bfe_u32 s3, s2, 0x20001
 s_mul_i32 s3, s3, 7
 s_add_u32 {sJ}, s3, {sJL}
 s_and_b32 s3, s2, 7
 s_lshl_b32 s3, s3, 2
 s_add_u32 {sSB}, s3, {sL3}
 s_lshl_b32 {sE}, {sJL}, 7
 s_mov_b32 {sLO}, 0x05040100
 s_mov_b32 {sHI}, 0x07060302
 s_mov_b32 {sMASK}, 0xffff0000
""")
def x_loads():
    return [f" buffer_load_dwordx4 {vr(vX,4)}, v3, {srd('X')}, 0 offen nt",
            f" buffer_load_dwordx4 {vr(vX+4,4)}, v3, {srd('X')}, 0 offen offset:1024 nt",
            f" v_lshlrev_b32 v4, 4, v2\n buffer_load_dwordx4 {vr(vD,4)}, v4, {srd('SSMD')}, 0 offen"]
def a_reads():
    o = L(f"""
 v_and_b32 v4, 15, v0
 v_add_u32 v4, 1, v4
 v_bfe_u32 v7, v4, 1, 2
 v_lshlrev_b32 v12, 3, v7
 s_mov_b32 s3, 0x020A0800
 v_bfe_u32 v12, s3, v12, 8
 v_mul_u32_u24 v7, {CS2}, v7
 v_lshrrev_b32 v4, 3, v4
 v_add_u32 v4, v4, v12
 v_lshl_add_u32 v7, v4, 4, v7
 v_bfe_u32 v4, v0, 4, 3
 v_lshl_add_u32 v7, v4, 6, v7
 s_lshr_b32 s3, {sW}, 1
 s_mul_i32 s3, s3, {4*CS2}
 s_add_u32 s3, s3, {FC}
 v_add_u32 v7, s3, v7
 v_and_b32 v12, 1, v0
 v_mul_u32_u24 v12, 0x020202, v12
 v_lshl_or_b32 v12, v12, 8, v12
 v_sub_u32 v12, 0x05040302, v12""")
    return o
def a_prep():
    def rd(a): return [f" ds_read_b128 {vr(vA+16*a+4*bb,4)}, v7 offset:{512*a+16*bb}" for bb in range(4)] + [f" ds_read_b32 v{vAx+a}, v7 offset:{512*a+64}", f"DMARK:a{a}"]
    o = rd(0) + rd(1)
    for a in range(8):
        if a+2 < 8: o += rd(a+2)
        o.append(f"DWAIT:a{a}")
        for i in range(16):
            nxt = vA+16*a+i+1 if i < 15 else vAx+a
            o.append(f" v_perm_b32 v{vA+16*a+i}, v{nxt}, v{vA+16*a+i}, v12")
    return o

def p0_pre(P):
    P(f"""
 v_lshlrev_b32 v{vST}, 16, v2
 v_lshl_add_u32 v{vST}, v1, 4, v{vST}
 s_lshl_b32 s4, {sP}, 6
 s_add_u32 s4, s4, {KVBOX}
 s_add_u32 s5, s4, 16384
 s_add_u32 s6, s4, 32768
 s_add_u32 s7, s4, 49152
 s_mov_b32 {sSPIN}, {SPIN}
 s_waitcnt lgkmcnt(0)
 s_add_u32 {sTAG}, {sTAG}, 0x9E3779B1
""")
    for t in range(4): P(f" v_mov_b32 v{vQ+4*t+1}, {sTAG}\n v_mov_b32 v{vQ+4*t+3}, {sTAG}")
    for i in range(16): P(f" v_mov_b32 v{vKS+i}, 0")
def p0_kv(P):
    Krow = lambda i, d: vK + 4*i + d
    prs = [(3,2),(1,0),(4,3),(2,1)]
    for t in range(4):
        T = vT + 8*(t & 1)
        for c in range(2):
            for n,(x,y) in enumerate(prs):
                P(f" v_perm_b32 v{T+4*c+n}, v{Krow(y,t)}, v{Krow(x,t)}, {sHI if c else sLO}")
        ks = vKS + 4*t
        qp = f"quad_perm:[{t},{t},{t},{t}] row_mask:0xf bank_mask:0xf"
        for hi in (1, 0):
            for c in range(2):
                P(f" v_dot2c_f32_bf16_dpp v{ks+c}, v{vW+2*c+hi}, v{T+4*c+hi} {qp}")
                P(f" v_dot2c_f32_bf16_dpp v{ks+2+c}, v{vW+2*c+hi}, v{T+4*c+2+hi} {qp}")
        P(f""" v_lshlrev_b32 v{T}, 16, v{vV+t}
 v_and_b32 v{T+1}, {sMASK}, v{vV+t}
 v_lshlrev_b32 v{T+2}, 16, v{vV+4+t}
 v_and_b32 v{T+3}, {sMASK}, v{vV+4+t}
 v_pk_mul_f32 {vr(ks,2)}, {vr(ks,2)}, {vr(T,2)}
 v_pk_mul_f32 {vr(ks+2,2)}, {vr(ks+2,2)}, {vr(T+2,2)}
 v_cvt_pk_bf16_f32 v{vQ+4*t}, v{ks}, v{ks+1}
 v_cvt_pk_bf16_f32 v{vQ+4*t+2}, v{ks+2}, v{ks+3}
 buffer_store_dwordx4 {vr(vQ+4*t,4)}, v{vST}, {srd('WS')}, s{4+t} offen sc1""")

def row_stats(src, tmp, lds_off, out_m, out_r):
    o = []
    S0, Q0, S1, Q1 = tmp, tmp+1, tmp+2, tmp+3
    a = tmp+8
    for r in range(2):
        b = src+8*r
        o.append(f" v_pk_add_f32 {vr(a+4*r,2)}, {vr(b,2)}, {vr(b+2,2)}")
        o.append(f" v_pk_mul_f32 {vr(a+4*r+2,2)}, {vr(b,2)}, {vr(b,2)}")
    for i in range(1, 4):
        for r in range(2):
            b = src+8*r+2*i
            if i >= 2: o.append(f" v_pk_add_f32 {vr(a+4*r,2)}, {vr(a+4*r,2)}, {vr(b,2)}")
            o.append(f" v_pk_fma_f32 {vr(a+4*r+2,2)}, {vr(b,2)}, {vr(b,2)}, {vr(a+4*r+2,2)}")
    for k in range(4): o.append(f" v_add_f32 v{tmp+k}, v{a+2*k}, v{a+2*k+1}")
    o += f"""
 v_bfe_u32 v{tmp+4}, v0, 4, 2
 v_lshl_add_u32 v{tmp+4}, v1, 2, v{tmp+4}
 v_permlane32_swap_b32 v{S0}, v{Q0}
 v_permlane32_swap_b32 v{S1}, v{Q1}
 v_lshlrev_b32 v{tmp+4}, 4, v{tmp+4}
 v_add_f32 v{S0}, v{S0}, v{Q0}
 v_add_f32 v{S1}, v{S1}, v{Q1}
 s_lshl_b32 s3, {sW}, 2
 s_add_u32 s3, s3, {lds_off}
 v_permlane16_swap_b32 v{S0}, v{S1}
 v_add_u32 v{tmp+4}, s3, v{tmp+4}
 v_add_f32 v{S0}, v{S0}, v{S1}
 v_lshlrev_b32 v{tmp+5}, 6, v1
 v_add_u32 v{tmp+5}, {lds_off}, v{tmp+5}
 v_add_f32_dpp v{S0}, v{S0}, v{S0} row_ror:4 row_mask:0xf bank_mask:0xf
 v_add_f32_dpp v{S0}, v{S0}, v{S0} row_ror:8 row_mask:0xf bank_mask:0xf
 ds_write_b32 v{tmp+4}, v{S0}
 s_waitcnt lgkmcnt(0)
 s_barrier
 ds_read_b128 {vr(tmp+8,4)}, v{tmp+5}
 ds_read_b128 {vr(tmp+12,4)}, v{tmp+5} offset:16
 ds_read_b128 {vr(tmp+16,4)}, v{tmp+5} offset:32
 ds_read_b128 {vr(tmp+20,4)}, v{tmp+5} offset:48
 s_mov_b32 s4, 0x3b000000
 s_mov_b32 s5, 0x3b000000
 s_waitcnt lgkmcnt(0)""".strip("\n").split("\n")
    for k in range(4):
        b = tmp+8+4*k
        o.append(f" v_pk_add_f32 {vr(b,2)}, {vr(b,2)}, {vr(b+2,2)}")
    for k in range(4):
        b = tmp+8+4*k
        o.append(f" v_add_f32 v{tmp+k}, v{b}, v{b+1}")
    o += f"""
 v_pk_mul_f32 {vr(tmp,2)}, {vr(tmp,2)}, s[4:5]
 v_pk_mul_f32 {vr(tmp+2,2)}, {vr(tmp+2,2)}, s[4:5]
 v_pk_fma_f32 {vr(tmp+2,2)}, {vr(tmp,2)}, {vr(tmp,2)}, {vr(tmp+2,2)} neg_lo:[1,0,0] neg_hi:[1,0,0]
 v_cvt_pk_bf16_f32 v{tmp+4}, v{tmp}, v{tmp+1}
 v_max_f32 v{tmp+2}, 0, v{tmp+2}
 v_max_f32 v{tmp+3}, 0, v{tmp+3}
 v_cvt_pk_bf16_f32 v{tmp+5}, v{tmp+2}, v{tmp+3}
 v_lshlrev_b32 v{out_m}, 16, v{tmp+4}
 v_and_b32 v{out_m+1}, {sMASK}, v{tmp+4}
 v_lshlrev_b32 v{tmp+2}, 16, v{tmp+5}
 v_and_b32 v{tmp+3}, {sMASK}, v{tmp+5}
 v_add_f32 v{tmp+2}, 0x3727c5ac, v{tmp+2}
 v_add_f32 v{tmp+3}, 0x3727c5ac, v{tmp+3}
 v_cvt_pk_bf16_f32 v{tmp+5}, v{tmp+2}, v{tmp+3}
 v_lshlrev_b32 v{tmp+2}, 16, v{tmp+5}
 v_and_b32 v{tmp+3}, {sMASK}, v{tmp+5}
 v_sqrt_f32 v{tmp+2}, v{tmp+2}
 v_sqrt_f32 v{tmp+3}, v{tmp+3}
 v_cvt_pk_bf16_f32 v{tmp+5}, v{tmp+2}, v{tmp+3}
 v_lshlrev_b32 v{tmp+2}, 16, v{tmp+5}
 v_and_b32 v{tmp+3}, {sMASK}, v{tmp+5}
 v_rcp_f32 v{out_r}, v{tmp+2}
 v_rcp_f32 v{out_r+1}, v{tmp+3}""".strip("\n").split("\n")
    return o
def normalize(dst, src, m, r):
    o = []
    for row in range(2):
        sel = f"op_sel:[0,{row}] op_sel_hi:[1,{row}]"
        for i in range(4):
            o.append(f" v_pk_add_f32 {vr(dst+8*row+2*i,2)}, {vr(src+8*row+2*i,2)}, {vr(m,2)} {sel} neg_lo:[0,1] neg_hi:[0,1]")
    for row in range(2):
        sel = f"op_sel:[0,{row}] op_sel_hi:[1,{row}]"
        for i in range(4):
            o.append(f" v_pk_mul_f32 {vr(dst+8*row+2*i,2)}, {vr(dst+8*row+2*i,2)}, {vr(r,2)} {sel}")
    return o
def tagcheck(P, base, ok_label, retry_label):
    P(f" v_xor_b32 v4, {sTAG}, v{base+1}")
    for i in range(1, 8): P(f" v_bitop3_b32 v4, v4, v{base+2*i+1}, {sTAG} bitop3:0xf6")
    P(f"""
 v_cmp_ne_u32 vcc, 0, v4
 s_cbranch_vccz {ok_label}
 s_sub_u32 {sSPIN}, {sSPIN}, 1
 s_cbranch_scc0 {retry_label}
 s_mov_b32 {sSPIN}, 0
{ok_label}:
""")


def ln1():
    tmp = 176; dd = 200; kd = 204
    o = []
    for i in range(8): o += [f" v_lshlrev_b32 v{vu1+2*i}, 16, v{vX+i}", f" v_and_b32 v{vu1+2*i+1}, {sMASK}, v{vX+i}"]
    for r in range(2):
        for t in range(4):
            s = vQ+4*t+2*r
            o += [f" v_lshlrev_b32 v{kd+8*r+2*t}, 16, v{s}", f" v_and_b32 v{kd+8*r+2*t+1}, {sMASK}, v{s}"]
    for i in range(4): o += [f" v_lshlrev_b32 v{vX+2*i}, 16, v{vD+i}", f" v_and_b32 v{vX+2*i+1}, {sMASK}, v{vD+i}"]
    for r in range(2):
        for t in range(4): o.append(f" v_pk_mul_f32 {vr(kd+8*r+2*t,2)}, {vr(kd+8*r+2*t,2)}, {vr(vX+2*t,2)}")
    o += row_stats(vu1, tmp, STAT, dd, dd+2)
    o += normalize(vq, vu1, dd, dd+2)
    for i in range(8): o.append(f" v_pk_fma_f32 {vr(vu1+2*i,2)}, {vr(vq+2*i,2)}, {vr(kd+2*i,2)}, {vr(vu1+2*i,2)}")
    return o

vWD = 254; vWr = (8, 255)
def bulk_consts(P):
    t = vT
    P(f"""
 v_bfe_u32 v{t+1}, v0, 3, 3
 v_and_b32 v{t+3}, 7, v0
 v_mul_u32_u24 v{t+2}, 3584, v{t+1}
 v_and_b32 v{t+4}, 2, v{t+1}
 v_xor_b32 v{t+5}, v{t+3}, v{t+4}
 s_lshl_b32 s3, {sJ}, 7
 v_add_u32 v{t+2}, s3, v{t+2}
 v_lshl_add_u32 v{vR}, v{t+5}, 4, v{t+2}
 v_xor_b32 v{t+5}, 4, v{t+5}
 v_lshl_add_u32 v{vR+1}, v{t+5}, 4, v{t+2}
 v_lshlrev_b32 v{t+4}, 1, v{t+4}
 v_xor_b32 v{t+3}, v{t+3}, v{t+4}
 v_lshlrev_b32 v{t+1}, 10, v{t+1}
 v_lshl_add_u32 v{vWD}, v{t+3}, 4, v{t+1}
 s_lshl_b32 {sWR}, {sJL}, 3
 s_add_u32 {sWR}, {sWR}, {sW}
 s_lshl_b32 {sWL}, {sW}, 10
 s_mul_i32 {sRING}, {sW}, {NR*1024}
 s_add_u32 {sRING}, {sRING}, {RING}
 s_cmp_ge_u32 {sJL}, 7
 s_cselect_b32 s{SRD['WG']+2}, 0, s{SRD['WG']+2}
 s_cselect_b32 s{SRD['WU']+2}, 0, s{SRD['WU']+2}
 s_lshl_b32 s3, {sL3}, 1
 s_add_u32 s3, s3, {sJL}
 s_mul_i32 s100, {sW}, {448*1024}
 s_add_u32 s100, s100, {sE}
""")
    for i in range(7):
        P(f""" s_cmp_ge_u32 s3, 7
 s_cselect_b32 s101, 7, 0
 s_sub_u32 s3, s3, s101
 s_lshl_b32 s101, s3, 16
 s_add_u32 s{sWD+i}, s101, s100
 s_add_u32 s3, s3, 1""")
sWT = 12
def w_table(P):
    P(f" s_lshl_b32 s101, {sL3}, 4\n s_add_u32 s100, s101, {sWR}\n s_lshl_b32 s101, s101, 10\n s_add_u32 s95, s101, {sWL}")
    for idx in range(16):
        P(f" s_add_u32 s3, s100, {4*idx}\n s_and_b32 s3, s3, 63\n s_mul_i32 s{sWT+idx}, s3, {8*3584}")
def w_pair(idx):
    return [f" s_add_u32 s101, s95, {idx*4096}\n s_and_b32 m0, s101, 0xffff", f" buffer_load_dwordx4 v{vR}, {srd('WG')}, s{sWT+idx} offen lds",
            f" s_add_u32 m0, m0, 65536", f" buffer_load_dwordx4 v{vR+1}, {srd('WU')}, s{sWT+idx} offen lds"]
def mall_touch(P):
    P(f"""
 v_lshlrev_b32 v4, 3, v6
 v_min_u32 v4, {55*128}, v4
 s_mul_i32 s3, s2, 7168
 s_cmp_eq_u32 {sW}, 1
 s_cbranch_scc1 L_mt1
 s_cmp_eq_u32 {sW}, 2
 s_cbranch_scc1 L_mt2
 s_cmp_eq_u32 {sW}, 3
 s_cbranch_scc1 L_mt4
 buffer_load_dword v{vDUM}, v4, {srd('WG')}, s3 offen
 s_branch L_mt3
L_mt1:
 buffer_load_dword v{vDUM}, v4, {srd('WU')}, s3 offen
 s_branch L_mt3
L_mt4:
 v_lshlrev_b32 v4, 3, v6
 s_lshl_b32 s3, s2, 13
 buffer_load_dword v{vDUM}, v4, {srd('X')}, s3 offen nt
 s_branch L_mt3
L_mt2:
 buffer_load_dword v{vDUM}, v4, {srd('WD')}, s3 offen
L_mt3:
""")
    P.nvm -= 3
def wd_touch():
    return [f""" s_mul_i32 s78, {sW}, 448
 s_mul_i32 s101, {sL3}, 112
 s_add_u32 s78, s78, s101
 s_lshl_b32 s78, s78, 10
 s_add_u32 s78, s78, {sE}
 v_lshlrev_b32 v4, 6, v6
 buffer_load_dword v{vDUM}, v4, {srd('WD')}, s78 offen""",
 f""" s_add_u32 s78, s78, {48*1024}
 v_lshlrev_b32 v4, 6, v6
 buffer_load_dword v{vDUM}, v4, {srd('WD')}, s78 offen"""]
def wd_consts(P, t):
    P(f"""
 v_bfe_u32 v{t}, v0, 5, 1
 v_bfe_u32 v{t+1}, v0, 4, 1
 v_bfe_u32 v{t+2}, v0, 2, 2
 v_lshl_add_u32 v{t}, v{t}, 2, v{t+2}
 v_lshlrev_b32 v{t}, 7, v{t}
 v_lshl_add_u32 v{t}, v1, 3, v{t}
 v_add_u32 v{t}, {sRING}, v{t}
 v_and_b32 v{t+2}, 2, v{t+2}
 v_or_b32 v{t+2}, v{t+2}, v{t+1}
 v_lshl_add_u32 v{vWr[0]}, v{t+2}, 5, v{t}
 v_xor_b32 v{t+2}, 2, v{t+2}
 v_lshl_add_u32 v{vWr[1]}, v{t+2}, 5, v{t}
""")
def wd_dma(m):
    i, r = m // 8, m & 7
    o = [f"DWAIT:wd{m-NR}"] if m >= NR else []
    o.append(f" s_add_u32 m0, {sRING}, {(m % NR)*1024}")
    if r: o += [f" s_add_u32 s100, s{sWD+i}, {r*8192}", f" buffer_load_dwordx4 v{vWD}, {srd('WD')}, s100 offen lds"]
    else: o += [f" buffer_load_dwordx4 v{vWD}, {srd('WD')}, s{sWD+i} offen lds"]
    return o + [f"MARK:wd{m}"]
def wd_read(m):
    d = (m >> 1)*8 + 2*(m & 1)
    return [f"WAIT:wd{m}"] + [f" ds_read_b64_tr_b16 {ar(d+4*tau,2)}, v{vWr[tau]} offset:{(m % NR)*1024}" for tau in range(2)] + [f"DMARK:wd{m}"]
def wd_stream(start_dma, start_rd):
    o = []; d = start_dma
    while d < min(56, start_rd + NR - 1): o += wd_dma(d); d += 1
    for m in range(start_rd, 56):
        o += wd_read(m)
        if d < 56 and d <= m + NR - 1: o += wd_dma(d); d += 1
    return o
def interleave(P, work, bulk, every):
    n = 0
    for wk in work:
        P(wk); n += 1
        if bulk and n % every == 0: P(bulk.pop(0))
def take(l, n):
    o = l[:n]; del l[:n]; return o

def st_consts(P):
    P(f"""
 v_lshlrev_b32 v5, 9, v2
 v_lshl_add_u32 v5, v1, 4, v5
 s_lshr_b32 {sHNst}, {sP}, 2
 s_lshl_b32 {sHNst}, {sHNst}, 15
 s_and_b32 s3, {sP}, 3
 s_lshl_b32 s3, s3, 7
 s_add_u32 {sHNst}, {sHNst}, s3
 s_add_u32 {sHNst}, {sHNst}, {HN}
 s_lshl_b32 {sHS0}, {sG}, 2
 s_add_u32 {sHS0}, {sHS0}, {sW}
 s_mul_i32 {sHS0}, {sHS0}, 56
 s_add_u32 {sHS0}, {sHS0}, {sJ}
 s_mul_i32 {sHS0}, {sHS0}, {GS}
 s_add_u32 {sHS0}, {sHS0}, {HH}
 s_add_u32 {sHS1}, {sHS0}, {28*GS}
 s_mov_b32 s65, {HRES}
 s_lshl_b32 s73, {sP}, 2
 s_add_u32 s73, s73, {sW}
 s_lshl_b32 s57, s73, 6
 s_add_u32 s57, s57, {FL}
 s_lshl_b32 s73, s73, 8
 s_add_u32 s73, s73, {HC-4096}
""")

def conv_setup(P):
    P(f"""
 v_mov_b32 v12, 0
 v_and_b32 v13, 127, v0
 v_lshlrev_b32 v13, 2, v13
 v_lshrrev_b32 v14, 7, v0
 v_mul_u32_u24 v14, {KVCH}, v14
 v_add3_u32 v13, v13, v14, s3
 ds_write_b32 v13, v12
 v_and_b32 v13, 15, v0
 v_lshlrev_b32 v13, 5, v13
 v_bfe_u32 v14, v0, 4, 3
 v_lshlrev_b32 v14, 6, v14
 v_sub_u32 v14, v14, v13
 v_add_u32 v14, 480, v14
 s_lshr_b32 s3, {sW}, 1
 s_mul_i32 s3, s3, {KVCH}
 s_add_u32 s3, s3, {KVR}
""".replace(" v_add3_u32 v13, v13, v14, s3", f" s_mov_b32 s3, {KVR+4096}\n v_add3_u32 v13, v13, v14, s3"))
    for bb in range(4):
        P(f""" v_add_u32 v13, {16*bb}, v14
 v_lshrrev_b32 v15, 4, v13
 v_and_b32 v15, 16, v15
 v_xor_b32 v13, v13, v15
 v_add_u32 v{vBB[bb]}, s3, v13""")
    P(f"""
 v_lshlrev_b32 v13, 2, v0
 v_sub_u32 v13, 1020, v13
 v_lshrrev_b32 v15, 4, v13
 v_and_b32 v15, 16, v15
 v_xor_b32 v13, v13, v15
 v_add_u32 v13, {KVR}, v13
""")
def conv_setup2(P):
    for i in range(4): P(f" v_mov_b32 v{vZ+i}, -1")
def h1_recv(P):
    P(f"""
 s_lshl_b32 s4, {sC}, 14
 s_add_u32 s4, s4, {KVBOX}
 s_add_u32 s5, s4, 4096
 s_add_u32 s6, s4, 8192
 s_add_u32 s7, s4, 12288
L_h1:
""")
    for i in range(4): P(f" buffer_load_dwordx4 {vr(vIN+4*i,4)}, v9, {srd('WS')}, s{4+i} offen sc1")
    P(" s_waitcnt vmcnt(0)")
    tagcheck(P, vIN, "L_h1ok", "L_h1")
    for i in range(4):
        P(f" v_perm_b32 v{vIN+4*i+1}, v{vIN+4*i}, v{vIN+4*i+2}, {sLO}")
        P(f" v_perm_b32 v{vIN+4*i+3}, v{vIN+4*i}, v{vIN+4*i+2}, {sHI}")
        P(f" ds_write2st64_b32 v13, v{vIN+4*i+1}, v{vIN+4*i+3} offset0:{(3-i)*4} offset1:{(3-i)*4+KVCH//256}")
    P(" s_waitcnt lgkmcnt(0)\n s_barrier")
def conv_mfma(P, bulk, every, extra):
    def rd(bb): return [f" ds_read_b128 {vr(vB+32*(bb&1)+4*d,4)}, v{vBB[bb]} offset:{(7-d)*512}" for d in range(8)]
    for l in rd(0): P(l)
    n = 0
    for bb in range(4):
        pend = []
        for d in range(8):
            if d == 0 and bb == 0: P(" s_waitcnt lgkmcnt(7)")
            elif bb == 0 and d == 1: P(" s_waitcnt lgkmcnt(0)")
            elif d == 0: P(" s_waitcnt lgkmcnt(0)")
            if d == 1 and bb < 3: pend = rd(bb+1)
            if d == 2 and bb == 3: P(" s_barrier")
            for a in range(8-d):
                j = a + d
                c = "0" if (bb == 0 and d == 0) else ar(aC+4*j,4)
                P(f" v_mfma_f32_16x16x32_bf16 {ar(aC+4*j,4)}, {vr(vA+16*a+4*bb,4)}, {vr(vB+32*(bb&1)+4*d,4)}, {c}")
                n += 1
                if pend: P(pend.pop(0))
                elif bulk and n % every == 0: P(bulk.pop(0))
                elif extra: P(extra.pop(0))
    for l in extra: P(l)
def conv_epi_consts():
    return f"""
 v_bfe_u32 v13, v0, 4, 2
 v_lshlrev_b32 v14, 6, v13
 v_xor_b32 v13, v14, v6
 s_lshl_b32 s3, {sW}, 13
 s_add_u32 s3, s3, {PART}
 v_add_u32 v13, s3, v13
 v_bfe_u32 v15, v0, 1, 2
 v_bfe_u32 v14, v0, 3, 4
 v_lshlrev_b32 v12, 2, v15
 v_xor_b32 v14, v14, v12
 v_lshlrev_b32 v14, 4, v14
 v_lshl_add_u32 v14, v15, 8, v14
 v_lshrrev_b32 v15, 7, v0
 v_lshl_add_u32 v14, v15, 10, v14
 v_and_b32 v15, 1, v0
 v_lshl_add_u32 v14, v15, 3, v14
 v_add_u32 v14, {PART}, v14
 v_lshlrev_b32 v12, 14, v2
 v_lshl_add_u32 v12, v1, 4, v12
 s_and_b32 s4, {sC}, 3
 s_lshl_b32 s4, s4, 12
 s_lshr_b32 s3, {sC}, 2
 s_lshl_b32 s3, s3, 6
 s_add_u32 s4, s4, s3
 s_add_u32 s4, s4, {YBOX}
 s_add_u32 s5, s4, {1<<20}
 s_add_u32 s6, s4, {2<<20}
 s_add_u32 s7, s4, {3<<20}""".strip("\n").split("\n")
def conv_epilogue(P):
    R = 16; Qd = 48
    for j in range(8): P(f" ds_write_b128 v13, {ar(aC+4*j,4)} offset:{j*1024}")
    for i in range(4): P(f" v_mov_b32 v{Qd+4*i+1}, {sTAG}\n v_mov_b32 v{Qd+4*i+3}, {sTAG}")
    P(" s_waitcnt lgkmcnt(0)\n s_barrier")
    for i in range(4):
        for w in range(4): P(f" ds_read_b64 {vr(R+8*i+2*w,2)}, v14 offset:{i*2048+w*8192}")
        if i == 2: P(" s_waitcnt lgkmcnt(8)")
    for i in range(4):
        P(f" s_waitcnt lgkmcnt({12-4*i})")
        b = R+8*i
        P(f""" v_pk_add_f32 {vr(b,2)}, {vr(b,2)}, {vr(b+2,2)}
 v_pk_add_f32 {vr(b+4,2)}, {vr(b+4,2)}, {vr(b+6,2)}
 v_cvt_pk_bf16_f32 v{Qd+4*i}, v{b}, v{b+4}
 v_cvt_pk_bf16_f32 v{Qd+4*i+2}, v{b+1}, v{b+5}
 buffer_store_dwordx4 {vr(Qd+4*i,4)}, v12, {srd('WS')}, s{4+i} offen sc1""")

def h2a_ln2(P, post_barrier):
    vY, vh, vhp, vn, tmp, mr = 64, 80, 96, 104, 112, 136
    P(f"""
 s_lshl_b32 s4, {sP}, 14
 s_add_u32 s4, s4, {YBOX}
 s_add_u32 s5, s4, 4096
 s_add_u32 s6, s4, 8192
 s_add_u32 s7, s4, 12288
L_h2:
""")
    for i in range(4): P(f" buffer_load_dwordx4 {vr(vY+4*i,4)}, v9, {srd('WS')}, s{4+i} offen sc1")
    P(" s_waitcnt vmcnt(0)")
    tagcheck(P, vY, "L_h2ok", "L_h2")
    P.st("h2")
    for r in range(2):
        for t in range(4):
            s = vY+4*t+2*r
            P(f" v_lshlrev_b32 v{vh+8*r+2*t}, 16, v{s}\n v_and_b32 v{vh+8*r+2*t+1}, {sMASK}, v{s}")
    for i in range(8): P(f" v_pk_fma_f32 {vr(vh+2*i,2)}, {vr(vq+2*i,2)}, {vr(vh+2*i,2)}, {vr(vu1+2*i,2)}")
    for i in range(8): P(f" v_cvt_pk_bf16_f32 v{vhp+i}, v{vh+2*i}, v{vh+2*i+1}")
    for i in range(8): P(f" v_lshlrev_b32 v{vh+2*i}, 16, v{vhp+i}\n v_and_b32 v{vh+2*i+1}, {sMASK}, v{vhp+i}")
    for l in row_stats(vh, tmp, STAT+256, mr, mr+2): P(l)
    for l in normalize(vh, vh, mr, mr+2): P(l)
    for r in range(2):
        for i in range(4*r, 4*r+4): P(f" v_cvt_pk_bf16_f32 v{vn+i}, v{vh+2*i}, v{vh+2*i+1}")
        P(f" buffer_store_dwordx4 {vr(vn+4*r,4)}, v5, {srd('WS')}, {sHNst} offen offset:{64*r} sc1")
    P(f"""
 v_xad_u32 v{tmp}, v{vn}, v{vn+1}, v{vn+2}
 v_xad_u32 v{tmp+1}, v{vn+4}, v{vn+5}, v{vn+6}
 v_add_u32 v{tmp}, v{tmp}, v{vn+3}
 v_add_u32 v{tmp+1}, v{tmp+1}, v{vn+7}
 v_permlane16_swap_b32 v{tmp}, v{tmp+1}
 v_add_u32 v{tmp}, v{tmp}, v{tmp+1}
 v_add_u32_dpp v{tmp}, v{tmp}, v{tmp} row_ror:8 row_mask:0xf bank_mask:0xf
 v_add_u32 v{vHASH}, {sTAG}, v{tmp}
 buffer_store_dword v{vHASH}, v{vC}, {srd('WS')}, s73 offen sc1
 buffer_store_dword v{vHASH+1}, v{vONE}, {srd('WS')}, s95 offen sc1
 buffer_store_dwordx4 {vr(vhp,4)}, v3, {srd('WS')}, s65 offen sc1
 buffer_store_dwordx4 {vr(vhp+4,4)}, v3, {srd('WS')}, s65 offen offset:1024 sc1
""")

vRa = 12
vONE, vC, vHC, vHASH, vPN, vPH, vHC1, vPD = 220, 252, 253, 222, 221, 2, 3, 5
CHN = [208, 209, 210, 211]
CHH = {(0,i): 212+i for i in range(7)}
CHH.update({(1,0):208,(1,1):209,(1,2):210,(1,3):211,(1,4):219,(1,5):221,(1,6):212})
acc0, acc1, acc2, vE = 80, 144, 16, 240
def g_consts():
    t = 224
    o = L(f"""
 v_bfe_u32 v{t}, v0, 5, 1
 v_bfe_u32 v{t+1}, v0, 4, 1
 v_bfe_u32 v{t+2}, v0, 2, 2
 v_lshl_add_u32 v{t}, v{t}, 3, v{t+2}
 v_lshlrev_b32 v{t+4}, 7, v{t}
 v_lshl_add_u32 v{t+4}, v1, 3, v{t+4}
 v_lshl_add_u32 v{t+4}, v{t+1}, 16, v{t+4}
 v_lshrrev_b32 v{t+2}, 1, v{t+2}
 v_lshl_add_u32 v{t+2}, v{t+1}, 1, v{t+2}
 v_add_u32 v7, 32768, v6""")
    assert WGB == 0 and WUB == 65536
    for k in range(4): o += [f" v_xor_b32 v{t+3}, {k}, v{t+2}", f" v_lshl_add_u32 v{vRa+k}, v{t+3}, 5, v{t+4}"]
    o += [f" s_mul_i32 s3, {sSB}, {56*GS}", f" s_add_u32 s3, s3, {HH}"]
    for i in range(7):
        o += L(f""" s_lshr_b32 s66, s{sWD+i}, 16
 s_mul_i32 s66, s66, {GS}
 s_add_u32 s{sHL+i}, s66, s3
 s_add_u32 s{sHL+7+i}, s{sHL+i}, {28*GS}""")
    o += L(f"""
 v_lshrrev_b32 v{t}, 3, v0
 v_and_b32 v{t+1}, 24, v{t}
 v_and_b32 v{t+2}, 3, v{t}
 v_lshl_add_u32 v{t+1}, v{t+2}, 1, v{t+1}
 v_bfe_u32 v{t+2}, v{t}, 2, 1
 v_add_u32 v{t+1}, v{t+1}, v{t+2}
 v_lshlrev_b32 v{t+1}, 10, v{t+1}
 v_and_b32 v{t+2}, 7, v0
 v_lshl_add_u32 v10, v{t+2}, 4, v{t+1}
 s_lshl_b32 {sO0}, {sSB}, 16
 s_add_u32 {sO0}, {sO0}, {sE}
 s_add_u32 {sO1}, {sO0}, 32768
 s_add_u32 s76, {sO0}, {HRES}
 s_add_u32 s77, {sO1}, {HRES}
 s_lshl_b32 s3, {sG}, 2
 s_add_u32 s3, s3, {sW}
 s_lshl_b32 s58, s3, 13
 s_add_u32 s58, s58, {HC}
 s_lshl_b32 s30, s3, 12
 s_add_u32 s30, s30, {HI}
 s_lshl_b32 s3, s3, 16
 s_add_u32 s3, s3, {HN}
 v_mov_b32 v{vHASH+1}, {sTAG}""")
    for g in range(8):
        o += [f" s_add_u32 s66, {sJL}, {g}", " s_and_b32 s66, s66, 7", f" s_lshl_b32 s{sHC+g}, s66, 7", f" s_add_u32 s{sHC+g}, s{sHC+g}, s58", " s_lshl_b32 s66, s66, 12", f" s_add_u32 s{sHN+g}, s66, s3"]
    o += L(f"""
 s_lshl_b32 s58, {sSB}, 3
 s_add_u32 s58, s58, {sW}
 s_lshl_b32 s58, s58, 2
 s_lshr_b32 s3, {sJL}, 1
 s_add_u32 s58, s58, s3
 s_lshl_b32 s58, s58, 6
 s_add_u32 s58, s58, {FL}""")
    return o
def g_consts2():
    return L(f"""
 v_lshrrev_b32 v{vC}, 2, v6
 v_add_u32 v{vC}, 4096, v{vC}
 v_bfe_u32 v{vHC}, v0, 3, 2
 v_lshlrev_b32 v{vHC}, 10, v{vHC}
 v_bfe_u32 v4, v0, 2, 1
 v_lshl_add_u32 v{vHC}, v4, 6, v{vHC}
 v_bfe_u32 v4, v0, 5, 1
 v_lshl_add_u32 v{vHC}, v4, 4, v{vHC}
 v_lshl_add_u32 v{vHC}, v1, 2, v{vHC}
 v_and_b32 v{vPN}, 31, v0
 v_lshlrev_b32 v{vPN}, 7, v{vPN}
 v_lshlrev_b32 v{vONE}, 21, v6
 v_add_u32 v{vONE}, 4352, v{vONE}
 s_lshl_b32 s95, {sP}, 2
 s_add_u32 s95, s95, {sW}
 s_lshl_b32 s95, s95, 7
 s_add_u32 s95, s95, {HI-4352}
 s_sub_u32 s57, s57, 4352
 v_and_b32 v4, 7, v0
 v_min_u32 v4, 6, v4
 v_mul_u32_u24 v{vPH}, {GS}, v4
 s_mul_i32 s31, {sSB}, 8
 s_add_u32 s31, s31, {sW}
 s_mul_i32 s31, s31, {7*GS}
 s_add_u32 s31, s31, {HH+4352}
 s_add_u32 s78, s31, {28*GS}""")
def hn_regs(G_): return vHN + 16*(G_ % 4)
def hn_loads(G_):
    return [f" buffer_load_dwordx4 {vr(hn_regs(G_)+4*k,4)}, {'v6' if G_ < 8 else 'v7'}, {srd('WS')}, s{sHN+(G_&7)} offen offset:{k*1024} sc1" for k in range(4)] + \
           [f" buffer_load_dword v{CHN[G_%4]}, v{vHC if G_ < 8 else vHC1}, {srd('WS')}, s{sHC+(G_&7)} offen sc1"]
def hashchain(r, chk):
    o = []
    for f in range(4):
        b = r + 4*f
        o.append(f" v_xad_u32 v4, v{b}, v{b+1}, {sTAG if f == 0 else 'v4'}")
        o.append(f" v_add3_u32 v4, v4, v{b+2}, v{b+3}")
    return o + [f" v_cmp_ne_u32 vcc, v4, v{chk}"]
def sent_check(P, o, loads, later, name, sleep=0):
    blk = [f"L_{name}_r:", f" s_sub_u32 {sSPIN}, {sSPIN}, 1", f" s_cbranch_scc1 L_{name}_x"] + ([f" s_sleep {sleep}"] if sleep else []) + loads + [" s_waitcnt vmcnt(0)"] + o + [f" s_cbranch_vccnz L_{name}_r"]
    blk += later + ([" s_waitcnt vmcnt(0)"] if later else []) + [f" s_branch L_{name}_b", f"L_{name}_x:", f" s_mov_b32 {sSPIN}, 0", f" s_branch L_{name}_b"]
    P.tail += blk
    return o + [f" s_cbranch_vccnz L_{name}_r\nL_{name}_b:"]
def hint_load(kind):
    if kind == "hn": return f" buffer_load_dword v{vPD}, v{vPN}, {srd('WS')}, s30 offen sc1"
    return f" buffer_load_dword v{vPD}, v{vPH}, {srd('WS')}, {'s31' if kind == 'h0' else 's78'} offen sc1"
def hint_check(P, kind, name, sleep):
    return [f"WAIT:{name}"] + sent_check(P, [f" v_cmp_ne_u32 vcc, {sTAG}, v{vPD}"], [hint_load(kind)], [], name, sleep)
def epi_tile(acc, ups, t):
    o = []
    for i in range(8): o.append(f" v_mul_f32 v{vE+i}, 0xbfb8aa3b, v{acc+i}")
    for i in range(8): o.append(f" v_exp_f32 v{vE+i}, v{vE+i}")
    for i in range(8): o.append(f" v_add_f32 v{vE+i}, 1.0, v{vE+i}")
    for i in range(8): o.append(f" v_rcp_f32 v{vE+i}, v{vE+i}")
    for i in range(8): o.append(f" v_mul_f32 v{vE+i}, v{vE+i}, v{acc+8+i}")
    for i in range(4): o.append(f" v_cvt_pk_bf16_f32 v{vE+8+i}, v{vE+2*i}, v{vE+2*i+1}")
    o.append(f" buffer_store_dwordx4 {vr(vE+8,4)}, v6, {srd('WS')}, {sHS1 if ups else sHS0} offen offset:{t*1024} sc1")
    o.append(f" v_xad_u32 v{vHASH}, v{vE+8}, v{vE+9}, {sTAG if t == 0 else 'v%d' % vHASH}")
    o.append(f" v_add3_u32 v{vHASH}, v{vHASH}, v{vE+10}, v{vE+11}")
    if t == 3:
        o.append(f" buffer_store_dword v{vHASH}, v{vC}, {srd('WS')}, {sHS1 if ups else sHS0} offen sc1")
        o.append(f" buffer_store_dword v{vHASH+1}, v{vONE}, {srd('WS')}, {sHS1 if ups else sHS0} offen sc1")
    return o
HREG = {(0,0):224, (0,1):80, (0,2):96, (0,3):112, (0,4):128, (0,5):48, (0,6):64,
        (1,0):144, (1,1):160, (1,2):176, (1,3):192, (1,4):224, (1,5):80, (1,6):96}
def hh_loads(u, i):
    return [f" buffer_load_dwordx4 {vr(HREG[(u,i)]+4*t,4)}, v6, {srd('WS')}, s{sHL+7*u+i} offen offset:{t*1024} sc1" for t in range(4)] + \
           [f" buffer_load_dword v{CHH[(u,i)]}, v{vC}, {srd('WS')}, s{sHL+7*u+i} offen sc1"]

FLAGST = f" buffer_store_dword v{vHASH+1}, v{vONE}, {srd('WS')}, s57 offen sc1"
def gemm1(P, cfg, wds):
    seq = [(u, k, t) for u in range(2) for k in range(32) for t in range(4)]
    D = 6; LA = 3
    def reads(n):
        u, k, t = seq[n]; d = aC + 4*(n % 8)
        return [f" ds_read_b64_tr_b16 {ar(d+2*io,2)}, v{vRa+t} offset:{k*2048+io*512}" for io in range(2)] + [f"DMARK:w{n}"]
    def hn_issue(g): return hn_loads(g) + [f"MARK:hn{g}"]
    def hn_check(g):
        later = []
        for gg in range(g+1, min(16, g+LA)): later += hn_loads(gg)
        r = hn_regs(g)
        return [f"WAIT:hn{g}"] + sent_check(P, hashchain(r, CHN[g%4]), hn_loads(g), later, f"hn{g}")
    for n in range(D):
        for l in reads(n): P(l)
    P.vmwait("HNST")
    P.st("drain")
    P(hint_load("hn")); P.mark("phn")
    for x in hint_check(P, "hn", "phn", cfg["sleep"]): P(x)
    P.st("hint")
    for g in range(LA):
        for x in hn_issue(g): P(x)
    P(FLAGST)
    for x in hn_check(0): P(x)
    P.st("hn0")
    wq_ = list(wds); fill = []; urgent = []; wacc = 0.0
    hhq = []
    for n, (u, k, t) in enumerate(seq):
        budget = 6
        g = 8*u + k//4
        if t == 0:
            if k % 4 == 0:
                while urgent: P(urgent.pop(0))
                if g + LA < 16: urgent = hn_issue(g + LA)
            if k % 4 == 3 and g + 1 < 16: urgent += hn_check(g + 1)
            if (u, k) == (1, 0):
                P.st("p0")
                rest = fill
                fill = ["SKIP"]
                for tt in range(4): fill += epi_tile(acc0+16*tt, 0, tt)
                fill += rest
            if u == 1 and k in cfg["hh_at"]:
                hhq += hh_loads(0, cfg["hh_at"][k]) + [f"MARK:hh0_{cfg['hh_at'][k]}"]
                if cfg["hh_at"][k] >= 1: assert not any("v_mul_f32" in x for x in fill[:400] if x.rstrip().endswith(f"v{acc0+16*(cfg['hh_at'][k]-1)+15}")), "epilogue not finished"
        if n % 2 == 0: P(f"DWAIT:w{n+1}")
        else: budget -= 1
        a = (acc1 if u else acc0) + 16*t
        P(f" v_mfma_f32_32x32x16_bf16 {vr(a,16)}, {ar(aC+4*(n%8),4)}, {vr(hn_regs(g)+4*(k&3),4)}, {'0' if k == 0 else vr(a,16)}")
        if n + D < len(seq):
            for l in reads(n+D): P(l)
            budget -= 2
        wbud = cfg["wd_rate"][u]
        wacc += wbud
        for q in (urgent, hhq, fill, wq_):
            while q and (budget >= P.cost(q[0]) or P.cost(q[0]) == 0):
                if q is wq_:
                    if wacc < 1 and P.cost(q[0]) > 0: break
                    wacc -= P.cost(q[0])
                x = q.pop(0); budget -= P.cost(x); P(x)
    print('left: wd', len(wq_), 'fill', len(fill))
    for q in (hhq, wq_, fill):
        while q: P(q.pop(0))
    P.st("p1")
    e1 = [epi_tile(acc1+16*tt, 1, tt) for tt in range(4)]
    hp = cfg["h0_at"]
    for tt in range(4):
        if tt == hp: P(hint_load("h0")); P.mark("ph0")
        for x in e1[tt]: P(x)
    for x in hint_check(P, "h0", "ph0", cfg["sleep"]): P(x)
    for i in range(cfg["b0_n"]):
        for x in hh_loads(0, i) + [f"MARK:hh0_{i}"]: P(x)
    P.st("epi")

def gemm2(P, cfg):
    order = [(0, i) for i in range(7)] + [(1, i) for i in range(7)]
    issue_at = cfg["b1_at"]
    issued = [(0, i) for i in range(cfg["b0_n"])]
    def chk(pos):
        u, i = order[pos]; r = HREG[(u,i)]
        later = []
        for x in order[pos+1:]:
            if x in issued and x[0] == u: later += hh_loads(*x)
        return [f"WAIT:hh{u}_{i}"] + sent_check(P, hashchain(r, CHH[(u,i)]), hh_loads(u, i), later, f"hh{u}_{i}", sleep=cfg["sleep"])
    for x in chk(0): P(x)
    hres = [f" buffer_load_dwordx4 {vr(vE,4)}, v10, {srd('WS')}, s76 offen sc1", f" buffer_load_dwordx4 {vr(vE+4,4)}, v10, {srd('WS')}, s77 offen sc1"]
    for pos, (u, i) in enumerate(order):
        fill = []
        flag = [f" buffer_load_dword v9, v1, {srd('WS')}, s58 offen sc1"]
        if pos == 0: fill += [" v_and_b32 v1, 1, v0", " v_lshlrev_b32 v1, 10, v1"] + flag + ["MARK:flag", " s_barrier"]
        if pos == 2: fill += ["WAIT:flag"] + sent_check(P, [f" v_cmp_ne_u32 vcc, {sTAG}, v9"], flag, [], "flag") + hres
        if pos == cfg["h1_at"] - 1: fill += [hint_load("h1"), "MARK:ph1"]
        if pos == cfg["h1_at"]: fill += hint_check(P, "h1", "ph1", cfg["sleep"])
        for x in issue_at.get(pos, []):
            prev = [y for y in order[:order.index(x)] if HREG[y] == HREG[x]]
            assert all(order.index(y) < pos for y in prev)
            assert x[0] == 0 or pos >= cfg["h1_at"]
            fill += hh_loads(*x) + [f"MARK:hh{x[0]}_{x[1]}"]; issued.append(x)
        late = chk(pos+1) if pos+1 < len(order) else []
        n = 0
        for t in range(4):
            for tau in range(2):
                a = acc2+32*u+16*tau
                P(f" v_mfma_f32_32x32x16_bf16 {vr(a,16)}, {ar(((i*4+t)*2+tau)*4,4)}, {vr(HREG[(u,i)]+4*t,4)}, {'0' if (i == 0 and t == 0) else vr(a,16)}")
                n += 1
                if n <= 5:
                    for x in take(fill, 4): P(x)
                else:
                    for x in take(fill, 99): P(x)
                    for x in take(late, 5): P(x)
        for x in late: P(x)
        if pos == 6: P.st("b0")
    P.st("g2")
    return hres
def final(P, hres):
    tmp = 80; hx = 144
    P(f"""
 s_mul_i32 s3, {sW}, {REDW}
 v_add_u32 v12, s3, v6
 v_and_b32 v5, 7, v0
 v_lshrrev_b32 v7, 3, v0
 v_mul_u32_u24 v5, {BS}, v5
 v_lshl_add_u32 v7, v7, 4, v5
 v_add_u32 v9, {2*REDW}, v7
""")
    for blk in range(16): P(f" ds_write_b128 v12, {vr(acc2+4*blk,4)} offset:{blk*BS}")
    P(" s_waitcnt vmcnt(0)")
    for ups in range(2):
        for i in range(4): P(f" v_lshlrev_b32 v{hx+8*ups+2*i}, 16, v{vE+4*ups+i}\n v_and_b32 v{hx+8*ups+2*i+1}, {sMASK}, v{vE+4*ups+i}")
    P(" s_waitcnt lgkmcnt(0)\n s_barrier")
    for ups in range(2):
        for w in range(4):
            for h in range(2):
                P(f" ds_read_b128 {vr(tmp+32*ups+8*w+4*h,4)}, {'v7' if w < 2 else 'v9'} offset:{ups*8*BS + h*512 + (w&1)*REDW}")
        if ups == 0: P(" s_waitcnt lgkmcnt(4)")
    for ups in range(2):
        P(f" s_waitcnt lgkmcnt({8 if ups == 0 else 0})")
        b = tmp+32*ups
        for i in range(4): P(f" v_pk_add_f32 {vr(b+2*i,2)}, {vr(b+2*i,2)}, {vr(b+8+2*i,2)}")
        for i in range(4): P(f" v_pk_add_f32 {vr(b+16+2*i,2)}, {vr(b+16+2*i,2)}, {vr(b+24+2*i,2)}")
        for i in range(4): P(f" v_pk_add_f32 {vr(b+2*i,2)}, {vr(b+2*i,2)}, {vr(hx+8*ups+2*i,2)}")
        for i in range(4): P(f" v_pk_add_f32 {vr(b+2*i,2)}, {vr(b+2*i,2)}, {vr(b+16+2*i,2)}")
        for i in range(4): P(f" v_cvt_pk_bf16_f32 v{b+16+i}, v{b+2*i}, v{b+2*i+1}")
        P(f" buffer_store_dwordx4 {vr(b+16,4)}, v10, {srd('OUT')}, {sO0 if ups == 0 else sO1} offen")

def build(cfg, stamps=False):
    P = G(stamps)
    if cfg.get("dbg"): P.only = cfg["dbg"].split(",")
    entry(P, cfg)
    if cfg["mt"] == 0: mall_touch(P)
    bulk_consts(P)
    w_table(P)
    conv_setup(P)
    for l in a_reads(): P(l)
    st_consts(P)
    p0_pre(P)
    wq = []
    for i in range(16): wq += w_pair(i)
    misc = x_loads() + (wd_touch() if cfg['wdt'] else [])
    for o in take(wq, 2*cfg["w0"]): P(o)
    P.st("pre")
    P.vmwait("L1")
    P.st("L1")
    p0_kv(P)
    P.st("kvst")
    P.vmwait("A")
    P(" s_barrier")
    P.st("bar")
    b1 = take(misc, cfg["w1_m"]) + take(wq, 2*cfg["w1"])
    interleave(P, a_prep(), b1, cfg["w1_every"])
    for o in b1: P(o)
    P.st("aprep")
    h1_recv(P)
    P.st("h1")
    b2 = misc + take(wq, 2*cfg["w2"])
    conv_mfma(P, b2, cfg["w2_every"], conv_epi_consts())
    for o in b2: P(o)
    P.mark("X")
    P.st("mfma")
    conv_epilogue(P)
    P.st("yst")
    P(" s_barrier")
    wd_consts(P, 64)
    b3 = wq
    nd = cfg["wd_pre"]
    for m in range(min(nd, NR)): b3.append("\n".join(wd_dma(m)))
    P.vmwait("X")
    interleave(P, ln1(), b3, cfg["w3_every"])
    for o in b3: P(o)
    for o in g_consts(): P(o)
    for o in g_consts2(): P(o)
    P.st("ln1")
    h2a_ln2(P, None)
    P.st("hnst")
    P(f"""
 s_or_b32 s3, s2, {sW}
 s_cmp_lg_u32 s3, 0
 s_cbranch_scc1 L_notag
 v_mov_b32 v4, {sTAG}
 v_mov_b32 v9, {TAGSLOT}
 s_mov_b64 exec, 1
 buffer_store_dword v4, v9, {srd('WS')}, 0 offen sc1
 s_mov_b64 exec, -1
L_notag:
""")
    P.nvm -= 1
    P.mark("HNST")
    d = min(nd, NR); rd = 0
    for m in range(d):
        for x in wd_read(m): P(x)
    rd = d
    while d < nd:
        for x in wd_dma(d): P(x)
        d += 1
    P(f" v_add_u32 v{vHC1}, 4096, v{vHC}\n v_mov_b32 v9, 0")
    P.st("g1go")
    P(f" s_cmp_ge_u32 {sJL}, 7\n s_cbranch_scc1 L_idle")
    save = (P.nvm, P.nds, P.vmdone, P.dsdone, dict(P.marks), dict(P.dmarks))
    gemm1(P, cfg, wd_stream(d, rd))
    P(" s_waitcnt lgkmcnt(0)\nL_join:")
    hres = gemm2(P, cfg)
    final(P, hres)
    if stamps:
        P(" s_waitcnt vmcnt(0)"); P.st("end")
        P(f" v_writelane_b32 v11, {sSPIN}, 63\n s_lshl_b32 s3, s2, 10\n s_add_u32 s3, s3, {STAMPS}\n v_lshlrev_b32 v1, 2, v0\n buffer_store_dword v11, v1, {srd('WS')}, s3 offen")
    P("L_end:\n s_endpgm")
    P.nvm, P.nds, P.vmdone, P.dsdone, P.marks, P.dmarks = save
    P("L_idle:")
    P.vmwait("HNST"); P(FLAGST)
    for x in wd_stream(d, rd): P(x)
    for nm in ("drain","hint","hn0","p0","p1"): P.st(nm)
    P(hint_load("h0")); P.mark("pidle")
    for x in hint_check(P, "h0", "pidle", 8): P(x)
    for i in range(cfg["b0_n"]):
        for x in hh_loads(0, i): P(x)
    P(" s_waitcnt vmcnt(0) lgkmcnt(0)")
    P.st("epi")
    P(" s_branch L_join")
    for l in P.tail: P(l)
    P("L_codeend:")
    if os.environ.get("STAMP") == "2": P.lines = [l.replace("s_memrealtime", "s_memtime") for l in P.lines]
    body = P.fix()
    head = open("sequential_preLN__ssm_conv_h3__glu_gated_glu__prompt.s.ref").read().split("; Override launch")[0]
    out = head + f"; @launch grid=(256,1,1) block=(256,1,1) lds={LDS_BYTES}\n"
    out += f'.amdgcn_target "amdgcn-amd-amdhsa--gfx950"\n.text\n.globl {NAME}\n.p2align 8\n.type {NAME},@function\n{NAME}:\n' + body
    out += f""" s_endpgm
.section .rodata,"a"
.p2align 6
.amdhsa_kernel {NAME}
  .amdhsa_next_free_vgpr 512
  .amdhsa_next_free_sgpr 102
  .amdhsa_accum_offset 256
  .amdhsa_group_segment_fixed_size 0
  .amdhsa_kernarg_size 104
  .amdhsa_user_sgpr_count 2
  .amdhsa_user_sgpr_kernarg_segment_ptr 1
  .amdhsa_system_sgpr_workgroup_id_x 1
.end_amdhsa_kernel
"""
    return out, P
CFG = dict(mt=1, wdt=0, wd_rate=(2.0,0.5), w0=0, w1_m=3, w1=0, w1_every=12, w2=24, w2_every=2, w3_every=4, wd_pre=7, fnt="nt",
           hh_at={}, h0_at=2, b0_n=3, h1_at=4, b1_at={0:[(0,3)], 1:[(0,4)], 2:[(0,5)], 3:[(0,6)], 4:[(1,0)], 5:[(1,1)], 6:[(1,2)], 7:[(1,3)], 8:[(1,4)], 9:[(1,5)], 10:[(1,6)]}, sleep=1)
if __name__ == "__main__":
    cfg = dict(CFG)
    for a in sys.argv[2:]:
        k, v = a.split("=", 1); cfg[k] = eval(v)
    out, P = build(cfg, bool(os.environ.get("STAMP")))
    open(sys.argv[1], "w").write(out)
    if os.environ.get("STAMP"): open(sys.argv[1] + ".names", "w").write(" ".join(P.stn))
    print("lines", len(P.lines), "nops", P.nops)
```

```python
import sys, os, re
sys.path.insert(0, "gen")
from asmlib import Prog

NAME = "sequential_preLN__ssm_conv_h3__glu_gated_glu__prompt_kernel"
TAGSLOT = 0
KVBOX = 0x100000
YBOX  = 0x500000
HN    = 0x900000
HRES  = 0xB00000
HH    = 0xD00000
GS = 4480
HC    = 0x080000
FL    = 0x0C0000
HI    = 0x040000
STAMPS = 0x1500000
WS_BYTES = 0x1580000
SRD = dict(X=8, K=12, V=16, SHK=20, SSMK=24, SSMD=28, WG=32, WU=36, WD=40, OUT=44, WS=48)
KOFF = dict(X=0, K=8, V=16, SHK=24, SSMK=32, SSMD=40, WG=56, WU=64, WD=72, OUT=80, WS=96)
SIZE = dict(X=2097152, K=2097152, V=2097152, SHK=4096, SSMK=2097152, SSMD=1024, WG=1835008, WU=1835008, WD=1835008, OUT=2097152, WS=WS_BYTES)
def srd(n): return f"s[{SRD[n]}:{SRD[n]+3}]"
sHNst, sWL, sWR, sRING = "s52", "s53", "s54", "s55"
sW, sG, sJ, sTAG, sLO, sHI, sMASK = "s56", "s59", "s60", "s61", "s62", "s63", "s64"
sJL, sO0, sO1, sHS0, sHS1, sSB, sE, sSPIN, sL3 = "s67", "s68", "s69", "s70", "s71", "s72", "s74", "s75", "s79"
sP = sC = "s2"
sWD = 80
sHL = 8
sHC = 87
sHN = 22
def vr(b, n): return f"v[{b}:{b+n-1}]" if n > 1 else f"v{b}"
def ar(b, n): return f"a[{b}:{b+n-1}]" if n > 1 else f"a{b}"
def L(text): return [l for l in text.split("\n") if l.strip()]

WGB, WUB = 0, 65536
PART = 131072; FC = 96256; CS2 = 4352
KVR = 131072; KVCH = 4608
RING = 131072; NR = 7
STAT = 163840 - 512
RED = 0; BS = 1088; REDW = 16*BS
LDS_BYTES = 163840
SPIN = 20000

class G(Prog):
    def __init__(self, stamps=False):
        super().__init__(); self.nvm = 0; self.nds = 0; self.vmdone = 0; self.dsdone = 0; self.marks = {}; self.dmarks = {}; self.stamps = stamps; self.tail = []; self.only = None; self.stn = ["start"]
    def __call__(self, text):
        for l in text.split("\n"):
            s = l.strip()
            if not s: continue
            if s.startswith("WAIT:"): self.vmwait(s[5:]); continue
            if s.startswith("MARK:"): self.mark(s[5:]); continue
            if s.startswith("DWAIT:"): self.dwait(s[6:]); continue
            if s.startswith("DMARK:"): self.dmarks[s[6:]] = self.nds; continue
            if s == "SKIP": continue
            if s.startswith(("buffer_", "global_")): self.nvm += 1
            if s.startswith("ds_"): self.nds += 1
            if s.startswith("s_waitcnt"):
                m = re.search(r"vmcnt\((\d+)\)", s)
                if m: self.vmdone = max(self.vmdone, self.nvm - int(m.group(1)))
                m = re.search(r"lgkmcnt\((\d+)\)", s)
                if m: self.dsdone = max(self.dsdone, self.nds - int(m.group(1)))
            self.lines.append(l.rstrip())
    def mark(self, name): self.marks[name] = self.nvm
    def vmwait(self, name):
        if self.vmdone < self.marks[name]: self(f" s_waitcnt vmcnt({min(self.nvm - self.marks[name], 63)})")
    def dwait(self, name):
        if self.dsdone < self.dmarks[name]: self(f" s_waitcnt lgkmcnt({min(self.nds - self.dmarks[name], 15)})")
    def cost(self, s):
        t = s.strip()
        if t.startswith(("MARK:", "DMARK:")): return 0
        if t.startswith("WAIT:"): return 0 if self.vmdone >= self.marks[t[5:]] else 1
        if t.startswith("DWAIT:"): return 0 if self.dsdone >= self.dmarks[t[6:]] else 1
        if t == "SKIP": return 3
        if t.startswith(("v_exp", "v_rcp")): return 2
        return 1
    def st(self, i):
        if self.stamps and (self.only is None or i in self.only):
            if i not in self.stn: self.stn.append(i)
            self.lines += [" s_memrealtime s[98:99]", " s_waitcnt lgkmcnt(0)", f" v_writelane_b32 v11, s98, {self.stn.index(i)}"]

vK, vW, vV, vKS, vT = 144, 164, 180, 188, 204
vQ, vX, vD = 224, 240, 248
vR, vST, vDUM = 252, 220, 221
vZ = 208
vA, vAx, vB, vIN, aC = 16, 144, 144, 144, 224
vBB = [8, 10, 222, 223]
vq, vu1 = 144, 160
vHN = 16

def entry(P, cfg):
    P(" s_cmp_ge_u32 s2, 256\n s_cbranch_scc1 L_end")
    if P.stamps: P(" s_memrealtime s[96:97]")
    P(f"""
 s_getpc_b64 s[4:5]
L_pc:
 s_bfe_u32 s3, s2, 0x30003
 s_lshl_b32 s3, s3, 12
 v_lshlrev_b32 v4, 7, v0
 v_add_u32 v5, s3, v4
 v_cmp_gt_u32 vcc, 32, v0
 s_nop 1
 v_cndmask_b32 v4, v5, v4, vcc
 v_min_u32 v4, L_codeend-L_pc-4, v4
 v_cmp_gt_u32 vcc, 64, v0
 s_and_saveexec_b64 s[6:7], vcc
 s_cbranch_execz L_nopf
 global_load_dword v{vDUM}, v4, s[4:5]
L_nopf:
 s_mov_b64 exec, s[6:7]
""")
    for n in ("K","SHK","V","WS","SSMK","X","SSMD","WD","WG","WU","OUT"):
        P(f" s_load_dwordx2 s[{SRD[n]}:{SRD[n]+1}], s[0:1], {KOFF[n]}")
    P(f"""
 v_lshrrev_b32 v4, 6, v0
 v_and_b32 v1, 3, v0
 v_readfirstlane_b32 {sW}, v4
 v_lshrrev_b32 v2, 2, v0
 s_lshl_b32 s3, {sP}, 13
 v_lshlrev_b32 v3, 11, v1
 v_lshl_add_u32 v3, v2, 4, v3
 v_add_u32 v3, s3, v3
 v_subrev_u32 v4, 3072, v3
 v_subrev_u32 v5, 2048, v3
 v_subrev_u32 v8, 1024, v3
 v_lshlrev_b32 v9, 4, v0
 v_and_b32 v6, 63, v0
 v_lshlrev_b32 v6, 4, v6
""")
    for n in ("K","SHK","V","SSMK"): P(f" s_mov_b32 s{SRD[n]+2}, {SIZE[n]}\n s_mov_b32 s{SRD[n]+3}, 0x20000")
    P(f"""
 s_lshl_b32 s6, s2, 1
 s_lshr_b32 s7, {sW}, 1
 s_add_u32 s6, s6, s7
 s_lshl_b32 s6, s6, 12
 s_mul_i32 s7, {sW}, {2*CS2}
 s_add_u32 s7, s7, {FC}
 s_bitcmp1_b32 {sW}, 0
 s_cselect_b32 s3, 160, 0
 s_cselect_b32 s4, 32, 128
 s_cselect_b32 s5, 8, 0
 s_add_u32 s3, s3, s7
 s_add_u32 s4, s4, s7
 s_add_u32 s4, s4, {CS2}
 v_mov_b32 v12, 0
 v_and_b32 v14, 7, v0
 v_lshl_add_u32 v13, v14, 2, s3
 v_lshl_add_u32 v14, v14, 2, s4
 ds_write_b32 v13, v12
 ds_write_b32 v14, v12
 s_sub_u32 s3, s3, s5
 s_sub_u32 s4, s4, s5
 s_add_u32 m0, s3, 32
""")
    if P.stamps: P(" v_mov_b32 v11, 0\n s_waitcnt lgkmcnt(0)\n v_writelane_b32 v11, s96, 0"); P.st("karg")
    P(f"""
 s_waitcnt lgkmcnt(0)
 buffer_load_dwordx4 {vr(vK,4)}, v4, {srd('K')}, 0 offen nt
 buffer_load_dwordx4 {vr(vK+4,4)}, v5, {srd('K')}, 0 offen nt
 buffer_load_dwordx4 {vr(vK+8,4)}, v8, {srd('K')}, 0 offen nt
 buffer_load_dwordx4 {vr(vK+12,4)}, v3, {srd('K')}, 0 offen nt
 buffer_load_dwordx4 {vr(vK+16,4)}, v3, {srd('K')}, 0 offen offset:1024 nt
 buffer_load_dwordx4 {vr(vV,4)}, v3, {srd('V')}, 0 offen nt
 buffer_load_dwordx4 {vr(vV+4,4)}, v3, {srd('V')}, 0 offen offset:1024 nt
""")
    P(f" buffer_load_dwordx4 {vr(vW,4)}, v9, {srd('SHK')}, 0 offen")
    P.mark("L1")
    P(f" s_load_dword {sTAG}, s[{SRD['WS']}:{SRD['WS']+1}], {TAGSLOT}")
    nt = cfg.get("fnt", "")
    for i in range(4): P(f" buffer_load_dwordx4 v6, {srd('SSMK')}, s6 offen offset:{1024*i} {nt} lds")
    P(f" s_add_u32 m0, s4, 28")
    for i in range(4): P(f" buffer_load_dwordx4 v6, {srd('SSMK')}, s6 offen offset:{1024*i} {nt} lds")
    P.mark("A")
    for n in ("WS","X","SSMD","WD","WG","WU","OUT"): P(f" s_mov_b32 s{SRD[n]+2}, {SIZE[n]}\n s_mov_b32 s{SRD[n]+3}, 0x20000")
    P(f"""
 s_bfe_u32 {sL3}, s2, 0x20003
 s_lshr_b32 {sJL}, s2, 5
 s_and_b32 s3, s2, 1
 s_lshl_b32 s3, s3, 2
 s_add_u32 {sG}, s3, {sL3}
 s_bfe_u32 s3, s2, 0x20001
 s_mul_i32 s3, s3, 7
 s_add_u32 {sJ}, s3, {sJL}
 s_and_b32 s3, s2, 7
 s_lshl_b32 s3, s3, 2
 s_add_u32 {sSB}, s3, {sL3}
 s_lshl_b32 {sE}, {sJL}, 7
 s_mov_b32 {sLO}, 0x05040100
 s_mov_b32 {sHI}, 0x07060302
 s_mov_b32 {sMASK}, 0xffff0000
""")
def x_loads():
    return [f" buffer_load_dwordx4 {vr(vX,4)}, v3, {srd('X')}, 0 offen nt",
            f" buffer_load_dwordx4 {vr(vX+4,4)}, v3, {srd('X')}, 0 offen offset:1024 nt",
            f" v_lshlrev_b32 v4, 4, v2\n buffer_load_dwordx4 {vr(vD,4)}, v4, {srd('SSMD')}, 0 offen"]
def a_reads():
    o = L(f"""
 v_and_b32 v4, 15, v0
 v_add_u32 v4, 1, v4
 v_bfe_u32 v7, v4, 1, 2
 v_lshlrev_b32 v12, 3, v7
 s_mov_b32 s3, 0x020A0800
 v_bfe_u32 v12, s3, v12, 8
 v_mul_u32_u24 v7, {CS2}, v7
 v_lshrrev_b32 v4, 3, v4
 v_add_u32 v4, v4, v12
 v_lshl_add_u32 v7, v4, 4, v7
 v_bfe_u32 v4, v0, 4, 3
 v_lshl_add_u32 v7, v4, 6, v7
 s_lshr_b32 s3, {sW}, 1
 s_mul_i32 s3, s3, {4*CS2}
 s_add_u32 s3, s3, {FC}
 v_add_u32 v7, s3, v7
 v_and_b32 v12, 1, v0
 v_mul_u32_u24 v12, 0x020202, v12
 v_lshl_or_b32 v12, v12, 8, v12
 v_sub_u32 v12, 0x05040302, v12""")
    return o
def a_prep():
    def rd(a): return [f" ds_read_b128 {vr(vA+16*a+4*bb,4)}, v7 offset:{512*a+16*bb}" for bb in range(4)] + [f" ds_read_b32 v{vAx+a}, v7 offset:{512*a+64}", f"DMARK:a{a}"]
    o = rd(0) + rd(1)
    for a in range(8):
        if a+2 < 8: o += rd(a+2)
        o.append(f"DWAIT:a{a}")
        for i in range(16):
            nxt = vA+16*a+i+1 if i < 15 else vAx+a
            o.append(f" v_perm_b32 v{vA+16*a+i}, v{nxt}, v{vA+16*a+i}, v12")
    return o

def p0_pre(P):
    P(f"""
 v_lshlrev_b32 v{vST}, 16, v2
 v_lshl_add_u32 v{vST}, v1, 4, v{vST}
 s_lshl_b32 s4, {sP}, 6
 s_add_u32 s4, s4, {KVBOX}
 s_add_u32 s5, s4, 16384
 s_add_u32 s6, s4, 32768
 s_add_u32 s7, s4, 49152
 s_mov_b32 {sSPIN}, {SPIN}
 s_waitcnt lgkmcnt(0)
 s_add_u32 {sTAG}, {sTAG}, 0x9E3779B1
""")
    for t in range(4): P(f" v_mov_b32 v{vQ+4*t+1}, {sTAG}\n v_mov_b32 v{vQ+4*t+3}, {sTAG}")
    for i in range(16): P(f" v_mov_b32 v{vKS+i}, 0")
def p0_kv(P):
    Krow = lambda i, d: vK + 4*i + d
    prs = [(3,2),(1,0),(4,3),(2,1)]
    for t in range(4):
        T = vT + 8*(t & 1)
        for c in range(2):
            for n,(x,y) in enumerate(prs):
                P(f" v_perm_b32 v{T+4*c+n}, v{Krow(y,t)}, v{Krow(x,t)}, {sHI if c else sLO}")
        ks = vKS + 4*t
        qp = f"quad_perm:[{t},{t},{t},{t}] row_mask:0xf bank_mask:0xf"
        for hi in (1, 0):
            for c in range(2):
                P(f" v_dot2c_f32_bf16_dpp v{ks+c}, v{vW+2*c+hi}, v{T+4*c+hi} {qp}")
                P(f" v_dot2c_f32_bf16_dpp v{ks+2+c}, v{vW+2*c+hi}, v{T+4*c+2+hi} {qp}")
        P(f""" v_lshlrev_b32 v{T}, 16, v{vV+t}
 v_and_b32 v{T+1}, {sMASK}, v{vV+t}
 v_lshlrev_b32 v{T+2}, 16, v{vV+4+t}
 v_and_b32 v{T+3}, {sMASK}, v{vV+4+t}
 v_pk_mul_f32 {vr(ks,2)}, {vr(ks,2)}, {vr(T,2)}
 v_pk_mul_f32 {vr(ks+2,2)}, {vr(ks+2,2)}, {vr(T+2,2)}
 v_cvt_pk_bf16_f32 v{vQ+4*t}, v{ks}, v{ks+1}
 v_cvt_pk_bf16_f32 v{vQ+4*t+2}, v{ks+2}, v{ks+3}
 buffer_store_dwordx4 {vr(vQ+4*t,4)}, v{vST}, {srd('WS')}, s{4+t} offen sc1""")

def row_stats(src, tmp, lds_off, out_m, out_r):
    o = []
    S0, Q0, S1, Q1 = tmp, tmp+1, tmp+2, tmp+3
    a = tmp+8
    for r in range(2):
        b = src+8*r
        o.append(f" v_pk_add_f32 {vr(a+4*r,2)}, {vr(b,2)}, {vr(b+2,2)}")
        o.append(f" v_pk_mul_f32 {vr(a+4*r+2,2)}, {vr(b,2)}, {vr(b,2)}")
    for i in range(1, 4):
        for r in range(2):
            b = src+8*r+2*i
            if i >= 2: o.append(f" v_pk_add_f32 {vr(a+4*r,2)}, {vr(a+4*r,2)}, {vr(b,2)}")
            o.append(f" v_pk_fma_f32 {vr(a+4*r+2,2)}, {vr(b,2)}, {vr(b,2)}, {vr(a+4*r+2,2)}")
    for k in range(4): o.append(f" v_add_f32 v{tmp+k}, v{a+2*k}, v{a+2*k+1}")
    o += f"""
 v_bfe_u32 v{tmp+4}, v0, 4, 2
 v_lshl_add_u32 v{tmp+4}, v1, 2, v{tmp+4}
 v_permlane32_swap_b32 v{S0}, v{Q0}
 v_permlane32_swap_b32 v{S1}, v{Q1}
 v_lshlrev_b32 v{tmp+4}, 4, v{tmp+4}
 v_add_f32 v{S0}, v{S0}, v{Q0}
 v_add_f32 v{S1}, v{S1}, v{Q1}
 s_lshl_b32 s3, {sW}, 2
 s_add_u32 s3, s3, {lds_off}
 v_permlane16_swap_b32 v{S0}, v{S1}
 v_add_u32 v{tmp+4}, s3, v{tmp+4}
 v_add_f32 v{S0}, v{S0}, v{S1}
 v_lshlrev_b32 v{tmp+5}, 6, v1
 v_add_u32 v{tmp+5}, {lds_off}, v{tmp+5}
 v_add_f32_dpp v{S0}, v{S0}, v{S0} row_ror:4 row_mask:0xf bank_mask:0xf
 v_add_f32_dpp v{S0}, v{S0}, v{S0} row_ror:8 row_mask:0xf bank_mask:0xf
 ds_write_b32 v{tmp+4}, v{S0}
 s_waitcnt lgkmcnt(0)
 s_barrier
 ds_read_b128 {vr(tmp+8,4)}, v{tmp+5}
 ds_read_b128 {vr(tmp+12,4)}, v{tmp+5} offset:16
 ds_read_b128 {vr(tmp+16,4)}, v{tmp+5} offset:32
 ds_read_b128 {vr(tmp+20,4)}, v{tmp+5} offset:48
 s_mov_b32 s4, 0x3b000000
 s_mov_b32 s5, 0x3b000000
 s_waitcnt lgkmcnt(0)""".strip("\n").split("\n")
    for k in range(4):
        b = tmp+8+4*k
        o.append(f" v_pk_add_f32 {vr(b,2)}, {vr(b,2)}, {vr(b+2,2)}")
    for k in range(4):
        b = tmp+8+4*k
        o.append(f" v_add_f32 v{tmp+k}, v{b}, v{b+1}")
    o += f"""
 v_pk_mul_f32 {vr(tmp,2)}, {vr(tmp,2)}, s[4:5]
 v_pk_mul_f32 {vr(tmp+2,2)}, {vr(tmp+2,2)}, s[4:5]
 v_pk_fma_f32 {vr(tmp+2,2)}, {vr(tmp,2)}, {vr(tmp,2)}, {vr(tmp+2,2)} neg_lo:[1,0,0] neg_hi:[1,0,0]
 v_cvt_pk_bf16_f32 v{tmp+4}, v{tmp}, v{tmp+1}
 v_max_f32 v{tmp+2}, 0, v{tmp+2}
 v_max_f32 v{tmp+3}, 0, v{tmp+3}
 v_cvt_pk_bf16_f32 v{tmp+5}, v{tmp+2}, v{tmp+3}
 v_lshlrev_b32 v{out_m}, 16, v{tmp+4}
 v_and_b32 v{out_m+1}, {sMASK}, v{tmp+4}
 v_lshlrev_b32 v{tmp+2}, 16, v{tmp+5}
 v_and_b32 v{tmp+3}, {sMASK}, v{tmp+5}
 v_add_f32 v{tmp+2}, 0x3727c5ac, v{tmp+2}
 v_add_f32 v{tmp+3}, 0x3727c5ac, v{tmp+3}
 v_cvt_pk_bf16_f32 v{tmp+5}, v{tmp+2}, v{tmp+3}
 v_lshlrev_b32 v{tmp+2}, 16, v{tmp+5}
 v_and_b32 v{tmp+3}, {sMASK}, v{tmp+5}
 v_sqrt_f32 v{tmp+2}, v{tmp+2}
 v_sqrt_f32 v{tmp+3}, v{tmp+3}
 v_cvt_pk_bf16_f32 v{tmp+5}, v{tmp+2}, v{tmp+3}
 v_lshlrev_b32 v{tmp+2}, 16, v{tmp+5}
 v_and_b32 v{tmp+3}, {sMASK}, v{tmp+5}
 v_rcp_f32 v{out_r}, v{tmp+2}
 v_rcp_f32 v{out_r+1}, v{tmp+3}""".strip("\n").split("\n")
    return o
def normalize(dst, src, m, r):
    o = []
    for row in range(2):
        sel = f"op_sel:[0,{row}] op_sel_hi:[1,{row}]"
        for i in range(4):
            o.append(f" v_pk_add_f32 {vr(dst+8*row+2*i,2)}, {vr(src+8*row+2*i,2)}, {vr(m,2)} {sel} neg_lo:[0,1] neg_hi:[0,1]")
    for row in range(2):
        sel = f"op_sel:[0,{row}] op_sel_hi:[1,{row}]"
        for i in range(4):
            o.append(f" v_pk_mul_f32 {vr(dst+8*row+2*i,2)}, {vr(dst+8*row+2*i,2)}, {vr(r,2)} {sel}")
    return o
def tagcheck(P, base, ok_label, retry_label):
    P(f" v_xor_b32 v4, {sTAG}, v{base+1}")
    for i in range(1, 8): P(f" v_bitop3_b32 v4, v4, v{base+2*i+1}, {sTAG} bitop3:0xf6")
    P(f"""
 v_cmp_ne_u32 vcc, 0, v4
 s_cbranch_vccz {ok_label}
 s_sub_u32 {sSPIN}, {sSPIN}, 1
 s_cbranch_scc0 {retry_label}
 s_mov_b32 {sSPIN}, 0
{ok_label}:
""")


def ln1():
    tmp = 176; dd = 200; kd = 204
    o = []
    for i in range(8): o += [f" v_lshlrev_b32 v{vu1+2*i}, 16, v{vX+i}", f" v_and_b32 v{vu1+2*i+1}, {sMASK}, v{vX+i}"]
    for r in range(2):
        for t in range(4):
            s = vQ+4*t+2*r
            o += [f" v_lshlrev_b32 v{kd+8*r+2*t}, 16, v{s}", f" v_and_b32 v{kd+8*r+2*t+1}, {sMASK}, v{s}"]
    for i in range(4): o += [f" v_lshlrev_b32 v{vX+2*i}, 16, v{vD+i}", f" v_and_b32 v{vX+2*i+1}, {sMASK}, v{vD+i}"]
    for r in range(2):
        for t in range(4): o.append(f" v_pk_mul_f32 {vr(kd+8*r+2*t,2)}, {vr(kd+8*r+2*t,2)}, {vr(vX+2*t,2)}")
    o += row_stats(vu1, tmp, STAT, dd, dd+2)
    o += normalize(vq, vu1, dd, dd+2)
    for i in range(8): o.append(f" v_pk_fma_f32 {vr(vu1+2*i,2)}, {vr(vq+2*i,2)}, {vr(kd+2*i,2)}, {vr(vu1+2*i,2)}")
    return o

vWD = 254; vWr = (8, 255)
def bulk_consts(P):
    t = vT
    P(f"""
 v_bfe_u32 v{t+1}, v0, 3, 3
 v_and_b32 v{t+3}, 7, v0
 v_mul_u32_u24 v{t+2}, 3584, v{t+1}
 v_and_b32 v{t+4}, 2, v{t+1}
 v_xor_b32 v{t+5}, v{t+3}, v{t+4}
 s_lshl_b32 s3, {sJ}, 7
 v_add_u32 v{t+2}, s3, v{t+2}
 v_lshl_add_u32 v{vR}, v{t+5}, 4, v{t+2}
 v_xor_b32 v{t+5}, 4, v{t+5}
 v_lshl_add_u32 v{vR+1}, v{t+5}, 4, v{t+2}
 v_lshlrev_b32 v{t+4}, 1, v{t+4}
 v_xor_b32 v{t+3}, v{t+3}, v{t+4}
 v_lshlrev_b32 v{t+1}, 10, v{t+1}
 v_lshl_add_u32 v{vWD}, v{t+3}, 4, v{t+1}
 s_lshl_b32 {sWR}, {sJL}, 3
 s_add_u32 {sWR}, {sWR}, {sW}
 s_lshl_b32 {sWL}, {sW}, 10
 s_mul_i32 {sRING}, {sW}, {NR*1024}
 s_add_u32 {sRING}, {sRING}, {RING}
 s_cmp_ge_u32 {sJL}, 7
 s_cselect_b32 s{SRD['WG']+2}, 0, s{SRD['WG']+2}
 s_cselect_b32 s{SRD['WU']+2}, 0, s{SRD['WU']+2}
 s_lshl_b32 s3, {sL3}, 1
 s_add_u32 s3, s3, {sJL}
 s_mul_i32 s100, {sW}, {448*1024}
 s_add_u32 s100, s100, {sE}
""")
    for i in range(7):
        P(f""" s_cmp_ge_u32 s3, 7
 s_cselect_b32 s101, 7, 0
 s_sub_u32 s3, s3, s101
 s_lshl_b32 s101, s3, 16
 s_add_u32 s{sWD+i}, s101, s100
 s_add_u32 s3, s3, 1""")
sWT = 12
def w_table(P):
    P(f" s_lshl_b32 s101, {sL3}, 4\n s_add_u32 s100, s101, {sWR}\n s_lshl_b32 s101, s101, 10\n s_add_u32 s95, s101, {sWL}")
    for idx in range(16):
        P(f" s_add_u32 s3, s100, {4*idx}\n s_and_b32 s3, s3, 63\n s_mul_i32 s{sWT+idx}, s3, {8*3584}")
def w_pair(idx):
    return [f" s_add_u32 s101, s95, {idx*4096}\n s_and_b32 m0, s101, 0xffff", f" buffer_load_dwordx4 v{vR}, {srd('WG')}, s{sWT+idx} offen lds",
            f" s_add_u32 m0, m0, 65536", f" buffer_load_dwordx4 v{vR+1}, {srd('WU')}, s{sWT+idx} offen lds"]
def mall_touch(P):
    P(f"""
 v_lshlrev_b32 v4, 3, v6
 v_min_u32 v4, {55*128}, v4
 s_mul_i32 s3, s2, 7168
 s_cmp_eq_u32 {sW}, 1
 s_cbranch_scc1 L_mt1
 s_cmp_eq_u32 {sW}, 2
 s_cbranch_scc1 L_mt2
 s_cmp_eq_u32 {sW}, 3
 s_cbranch_scc1 L_mt4
 buffer_load_dword v{vDUM}, v4, {srd('WG')}, s3 offen
 s_branch L_mt3
L_mt1:
 buffer_load_dword v{vDUM}, v4, {srd('WU')}, s3 offen
 s_branch L_mt3
L_mt4:
 v_lshlrev_b32 v4, 3, v6
 s_lshl_b32 s3, s2, 13
 buffer_load_dword v{vDUM}, v4, {srd('X')}, s3 offen nt
 s_branch L_mt3
L_mt2:
 buffer_load_dword v{vDUM}, v4, {srd('WD')}, s3 offen
L_mt3:
""")
    P.nvm -= 3
def wd_touch():
    return [f""" s_mul_i32 s78, {sW}, 448
 s_mul_i32 s101, {sL3}, 112
 s_add_u32 s78, s78, s101
 s_lshl_b32 s78, s78, 10
 s_add_u32 s78, s78, {sE}
 v_lshlrev_b32 v4, 6, v6
 buffer_load_dword v{vDUM}, v4, {srd('WD')}, s78 offen""",
 f""" s_add_u32 s78, s78, {48*1024}
 v_lshlrev_b32 v4, 6, v6
 buffer_load_dword v{vDUM}, v4, {srd('WD')}, s78 offen"""]
def wd_consts(P, t):
    P(f"""
 v_bfe_u32 v{t}, v0, 5, 1
 v_bfe_u32 v{t+1}, v0, 4, 1
 v_bfe_u32 v{t+2}, v0, 2, 2
 v_lshl_add_u32 v{t}, v{t}, 2, v{t+2}
 v_lshlrev_b32 v{t}, 7, v{t}
 v_lshl_add_u32 v{t}, v1, 3, v{t}
 v_add_u32 v{t}, {sRING}, v{t}
 v_and_b32 v{t+2}, 2, v{t+2}
 v_or_b32 v{t+2}, v{t+2}, v{t+1}
 v_lshl_add_u32 v{vWr[0]}, v{t+2}, 5, v{t}
 v_xor_b32 v{t+2}, 2, v{t+2}
 v_lshl_add_u32 v{vWr[1]}, v{t+2}, 5, v{t}
""")
def wd_dma(m):
    i, r = m // 8, m & 7
    o = [f"DWAIT:wd{m-NR}"] if m >= NR else []
    o.append(f" s_add_u32 m0, {sRING}, {(m % NR)*1024}")
    if r: o += [f" s_add_u32 s100, s{sWD+i}, {r*8192}", f" buffer_load_dwordx4 v{vWD}, {srd('WD')}, s100 offen lds"]
    else: o += [f" buffer_load_dwordx4 v{vWD}, {srd('WD')}, s{sWD+i} offen lds"]
    return o + [f"MARK:wd{m}"]
def wd_read(m):
    d = (m >> 1)*8 + 2*(m & 1)
    return [f"WAIT:wd{m}"] + [f" ds_read_b64_tr_b16 {ar(d+4*tau,2)}, v{vWr[tau]} offset:{(m % NR)*1024}" for tau in range(2)] + [f"DMARK:wd{m}"]
def wd_stream(start_dma, start_rd):
    o = []; d = start_dma
    while d < min(56, start_rd + NR - 1): o += wd_dma(d); d += 1
    for m in range(start_rd, 56):
        o += wd_read(m)
        if d < 56 and d <= m + NR - 1: o += wd_dma(d); d += 1
    return o
def interleave(P, work, bulk, every):
    n = 0
    for wk in work:
        P(wk); n += 1
        if bulk and n % every == 0: P(bulk.pop(0))
def take(l, n):
    o = l[:n]; del l[:n]; return o

def st_consts(P):
    P(f"""
 v_lshlrev_b32 v5, 9, v2
 v_lshl_add_u32 v5, v1, 4, v5
 s_lshr_b32 {sHNst}, {sP}, 2
 s_lshl_b32 {sHNst}, {sHNst}, 15
 s_and_b32 s3, {sP}, 3
 s_lshl_b32 s3, s3, 7
 s_add_u32 {sHNst}, {sHNst}, s3
 s_add_u32 {sHNst}, {sHNst}, {HN}
 s_lshl_b32 {sHS0}, {sG}, 2
 s_add_u32 {sHS0}, {sHS0}, {sW}
 s_mul_i32 {sHS0}, {sHS0}, 56
 s_add_u32 {sHS0}, {sHS0}, {sJ}
 s_mul_i32 {sHS0}, {sHS0}, {GS}
 s_add_u32 {sHS0}, {sHS0}, {HH}
 s_add_u32 {sHS1}, {sHS0}, {28*GS}
 s_mov_b32 s65, {HRES}
 s_lshl_b32 s73, {sP}, 2
 s_add_u32 s73, s73, {sW}
 s_lshl_b32 s57, s73, 6
 s_add_u32 s57, s57, {FL}
 s_lshl_b32 s73, s73, 8
 s_add_u32 s73, s73, {HC-4096}
""")

def conv_setup(P):
    P(f"""
 v_mov_b32 v12, 0
 v_and_b32 v13, 127, v0
 v_lshlrev_b32 v13, 2, v13
 v_lshrrev_b32 v14, 7, v0
 v_mul_u32_u24 v14, {KVCH}, v14
 v_add3_u32 v13, v13, v14, s3
 ds_write_b32 v13, v12
 v_and_b32 v13, 15, v0
 v_lshlrev_b32 v13, 5, v13
 v_bfe_u32 v14, v0, 4, 3
 v_lshlrev_b32 v14, 6, v14
 v_sub_u32 v14, v14, v13
 v_add_u32 v14, 480, v14
 s_lshr_b32 s3, {sW}, 1
 s_mul_i32 s3, s3, {KVCH}
 s_add_u32 s3, s3, {KVR}
""".replace(" v_add3_u32 v13, v13, v14, s3", f" s_mov_b32 s3, {KVR+4096}\n v_add3_u32 v13, v13, v14, s3"))
    for bb in range(4):
        P(f""" v_add_u32 v13, {16*bb}, v14
 v_lshrrev_b32 v15, 4, v13
 v_and_b32 v15, 16, v15
 v_xor_b32 v13, v13, v15
 v_add_u32 v{vBB[bb]}, s3, v13""")
    P(f"""
 v_lshlrev_b32 v13, 2, v0
 v_sub_u32 v13, 1020, v13
 v_lshrrev_b32 v15, 4, v13
 v_and_b32 v15, 16, v15
 v_xor_b32 v13, v13, v15
 v_add_u32 v13, {KVR}, v13
""")
def conv_setup2(P):
    for i in range(4): P(f" v_mov_b32 v{vZ+i}, -1")
def h1_recv(P):
    P(f"""
 s_lshl_b32 s4, {sC}, 14
 s_add_u32 s4, s4, {KVBOX}
 s_add_u32 s5, s4, 4096
 s_add_u32 s6, s4, 8192
 s_add_u32 s7, s4, 12288
L_h1:
""")
    for i in range(4): P(f" buffer_load_dwordx4 {vr(vIN+4*i,4)}, v9, {srd('WS')}, s{4+i} offen sc1")
    P(" s_waitcnt vmcnt(0)")
    tagcheck(P, vIN, "L_h1ok", "L_h1")
    for i in range(4):
        P(f" v_perm_b32 v{vIN+4*i+1}, v{vIN+4*i}, v{vIN+4*i+2}, {sLO}")
        P(f" v_perm_b32 v{vIN+4*i+3}, v{vIN+4*i}, v{vIN+4*i+2}, {sHI}")
        P(f" ds_write2st64_b32 v13, v{vIN+4*i+1}, v{vIN+4*i+3} offset0:{(3-i)*4} offset1:{(3-i)*4+KVCH//256}")
    P(" s_waitcnt lgkmcnt(0)\n s_barrier")
def conv_mfma(P, bulk, every, extra):
    def rd(bb): return [f" ds_read_b128 {vr(vB+32*(bb&1)+4*d,4)}, v{vBB[bb]} offset:{(7-d)*512}" for d in range(8)]
    for l in rd(0): P(l)
    n = 0
    for bb in range(4):
        pend = []
        for d in range(8):
            if d == 0 and bb == 0: P(" s_waitcnt lgkmcnt(7)")
            elif bb == 0 and d == 1: P(" s_waitcnt lgkmcnt(0)")
            elif d == 0: P(" s_waitcnt lgkmcnt(0)")
            if d == 1 and bb < 3: pend = rd(bb+1)
            if d == 2 and bb == 3: P(" s_barrier")
            for a in range(8-d):
                j = a + d
                c = "0" if (bb == 0 and d == 0) else ar(aC+4*j,4)
                P(f" v_mfma_f32_16x16x32_bf16 {ar(aC+4*j,4)}, {vr(vA+16*a+4*bb,4)}, {vr(vB+32*(bb&1)+4*d,4)}, {c}")
                n += 1
                if pend: P(pend.pop(0))
                elif bulk and n % every == 0: P(bulk.pop(0))
                elif extra: P(extra.pop(0))
    for l in extra: P(l)
def conv_epi_consts():
    return f"""
 v_bfe_u32 v13, v0, 4, 2
 v_lshlrev_b32 v14, 6, v13
 v_xor_b32 v13, v14, v6
 s_lshl_b32 s3, {sW}, 13
 s_add_u32 s3, s3, {PART}
 v_add_u32 v13, s3, v13
 v_bfe_u32 v15, v0, 1, 2
 v_bfe_u32 v14, v0, 3, 4
 v_lshlrev_b32 v12, 2, v15
 v_xor_b32 v14, v14, v12
 v_lshlrev_b32 v14, 4, v14
 v_lshl_add_u32 v14, v15, 8, v14
 v_lshrrev_b32 v15, 7, v0
 v_lshl_add_u32 v14, v15, 10, v14
 v_and_b32 v15, 1, v0
 v_lshl_add_u32 v14, v15, 3, v14
 v_add_u32 v14, {PART}, v14
 v_lshlrev_b32 v12, 14, v2
 v_lshl_add_u32 v12, v1, 4, v12
 s_and_b32 s4, {sC}, 3
 s_lshl_b32 s4, s4, 12
 s_lshr_b32 s3, {sC}, 2
 s_lshl_b32 s3, s3, 6
 s_add_u32 s4, s4, s3
 s_add_u32 s4, s4, {YBOX}
 s_add_u32 s5, s4, {1<<20}
 s_add_u32 s6, s4, {2<<20}
 s_add_u32 s7, s4, {3<<20}""".strip("\n").split("\n")
def conv_epilogue(P):
    R = 16; Qd = 48
    for j in range(8): P(f" ds_write_b128 v13, {ar(aC+4*j,4)} offset:{j*1024}")
    for i in range(4): P(f" v_mov_b32 v{Qd+4*i+1}, {sTAG}\n v_mov_b32 v{Qd+4*i+3}, {sTAG}")
    P(" s_waitcnt lgkmcnt(0)\n s_barrier")
    for i in range(4):
        for w in range(4): P(f" ds_read_b64 {vr(R+8*i+2*w,2)}, v14 offset:{i*2048+w*8192}")
        if i == 2: P(" s_waitcnt lgkmcnt(8)")
    for i in range(4):
        P(f" s_waitcnt lgkmcnt({12-4*i})")
        b = R+8*i
        P(f""" v_pk_add_f32 {vr(b,2)}, {vr(b,2)}, {vr(b+2,2)}
 v_pk_add_f32 {vr(b+4,2)}, {vr(b+4,2)}, {vr(b+6,2)}
 v_cvt_pk_bf16_f32 v{Qd+4*i}, v{b}, v{b+4}
 v_cvt_pk_bf16_f32 v{Qd+4*i+2}, v{b+1}, v{b+5}
 buffer_store_dwordx4 {vr(Qd+4*i,4)}, v12, {srd('WS')}, s{4+i} offen sc1""")

def h2a_ln2(P, post_barrier):
    vY, vh, vhp, vn, tmp, mr = 64, 80, 96, 104, 112, 136
    P(f"""
 s_lshl_b32 s4, {sP}, 14
 s_add_u32 s4, s4, {YBOX}
 s_add_u32 s5, s4, 4096
 s_add_u32 s6, s4, 8192
 s_add_u32 s7, s4, 12288
L_h2:
""")
    for i in range(4): P(f" buffer_load_dwordx4 {vr(vY+4*i,4)}, v9, {srd('WS')}, s{4+i} offen sc1")
    P(" s_waitcnt vmcnt(0)")
    tagcheck(P, vY, "L_h2ok", "L_h2")
    P.st("h2")
    for r in range(2):
        for t in range(4):
            s = vY+4*t+2*r
            P(f" v_lshlrev_b32 v{vh+8*r+2*t}, 16, v{s}\n v_and_b32 v{vh+8*r+2*t+1}, {sMASK}, v{s}")
    for i in range(8): P(f" v_pk_fma_f32 {vr(vh+2*i,2)}, {vr(vq+2*i,2)}, {vr(vh+2*i,2)}, {vr(vu1+2*i,2)}")
    for i in range(8): P(f" v_cvt_pk_bf16_f32 v{vhp+i}, v{vh+2*i}, v{vh+2*i+1}")
    for i in range(8): P(f" v_lshlrev_b32 v{vh+2*i}, 16, v{vhp+i}\n v_and_b32 v{vh+2*i+1}, {sMASK}, v{vhp+i}")
    for l in row_stats(vh, tmp, STAT+256, mr, mr+2): P(l)
    for l in normalize(vh, vh, mr, mr+2): P(l)
    for r in range(2):
        for i in range(4*r, 4*r+4): P(f" v_cvt_pk_bf16_f32 v{vn+i}, v{vh+2*i}, v{vh+2*i+1}")
        P(f" buffer_store_dwordx4 {vr(vn+4*r,4)}, v5, {srd('WS')}, {sHNst} offen offset:{64*r} sc1")
    P(f"""
 v_xad_u32 v{tmp}, v{vn}, v{vn+1}, v{vn+2}
 v_xad_u32 v{tmp+1}, v{vn+4}, v{vn+5}, v{vn+6}
 v_add_u32 v{tmp}, v{tmp}, v{vn+3}
 v_add_u32 v{tmp+1}, v{tmp+1}, v{vn+7}
 v_permlane16_swap_b32 v{tmp}, v{tmp+1}
 v_add_u32 v{tmp}, v{tmp}, v{tmp+1}
 v_add_u32_dpp v{tmp}, v{tmp}, v{tmp} row_ror:8 row_mask:0xf bank_mask:0xf
 v_add_u32 v{vHASH}, {sTAG}, v{tmp}
 buffer_store_dword v{vHASH}, v{vC}, {srd('WS')}, s73 offen sc1
 buffer_store_dword v{vHASH+1}, v{vONE}, {srd('WS')}, s95 offen sc1
 buffer_store_dwordx4 {vr(vhp,4)}, v3, {srd('WS')}, s65 offen sc1
 buffer_store_dwordx4 {vr(vhp+4,4)}, v3, {srd('WS')}, s65 offen offset:1024 sc1
""")

vRa = 12
vONE, vC, vHC, vHASH, vPN, vPH, vHC1, vPD = 220, 252, 253, 222, 221, 2, 3, 5
CHN = [208, 209, 210, 211]
CHH = {(0,i): 212+i for i in range(7)}
CHH.update({(1,0):208,(1,1):209,(1,2):210,(1,3):211,(1,4):219,(1,5):221,(1,6):212})
acc0, acc1, acc2, vE = 80, 144, 16, 240
def g_consts():
    t = 224
    o = L(f"""
 v_bfe_u32 v{t}, v0, 5, 1
 v_bfe_u32 v{t+1}, v0, 4, 1
 v_bfe_u32 v{t+2}, v0, 2, 2
 v_lshl_add_u32 v{t}, v{t}, 3, v{t+2}
 v_lshlrev_b32 v{t+4}, 7, v{t}
 v_lshl_add_u32 v{t+4}, v1, 3, v{t+4}
 v_lshl_add_u32 v{t+4}, v{t+1}, 16, v{t+4}
 v_lshrrev_b32 v{t+2}, 1, v{t+2}
 v_lshl_add_u32 v{t+2}, v{t+1}, 1, v{t+2}
 v_add_u32 v7, 32768, v6""")
    assert WGB == 0 and WUB == 65536
    for k in range(4): o += [f" v_xor_b32 v{t+3}, {k}, v{t+2}", f" v_lshl_add_u32 v{vRa+k}, v{t+3}, 5, v{t+4}"]
    o += [f" s_mul_i32 s3, {sSB}, {56*GS}", f" s_add_u32 s3, s3, {HH}"]
    for i in range(7):
        o += L(f""" s_lshr_b32 s66, s{sWD+i}, 16
 s_mul_i32 s66, s66, {GS}
 s_add_u32 s{sHL+i}, s66, s3
 s_add_u32 s{sHL+7+i}, s{sHL+i}, {28*GS}""")
    o += L(f"""
 v_lshrrev_b32 v{t}, 3, v0
 v_and_b32 v{t+1}, 24, v{t}
 v_and_b32 v{t+2}, 3, v{t}
 v_lshl_add_u32 v{t+1}, v{t+2}, 1, v{t+1}
 v_bfe_u32 v{t+2}, v{t}, 2, 1
 v_add_u32 v{t+1}, v{t+1}, v{t+2}
 v_lshlrev_b32 v{t+1}, 10, v{t+1}
 v_and_b32 v{t+2}, 7, v0
 v_lshl_add_u32 v10, v{t+2}, 4, v{t+1}
 s_lshl_b32 {sO0}, {sSB}, 16
 s_add_u32 {sO0}, {sO0}, {sE}
 s_add_u32 {sO1}, {sO0}, 32768
 s_add_u32 s76, {sO0}, {HRES}
 s_add_u32 s77, {sO1}, {HRES}
 s_lshl_b32 s3, {sG}, 2
 s_add_u32 s3, s3, {sW}
 s_lshl_b32 s58, s3, 13
 s_add_u32 s58, s58, {HC}
 s_lshl_b32 s30, s3, 12
 s_add_u32 s30, s30, {HI}
 s_lshl_b32 s3, s3, 16
 s_add_u32 s3, s3, {HN}
 v_mov_b32 v{vHASH+1}, {sTAG}""")
    for g in range(8):
        o += [f" s_add_u32 s66, {sJL}, {g}", " s_and_b32 s66, s66, 7", f" s_lshl_b32 s{sHC+g}, s66, 7", f" s_add_u32 s{sHC+g}, s{sHC+g}, s58", " s_lshl_b32 s66, s66, 12", f" s_add_u32 s{sHN+g}, s66, s3"]
    o += L(f"""
 s_lshl_b32 s58, {sSB}, 3
 s_add_u32 s58, s58, {sW}
 s_lshl_b32 s58, s58, 2
 s_lshr_b32 s3, {sJL}, 1
 s_add_u32 s58, s58, s3
 s_lshl_b32 s58, s58, 6
 s_add_u32 s58, s58, {FL}""")
    return o
def g_consts2():
    return L(f"""
 v_lshrrev_b32 v{vC}, 2, v6
 v_add_u32 v{vC}, 4096, v{vC}
 v_bfe_u32 v{vHC}, v0, 3, 2
 v_lshlrev_b32 v{vHC}, 10, v{vHC}
 v_bfe_u32 v4, v0, 2, 1
 v_lshl_add_u32 v{vHC}, v4, 6, v{vHC}
 v_bfe_u32 v4, v0, 5, 1
 v_lshl_add_u32 v{vHC}, v4, 4, v{vHC}
 v_lshl_add_u32 v{vHC}, v1, 2, v{vHC}
 v_and_b32 v{vPN}, 31, v0
 v_lshlrev_b32 v{vPN}, 7, v{vPN}
 v_lshlrev_b32 v{vONE}, 21, v6
 v_add_u32 v{vONE}, 4352, v{vONE}
 s_lshl_b32 s95, {sP}, 2
 s_add_u32 s95, s95, {sW}
 s_lshl_b32 s95, s95, 7
 s_add_u32 s95, s95, {HI-4352}
 s_sub_u32 s57, s57, 4352
 v_and_b32 v4, 7, v0
 v_min_u32 v4, 6, v4
 v_mul_u32_u24 v{vPH}, {GS}, v4
 s_mul_i32 s31, {sSB}, 8
 s_add_u32 s31, s31, {sW}
 s_mul_i32 s31, s31, {7*GS}
 s_add_u32 s31, s31, {HH+4352}
 s_add_u32 s78, s31, {28*GS}""")
def hn_regs(G_): return vHN + 16*(G_ % 4)
def hn_loads(G_):
    return [f" buffer_load_dwordx4 {vr(hn_regs(G_)+4*k,4)}, {'v6' if G_ < 8 else 'v7'}, {srd('WS')}, s{sHN+(G_&7)} offen offset:{k*1024} sc1" for k in range(4)] + \
           [f" buffer_load_dword v{CHN[G_%4]}, v{vHC if G_ < 8 else vHC1}, {srd('WS')}, s{sHC+(G_&7)} offen sc1"]
def hashchain(r, chk):
    o = []
    for f in range(4):
        b = r + 4*f
        o.append(f" v_xad_u32 v4, v{b}, v{b+1}, {sTAG if f == 0 else 'v4'}")
        o.append(f" v_add3_u32 v4, v4, v{b+2}, v{b+3}")
    return o + [f" v_cmp_ne_u32 vcc, v4, v{chk}"]
def sent_check(P, o, loads, later, name, sleep=0):
    blk = [f"L_{name}_r:", f" s_sub_u32 {sSPIN}, {sSPIN}, 1", f" s_cbranch_scc1 L_{name}_x"] + ([f" s_sleep {sleep}"] if sleep else []) + loads + [" s_waitcnt vmcnt(0)"] + o + [f" s_cbranch_vccnz L_{name}_r"]
    blk += later + ([" s_waitcnt vmcnt(0)"] if later else []) + [f" s_branch L_{name}_b", f"L_{name}_x:", f" s_mov_b32 {sSPIN}, 0", f" s_branch L_{name}_b"]
    P.tail += blk
    return o + [f" s_cbranch_vccnz L_{name}_r\nL_{name}_b:"]
def hint_load(kind):
    if kind == "hn": return f" buffer_load_dword v{vPD}, v{vPN}, {srd('WS')}, s30 offen sc1"
    return f" buffer_load_dword v{vPD}, v{vPH}, {srd('WS')}, {'s31' if kind == 'h0' else 's78'} offen sc1"
def hint_check(P, kind, name, sleep):
    return [f"WAIT:{name}"] + sent_check(P, [f" v_cmp_ne_u32 vcc, {sTAG}, v{vPD}"], [hint_load(kind)], [], name, sleep)
def epi_tile(acc, ups, t):
    o = []
    for i in range(8): o.append(f" v_mul_f32 v{vE+i}, 0xbfb8aa3b, v{acc+i}")
    for i in range(8): o.append(f" v_exp_f32 v{vE+i}, v{vE+i}")
    for i in range(8): o.append(f" v_add_f32 v{vE+i}, 1.0, v{vE+i}")
    for i in range(8): o.append(f" v_rcp_f32 v{vE+i}, v{vE+i}")
    for i in range(8): o.append(f" v_mul_f32 v{vE+i}, v{vE+i}, v{acc+8+i}")
    for i in range(4): o.append(f" v_cvt_pk_bf16_f32 v{vE+8+i}, v{vE+2*i}, v{vE+2*i+1}")
    o.append(f" buffer_store_dwordx4 {vr(vE+8,4)}, v6, {srd('WS')}, {sHS1 if ups else sHS0} offen offset:{t*1024} sc1")
    o.append(f" v_xad_u32 v{vHASH}, v{vE+8}, v{vE+9}, {sTAG if t == 0 else 'v%d' % vHASH}")
    o.append(f" v_add3_u32 v{vHASH}, v{vHASH}, v{vE+10}, v{vE+11}")
    if t == 3:
        o.append(f" buffer_store_dword v{vHASH}, v{vC}, {srd('WS')}, {sHS1 if ups else sHS0} offen sc1")
        o.append(f" buffer_store_dword v{vHASH+1}, v{vONE}, {srd('WS')}, {sHS1 if ups else sHS0} offen sc1")
    return o
HREG = {(0,0):224, (0,1):80, (0,2):96, (0,3):112, (0,4):128, (0,5):48, (0,6):64,
        (1,0):144, (1,1):160, (1,2):176, (1,3):192, (1,4):224, (1,5):80, (1,6):96}
def hh_loads(u, i):
    return [f" buffer_load_dwordx4 {vr(HREG[(u,i)]+4*t,4)}, v6, {srd('WS')}, s{sHL+7*u+i} offen offset:{t*1024} sc1" for t in range(4)] + \
           [f" buffer_load_dword v{CHH[(u,i)]}, v{vC}, {srd('WS')}, s{sHL+7*u+i} offen sc1"]

FLAGST = f" buffer_store_dword v{vHASH+1}, v{vONE}, {srd('WS')}, s57 offen sc1"
def gemm1(P, cfg, wds):
    seq = [(u, k, t) for u in range(2) for k in range(32) for t in range(4)]
    D = 6; LA = 3
    def reads(n):
        u, k, t = seq[n]; d = aC + 4*(n % 8)
        return [f" ds_read_b64_tr_b16 {ar(d+2*io,2)}, v{vRa+t} offset:{k*2048+io*512}" for io in range(2)] + [f"DMARK:w{n}"]
    def hn_issue(g): return hn_loads(g) + [f"MARK:hn{g}"]
    def hn_check(g):
        later = []
        for gg in range(g+1, min(16, g+LA)): later += hn_loads(gg)
        r = hn_regs(g)
        return [f"WAIT:hn{g}"] + sent_check(P, hashchain(r, CHN[g%4]), hn_loads(g), later, f"hn{g}")
    for n in range(D):
        for l in reads(n): P(l)
    P.vmwait("HNST")
    P.st("drain")
    P(hint_load("hn")); P.mark("phn")
    for x in hint_check(P, "hn", "phn", cfg["sleep"]): P(x)
    P.st("hint")
    for g in range(LA):
        for x in hn_issue(g): P(x)
    P(FLAGST)
    for x in hn_check(0): P(x)
    P.st("hn0")
    wq_ = list(wds); fill = []; urgent = []; wacc = 0.0
    hhq = []
    for n, (u, k, t) in enumerate(seq):
        budget = 6
        g = 8*u + k//4
        if t == 0:
            if k % 4 == 0:
                while urgent: P(urgent.pop(0))
                if g + LA < 16: urgent = hn_issue(g + LA)
            if k % 4 == 3 and g + 1 < 16: urgent += hn_check(g + 1)
            if (u, k) == (1, 0):
                P.st("p0")
                rest = fill
                fill = ["SKIP"]
                for tt in range(4): fill += epi_tile(acc0+16*tt, 0, tt)
                fill += rest
            if u == 1 and k in cfg["hh_at"]:
                hhq += hh_loads(0, cfg["hh_at"][k]) + [f"MARK:hh0_{cfg['hh_at'][k]}"]
                if cfg["hh_at"][k] >= 1: assert not any("v_mul_f32" in x for x in fill[:400] if x.rstrip().endswith(f"v{acc0+16*(cfg['hh_at'][k]-1)+15}")), "epilogue not finished"
        if n % 2 == 0: P(f"DWAIT:w{n+1}")
        else: budget -= 1
        a = (acc1 if u else acc0) + 16*t
        P(f" v_mfma_f32_32x32x16_bf16 {vr(a,16)}, {ar(aC+4*(n%8),4)}, {vr(hn_regs(g)+4*(k&3),4)}, {'0' if k == 0 else vr(a,16)}")
        if n + D < len(seq):
            for l in reads(n+D): P(l)
            budget -= 2
        wbud = cfg["wd_rate"][u]
        wacc += wbud
        for q in (urgent, hhq, fill, wq_):
            while q and (budget >= P.cost(q[0]) or P.cost(q[0]) == 0):
                if q is wq_:
                    if wacc < 1 and P.cost(q[0]) > 0: break
                    wacc -= P.cost(q[0])
                x = q.pop(0); budget -= P.cost(x); P(x)
    print('left: wd', len(wq_), 'fill', len(fill))
    for q in (hhq, wq_, fill):
        while q: P(q.pop(0))
    P.st("p1")
    e1 = [epi_tile(acc1+16*tt, 1, tt) for tt in range(4)]
    hp = cfg["h0_at"]
    for tt in range(4):
        if tt == hp: P(hint_load("h0")); P.mark("ph0")
        for x in e1[tt]: P(x)
    for x in hint_check(P, "h0", "ph0", cfg["sleep"]): P(x)
    for i in range(cfg["b0_n"]):
        for x in hh_loads(0, i) + [f"MARK:hh0_{i}"]: P(x)
    P.st("epi")

def gemm2(P, cfg):
    order = [(0, i) for i in range(7)] + [(1, i) for i in range(7)]
    issue_at = cfg["b1_at"]
    issued = [(0, i) for i in range(cfg["b0_n"])]
    def chk(pos):
        u, i = order[pos]; r = HREG[(u,i)]
        later = []
        for x in order[pos+1:]:
            if x in issued and x[0] == u: later += hh_loads(*x)
        return [f"WAIT:hh{u}_{i}"] + sent_check(P, hashchain(r, CHH[(u,i)]), hh_loads(u, i), later, f"hh{u}_{i}", sleep=cfg["sleep"])
    for x in chk(0): P(x)
    hres = [f" buffer_load_dwordx4 {vr(vE,4)}, v10, {srd('WS')}, s76 offen sc1", f" buffer_load_dwordx4 {vr(vE+4,4)}, v10, {srd('WS')}, s77 offen sc1"]
    for pos, (u, i) in enumerate(order):
        fill = []
        flag = [f" buffer_load_dword v9, v1, {srd('WS')}, s58 offen sc1"]
        if pos == 0: fill += [" v_and_b32 v1, 1, v0", " v_lshlrev_b32 v1, 10, v1"] + flag + ["MARK:flag", " s_barrier"]
        if pos == 2: fill += ["WAIT:flag"] + sent_check(P, [f" v_cmp_ne_u32 vcc, {sTAG}, v9"], flag, [], "flag") + hres
        if pos == cfg["h1_at"] - 1: fill += [hint_load("h1"), "MARK:ph1"]
        if pos == cfg["h1_at"]: fill += hint_check(P, "h1", "ph1", cfg["sleep"])
        for x in issue_at.get(pos, []):
            prev = [y for y in order[:order.index(x)] if HREG[y] == HREG[x]]
            assert all(order.index(y) < pos for y in prev)
            assert x[0] == 0 or pos >= cfg["h1_at"]
            fill += hh_loads(*x) + [f"MARK:hh{x[0]}_{x[1]}"]; issued.append(x)
        late = chk(pos+1) if pos+1 < len(order) else []
        n = 0
        for t in range(4):
            for tau in range(2):
                a = acc2+32*u+16*tau
                P(f" v_mfma_f32_32x32x16_bf16 {vr(a,16)}, {ar(((i*4+t)*2+tau)*4,4)}, {vr(HREG[(u,i)]+4*t,4)}, {'0' if (i == 0 and t == 0) else vr(a,16)}")
                n += 1
                if n <= 5:
                    for x in take(fill, 4): P(x)
                else:
                    for x in take(fill, 99): P(x)
                    for x in take(late, 5): P(x)
        for x in late: P(x)
        if pos == 6: P.st("b0")
    P.st("g2")
    return hres
def final(P, hres):
    tmp = 80; hx = 144
    P(f"""
 s_mul_i32 s3, {sW}, {REDW}
 v_add_u32 v12, s3, v6
 v_and_b32 v5, 7, v0
 v_lshrrev_b32 v7, 3, v0
 v_mul_u32_u24 v5, {BS}, v5
 v_lshl_add_u32 v7, v7, 4, v5
 v_add_u32 v9, {2*REDW}, v7
""")
    for blk in range(16): P(f" ds_write_b128 v12, {vr(acc2+4*blk,4)} offset:{blk*BS}")
    P(" s_waitcnt vmcnt(0)")
    for ups in range(2):
        for i in range(4): P(f" v_lshlrev_b32 v{hx+8*ups+2*i}, 16, v{vE+4*ups+i}\n v_and_b32 v{hx+8*ups+2*i+1}, {sMASK}, v{vE+4*ups+i}")
    P(" s_waitcnt lgkmcnt(0)\n s_barrier")
    for ups in range(2):
        for w in range(4):
            for h in range(2):
                P(f" ds_read_b128 {vr(tmp+32*ups+8*w+4*h,4)}, {'v7' if w < 2 else 'v9'} offset:{ups*8*BS + h*512 + (w&1)*REDW}")
        if ups == 0: P(" s_waitcnt lgkmcnt(4)")
    for ups in range(2):
        P(f" s_waitcnt lgkmcnt({8 if ups == 0 else 0})")
        b = tmp+32*ups
        for i in range(4): P(f" v_pk_add_f32 {vr(b+2*i,2)}, {vr(b+2*i,2)}, {vr(b+8+2*i,2)}")
        for i in range(4): P(f" v_pk_add_f32 {vr(b+16+2*i,2)}, {vr(b+16+2*i,2)}, {vr(b+24+2*i,2)}")
        for i in range(4): P(f" v_pk_add_f32 {vr(b+2*i,2)}, {vr(b+2*i,2)}, {vr(hx+8*ups+2*i,2)}")
        for i in range(4): P(f" v_pk_add_f32 {vr(b+2*i,2)}, {vr(b+2*i,2)}, {vr(b+16+2*i,2)}")
        for i in range(4): P(f" v_cvt_pk_bf16_f32 v{b+16+i}, v{b+2*i}, v{b+2*i+1}")
        P(f" buffer_store_dwordx4 {vr(b+16,4)}, v10, {srd('OUT')}, {sO0 if ups == 0 else sO1} offen")

def build(cfg, stamps=False):
    P = G(stamps)
    if cfg.get("dbg"): P.only = cfg["dbg"].split(",")
    entry(P, cfg)
    if cfg["mt"] == 0: mall_touch(P)
    bulk_consts(P)
    w_table(P)
    conv_setup(P)
    for l in a_reads(): P(l)
    st_consts(P)
    p0_pre(P)
    wq = []
    for i in range(16): wq += w_pair(i)
    misc = x_loads() + (wd_touch() if cfg['wdt'] else [])
    for o in take(wq, 2*cfg["w0"]): P(o)
    P.st("pre")
    P.vmwait("L1")
    P.st("L1")
    p0_kv(P)
    P.st("kvst")
    P.vmwait("A")
    P(" s_barrier")
    P.st("bar")
    b1 = take(misc, cfg["w1_m"]) + take(wq, 2*cfg["w1"])
    interleave(P, a_prep(), b1, cfg["w1_every"])
    for o in b1: P(o)
    P.st("aprep")
    h1_recv(P)
    P.st("h1")
    b2 = misc + take(wq, 2*cfg["w2"])
    conv_mfma(P, b2, cfg["w2_every"], conv_epi_consts())
    for o in b2: P(o)
    P.mark("X")
    P.st("mfma")
    conv_epilogue(P)
    P.st("yst")
    P(" s_barrier")
    wd_consts(P, 64)
    b3 = wq
    nd = cfg["wd_pre"]
    for m in range(min(nd, NR)): b3.append("\n".join(wd_dma(m)))
    P.vmwait("X")
    interleave(P, ln1(), b3, cfg["w3_every"])
    for o in b3: P(o)
    for o in g_consts(): P(o)
    for o in g_consts2(): P(o)
    P.st("ln1")
    h2a_ln2(P, None)
    P.st("hnst")
    P(f"""
 s_or_b32 s3, s2, {sW}
 s_cmp_lg_u32 s3, 0
 s_cbranch_scc1 L_notag
 v_mov_b32 v4, {sTAG}
 v_mov_b32 v9, {TAGSLOT}
 s_mov_b64 exec, 1
 buffer_store_dword v4, v9, {srd('WS')}, 0 offen sc1
 s_mov_b64 exec, -1
L_notag:
""")
    P.nvm -= 1
    P.mark("HNST")
    d = min(nd, NR); rd = 0
    for m in range(d):
        for x in wd_read(m): P(x)
    rd = d
    while d < nd:
        for x in wd_dma(d): P(x)
        d += 1
    P(f" v_add_u32 v{vHC1}, 4096, v{vHC}\n v_mov_b32 v9, 0")
    P.st("g1go")
    P(f" s_cmp_ge_u32 {sJL}, 7\n s_cbranch_scc1 L_idle")
    save = (P.nvm, P.nds, P.vmdone, P.dsdone, dict(P.marks), dict(P.dmarks))
    gemm1(P, cfg, wd_stream(d, rd))
    P(" s_waitcnt lgkmcnt(0)\nL_join:")
    hres = gemm2(P, cfg)
    final(P, hres)
    if stamps:
        P(" s_waitcnt vmcnt(0)"); P.st("end")
        P(f" v_writelane_b32 v11, {sSPIN}, 63\n s_lshl_b32 s3, s2, 10\n s_add_u32 s3, s3, {STAMPS}\n v_lshlrev_b32 v1, 2, v0\n buffer_store_dword v11, v1, {srd('WS')}, s3 offen")
    P("L_end:\n s_endpgm")
    P.nvm, P.nds, P.vmdone, P.dsdone, P.marks, P.dmarks = save
    P("L_idle:")
    P.vmwait("HNST"); P(FLAGST)
    for x in wd_stream(d, rd): P(x)
    for nm in ("drain","hint","hn0","p0","p1"): P.st(nm)
    P(hint_load("h0")); P.mark("pidle")
    for x in hint_check(P, "h0", "pidle", 8): P(x)
    for i in range(cfg["b0_n"]):
        for x in hh_loads(0, i): P(x)
    P(" s_waitcnt vmcnt(0) lgkmcnt(0)")
    P.st("epi")
    P(" s_branch L_join")
    for l in P.tail: P(l)
    P("L_codeend:")
    if os.environ.get("STAMP") == "2": P.lines = [l.replace("s_memrealtime", "s_memtime") for l in P.lines]
    body = P.fix()
    head = open("sequential_preLN__ssm_conv_h3__glu_gated_glu__prompt.s.ref").read().split("; Override launch")[0]
    out = head + f"; @launch grid=(256,1,1) block=(256,1,1) lds={LDS_BYTES}\n"
    out += f'.amdgcn_target "amdgcn-amd-amdhsa--gfx950"\n.text\n.globl {NAME}\n.p2align 8\n.type {NAME},@function\n{NAME}:\n' + body
    out += f""" s_endpgm
.section .rodata,"a"
.p2align 6
.amdhsa_kernel {NAME}
  .amdhsa_next_free_vgpr 512
  .amdhsa_next_free_sgpr 102
  .amdhsa_accum_offset 256
  .amdhsa_group_segment_fixed_size 0
  .amdhsa_kernarg_size 104
  .amdhsa_user_sgpr_count 2
  .amdhsa_user_sgpr_kernarg_segment_ptr 1
  .amdhsa_system_sgpr_workgroup_id_x 1
.end_amdhsa_kernel
"""
    if cfg.get("probe"):
        idx = P.stn.index(cfg["probe"])
        Q = G()
        Q(f"""
 s_cmp_ge_u32 s2, 1
 s_cbranch_scc1 L_pend
 s_load_dwordx2 s[48:49], s[0:1], 96
 s_mov_b32 s50, {WS_BYTES}
 s_mov_b32 s51, 0x20000
 v_lshlrev_b32 v1, 8, v0
 v_mov_b32 v2, 0
 s_waitcnt lgkmcnt(0)
 s_mov_b32 s3, {STAMPS}
 buffer_load_dword v3, v2, s[48:51], s3 offen
 v_mov_b32 v4, 0x7fffffff
 v_mov_b32 v5, 0x80000000
 s_mov_b32 s4, 16
L_pl:
 buffer_load_dword v6, v1, s[48:51], s3 offen
 buffer_load_dword v7, v1, s[48:51], s3 offen offset:{4*idx}
 s_waitcnt vmcnt(0)
 v_sub_u32 v6, v6, v3
 v_sub_u32 v7, v7, v3
 v_min_i32 v4, v4, v6
 v_max_i32 v5, v5, v7
 s_add_u32 s3, s3, 16384
 s_sub_u32 s4, s4, 1
 s_cmp_lg_u32 s4, 0
 s_cbranch_scc1 L_pl
 s_mov_b32 s5, 0x7fffffff
 s_mov_b32 s6, 0x80000000
 s_mov_b32 s4, 0
L_pr:
 v_readlane_b32 s7, v4, s4
 v_readlane_b32 s8, v5, s4
 s_nop 1
 s_min_i32 s5, s5, s7
 s_max_i32 s6, s6, s8
 s_add_u32 s4, s4, 1
 s_cmp_lg_u32 s4, 64
 s_cbranch_scc1 L_pr
 s_sub_u32 s6, s6, s5
 s_min_u32 s6, s6, 10000
 s_mul_i32 s6, s6, {cfg.get('pmul', 10)}
 s_memrealtime s[10:11]
 s_waitcnt lgkmcnt(0)
L_ps:
 s_memrealtime s[12:13]
 s_waitcnt lgkmcnt(0)
 s_sub_u32 s7, s12, s10
 s_cmp_lt_u32 s7, s6
 s_cbranch_scc1 L_ps
L_pend:
 s_endpgm
""")
        out = out.replace(f"; @launch grid=(256,1,1) block=(256,1,1) lds={LDS_BYTES}\n", f"; @launch kernel={NAME} grid=(256,1,1) block=(256,1,1) lds={LDS_BYTES}\n; @launch kernel=probe_kernel grid=(1,1,1) block=(64,1,1) lds=0\n")
        out = out.replace('.section .rodata,"a"', '.globl probe_kernel\n.p2align 8\n.type probe_kernel,@function\nprobe_kernel:\n' + Q.fix() + '.section .rodata,"a"')
        kd = out[out.index(".p2align 6\n.amdhsa_kernel"):]
        out += kd.replace(NAME, "probe_kernel").replace("vgpr 512", "vgpr 16").replace("offset 256", "offset 16")
    return out, P
CFG = dict(mt=1, wdt=0, wd_rate=(2.0,0.5), w0=0, w1_m=3, w1=0, w1_every=12, w2=24, w2_every=2, w3_every=4, wd_pre=7, fnt="nt",
           hh_at={}, h0_at=2, b0_n=3, h1_at=4, b1_at={0:[(0,3)], 1:[(0,4)], 2:[(0,5)], 3:[(0,6)], 4:[(1,0)], 5:[(1,1)], 6:[(1,2)], 7:[(1,3)], 8:[(1,4)], 9:[(1,5)], 10:[(1,6)]}, sleep=1)
if __name__ == "__main__":
    cfg = dict(CFG)
    for a in sys.argv[2:]:
        k, v = a.split("=", 1); cfg[k] = eval(v)
    out, P = build(cfg, bool(os.environ.get("STAMP")))
    open(sys.argv[1], "w").write(out)
    if os.environ.get("STAMP"): open(sys.argv[1] + ".names", "w").write(" ".join(P.stn))
    print("lines", len(P.lines), "nops", P.nops)
```

```python
import sys, os, re
sys.path.insert(0, "gen")
from asmlib import Prog

NAME = "sequential_preLN__ssm_conv_h3__glu_gated_glu__prompt_kernel"
TAGSLOT = 0
HC    = 0x080000
FL    = 0x0C0000
HI    = 0x1580000
OB    = 16640
KVBOX = 0x100000
YBOX  = 0x520000
HN    = 0x940000
HRES  = 0xB40000
HH    = 0xD40000
GS    = 4480
STAMPS = 0x1500000
WS_BYTES = 0x1600000
SRD = dict(X=8, K=12, V=16, SHK=20, SSMK=24, SSMD=28, WG=32, WU=36, WD=40, OUT=44, WS=48)
KOFF = dict(X=0, K=8, V=16, SHK=24, SSMK=32, SSMD=40, WG=56, WU=64, WD=72, OUT=80, WS=96)
SIZE = dict(X=2097152, K=2097152, V=2097152, SHK=4096, SSMK=2097152, SSMD=1024, WG=1835008, WU=1835008, WD=1835008, OUT=2097152, WS=WS_BYTES)
def srd(n): return f"s[{SRD[n]}:{SRD[n]+3}]"
WS = srd("WS")
sHNst, sWM, sBIG, sRING, sW, sFLst, sFLld, sG, sJ, sTAG, sLO, sHI, sMASK, sHRES, sT = [f"s{i}" for i in range(52, 67)]
sJL, sO0, sO1, sHS0, sHS1, sSB, sHCst, sE, sSPIN, sHR0, sHR1, sPH1, sL3 = [f"s{i}" for i in range(67, 80)]
sWD = 80
sHC = 87
sPH0, sP, sF0 = "s95", "s96", "s97"
sC = sP
sWT = 12
sHL = 8
sHN = 22
def vr(b, n): return f"v[{b}:{b+n-1}]" if n > 1 else f"v{b}"
def ar(b, n): return f"a[{b}:{b+n-1}]" if n > 1 else f"a{b}"
def L(text): return [l for l in text.split("\n") if l.strip()]
def take(l, n):
    o = l[:n]; del l[:n]; return o

WGB, WUB = 0, 65536
PART = 131072; FC = 96256; CS2 = 4352
KVR = 131072; KVCH = 4608
RING = 131072; NR = 7
STAT = 163840 - 512
BS = 1088; REDW = 16*BS
LDS_BYTES = 163840
SPIN = 20000

class G(Prog):
    def __init__(self, stamps=False):
        super().__init__(); self.nvm = 0; self.nds = 0; self.vmdone = 0; self.dsdone = 0
        self.marks = {}; self.dmarks = {}; self.stamps = stamps; self.tail = []; self.only = None; self.stn = ["start"]
    def __call__(self, text):
        if isinstance(text, list):
            for t in text: self(t)
            return
        for l in text.split("\n"):
            s = l.strip()
            if not s: continue
            if s.startswith("WAIT:"): self.vmwait(s[5:]); continue
            if s.startswith("MARK:"): self.mark(s[5:]); continue
            if s.startswith("DWAIT:"): self.dwait(s[6:]); continue
            if s.startswith("DMARK:"): self.dmarks[s[6:]] = self.nds; continue
            if s == "SKIP": continue
            if s.startswith(("buffer_", "global_")): self.nvm += 1
            if s.startswith("ds_"): self.nds += 1
            if s.startswith("s_waitcnt"):
                m = re.search(r"vmcnt\((\d+)\)", s)
                if m: self.vmdone = max(self.vmdone, self.nvm - int(m.group(1)))
                m = re.search(r"lgkmcnt\((\d+)\)", s)
                if m: self.dsdone = max(self.dsdone, self.nds - int(m.group(1)))
            self.lines.append(l.rstrip())
    def mark(self, name): self.marks[name] = self.nvm
    def vmwait(self, name):
        if self.vmdone < self.marks[name]: self(f" s_waitcnt vmcnt({min(self.nvm - self.marks[name], 63)})")
    def dwait(self, name):
        if self.dsdone < self.dmarks[name]: self(f" s_waitcnt lgkmcnt({min(self.nds - self.dmarks[name], 15)})")
    def cost(self, s):
        t = s.strip()
        if t.startswith(("MARK:", "DMARK:")): return 0
        if t.startswith("WAIT:"): return 0 if self.vmdone >= self.marks[t[5:]] else 1
        if t.startswith("DWAIT:"): return 0 if self.dsdone >= self.dmarks[t[6:]] else 1
        if t == "SKIP": return 3
        if t.startswith(("v_exp", "v_rcp")): return 2
        return 1
    def st(self, i):
        if self.stamps and (self.only is None or i in self.only):
            if i not in self.stn: self.stn.append(i)
            self.lines += [" s_memrealtime s[98:99]", " s_waitcnt lgkmcnt(0)", f" v_writelane_b32 v11, s98, {self.stn.index(i)}"]
def interleave(P, work, bulk, every):
    n = 0
    for wk in work:
        P(wk); n += 1
        if bulk and n % every == 0: P(bulk.pop(0))

vK, vW, vV, vKS, vT = 144, 164, 180, 188, 204
vD, vQ, vX = 220, 224, 240
vBB = [8, 10, 248, 249]
vSW, vDUM, vR, vWD = 250, 251, 252, 254
vWr = (8, 255)
vA, vAx, vB, vIN, aC = 16, 144, 144, 160, 224
vq, vu1 = 208, 224
vONE, vTG, vC, vHC, vHC1, vPH, vHASH, vL2, vOUT, vPD, vHP = 7, 10, 2, 252, 253, 220, 222, 223, 9, 5, 224
vHN, vRa = 16, 12
acc0, acc1, acc2, vE = 80, 144, 16, 240
CHN = [208, 209, 210, 211]
CHH = {(0,i): 212+i for i in range(7)}
CHH.update({(1,0):208,(1,1):209,(1,2):210,(1,3):211,(1,4):219,(1,5):221,(1,6):212})
HREG = {(0,0):224, (0,1):80, (0,2):96, (0,3):112, (0,4):128, (0,5):48, (0,6):64,
        (1,0):144, (1,1):160, (1,2):176, (1,3):192, (1,4):224, (1,5):80, (1,6):96}

def srdc(names): return [x for n in names for x in (f" s_mov_b32 s{SRD[n]+2}, {SIZE[n]}", f" s_mov_b32 s{SRD[n]+3}, 0x20000")]
def entry(P, cfg):
    P(" s_cmp_ge_u32 s2, 256\n s_cbranch_scc1 L_end")
    if P.stamps: P(" s_memrealtime s[98:99]")
    for n in ("K","V","SHK","WS","SSMK","X","SSMD","WD","WG","WU","OUT"):
        P(f" s_load_dwordx2 s[{SRD[n]}:{SRD[n]+1}], s[0:1], {KOFF[n]}")
        if n == cfg["pf_after"]:
            P(f"""
 s_getpc_b64 s[4:5]
L_pc:
 s_bfe_u32 s3, s2, 0x30003
 s_lshl_b32 s3, s3, 12
 v_lshlrev_b32 v4, 7, v0
 v_add_u32 v5, s3, v4
 v_cmp_gt_u32 vcc, 32, v0
 v_cndmask_b32 v4, v5, v4, vcc
 v_min_u32 v4, L_codeend-L_pc-4, v4
 v_cmp_gt_u32 vcc, 64, v0
 s_and_saveexec_b64 s[6:7], vcc
 s_cbranch_execz L_nopf
 global_load_dword v{vDUM}, v4, s[4:5]
L_nopf:
 s_mov_b64 exec, s[6:7]
""")
    P(f"""
 s_and_b32 s3, s2, 7
 s_lshl_b32 s3, s3, 5
 s_lshr_b32 {sP}, s2, 3
 s_or_b32 {sP}, {sP}, s3
 v_lshrrev_b32 v4, 6, v0
 v_and_b32 v1, 3, v0
 v_readfirstlane_b32 {sW}, v4
 v_lshrrev_b32 v2, 2, v0
 s_lshl_b32 s3, {sP}, 13
 v_lshlrev_b32 v3, 11, v1
 v_lshl_add_u32 v3, v2, 4, v3
 v_add_u32 v3, s3, v3
 v_subrev_u32 v4, 3072, v3
 v_subrev_u32 v5, 2048, v3
 v_subrev_u32 v8, 1024, v3
 v_lshlrev_b32 v9, 4, v0
""")
    P(srdc(("K","V","SHK")))
    pre2 = L(f"""
 v_and_b32 v6, 63, v0
 v_lshlrev_b32 v6, 4, v6
 s_lshl_b32 {sF0}, {sC}, 1
 s_lshr_b32 s7, {sW}, 1
 s_add_u32 {sF0}, {sF0}, s7
 s_lshl_b32 {sF0}, {sF0}, 12
 s_mul_i32 s7, {sW}, {2*CS2}
 s_add_u32 s7, s7, {FC}
 s_bitcmp1_b32 {sW}, 0
 s_cselect_b32 s3, 160, 0
 s_cselect_b32 {sT}, 32, 128
 s_cselect_b32 s5, 8, 0
 s_add_u32 s3, s3, s7
 s_add_u32 {sT}, {sT}, s7
 s_add_u32 {sT}, {sT}, {CS2}
 v_mov_b32 v12, 0
 v_and_b32 v14, 7, v0
 v_lshl_add_u32 v13, v14, 2, s3
 v_lshl_add_u32 v14, v14, 2, {sT}
 ds_write_b32 v13, v12
 ds_write_b32 v14, v12
 s_sub_u32 s3, s3, s5
 s_sub_u32 {sT}, {sT}, s5
 s_add_u32 m0, s3, 32
 s_mul_i32 s4, {sP}, {OB}
 s_add_u32 s4, s4, {KVBOX}
 s_add_u32 s5, s4, 4096
 s_add_u32 s6, s4, 8192
 s_add_u32 s7, s4, 12288
 s_mov_b32 {sLO}, 0x05040100
 s_mov_b32 {sHI}, 0x07060302
 s_mov_b32 {sMASK}, 0xffff0000
 s_mov_b32 {sSPIN}, {SPIN}
 v_lshlrev_b32 v7, 4, v2""") + srdc(("SSMK","WS","X","SSMD","WD")) + [f" v_mov_b32 v{vKS+i}, 0" for i in range(16)]
    P(pre2)
    if P.stamps: P(" v_mov_b32 v11, 0\n s_waitcnt lgkmcnt(0)\n v_writelane_b32 v11, s98, 0"); P.st("karg")
    P(f"""
 s_waitcnt lgkmcnt(0)
 buffer_load_dwordx4 {vr(vK,4)}, v4, {srd('K')}, 0 offen nt
 buffer_load_dwordx4 {vr(vK+4,4)}, v5, {srd('K')}, 0 offen nt
 buffer_load_dwordx4 {vr(vK+8,4)}, v8, {srd('K')}, 0 offen nt
 buffer_load_dwordx4 {vr(vK+12,4)}, v3, {srd('K')}, 0 offen nt
 buffer_load_dwordx4 {vr(vK+16,4)}, v3, {srd('K')}, 0 offen offset:1024 nt
 buffer_load_dwordx4 {vr(vV,4)}, v3, {srd('V')}, 0 offen nt
 buffer_load_dwordx4 {vr(vV+4,4)}, v3, {srd('V')}, 0 offen offset:1024 nt
 buffer_load_dwordx4 {vr(vW,4)}, v9, {srd('SHK')}, 0 offen
MARK:L1
 s_load_dword {sTAG}, s[{SRD['WS']}:{SRD['WS']+1}], {TAGSLOT}
""")
def filter_dma(cfg):
    nt = cfg["fnt"]
    o = [f" buffer_load_dwordx4 v6, {srd('SSMK')}, {sF0} offen offset:{1024*i} {nt} lds" for i in range(4)]
    o.append(f" s_add_u32 m0, {sT}, 28")
    o += [f" buffer_load_dwordx4 v6, {srd('SSMK')}, {sF0} offen offset:{1024*i} {nt} lds" for i in range(4)]
    return o + ["MARK:A"]
def x_loads():
    return [f" buffer_load_dwordx4 {vr(vX,4)}, v3, {srd('X')}, 0 offen nt",
            f" buffer_load_dwordx4 {vr(vX+4,4)}, v3, {srd('X')}, 0 offen offset:1024 nt",
            f" buffer_load_dwordx4 {vr(vD,4)}, v7, {srd('SSMD')}, 0 offen", "MARK:X"]
def tag_setup():
    return [" s_waitcnt lgkmcnt(0)", f" s_add_u32 {sTAG}, {sTAG}, 0x9E3779B1"] + [f" v_mov_b32 v{vQ+2*t+1}, {sTAG}" for t in range(8)]
def p0_kv(P):
    Krow = lambda i, d: vK + 4*i + d
    prs = [(3,2),(1,0),(4,3),(2,1)]
    for t in range(4):
        T = vT + 8*(t & 1)
        for c in range(2):
            for n,(x,y) in enumerate(prs):
                P(f" v_perm_b32 v{T+4*c+n}, v{Krow(y,t)}, v{Krow(x,t)}, {sHI if c else sLO}")
        ks = vKS + 4*t
        qp = f"quad_perm:[{t},{t},{t},{t}] row_mask:0xf bank_mask:0xf"
        for hi in (1, 0):
            for c in range(2):
                P(f" v_dot2c_f32_bf16_dpp v{ks+c}, v{vW+2*c+hi}, v{T+4*c+hi} {qp}")
                P(f" v_dot2c_f32_bf16_dpp v{ks+2+c}, v{vW+2*c+hi}, v{T+4*c+2+hi} {qp}")
        P(f""" v_lshlrev_b32 v{T}, 16, v{vV+t}
 v_and_b32 v{T+1}, {sMASK}, v{vV+t}
 v_lshlrev_b32 v{T+2}, 16, v{vV+4+t}
 v_and_b32 v{T+3}, {sMASK}, v{vV+4+t}
 v_pk_mul_f32 {vr(ks,2)}, {vr(ks,2)}, {vr(T,2)}
 v_pk_mul_f32 {vr(ks+2,2)}, {vr(ks+2,2)}, {vr(T+2,2)}
 v_cvt_pk_bf16_f32 v{vQ+4*t}, v{ks}, v{ks+1}
 v_cvt_pk_bf16_f32 v{vQ+4*t+2}, v{ks+2}, v{ks+3}
 buffer_store_dwordx4 {vr(vQ+4*t,4)}, v9, {WS}, s{4+t} offen sc1""")
def wd_mall():
    return L(f""" s_lshl_b32 s100, s2, 2
 s_add_u32 s100, s100, {sW}
 s_mul_i32 s100, s100, 1792
 v_lshlrev_b32 v4, 3, v6
 v_min_u32 v4, {13*128}, v4
 buffer_load_dword v{vDUM}, v4, {srd('WD')}, s100 offen""")
def a_consts():
    return L(f"""
 v_and_b32 v4, 15, v0
 v_add_u32 v4, 1, v4
 v_bfe_u32 v15, v4, 1, 2
 v_lshlrev_b32 v12, 3, v15
 s_mov_b32 s3, 0x020A0800
 v_bfe_u32 v12, s3, v12, 8
 v_mul_u32_u24 v15, {CS2}, v15
 v_lshrrev_b32 v4, 3, v4
 v_add_u32 v4, v4, v12
 v_lshl_add_u32 v15, v4, 4, v15
 v_bfe_u32 v4, v0, 4, 3
 v_lshl_add_u32 v15, v4, 6, v15
 s_lshr_b32 s3, {sW}, 1
 s_mul_i32 s3, s3, {4*CS2}
 s_add_u32 s3, s3, {FC}
 v_add_u32 v15, s3, v15
 v_and_b32 v12, 1, v0
 v_mul_u32_u24 v12, 0x020202, v12
 v_lshl_or_b32 v12, v12, 8, v12
 v_sub_u32 v12, 0x05040302, v12""")
def a_prep():
    def rd(a): return [f" ds_read_b128 {vr(vA+16*a+4*bb,4)}, v15 offset:{512*a+16*bb}" for bb in range(4)] + [f" ds_read_b32 v{vAx+a}, v15 offset:{512*a+64}", f"DMARK:a{a}"]
    o = rd(0) + rd(1)
    for a in range(8):
        if a+2 < 8: o += rd(a+2)
        o.append(f"DWAIT:a{a}")
        for i in range(16):
            nxt = vA+16*a+i+1 if i < 15 else vAx+a
            o.append(f" v_perm_b32 v{vA+16*a+i}, v{nxt}, v{vA+16*a+i}, v12")
    return o
def roles():
    t = 168
    o = L(f"""
 s_bfe_u32 {sL3}, s2, 0x20003
 s_lshr_b32 {sJL}, s2, 5
 s_and_b32 s3, s2, 1
 s_lshl_b32 s3, s3, 2
 s_add_u32 {sG}, s3, {sL3}
 s_bfe_u32 s3, s2, 0x20001
 s_mul_i32 s3, s3, 7
 s_add_u32 {sJ}, s3, {sJL}
 s_cmp_ge_u32 {sJL}, 7
 s_cselect_b32 s{SRD['WG']+2}, 0, {SIZE['WG']}
 s_mov_b32 s{SRD['WG']+3}, 0x20000
 s_mov_b32 s{SRD['WU']+2}, s{SRD['WG']+2}
 s_mov_b32 s{SRD['WU']+3}, 0x20000
 v_bfe_u32 v{t+1}, v0, 3, 3
 v_and_b32 v{t+3}, 7, v0
 v_mul_u32_u24 v{t+2}, 3584, v{t+1}
 v_and_b32 v{t+4}, 2, v{t+1}
 v_xor_b32 v{t+5}, v{t+3}, v{t+4}
 s_lshl_b32 s3, {sJ}, 7
 v_add_u32 v{t+2}, s3, v{t+2}
 v_lshl_add_u32 v{vR}, v{t+5}, 4, v{t+2}
 v_xor_b32 v{t+5}, 4, v{t+5}
 v_lshl_add_u32 v{vR+1}, v{t+5}, 4, v{t+2}
 v_lshlrev_b32 v{t+4}, 1, v{t+4}
 v_xor_b32 v{t+3}, v{t+3}, v{t+4}
 v_lshlrev_b32 v{t+1}, 10, v{t+1}
 v_lshl_add_u32 v{vWD}, v{t+3}, 4, v{t+1}""")
    return o
def w_table():
    o = L(f""" s_lshl_b32 s100, {sL3}, 4
 s_and_b32 s3, s2, 1
 s_lshl_b32 s3, s3, 3
 s_add_u32 s100, s100, s3
 s_add_u32 s100, s100, {sW}
 s_lshl_b32 s3, {sJL}, 3
 s_sub_u32 {sWM}, s100, s3
 s_lshl_b32 {sWM}, {sWM}, 10""")
    for idx in range(16): o += [f" s_add_u32 s3, s100, {4*idx}", " s_and_b32 s3, s3, 63", f" s_mul_i32 s{sWT+idx}, s3, {8*3584}"]
    return o
def w_pair(idx, nt):
    return [f" s_add_u32 s101, {sWM}, {idx*4096}\n s_and_b32 m0, s101, 0xffff", f" buffer_load_dwordx4 v{vR}, {srd('WG')}, s{sWT+idx} offen {nt} lds",
            f" s_add_u32 m0, m0, 65536", f" buffer_load_dwordx4 v{vR+1}, {srd('WU')}, s{sWT+idx} offen {nt} lds"]
def conv_setup():
    t = 176
    o = L(f"""
 v_mov_b32 v{t}, 0
 v_and_b32 v13, 127, v0
 v_lshlrev_b32 v13, 2, v13
 v_lshrrev_b32 v14, 7, v0
 v_mul_u32_u24 v14, {KVCH}, v14
 s_mov_b32 s3, {KVR+4096}
 v_add3_u32 v13, v13, v14, s3
 ds_write_b32 v13, v{t}
 v_and_b32 v13, 15, v0
 v_lshlrev_b32 v13, 5, v13
 v_bfe_u32 v14, v0, 4, 3
 v_lshlrev_b32 v14, 6, v14
 v_sub_u32 v14, v14, v13
 v_add_u32 v14, 480, v14
 s_lshr_b32 s3, {sW}, 1
 s_mul_i32 s3, s3, {KVCH}
 s_add_u32 s3, s3, {KVR}""")
    for bb in range(4):
        o += L(f""" v_add_u32 v13, {16*bb}, v14
 v_lshrrev_b32 v{t+1}, 4, v13
 v_and_b32 v{t+1}, 16, v{t+1}
 v_xor_b32 v13, v13, v{t+1}
 v_add_u32 v{vBB[bb]}, s3, v13""")
    o += L(f"""
 v_lshlrev_b32 v13, 2, v0
 v_sub_u32 v13, 1020, v13
 v_lshrrev_b32 v{t+1}, 4, v13
 v_and_b32 v{t+1}, 16, v{t+1}
 v_xor_b32 v13, v13, v{t+1}
 v_add_u32 v13, {KVR}, v13
 v_mul_u32_u24 v14, {OB}, v2
 v_lshl_add_u32 v14, v1, 4, v14""")
    return o
def h1_addr():
    return L(f"""
 s_and_b32 s4, {sC}, 3
 s_lshl_b32 s4, s4, 12
 s_lshr_b32 s3, {sC}, 2
 s_lshl_b32 s3, s3, 6
 s_add_u32 s4, s4, s3
 s_add_u32 s4, s4, {KVBOX}
 s_add_u32 s5, s4, {64*OB}
 s_add_u32 s6, s4, {128*OB}
 s_add_u32 s7, s4, {192*OB}""")
def box_recv(P, base, name, sleep, shadow=None):
    lds = [f" buffer_load_dwordx4 {vr(base+4*i,4)}, v14, {WS}, s{4+i} offen sc1" for i in range(4)]
    P(lds)
    if shadow: P(shadow)
    P(f"L_{name}:")
    P(" s_waitcnt vmcnt(0)")
    P(f" v_xor_b32 v4, {sTAG}, v{base+1}")
    for i in range(1, 8): P(f" v_bitop3_b32 v4, v4, v{base+2*i+1}, {sTAG} bitop3:0xf6")
    P(f" v_cmp_ne_u32 vcc, 0, v4\n s_cbranch_vccnz L_{name}_r\nL_{name}_ok:\n s_mov_b64 exec, -1")
    P.tail += L(f"""L_{name}_r:
 s_mov_b64 exec, vcc
 s_sleep {sleep}""") + lds + L(f""" s_sub_u32 {sSPIN}, {sSPIN}, 1
 s_cbranch_scc0 L_{name}
 s_mov_b32 {sSPIN}, 0
 s_waitcnt vmcnt(0)
 s_branch L_{name}_ok""")
def canary_issue(cfg, stride):
    m = cfg["cmask"]
    return L(f"""
 s_bfe_u32 {sT}, {sP}, 0x20003
 s_mul_i32 {sT}, {sT}, {stride}
 s_add_u32 {sT}, {sT}, s4
 s_bfe_u32 s3, {sP}, 0x20001
 s_lshl_b32 s3, s3, 2
 s_mov_b32 s100, {m}
 s_mov_b32 s101, {m}
 s_lshl_b64 s[100:101], s[100:101], s3
 v_mov_b32 v7, {sTAG}
 s_mov_b64 exec, s[100:101]
 buffer_load_dword v7, v14, {WS}, {sT} offen offset:4 sc1
 s_mov_b64 exec, -1
MARK:can""")
def canary_check(P, name, sleep):
    P.tail += L(f"""L_{name}_r:
 s_sub_u32 {sSPIN}, {sSPIN}, 1
 s_cbranch_scc1 L_{name}_x
 s_mov_b64 exec, vcc
 s_sleep {sleep}
 buffer_load_dword v7, v14, {WS}, {sT} offen offset:4 sc1
 s_mov_b64 exec, -1
 s_waitcnt vmcnt(0)
 v_cmp_ne_u32 vcc, {sTAG}, v7
 s_cbranch_vccnz L_{name}_r
 s_branch L_{name}_b
L_{name}_x:
 s_mov_b32 {sSPIN}, 0
 s_branch L_{name}_b""")
    return ["WAIT:can", f" v_cmp_ne_u32 vcc, {sTAG}, v7", f" s_cbranch_vccnz L_{name}_r", f"L_{name}_b:"]
def kv_to_lds(P):
    for i in range(4):
        P(f" v_perm_b32 v{vIN+4*i+1}, v{vIN+4*i}, v{vIN+4*i+2}, {sLO}")
        P(f" v_perm_b32 v{vIN+4*i+3}, v{vIN+4*i}, v{vIN+4*i+2}, {sHI}")
        P(f" ds_write2st64_b32 v13, v{vIN+4*i+1}, v{vIN+4*i+3} offset0:{(3-i)*4} offset1:{(3-i)*4+KVCH//256}")
    P(" s_waitcnt lgkmcnt(0)\n s_barrier")
QD = 144
def conv_epi_consts():
    return L(f"""
 v_bfe_u32 v13, v0, 4, 2
 v_lshlrev_b32 v14, 6, v13
 v_xor_b32 v13, v14, v6
 s_lshl_b32 s3, {sW}, 13
 s_add_u32 s3, s3, {PART}
 v_add_u32 v13, s3, v13
 v_bfe_u32 v15, v0, 1, 2
 v_bfe_u32 v14, v0, 3, 4
 v_lshlrev_b32 v12, 2, v15
 v_xor_b32 v14, v14, v12
 v_lshlrev_b32 v14, 4, v14
 v_lshl_add_u32 v14, v15, 8, v14
 v_lshrrev_b32 v15, 7, v0
 v_lshl_add_u32 v14, v15, 10, v14
 v_and_b32 v15, 1, v0
 v_lshl_add_u32 v14, v15, 3, v14
 v_add_u32 v14, {PART}, v14
 s_mul_i32 s4, {sC}, {OB}
 s_add_u32 s4, s4, {YBOX}
 s_add_u32 s5, s4, 4096
 s_add_u32 s6, s4, 8192
 s_add_u32 s7, s4, 12288""")
def conv_mfma(P, bulk, sched):
    extra = conv_epi_consts()
    def rd(bb): return [f" ds_read_b128 {vr(vB+32*(bb&1)+4*d,4)}, v{vBB[bb]} offset:{(7-d)*512}" for d in range(8)]
    def mf(j, a, bb, first): P(f" v_mfma_f32_16x16x32_bf16 {ar(aC+4*j,4)}, {vr(vA+16*a+4*bb,4)}, {vr(vB+32*(bb&1)+4*(j-a),4)}, {'0' if first else ar(aC+4*j,4)}")
    used = [0]
    def due(n):
        allowed = sum(min(2*c, max(0, (n - s0)//e + 1)) for (s0, c, e) in sched)
        return used[0] < allowed
    P(rd(0))
    n = 0
    for bb in range(3):
        pend = []
        for d in range(8):
            if d == 0 and bb == 0: P(" s_waitcnt lgkmcnt(7)")
            elif (bb == 0 and d == 1) or d == 0: P(" s_waitcnt lgkmcnt(0)")
            if d == 1: pend = rd(bb+1)
            for a in range(8-d):
                mf(a+d, a, bb, bb == 0 and d == 0); n += 1
                if pend: P(pend.pop(0))
                elif bulk and due(n): P(bulk.pop(0)); used[0] += 1
                elif extra: P(extra.pop(0))
    P(extra)
    P(" s_waitcnt lgkmcnt(0)\n s_barrier")
    tags = [f" v_mov_b32 v{QD+2*i+1}, {sTAG}" for i in range(8)]
    wr = []; cnt = 0
    for j in range(8):
        for a in range(j+1):
            mf(j, a, 3, False); cnt += 1
            if wr and wr[0][1] + 4 <= cnt: P(wr.pop(0)[0])
            elif bulk and due(108 + cnt): P(bulk.pop(0)); used[0] += 1
            elif tags: P(tags.pop(0))
        wr.append((f" ds_write_b128 v13, {ar(aC+4*j,4)} offset:{j*1024}", cnt))
    P(tags)
    for x in wr: P(x[0])
def conv_epilogue(P):
    R = 16
    P(" s_waitcnt lgkmcnt(0)\n s_barrier")
    for i in range(4):
        for c in range(2): P(f" ds_read2st64_b64 {vr(R+8*i+4*c,4)}, v14 offset0:{4*i+32*c} offset1:{4*i+32*c+16}")
    for i in range(4):
        P(f" s_waitcnt lgkmcnt({6-2*i})")
        b = R+8*i
        P(f""" v_pk_add_f32 {vr(b,2)}, {vr(b,2)}, {vr(b+2,2)}
 v_pk_add_f32 {vr(b+4,2)}, {vr(b+4,2)}, {vr(b+6,2)}
 v_cvt_pk_bf16_f32 v{QD+4*i}, v{b}, v{b+4}
 v_cvt_pk_bf16_f32 v{QD+4*i+2}, v{b+1}, v{b+5}
 buffer_store_dwordx4 {vr(QD+4*i,4)}, v9, {WS}, s{4+i} offen sc1""")

vSR = 15
def stat_consts():
    return L(f"""
 v_bfe_u32 v{vSW}, v0, 4, 4
 v_lshl_add_u32 v{vSW}, v1, 4, v{vSW}
 v_lshlrev_b32 v{vSW}, 2, v{vSW}
 v_add_u32 v{vSW}, {STAT}, v{vSW}
 v_lshlrev_b32 v{vSR}, 6, v1
 v_add_u32 v{vSR}, {STAT}, v{vSR}
 s_mov_b32 s30, 0x3b000000
 s_mov_b32 s31, 0x3b000000""")
def row_stats(src, tmp, off, mr, shadow):
    o = []
    a = tmp+8
    for r in range(2):
        b = src+8*r
        o.append(f" v_pk_add_f32 {vr(a+4*r,2)}, {vr(b,2)}, {vr(b+2,2)}")
        o.append(f" v_pk_mul_f32 {vr(a+4*r+2,2)}, {vr(b,2)}, {vr(b,2)}")
    for i in range(1, 4):
        for r in range(2):
            b = src+8*r+2*i
            if i >= 2: o.append(f" v_pk_add_f32 {vr(a+4*r,2)}, {vr(a+4*r,2)}, {vr(b,2)}")
            o.append(f" v_pk_fma_f32 {vr(a+4*r+2,2)}, {vr(b,2)}, {vr(b,2)}, {vr(a+4*r+2,2)}")
    for k in range(4): o.append(f" v_add_f32 v{tmp+k}, v{a+2*k}, v{a+2*k+1}")
    sh = list(shadow)
    def S(n): return take(sh, n)
    o += S(2) + [f" v_permlane32_swap_b32 v{tmp}, v{tmp+1}", f" v_permlane32_swap_b32 v{tmp+2}, v{tmp+3}",
          f" v_add_f32 v{tmp}, v{tmp}, v{tmp+1}", f" v_add_f32 v{tmp+2}, v{tmp+2}, v{tmp+3}"] + S(2) + \
         [f" v_permlane16_swap_b32 v{tmp}, v{tmp+2}", f" v_add_f32 v{tmp}, v{tmp}, v{tmp+2}"] + S(2) + \
         [f" v_add_f32_dpp v{tmp}, v{tmp}, v{tmp} row_ror:4 row_mask:0xf bank_mask:0xf"] + S(2) + \
         [f" v_add_f32_dpp v{tmp}, v{tmp}, v{tmp} row_ror:8 row_mask:0xf bank_mask:0xf", f" ds_write_b32 v{vSW}, v{tmp} offset:{off}"] + S(8) + \
         [" s_waitcnt lgkmcnt(0)", " s_barrier"] + \
         [f" ds_read_b128 {vr(tmp+8+4*k,4)}, v{vSR} offset:{off+16*k}" for k in range(4)] + S(99) + [" s_waitcnt lgkmcnt(0)"]
    o += L(f"""
 v_pk_add_f32 {vr(a,2)}, {vr(a,2)}, {vr(a+4,2)}
 v_pk_add_f32 {vr(a+8,2)}, {vr(a+8,2)}, {vr(a+12,2)}
 v_pk_add_f32 {vr(a+2,2)}, {vr(a+2,2)}, {vr(a+6,2)}
 v_pk_add_f32 {vr(a+10,2)}, {vr(a+10,2)}, {vr(a+14,2)}
 v_pk_add_f32 {vr(tmp,2)}, {vr(a,2)}, {vr(a+8,2)}
 v_pk_add_f32 {vr(tmp+2,2)}, {vr(a+2,2)}, {vr(a+10,2)}
 v_pk_mul_f32 {vr(tmp,2)}, {vr(tmp,2)}, s[30:31]
 v_pk_mul_f32 {vr(tmp+2,2)}, {vr(tmp+2,2)}, s[30:31]
 v_pk_fma_f32 {vr(tmp+2,2)}, {vr(tmp,2)}, {vr(tmp,2)}, {vr(tmp+2,2)} neg_lo:[1,0,0] neg_hi:[1,0,0]
 v_cvt_pk_bf16_f32 v{tmp+4}, v{tmp}, v{tmp+1}
 v_max_f32 v{tmp+2}, 0, v{tmp+2}
 v_max_f32 v{tmp+3}, 0, v{tmp+3}
 v_cvt_pk_bf16_f32 v{tmp+5}, v{tmp+2}, v{tmp+3}
 v_lshlrev_b32 v{tmp+2}, 16, v{tmp+5}
 v_and_b32 v{tmp+3}, {sMASK}, v{tmp+5}
 v_add_f32 v{tmp+2}, 0x3727c5ac, v{tmp+2}
 v_add_f32 v{tmp+3}, 0x3727c5ac, v{tmp+3}
 v_cvt_pk_bf16_f32 v{tmp+5}, v{tmp+2}, v{tmp+3}
 v_lshlrev_b32 v{tmp+2}, 16, v{tmp+5}
 v_and_b32 v{tmp+3}, {sMASK}, v{tmp+5}
 v_sqrt_f32 v{tmp+2}, v{tmp+2}
 v_sqrt_f32 v{tmp+3}, v{tmp+3}
 v_lshlrev_b32 v{mr}, 16, v{tmp+4}
 v_cvt_pk_bf16_f32 v{tmp+5}, v{tmp+2}, v{tmp+3}
 v_lshlrev_b32 v{tmp+2}, 16, v{tmp+5}
 v_and_b32 v{tmp+3}, {sMASK}, v{tmp+5}
 v_rcp_f32 v{mr+2}, v{tmp+2}
 v_rcp_f32 v{mr+3}, v{tmp+3}
 v_and_b32 v{mr+1}, {sMASK}, v{tmp+4}
 v_pk_mul_f32 {vr(mr,2)}, {vr(mr,2)}, {vr(mr+2,2)} neg_lo:[1,0] neg_hi:[1,0]""")
    return o
def norm_row(dst, src, mr, row):
    sel = f"op_sel:[0,{row},{row}] op_sel_hi:[1,{row},{row}]"
    return [f" v_pk_fma_f32 {vr(dst+8*row+2*i,2)}, {vr(src+8*row+2*i,2)}, {vr(mr+2,2)}, {vr(mr,2)} {sel}" for i in range(4)]
def unpack(dst, src): return [f" v_lshlrev_b32 v{dst}, 16, v{src}", f" v_and_b32 v{dst+1}, {sMASK}, v{src}"]
def ln1():
    tmp = 176; mr = 200; kd = 160
    o = []
    for r in range(2):
        for t in range(4): o += unpack(kd+8*r+2*t, vQ+4*t+2*r)
    for i in range(8): o += unpack(vu1+2*i, vX+i)
    sh = []
    for i in range(4): sh += unpack(vX+2*i, vD+i)
    for r in range(2):
        for t in range(4): sh.append(f" v_pk_mul_f32 {vr(kd+8*r+2*t,2)}, {vr(kd+8*r+2*t,2)}, {vr(vX+2*t,2)}")
    o += row_stats(vu1, tmp, 0, mr, sh)
    o += norm_row(vq, vu1, mr, 0) + norm_row(vq, vu1, mr, 1)
    for i in range(8): o.append(f" v_pk_fma_f32 {vr(vu1+2*i,2)}, {vr(vq+2*i,2)}, {vr(kd+2*i,2)}, {vr(vu1+2*i,2)}")
    return o
vY = 64
def ln2(P):
    vh, vn, tmp, mr = 80, 104, 112, 136
    for r in range(2):
        for t in range(4): P(unpack(vh+8*r+2*t, vY+4*t+2*r))
    for i in range(8): P(f" v_pk_fma_f32 {vr(vh+2*i,2)}, {vr(vq+2*i,2)}, {vr(vh+2*i,2)}, {vr(vu1+2*i,2)}")
    sh = [f" v_cvt_pk_bf16_f32 v{vHP+i}, v{vh+2*i}, v{vh+2*i+1}" for i in range(8)]
    for i in range(8): sh += unpack(vh+2*i, vHP+i)
    P(row_stats(vh, tmp, 256, mr, sh))
    for r in range(2):
        P(norm_row(vh, vh, mr, r))
        for i in range(4*r, 4*r+4): P(f" v_cvt_pk_bf16_f32 v{vn+i}, v{vh+2*i}, v{vh+2*i+1}")
        P(f" buffer_store_dwordx4 {vr(vn+4*r,4)}, v5, {WS}, {sHNst} offen offset:{64*r} sc1")
        P(f" v_xad_u32 v{tmp+r}, v{vn+4*r}, v{vn+4*r+1}, v{vn+4*r+2}\n v_add_u32 v{tmp+r}, v{tmp+r}, v{vn+4*r+3}")
    P(f"""
 v_permlane16_swap_b32 v{tmp}, v{tmp+1}
 v_add_u32 v{tmp}, v{tmp}, v{tmp+1}
 v_add_u32_dpp v{tmp}, v{tmp}, v{tmp} row_ror:8 row_mask:0xf bank_mask:0xf
 v_add_u32 v{tmp}, {sTAG}, v{tmp}
 buffer_store_dword v{tmp}, v{vC}, {WS}, {sHCst} offen sc1
""")
    if P.cfg["hnh"]: P(f" buffer_store_dword v{vY+1}, v13, {WS}, {sF0} offen sc1")
def h2_consts():
    return L(f"""
 v_mul_u32_u24 v14, {4*OB}, v2
 v_lshl_add_u32 v14, v1, 4, v14
 v_lshlrev_b32 v5, 9, v2
 v_lshl_add_u32 v5, v1, 4, v5
 v_lshrrev_b32 v{vC}, 2, v6
 v_add_u32 v{vC}, 4096, v{vC}
 s_lshr_b32 {sHNst}, {sP}, 2
 s_lshl_b32 {sHNst}, {sHNst}, 15
 s_and_b32 s3, {sP}, 3
 s_lshl_b32 s3, s3, 7
 s_add_u32 {sHNst}, {sHNst}, s3
 s_add_u32 {sHNst}, {sHNst}, {HN}
 s_lshl_b32 {sHCst}, {sP}, 2
 s_add_u32 {sHCst}, {sHCst}, {sW}
 s_lshl_b32 {sF0}, {sHCst}, 9
 s_add_u32 {sF0}, {sF0}, {HI}
 v_lshrrev_b32 v13, 6, v6
 v_lshlrev_b32 v13, 25, v13
 v_lshl_add_u32 v13, v1, 7, v13
 s_lshl_b32 {sFLst}, {sHCst}, 6
 s_add_u32 {sFLst}, {sFLst}, {FL-4352}
 s_lshl_b32 {sHCst}, {sHCst}, 8
 s_add_u32 {sHCst}, {sHCst}, {HC-4096}
 s_lshl_b32 s4, {sP}, 6
 s_add_u32 s4, s4, {YBOX}
 s_add_u32 s5, s4, {OB}
 s_add_u32 s6, s4, {2*OB}
 s_add_u32 s7, s4, {3*OB}""")

def wd_consts(t):
    o = L(f"""
 s_and_b32 s3, s2, 7
 s_lshl_b32 s3, s3, 2
 s_add_u32 {sSB}, s3, {sL3}
 s_lshl_b32 {sE}, {sJL}, 7
 s_mul_i32 {sRING}, {sW}, {NR*1024}
 s_add_u32 {sRING}, {sRING}, {RING}
 s_lshl_b32 s3, {sL3}, 1
 s_add_u32 s3, s3, {sJL}
 s_mul_i32 s100, {sW}, {448*1024}
 s_add_u32 s100, s100, {sE}""")
    for i in range(7):
        o += L(f""" s_cmp_ge_u32 s3, 7
 s_cselect_b32 {sT}, 7, 0
 s_sub_u32 s3, s3, {sT}
 s_lshl_b32 {sT}, s3, 16
 s_add_u32 s{sWD+i}, {sT}, s100
 s_add_u32 s3, s3, 1""")
    return o
def wd_rconsts(t):
    return L(f"""
 v_bfe_u32 v{t}, v0, 5, 1
 v_bfe_u32 v{t+1}, v0, 4, 1
 v_bfe_u32 v{t+2}, v0, 2, 2
 v_lshl_add_u32 v{t}, v{t}, 2, v{t+2}
 v_lshlrev_b32 v{t}, 7, v{t}
 v_lshl_add_u32 v{t}, v1, 3, v{t}
 v_add_u32 v{t}, {sRING}, v{t}
 v_and_b32 v{t+2}, 2, v{t+2}
 v_or_b32 v{t+2}, v{t+2}, v{t+1}
 v_lshl_add_u32 v{vWr[0]}, v{t+2}, 5, v{t}
 v_xor_b32 v{t+2}, 2, v{t+2}
 v_lshl_add_u32 v{vWr[1]}, v{t+2}, 5, v{t}""")
def wd_dma(m, base=sRING, slot=None):
    i, r = m // 8, m & 7
    o = []
    if slot is None:
        slot = m % NR
        if m >= NR: o.append(f"DWAIT:wd{m-NR}")
    o.append(f" s_add_u32 m0, {base}, {slot*1024}")
    if r: o += [f" s_add_u32 s100, s{sWD+i}, {r*8192}", f" buffer_load_dwordx4 v{vWD}, {srd('WD')}, s100 offen lds"]
    else: o += [f" buffer_load_dwordx4 v{vWD}, {srd('WD')}, s{sWD+i} offen lds"]
    return o + [f"MARK:wd{m}"]
def wd_read(m, slot=None):
    d = (m >> 1)*8 + 2*(m & 1)
    if slot is None: slot = m % NR
    return [f"WAIT:wd{m}"] + [f" ds_read_b64_tr_b16 {ar(d+4*tau,2)}, v{vWr[tau]} offset:{slot*1024}" for tau in range(2)] + [f"DMARK:wd{m}"]
def wd_stream(d, rd, N):
    o = []
    while d < min(N, rd + NR - 1): o += wd_dma(d); d += 1
    for m in range(rd, N):
        o += wd_read(m)
        if d < N and d <= m + NR - 1: o += wd_dma(d); d += 1
    return o

def g_sconsts(nbig):
    o = [f" s_mul_i32 s3, {sSB}, {56*GS}", f" s_add_u32 s3, s3, {HH}"]
    for i in range(7):
        o += L(f""" s_lshr_b32 {sT}, s{sWD+i}, 16
 s_mul_i32 {sT}, {sT}, {GS}
 s_add_u32 s{sHL+i}, {sT}, s3
 s_add_u32 s{sHL+7+i}, s{sHL+i}, {28*GS}""")
    o += L(f"""
 s_lshl_b32 {sO0}, {sSB}, 16
 s_add_u32 {sO0}, {sO0}, {sE}
 s_add_u32 {sO1}, {sO0}, 32768
 s_add_u32 {sHR0}, {sO0}, {HRES}
 s_add_u32 {sHR1}, {sO1}, {HRES}
 s_mov_b32 {sHRES}, {HRES}
 s_lshl_b32 s3, {sG}, 2
 s_add_u32 s3, s3, {sW}
 s_mul_i32 {sHS0}, s3, 56
 s_add_u32 {sHS0}, {sHS0}, {sJ}
 s_mul_i32 {sHS0}, {sHS0}, {GS}
 s_add_u32 {sHS0}, {sHS0}, {HH}
 s_add_u32 {sHS1}, {sHS0}, {28*GS}
 s_lshl_b32 {sFLld}, s3, 13
 s_add_u32 {sFLld}, {sFLld}, {HC}
 s_lshl_b32 s3, s3, 16
 s_add_u32 s3, s3, {HN}""")
    for g in range(8):
        o += [f" s_add_u32 {sT}, {sJL}, {g}", f" s_and_b32 {sT}, {sT}, 7", f" s_lshl_b32 s{sHC+g}, {sT}, 7", f" s_add_u32 s{sHC+g}, s{sHC+g}, {sFLld}", f" s_lshl_b32 {sT}, {sT}, 12", f" s_add_u32 s{sHN+g}, {sT}, s3"]
    o += L(f"""
 s_lshl_b32 {sFLld}, {sSB}, 3
 s_add_u32 {sFLld}, {sFLld}, {sW}
 s_mul_i32 {sPH0}, {sFLld}, {7*GS}
 s_add_u32 {sPH0}, {sPH0}, {HH+4352}
 s_add_u32 {sPH1}, {sPH0}, {28*GS}
 s_lshl_b32 {sFLld}, {sFLld}, 2
 s_lshr_b32 s3, {sJL}, 1
 s_add_u32 {sFLld}, {sFLld}, s3
 s_lshl_b32 {sFLld}, {sFLld}, 6
 s_add_u32 {sFLld}, {sFLld}, {FL}
 s_and_b32 s3, {sW}, 1
 s_mul_i32 s3, s3, {nbig*1024}
 s_lshr_b32 {sBIG}, {sW}, 1
 s_lshl_b32 {sBIG}, {sBIG}, 16
 s_add_u32 {sBIG}, {sBIG}, s3""") + srdc(("OUT",))
    return o
def g_vconsts():
    t = 232
    o = L(f"""
 v_bfe_u32 v{t}, v0, 5, 1
 v_bfe_u32 v{t+1}, v0, 4, 1
 v_bfe_u32 v{t+2}, v0, 2, 2
 v_bfe_u32 v{vHC}, v0, 3, 2
 v_lshlrev_b32 v{vHC}, 10, v{vHC}
 v_lshl_add_u32 v{vHC}, v{t}, 4, v{vHC}
 v_lshl_add_u32 v{t}, v{t}, 3, v{t+2}
 v_lshlrev_b32 v{t+4}, 7, v{t}
 v_lshl_add_u32 v{t+4}, v1, 3, v{t+4}
 v_lshl_add_u32 v{t+4}, v{t+1}, 16, v{t+4}
 v_lshrrev_b32 v{t+2}, 1, v{t+2}
 v_lshl_add_u32 v{t+2}, v{t+1}, 1, v{t+2}
 v_add_u32 v{vL2}, 32768, v6""")
    for k in range(4): o += [f" v_xor_b32 v{t+3}, {k}, v{t+2}", f" v_lshl_add_u32 v{vRa+k}, v{t+3}, 5, v{t+4}"]
    o += L(f"""
 v_bfe_u32 v4, v0, 2, 1
 v_lshl_add_u32 v{vHC}, v4, 6, v{vHC}
 v_lshl_add_u32 v{vHC}, v1, 2, v{vHC}
 v_add_u32 v{vHC1}, 4096, v{vHC}
 v_lshrrev_b32 v{t}, 3, v0
 v_and_b32 v{t+1}, 24, v{t}
 v_and_b32 v{t+2}, 3, v{t}
 v_lshl_add_u32 v{t+1}, v{t+2}, 1, v{t+1}
 v_bfe_u32 v{t+2}, v{t}, 2, 1
 v_add_u32 v{t+1}, v{t+1}, v{t+2}
 v_lshlrev_b32 v{t+1}, 10, v{t+1}
 v_and_b32 v{t+2}, 7, v0
 v_lshl_add_u32 v{vOUT}, v{t+2}, 4, v{t+1}
 v_min_u32 v4, 6, v{t+2}
 v_mul_u32_u24 v{vPH}, {GS}, v4
 v_lshlrev_b32 v{vONE}, 21, v6
 v_add_u32 v{vONE}, 4352, v{vONE}
 v_mov_b32 v{vTG}, {sTAG}""")
    return o
HST = [f" buffer_store_dwordx4 {vr(vHP,4)}, v3, {WS}, {sHRES} offen sc1", f" buffer_store_dwordx4 {vr(vHP+4,4)}, v3, {WS}, {sHRES} offen offset:1024 sc1", "MARK:HST"]
FLAGST = f" buffer_store_dword v{vTG}, v{vONE}, {WS}, {sFLst} offen sc1"
def hn_regs(G_): return vHN + 16*(G_ % 4)
def hn_loads(G_):
    return [f" buffer_load_dwordx4 {vr(hn_regs(G_)+4*k,4)}, v{6 if G_ < 8 else vL2}, {WS}, s{sHN+(G_&7)} offen offset:{k*1024} sc1" for k in range(4)] + \
           [f" buffer_load_dword v{CHN[G_%4]}, v{vHC if G_ < 8 else vHC1}, {WS}, s{sHC+(G_&7)} offen sc1"]
def hh_loads(u, i):
    return [f" buffer_load_dwordx4 {vr(HREG[(u,i)]+4*t,4)}, v6, {WS}, s{sHL+7*u+i} offen offset:{t*1024} sc1" for t in range(4)] + \
           [f" buffer_load_dword v{CHH[(u,i)]}, v{vC}, {WS}, s{sHL+7*u+i} offen sc1"]
def hashchain(r, chk):
    o = []
    for f in range(4):
        b = r + 4*f
        o.append(f" v_xad_u32 v4, v{b}, v{b+1}, {sTAG if f == 0 else 'v4'}")
        o.append(f" v_add3_u32 v4, v4, v{b+2}, v{b+3}")
    return o + [f" v_cmp_ne_u32 vcc, v4, v{chk}"]
def retry_check(P, o, loads, later, name, sleep):
    blk = [f"L_{name}_r:", f" s_sub_u32 {sSPIN}, {sSPIN}, 1", f" s_cbranch_scc1 L_{name}_x", f" s_sleep {sleep}"] + loads + [" s_waitcnt vmcnt(0)"] + o + [f" s_cbranch_vccnz L_{name}_r"]
    blk += later + ([" s_waitcnt vmcnt(0)"] if later else []) + [f" s_branch L_{name}_b", f"L_{name}_x:", f" s_mov_b32 {sSPIN}, 0", f" s_branch L_{name}_b"]
    P.tail += blk
    return o + [f" s_cbranch_vccnz L_{name}_r\nL_{name}_b:"]
def hint_spin(name, s, back):
    return [f"L_{name}:", f" buffer_load_dword v{vPD}, v{vPH}, {WS}, {s} offen sc1", " s_waitcnt vmcnt(0)", f" v_cmp_ne_u32 vcc, {sTAG}, v{vPD}", f" s_cbranch_vccz {back}", " s_sleep 8",
            f" s_sub_u32 {sSPIN}, {sSPIN}, 1", f" s_cbranch_scc0 L_{name}", f" s_mov_b32 {sSPIN}, 0"]
def epi_tile(acc, ups, t, out, pk):
    o = []
    if pk:
        for i in range(4): o.append(f" v_pk_mul_f32 {vr(vE+2*i,2)}, {vr(acc+2*i,2)}, s[4:5]")
    else:
        for i in range(8): o.append(f" v_mul_f32 v{vE+i}, 0xbfb8aa3b, v{acc+i}")
    for i in range(8): o.append(f" v_exp_f32 v{vE+i}, v{vE+i}")
    if pk:
        for i in range(4): o.append(f" v_pk_add_f32 {vr(vE+2*i,2)}, {vr(vE+2*i,2)}, 1.0 op_sel_hi:[1,0]")
    else:
        for i in range(8): o.append(f" v_add_f32 v{vE+i}, 1.0, v{vE+i}")
    for i in range(8): o.append(f" v_rcp_f32 v{vE+i}, v{vE+i}")
    if pk:
        for i in range(4): o.append(f" v_pk_mul_f32 {vr(vE+2*i,2)}, {vr(vE+2*i,2)}, {vr(acc+8+2*i,2)}")
    else:
        for i in range(8): o.append(f" v_mul_f32 v{vE+i}, v{vE+i}, v{acc+8+i}")
    for i in range(4): o.append(f" v_cvt_pk_bf16_f32 v{out+i}, v{vE+2*i}, v{vE+2*i+1}")
    sb = sHS1 if ups else sHS0
    o.append(f" buffer_store_dwordx4 {vr(out,4)}, v6, {WS}, {sb} offen offset:{t*1024} sc1")
    o.append(f" v_xad_u32 v{vHASH}, v{out}, v{out+1}, {sTAG if t == 0 else 'v%d' % vHASH}")
    o.append(f" v_add3_u32 v{vHASH}, v{vHASH}, v{out+2}, v{out+3}")
    if t == 3:
        o.append(f" buffer_store_dword v{vHASH}, v{vC}, {WS}, {sb} offen sc1")
        o.append(f" buffer_store_dword v{vTG}, v{vONE}, {WS}, {sb} offen sc1")
    return o

def gemm1(P, cfg, wds):
    seq = [(u, k, t) for u in range(2) for k in range(32) for t in range(4)]
    D = 6; LA = 3
    MB = cfg["wd_big"]
    def reads(n):
        u, k, t = seq[n]; d = aC + 4*(n % 8)
        return [f" ds_read_b64_tr_b16 {ar(d+2*io,2)}, v{vRa+t} offset:{k*2048+io*512}" for io in range(2)] + [f"DMARK:w{n}"]
    def hn_issue(g): return hn_loads(g) + [f"MARK:hn{g}"]
    def hn_check(g):
        later = []
        for gg in range(g+1, min(16, g+LA)): later += hn_loads(gg)
        return [f"WAIT:hn{g}"] + retry_check(P, hashchain(hn_regs(g), CHN[g%4]), hn_loads(g), later, f"hn{g}", cfg["bo"])
    for n in range(D): P(reads(n))
    if cfg["hnh"]:
        hl = f" buffer_load_dword v{vPD}, v221, {WS}, {sF0} offen sc1"
        P(["WAIT:phn"] + retry_check(P, [f" v_cmp_ne_u32 vcc, {sTAG}, v{vPD}"], [hl], [], "phn", cfg["hbo"]))
    P.st("hint")
    for g in range(LA): P(hn_issue(g))
    P(hn_check(0))
    P.st("hn0")
    wq_ = list(wds); fill = []; urgent = []; wacc = 0.0
    for n, (u, k, t) in enumerate(seq):
        budget = cfg["slots"][u]
        g = 8*u + k//4
        if t == 0:
            if k % 4 == 0:
                while urgent: P(urgent.pop(0))
                if g + LA < 16: urgent = hn_issue(g + LA)
            if k % 4 == 3 and g + 1 < 16: urgent += hn_check(g + 1)
            if (u, k) == (1, 0):
                P.st("p0")
                fill = ["SKIP"]; held = []
                for tt in range(4):
                    for x in epi_tile(acc0+16*tt, 0, tt, acc0+16*tt, False):
                        (held if x.lstrip().startswith("buffer_store") else fill).append(x)
                fill += held + HST
        if n % 2 == 0: P(f"DWAIT:w{n+1}")
        else: budget -= 1
        a = (acc1 if u else acc0) + 16*t
        P(f" v_mfma_f32_32x32x16_bf16 {vr(a,16)}, {ar(aC+4*(n%8),4)}, {vr(hn_regs(g)+4*(k&3),4)}, {'0' if k == 0 else vr(a,16)}")
        if n + D < len(seq):
            P(reads(n+D)); budget -= 2
        wacc += cfg["wd_rate"][u]
        had = bool(fill)
        for q in (urgent, wq_, fill):
            while q and (budget >= P.cost(q[0]) or P.cost(q[0]) == 0):
                if q is wq_:
                    if wacc < 1 and P.cost(q[0]) > 0: break
                    wacc -= P.cost(q[0])
                x = q.pop(0); budget -= P.cost(x); P(x)
        if had and not fill: print("epilogue0 done at k", k)
    print('left: wd', len(wq_), 'fill', len(fill))
    P(wq_); P(fill)
    P.st("p1")
    P(" s_mov_b32 s4, 0xbfb8aa3b\n s_mov_b32 s5, 0xbfb8aa3b")
    big = []
    if MB < 56:
        P(" s_barrier")
        for m in range(MB, 56): big.append("\n".join(wd_dma(m, sBIG, m - MB)))
    e1 = []
    for tt in range(4): e1 += epi_tile(acc1+16*tt, 1, tt, acc1+16*tt, True)
    P(take(big, cfg["big_pre"]))
    h0 = f" buffer_load_dword v{vPD}, v{vPH}, {WS}, {sPH0} offen sc1"
    if cfg["hhh"]: e1.insert(cfg["h0_at"], h0 + "\nMARK:ph0")
    interleave(P, e1, big, cfg["big_every"])
    P(big)
    P.st("epi")
    if cfg["hhh"]: P(["WAIT:ph0"] + retry_check(P, [f" v_cmp_ne_u32 vcc, {sTAG}, v{vPD}"], [h0], [], "ph0", cfg["hbo"]))
    for i in range(cfg["b0_n"]): P(hh_loads(0, i) + [f"MARK:hh0_{i}"])
    P(["WAIT:HST", FLAGST])
    P.st("ld0")

def red_consts():
    return L(f"""
 s_mul_i32 s3, {sW}, {REDW}
 v_add_u32 v12, s3, v6
 v_and_b32 v15, 7, v0
 v_lshrrev_b32 v13, 3, v0
 v_mul_u32_u24 v15, {BS}, v15
 v_lshl_add_u32 v13, v13, 4, v15
 v_add_u32 v14, {2*REDW}, v13
 v_and_b32 v1, 1, v0
 v_lshlrev_b32 v1, 10, v1""")
def red_write(ups): return [f" ds_write_b128 v12, {vr(acc2+4*blk,4)} offset:{blk*BS}" for blk in range(8*ups, 8*ups+8)]
def red_read(ups, b): return [f" ds_read_b128 {vr(b+8*w+4*h,4)}, {'v13' if w < 2 else 'v14'} offset:{ups*8*BS + h*512 + (w&1)*REDW}" for w in range(4) for h in range(2)]
def red_fin(ups, b, hx, pk, fl):
    o = []
    for (x, y) in ((0, b+8), (16, b+24), (0, hx), (0, b+16)):
        if pk:
            for i in range(4): o.append(f" v_pk_add_f32 {vr(b+x+2*i,2)}, {vr(b+x+2*i,2)}, {vr(y+2*i,2)}")
        else:
            for i in range(8): o.append(f" v_add_f32 v{b+x+i}, v{b+x+i}, v{y+i}")
    for i in range(4): o.append(f" v_cvt_pk_bf16_f32 v{b+16+i}, v{b+2*i}, v{b+2*i+1}")
    o.append(f" buffer_store_dwordx4 {vr(b+16,4)}, v{vOUT}, {srd('OUT')}, {sO0 if ups == 0 else sO1} offen {fl}")
    return o
def gemm2(P, cfg):
    order = [(0, i) for i in range(7)] + [(1, i) for i in range(7)]
    nb = cfg["b0_n"]; MB = cfg["wd_big"]
    issued = order[:nb]
    def chk(pos):
        u, i = order[pos]
        later = []
        for x in order[pos+1:]:
            if x in issued and x[0] == u: later += hh_loads(*x)
        return [f"WAIT:hh{u}_{i}"] + retry_check(P, hashchain(HREG[(u,i)], CHH[(u,i)]), hh_loads(u, i), later, f"hh{u}_{i}", cfg["bo"])
    bigrd = []
    if MB < 56:
        P([f" s_sub_u32 s3, {sBIG}, {sRING}", f" v_add_u32 v{vWr[0]}, s3, v{vWr[0]}", f" v_add_u32 v{vWr[1]}, s3, v{vWr[1]}"])
        for m in range(MB, 56): bigrd += wd_read(m, m - MB)
    P(chk(0))
    hres = [f" buffer_load_dwordx4 {vr(vE,4)}, v{vOUT}, {WS}, {sHR0} offen sc1", f" buffer_load_dwordx4 {vr(vE+4,4)}, v{vOUT}, {WS}, {sHR1} offen sc1", "MARK:hres"]
    flag = [f" buffer_load_dword v3, v1, {WS}, {sFLld} offen sc1"]
    T0 = 112; HX = 16
    for pos, (u, i) in enumerate(order):
        fill = []
        if pos + nb < 14:
            x = order[pos + nb]
            prev = [y for y in order[:order.index(x)] if HREG[y] == HREG[x]]
            assert all(order.index(y) < pos for y in prev), x
            h1 = f" buffer_load_dword v{vPD}, v{vPH}, {WS}, {sPH1} offen sc1"
            if x == (0, 6) and cfg["hhh"]: fill += [h1, "MARK:ph1"]
            if x == (1, 0):
                if cfg["hhh"]: fill += ["WAIT:ph1"] + retry_check(P, [f" v_cmp_ne_u32 vcc, {sTAG}, v{vPD}"], [h1], [], "ph1", cfg["hbo"])
                else:
                    P.tail += hint_spin("ip1", sPH1, "L_ip1b") + [" s_branch L_ip1b"]
                    fill += [f" s_cmp_ge_u32 {sJL}, 7\n s_cbranch_scc1 L_ip1\nL_ip1b:"]
            fill += hh_loads(*x) + [f"MARK:hh{x[0]}_{x[1]}"]; issued.append(x)
        if pos < 3: fill += take(bigrd, 4*((56-MB+2)//3))
        if pos == 3: fill += red_consts() + [" s_waitcnt lgkmcnt(0)", " s_barrier"]
        if pos == 4: fill += flag + ["MARK:flag"]
        if pos == 7: fill += ["WAIT:flag"] + retry_check(P, [f" v_cmp_ne_u32 vcc, {sTAG}, v3"], flag, [], "flag", cfg["bo"]) + hres
        if pos == 8: fill += red_write(0)
        if pos == 9: fill += [" s_waitcnt lgkmcnt(0)", " s_barrier"] + red_read(0, T0)
        if pos == 11:
            fill += ["WAIT:hres"]
            for k in range(8): fill += unpack(HX+2*k, vE+k)
            fill += [" s_waitcnt lgkmcnt(0)"]
        if pos == 12: fill += red_fin(0, T0, HX, False, cfg["outf"])[:24]
        if pos == 13: fill += red_fin(0, T0, HX, False, cfg["outf"])[24:]
        assert MB >= 32
        late = chk(pos+1) if pos+1 < len(order) else []
        n = 0
        for t in range(4):
            for tau in range(2):
                a = acc2+32*u+16*tau
                P(f" v_mfma_f32_32x32x16_bf16 {vr(a,16)}, {ar(((i*4+t)*2+tau)*4,4)}, {vr(HREG[(u,i)]+4*t,4)}, {'0' if (i == 0 and t == 0) else vr(a,16)}")
                n += 1
                if n <= 5:
                    b = 5
                    while fill and b > 0: b -= P.cost(fill[0]); P(fill.pop(0))
                else:
                    P(take(fill, 99)); P(take(late, 5))
        P(late)
        if pos == 6: P.st("b0")
    P.st("g2")
    P(red_write(1))
    P(" s_waitcnt lgkmcnt(0)\n s_barrier")
    P(red_read(1, 144))
    P(" s_waitcnt lgkmcnt(0)")
    P(red_fin(1, 144, HX+8, True, cfg["outf"]))

def build(cfg, stamps=False):
    P = G(stamps); P.cfg = cfg
    if cfg.get("dbg"): P.only = cfg["dbg"].split(",")
    entry(P, cfg)
    setupB = a_consts() + roles()
    P(take(setupB, cfg["nsetB"]))
    if cfg["f_at"] == 0: P(filter_dma(cfg))
    else: P(f""" v_and_b32 v4, 79, v0
 v_lshrrev_b32 v5, 2, v4
 v_and_or_b32 v4, v5, 16, v4
 v_and_b32 v4, 31, v4
 v_lshlrev_b32 v4, 7, v4
 buffer_load_dword v{vDUM}, v4, {srd('SSMK')}, {sF0} offen {cfg['fnt']}""")
    if cfg["x_at"] == 0: P(x_loads())
    P(tag_setup())
    P.st("pre")
    P.vmwait("L1")
    P.st("L1")
    p0_kv(P)
    P.st("kvst")
    if cfg["f_at"] == 1:
        if cfg["kbar"]: P(" s_barrier")
        P(filter_dma(dict(fnt=cfg["fnt2"])))
    if cfg["wdm"] == 1: P(wd_mall())
    if cfg["x_at"] == 1: P(x_loads())
    P(setupB)
    late = conv_setup() + h1_addr()
    if cfg["f_at"] == 1: P(late + w_table()); late = []
    P.vmwait("A")
    P(" s_barrier")
    P.st("bar")
    if late: P(late + w_table())
    ap = a_prep() + (wd_consts(0) if cfg["wdc_at"] == 1 else [])
    if cfg["can1"]: P(canary_issue(cfg, 64*OB))
    P(take(ap, cfg["ap_pre"]))
    if cfg["can1"]: P(canary_check(P, "c1", cfg["cbo"]))
    P.st("aprep")
    box_recv(P, vIN, "h1", cfg["bo"], ap)
    kv_to_lds(P)
    P.st("h1")
    wq = []
    for i in range(cfg.get("nw", 16)): wq += w_pair(i, cfg["wnt"])
    conv_mfma(P, wq, cfg["wsched"])
    print("W ops left after conv:", len(wq)//2)
    P.st("mfma")
    conv_epilogue(P)
    P.mark("YST")
    P.st("yst")
    P(" s_barrier")
    if cfg["wdc_at"] == 2: P(wd_consts(0))
    nd = cfg["wd_pre"]
    b3 = wq + ["\n".join(wd_dma(m)) for m in range(min(nd, NR))]
    P.vmwait("X")
    interleave(P, stat_consts() + ln1(), b3, cfg["w3_every"])
    P(b3)
    gs = g_sconsts(56 - cfg["wd_big"])
    P(h2_consts())
    if cfg.get("dly2"): P(f" s_sleep {cfg['dly2']}")
    if cfg["can2"]: P(canary_issue(cfg, OB))
    P(wd_rconsts(48))
    if cfg["can2"]: P(canary_check(P, "c2", cfg["cbo"]))
    P.st("ln1")
    box_recv(P, vY, "h2", cfg["bo"])
    P.st("h2")
    ln2(P)
    P.st("hnst")
    d = min(nd, NR)
    for m in range(d): P(wd_read(m))
    rd = d
    while d < nd:
        P(wd_dma(d)); d += 1
    post = g_vconsts() + gs
    P(take(post, cfg["hn_hint_at"]))
    if cfg["hnh"]:
        P(f""" s_lshl_b32 {sF0}, {sG}, 2
 s_add_u32 {sF0}, {sF0}, {sW}
 s_lshl_b32 {sF0}, {sF0}, 14
 s_bfe_u32 s30, s2, 0x20001
 s_lshl_b32 s30, s30, 7
 s_add_u32 {sF0}, {sF0}, s30
 s_add_u32 {sF0}, {sF0}, {HI}
 v_and_b32 v221, {cfg['hn_nh']-1}, v0
 v_lshlrev_b32 v221, 9, v221
 buffer_load_dword v{vPD}, v221, {WS}, {sF0} offen sc1
MARK:phn""")
    P(post)
    P(f"""
 s_or_b32 s3, s2, {sW}
 s_cmp_lg_u32 s3, 0
 s_cbranch_scc1 L_notag
 v_lshlrev_b32 v4, 21, v6
 buffer_store_dword v{vTG}, v4, {WS}, 0 offen sc1
L_notag:
""")
    P.nvm -= 1
    if cfg.get("dly3"): P(f" s_sleep {cfg['dly3']}")
    P.st("g1go")
    P(f" s_cmp_ge_u32 {sJL}, 7\n s_cbranch_scc1 L_idle")
    save = (P.nvm, P.nds, P.vmdone, P.dsdone, dict(P.marks), dict(P.dmarks))
    MB = cfg["wd_big"]
    gemm1(P, cfg, wd_stream(d, rd, MB))
    P(" s_waitcnt lgkmcnt(0)\nL_join:")
    gemm2(P, cfg)
    if stamps:
        P(" s_waitcnt vmcnt(0)"); P.st("end")
        P(f" v_writelane_b32 v11, {sSPIN}, 63\n s_lshl_b32 s3, s2, 10\n s_add_u32 s3, s3, {STAMPS}\n v_lshlrev_b32 v1, 2, v0\n buffer_store_dword v11, v1, {WS}, s3 offen")
    P("L_end:\n s_endpgm")
    P.nvm, P.nds, P.vmdone, P.dsdone, P.marks, P.dmarks = save
    P("L_idle:")
    P(HST + ["WAIT:HST", FLAGST])
    P(wd_stream(d, rd, MB))
    for m in range(MB, 56): P(wd_dma(m, sBIG, m - MB))
    for nm in ("hint","hn0","p0","p1","epi"): P.st(nm)
    P(hint_spin("ip0", sPH0, "L_ip0b") + ["L_ip0b:"])
    for i in range(cfg["b0_n"]): P(hh_loads(0, i))
    P(" s_waitcnt vmcnt(0) lgkmcnt(0)")
    P.st("ld0")
    P(" s_branch L_join")
    P(P.tail)
    P("L_codeend:")
    if os.environ.get("STAMP") == "2": P.lines = [l.replace("s_memrealtime", "s_memtime") for l in P.lines]
    body = P.fix()
    head = open("sequential_preLN__ssm_conv_h3__glu_gated_glu__prompt.s.ref").read().split("; Override launch")[0]
    out = head + f"; @launch grid=(256,1,1) block=(256,1,1) lds={LDS_BYTES}\n"
    out += f'.amdgcn_target "amdgcn-amd-amdhsa--gfx950"\n.text\n.globl {NAME}\n.p2align 8\n.type {NAME},@function\n{NAME}:\n' + body
    out += f""" s_endpgm
.section .rodata,"a"
.p2align 6
.amdhsa_kernel {NAME}
  .amdhsa_next_free_vgpr 512
  .amdhsa_next_free_sgpr 102
  .amdhsa_accum_offset 256
  .amdhsa_group_segment_fixed_size 0
  .amdhsa_kernarg_size 104
  .amdhsa_user_sgpr_count 2
  .amdhsa_user_sgpr_kernarg_segment_ptr 1
  .amdhsa_system_sgpr_workgroup_id_x 1
.end_amdhsa_kernel
"""
    return out, P
CFG = dict(can1=1, can2=1, cmask=0x00010001, cbo=6, hnh=1, hn_nh=16, hn_hint_at=999, hbo=8, hhh=1, h0_at=70, ap_pre=90, wsched=[(1,8,1),(80,14,2)], f_at=1, kbar=1, fnt2="", pf_after="SHK", nsetB=47, fnt="nt", x_at=0, wdm=0, wdc_at=1, bo=8, wnt="nt", w2=26, w2_every=2, w3_every=4, wd_pre=14, gs_early=0,
           wd_rate=(1.2,1), wd_big=36, slots=(6,6), big_pre=4, big_every=8, b0_n=3, outf="", dly3=0)
if __name__ == "__main__":
    cfg = dict(CFG)
    for a in sys.argv[2:]:
        k, v = a.split("=", 1); cfg[k] = eval(v)
    out, P = build(cfg, bool(os.environ.get("STAMP")))
    open(sys.argv[1], "w").write(out)
    if os.environ.get("STAMP"): open(sys.argv[1] + ".names", "w").write(" ".join(P.stn))
    print("lines", len(P.lines), "nops", P.nops)
```

```python
import sys, os, re
sys.path.insert(0, "gen")
from asmlib import Prog

NAME = "sequential_preLN__ssm_conv_h3__glu_gated_glu__prompt_kernel"
TAGSLOT = 0
HC    = 0x080000
FL    = 0x0C0000
HI    = 0x1580000
OB    = 16640
KVBOX = 0x100000
YBOX  = 0x520000
HN    = 0x940000
HRES  = 0xB40000
HH    = 0xD40000
GS    = 4480
STAMPS = 0x1500000
WS_BYTES = 0x1600000
SRD = dict(X=8, K=12, V=16, SHK=20, SSMK=24, SSMD=28, WG=32, WU=36, WD=40, OUT=44, WS=48)
KOFF = dict(X=0, K=8, V=16, SHK=24, SSMK=32, SSMD=40, WG=56, WU=64, WD=72, OUT=80, WS=96)
SIZE = dict(X=2097152, K=2097152, V=2097152, SHK=4096, SSMK=2097152, SSMD=1024, WG=1835008, WU=1835008, WD=1835008, OUT=2097152, WS=WS_BYTES)
def srd(n): return f"s[{SRD[n]}:{SRD[n]+3}]"
WS = srd("WS")
sHNst, sWM, sBIG, sRING, sW, sFLst, sFLld, sG, sJ, sTAG, sLO, sHI, sMASK, sHRES, sT = [f"s{i}" for i in range(52, 67)]
sJL, sO0, sO1, sHS0, sHS1, sSB, sHCst, sE, sSPIN, sHR0, sHR1, sPH1, sL3 = [f"s{i}" for i in range(67, 80)]
sWD = 80
sHC = 87
sPH0, sP, sF0 = "s95", "s96", "s97"
sC = sP
sWT = 12
sHL = 8
sHN = 22
def vr(b, n): return f"v[{b}:{b+n-1}]" if n > 1 else f"v{b}"
def ar(b, n): return f"a[{b}:{b+n-1}]" if n > 1 else f"a{b}"
def L(text): return [l for l in text.split("\n") if l.strip()]
def take(l, n):
    o = l[:n]; del l[:n]; return o

WGB, WUB = 0, 65536
PART = 131072; FC = 96256; CS2 = 4352
KVR = 131072; KVCH = 4608
RING = 131072; NR = 7
STAT = 163840 - 512
BS = 1088; REDW = 16*BS
LDS_BYTES = 163840
SPIN = 20000

class G(Prog):
    def __init__(self, stamps=False):
        super().__init__(); self.nvm = 0; self.nds = 0; self.vmdone = 0; self.dsdone = 0
        self.marks = {}; self.dmarks = {}; self.stamps = stamps; self.tail = []; self.only = None; self.stn = ["start"]
    def __call__(self, text):
        if isinstance(text, list):
            for t in text: self(t)
            return
        for l in text.split("\n"):
            s = l.strip()
            if not s: continue
            if s.startswith("WAIT:"): self.vmwait(s[5:]); continue
            if s.startswith("MARK:"): self.mark(s[5:]); continue
            if s.startswith("DWAIT:"): self.dwait(s[6:]); continue
            if s.startswith("DMARK:"): self.dmarks[s[6:]] = self.nds; continue
            if s == "SKIP": continue
            if s.startswith(("buffer_", "global_")): self.nvm += 1
            if s.startswith("ds_"): self.nds += 1
            if s.startswith("s_waitcnt"):
                m = re.search(r"vmcnt\((\d+)\)", s)
                if m: self.vmdone = max(self.vmdone, self.nvm - int(m.group(1)))
                m = re.search(r"lgkmcnt\((\d+)\)", s)
                if m: self.dsdone = max(self.dsdone, self.nds - int(m.group(1)))
            self.lines.append(l.rstrip())
    def mark(self, name): self.marks[name] = self.nvm
    def vmwait(self, name):
        if self.vmdone < self.marks[name]: self(f" s_waitcnt vmcnt({min(self.nvm - self.marks[name], 63)})")
    def dwait(self, name):
        if self.dsdone < self.dmarks[name]: self(f" s_waitcnt lgkmcnt({min(self.nds - self.dmarks[name], 15)})")
    def cost(self, s):
        t = s.strip()
        if t.startswith(("MARK:", "DMARK:")): return 0
        if t.startswith("WAIT:"): return 0 if self.vmdone >= self.marks[t[5:]] else 1
        if t.startswith("DWAIT:"): return 0 if self.dsdone >= self.dmarks[t[6:]] else 1
        if t == "SKIP": return 3
        if t.startswith(("v_exp", "v_rcp")): return 2
        return 1
    def st(self, i):
        if self.stamps and (self.only is None or i in self.only):
            if i not in self.stn: self.stn.append(i)
            self.lines += [" s_memrealtime s[98:99]", " s_waitcnt lgkmcnt(0)", f" v_writelane_b32 v11, s98, {self.stn.index(i)}"]
def interleave(P, work, bulk, every):
    n = 0
    for wk in work:
        P(wk); n += 1
        if bulk and n % every == 0: P(bulk.pop(0))

vK, vW, vV, vKS, vT = 144, 164, 180, 188, 204
vD, vQ, vX = 220, 224, 240
vBB = [8, 10, 248, 249]
vSW, vDUM, vR, vWD = 250, 251, 252, 254
vWr = (8, 255)
vA, vAx, vB, vIN, aC = 16, 144, 144, 160, 224
vq, vu1 = 208, 224
vONE, vTG, vC, vHC, vHC1, vPH, vHASH, vL2, vOUT, vPD, vHP = 7, 10, 2, 252, 253, 220, 222, 223, 9, 5, 224
vHN, vRa = 16, 12
acc0, acc1, acc2, vE = 80, 144, 16, 240
CHN = [208, 209, 210, 211]
CHH = {(0,i): 212+i for i in range(7)}
CHH.update({(1,0):208,(1,1):209,(1,2):210,(1,3):211,(1,4):219,(1,5):221,(1,6):212})
HREG = {(0,0):224, (0,1):80, (0,2):96, (0,3):112, (0,4):128, (0,5):48, (0,6):64,
        (1,0):144, (1,1):160, (1,2):176, (1,3):192, (1,4):224, (1,5):80, (1,6):96}

def srdc(names): return [x for n in names for x in (f" s_mov_b32 s{SRD[n]+2}, {SIZE[n]}", f" s_mov_b32 s{SRD[n]+3}, 0x20000")]
def entry(P, cfg):
    P(" s_cmp_ge_u32 s2, 256\n s_cbranch_scc1 L_end")
    if P.stamps: P(" s_memrealtime s[98:99]")
    for n in ("K","V","SHK","WS","SSMK","X","SSMD","WD","WG","WU","OUT"):
        P(f" s_load_dwordx2 s[{SRD[n]}:{SRD[n]+1}], s[0:1], {KOFF[n]}")
        if n == cfg["pf_after"]:
            P(f"""
 s_getpc_b64 s[4:5]
L_pc:
 s_bfe_u32 s3, s2, 0x30003
 s_lshl_b32 s3, s3, 12
 v_lshlrev_b32 v4, 7, v0
 v_add_u32 v5, s3, v4
 v_cmp_gt_u32 vcc, 32, v0
 v_cndmask_b32 v4, v5, v4, vcc
 v_min_u32 v4, L_codeend-L_pc-4, v4
 v_cmp_gt_u32 vcc, 64, v0
 s_and_saveexec_b64 s[6:7], vcc
 s_cbranch_execz L_nopf
 global_load_dword v{vDUM}, v4, s[4:5]
L_nopf:
 s_mov_b64 exec, s[6:7]
""")
    P(f"""
 s_and_b32 s3, s2, 7
 s_lshl_b32 s3, s3, 5
 s_lshr_b32 {sP}, s2, 3
 s_or_b32 {sP}, {sP}, s3
 v_lshrrev_b32 v4, 6, v0
 v_and_b32 v1, 3, v0
 v_readfirstlane_b32 {sW}, v4
 v_lshrrev_b32 v2, 2, v0
 s_lshl_b32 s3, {sP}, 13
 v_lshlrev_b32 v3, 11, v1
 v_lshl_add_u32 v3, v2, 4, v3
 v_add_u32 v3, s3, v3
 v_subrev_u32 v4, 3072, v3
 v_subrev_u32 v5, 2048, v3
 v_subrev_u32 v8, 1024, v3
 v_lshlrev_b32 v9, 4, v0
""")
    P(srdc(("K","V","SHK")))
    pre2 = L(f"""
 v_and_b32 v6, 63, v0
 v_lshlrev_b32 v6, 4, v6
 s_lshl_b32 {sF0}, {sC}, 1
 s_lshr_b32 s7, {sW}, 1
 s_add_u32 {sF0}, {sF0}, s7
 s_lshl_b32 {sF0}, {sF0}, 12
 s_mul_i32 s7, {sW}, {2*CS2}
 s_add_u32 s7, s7, {FC}
 s_bitcmp1_b32 {sW}, 0
 s_cselect_b32 s3, 160, 0
 s_cselect_b32 {sT}, 32, 128
 s_cselect_b32 s5, 8, 0
 s_add_u32 s3, s3, s7
 s_add_u32 {sT}, {sT}, s7
 s_add_u32 {sT}, {sT}, {CS2}
 v_mov_b32 v12, 0
 v_and_b32 v14, 7, v0
 v_lshl_add_u32 v13, v14, 2, s3
 v_lshl_add_u32 v14, v14, 2, {sT}
 ds_write_b32 v13, v12
 ds_write_b32 v14, v12
 s_sub_u32 s3, s3, s5
 s_sub_u32 {sT}, {sT}, s5
 s_add_u32 m0, s3, 32
 s_mul_i32 s4, {sP}, {OB}
 s_add_u32 s4, s4, {KVBOX}
 s_add_u32 s5, s4, 4096
 s_add_u32 s6, s4, 8192
 s_add_u32 s7, s4, 12288
 s_mov_b32 {sLO}, 0x05040100
 s_mov_b32 {sHI}, 0x07060302
 s_mov_b32 {sMASK}, 0xffff0000
 s_mov_b32 {sSPIN}, {SPIN}
 v_lshlrev_b32 v7, 4, v2""") + srdc(("SSMK","WS","X","SSMD","WD")) + [f" v_mov_b32 v{vKS+i}, 0" for i in range(16)]
    P(pre2)
    if P.stamps: P(" v_mov_b32 v11, 0\n s_waitcnt lgkmcnt(0)\n v_writelane_b32 v11, s98, 0"); P.st("karg")
    P(f"""
 s_waitcnt lgkmcnt(0)
 buffer_load_dwordx4 {vr(vK,4)}, v4, {srd('K')}, 0 offen nt
 buffer_load_dwordx4 {vr(vK+4,4)}, v5, {srd('K')}, 0 offen nt
 buffer_load_dwordx4 {vr(vK+8,4)}, v8, {srd('K')}, 0 offen nt
 buffer_load_dwordx4 {vr(vK+12,4)}, v3, {srd('K')}, 0 offen nt
 buffer_load_dwordx4 {vr(vK+16,4)}, v3, {srd('K')}, 0 offen offset:1024 nt
 buffer_load_dwordx4 {vr(vV,4)}, v3, {srd('V')}, 0 offen nt
 buffer_load_dwordx4 {vr(vV+4,4)}, v3, {srd('V')}, 0 offen offset:1024 nt
 buffer_load_dwordx4 {vr(vW,4)}, v9, {srd('SHK')}, 0 offen
MARK:L1
 s_load_dword {sTAG}, s[{SRD['WS']}:{SRD['WS']+1}], {TAGSLOT}
""")
def filter_dma(cfg):
    nt = cfg["fnt"]
    o = [f" buffer_load_dwordx4 v6, {srd('SSMK')}, {sF0} offen offset:{1024*i} {nt} lds" for i in range(4)]
    o.append(f" s_add_u32 m0, {sT}, 28")
    o += [f" buffer_load_dwordx4 v6, {srd('SSMK')}, {sF0} offen offset:{1024*i} {nt} lds" for i in range(4)]
    return o + ["MARK:A"]
def x_loads():
    return [f" buffer_load_dwordx4 {vr(vX,4)}, v3, {srd('X')}, 0 offen nt",
            f" buffer_load_dwordx4 {vr(vX+4,4)}, v3, {srd('X')}, 0 offen offset:1024 nt",
            f" buffer_load_dwordx4 {vr(vD,4)}, v7, {srd('SSMD')}, 0 offen", "MARK:X"]
def tag_setup():
    return [" s_waitcnt lgkmcnt(0)", f" s_add_u32 {sTAG}, {sTAG}, 0x9E3779B1"] + [f" v_mov_b32 v{vQ+2*t+1}, {sTAG}" for t in range(8)]
def p0_kv(P):
    Krow = lambda i, d: vK + 4*i + d
    prs = [(3,2),(1,0),(4,3),(2,1)]
    for t in range(4):
        T = vT + 8*(t & 1)
        for c in range(2):
            for n,(x,y) in enumerate(prs):
                P(f" v_perm_b32 v{T+4*c+n}, v{Krow(y,t)}, v{Krow(x,t)}, {sHI if c else sLO}")
        ks = vKS + 4*t
        qp = f"quad_perm:[{t},{t},{t},{t}] row_mask:0xf bank_mask:0xf"
        for hi in (1, 0):
            for c in range(2):
                P(f" v_dot2c_f32_bf16_dpp v{ks+c}, v{vW+2*c+hi}, v{T+4*c+hi} {qp}")
                P(f" v_dot2c_f32_bf16_dpp v{ks+2+c}, v{vW+2*c+hi}, v{T+4*c+2+hi} {qp}")
        P(f""" v_lshlrev_b32 v{T}, 16, v{vV+t}
 v_and_b32 v{T+1}, {sMASK}, v{vV+t}
 v_lshlrev_b32 v{T+2}, 16, v{vV+4+t}
 v_and_b32 v{T+3}, {sMASK}, v{vV+4+t}
 v_pk_mul_f32 {vr(ks,2)}, {vr(ks,2)}, {vr(T,2)}
 v_pk_mul_f32 {vr(ks+2,2)}, {vr(ks+2,2)}, {vr(T+2,2)}
 v_cvt_pk_bf16_f32 v{vQ+4*t}, v{ks}, v{ks+1}
 v_cvt_pk_bf16_f32 v{vQ+4*t+2}, v{ks+2}, v{ks+3}
 buffer_store_dwordx4 {vr(vQ+4*t,4)}, v9, {WS}, s{4+t} offen sc1""")
def wd_mall():
    return L(f""" s_lshl_b32 s100, s2, 2
 s_add_u32 s100, s100, {sW}
 s_mul_i32 s100, s100, 1792
 v_lshlrev_b32 v4, 3, v6
 v_min_u32 v4, {13*128}, v4
 buffer_load_dword v{vDUM}, v4, {srd('WD')}, s100 offen""")
def a_consts():
    return L(f"""
 v_and_b32 v4, 15, v0
 v_add_u32 v4, 1, v4
 v_bfe_u32 v15, v4, 1, 2
 v_lshlrev_b32 v12, 3, v15
 s_mov_b32 s3, 0x020A0800
 v_bfe_u32 v12, s3, v12, 8
 v_mul_u32_u24 v15, {CS2}, v15
 v_lshrrev_b32 v4, 3, v4
 v_add_u32 v4, v4, v12
 v_lshl_add_u32 v15, v4, 4, v15
 v_bfe_u32 v4, v0, 4, 3
 v_lshl_add_u32 v15, v4, 6, v15
 s_lshr_b32 s3, {sW}, 1
 s_mul_i32 s3, s3, {4*CS2}
 s_add_u32 s3, s3, {FC}
 v_add_u32 v15, s3, v15
 v_and_b32 v12, 1, v0
 v_mul_u32_u24 v12, 0x020202, v12
 v_lshl_or_b32 v12, v12, 8, v12
 v_sub_u32 v12, 0x05040302, v12""")
def a_prep():
    def rd(a): return [f" ds_read_b128 {vr(vA+16*a+4*bb,4)}, v15 offset:{512*a+16*bb}" for bb in range(4)] + [f" ds_read_b32 v{vAx+a}, v15 offset:{512*a+64}", f"DMARK:a{a}"]
    o = rd(0) + rd(1)
    for a in range(8):
        if a+2 < 8: o += rd(a+2)
        o.append(f"DWAIT:a{a}")
        for i in range(16):
            nxt = vA+16*a+i+1 if i < 15 else vAx+a
            o.append(f" v_perm_b32 v{vA+16*a+i}, v{nxt}, v{vA+16*a+i}, v12")
    return o
def roles():
    t = 168
    o = L(f"""
 s_bfe_u32 {sL3}, s2, 0x20003
 s_lshr_b32 {sJL}, s2, 5
 s_and_b32 s3, s2, 1
 s_lshl_b32 s3, s3, 2
 s_add_u32 {sG}, s3, {sL3}
 s_bfe_u32 s3, s2, 0x20001
 s_mul_i32 s3, s3, 7
 s_add_u32 {sJ}, s3, {sJL}
 s_cmp_ge_u32 {sJL}, 7
 s_cselect_b32 s{SRD['WG']+2}, 0, {SIZE['WG']}
 s_mov_b32 s{SRD['WG']+3}, 0x20000
 s_mov_b32 s{SRD['WU']+2}, s{SRD['WG']+2}
 s_mov_b32 s{SRD['WU']+3}, 0x20000
 v_bfe_u32 v{t+1}, v0, 3, 3
 v_and_b32 v{t+3}, 7, v0
 v_mul_u32_u24 v{t+2}, 3584, v{t+1}
 v_and_b32 v{t+4}, 2, v{t+1}
 v_xor_b32 v{t+5}, v{t+3}, v{t+4}
 s_lshl_b32 s3, {sJ}, 7
 v_add_u32 v{t+2}, s3, v{t+2}
 v_lshl_add_u32 v{vR}, v{t+5}, 4, v{t+2}
 v_xor_b32 v{t+5}, 4, v{t+5}
 v_lshl_add_u32 v{vR+1}, v{t+5}, 4, v{t+2}
 v_lshlrev_b32 v{t+4}, 1, v{t+4}
 v_xor_b32 v{t+3}, v{t+3}, v{t+4}
 v_lshlrev_b32 v{t+1}, 10, v{t+1}
 v_lshl_add_u32 v{vWD}, v{t+3}, 4, v{t+1}""")
    return o
def w_table():
    o = L(f""" s_lshl_b32 s100, {sL3}, 4
 s_and_b32 s3, s2, 1
 s_lshl_b32 s3, s3, 3
 s_add_u32 s100, s100, s3
 s_add_u32 s100, s100, {sW}
 s_lshl_b32 s3, {sJL}, 3
 s_sub_u32 {sWM}, s100, s3
 s_lshl_b32 {sWM}, {sWM}, 10""")
    for idx in range(16): o += [f" s_add_u32 s3, s100, {4*idx}", " s_and_b32 s3, s3, 63", f" s_mul_i32 s{sWT+idx}, s3, {8*3584}"]
    return o
def w_pair(idx, nt):
    return [f" s_add_u32 s101, {sWM}, {idx*4096}\n s_and_b32 m0, s101, 0xffff", f" buffer_load_dwordx4 v{vR}, {srd('WG')}, s{sWT+idx} offen {nt} lds",
            f" s_add_u32 m0, m0, 65536", f" buffer_load_dwordx4 v{vR+1}, {srd('WU')}, s{sWT+idx} offen {nt} lds"]
def conv_setup():
    t = 176
    o = L(f"""
 v_mov_b32 v{t}, 0
 v_and_b32 v13, 127, v0
 v_lshlrev_b32 v13, 2, v13
 v_lshrrev_b32 v14, 7, v0
 v_mul_u32_u24 v14, {KVCH}, v14
 s_mov_b32 s3, {KVR+4096}
 v_add3_u32 v13, v13, v14, s3
 ds_write_b32 v13, v{t}
 v_and_b32 v13, 15, v0
 v_lshlrev_b32 v13, 5, v13
 v_bfe_u32 v14, v0, 4, 3
 v_lshlrev_b32 v14, 6, v14
 v_sub_u32 v14, v14, v13
 v_add_u32 v14, 480, v14
 s_lshr_b32 s3, {sW}, 1
 s_mul_i32 s3, s3, {KVCH}
 s_add_u32 s3, s3, {KVR}""")
    for bb in range(4):
        o += L(f""" v_add_u32 v13, {16*bb}, v14
 v_lshrrev_b32 v{t+1}, 4, v13
 v_and_b32 v{t+1}, 16, v{t+1}
 v_xor_b32 v13, v13, v{t+1}
 v_add_u32 v{vBB[bb]}, s3, v13""")
    o += L(f"""
 v_lshlrev_b32 v13, 2, v0
 v_sub_u32 v13, 1020, v13
 v_lshrrev_b32 v{t+1}, 4, v13
 v_and_b32 v{t+1}, 16, v{t+1}
 v_xor_b32 v13, v13, v{t+1}
 v_add_u32 v13, {KVR}, v13
 v_mul_u32_u24 v14, {OB}, v2
 v_lshl_add_u32 v14, v1, 4, v14""")
    return o
def h1_addr():
    return L(f"""
 s_and_b32 s4, {sC}, 3
 s_lshl_b32 s4, s4, 12
 s_lshr_b32 s3, {sC}, 2
 s_lshl_b32 s3, s3, 6
 s_add_u32 s4, s4, s3
 s_add_u32 s4, s4, {KVBOX}
 s_add_u32 s5, s4, {64*OB}
 s_add_u32 s6, s4, {128*OB}
 s_add_u32 s7, s4, {192*OB}""")
def box_recv(P, base, name, sleep, shadow=None):
    lds = [f" buffer_load_dwordx4 {vr(base+4*i,4)}, v14, {WS}, s{4+i} offen sc1" for i in range(4)]
    P(lds)
    if shadow: P(shadow)
    P(f"L_{name}:")
    P(" s_waitcnt vmcnt(0)")
    P(f" v_xor_b32 v4, {sTAG}, v{base+1}")
    for i in range(1, 8): P(f" v_bitop3_b32 v4, v4, v{base+2*i+1}, {sTAG} bitop3:0xf6")
    P(f" v_cmp_ne_u32 vcc, 0, v4\n s_cbranch_vccnz L_{name}_r\nL_{name}_ok:\n s_mov_b64 exec, -1")
    P.tail += L(f"""L_{name}_r:
 s_mov_b64 exec, vcc
 s_sleep {sleep}""") + lds + L(f""" s_sub_u32 {sSPIN}, {sSPIN}, 1
 s_cbranch_scc0 L_{name}
 s_mov_b32 {sSPIN}, 0
 s_waitcnt vmcnt(0)
 s_branch L_{name}_ok""")
def canary_issue(cfg, stride):
    m = cfg["cmask"]
    return L(f"""
 s_bfe_u32 {sT}, {sP}, 0x20003
 s_mul_i32 {sT}, {sT}, {stride}
 s_add_u32 {sT}, {sT}, s4
 s_bfe_u32 s3, {sP}, 0x20001
 s_lshl_b32 s3, s3, 2
 s_mov_b32 s100, {m}
 s_mov_b32 s101, {m}
 s_lshl_b64 s[100:101], s[100:101], s3
 v_mov_b32 v7, {sTAG}
 s_mov_b64 exec, s[100:101]
 buffer_load_dword v7, v14, {WS}, {sT} offen offset:4 sc1
 s_mov_b64 exec, -1
MARK:can""")
def canary_check(P, name, sleep):
    P.tail += L(f"""L_{name}_r:
 s_sub_u32 {sSPIN}, {sSPIN}, 1
 s_cbranch_scc1 L_{name}_x
 s_mov_b64 exec, vcc
 s_sleep {sleep}
 buffer_load_dword v7, v14, {WS}, {sT} offen offset:4 sc1
 s_mov_b64 exec, -1
 s_waitcnt vmcnt(0)
 v_cmp_ne_u32 vcc, {sTAG}, v7
 s_cbranch_vccnz L_{name}_r
 s_branch L_{name}_b
L_{name}_x:
 s_mov_b32 {sSPIN}, 0
 s_branch L_{name}_b""")
    return ["WAIT:can", f" v_cmp_ne_u32 vcc, {sTAG}, v7", f" s_cbranch_vccnz L_{name}_r", f"L_{name}_b:"]
def kv_to_lds(P):
    for i in range(4):
        P(f" v_perm_b32 v{vIN+4*i+1}, v{vIN+4*i}, v{vIN+4*i+2}, {sLO}")
        P(f" v_perm_b32 v{vIN+4*i+3}, v{vIN+4*i}, v{vIN+4*i+2}, {sHI}")
        P(f" ds_write2st64_b32 v13, v{vIN+4*i+1}, v{vIN+4*i+3} offset0:{(3-i)*4} offset1:{(3-i)*4+KVCH//256}")
    P(" s_waitcnt lgkmcnt(0)\n s_barrier")
QD = 144
def conv_epi_consts():
    return L(f"""
 v_bfe_u32 v13, v0, 4, 2
 v_lshlrev_b32 v14, 6, v13
 v_xor_b32 v13, v14, v6
 s_lshl_b32 s3, {sW}, 13
 s_add_u32 s3, s3, {PART}
 v_add_u32 v13, s3, v13
 v_bfe_u32 v15, v0, 1, 2
 v_bfe_u32 v14, v0, 3, 4
 v_lshlrev_b32 v12, 2, v15
 v_xor_b32 v14, v14, v12
 v_lshlrev_b32 v14, 4, v14
 v_lshl_add_u32 v14, v15, 8, v14
 v_lshrrev_b32 v15, 7, v0
 v_lshl_add_u32 v14, v15, 10, v14
 v_and_b32 v15, 1, v0
 v_lshl_add_u32 v14, v15, 3, v14
 v_add_u32 v14, {PART}, v14
 s_mul_i32 s4, {sC}, {OB}
 s_add_u32 s4, s4, {YBOX}
 s_add_u32 s5, s4, 4096
 s_add_u32 s6, s4, 8192
 s_add_u32 s7, s4, 12288""")
def conv_mfma(P, bulk, sched):
    extra = conv_epi_consts()
    def rd(bb): return [f" ds_read_b128 {vr(vB+32*(bb&1)+4*d,4)}, v{vBB[bb]} offset:{(7-d)*512}" for d in range(8)]
    def mf(j, a, bb, first): P(f" v_mfma_f32_16x16x32_bf16 {ar(aC+4*j,4)}, {vr(vA+16*a+4*bb,4)}, {vr(vB+32*(bb&1)+4*(j-a),4)}, {'0' if first else ar(aC+4*j,4)}")
    used = [0]
    def due(n):
        allowed = sum(min(2*c, max(0, (n - s0)//e + 1)) for (s0, c, e) in sched)
        return used[0] < allowed
    P(rd(0))
    n = 0
    for bb in range(3):
        pend = []
        for d in range(8):
            if d == 0 and bb == 0: P(" s_waitcnt lgkmcnt(7)")
            elif (bb == 0 and d == 1) or d == 0: P(" s_waitcnt lgkmcnt(0)")
            if d == 1: pend = rd(bb+1)
            for a in range(8-d):
                mf(a+d, a, bb, bb == 0 and d == 0); n += 1
                if pend: P(pend.pop(0))
                elif bulk and due(n): P(bulk.pop(0)); used[0] += 1
                elif extra: P(extra.pop(0))
    P(extra)
    P(" s_waitcnt lgkmcnt(0)\n s_barrier")
    tags = [f" v_mov_b32 v{QD+2*i+1}, {sTAG}" for i in range(8)]
    wr = []; cnt = 0
    for j in range(8):
        for a in range(j+1):
            mf(j, a, 3, False); cnt += 1
            if wr and wr[0][1] + 4 <= cnt: P(wr.pop(0)[0])
            elif bulk and due(108 + cnt): P(bulk.pop(0)); used[0] += 1
            elif tags: P(tags.pop(0))
        wr.append((f" ds_write_b128 v13, {ar(aC+4*j,4)} offset:{j*1024}", cnt))
    P(tags)
    for x in wr: P(x[0])
def conv_epilogue(P):
    R = 16
    P(" s_waitcnt lgkmcnt(0)\n s_barrier")
    for i in range(4):
        for c in range(2): P(f" ds_read2st64_b64 {vr(R+8*i+4*c,4)}, v14 offset0:{4*i+32*c} offset1:{4*i+32*c+16}")
    for i in range(4):
        P(f" s_waitcnt lgkmcnt({6-2*i})")
        b = R+8*i
        P(f""" v_pk_add_f32 {vr(b,2)}, {vr(b,2)}, {vr(b+2,2)}
 v_pk_add_f32 {vr(b+4,2)}, {vr(b+4,2)}, {vr(b+6,2)}
 v_cvt_pk_bf16_f32 v{QD+4*i}, v{b}, v{b+4}
 v_cvt_pk_bf16_f32 v{QD+4*i+2}, v{b+1}, v{b+5}
 buffer_store_dwordx4 {vr(QD+4*i,4)}, v9, {WS}, s{4+i} offen sc1""")

vSR = 15
def stat_consts():
    return L(f"""
 v_bfe_u32 v{vSW}, v0, 4, 4
 v_lshl_add_u32 v{vSW}, v1, 4, v{vSW}
 v_lshlrev_b32 v{vSW}, 2, v{vSW}
 v_add_u32 v{vSW}, {STAT}, v{vSW}
 v_lshlrev_b32 v{vSR}, 6, v1
 v_add_u32 v{vSR}, {STAT}, v{vSR}
 s_mov_b32 s30, 0x3b000000
 s_mov_b32 s31, 0x3b000000""")
def row_stats(src, tmp, off, mr, shadow):
    o = []
    a = tmp+8
    for r in range(2):
        b = src+8*r
        o.append(f" v_pk_add_f32 {vr(a+4*r,2)}, {vr(b,2)}, {vr(b+2,2)}")
        o.append(f" v_pk_mul_f32 {vr(a+4*r+2,2)}, {vr(b,2)}, {vr(b,2)}")
    for i in range(1, 4):
        for r in range(2):
            b = src+8*r+2*i
            if i >= 2: o.append(f" v_pk_add_f32 {vr(a+4*r,2)}, {vr(a+4*r,2)}, {vr(b,2)}")
            o.append(f" v_pk_fma_f32 {vr(a+4*r+2,2)}, {vr(b,2)}, {vr(b,2)}, {vr(a+4*r+2,2)}")
    for k in range(4): o.append(f" v_add_f32 v{tmp+k}, v{a+2*k}, v{a+2*k+1}")
    sh = list(shadow)
    def S(n): return take(sh, n)
    o += S(2) + [f" v_permlane32_swap_b32 v{tmp}, v{tmp+1}", f" v_permlane32_swap_b32 v{tmp+2}, v{tmp+3}",
          f" v_add_f32 v{tmp}, v{tmp}, v{tmp+1}", f" v_add_f32 v{tmp+2}, v{tmp+2}, v{tmp+3}"] + S(2) + \
         [f" v_permlane16_swap_b32 v{tmp}, v{tmp+2}", f" v_add_f32 v{tmp}, v{tmp}, v{tmp+2}"] + S(2) + \
         [f" v_add_f32_dpp v{tmp}, v{tmp}, v{tmp} row_ror:4 row_mask:0xf bank_mask:0xf"] + S(2) + \
         [f" v_add_f32_dpp v{tmp}, v{tmp}, v{tmp} row_ror:8 row_mask:0xf bank_mask:0xf", f" ds_write_b32 v{vSW}, v{tmp} offset:{off}"] + S(8) + \
         [" s_waitcnt lgkmcnt(0)", " s_barrier"] + \
         [f" ds_read_b128 {vr(tmp+8+4*k,4)}, v{vSR} offset:{off+16*k}" for k in range(4)] + S(99) + [" s_waitcnt lgkmcnt(0)"]
    o += L(f"""
 v_pk_add_f32 {vr(a,2)}, {vr(a,2)}, {vr(a+4,2)}
 v_pk_add_f32 {vr(a+8,2)}, {vr(a+8,2)}, {vr(a+12,2)}
 v_pk_add_f32 {vr(a+2,2)}, {vr(a+2,2)}, {vr(a+6,2)}
 v_pk_add_f32 {vr(a+10,2)}, {vr(a+10,2)}, {vr(a+14,2)}
 v_pk_add_f32 {vr(tmp,2)}, {vr(a,2)}, {vr(a+8,2)}
 v_pk_add_f32 {vr(tmp+2,2)}, {vr(a+2,2)}, {vr(a+10,2)}
 v_pk_mul_f32 {vr(tmp,2)}, {vr(tmp,2)}, s[30:31]
 v_pk_mul_f32 {vr(tmp+2,2)}, {vr(tmp+2,2)}, s[30:31]
 v_pk_fma_f32 {vr(tmp+2,2)}, {vr(tmp,2)}, {vr(tmp,2)}, {vr(tmp+2,2)} neg_lo:[1,0,0] neg_hi:[1,0,0]
 v_cvt_pk_bf16_f32 v{tmp+4}, v{tmp}, v{tmp+1}
 v_max_f32 v{tmp+2}, 0, v{tmp+2}
 v_max_f32 v{tmp+3}, 0, v{tmp+3}
 v_cvt_pk_bf16_f32 v{tmp+5}, v{tmp+2}, v{tmp+3}
 v_lshlrev_b32 v{tmp+2}, 16, v{tmp+5}
 v_and_b32 v{tmp+3}, {sMASK}, v{tmp+5}
 v_add_f32 v{tmp+2}, 0x3727c5ac, v{tmp+2}
 v_add_f32 v{tmp+3}, 0x3727c5ac, v{tmp+3}
 v_cvt_pk_bf16_f32 v{tmp+5}, v{tmp+2}, v{tmp+3}
 v_lshlrev_b32 v{tmp+2}, 16, v{tmp+5}
 v_and_b32 v{tmp+3}, {sMASK}, v{tmp+5}
 v_sqrt_f32 v{tmp+2}, v{tmp+2}
 v_sqrt_f32 v{tmp+3}, v{tmp+3}
 v_lshlrev_b32 v{mr}, 16, v{tmp+4}
 v_cvt_pk_bf16_f32 v{tmp+5}, v{tmp+2}, v{tmp+3}
 v_lshlrev_b32 v{tmp+2}, 16, v{tmp+5}
 v_and_b32 v{tmp+3}, {sMASK}, v{tmp+5}
 v_rcp_f32 v{mr+2}, v{tmp+2}
 v_rcp_f32 v{mr+3}, v{tmp+3}
 v_and_b32 v{mr+1}, {sMASK}, v{tmp+4}
 v_pk_mul_f32 {vr(mr,2)}, {vr(mr,2)}, {vr(mr+2,2)} neg_lo:[1,0] neg_hi:[1,0]""")
    return o
def norm_row(dst, src, mr, row):
    sel = f"op_sel:[0,{row},{row}] op_sel_hi:[1,{row},{row}]"
    return [f" v_pk_fma_f32 {vr(dst+8*row+2*i,2)}, {vr(src+8*row+2*i,2)}, {vr(mr+2,2)}, {vr(mr,2)} {sel}" for i in range(4)]
def unpack(dst, src): return [f" v_lshlrev_b32 v{dst}, 16, v{src}", f" v_and_b32 v{dst+1}, {sMASK}, v{src}"]
def ln1():
    tmp = 176; mr = 200; kd = 160
    o = []
    for r in range(2):
        for t in range(4): o += unpack(kd+8*r+2*t, vQ+4*t+2*r)
    for i in range(8): o += unpack(vu1+2*i, vX+i)
    sh = []
    for i in range(4): sh += unpack(vX+2*i, vD+i)
    for r in range(2):
        for t in range(4): sh.append(f" v_pk_mul_f32 {vr(kd+8*r+2*t,2)}, {vr(kd+8*r+2*t,2)}, {vr(vX+2*t,2)}")
    o += row_stats(vu1, tmp, 0, mr, sh)
    o += norm_row(vq, vu1, mr, 0) + norm_row(vq, vu1, mr, 1)
    for i in range(8): o.append(f" v_pk_fma_f32 {vr(vu1+2*i,2)}, {vr(vq+2*i,2)}, {vr(kd+2*i,2)}, {vr(vu1+2*i,2)}")
    return o
vY = 64
def ln2(P):
    vh, vn, tmp, mr = 80, 104, 112, 136
    for r in range(2):
        for t in range(4): P(unpack(vh+8*r+2*t, vY+4*t+2*r))
    for i in range(8): P(f" v_pk_fma_f32 {vr(vh+2*i,2)}, {vr(vq+2*i,2)}, {vr(vh+2*i,2)}, {vr(vu1+2*i,2)}")
    sh = [f" v_cvt_pk_bf16_f32 v{vHP+i}, v{vh+2*i}, v{vh+2*i+1}" for i in range(8)]
    for i in range(8): sh += unpack(vh+2*i, vHP+i)
    P(row_stats(vh, tmp, 256, mr, sh))
    for r in range(2):
        P(norm_row(vh, vh, mr, r))
        for i in range(4*r, 4*r+4): P(f" v_cvt_pk_bf16_f32 v{vn+i}, v{vh+2*i}, v{vh+2*i+1}")
        P(f" buffer_store_dwordx4 {vr(vn+4*r,4)}, v5, {WS}, {sHNst} offen offset:{64*r} sc1")
        P(f" v_xad_u32 v{tmp+r}, v{vn+4*r}, v{vn+4*r+1}, v{vn+4*r+2}\n v_add_u32 v{tmp+r}, v{tmp+r}, v{vn+4*r+3}")
    P(f"""
 v_permlane16_swap_b32 v{tmp}, v{tmp+1}
 v_add_u32 v{tmp}, v{tmp}, v{tmp+1}
 v_add_u32_dpp v{tmp}, v{tmp}, v{tmp} row_ror:8 row_mask:0xf bank_mask:0xf
 v_add_u32 v{tmp}, {sTAG}, v{tmp}
 buffer_store_dword v{tmp}, v{vC}, {WS}, {sHCst} offen sc1
""")
    if P.cfg["hnh"]: P(f" buffer_store_dword v{vY+1}, v13, {WS}, {sF0} offen sc1")
def h2_consts():
    return L(f"""
 v_mul_u32_u24 v14, {4*OB}, v2
 v_lshl_add_u32 v14, v1, 4, v14
 v_lshlrev_b32 v5, 9, v2
 v_lshl_add_u32 v5, v1, 4, v5
 v_lshrrev_b32 v{vC}, 2, v6
 v_add_u32 v{vC}, 4096, v{vC}
 s_lshr_b32 {sHNst}, {sP}, 2
 s_lshl_b32 {sHNst}, {sHNst}, 15
 s_and_b32 s3, {sP}, 3
 s_lshl_b32 s3, s3, 7
 s_add_u32 {sHNst}, {sHNst}, s3
 s_add_u32 {sHNst}, {sHNst}, {HN}
 s_lshl_b32 {sHCst}, {sP}, 2
 s_add_u32 {sHCst}, {sHCst}, {sW}
 s_lshl_b32 {sF0}, {sHCst}, 9
 s_add_u32 {sF0}, {sF0}, {HI}
 v_lshrrev_b32 v13, 6, v6
 v_lshlrev_b32 v13, 25, v13
 v_lshl_add_u32 v13, v1, 7, v13
 s_lshl_b32 {sFLst}, {sHCst}, 6
 s_add_u32 {sFLst}, {sFLst}, {FL-4352}
 s_lshl_b32 {sHCst}, {sHCst}, 8
 s_add_u32 {sHCst}, {sHCst}, {HC-4096}
 s_lshl_b32 s4, {sP}, 6
 s_add_u32 s4, s4, {YBOX}
 s_add_u32 s5, s4, {OB}
 s_add_u32 s6, s4, {2*OB}
 s_add_u32 s7, s4, {3*OB}""")

def wd_consts(t):
    o = L(f"""
 s_and_b32 s3, s2, 7
 s_lshl_b32 s3, s3, 2
 s_add_u32 {sSB}, s3, {sL3}
 s_lshl_b32 {sE}, {sJL}, 7
 s_mul_i32 {sRING}, {sW}, {NR*1024}
 s_add_u32 {sRING}, {sRING}, {RING}
 s_lshl_b32 s3, {sL3}, 1
 s_add_u32 s3, s3, {sJL}
 s_mul_i32 s100, {sW}, {448*1024}
 s_add_u32 s100, s100, {sE}""")
    for i in range(7):
        o += L(f""" s_cmp_ge_u32 s3, 7
 s_cselect_b32 {sT}, 7, 0
 s_sub_u32 s3, s3, {sT}
 s_lshl_b32 {sT}, s3, 16
 s_add_u32 s{sWD+i}, {sT}, s100
 s_add_u32 s3, s3, 1""")
    return o
def wd_rconsts(t):
    return L(f"""
 v_bfe_u32 v{t}, v0, 5, 1
 v_bfe_u32 v{t+1}, v0, 4, 1
 v_bfe_u32 v{t+2}, v0, 2, 2
 v_lshl_add_u32 v{t}, v{t}, 2, v{t+2}
 v_lshlrev_b32 v{t}, 7, v{t}
 v_lshl_add_u32 v{t}, v1, 3, v{t}
 v_add_u32 v{t}, {sRING}, v{t}
 v_and_b32 v{t+2}, 2, v{t+2}
 v_or_b32 v{t+2}, v{t+2}, v{t+1}
 v_lshl_add_u32 v{vWr[0]}, v{t+2}, 5, v{t}
 v_xor_b32 v{t+2}, 2, v{t+2}
 v_lshl_add_u32 v{vWr[1]}, v{t+2}, 5, v{t}""")
def wd_dma(m, base=sRING, slot=None):
    i, r = m // 8, m & 7
    o = []
    if slot is None:
        slot = m % NR
        if m >= NR: o.append(f"DWAIT:wd{m-NR}")
    o.append(f" s_add_u32 m0, {base}, {slot*1024}")
    if r: o += [f" s_add_u32 s100, s{sWD+i}, {r*8192}", f" buffer_load_dwordx4 v{vWD}, {srd('WD')}, s100 offen lds"]
    else: o += [f" buffer_load_dwordx4 v{vWD}, {srd('WD')}, s{sWD+i} offen lds"]
    return o + [f"MARK:wd{m}"]
def wd_read(m, slot=None):
    d = (m >> 1)*8 + 2*(m & 1)
    if slot is None: slot = m % NR
    return [f"WAIT:wd{m}"] + [f" ds_read_b64_tr_b16 {ar(d+4*tau,2)}, v{vWr[tau]} offset:{slot*1024}" for tau in range(2)] + [f"DMARK:wd{m}"]
def wd_stream(d, rd, N):
    o = []
    while d < min(N, rd + NR - 1): o += wd_dma(d); d += 1
    for m in range(rd, N):
        o += wd_read(m)
        if d < N and d <= m + NR - 1: o += wd_dma(d); d += 1
    return o

def g_sconsts(nbig):
    o = [f" s_mul_i32 s3, {sSB}, {56*GS}", f" s_add_u32 s3, s3, {HH}"]
    for i in range(7):
        o += L(f""" s_lshr_b32 {sT}, s{sWD+i}, 16
 s_mul_i32 {sT}, {sT}, {GS}
 s_add_u32 s{sHL+i}, {sT}, s3
 s_add_u32 s{sHL+7+i}, s{sHL+i}, {28*GS}""")
    o += L(f"""
 s_lshl_b32 {sO0}, {sSB}, 16
 s_add_u32 {sO0}, {sO0}, {sE}
 s_add_u32 {sO1}, {sO0}, 32768
 s_add_u32 {sHR0}, {sO0}, {HRES}
 s_add_u32 {sHR1}, {sO1}, {HRES}
 s_mov_b32 {sHRES}, {HRES}
 s_lshl_b32 s3, {sG}, 2
 s_add_u32 s3, s3, {sW}
 s_mul_i32 {sHS0}, s3, 56
 s_add_u32 {sHS0}, {sHS0}, {sJ}
 s_mul_i32 {sHS0}, {sHS0}, {GS}
 s_add_u32 {sHS0}, {sHS0}, {HH}
 s_add_u32 {sHS1}, {sHS0}, {28*GS}
 s_lshl_b32 {sFLld}, s3, 13
 s_add_u32 {sFLld}, {sFLld}, {HC}
 s_lshl_b32 s3, s3, 16
 s_add_u32 s3, s3, {HN}""")
    for g in range(8):
        o += [f" s_add_u32 {sT}, {sJL}, {g}", f" s_and_b32 {sT}, {sT}, 7", f" s_lshl_b32 s{sHC+g}, {sT}, 7", f" s_add_u32 s{sHC+g}, s{sHC+g}, {sFLld}", f" s_lshl_b32 {sT}, {sT}, 12", f" s_add_u32 s{sHN+g}, {sT}, s3"]
    o += L(f"""
 s_lshl_b32 {sFLld}, {sSB}, 3
 s_add_u32 {sFLld}, {sFLld}, {sW}
 s_mul_i32 {sPH0}, {sFLld}, {7*GS}
 s_add_u32 {sPH0}, {sPH0}, {HH+4352}
 s_add_u32 {sPH1}, {sPH0}, {28*GS}
 s_lshl_b32 {sFLld}, {sFLld}, 2
 s_lshr_b32 s3, {sJL}, 1
 s_add_u32 {sFLld}, {sFLld}, s3
 s_lshl_b32 {sFLld}, {sFLld}, 6
 s_add_u32 {sFLld}, {sFLld}, {FL}
 s_and_b32 s3, {sW}, 1
 s_mul_i32 s3, s3, {nbig*1024}
 s_lshr_b32 {sBIG}, {sW}, 1
 s_lshl_b32 {sBIG}, {sBIG}, 16
 s_add_u32 {sBIG}, {sBIG}, s3""") + srdc(("OUT",))
    return o
def g_vconsts():
    t = 232
    o = L(f"""
 v_bfe_u32 v{t}, v0, 5, 1
 v_bfe_u32 v{t+1}, v0, 4, 1
 v_bfe_u32 v{t+2}, v0, 2, 2
 v_bfe_u32 v{vHC}, v0, 3, 2
 v_lshlrev_b32 v{vHC}, 10, v{vHC}
 v_lshl_add_u32 v{vHC}, v{t}, 4, v{vHC}
 v_lshl_add_u32 v{t}, v{t}, 3, v{t+2}
 v_lshlrev_b32 v{t+4}, 7, v{t}
 v_lshl_add_u32 v{t+4}, v1, 3, v{t+4}
 v_lshl_add_u32 v{t+4}, v{t+1}, 16, v{t+4}
 v_lshrrev_b32 v{t+2}, 1, v{t+2}
 v_lshl_add_u32 v{t+2}, v{t+1}, 1, v{t+2}
 v_add_u32 v{vL2}, 32768, v6""")
    for k in range(4): o += [f" v_xor_b32 v{t+3}, {k}, v{t+2}", f" v_lshl_add_u32 v{vRa+k}, v{t+3}, 5, v{t+4}"]
    o += L(f"""
 v_bfe_u32 v4, v0, 2, 1
 v_lshl_add_u32 v{vHC}, v4, 6, v{vHC}
 v_lshl_add_u32 v{vHC}, v1, 2, v{vHC}
 v_add_u32 v{vHC1}, 4096, v{vHC}
 v_lshrrev_b32 v{t}, 3, v0
 v_and_b32 v{t+1}, 24, v{t}
 v_and_b32 v{t+2}, 3, v{t}
 v_lshl_add_u32 v{t+1}, v{t+2}, 1, v{t+1}
 v_bfe_u32 v{t+2}, v{t}, 2, 1
 v_add_u32 v{t+1}, v{t+1}, v{t+2}
 v_lshlrev_b32 v{t+1}, 10, v{t+1}
 v_and_b32 v{t+2}, 7, v0
 v_lshl_add_u32 v{vOUT}, v{t+2}, 4, v{t+1}
 v_min_u32 v4, 6, v{t+2}
 v_mul_u32_u24 v{vPH}, {GS}, v4
 v_lshlrev_b32 v{vONE}, 21, v6
 v_add_u32 v{vONE}, 4352, v{vONE}
 v_mov_b32 v{vTG}, {sTAG}""")
    return o
HST = [f" buffer_store_dwordx4 {vr(vHP,4)}, v3, {WS}, {sHRES} offen sc1", f" buffer_store_dwordx4 {vr(vHP+4,4)}, v3, {WS}, {sHRES} offen offset:1024 sc1", "MARK:HST"]
FLAGST = f" buffer_store_dword v{vTG}, v{vONE}, {WS}, {sFLst} offen sc1"
def hn_regs(G_): return vHN + 16*(G_ % 4)
def hn_loads(G_):
    return [f" buffer_load_dwordx4 {vr(hn_regs(G_)+4*k,4)}, v{6 if G_ < 8 else vL2}, {WS}, s{sHN+(G_&7)} offen offset:{k*1024} sc1" for k in range(4)] + \
           [f" buffer_load_dword v{CHN[G_%4]}, v{vHC if G_ < 8 else vHC1}, {WS}, s{sHC+(G_&7)} offen sc1"]
def hh_loads(u, i):
    return [f" buffer_load_dwordx4 {vr(HREG[(u,i)]+4*t,4)}, v6, {WS}, s{sHL+7*u+i} offen offset:{t*1024} sc1" for t in range(4)] + \
           [f" buffer_load_dword v{CHH[(u,i)]}, v{vC}, {WS}, s{sHL+7*u+i} offen sc1"]
def hashchain(r, chk):
    o = []
    for f in range(4):
        b = r + 4*f
        o.append(f" v_xad_u32 v4, v{b}, v{b+1}, {sTAG if f == 0 else 'v4'}")
        o.append(f" v_add3_u32 v4, v4, v{b+2}, v{b+3}")
    return o + [f" v_cmp_ne_u32 vcc, v4, v{chk}"]
def retry_check(P, o, loads, later, name, sleep):
    blk = [f"L_{name}_r:", f" s_sub_u32 {sSPIN}, {sSPIN}, 1", f" s_cbranch_scc1 L_{name}_x", f" s_sleep {sleep}"] + loads + [" s_waitcnt vmcnt(0)"] + o + [f" s_cbranch_vccnz L_{name}_r"]
    blk += later + ([" s_waitcnt vmcnt(0)"] if later else []) + [f" s_branch L_{name}_b", f"L_{name}_x:", f" s_mov_b32 {sSPIN}, 0", f" s_branch L_{name}_b"]
    P.tail += blk
    return o + [f" s_cbranch_vccnz L_{name}_r\nL_{name}_b:"]
def hint_spin(name, s, back):
    return [f"L_{name}:", f" buffer_load_dword v{vPD}, v{vPH}, {WS}, {s} offen sc1", " s_waitcnt vmcnt(0)", f" v_cmp_ne_u32 vcc, {sTAG}, v{vPD}", f" s_cbranch_vccz {back}", " s_sleep 8",
            f" s_sub_u32 {sSPIN}, {sSPIN}, 1", f" s_cbranch_scc0 L_{name}", f" s_mov_b32 {sSPIN}, 0"]
def epi_tile(acc, ups, t, out, pk):
    o = []
    if pk:
        for i in range(4): o.append(f" v_pk_mul_f32 {vr(vE+2*i,2)}, {vr(acc+2*i,2)}, s[4:5]")
    else:
        for i in range(8): o.append(f" v_mul_f32 v{vE+i}, 0xbfb8aa3b, v{acc+i}")
    for i in range(8): o.append(f" v_exp_f32 v{vE+i}, v{vE+i}")
    if pk:
        for i in range(4): o.append(f" v_pk_add_f32 {vr(vE+2*i,2)}, {vr(vE+2*i,2)}, 1.0 op_sel_hi:[1,0]")
    else:
        for i in range(8): o.append(f" v_add_f32 v{vE+i}, 1.0, v{vE+i}")
    for i in range(8): o.append(f" v_rcp_f32 v{vE+i}, v{vE+i}")
    if pk:
        for i in range(4): o.append(f" v_pk_mul_f32 {vr(vE+2*i,2)}, {vr(vE+2*i,2)}, {vr(acc+8+2*i,2)}")
    else:
        for i in range(8): o.append(f" v_mul_f32 v{vE+i}, v{vE+i}, v{acc+8+i}")
    for i in range(4): o.append(f" v_cvt_pk_bf16_f32 v{out+i}, v{vE+2*i}, v{vE+2*i+1}")
    sb = sHS1 if ups else sHS0
    o.append(f" buffer_store_dwordx4 {vr(out,4)}, v6, {WS}, {sb} offen offset:{t*1024} sc1")
    o.append(f" v_xad_u32 v{vHASH}, v{out}, v{out+1}, {sTAG if t == 0 else 'v%d' % vHASH}")
    o.append(f" v_add3_u32 v{vHASH}, v{vHASH}, v{out+2}, v{out+3}")
    if t == 3:
        o.append(f" buffer_store_dword v{vHASH}, v{vC}, {WS}, {sb} offen sc1")
        o.append(f" buffer_store_dword v{vTG}, v{vONE}, {WS}, {sb} offen sc1")
    return o

def gemm1(P, cfg, wds):
    seq = [(u, k, t) for u in range(2) for k in range(32) for t in range(4)]
    D = 6; LA = 3
    MB = cfg["wd_big"]
    def reads(n):
        u, k, t = seq[n]; d = aC + 4*(n % 8)
        return [f" ds_read_b64_tr_b16 {ar(d+2*io,2)}, v{vRa+t} offset:{k*2048+io*512}" for io in range(2)] + [f"DMARK:w{n}"]
    def hn_issue(g): return hn_loads(g) + [f"MARK:hn{g}"]
    def hn_check(g):
        later = []
        for gg in range(g+1, min(16, g+LA)): later += hn_loads(gg)
        return [f"WAIT:hn{g}"] + retry_check(P, hashchain(hn_regs(g), CHN[g%4]), hn_loads(g), later, f"hn{g}", cfg["bo"])
    for n in range(D): P(reads(n))
    if cfg["hnh"]:
        hl = f" buffer_load_dword v{vPD}, v221, {WS}, {sF0} offen sc1"
        P(["WAIT:phn"] + retry_check(P, [f" v_cmp_ne_u32 vcc, {sTAG}, v{vPD}"], [hl], [], "phn", cfg["hbo"]))
    P.st("hint")
    for g in range(LA): P(hn_issue(g))
    P(hn_check(0))
    P.st("hn0")
    wq_ = list(wds); fill = []; urgent = []; wacc = 0.0
    for n, (u, k, t) in enumerate(seq):
        budget = cfg["slots"][u]
        g = 8*u + k//4
        if t == 0:
            if k % 4 == 0:
                while urgent: P(urgent.pop(0))
                if g + LA < 16: urgent = hn_issue(g + LA)
            if k % 4 == 3 and g + 1 < 16: urgent += hn_check(g + 1)
            if (u, k) == (1, 0):
                P.st("p0")
                fill = ["SKIP"]; held = []
                for tt in range(4):
                    for x in epi_tile(acc0+16*tt, 0, tt, acc0+16*tt, False):
                        (held if x.lstrip().startswith("buffer_store") else fill).append(x)
                fill += held + HST
        if n % 2 == 0: P(f"DWAIT:w{n+1}")
        else: budget -= 1
        a = (acc1 if u else acc0) + 16*t
        P(f" v_mfma_f32_32x32x16_bf16 {vr(a,16)}, {ar(aC+4*(n%8),4)}, {vr(hn_regs(g)+4*(k&3),4)}, {'0' if k == 0 else vr(a,16)}")
        if n + D < len(seq):
            P(reads(n+D)); budget -= 2
        wacc += cfg["wd_rate"][u]
        had = bool(fill)
        for q in (urgent, wq_, fill):
            while q and (budget >= P.cost(q[0]) or P.cost(q[0]) == 0):
                if q is wq_:
                    if wacc < 1 and P.cost(q[0]) > 0: break
                    wacc -= P.cost(q[0])
                x = q.pop(0); budget -= P.cost(x); P(x)
        if had and not fill: print("epilogue0 done at k", k)
    print('left: wd', len(wq_), 'fill', len(fill))
    P(wq_); P(fill)
    P.st("p1")
    P(" s_mov_b32 s4, 0xbfb8aa3b\n s_mov_b32 s5, 0xbfb8aa3b")
    big = []
    if MB < 56:
        P(" s_barrier")
        for m in range(MB, 56): big.append("\n".join(wd_dma(m, sBIG, m - MB)))
    e1 = []
    for tt in range(4): e1 += epi_tile(acc1+16*tt, 1, tt, acc1+16*tt, True)
    P(take(big, cfg["big_pre"]))
    h0 = f" buffer_load_dword v{vPD}, v{vPH}, {WS}, {sPH0} offen sc1"
    if cfg["hhh"]: e1.insert(cfg["h0_at"], h0 + "\nMARK:ph0")
    interleave(P, e1, big, cfg["big_every"])
    P(big)
    P.st("epi")
    if cfg["hhh"]: P(["WAIT:ph0"] + retry_check(P, [f" v_cmp_ne_u32 vcc, {sTAG}, v{vPD}"], [h0], [], "ph0", cfg["hbo"]))
    for i in range(cfg["b0_n"]): P(hh_loads(0, i) + [f"MARK:hh0_{i}"])
    P(["WAIT:HST", FLAGST])
    P.st("ld0")

def red_consts():
    return L(f"""
 s_mul_i32 s3, {sW}, {REDW}
 v_add_u32 v12, s3, v6
 v_and_b32 v15, 7, v0
 v_lshrrev_b32 v13, 3, v0
 v_mul_u32_u24 v15, {BS}, v15
 v_lshl_add_u32 v13, v13, 4, v15
 v_add_u32 v14, {2*REDW}, v13
 v_and_b32 v1, 1, v0
 v_lshlrev_b32 v1, 10, v1""")
def red_write(ups): return [f" ds_write_b128 v12, {vr(acc2+4*blk,4)} offset:{blk*BS}" for blk in range(8*ups, 8*ups+8)]
def red_read(ups, b): return [f" ds_read_b128 {vr(b+8*w+4*h,4)}, {'v13' if w < 2 else 'v14'} offset:{ups*8*BS + h*512 + (w&1)*REDW}" for w in range(4) for h in range(2)]
def red_fin(ups, b, hx, pk, fl):
    o = []
    for (x, y) in ((0, b+8), (16, b+24), (0, hx), (0, b+16)):
        if pk:
            for i in range(4): o.append(f" v_pk_add_f32 {vr(b+x+2*i,2)}, {vr(b+x+2*i,2)}, {vr(y+2*i,2)}")
        else:
            for i in range(8): o.append(f" v_add_f32 v{b+x+i}, v{b+x+i}, v{y+i}")
    for i in range(4): o.append(f" v_cvt_pk_bf16_f32 v{b+16+i}, v{b+2*i}, v{b+2*i+1}")
    o.append(f" buffer_store_dwordx4 {vr(b+16,4)}, v{vOUT}, {srd('OUT')}, {sO0 if ups == 0 else sO1} offen {fl}")
    return o
def gemm2(P, cfg):
    order = [(0, i) for i in range(7)] + [(1, i) for i in range(7)]
    nb = cfg["b0_n"]; MB = cfg["wd_big"]
    issued = order[:nb]
    def chk(pos):
        u, i = order[pos]
        later = []
        for x in order[pos+1:]:
            if x in issued and x[0] == u: later += hh_loads(*x)
        return [f"WAIT:hh{u}_{i}"] + retry_check(P, hashchain(HREG[(u,i)], CHH[(u,i)]), hh_loads(u, i), later, f"hh{u}_{i}", cfg["bo"])
    bigrd = []
    if MB < 56:
        P([f" s_sub_u32 s3, {sBIG}, {sRING}", f" v_add_u32 v{vWr[0]}, s3, v{vWr[0]}", f" v_add_u32 v{vWr[1]}, s3, v{vWr[1]}"])
        for m in range(MB, 56): bigrd += wd_read(m, m - MB)
    P(chk(0))
    hres = [f" buffer_load_dwordx4 {vr(vE,4)}, v{vOUT}, {WS}, {sHR0} offen sc1", f" buffer_load_dwordx4 {vr(vE+4,4)}, v{vOUT}, {WS}, {sHR1} offen sc1", "MARK:hres"]
    flag = [f" buffer_load_dword v3, v1, {WS}, {sFLld} offen sc1"]
    T0 = 112; HX = 16
    for pos, (u, i) in enumerate(order):
        fill = []
        if pos + nb < 14:
            x = order[pos + nb]
            prev = [y for y in order[:order.index(x)] if HREG[y] == HREG[x]]
            assert all(order.index(y) < pos for y in prev), x
            h1 = f" buffer_load_dword v{vPD}, v{vPH}, {WS}, {sPH1} offen sc1"
            if x == (0, 6) and cfg["hhh"]: fill += [h1, "MARK:ph1"]
            if x == (1, 0):
                if cfg["hhh"]: fill += ["WAIT:ph1"] + retry_check(P, [f" v_cmp_ne_u32 vcc, {sTAG}, v{vPD}"], [h1], [], "ph1", cfg["hbo"])
                else:
                    P.tail += hint_spin("ip1", sPH1, "L_ip1b") + [" s_branch L_ip1b"]
                    fill += [f" s_cmp_ge_u32 {sJL}, 7\n s_cbranch_scc1 L_ip1\nL_ip1b:"]
            fill += hh_loads(*x) + [f"MARK:hh{x[0]}_{x[1]}"]; issued.append(x)
        if pos < 3: fill += take(bigrd, 4*((56-MB+2)//3))
        if pos == 3: fill += red_consts() + [" s_waitcnt lgkmcnt(0)", " s_barrier"]
        if pos == 4: fill += flag + ["MARK:flag"]
        if pos == 7: fill += ["WAIT:flag"] + retry_check(P, [f" v_cmp_ne_u32 vcc, {sTAG}, v3"], flag, [], "flag", cfg["bo"]) + hres
        if pos == 8: fill += red_write(0)
        if pos == 9: fill += [" s_waitcnt lgkmcnt(0)", " s_barrier"] + red_read(0, T0)
        if pos == 11:
            fill += ["WAIT:hres"]
            for k in range(8): fill += unpack(HX+2*k, vE+k)
            fill += [" s_waitcnt lgkmcnt(0)"]
        if pos == 12: fill += red_fin(0, T0, HX, False, cfg["outf"])[:24]
        if pos == 13: fill += red_fin(0, T0, HX, False, cfg["outf"])[24:]
        assert MB >= 32
        late = chk(pos+1) if pos+1 < len(order) else []
        n = 0
        for t in range(4):
            for tau in range(2):
                a = acc2+32*u+16*tau
                P(f" v_mfma_f32_32x32x16_bf16 {vr(a,16)}, {ar(((i*4+t)*2+tau)*4,4)}, {vr(HREG[(u,i)]+4*t,4)}, {'0' if (i == 0 and t == 0) else vr(a,16)}")
                n += 1
                if n <= 5:
                    b = 5
                    while fill and b > 0: b -= P.cost(fill[0]); P(fill.pop(0))
                else:
                    P(take(fill, 99)); P(take(late, 5))
        P(late)
        if pos == 6: P.st("b0")
    P.st("g2")
    P(red_write(1))
    P(" s_waitcnt lgkmcnt(0)\n s_barrier")
    P(red_read(1, 144))
    P(" s_waitcnt lgkmcnt(0)")
    P(red_fin(1, 144, HX+8, True, cfg["outf"]))

def build(cfg, stamps=False):
    P = G(stamps); P.cfg = cfg
    if cfg.get("dbg"): P.only = cfg["dbg"].split(",")
    entry(P, cfg)
    setupB = a_consts() + roles()
    P(take(setupB, cfg["nsetB"]))
    if cfg["f_at"] == 0: P(filter_dma(cfg))
    else: P(f""" v_and_b32 v4, 79, v0
 v_lshrrev_b32 v5, 2, v4
 v_and_or_b32 v4, v5, 16, v4
 v_and_b32 v4, 31, v4
 v_lshlrev_b32 v4, 7, v4
 buffer_load_dword v{vDUM}, v4, {srd('SSMK')}, {sF0} offen {cfg['fnt']}""")
    if cfg["x_at"] == 0: P(x_loads())
    P(tag_setup())
    P.st("pre")
    P.vmwait("L1")
    P.st("L1")
    p0_kv(P)
    P.st("kvst")
    if cfg["f_at"] == 1:
        if cfg["kbar"]: P(" s_barrier")
        P(filter_dma(dict(fnt=cfg["fnt2"])))
    if cfg["wdm"] == 1: P(wd_mall())
    if cfg["x_at"] == 1: P(x_loads())
    P(setupB)
    late = conv_setup() + h1_addr()
    if cfg["f_at"] == 1: P(late + w_table()); late = []
    P.vmwait("A")
    P(" s_barrier")
    P.st("bar")
    if late: P(late + w_table())
    ap = a_prep() + (wd_consts(0) if cfg["wdc_at"] == 1 else [])
    if cfg["can1"]: P(canary_issue(cfg, 64*OB))
    P(take(ap, cfg["ap_pre"]))
    if cfg["can1"]: P(canary_check(P, "c1", cfg["cbo"]))
    P.st("aprep")
    box_recv(P, vIN, "h1", cfg["bo"], ap)
    kv_to_lds(P)
    P.st("h1")
    wq = []
    for i in range(cfg.get("nw", 16)): wq += w_pair(i, cfg["wnt"])
    conv_mfma(P, wq, cfg["wsched"])
    print("W ops left after conv:", len(wq)//2)
    P.st("mfma")
    conv_epilogue(P)
    P.mark("YST")
    P.st("yst")
    P(" s_barrier")
    if cfg["wdc_at"] == 2: P(wd_consts(0))
    nd = cfg["wd_pre"]
    b3 = wq + ["\n".join(wd_dma(m)) for m in range(min(nd, NR))]
    P.vmwait("X")
    interleave(P, stat_consts() + ln1(), b3, cfg["w3_every"])
    P(b3)
    gs = g_sconsts(56 - cfg["wd_big"])
    P(h2_consts())
    if cfg.get("dly2"): P(f" s_sleep {cfg['dly2']}")
    if cfg["can2"]: P(canary_issue(cfg, OB))
    P(wd_rconsts(48))
    if cfg["can2"]: P(canary_check(P, "c2", cfg["cbo"]))
    P.st("ln1")
    box_recv(P, vY, "h2", cfg["bo"])
    P.st("h2")
    ln2(P)
    P.st("hnst")
    d = min(nd, NR)
    for m in range(d): P(wd_read(m))
    rd = d
    while d < nd:
        P(wd_dma(d)); d += 1
    post = g_vconsts() + gs
    P(take(post, cfg["hn_hint_at"]))
    if cfg["hnh"]:
        P(f""" s_lshl_b32 {sF0}, {sG}, 2
 s_add_u32 {sF0}, {sF0}, {sW}
 s_lshl_b32 {sF0}, {sF0}, 14
 s_bfe_u32 s30, s2, 0x20001
 s_lshl_b32 s30, s30, 7
 s_add_u32 {sF0}, {sF0}, s30
 s_add_u32 {sF0}, {sF0}, {HI}
 v_and_b32 v221, {cfg['hn_nh']-1}, v0
 v_lshlrev_b32 v221, 9, v221
 buffer_load_dword v{vPD}, v221, {WS}, {sF0} offen sc1
MARK:phn""")
    P(post)
    P(f"""
 s_or_b32 s3, s2, {sW}
 s_cmp_lg_u32 s3, 0
 s_cbranch_scc1 L_notag
 v_lshlrev_b32 v4, 21, v6
 buffer_store_dword v{vTG}, v4, {WS}, 0 offen sc1
L_notag:
""")
    P.nvm -= 1
    if cfg.get("dly3"): P(f" s_sleep {cfg['dly3']}")
    P.st("g1go")
    P(f" s_cmp_ge_u32 {sJL}, 7\n s_cbranch_scc1 L_idle")
    save = (P.nvm, P.nds, P.vmdone, P.dsdone, dict(P.marks), dict(P.dmarks))
    MB = cfg["wd_big"]
    gemm1(P, cfg, wd_stream(d, rd, MB))
    P(" s_waitcnt lgkmcnt(0)\nL_join:")
    gemm2(P, cfg)
    if stamps:
        P(" s_waitcnt vmcnt(0)"); P.st("end")
        P(f" v_writelane_b32 v11, {sSPIN}, 63\n s_lshl_b32 s3, s2, 10\n s_add_u32 s3, s3, {STAMPS}\n v_lshlrev_b32 v1, 2, v0\n buffer_store_dword v11, v1, {WS}, s3 offen")
    P("L_end:\n s_endpgm")
    P.nvm, P.nds, P.vmdone, P.dsdone, P.marks, P.dmarks = save
    P("L_idle:")
    P(HST + ["WAIT:HST", FLAGST])
    P(wd_stream(d, rd, MB))
    for m in range(MB, 56): P(wd_dma(m, sBIG, m - MB))
    for nm in ("hint","hn0","p0","p1","epi"): P.st(nm)
    P(hint_spin("ip0", sPH0, "L_ip0b") + ["L_ip0b:"])
    for i in range(cfg["b0_n"]): P(hh_loads(0, i))
    P(" s_waitcnt vmcnt(0) lgkmcnt(0)")
    P.st("ld0")
    P(" s_branch L_join")
    P(P.tail)
    P("L_codeend:")
    if os.environ.get("STAMP") == "2": P.lines = [l.replace("s_memrealtime", "s_memtime") for l in P.lines]
    body = P.fix()
    head = open("sequential_preLN__ssm_conv_h3__glu_gated_glu__prompt.s.ref").read().split("; Override launch")[0]
    out = head + f"; @launch grid=(256,1,1) block=(256,1,1) lds={LDS_BYTES}\n"
    out += f'.amdgcn_target "amdgcn-amd-amdhsa--gfx950"\n.text\n.globl {NAME}\n.p2align 8\n.type {NAME},@function\n{NAME}:\n' + body
    out += f""" s_endpgm
.section .rodata,"a"
.p2align 6
.amdhsa_kernel {NAME}
  .amdhsa_next_free_vgpr 512
  .amdhsa_next_free_sgpr 102
  .amdhsa_accum_offset 256
  .amdhsa_group_segment_fixed_size 0
  .amdhsa_kernarg_size 104
  .amdhsa_user_sgpr_count 2
  .amdhsa_user_sgpr_kernarg_segment_ptr 1
  .amdhsa_system_sgpr_workgroup_id_x 1
.end_amdhsa_kernel
"""
    if cfg.get("probe"):
        idx = P.stn.index(cfg["probe"])
        Q = G()
        Q(f"""
 s_cmp_ge_u32 s2, 1
 s_cbranch_scc1 L_pend
 s_load_dwordx2 s[48:49], s[0:1], 96
 s_mov_b32 s50, {WS_BYTES}
 s_mov_b32 s51, 0x20000
 v_lshlrev_b32 v1, 8, v0
 v_mov_b32 v2, 0
 s_waitcnt lgkmcnt(0)
 s_mov_b32 s3, {STAMPS}
 buffer_load_dword v3, v2, s[48:51], s3 offen
 v_mov_b32 v4, 0x7fffffff
 v_mov_b32 v5, 0x80000000
 s_mov_b32 s4, {16 if cfg['probe'] == 'end' else 14}
L_pl:
 buffer_load_dword v6, v1, s[48:51], s3 offen
 buffer_load_dword v7, v1, s[48:51], s3 offen offset:{4*idx}
 s_waitcnt vmcnt(0)
 v_sub_u32 v6, v6, v3
 v_sub_u32 v7, v7, v3
 v_min_i32 v4, v4, v6
 v_max_i32 v5, v5, v7
 s_add_u32 s3, s3, 16384
 s_sub_u32 s4, s4, 1
 s_cmp_lg_u32 s4, 0
 s_cbranch_scc1 L_pl
 s_mov_b32 s5, 0x7fffffff
 s_mov_b32 s6, 0x80000000
 s_mov_b32 s4, 0
L_pr:
 v_readlane_b32 s7, v4, s4
 v_readlane_b32 s8, v5, s4
 s_nop 1
 s_min_i32 s5, s5, s7
 s_max_i32 s6, s6, s8
 s_add_u32 s4, s4, 1
 s_cmp_lg_u32 s4, 64
 s_cbranch_scc1 L_pr
 s_sub_u32 s6, s6, s5
 s_min_u32 s6, s6, 10000
 s_mul_i32 s6, s6, {cfg.get('pmul', 10)}
 s_memrealtime s[10:11]
 s_waitcnt lgkmcnt(0)
L_ps:
 s_memrealtime s[12:13]
 s_waitcnt lgkmcnt(0)
 s_sub_u32 s7, s12, s10
 s_cmp_lt_u32 s7, s6
 s_cbranch_scc1 L_ps
L_pend:
 s_endpgm
""")
        out = out.replace(f"; @launch grid=(256,1,1) block=(256,1,1) lds={LDS_BYTES}\n", f"; @launch kernel={NAME} grid=(256,1,1) block=(256,1,1) lds={LDS_BYTES}\n; @launch kernel=probe_kernel grid=(1,1,1) block=(64,1,1) lds=0\n")
        out = out.replace('.section .rodata,"a"', '.globl probe_kernel\n.p2align 8\n.type probe_kernel,@function\nprobe_kernel:\n' + Q.fix() + '.section .rodata,"a"')
        kd = out[out.index(".p2align 6\n.amdhsa_kernel"):]
        out += kd.replace(NAME, "probe_kernel").replace("vgpr 512", "vgpr 16").replace("offset 256", "offset 16")
    return out, P
CFG = dict(can1=1, can2=1, cmask=0x00010001, cbo=6, hnh=1, hn_nh=16, hn_hint_at=999, hbo=8, hhh=1, h0_at=70, ap_pre=90, wsched=[(1,8,1),(80,14,2)], f_at=1, kbar=1, fnt2="", pf_after="SHK", nsetB=47, fnt="nt", x_at=0, wdm=0, wdc_at=1, bo=8, wnt="nt", w2=26, w2_every=2, w3_every=4, wd_pre=14, gs_early=0,
           wd_rate=(1.2,1), wd_big=36, slots=(6,6), big_pre=4, big_every=8, b0_n=3, outf="", dly3=0)
if __name__ == "__main__":
    cfg = dict(CFG)
    for a in sys.argv[2:]:
        k, v = a.split("=", 1); cfg[k] = eval(v)
    out, P = build(cfg, bool(os.environ.get("STAMP")))
    open(sys.argv[1], "w").write(out)
    if os.environ.get("STAMP"): open(sys.argv[1] + ".names", "w").write(" ".join(P.stn))
    print("lines", len(P.lines), "nops", P.nops)
```

```python
import sys, os, re
sys.path.insert(0, "gen")
from asmlib import Prog

NAME = "sequential_preLN__ssm_conv_h3__glu_gated_glu__prompt_kernel"
TAGSLOT = 0
HC    = 0x080000
FL    = 0x0C0000
HI    = 0x1580000
OB    = 16640
KVBOX = 0x100000
YBOX  = 0x520000
HN    = 0x940000
HRES  = 0xB40000
HH    = 0xD40000
GS    = 4480
STAMPS = 0x1500000
WS_BYTES = 0x1600000
SRD = dict(X=8, K=12, V=16, SHK=20, SSMK=24, SSMD=28, WG=32, WU=36, WD=40, OUT=44, WS=48)
KOFF = dict(X=0, K=8, V=16, SHK=24, SSMK=32, SSMD=40, WG=56, WU=64, WD=72, OUT=80, WS=96)
SIZE = dict(X=2097152, K=2097152, V=2097152, SHK=4096, SSMK=2097152, SSMD=1024, WG=1835008, WU=1835008, WD=1835008, OUT=2097152, WS=WS_BYTES)
def srd(n): return f"s[{SRD[n]}:{SRD[n]+3}]"
WS = srd("WS")
sHNst, sWM, sBIG, sRING, sW, sFLst, sFLld, sG, sJ, sTAG, sLO, sHI, sMASK, sHRES, sT = [f"s{i}" for i in range(52, 67)]
sJL, sO0, sO1, sHS0, sHS1, sSB, sHCst, sE, sSPIN, sHR0, sHR1, sPH1, sL3 = [f"s{i}" for i in range(67, 80)]
sWD = 80
sHC = 87
sPH0, sP, sF0 = "s95", "s96", "s97"
sC = sP
sWT = 12
sHL = 8
sHN = 22
def vr(b, n): return f"v[{b}:{b+n-1}]" if n > 1 else f"v{b}"
def ar(b, n): return f"a[{b}:{b+n-1}]" if n > 1 else f"a{b}"
def L(text): return [l for l in text.split("\n") if l.strip()]
def take(l, n):
    o = l[:n]; del l[:n]; return o

WGB, WUB = 0, 65536
PART = 131072; FC = 96256; CS2 = 4352
KVR = 131072; KVCH = 4608
RING = 131072; NR = 7
STAT = 163840 - 512
BS = 1088; REDW = 16*BS
LDS_BYTES = 163840
SPIN = 20000

class G(Prog):
    def __init__(self, stamps=False):
        super().__init__(); self.nvm = 0; self.nds = 0; self.vmdone = 0; self.dsdone = 0
        self.marks = {}; self.dmarks = {}; self.stamps = stamps; self.tail = []; self.only = None; self.stn = ["start"]
    def __call__(self, text):
        if isinstance(text, list):
            for t in text: self(t)
            return
        for l in text.split("\n"):
            s = l.strip()
            if not s: continue
            if s.startswith("WAIT:"): self.vmwait(s[5:]); continue
            if s.startswith("MARK:"): self.mark(s[5:]); continue
            if s.startswith("DWAIT:"): self.dwait(s[6:]); continue
            if s.startswith("DMARK:"): self.dmarks[s[6:]] = self.nds; continue
            if s == "SKIP": continue
            if s.startswith(("buffer_", "global_")): self.nvm += 1
            if s.startswith("ds_"): self.nds += 1
            if s.startswith("s_waitcnt"):
                m = re.search(r"vmcnt\((\d+)\)", s)
                if m: self.vmdone = max(self.vmdone, self.nvm - int(m.group(1)))
                m = re.search(r"lgkmcnt\((\d+)\)", s)
                if m: self.dsdone = max(self.dsdone, self.nds - int(m.group(1)))
            self.lines.append(l.rstrip())
    def mark(self, name): self.marks[name] = self.nvm
    def vmwait(self, name):
        if self.vmdone < self.marks[name]: self(f" s_waitcnt vmcnt({min(self.nvm - self.marks[name], 63)})")
    def dwait(self, name):
        if self.dsdone < self.dmarks[name]: self(f" s_waitcnt lgkmcnt({min(self.nds - self.dmarks[name], 15)})")
    def cost(self, s):
        t = s.strip()
        if t.startswith(("MARK:", "DMARK:")): return 0
        if t.startswith("WAIT:"): return 0 if self.vmdone >= self.marks[t[5:]] else 1
        if t.startswith("DWAIT:"): return 0 if self.dsdone >= self.dmarks[t[6:]] else 1
        if t == "SKIP": return 3
        if t.startswith(("v_exp", "v_rcp")): return 2
        return 1
    def st(self, i):
        if self.stamps and (self.only is None or i in self.only):
            if i not in self.stn: self.stn.append(i)
            self.lines += [" s_memrealtime s[98:99]", " s_waitcnt lgkmcnt(0)", f" v_writelane_b32 v11, s98, {self.stn.index(i)}", f" v_writelane_b32 v11, {sSPIN}, {32+self.stn.index(i)}"]
def interleave(P, work, bulk, every):
    n = 0
    for wk in work:
        P(wk); n += 1
        if bulk and n % every == 0: P(bulk.pop(0))

vK, vW, vV, vKS, vT = 144, 164, 180, 188, 204
vD, vQ, vX = 220, 224, 240
vBB = [8, 10, 248, 249]
vSW, vDUM, vR, vWD = 250, 251, 252, 254
vWr = (8, 255)
vA, vAx, vB, vIN, aC = 16, 208, 144, 160, 224
vSEL = 216
vq, vu1 = 208, 224
vONE, vTG, vC, vHC, vHC1, vPH, vHASH, vL2, vOUT, vPD, vHP = 7, 10, 2, 252, 253, 220, 222, 223, 9, 5, 224
vHN, vRa = 16, 12
acc0, acc1, acc2, vE = 80, 144, 16, 240
CHN = [208, 209, 210, 211]
CHH = {(0,i): 212+i for i in range(7)}
CHH.update({(1,0):208,(1,1):209,(1,2):210,(1,3):211,(1,4):219,(1,5):221,(1,6):212})
HREG = {(0,0):224, (0,1):80, (0,2):96, (0,3):112, (0,4):128, (0,5):48, (0,6):64,
        (1,0):144, (1,1):160, (1,2):176, (1,3):192, (1,4):224, (1,5):80, (1,6):96}

def srdc(names): return [x for n in names for x in (f" s_mov_b32 s{SRD[n]+2}, {SIZE[n]}", f" s_mov_b32 s{SRD[n]+3}, 0x20000")]
def entry(P, cfg):
    P(" s_cmp_ge_u32 s2, 256\n s_cbranch_scc1 L_end")
    if P.stamps: P(" s_memrealtime s[98:99]")
    for n in ("K","V","SHK","WS","SSMK","X","SSMD","WD","WG","WU","OUT"):
        P(f" s_load_dwordx2 s[{SRD[n]}:{SRD[n]+1}], s[0:1], {KOFF[n]}")
        if n == cfg["pf_after"]:
            P(f"""
 s_getpc_b64 s[4:5]
L_pc:
 s_bfe_u32 s3, s2, 0x30003
 s_lshl_b32 s3, s3, 12
 v_lshlrev_b32 v4, 7, v0
 v_add_u32 v5, s3, v4
 v_cmp_gt_u32 vcc, 32, v0
 v_cndmask_b32 v4, v5, v4, vcc
 v_min_u32 v4, L_codeend-L_pc-4, v4
 v_cmp_gt_u32 vcc, 64, v0
 s_and_saveexec_b64 s[6:7], vcc
 s_cbranch_execz L_nopf
 global_load_dword v{vDUM}, v4, s[4:5]
L_nopf:
 s_mov_b64 exec, s[6:7]
""")
    P(f"""
 s_and_b32 s3, s2, 7
 s_lshl_b32 s3, s3, 5
 s_lshr_b32 {sP}, s2, 3
 s_or_b32 {sP}, {sP}, s3
 v_lshrrev_b32 v4, 6, v0
 v_and_b32 v1, 3, v0
 v_readfirstlane_b32 {sW}, v4
 v_lshrrev_b32 v2, 2, v0
 s_lshl_b32 s3, {sP}, 13
 v_lshlrev_b32 v3, 11, v1
 v_lshl_add_u32 v3, v2, 4, v3
 v_add_u32 v3, s3, v3
 v_subrev_u32 v4, 3072, v3
 v_subrev_u32 v5, 2048, v3
 v_subrev_u32 v8, 1024, v3
 v_lshlrev_b32 v9, 4, v0
""")
    P(srdc(("K","V","SHK")))
    pre2 = L(f"""
 v_and_b32 v6, 63, v0
 v_lshlrev_b32 v6, 4, v6
 s_lshl_b32 {sF0}, {sC}, 1
 s_lshr_b32 s7, {sW}, 1
 s_add_u32 {sF0}, {sF0}, s7
 s_lshl_b32 {sF0}, {sF0}, 12
 s_mul_i32 s7, {sW}, {2*CS2}
 s_add_u32 s7, s7, {FC}
 s_bitcmp1_b32 {sW}, 0
 s_cselect_b32 s3, 160, 0
 s_cselect_b32 {sT}, 32, 128
 s_cselect_b32 s5, 8, 0
 s_add_u32 s3, s3, s7
 s_add_u32 {sT}, {sT}, s7
 s_add_u32 {sT}, {sT}, {CS2}
 v_mov_b32 v12, 0
 v_and_b32 v14, 7, v0
 v_lshl_add_u32 v13, v14, 2, s3
 v_lshl_add_u32 v14, v14, 2, {sT}
 ds_write_b32 v13, v12
 ds_write_b32 v14, v12
 s_sub_u32 s3, s3, s5
 s_sub_u32 {sT}, {sT}, s5
 s_add_u32 m0, s3, 32
 s_mul_i32 s4, {sP}, {OB}
 s_add_u32 s4, s4, {KVBOX}
 s_add_u32 s5, s4, 4096
 s_add_u32 s6, s4, 8192
 s_add_u32 s7, s4, 12288
 s_mov_b32 {sLO}, 0x05040100
 s_mov_b32 {sHI}, 0x07060302
 s_mov_b32 {sMASK}, 0xffff0000
 s_mov_b32 {sSPIN}, {SPIN}
 v_lshlrev_b32 v7, 4, v2""") + srdc(("SSMK","WS","X","SSMD","WD")) + [f" v_mov_b32 v{vKS+i}, 0" for i in range(16)]
    P(pre2)
    if P.stamps: P(" v_mov_b32 v11, 0\n s_waitcnt lgkmcnt(0)\n v_writelane_b32 v11, s98, 0"); P.st("karg")
    P(f"""
 s_waitcnt lgkmcnt(0)
 buffer_load_dwordx4 {vr(vK,4)}, v4, {srd('K')}, 0 offen nt
 buffer_load_dwordx4 {vr(vK+4,4)}, v5, {srd('K')}, 0 offen nt
 buffer_load_dwordx4 {vr(vK+8,4)}, v8, {srd('K')}, 0 offen nt
 buffer_load_dwordx4 {vr(vK+12,4)}, v3, {srd('K')}, 0 offen nt
 buffer_load_dwordx4 {vr(vK+16,4)}, v3, {srd('K')}, 0 offen offset:1024 nt
 buffer_load_dwordx4 {vr(vV,4)}, v3, {srd('V')}, 0 offen nt
 buffer_load_dwordx4 {vr(vV+4,4)}, v3, {srd('V')}, 0 offen offset:1024 nt
 buffer_load_dwordx4 {vr(vW,4)}, v9, {srd('SHK')}, 0 offen
MARK:L1
 s_load_dword {sTAG}, s[{SRD['WS']}:{SRD['WS']+1}], {TAGSLOT}
""")
def filter_dma(cfg):
    nt = cfg["fnt"]
    o = [f" buffer_load_dwordx4 v6, {srd('SSMK')}, {sF0} offen offset:{1024*i} {nt} lds" for i in range(4)]
    o.append(f" s_add_u32 m0, {sT}, 28")
    o += [f" buffer_load_dwordx4 v6, {srd('SSMK')}, {sF0} offen offset:{1024*i} {nt} lds" for i in range(4)]
    return o + ["MARK:A"]
def x_loads():
    return [f" buffer_load_dwordx4 {vr(vX,4)}, v3, {srd('X')}, 0 offen nt",
            f" buffer_load_dwordx4 {vr(vX+4,4)}, v3, {srd('X')}, 0 offen offset:1024 nt",
            f" buffer_load_dwordx4 {vr(vD,4)}, v7, {srd('SSMD')}, 0 offen", "MARK:X"]
def tag_setup():
    return [" s_waitcnt lgkmcnt(0)", f" s_add_u32 {sTAG}, {sTAG}, 0x9E3779B1"] + [f" v_mov_b32 v{vQ+2*t+1}, {sTAG}" for t in range(8)]
def p0_kv(P):
    Krow = lambda i, d: vK + 4*i + d
    prs = [(3,2),(1,0),(4,3),(2,1)]
    for t in range(4):
        T = vT + 8*(t & 1)
        for c in range(2):
            for n,(x,y) in enumerate(prs):
                P(f" v_perm_b32 v{T+4*c+n}, v{Krow(y,t)}, v{Krow(x,t)}, {sHI if c else sLO}")
        ks = vKS + 4*t
        qp = f"quad_perm:[{t},{t},{t},{t}] row_mask:0xf bank_mask:0xf"
        for hi in (1, 0):
            for c in range(2):
                P(f" v_dot2c_f32_bf16_dpp v{ks+c}, v{vW+2*c+hi}, v{T+4*c+hi} {qp}")
                P(f" v_dot2c_f32_bf16_dpp v{ks+2+c}, v{vW+2*c+hi}, v{T+4*c+2+hi} {qp}")
        P(f""" v_lshlrev_b32 v{T}, 16, v{vV+t}
 v_and_b32 v{T+1}, {sMASK}, v{vV+t}
 v_lshlrev_b32 v{T+2}, 16, v{vV+4+t}
 v_and_b32 v{T+3}, {sMASK}, v{vV+4+t}
 v_pk_mul_f32 {vr(ks,2)}, {vr(ks,2)}, {vr(T,2)}
 v_pk_mul_f32 {vr(ks+2,2)}, {vr(ks+2,2)}, {vr(T+2,2)}
 v_cvt_pk_bf16_f32 v{vQ+4*t}, v{ks}, v{ks+1}
 v_cvt_pk_bf16_f32 v{vQ+4*t+2}, v{ks+2}, v{ks+3}
 buffer_store_dwordx4 {vr(vQ+4*t,4)}, v9, {WS}, s{4+t} offen sc1""")
def wd_mall():
    return L(f""" s_lshl_b32 s100, s2, 2
 s_add_u32 s100, s100, {sW}
 s_mul_i32 s100, s100, 1792
 v_lshlrev_b32 v4, 3, v6
 v_min_u32 v4, {13*128}, v4
 buffer_load_dword v{vDUM}, v4, {srd('WD')}, s100 offen""")
def idle_mall(name, nx):
    per = 112*(8//nx)
    o = L(f""" s_cmp_lt_u32 {sJL}, 7
 s_cbranch_scc1 L_{name}
 s_and_b32 s100, s2, {nx-1}
 s_lshl_b32 s100, s100, 2
 s_add_u32 s100, s100, {sL3}
 s_lshl_b32 s100, s100, 2
 s_add_u32 s100, s100, {sW}
 s_mul_i32 s100, s100, {per*128}
 v_lshlrev_b32 v4, 3, v6
 v_min_u32 v4, {55*128}, v4""")
    for i in range(per//56): o += [f" buffer_load_dword v{vDUM}, v4, {srd('WD')}, s100 offen", f" s_add_u32 s100, s100, {56*128}"]
    return o + [f"L_{name}:"], per//56
def w_touch(nt, half):
    o = L(f""" s_lshl_b32 s100, {sL3}, 7
 s_and_b32 s3, s2, 1
 s_lshl_b32 s3, s3, 6
 s_add_u32 s100, s100, s3
 s_lshl_b32 s3, {sW}, {4 if half else 5}
 s_add_u32 s100, s100, s3
 v_and_b32 v4, {15 if half else 31}, v0
 v_add_u32 v4, s100, v4
 v_and_b32 v4, 511, v4
 v_mul_u32_u24 v4, 3584, v4
 s_lshl_b32 s100, {sJ}, 7
 buffer_load_dword v{vDUM}, v4, {srd('WG')}, s100 offen {nt}
 buffer_load_dword v{vDUM}, v4, {srd('WU')}, s100 offen {nt}""")
    return o
def a_consts():
    return L(f"""
 v_and_b32 v4, 15, v0
 v_add_u32 v4, 1, v4
 v_bfe_u32 v15, v4, 1, 2
 v_lshlrev_b32 v12, 3, v15
 s_mov_b32 s3, 0x020A0800
 v_bfe_u32 v12, s3, v12, 8
 v_mul_u32_u24 v15, {CS2}, v15
 v_lshrrev_b32 v4, 3, v4
 v_add_u32 v4, v4, v12
 v_lshl_add_u32 v15, v4, 4, v15
 v_bfe_u32 v4, v0, 4, 3
 v_lshl_add_u32 v15, v4, 6, v15
 s_lshr_b32 s3, {sW}, 1
 s_mul_i32 s3, s3, {4*CS2}
 s_add_u32 s3, s3, {FC}
 v_add_u32 v15, s3, v15
 v_and_b32 v12, 1, v0
 v_mul_u32_u24 v12, 0x020202, v12
 v_lshl_or_b32 v12, v12, 8, v12
 v_sub_u32 v12, 0x05040302, v12""")
def a_perm(a, i):
    nxt = vA+16*a+i+1 if i < 15 else vAx+a
    return f" v_perm_b32 v{vA+16*a+i}, v{nxt}, v{vA+16*a+i}, v{vSEL}"
def a_prep(lazy):
    def rd(a): return [f" ds_read_b128 {vr(vA+16*a+4*bb,4)}, v15 offset:{512*a+16*bb}" for bb in range(4)] + [f" ds_read_b32 v{vAx+a}, v15 offset:{512*a+64}", f"DMARK:a{a}"]
    o = [f" v_mov_b32 v{vSEL}, v12"] + rd(0) + rd(1)
    for a in range(8):
        if a+2 < 8: o += rd(a+2)
        o.append(f"DWAIT:a{a}")
        for i in range(4*lazy): o.append(a_perm(a, i))
    return o
def roles():
    t = 168
    o = L(f"""
 s_bfe_u32 {sL3}, s2, 0x20003
 s_lshr_b32 {sJL}, s2, 5
 s_and_b32 s3, s2, 1
 s_lshl_b32 s3, s3, 2
 s_add_u32 {sG}, s3, {sL3}
 s_bfe_u32 s3, s2, 0x20001
 s_mul_i32 s3, s3, 7
 s_add_u32 {sJ}, s3, {sJL}
 s_cmp_ge_u32 {sJL}, 7
 s_cselect_b32 s{SRD['WG']+2}, 0, {SIZE['WG']}
 s_mov_b32 s{SRD['WG']+3}, 0x20000
 s_mov_b32 s{SRD['WU']+2}, s{SRD['WG']+2}
 s_mov_b32 s{SRD['WU']+3}, 0x20000
 v_bfe_u32 v{t+1}, v0, 3, 3
 v_and_b32 v{t+3}, 7, v0
 v_mul_u32_u24 v{t+2}, 3584, v{t+1}
 v_and_b32 v{t+4}, 2, v{t+1}
 v_xor_b32 v{t+5}, v{t+3}, v{t+4}
 s_lshl_b32 s3, {sJ}, 7
 v_add_u32 v{t+2}, s3, v{t+2}
 v_lshl_add_u32 v{vR}, v{t+5}, 4, v{t+2}
 v_xor_b32 v{t+5}, 4, v{t+5}
 v_lshl_add_u32 v{vR+1}, v{t+5}, 4, v{t+2}
 v_lshlrev_b32 v{t+4}, 1, v{t+4}
 v_xor_b32 v{t+3}, v{t+3}, v{t+4}
 v_lshlrev_b32 v{t+1}, 10, v{t+1}
 v_lshl_add_u32 v{vWD}, v{t+3}, 4, v{t+1}""")
    return o
def w_table():
    o = L(f""" s_lshl_b32 s100, {sL3}, 4
 s_and_b32 s3, s2, 1
 s_lshl_b32 s3, s3, 3
 s_add_u32 s100, s100, s3
 s_add_u32 s100, s100, {sW}
 s_lshl_b32 s3, {sJL}, 3
 s_sub_u32 {sWM}, s100, s3
 s_lshl_b32 {sWM}, {sWM}, 10""")
    for idx in range(16): o += [f" s_add_u32 s3, s100, {4*idx}", " s_and_b32 s3, s3, 63", f" s_mul_i32 s{sWT+idx}, s3, {8*3584}"]
    return o
def w_pair(idx, nt):
    return [f" s_add_u32 s101, {sWM}, {idx*4096}\n s_and_b32 m0, s101, 0xffff", f" buffer_load_dwordx4 v{vR}, {srd('WG')}, s{sWT+idx} offen {nt} lds",
            f" s_add_u32 m0, m0, 65536", f" buffer_load_dwordx4 v{vR+1}, {srd('WU')}, s{sWT+idx} offen {nt} lds"]
def conv_setup():
    t = 176
    o = L(f"""
 v_mov_b32 v{t}, 0
 v_and_b32 v13, 127, v0
 v_lshlrev_b32 v13, 2, v13
 v_lshrrev_b32 v14, 7, v0
 v_mul_u32_u24 v14, {KVCH}, v14
 s_mov_b32 s3, {KVR+4096}
 v_add3_u32 v13, v13, v14, s3
 ds_write_b32 v13, v{t}
 v_and_b32 v13, 15, v0
 v_lshlrev_b32 v13, 5, v13
 v_bfe_u32 v14, v0, 4, 3
 v_lshlrev_b32 v14, 6, v14
 v_sub_u32 v14, v14, v13
 v_add_u32 v14, 480, v14
 s_lshr_b32 s3, {sW}, 1
 s_mul_i32 s3, s3, {KVCH}
 s_add_u32 s3, s3, {KVR}""")
    for bb in range(4):
        o += L(f""" v_add_u32 v13, {16*bb}, v14
 v_lshrrev_b32 v{t+1}, 4, v13
 v_and_b32 v{t+1}, 16, v{t+1}
 v_xor_b32 v13, v13, v{t+1}
 v_add_u32 v{vBB[bb]}, s3, v13""")
    o += L(f"""
 v_lshlrev_b32 v13, 2, v0
 v_sub_u32 v13, 1020, v13
 v_lshrrev_b32 v{t+1}, 4, v13
 v_and_b32 v{t+1}, 16, v{t+1}
 v_xor_b32 v13, v13, v{t+1}
 v_add_u32 v13, {KVR}, v13
 v_mul_u32_u24 v14, {OB}, v2
 v_lshl_add_u32 v14, v1, 4, v14""")
    return o
def h1_addr():
    return L(f"""
 s_and_b32 s4, {sC}, 3
 s_lshl_b32 s4, s4, 12
 s_lshr_b32 s3, {sC}, 2
 s_lshl_b32 s3, s3, 6
 s_add_u32 s4, s4, s3
 s_add_u32 s4, s4, {KVBOX}
 s_add_u32 s5, s4, {64*OB}
 s_add_u32 s6, s4, {128*OB}
 s_add_u32 s7, s4, {192*OB}""")
def box_recv(P, base, name, sleep, shadow=None):
    lds = [f" buffer_load_dwordx4 {vr(base+4*i,4)}, v14, {WS}, s{4+i} offen sc1" for i in range(4)]
    P(lds); P.mark(name)
    if shadow: P(shadow)
    P.vmwait(name)
    P(f"L_{name}:")
    P(f" v_xor_b32 v4, {sTAG}, v{base+1}")
    for i in range(1, 8): P(f" v_bitop3_b32 v4, v4, v{base+2*i+1}, {sTAG} bitop3:0xf6")
    P(f" v_cmp_ne_u32 vcc, 0, v4\n s_cbranch_vccnz L_{name}_r\nL_{name}_ok:\n s_mov_b64 exec, -1")
    P.tail += L(f"""L_{name}_r:
 s_mov_b64 exec, vcc
 s_sleep {sleep}""") + lds + L(f""" s_waitcnt vmcnt(0)
 s_sub_u32 {sSPIN}, {sSPIN}, 1
 s_cbranch_scc0 L_{name}
 s_mov_b32 {sSPIN}, 0
 s_branch L_{name}_ok""")
def canary_issue(cfg, stride):
    m = cfg["cmask"]
    return L(f"""
 s_bfe_u32 {sT}, {sP}, 0x20003
 s_mul_i32 {sT}, {sT}, {stride}
 s_add_u32 {sT}, {sT}, s4
 s_bfe_u32 s3, {sP}, 0x20001
 s_lshl_b32 s3, s3, 2
 s_mov_b32 s100, {m}
 s_mov_b32 s101, {m}
 s_lshl_b64 s[100:101], s[100:101], s3
 v_mov_b32 v7, {sTAG}
 s_mov_b64 exec, s[100:101]
 buffer_load_dword v7, v14, {WS}, {sT} offen offset:4 sc1
 s_mov_b64 exec, -1
MARK:can""")
def canary_check(P, name, sleep):
    P.tail += L(f"""L_{name}_r:
 s_sub_u32 {sSPIN}, {sSPIN}, 1
 s_cbranch_scc1 L_{name}_x
 s_mov_b64 exec, vcc
 s_sleep {sleep}
 buffer_load_dword v7, v14, {WS}, {sT} offen offset:4 sc1
 s_mov_b64 exec, -1
 s_waitcnt vmcnt(0)
 v_cmp_ne_u32 vcc, {sTAG}, v7
 s_cbranch_vccnz L_{name}_r
 s_branch L_{name}_b
L_{name}_x:
 s_mov_b32 {sSPIN}, 0
 s_branch L_{name}_b""")
    return ["WAIT:can", f" v_cmp_ne_u32 vcc, {sTAG}, v7", f" s_cbranch_vccnz L_{name}_r", f"L_{name}_b:"]
def kv_to_lds(P):
    for i in range(4):
        P(f" v_perm_b32 v{vIN+4*i+1}, v{vIN+4*i}, v{vIN+4*i+2}, {sLO}")
        P(f" v_perm_b32 v{vIN+4*i+3}, v{vIN+4*i}, v{vIN+4*i+2}, {sHI}")
        P(f" ds_write2st64_b32 v13, v{vIN+4*i+1}, v{vIN+4*i+3} offset0:{(3-i)*4} offset1:{(3-i)*4+KVCH//256}")
    P(" s_waitcnt lgkmcnt(0)\n s_barrier")
QD = 144
def conv_epi_consts():
    return L(f"""
 v_bfe_u32 v13, v0, 4, 2
 v_lshlrev_b32 v14, 6, v13
 v_xor_b32 v13, v14, v6
 s_lshl_b32 s3, {sW}, 13
 s_add_u32 s3, s3, {PART}
 v_add_u32 v13, s3, v13
 v_bfe_u32 v15, v0, 1, 2
 v_bfe_u32 v14, v0, 3, 4
 v_lshlrev_b32 v12, 2, v15
 v_xor_b32 v14, v14, v12
 v_lshlrev_b32 v14, 4, v14
 v_lshl_add_u32 v14, v15, 8, v14
 v_lshrrev_b32 v15, 7, v0
 v_lshl_add_u32 v14, v15, 10, v14
 v_and_b32 v15, 1, v0
 v_lshl_add_u32 v14, v15, 3, v14
 v_add_u32 v14, {PART}, v14
 s_mul_i32 s4, {sC}, {OB}
 s_add_u32 s4, s4, {YBOX}
 s_add_u32 s5, s4, 4096
 s_add_u32 s6, s4, 8192
 s_add_u32 s7, s4, 12288""")
def conv_mfma(P, bulk, sched):
    extra = conv_epi_consts()
    lazy = P.cfg['lazy']
    def rd(bb): return [f" ds_read_b128 {vr(vB+32*(bb&1)+4*d,4)}, v{vBB[bb]} offset:{(7-d)*512}" for d in range(8)]
    def mf(j, a, bb, first): P(f" v_mfma_f32_16x16x32_bf16 {ar(aC+4*j,4)}, {vr(vA+16*a+4*bb,4)}, {vr(vB+32*(bb&1)+4*(j-a),4)}, {'0' if first else ar(aC+4*j,4)}")
    used = [0]
    def due(n):
        allowed = sum(min(2*c, max(0, (n - s0)//e + 1)) for (s0, c, e) in sched)
        return used[0] < allowed
    P(rd(0))
    n = 0
    for bb in range(3):
        pend = []
        perms = [a_perm(a, i) for a in range(8) for i in range(4*(bb+1), 4*(bb+2))] if bb+1 >= lazy else []
        for d in range(8):
            if d == 0 and bb == 0: P(" s_waitcnt lgkmcnt(7)")
            elif (bb == 0 and d == 1) or d == 0: P(" s_waitcnt lgkmcnt(0)")
            if d == 1: pend = rd(bb+1)
            for a in range(8-d):
                mf(a+d, a, bb, bb == 0 and d == 0); n += 1
                if perms: P(perms.pop(0))
                if pend: P(pend.pop(0))
                elif bulk and due(n): P(bulk.pop(0)); used[0] += 1
                elif extra: P(extra.pop(0))
    P(extra)
    P(" s_waitcnt lgkmcnt(0)\n s_barrier")
    tags = [f" v_mov_b32 v{QD+2*i+1}, {sTAG}" for i in range(8)]
    wr = []; cnt = 0
    for j in range(8):
        for a in range(j+1):
            mf(j, a, 3, False); cnt += 1
            if wr and wr[0][1] + 4 <= cnt: P(wr.pop(0)[0])
            elif bulk and due(108 + cnt): P(bulk.pop(0)); used[0] += 1
            elif tags: P(tags.pop(0))
        wr.append((f" ds_write_b128 v13, {ar(aC+4*j,4)} offset:{j*1024}", cnt))
    P(tags)
    for x in wr: P(x[0])
def conv_epilogue(P):
    R = 16
    P(" s_waitcnt lgkmcnt(0)\n s_barrier")
    for i in range(4):
        for c in range(2): P(f" ds_read2st64_b64 {vr(R+8*i+4*c,4)}, v14 offset0:{4*i+32*c} offset1:{4*i+32*c+16}")
    for i in range(4):
        P(f" s_waitcnt lgkmcnt({6-2*i})")
        b = R+8*i
        P(f""" v_pk_add_f32 {vr(b,2)}, {vr(b,2)}, {vr(b+2,2)}
 v_pk_add_f32 {vr(b+4,2)}, {vr(b+4,2)}, {vr(b+6,2)}
 v_cvt_pk_bf16_f32 v{QD+4*i}, v{b}, v{b+4}
 v_cvt_pk_bf16_f32 v{QD+4*i+2}, v{b+1}, v{b+5}
 buffer_store_dwordx4 {vr(QD+4*i,4)}, v9, {WS}, s{4+i} offen sc1""")

vSR = 15
def stat_consts():
    return L(f"""
 v_bfe_u32 v{vSW}, v0, 4, 4
 v_lshl_add_u32 v{vSW}, v1, 4, v{vSW}
 v_lshlrev_b32 v{vSW}, 2, v{vSW}
 v_add_u32 v{vSW}, {STAT}, v{vSW}
 v_lshlrev_b32 v{vSR}, 6, v1
 v_add_u32 v{vSR}, {STAT}, v{vSR}
 s_mov_b32 s30, 0x3b000000
 s_mov_b32 s31, 0x3b000000""")
def row_stats(src, tmp, off, mr, shadow):
    o = []
    a = tmp+8
    for r in range(2):
        b = src+8*r
        o.append(f" v_pk_add_f32 {vr(a+4*r,2)}, {vr(b,2)}, {vr(b+2,2)}")
        o.append(f" v_pk_mul_f32 {vr(a+4*r+2,2)}, {vr(b,2)}, {vr(b,2)}")
    for i in range(1, 4):
        for r in range(2):
            b = src+8*r+2*i
            if i >= 2: o.append(f" v_pk_add_f32 {vr(a+4*r,2)}, {vr(a+4*r,2)}, {vr(b,2)}")
            o.append(f" v_pk_fma_f32 {vr(a+4*r+2,2)}, {vr(b,2)}, {vr(b,2)}, {vr(a+4*r+2,2)}")
    for k in range(4): o.append(f" v_add_f32 v{tmp+k}, v{a+2*k}, v{a+2*k+1}")
    sh = list(shadow)
    def S(n): return take(sh, n)
    o += S(2) + [f" v_permlane32_swap_b32 v{tmp}, v{tmp+1}", f" v_permlane32_swap_b32 v{tmp+2}, v{tmp+3}",
          f" v_add_f32 v{tmp}, v{tmp}, v{tmp+1}", f" v_add_f32 v{tmp+2}, v{tmp+2}, v{tmp+3}"] + S(2) + \
         [f" v_permlane16_swap_b32 v{tmp}, v{tmp+2}", f" v_add_f32 v{tmp}, v{tmp}, v{tmp+2}"] + S(2) + \
         [f" v_add_f32_dpp v{tmp}, v{tmp}, v{tmp} row_ror:4 row_mask:0xf bank_mask:0xf"] + S(2) + \
         [f" v_add_f32_dpp v{tmp}, v{tmp}, v{tmp} row_ror:8 row_mask:0xf bank_mask:0xf", f" ds_write_b32 v{vSW}, v{tmp} offset:{off}"] + S(8) + \
         [" s_waitcnt lgkmcnt(0)", " s_barrier"] + \
         [f" ds_read_b128 {vr(tmp+8+4*k,4)}, v{vSR} offset:{off+16*k}" for k in range(4)] + S(99) + [" s_waitcnt lgkmcnt(0)"]
    o += L(f"""
 v_pk_add_f32 {vr(a,2)}, {vr(a,2)}, {vr(a+4,2)}
 v_pk_add_f32 {vr(a+8,2)}, {vr(a+8,2)}, {vr(a+12,2)}
 v_pk_add_f32 {vr(a+2,2)}, {vr(a+2,2)}, {vr(a+6,2)}
 v_pk_add_f32 {vr(a+10,2)}, {vr(a+10,2)}, {vr(a+14,2)}
 v_pk_add_f32 {vr(tmp,2)}, {vr(a,2)}, {vr(a+8,2)}
 v_pk_add_f32 {vr(tmp+2,2)}, {vr(a+2,2)}, {vr(a+10,2)}
 v_pk_mul_f32 {vr(tmp,2)}, {vr(tmp,2)}, s[30:31]
 v_pk_mul_f32 {vr(tmp+2,2)}, {vr(tmp+2,2)}, s[30:31]
 v_pk_fma_f32 {vr(tmp+2,2)}, {vr(tmp,2)}, {vr(tmp,2)}, {vr(tmp+2,2)} neg_lo:[1,0,0] neg_hi:[1,0,0]
 v_cvt_pk_bf16_f32 v{tmp+4}, v{tmp}, v{tmp+1}
 v_max_f32 v{tmp+2}, 0, v{tmp+2}
 v_max_f32 v{tmp+3}, 0, v{tmp+3}
 v_cvt_pk_bf16_f32 v{tmp+5}, v{tmp+2}, v{tmp+3}
 v_lshlrev_b32 v{tmp+2}, 16, v{tmp+5}
 v_and_b32 v{tmp+3}, {sMASK}, v{tmp+5}
 v_add_f32 v{tmp+2}, 0x3727c5ac, v{tmp+2}
 v_add_f32 v{tmp+3}, 0x3727c5ac, v{tmp+3}
 v_cvt_pk_bf16_f32 v{tmp+5}, v{tmp+2}, v{tmp+3}
 v_lshlrev_b32 v{tmp+2}, 16, v{tmp+5}
 v_and_b32 v{tmp+3}, {sMASK}, v{tmp+5}
 v_sqrt_f32 v{tmp+2}, v{tmp+2}
 v_sqrt_f32 v{tmp+3}, v{tmp+3}
 v_lshlrev_b32 v{mr}, 16, v{tmp+4}
 v_cvt_pk_bf16_f32 v{tmp+5}, v{tmp+2}, v{tmp+3}
 v_lshlrev_b32 v{tmp+2}, 16, v{tmp+5}
 v_and_b32 v{tmp+3}, {sMASK}, v{tmp+5}
 v_rcp_f32 v{mr+2}, v{tmp+2}
 v_rcp_f32 v{mr+3}, v{tmp+3}
 v_and_b32 v{mr+1}, {sMASK}, v{tmp+4}
 v_pk_mul_f32 {vr(mr,2)}, {vr(mr,2)}, {vr(mr+2,2)} neg_lo:[1,0] neg_hi:[1,0]""")
    return o
def norm_row(dst, src, mr, row):
    sel = f"op_sel:[0,{row},{row}] op_sel_hi:[1,{row},{row}]"
    return [f" v_pk_fma_f32 {vr(dst+8*row+2*i,2)}, {vr(src+8*row+2*i,2)}, {vr(mr+2,2)}, {vr(mr,2)} {sel}" for i in range(4)]
def unpack(dst, src): return [f" v_lshlrev_b32 v{dst}, 16, v{src}", f" v_and_b32 v{dst+1}, {sMASK}, v{src}"]
def ln1():
    tmp = 176; mr = 200; kd = 160
    o = []
    for r in range(2):
        for t in range(4): o += unpack(kd+8*r+2*t, vQ+4*t+2*r)
    for i in range(8): o += unpack(vu1+2*i, vX+i)
    sh = []
    for i in range(4): sh += unpack(vX+2*i, vD+i)
    for r in range(2):
        for t in range(4): sh.append(f" v_pk_mul_f32 {vr(kd+8*r+2*t,2)}, {vr(kd+8*r+2*t,2)}, {vr(vX+2*t,2)}")
    o += row_stats(vu1, tmp, 0, mr, sh)
    o += norm_row(vq, vu1, mr, 0) + norm_row(vq, vu1, mr, 1)
    for i in range(8): o.append(f" v_pk_fma_f32 {vr(vu1+2*i,2)}, {vr(vq+2*i,2)}, {vr(kd+2*i,2)}, {vr(vu1+2*i,2)}")
    return o
vY = 64
def ln2(P0, bulk, every):
    P = G(); P.cfg = P0.cfg
    vh, vn, tmp, mr = 80, 104, 112, 136
    for r in range(2):
        for t in range(4): P(unpack(vh+8*r+2*t, vY+4*t+2*r))
    for i in range(8): P(f" v_pk_fma_f32 {vr(vh+2*i,2)}, {vr(vq+2*i,2)}, {vr(vh+2*i,2)}, {vr(vu1+2*i,2)}")
    sh = [f" v_cvt_pk_bf16_f32 v{vHP+i}, v{vh+2*i}, v{vh+2*i+1}" for i in range(8)]
    for i in range(8): sh += unpack(vh+2*i, vHP+i)
    P(row_stats(vh, tmp, 256, mr, sh))
    for r in range(2):
        P(norm_row(vh, vh, mr, r))
        for i in range(4*r, 4*r+4): P(f" v_cvt_pk_bf16_f32 v{vn+i}, v{vh+2*i}, v{vh+2*i+1}")
        P(f" buffer_store_dwordx4 {vr(vn+4*r,4)}, v5, {WS}, {sHNst} offen offset:{64*r} sc1")
        P(f" v_xad_u32 v{tmp+r}, v{vn+4*r}, v{vn+4*r+1}, v{vn+4*r+2}\n v_add_u32 v{tmp+r}, v{tmp+r}, v{vn+4*r+3}")
    P(f"""
 v_permlane16_swap_b32 v{tmp}, v{tmp+1}
 v_add_u32 v{tmp}, v{tmp}, v{tmp+1}
 v_add_u32_dpp v{tmp}, v{tmp}, v{tmp} row_ror:8 row_mask:0xf bank_mask:0xf
 v_add_u32 v{tmp}, {sTAG}, v{tmp}
 buffer_store_dword v{tmp}, v{vC}, {WS}, {sHCst} offen sc1
""")
    if P.cfg["hnh"]: P(f" buffer_store_dword v{vY+1}, v13, {WS}, {sF0} offen sc1")
    interleave(P0, P.lines, bulk, every)
    assert not bulk
def h2_consts():
    return L(f"""
 v_mul_u32_u24 v14, {4*OB}, v2
 v_lshl_add_u32 v14, v1, 4, v14
 v_lshlrev_b32 v5, 9, v2
 v_lshl_add_u32 v5, v1, 4, v5
 v_lshrrev_b32 v{vC}, 2, v6
 v_add_u32 v{vC}, 4096, v{vC}
 s_lshr_b32 {sHNst}, {sP}, 2
 s_lshl_b32 {sHNst}, {sHNst}, 15
 s_and_b32 s3, {sP}, 3
 s_lshl_b32 s3, s3, 7
 s_add_u32 {sHNst}, {sHNst}, s3
 s_add_u32 {sHNst}, {sHNst}, {HN}
 s_lshl_b32 {sHCst}, {sP}, 2
 s_add_u32 {sHCst}, {sHCst}, {sW}
 s_lshl_b32 {sF0}, {sHCst}, 9
 s_add_u32 {sF0}, {sF0}, {HI}
 v_lshrrev_b32 v13, 6, v6
 v_lshlrev_b32 v13, 25, v13
 v_lshl_add_u32 v13, v1, 7, v13
 s_lshl_b32 {sFLst}, {sHCst}, 6
 s_add_u32 {sFLst}, {sFLst}, {FL-4352}
 s_lshl_b32 {sHCst}, {sHCst}, 8
 s_add_u32 {sHCst}, {sHCst}, {HC-4096}
 s_mov_b32 {sHRES}, {HRES}
 s_lshl_b32 s4, {sP}, 6
 s_add_u32 s4, s4, {YBOX}
 s_add_u32 s5, s4, {OB}
 s_add_u32 s6, s4, {2*OB}
 s_add_u32 s7, s4, {3*OB}""")

WARM = [0]
def warm_ops(n0, n1):
    o = []
    if n0 == 0:
        o += L(f""" v_bfe_u32 v16, v0, 3, 3
 v_min_u32 v16, 6, v16
 v_and_b32 v17, 7, v0
 v_lshlrev_b32 v17, 10, v17
 v_lshl_add_u32 v17, v16, 7, v17
 s_mul_i32 s4, {sW}, {448*1024}
 s_lshl_b32 s5, {sL3}, 13
 s_add_u32 s4, s4, s5
 s_add_u32 s5, s4, 32768""")
    for j in range(n0, n1):
        if j & 1 == 0:
            if j: o += [" v_add_u32 v16, 1, v16", " v_cmp_eq_u32 vcc, 7, v16", " v_cndmask_b32 v16, v16, 0, vcc"]
            o.append(" v_lshl_add_u32 v18, v16, 16, v17")
        o.append(f" buffer_load_dword v19, v18, {srd('WD')}, s{4 + (j & 1)} offen")
    return o
def wd_consts(a8):
    if a8: head = f"""
 s_bfe_u32 s3, s2, 0x20001
 s_lshl_b32 s3, s3, 3
 s_bfe_u32 {sT}, s2, 0x30003
 s_add_u32 {sSB}, s3, {sT}
 s_and_b32 {sE}, s2, 1
 s_lshl_b32 {sE}, {sE}, 2
 s_lshr_b32 s3, s2, 6
 s_add_u32 {sE}, {sE}, s3
 s_lshl_b32 {sE}, {sE}, 7
 s_lshl_b32 s3, s3, 1
 s_add_u32 s3, s3, {sT}"""
    else: head = f"""
 s_and_b32 s3, s2, 7
 s_lshl_b32 s3, s3, 2
 s_add_u32 {sSB}, s3, {sL3}
 s_lshl_b32 {sE}, {sJL}, 7
 s_lshl_b32 s3, {sL3}, 1""" + (f"""
 s_cmp_ge_u32 {sJL}, 7
 s_cselect_b32 s3, s3, 0""" if WARM[0] else "") + f"""
 s_add_u32 s3, s3, {sJL}"""
    o = L(head + f"""
 s_mul_i32 {sRING}, {sW}, {NR*1024}
 s_add_u32 {sRING}, {sRING}, {RING}
 s_mul_i32 s100, {sW}, {448*1024}
 s_add_u32 s100, s100, {sE}""")
    for i in range(7):
        if WARM[0] == 2:
            if i < 3: o += [f" s_add_u32 s101, s3, {i}"]
            else: o += L(f""" s_add_u32 s101, {sL3}, {i-3}
 s_and_b32 s101, s101, 3
 s_cmp_ge_u32 {sJL}, 7
 s_cselect_b32 s101, {i-3}, s101
 s_add_u32 s101, s101, 3
 s_add_u32 s101, s101, s3""")
            for rep in range(2): o += L(f""" s_cmp_ge_u32 s101, 7
 s_cselect_b32 {sT}, 7, 0
 s_sub_u32 s101, s101, {sT}""")
            o += [f" s_lshl_b32 {sT}, s101, 16", f" s_add_u32 s{sWD+i}, {sT}, s100"]
            continue
        o += L(f""" s_cmp_ge_u32 s3, 7
 s_cselect_b32 {sT}, 7, 0
 s_sub_u32 s3, s3, {sT}
 s_lshl_b32 {sT}, s3, 16
 s_add_u32 s{sWD+i}, {sT}, s100
 s_add_u32 s3, s3, 1""")
    return o
def wd_rconsts(t):
    return L(f"""
 v_bfe_u32 v{t}, v0, 5, 1
 v_bfe_u32 v{t+1}, v0, 4, 1
 v_bfe_u32 v{t+2}, v0, 2, 2
 v_lshl_add_u32 v{t}, v{t}, 2, v{t+2}
 v_lshlrev_b32 v{t}, 7, v{t}
 v_lshl_add_u32 v{t}, v1, 3, v{t}
 v_add_u32 v{t}, {sRING}, v{t}
 v_and_b32 v{t+2}, 2, v{t+2}
 v_or_b32 v{t+2}, v{t+2}, v{t+1}
 v_lshl_add_u32 v{vWr[0]}, v{t+2}, 5, v{t}
 v_xor_b32 v{t+2}, 2, v{t+2}
 v_lshl_add_u32 v{vWr[1]}, v{t+2}, 5, v{t}""")
def wd_dma(m, base=sRING, slot=None):
    i, r = m // 8, m & 7
    o = []
    if slot is None:
        slot = m % NR
        if m >= NR: o.append(f"DWAIT:wd{m-NR}")
    o.append(f" s_add_u32 m0, {base}, {slot*1024}")
    if r: o += [f" s_add_u32 s100, s{sWD+i}, {r*8192}", f" buffer_load_dwordx4 v{vWD}, {srd('WD')}, s100 offen lds"]
    else: o += [f" buffer_load_dwordx4 v{vWD}, {srd('WD')}, s{sWD+i} offen lds"]
    return o + [f"MARK:wd{m}"]
def wd_read(m, slot=None):
    d = (m >> 1)*8 + 2*(m & 1)
    if slot is None: slot = m % NR
    return [f"WAIT:wd{m}"] + [f" ds_read_b64_tr_b16 {ar(d+4*tau,2)}, v{vWr[tau]} offset:{slot*1024}" for tau in range(2)] + [f"DMARK:wd{m}"]
def wd_stream(d, rd, N):
    o = []
    while d < min(N, rd + NR - 1): o += wd_dma(d); d += 1
    for m in range(rd, N):
        o += wd_read(m)
        if d < N and d <= m + NR - 1: o += wd_dma(d); d += 1
    return o

def g_sconsts(nbig):
    o = [f" s_mul_i32 s3, {sSB}, {56*GS}", f" s_add_u32 s3, s3, {HH}"]
    for i in range(7):
        o += L(f""" s_lshr_b32 {sT}, s{sWD+i}, 16
 s_mul_i32 {sT}, {sT}, {GS}
 s_add_u32 s{sHL+i}, {sT}, s3
 s_add_u32 s{sHL+7+i}, s{sHL+i}, {28*GS}""")
    o += L(f"""
 s_lshl_b32 {sO0}, {sSB}, 16
 s_add_u32 {sO0}, {sO0}, {sE}
 s_add_u32 {sO1}, {sO0}, 32768
 s_add_u32 {sHR0}, {sO0}, {HRES}
 s_add_u32 {sHR1}, {sO1}, {HRES}
 s_lshl_b32 s3, {sG}, 2
 s_add_u32 s3, s3, {sW}
 s_mul_i32 {sHS0}, s3, 56
 s_add_u32 {sHS0}, {sHS0}, {sJ}
 s_mul_i32 {sHS0}, {sHS0}, {GS}
 s_add_u32 {sHS0}, {sHS0}, {HH}
 s_add_u32 {sHS1}, {sHS0}, {28*GS}
 s_lshl_b32 {sFLld}, s3, 13
 s_add_u32 {sFLld}, {sFLld}, {HC}
 s_lshl_b32 s3, s3, 16
 s_add_u32 s3, s3, {HN}""")
    for g in range(8):
        o += [f" s_add_u32 {sT}, {sJL}, {g}", f" s_and_b32 {sT}, {sT}, 7", f" s_lshl_b32 s{sHC+g}, {sT}, 7", f" s_add_u32 s{sHC+g}, s{sHC+g}, {sFLld}", f" s_lshl_b32 {sT}, {sT}, 12", f" s_add_u32 s{sHN+g}, {sT}, s3"]
    o += L(f"""
 s_lshl_b32 {sFLld}, {sSB}, 3
 s_add_u32 {sFLld}, {sFLld}, {sW}
 s_mul_i32 {sPH0}, {sFLld}, {7*GS}
 s_add_u32 {sPH0}, {sPH0}, {HH+4352}
 s_add_u32 {sPH1}, {sPH0}, {28*GS}
 s_lshl_b32 {sFLld}, {sFLld}, 2
 s_lshr_b32 s3, {sE}, 8
 s_add_u32 {sFLld}, {sFLld}, s3
 s_lshl_b32 {sFLld}, {sFLld}, 6
 s_add_u32 {sFLld}, {sFLld}, {FL}
 s_and_b32 s3, {sW}, 1
 s_mul_i32 s3, s3, {nbig*1024}
 s_lshr_b32 {sBIG}, {sW}, 1
 s_lshl_b32 {sBIG}, {sBIG}, 16
 s_add_u32 {sBIG}, {sBIG}, s3""") + srdc(("OUT",))
    return o
def g_vconsts():
    t = 232
    o = L(f"""
 v_bfe_u32 v{t}, v0, 5, 1
 v_bfe_u32 v{t+1}, v0, 4, 1
 v_bfe_u32 v{t+2}, v0, 2, 2
 v_bfe_u32 v{vHC}, v0, 3, 2
 v_lshlrev_b32 v{vHC}, 10, v{vHC}
 v_lshl_add_u32 v{vHC}, v{t}, 4, v{vHC}
 v_lshl_add_u32 v{t}, v{t}, 3, v{t+2}
 v_lshlrev_b32 v{t+4}, 7, v{t}
 v_lshl_add_u32 v{t+4}, v1, 3, v{t+4}
 v_lshl_add_u32 v{t+4}, v{t+1}, 16, v{t+4}
 v_lshrrev_b32 v{t+2}, 1, v{t+2}
 v_lshl_add_u32 v{t+2}, v{t+1}, 1, v{t+2}
 v_add_u32 v{vL2}, 32768, v6""")
    for k in range(4): o += [f" v_xor_b32 v{t+3}, {k}, v{t+2}", f" v_lshl_add_u32 v{vRa+k}, v{t+3}, 5, v{t+4}"]
    o += L(f"""
 v_bfe_u32 v4, v0, 2, 1
 v_lshl_add_u32 v{vHC}, v4, 6, v{vHC}
 v_lshl_add_u32 v{vHC}, v1, 2, v{vHC}
 v_add_u32 v{vHC1}, 4096, v{vHC}
 v_lshrrev_b32 v{t}, 3, v0
 v_and_b32 v{t+1}, 24, v{t}
 v_and_b32 v{t+2}, 3, v{t}
 v_lshl_add_u32 v{t+1}, v{t+2}, 1, v{t+1}
 v_bfe_u32 v{t+2}, v{t}, 2, 1
 v_add_u32 v{t+1}, v{t+1}, v{t+2}
 v_lshlrev_b32 v{t+1}, 10, v{t+1}
 v_and_b32 v{t+2}, 7, v0
 v_lshl_add_u32 v{vOUT}, v{t+2}, 4, v{t+1}
 v_mul_u32_u24 v{vPH}, {GS//16}, v6
 v_add_u32 v4, 16, v6
 v_lshrrev_b32 v4, 7, v4
 v_lshl_add_u32 v{vPH}, v4, 25, v{vPH}
 v_lshlrev_b32 v{vONE}, 21, v6
 v_add_u32 v{vONE}, 4352, v{vONE}
 v_mov_b32 v{vTG}, {sTAG}""")
    return o
HST = [f" buffer_store_dwordx4 {vr(vHP,4)}, v3, {WS}, {sHRES} offen sc1", f" buffer_store_dwordx4 {vr(vHP+4,4)}, v3, {WS}, {sHRES} offen offset:1024 sc1", "MARK:HST"]
FLAGST = f" buffer_store_dword v{vTG}, v{vONE}, {WS}, {sFLst} offen sc1"
FLAGLD = [" v_lshrrev_b32 v1, 5, v6\n v_lshlrev_b32 v1, 25, v1", " v_lshl_add_u32 v1, v6, 6, v1", f" v_mov_b32 v3, 0\n buffer_atomic_or v3, v1, {WS}, {sFLld} offen sc0 sc1"]
HRESLD = [f" buffer_load_dwordx4 {vr(vE,4)}, v{vOUT}, {WS}, {sHR0} offen sc1", f" buffer_load_dwordx4 {vr(vE+4,4)}, v{vOUT}, {WS}, {sHR1} offen sc1", "MARK:hres"]
def poll(dst, voff, soff): return f" v_mov_b32 v{dst}, 0\n buffer_atomic_or v{dst}, v{voff}, {WS}, {soff} offen sc0 sc1"
def pollcmp(dst, mask): return [f" v_cmp_ne_u32 vcc, {sTAG}, v{dst}", f" s_and_b64 vcc, vcc, {mask}"]
def hn_regs(G_): return vHN + 16*(G_ % 4)
def hn_loads(G_):
    return [f" buffer_load_dwordx4 {vr(hn_regs(G_)+4*k,4)}, v{6 if G_ < 8 else vL2}, {WS}, s{sHN+(G_&7)} offen offset:{k*1024} sc1" for k in range(4)] + \
           [f" buffer_load_dword v{CHN[G_%4]}, v{vHC if G_ < 8 else vHC1}, {WS}, s{sHC+(G_&7)} offen sc1"]
def hh_loads(u, i):
    return [f" buffer_load_dwordx4 {vr(HREG[(u,i)]+4*t,4)}, v6, {WS}, s{sHL+7*u+i} offen offset:{t*1024} sc1" for t in range(4)] + \
           [f" buffer_load_dword v{CHH[(u,i)]}, v{vC}, {WS}, s{sHL+7*u+i} offen sc1"]
def hashchain(r, chk):
    o = []
    for f in range(4):
        b = r + 4*f
        o.append(f" v_xad_u32 v4, v{b}, v{b+1}, {sTAG if f == 0 else 'v4'}")
        o.append(f" v_add3_u32 v4, v4, v{b+2}, v{b+3}")
    return o + [f" v_cmp_ne_u32 vcc, v4, v{chk}"]
def retry_check(P, o, loads, later, name, sleep):
    blk = [f"L_{name}_r:", f" s_sub_u32 {sSPIN}, {sSPIN}, 1", f" s_cbranch_scc1 L_{name}_x", f" s_sleep {sleep}"] + loads + [" s_waitcnt vmcnt(0)"] + o + [f" s_cbranch_vccnz L_{name}_r"]
    blk += later + ([" s_waitcnt vmcnt(0)"] if later else []) + [f" s_branch L_{name}_b", f"L_{name}_x:", f" s_mov_b32 {sSPIN}, 0", f" s_branch L_{name}_b"]
    P.tail += blk
    return o + [f" s_cbranch_vccnz L_{name}_r\nL_{name}_b:"]
def hint_spin(name, s, back):
    return [f"L_{name}:", poll(vPD, vPH, s), " s_waitcnt vmcnt(0)"] + pollcmp(vPD, 0x7f) + [f" s_cbranch_vccz {back}", " s_sleep 8",
            f" s_sub_u32 {sSPIN}, {sSPIN}, 1", f" s_cbranch_scc0 L_{name}", f" s_mov_b32 {sSPIN}, 0"]
def epi_tile(acc, ups, t, out, pk):
    o = []
    if pk:
        for i in range(4): o.append(f" v_pk_mul_f32 {vr(vE+2*i,2)}, {vr(acc+2*i,2)}, s[4:5]")
    else:
        for i in range(8): o.append(f" v_mul_f32 v{vE+i}, 0xbfb8aa3b, v{acc+i}")
    for i in range(8): o.append(f" v_exp_f32 v{vE+i}, v{vE+i}")
    if pk:
        for i in range(4): o.append(f" v_pk_add_f32 {vr(vE+2*i,2)}, {vr(vE+2*i,2)}, 1.0 op_sel_hi:[1,0]")
    else:
        for i in range(8): o.append(f" v_add_f32 v{vE+i}, 1.0, v{vE+i}")
    for i in range(8): o.append(f" v_rcp_f32 v{vE+i}, v{vE+i}")
    if pk:
        for i in range(4): o.append(f" v_pk_mul_f32 {vr(vE+2*i,2)}, {vr(vE+2*i,2)}, {vr(acc+8+2*i,2)}")
    else:
        for i in range(8): o.append(f" v_mul_f32 v{vE+i}, v{vE+i}, v{acc+8+i}")
    for i in range(4): o.append(f" v_cvt_pk_bf16_f32 v{out+i}, v{vE+2*i}, v{vE+2*i+1}")
    sb = sHS1 if ups else sHS0
    o.append(f" buffer_store_dwordx4 {vr(out,4)}, v6, {WS}, {sb} offen offset:{t*1024} sc1")
    o.append(f" v_xad_u32 v{vHASH}, v{out}, v{out+1}, {sTAG if t == 0 else 'v%d' % vHASH}")
    o.append(f" v_add3_u32 v{vHASH}, v{vHASH}, v{out+2}, v{out+3}")
    if t == 3:
        o.append(f" buffer_store_dword v{vHASH}, v{vC}, {WS}, {sb} offen sc1")
        o.append(f" buffer_store_dword v{vTG}, v{vONE}, {WS}, {sb} offen sc1")
    return o

def gemm1(P, cfg, wds):
    seq = [(u, k, t) for u in range(2) for k in range(32) for t in range(4)]
    D = 6; LA = 3
    MB = cfg["wd_big"]
    def reads(n):
        u, k, t = seq[n]; d = aC + 4*(n % 8)
        return [f" ds_read_b64_tr_b16 {ar(d+2*io,2)}, v{vRa+t} offset:{k*2048+io*512}" for io in range(2)] + [f"DMARK:w{n}"]
    def hn_issue(g): return hn_loads(g) + [f"MARK:hn{g}"]
    def hn_check(g):
        later = []
        for gg in range(g+1, min(16, g+LA)): later += hn_loads(gg)
        return [f"WAIT:hn{g}"] + retry_check(P, hashchain(hn_regs(g), CHN[g%4]), hn_loads(g), later, f"hn{g}", cfg["bo"])
    for n in range(D): P(reads(n))
    if cfg["hnh"]:
        hl = f" buffer_load_dword v{vPD}, v221, {WS}, {sF0} offen sc1"
        P(["WAIT:phn"] + retry_check(P, [f" v_cmp_ne_u32 vcc, {sTAG}, v{vPD}"], [hl], [], "phn", cfg["hbo"]))
    P.st("hint")
    for g in range(LA): P(hn_issue(g))
    P(hn_check(0))
    P.st("hn0")
    wq_ = list(wds); fill = []; urgent = []; wacc = 0.0; lastv = -9
    h0 = poll(vPD, vPH, sPH0)
    for n, (u, k, t) in enumerate(seq):
        budget = cfg["slots"][u]
        g = 8*u + k//4
        if t == 0:
            if k % 4 == 0:
                while urgent: P(urgent.pop(0))
                if g + LA < 16: urgent += hn_issue(g + LA)
            if k % 4 == 3 and g + 1 < 16: urgent += hn_check(g + 1)
            if (u, k) == (1, 0):
                P.st("p0")
                P(urgent); urgent = []
                P(" s_mov_b32 s4, 0xbfb8aa3b\n s_mov_b32 s5, 0xbfb8aa3b")
                held = []; ex = []
                for tt in range(4):
                    pk = tt < cfg["e0_exp"]
                    for x in epi_tile(acc0+16*tt, 0, tt, acc0+16*tt, pk):
                        (held if x.lstrip().startswith("buffer_store") else (ex if pk else fill)).append(x)
                P(ex)
                fill += held + (["WAIT:HST", FLAGST] if cfg['h_early'] else HST)
                if cfg["e0_exp"] == 4: P(fill); fill = []
                P.st("e0")
            if u == 1 and k == cfg["h0_k"] and cfg["hhh"]: urgent += [h0, "MARK:ph0"]
            if u == 1 and k in cfg["hh_at"]:
                i = cfg["hh_at"][k]
                assert not fill
                if i == 0:
                    if not cfg['h_early']: urgent += ["WAIT:HST", FLAGST]
                    if cfg["hhh"]: urgent += ["WAIT:ph0"] + retry_check(P, pollcmp(vPD, 0x7f), [h0], [], "ph0", cfg["hbo"])
                urgent += hh_loads(0, i) + [f"MARK:hh0_{i}"]
        if n % 2 == 0: P(f"DWAIT:w{n+1}")
        else: budget -= 1
        a = (acc1 if u else acc0) + 16*t
        P(f" v_mfma_f32_32x32x16_bf16 {vr(a,16)}, {ar(aC+4*(n%8),4)}, {vr(hn_regs(g)+4*(k&3),4)}, {'0' if k == 0 else vr(a,16)}")
        if n + D < len(seq):
            P(reads(n+D)); budget -= 2
        wacc += cfg["wd_rate"][u]
        had = bool(fill)
        for q in (urgent, wq_, fill):
            while q and (budget >= P.cost(q[0]) or P.cost(q[0]) == 0):
                if q[0].lstrip().startswith("buffer_"):
                    if n - lastv < cfg["vgap"]: break
                    lastv = n
                if q is wq_:
                    if wacc < 1 and P.cost(q[0]) > 0: break
                    wacc -= P.cost(q[0])
                x = q.pop(0); budget -= P.cost(x); P(x)
        if had and not fill: print("epilogue0 done at k", k)
    print('left: wd', len(wq_), 'fill', len(fill))
    P(urgent); P(wq_); P(fill)
    P.st("p1")
    P(" s_mov_b32 s4, 0xbfb8aa3b\n s_mov_b32 s5, 0xbfb8aa3b")
    big = []
    if MB < 56:
        P(" s_barrier")
        for m in range(MB, 56): big.append("\n".join(wd_dma(m, sBIG, m - MB)))
    e1 = []; held = []
    for tt in range(4):
        for x in epi_tile(acc1+16*tt, 1, tt, acc1+16*tt, True):
            (held if (cfg["hold"] and x.lstrip().startswith("buffer_store")) else e1).append(x)
    pre = []
    for i in range(len(cfg["hh_at"]), 7): pre += hh_loads(0, i) + [f"MARK:hh0_{i}"]
    pre = FLAGLD + ["MARK:flag"] + pre + take(big, cfg["big_pre"])
    if cfg["pre_late"]: P(e1)
    else: interleave(P, e1, pre, cfg["big_every"])
    P(held)
    P(pre)
    P.big = big
    P.st("epi")
    P.st("ld0")

def red_consts():
    return L(f"""
 s_mul_i32 s3, {sW}, {REDW}
 v_add_u32 v12, s3, v6
 v_and_b32 v15, 7, v0
 v_lshrrev_b32 v13, 3, v0
 v_mul_u32_u24 v15, {BS}, v15
 v_lshl_add_u32 v13, v13, 4, v15
 v_add_u32 v14, {2*REDW}, v13""")
def red_write(ups): return [f" ds_write_b128 v12, {vr(acc2+4*blk,4)} offset:{blk*BS}" for blk in range(8*ups, 8*ups+8)]
def red_read(ups, b): return [f" ds_read_b128 {vr(b+8*w+4*h,4)}, {'v13' if w < 2 else 'v14'} offset:{ups*8*BS + h*512 + (w&1)*REDW}" for w in range(4) for h in range(2)]
def red_fin(ups, b, hx, pk, fl):
    o = []
    for (x, y) in ((0, b+8), (16, b+24), (0, hx), (0, b+16)):
        if pk:
            for i in range(4): o.append(f" v_pk_add_f32 {vr(b+x+2*i,2)}, {vr(b+x+2*i,2)}, {vr(y+2*i,2)}")
        else:
            for i in range(8): o.append(f" v_add_f32 v{b+x+i}, v{b+x+i}, v{y+i}")
    for i in range(4): o.append(f" v_cvt_pk_bf16_f32 v{b+16+i}, v{b+2*i}, v{b+2*i+1}")
    o.append(f" buffer_store_dwordx4 {vr(b+16,4)}, v{vOUT}, {srd('OUT')}, {sO0 if ups == 0 else sO1} offen {fl}")
    return o
def gemm2(P, cfg):
    order = [(0, i) for i in range(7)] + [(1, i) for i in range(7)]
    MB = cfg["wd_big"]
    issued = order[:7]
    sched = cfg["b1_at"]
    def chk(pos):
        u, i = order[pos]
        later = []
        for x in order[pos+1:]:
            if x in issued and x[0] == u: later += hh_loads(*x)
        return [f"WAIT:hh{u}_{i}"] + retry_check(P, hashchain(HREG[(u,i)], CHH[(u,i)]), hh_loads(u, i), later, f"hh{u}_{i}", cfg["bo"])
    bigrd = []
    if MB < 56:
        P([f" s_sub_u32 s3, {sBIG}, {sRING}", f" v_add_u32 v{vWr[0]}, s3, v{vWr[0]}", f" v_add_u32 v{vWr[1]}, s3, v{vWr[1]}"])
        for m in range(MB, 56): bigrd += wd_read(m, m - MB)
    P(chk(0))
    hres = [f" buffer_load_dwordx4 {vr(vE,4)}, v{vOUT}, {WS}, {sHR0} offen sc1", f" buffer_load_dwordx4 {vr(vE+4,4)}, v{vOUT}, {WS}, {sHR1} offen sc1", "MARK:hres"]
    flag = [f" buffer_load_dword v3, v1, {WS}, {sFLld} offen sc1"]
    T0 = 112; HX = 16
    for pos, (u, i) in enumerate(order):
        fill = []
        h1 = poll(vPD, vPH, sPH1)
        p1st = min(sched)
        if pos == p1st - cfg["h1_lead"] and cfg["hh1"]: fill += [h1, "MARK:ph1"]
        if pos == p1st:
            if cfg["hh1"]: fill += ["WAIT:ph1"] + retry_check(P, pollcmp(vPD, 0x7f), [h1], [], "ph1", cfg["hbo"])
            else:
                P.tail += hint_spin("ip1", sPH1, "L_ip1b") + [" s_branch L_ip1b"]
                fill += [f" s_cmp_ge_u32 {sJL}, 7\n s_cbranch_scc1 L_ip1\nL_ip1b:"]
        for gi in sched.get(pos, []):
            x = (1, gi)
            prev = [y for y in order[:order.index(x)] if HREG[y] == HREG[x]]
            assert all(order.index(y) < pos for y in prev), x
            fill += hh_loads(*x) + [f"MARK:hh{x[0]}_{x[1]}"]; issued.append(x)
        if pos < 3:
            for x in take(P.big, cfg["big_per"]): fill += x.split("\n")
        if pos == cfg["hres_at"]: fill += ["WAIT:flag"] + retry_check(P, pollcmp(3, 3), FLAGLD[2:], [], "flag", cfg["bo"]) + HRESLD
        if pos == MB//8 - 1:
            assert not P.big
            fill += bigrd + [" s_waitcnt lgkmcnt(0)"]
        if pos == 7: fill += red_consts() + [" s_barrier"]
        if pos == 8: fill += red_write(0)
        if pos == 9: fill += [" s_waitcnt lgkmcnt(0)", " s_barrier"] + red_read(0, T0)
        if pos == 11:
            fill += ["WAIT:hres"]
            for k in range(8): fill += unpack(HX+2*k, vE+k)
            fill += [" s_waitcnt lgkmcnt(0)"]
        if pos == 12: fill += red_fin(0, T0, HX, False, cfg["outf"])[:24]
        if pos == 13: fill += red_fin(0, T0, HX, False, cfg["outf"])[24:]
        assert MB >= 32
        late = chk(pos+1) if pos+1 < len(order) else []
        n = 0
        for t in range(4):
            for tau in range(2):
                a = acc2+32*u+16*tau
                P(f" v_mfma_f32_32x32x16_bf16 {vr(a,16)}, {ar(((i*4+t)*2+tau)*4,4)}, {vr(HREG[(u,i)]+4*t,4)}, {'0' if (i == 0 and t == 0) else vr(a,16)}")
                n += 1
                if n <= 5:
                    b = 5; nv = 0
                    while fill and b > 0:
                        if fill[0].lstrip().startswith("buffer_"):
                            if nv >= cfg["v2"]: break
                            nv += 1
                        b -= P.cost(fill[0]); P(fill.pop(0))
                else:
                    P(take(fill, 99)); P(take(late, 5))
        P(late)
        if pos == 6: P.st("b0")
    P.st("g2")
    P(red_write(1))
    P(" s_waitcnt lgkmcnt(0)\n s_barrier")
    P(red_read(1, 144))
    P(" s_waitcnt lgkmcnt(0)")
    P(red_fin(1, 144, HX+8, True, cfg["outf"]))

def build(cfg, stamps=False):
    P = G(stamps); P.cfg = cfg; WARM[0] = cfg['warm']
    if cfg.get("dbg"): P.only = cfg["dbg"].split(",")
    entry(P, cfg)
    setupB = a_consts() + roles()
    P(take(setupB, cfg["nsetB"]))
    if cfg["f_at"] == 0: P(filter_dma(cfg))
    else: P(f""" v_and_b32 v4, 79, v0
 v_lshrrev_b32 v5, 2, v4
 v_and_or_b32 v4, v5, 16, v4
 v_and_b32 v4, 31, v4
 v_lshlrev_b32 v4, 7, v4
 buffer_load_dword v{vDUM}, v4, {srd('SSMK')}, {sF0} offen {cfg['fnt']}""")
    if cfg["x_at"] == 0: P(x_loads())
    if cfg["wt"] == 0: P(w_touch(cfg["wtnt"], cfg["wth"]))
    P(tag_setup())
    P.st("pre")
    P.vmwait("L1")
    P.st("L1")
    p0_kv(P)
    P.st("kvst")
    if cfg["f_at"] == 1:
        if cfg["kbar"]: P(" s_barrier")
        P(filter_dma(dict(fnt=cfg["fnt2"])))
    if cfg["wdm"] == 1: P(wd_mall())
    if cfg["wt"] == 1: P(w_touch(cfg["wtnt"], cfg["wth"]))
    if cfg["x_at"] == 1: P(x_loads())
    P(setupB)
    late = conv_setup() + h1_addr()
    if cfg["f_at"] == 1: P(late + w_table()); late = []
    P.vmwait("A")
    P(" s_barrier")
    P.st("bar")
    if late: P(late + w_table())
    ap = a_prep(cfg['lazy']) + (wd_consts(cfg['a8']) if cfg["wdc_at"] == 1 else [])
    if cfg["can1"]: P(canary_issue(cfg, 64*OB))
    P(take(ap, cfg["ap_pre"]))
    if cfg["can1"]: P(canary_check(P, "c1", cfg["cbo"]))
    P.st("aprep")
    ng = cfg["g1"]
    early = []
    for i in range(ng): early += w_pair(i, cfg["wnt"])[:2]
    box_recv(P, vIN, "h1", cfg["bo"], ([" s_barrier"] + early if ng else []) + ap)
    kv_to_lds(P)
    P.st("h1")
    if cfg["im"]:
        o, n = idle_mall("im", cfg["im"]); P(o); P.nvm -= n
    wq = []
    for i in range(cfg.get("nw", 16)):
        p = w_pair(i, cfg["wnt"])
        if i < ng: wq += [p[0] + "\n" + p[2], p[3]]
        else: wq += p
    if cfg["x_at"] == 2: P(x_loads())
    if cfg["wdm"] == 2: P(wd_mall())
    conv_mfma(P, wq, cfg["wsched"])
    print("W ops left after conv:", len(wq)//2)
    P.st("mfma")
    conv_epilogue(P)
    P.mark("YST")
    P.st("yst")
    P(" s_barrier")
    if cfg["wdc_at"] == 2: P(wd_consts(cfg['a8']))
    nd = cfg["wd_pre"]
    wl = wq[2*cfg["w3"]:]; wq = wq[:2*cfg["w3"]]
    n3 = cfg["wd3"]
    b3 = ["\n".join(wd_dma(m)) for m in range(n3)] + wq
    if cfg["wdm"] == 3: P(wd_mall())
    P.vmwait("X")
    interleave(P, stat_consts() + ln1(), b3, cfg["w3_every"])
    P(b3)
    gs = g_sconsts(56 - cfg["wd_big"])
    P(h2_consts())
    if cfg.get("dly2"): P(f" s_sleep {cfg['dly2']}")
    if cfg["can2"]: P(canary_issue(cfg, OB))
    P(wd_rconsts(48))
    if cfg["can2"]: P(canary_check(P, "c2", cfg["cbo"]))
    P.st("ln1")
    anyw = True
    q4 = take(wl, 2*cfg["w4"])
    box_recv(P, vY, "h2", cfg["bo"], [" s_barrier"] + q4 if q4 else None)
    P.st("h2")
    ln2(P, take(wl, 2*cfg["w5"]), cfg["w5_every"])
    if cfg["h_early"]: P(HST)
    P.st("hnst")
    if cfg["warm"]:
        P([f" s_cmp_lt_u32 {sJL}, 7", " s_cbranch_scc1 L_nowarm"] + ([] if cfg["h_early"] else HST[:2]) + warm_ops(0, cfg["mw_at"]) + idle_mall("x", 8)[0][2:-1] + warm_ops(cfg["mw_at"], cfg["nwarm"]) + ["L_nowarm:"]); P.nvm -= (2 if cfg["h_early"] else 4) + cfg["nwarm"]
    d = n3
    for m in range(d): P(wd_read(m))
    rd = d
    if cfg["wd_first"]:
        while d < nd: P(wd_dma(d)); d += 1
    P(wl); P.mark("WALL")
    while d < nd: P(wd_dma(d)); d += 1
    post = g_vconsts() + gs
    P(take(post, cfg["hn_hint_at"]))
    if cfg["hnh"]:
        P(f""" s_lshl_b32 {sF0}, {sG}, 2
 s_add_u32 {sF0}, {sF0}, {sW}
 s_lshl_b32 {sF0}, {sF0}, 14
 s_bfe_u32 s30, s2, 0x20001
 s_lshl_b32 s30, s30, 7
 s_add_u32 {sF0}, {sF0}, s30
 s_add_u32 {sF0}, {sF0}, {HI}
 v_and_b32 v221, {cfg['hn_nh']-1}, v0
 v_lshlrev_b32 v221, 9, v221
 buffer_load_dword v{vPD}, v221, {WS}, {sF0} offen sc1
MARK:phn""")
    P(post)
    P(f"""
 s_or_b32 s3, s2, {sW}
 s_cmp_lg_u32 s3, 0
 s_cbranch_scc1 L_notag
 v_lshlrev_b32 v4, 21, v6
 buffer_store_dword v{vTG}, v4, {WS}, 0 offen sc1
L_notag:
""")
    P.nvm -= 1
    if cfg.get("dly3"): P(f" s_sleep {cfg['dly3']}")
    if anyw: P("WAIT:WALL\n s_barrier")
    P.st("g1go")
    P(f" s_cmp_ge_u32 {sJL}, 7\n s_cbranch_scc1 L_idle")
    save = (P.nvm, P.nds, P.vmdone, P.dsdone, dict(P.marks), dict(P.dmarks))
    MB = cfg["wd_big"]
    if cfg.get("nowd"): cfg["wd_big"] = MB = 56; d = rd = 56
    gemm1(P, cfg, wd_stream(d, rd, MB))
    P(" s_waitcnt lgkmcnt(0)\nL_join:")
    gemm2(P, cfg)
    if stamps:
        P(" s_waitcnt vmcnt(0)"); P.st("end")
        P(f" v_writelane_b32 v11, {sSPIN}, 63\n s_lshl_b32 s3, s2, 10\n s_add_u32 s3, s3, {STAMPS}\n v_lshlrev_b32 v1, 2, v0\n buffer_store_dword v11, v1, {WS}, s3 offen")
    P("L_end:\n s_endpgm")
    P.nvm, P.nds, P.vmdone, P.dsdone, P.marks, P.dmarks = save
    P("L_idle:")
    if cfg["warm"]: P([" s_waitcnt vmcnt(0)", FLAGST])
    else: P(([] if cfg["h_early"] else HST) + ["WAIT:HST", FLAGST])
    P(wd_stream(d, rd, MB))
    for m in range(MB, min(56, MB + cfg["big_pre"])): P(wd_dma(m, sBIG, m - MB))
    for nm in ("hint","hn0","p0","e0","p1","epi"): P.st(nm)
    P(hint_spin("ip0", sPH0, "L_ip0b") + ["L_ip0b:"])
    for i in range(7): P(hh_loads(0, i))
    P(FLAGLD)
    P(" s_waitcnt vmcnt(0) lgkmcnt(0)")
    P.st("ld0")
    P(" s_branch L_join")
    P(P.tail)
    P("L_codeend:")
    if os.environ.get("STAMP") == "2": P.lines = [l.replace("s_memrealtime", "s_memtime") for l in P.lines]
    body = P.fix()
    head = open("sequential_preLN__ssm_conv_h3__glu_gated_glu__prompt.s.ref").read().split("; Override launch")[0]
    out = head + f"; @launch grid=(256,1,1) block=(256,1,1) lds={LDS_BYTES}\n"
    out += f'.amdgcn_target "amdgcn-amd-amdhsa--gfx950"\n.text\n.globl {NAME}\n.p2align 8\n.type {NAME},@function\n{NAME}:\n' + body
    out += f""" s_endpgm
.section .rodata,"a"
.p2align 6
.amdhsa_kernel {NAME}
  .amdhsa_next_free_vgpr 512
  .amdhsa_next_free_sgpr 102
  .amdhsa_accum_offset 256
  .amdhsa_group_segment_fixed_size 0
  .amdhsa_kernarg_size 104
  .amdhsa_user_sgpr_count 2
  .amdhsa_user_sgpr_kernarg_segment_ptr 1
  .amdhsa_system_sgpr_workgroup_id_x 1
.end_amdhsa_kernel
"""
    if cfg.get("probe"):
        idx = P.stn.index(cfg["probe"])
        Q = G()
        Q(f"""
 s_cmp_ge_u32 s2, 1
 s_cbranch_scc1 L_pend
 s_load_dwordx2 s[48:49], s[0:1], 96
 s_mov_b32 s50, {WS_BYTES}
 s_mov_b32 s51, 0x20000
 v_lshlrev_b32 v1, 8, v0
 v_mov_b32 v2, 0
 s_waitcnt lgkmcnt(0)
 s_mov_b32 s3, {STAMPS}
 buffer_load_dword v3, v2, s[48:51], s3 offen
 v_mov_b32 v4, 0x7fffffff
 v_mov_b32 v5, 0x80000000
 s_mov_b32 s4, {16 if cfg['probe'] == 'end' else 14}
L_pl:
 buffer_load_dword v6, v1, s[48:51], s3 offen
 buffer_load_dword v7, v1, s[48:51], s3 offen offset:{4*idx}
 s_waitcnt vmcnt(0)
 v_sub_u32 v6, v6, v3
 v_sub_u32 v7, v7, v3
 v_min_i32 v4, v4, v6
 v_max_i32 v5, v5, v7
 s_add_u32 s3, s3, 16384
 s_sub_u32 s4, s4, 1
 s_cmp_lg_u32 s4, 0
 s_cbranch_scc1 L_pl
 s_mov_b32 s5, 0x7fffffff
 s_mov_b32 s6, 0x80000000
 s_mov_b32 s4, 0
L_pr:
 v_readlane_b32 s7, v4, s4
 v_readlane_b32 s8, v5, s4
 s_nop 1
 s_min_i32 s5, s5, s7
 s_max_i32 s6, s6, s8
 s_add_u32 s4, s4, 1
 s_cmp_lg_u32 s4, 64
 s_cbranch_scc1 L_pr
 s_sub_u32 s6, s6, s5
 s_min_u32 s6, s6, 10000
 s_mul_i32 s6, s6, {cfg.get('pmul', 10)}
 s_memrealtime s[10:11]
 s_waitcnt lgkmcnt(0)
L_ps:
 s_memrealtime s[12:13]
 s_waitcnt lgkmcnt(0)
 s_sub_u32 s7, s12, s10
 s_cmp_lt_u32 s7, s6
 s_cbranch_scc1 L_ps
L_pend:
 s_endpgm
""")
        out = out.replace(f"; @launch grid=(256,1,1) block=(256,1,1) lds={LDS_BYTES}\n", f"; @launch kernel={NAME} grid=(256,1,1) block=(256,1,1) lds={LDS_BYTES}\n; @launch kernel=probe_kernel grid=(1,1,1) block=(64,1,1) lds=0\n")
        out = out.replace('.section .rodata,"a"', '.globl probe_kernel\n.p2align 8\n.type probe_kernel,@function\nprobe_kernel:\n' + Q.fix() + '.section .rodata,"a"')
        kd = out[out.index(".p2align 6\n.amdhsa_kernel"):]
        out += kd.replace(NAME, "probe_kernel").replace("vgpr 512", "vgpr 16").replace("offset 256", "offset 16")
    return out, P
CFG = dict(h_early=1, pre_late=0, big_per=6, v2=2, g1=4, w4=8, mw_at=4, nwarm=6, warm=0, lazy=1, vgap=1, wt=9, wtnt="", wth=0, a8=0, can1=0, can2=0, cmask=0x00010001, cbo=6, hnh=0, hn_nh=16, hn_hint_at=999, hbo=8, ap_pre=10, wsched=[(1,6,1),(90,6,3)],
           f_at=1, kbar=1, fnt2="", pf_after="SHK", nsetB=47, fnt="nt", x_at=0, wdm=0, wdc_at=2, bo=8, wnt="", w3=0, w3_every=4, wd3=0, wd_pre=0, wd_first=1, im=0,
           w5=0, w5_every=2, wd_rate=(1.0,1.2), wd_big=44, slots=(6,6), big_pre=0, big_every=8, outf="", dly3=8, dly2=12, hold=1,
           e0_exp=4, hhh=1, h0_k=12, hh_at={17:0, 20:1, 23:2, 26:3, 29:4}, hh1=1, h1_lead=2, b1_at={6:[0,1],7:[2,3],8:[4],9:[5],10:[6]}, hres_at=0)
if __name__ == "__main__":
    cfg = dict(CFG)
    for a in sys.argv[2:]:
        k, v = a.split("=", 1); cfg[k] = eval(v)
    out, P = build(cfg, bool(os.environ.get("STAMP")))
    open(sys.argv[1], "w").write(out)
    if os.environ.get("STAMP"): open(sys.argv[1] + ".names", "w").write(" ".join(P.stn))
    print("lines", len(P.lines), "nops", P.nops)
```

```python
import sys, os, re
sys.path.insert(0, "gen")
from asmlib import Prog

NAME = "sequential_preLN__ssm_conv_h3__glu_gated_glu__prompt_kernel"
TAGSLOT = 0
HC    = 0x080000
FL    = 0x0C0000
HI    = 0x1580000
OB    = 16640
KVBOX = 0x100000
YBOX  = 0x520000
HN    = 0x940000
HRES  = 0xB40000
HH    = 0xD40000
GS    = 4480
STAMPS = 0x1600000
WS_BYTES = 0x1700000
SRD = dict(X=8, K=12, V=16, SHK=20, SSMK=24, SSMD=28, WG=32, WU=36, WD=40, OUT=44, WS=48)
KOFF = dict(X=0, K=8, V=16, SHK=24, SSMK=32, SSMD=40, WG=56, WU=64, WD=72, OUT=80, WS=96)
SIZE = dict(X=2097152, K=2097152, V=2097152, SHK=4096, SSMK=2097152, SSMD=1024, WG=1835008, WU=1835008, WD=1835008, OUT=2097152, WS=WS_BYTES)
def srd(n): return f"s[{SRD[n]}:{SRD[n]+3}]"
WS = srd("WS")
sHNst, sWM, sBIG, sRING, sW, sFLst, sFLld, sG, sJ, sTAG, sLO, sHI, sMASK, sHRES, sT = [f"s{i}" for i in range(52, 67)]
sJL, sO0, sO1, sHS0, sHS1, sSB, sHCst, sE, sSPIN, sHR0, sHR1, sPH1, sL3 = [f"s{i}" for i in range(67, 80)]
sWD = 80
sHC = 87
sPH0, sP, sF0 = "s95", "s96", "s97"
sC = sP
sWT = 12
sHL = 8
sHN = 22
def vr(b, n): return f"v[{b}:{b+n-1}]" if n > 1 else f"v{b}"
def ar(b, n): return f"a[{b}:{b+n-1}]" if n > 1 else f"a{b}"
def L(text): return [l for l in text.split("\n") if l.strip()]
def take(l, n):
    o = l[:n]; del l[:n]; return o

WGB, WUB = 0, 65536
PART = 131072; FC = 96256; CS2 = 4352
KVR = 131072; KVCH = 4608
RING = 131072; NR = 7
STAT = 163840 - 512
BS = 1088; REDW = 16*BS
LDS_BYTES = 163840
SPIN = 20000

class G(Prog):
    def __init__(self, stamps=False):
        super().__init__(); self.nvm = 0; self.nds = 0; self.vmdone = 0; self.dsdone = 0
        self.marks = {}; self.dmarks = {}; self.stamps = stamps; self.tail = []; self.only = None; self.stn = ["start"]
    def __call__(self, text):
        if isinstance(text, list):
            for t in text: self(t)
            return
        for l in text.split("\n"):
            s = l.strip()
            if not s: continue
            if s.startswith("WAIT:"): self.vmwait(s[5:]); continue
            if s.startswith("MARK:"): self.mark(s[5:]); continue
            if s.startswith("DWAIT:"): self.dwait(s[6:]); continue
            if s.startswith("DMARK:"): self.dmarks[s[6:]] = self.nds; continue
            if s == "SKIP": continue
            if s.startswith(("buffer_", "global_")): self.nvm += 1
            if s.startswith("ds_"): self.nds += 1
            if s.startswith("s_waitcnt"):
                m = re.search(r"vmcnt\((\d+)\)", s)
                if m: self.vmdone = max(self.vmdone, self.nvm - int(m.group(1)))
                m = re.search(r"lgkmcnt\((\d+)\)", s)
                if m: self.dsdone = max(self.dsdone, self.nds - int(m.group(1)))
            self.lines.append(l.rstrip())
    def mark(self, name): self.marks[name] = self.nvm
    def vmwait(self, name):
        if self.vmdone < self.marks[name]: self(f" s_waitcnt vmcnt({min(self.nvm - self.marks[name], 63)})")
    def dwait(self, name):
        if self.dsdone < self.dmarks[name]: self(f" s_waitcnt lgkmcnt({min(self.nds - self.dmarks[name], 15)})")
    def cost(self, s):
        t = s.strip()
        if t.startswith(("MARK:", "DMARK:")): return 0
        if t.startswith("WAIT:"): return 0 if self.vmdone >= self.marks[t[5:]] else 1
        if t.startswith("DWAIT:"): return 0 if self.dsdone >= self.dmarks[t[6:]] else 1
        if t == "SKIP": return 3
        if t.startswith(("v_exp", "v_rcp")): return 2
        return 1
    def st(self, i):
        if self.stamps and (self.only is None or i in self.only):
            if i not in self.stn: self.stn.append(i)
            self.lines += [" s_memrealtime s[98:99]", " s_waitcnt lgkmcnt(0)", f" v_writelane_b32 v11, s98, {self.stn.index(i)}", f" v_writelane_b32 v11, {sSPIN}, {32+self.stn.index(i)}"]
def interleave(P, work, bulk, every):
    n = 0
    for wk in work:
        P(wk); n += 1
        if bulk and n % every == 0: P(bulk.pop(0))

vK, vW, vV, vKS, vT = 144, 164, 180, 188, 204
vD, vQ, vX = 220, 224, 240
vBB = [8, 10, 248, 249]
vSW, vDUM, vR, vWD = 250, 251, 252, 254
vWr = (8, 255)
vA, vAx, vB, vIN, aC = 16, 208, 144, 160, 224
vSEL = 216
vq, vu1 = 208, 224
vONE, vTG, vC, vHC, vHC1, vPH, vHASH, vL2, vOUT, vPD, vHP = 7, 10, 2, 252, 253, 220, 222, 223, 9, 5, 224
vHN, vRa = 16, 12
acc0, acc1, acc2, vE = 80, 144, 16, 240
CHN = [208, 209, 210, 211]
CHH = {(0,i): 212+i for i in range(7)}
CHH.update({(1,0):208,(1,1):209,(1,2):210,(1,3):211,(1,4):219,(1,5):221,(1,6):212})
HREG = {(0,0):224, (0,1):80, (0,2):96, (0,3):112, (0,4):128, (0,5):48, (0,6):64,
        (1,0):144, (1,1):160, (1,2):176, (1,3):192, (1,4):224, (1,5):80, (1,6):96}

def srdc(names): return [x for n in names for x in (f" s_mov_b32 s{SRD[n]+2}, {SIZE[n]}", f" s_mov_b32 s{SRD[n]+3}, 0x20000")]
def entry(P, cfg):
    P(" s_cmp_ge_u32 s2, 256\n s_cbranch_scc1 L_end")
    if P.stamps: P(" s_memrealtime s[98:99]")
    for n in ("K","V","SHK","WS","SSMK","X","SSMD","WD","WG","WU","OUT"):
        P(f" s_load_dwordx2 s[{SRD[n]}:{SRD[n]+1}], s[0:1], {KOFF[n]}")
        if n == cfg["pf_after"]:
            P(f"""
 s_getpc_b64 s[4:5]
L_pc:
 s_bfe_u32 s3, s2, 0x20003
 s_mul_i32 s3, s3, 12288
 v_lshlrev_b32 v4, 7, v0
 v_add_u32 v5, s3, v4
 v_cmp_gt_u32 vcc, 32, v0
 v_cndmask_b32 v4, v5, v4, vcc
 v_min_u32 v4, L_codeend-L_pc-4, v4
 v_cmp_gt_u32 vcc, 128, v0
 s_and_saveexec_b64 s[6:7], vcc
 s_cbranch_execz L_nopf
 global_load_dword v{vDUM}, v4, s[4:5]
L_nopf:
 s_mov_b64 exec, s[6:7]
""")
    P(f"""
 s_and_b32 s3, s2, 7
 s_lshl_b32 s3, s3, 5
 s_lshr_b32 {sP}, s2, 3
 s_or_b32 {sP}, {sP}, s3
 v_lshrrev_b32 v4, 6, v0
 v_and_b32 v1, 3, v0
 v_readfirstlane_b32 {sW}, v4
 v_lshrrev_b32 v2, 2, v0
 s_lshl_b32 s3, {sP}, 13
 v_lshlrev_b32 v3, 11, v1
 v_lshl_add_u32 v3, v2, 4, v3
 v_add_u32 v3, s3, v3
 v_subrev_u32 v4, 3072, v3
 v_subrev_u32 v5, 2048, v3
 v_subrev_u32 v8, 1024, v3
 v_lshlrev_b32 v9, 4, v0
""")
    P(srdc(("K","V","SHK")))
    pre2 = L(f"""
 v_and_b32 v6, 63, v0
 v_lshlrev_b32 v6, 4, v6
 s_lshl_b32 {sF0}, {sC}, 1
 s_lshr_b32 s7, {sW}, 1
 s_add_u32 {sF0}, {sF0}, s7
 s_lshl_b32 {sF0}, {sF0}, 12
 s_mul_i32 s7, {sW}, {2*CS2}
 s_add_u32 s7, s7, {FC}
 s_bitcmp1_b32 {sW}, 0
 s_cselect_b32 s3, 160, 0
 s_cselect_b32 {sBIG}, 32, 128
 s_cselect_b32 s5, 8, 0
 s_add_u32 s3, s3, s7
 s_add_u32 {sBIG}, {sBIG}, s7
 s_add_u32 {sBIG}, {sBIG}, {CS2}
 v_mov_b32 v12, 0
 v_and_b32 v14, 7, v0
 v_lshl_add_u32 v13, v14, 2, s3
 v_lshl_add_u32 v14, v14, 2, {sBIG}
 ds_write_b32 v13, v12
 ds_write_b32 v14, v12
 s_sub_u32 s3, s3, s5
 s_sub_u32 {sBIG}, {sBIG}, s5
 s_add_u32 m0, s3, 32
 s_mul_i32 s4, {sP}, {OB}
 s_add_u32 s4, s4, {KVBOX}
 s_add_u32 s5, s4, 4096
 s_add_u32 s6, s4, 8192
 s_add_u32 s7, s4, 12288
 s_mov_b32 {sLO}, 0x05040100
 s_mov_b32 {sHI}, 0x07060302
 s_mov_b32 {sMASK}, 0xffff0000
 s_mov_b32 {sSPIN}, {SPIN}
 v_lshlrev_b32 v7, 4, v2""") + srdc(("SSMK","WS","X","SSMD","WD")) + [f" v_mov_b32 v{vKS+i}, 0" for i in range(16)]
    P(pre2)
    if P.stamps: P(" v_mov_b32 v11, 0\n s_waitcnt lgkmcnt(0)\n v_writelane_b32 v11, s98, 0"); P.st("karg")
    P(f"""
 s_waitcnt lgkmcnt(0)
 buffer_load_dwordx4 {vr(vK,4)}, v4, {srd('K')}, 0 offen nt
 buffer_load_dwordx4 {vr(vK+4,4)}, v5, {srd('K')}, 0 offen nt
 buffer_load_dwordx4 {vr(vK+8,4)}, v8, {srd('K')}, 0 offen nt
 buffer_load_dwordx4 {vr(vK+12,4)}, v3, {srd('K')}, 0 offen nt
 buffer_load_dwordx4 {vr(vK+16,4)}, v3, {srd('K')}, 0 offen offset:1024 nt
 buffer_load_dwordx4 {vr(vV,4)}, v3, {srd('V')}, 0 offen nt
 buffer_load_dwordx4 {vr(vV+4,4)}, v3, {srd('V')}, 0 offen offset:1024 nt
 buffer_load_dwordx4 {vr(vW,4)}, v9, {srd('SHK')}, 0 offen
MARK:L1
 s_load_dword {sTAG}, s[{SRD['WS']}:{SRD['WS']+1}], {TAGSLOT}
""")
def filter_dma(cfg):
    nt = cfg["fnt"]
    o = [f" buffer_load_dwordx4 v6, {srd('SSMK')}, {sF0} offen offset:{1024*i} {nt} lds" for i in range(4)]
    o.append(f" s_add_u32 m0, {sBIG}, 28")
    o += [f" buffer_load_dwordx4 v6, {srd('SSMK')}, {sF0} offen offset:{1024*i} {nt} lds" for i in range(4)]
    return o + ["MARK:A"]
def x_loads():
    return [f" buffer_load_dwordx4 {vr(vX,4)}, v3, {srd('X')}, 0 offen nt",
            f" buffer_load_dwordx4 {vr(vX+4,4)}, v3, {srd('X')}, 0 offen offset:1024 nt",
            f" buffer_load_dwordx4 {vr(vD,4)}, v7, {srd('SSMD')}, 0 offen", "MARK:X"]
def tag_setup():
    return [" s_waitcnt lgkmcnt(0)", f" s_add_u32 {sTAG}, {sTAG}, 0x9E3779B1"] + [f" v_mov_b32 v{vQ+2*t+1}, {sTAG}" for t in range(8)]
def p0_kv(P):
    Krow = lambda i, d: vK + 4*i + d
    prs = [(3,2),(1,0),(4,3),(2,1)]
    for t in range(4):
        T = vT + 8*(t & 1)
        for c in range(2):
            for n,(x,y) in enumerate(prs):
                P(f" v_perm_b32 v{T+4*c+n}, v{Krow(y,t)}, v{Krow(x,t)}, {sHI if c else sLO}")
        ks = vKS + 4*t
        qp = f"quad_perm:[{t},{t},{t},{t}] row_mask:0xf bank_mask:0xf"
        for hi in (1, 0):
            for c in range(2):
                P(f" v_dot2c_f32_bf16_dpp v{ks+c}, v{vW+2*c+hi}, v{T+4*c+hi} {qp}")
                P(f" v_dot2c_f32_bf16_dpp v{ks+2+c}, v{vW+2*c+hi}, v{T+4*c+2+hi} {qp}")
        P(f""" v_lshlrev_b32 v{T}, 16, v{vV+t}
 v_and_b32 v{T+1}, {sMASK}, v{vV+t}
 v_lshlrev_b32 v{T+2}, 16, v{vV+4+t}
 v_and_b32 v{T+3}, {sMASK}, v{vV+4+t}
 v_pk_mul_f32 {vr(ks,2)}, {vr(ks,2)}, {vr(T,2)}
 v_pk_mul_f32 {vr(ks+2,2)}, {vr(ks+2,2)}, {vr(T+2,2)}
 v_cvt_pk_bf16_f32 v{vQ+4*t}, v{ks}, v{ks+1}
 v_cvt_pk_bf16_f32 v{vQ+4*t+2}, v{ks+2}, v{ks+3}
 buffer_store_dwordx4 {vr(vQ+4*t,4)}, v9, {WS}, s{4+t} offen sc1""")
def wd_mall():
    return L(f""" s_lshl_b32 s100, s2, 2
 s_add_u32 s100, s100, {sW}
 s_mul_i32 s100, s100, 1792
 v_lshlrev_b32 v4, 3, v6
 v_min_u32 v4, {13*128}, v4
 buffer_load_dword v{vDUM}, v4, {srd('WD')}, s100 offen""")
def idle_mall(name, nx):
    per = 112*(8//nx)
    o = L(f""" s_cmp_lt_u32 {sJL}, 7
 s_cbranch_scc1 L_{name}
 s_and_b32 s100, s2, {nx-1}
 s_lshl_b32 s100, s100, 2
 s_add_u32 s100, s100, {sL3}
 s_lshl_b32 s100, s100, 2
 s_add_u32 s100, s100, {sW}
 s_mul_i32 s100, s100, {per*128}
 v_lshlrev_b32 v4, 3, v6
 v_min_u32 v4, {55*128}, v4""")
    for i in range(per//56): o += [f" buffer_load_dword v{vDUM}, v4, {srd('WD')}, s100 offen", f" s_add_u32 s100, s100, {56*128}"]
    return o + [f"L_{name}:"], per//56
def w_touch(nt, half):
    o = L(f""" s_lshl_b32 s100, {sL3}, 7
 s_and_b32 s3, s2, 1
 s_lshl_b32 s3, s3, 6
 s_add_u32 s100, s100, s3
 s_lshl_b32 s3, {sW}, {4 if half else 5}
 s_add_u32 s100, s100, s3
 v_and_b32 v4, {15 if half else 31}, v0
 v_add_u32 v4, s100, v4
 v_and_b32 v4, 511, v4
 v_mul_u32_u24 v4, 3584, v4
 s_lshl_b32 s100, {sJ}, 7
 buffer_load_dword v{vDUM}, v4, {srd('WG')}, s100 offen {nt}
 buffer_load_dword v{vDUM}, v4, {srd('WU')}, s100 offen {nt}""")
    return o
def a_consts():
    return L(f"""
 v_and_b32 v4, 15, v0
 v_add_u32 v4, 1, v4
 v_bfe_u32 v15, v4, 1, 2
 v_lshlrev_b32 v12, 3, v15
 s_mov_b32 s3, 0x020A0800
 v_bfe_u32 v12, s3, v12, 8
 v_mul_u32_u24 v15, {CS2}, v15
 v_lshrrev_b32 v4, 3, v4
 v_add_u32 v4, v4, v12
 v_lshl_add_u32 v15, v4, 4, v15
 v_bfe_u32 v4, v0, 4, 3
 v_lshl_add_u32 v15, v4, 6, v15
 s_lshr_b32 s3, {sW}, 1
 s_mul_i32 s3, s3, {4*CS2}
 s_add_u32 s3, s3, {FC}
 v_add_u32 v15, s3, v15
 v_and_b32 v12, 1, v0
 v_mul_u32_u24 v12, 0x020202, v12
 v_lshl_or_b32 v12, v12, 8, v12
 v_sub_u32 v12, 0x05040302, v12""")
def a_perm(a, i):
    nxt = vA+16*a+i+1 if i < 15 else vAx+a
    return f" v_perm_b32 v{vA+16*a+i}, v{nxt}, v{vA+16*a+i}, v{vSEL}"
def a_prep(lazy):
    def rd(a): return [f" ds_read_b128 {vr(vA+16*a+4*bb,4)}, v15 offset:{512*a+16*bb}" for bb in range(4)] + [f" ds_read_b32 v{vAx+a}, v15 offset:{512*a+64}", f"DMARK:a{a}"]
    o = [f" v_mov_b32 v{vSEL}, v12"] + rd(0) + rd(1)
    for a in range(8):
        if a+2 < 8: o += rd(a+2)
        o.append(f"DWAIT:a{a}")
        for i in range(4*lazy): o.append(a_perm(a, i))
    return o
def roles():
    t = 168
    o = L(f"""
 s_bfe_u32 {sL3}, s2, 0x20003
 s_lshr_b32 {sJL}, s2, 5
 s_and_b32 s3, s2, 1
 s_lshl_b32 s3, s3, 2
 s_add_u32 {sG}, s3, {sL3}
 s_bfe_u32 s3, s2, 0x20001
 s_mul_i32 s3, s3, 7
 s_add_u32 {sJ}, s3, {sJL}
 s_cmp_ge_u32 {sJL}, 7
 s_cselect_b32 s{SRD['WG']+2}, 0, {SIZE['WG']}
 s_mov_b32 s{SRD['WG']+3}, 0x20000
 s_mov_b32 s{SRD['WU']+2}, s{SRD['WG']+2}
 s_mov_b32 s{SRD['WU']+3}, 0x20000
 v_bfe_u32 v{t+1}, v0, 3, 3
 v_and_b32 v{t+3}, 7, v0
 v_mul_u32_u24 v{t+2}, 3584, v{t+1}
 v_and_b32 v{t+4}, 2, v{t+1}
 v_xor_b32 v{t+5}, v{t+3}, v{t+4}
 s_lshl_b32 s3, {sJ}, 7
 v_add_u32 v{t+2}, s3, v{t+2}
 v_lshl_add_u32 v{vR}, v{t+5}, 4, v{t+2}
 v_xor_b32 v{t+5}, 4, v{t+5}
 v_lshl_add_u32 v{vR+1}, v{t+5}, 4, v{t+2}
 v_lshlrev_b32 v{t+4}, 1, v{t+4}
 v_xor_b32 v{t+3}, v{t+3}, v{t+4}
 v_lshlrev_b32 v{t+1}, 10, v{t+1}
 v_lshl_add_u32 v{vWD}, v{t+3}, 4, v{t+1}""")
    return o
def w_table():
    o = L(f""" s_lshl_b32 s100, {sL3}, 4
 s_and_b32 s3, s2, 1
 s_lshl_b32 s3, s3, 3
 s_add_u32 s100, s100, s3
 s_add_u32 s100, s100, {sW}
 s_lshl_b32 s3, {sJL}, 3
 s_sub_u32 {sWM}, s100, s3
 s_lshl_b32 {sWM}, {sWM}, 10""")
    for idx in range(16): o += [f" s_add_u32 s3, s100, {4*idx}", " s_and_b32 s3, s3, 63", f" s_mul_i32 s{sWT+idx}, s3, {8*3584}"]
    return o
def w_pair(idx, nt):
    return [f" s_add_u32 s101, {sWM}, {idx*4096}\n s_and_b32 m0, s101, 0xffff", f" buffer_load_dwordx4 v{vR}, {srd('WG')}, s{sWT+idx} offen {nt} lds",
            f" s_add_u32 m0, m0, 65536", f" buffer_load_dwordx4 v{vR+1}, {srd('WU')}, s{sWT+idx} offen {nt} lds"]
def conv_setup():
    t = 176
    o = L(f"""
 v_mov_b32 v{t}, 0
 v_and_b32 v13, 127, v0
 v_lshlrev_b32 v13, 2, v13
 v_lshrrev_b32 v14, 7, v0
 v_mul_u32_u24 v14, {KVCH}, v14
 s_mov_b32 s3, {KVR+4096}
 v_add3_u32 v13, v13, v14, s3
 ds_write_b32 v13, v{t}
 v_and_b32 v13, 15, v0
 v_lshlrev_b32 v13, 5, v13
 v_bfe_u32 v14, v0, 4, 3
 v_lshlrev_b32 v14, 6, v14
 v_sub_u32 v14, v14, v13
 v_add_u32 v14, 480, v14
 s_lshr_b32 s3, {sW}, 1
 s_mul_i32 s3, s3, {KVCH}
 s_add_u32 s3, s3, {KVR}""")
    for bb in range(4):
        o += L(f""" v_add_u32 v13, {16*bb}, v14
 v_lshrrev_b32 v{t+1}, 4, v13
 v_and_b32 v{t+1}, 16, v{t+1}
 v_xor_b32 v13, v13, v{t+1}
 v_add_u32 v{vBB[bb]}, s3, v13""")
    o += L(f"""
 v_lshlrev_b32 v13, 2, v0
 v_sub_u32 v13, 1020, v13
 v_lshrrev_b32 v{t+1}, 4, v13
 v_and_b32 v{t+1}, 16, v{t+1}
 v_xor_b32 v13, v13, v{t+1}
 v_add_u32 v13, {KVR}, v13
 v_mul_u32_u24 v14, {OB}, v2
 v_lshl_add_u32 v14, v1, 4, v14""")
    return o
def h1_addr():
    return L(f"""
 s_and_b32 s4, {sC}, 3
 s_lshl_b32 s4, s4, 12
 s_lshr_b32 s3, {sC}, 2
 s_lshl_b32 s3, s3, 6
 s_add_u32 s4, s4, s3
 s_add_u32 s4, s4, {KVBOX}
 s_add_u32 s5, s4, {64*OB}
 s_add_u32 s6, s4, {128*OB}
 s_add_u32 s7, s4, {192*OB}""")
def box_recv(P, base, name, sleep, shadow=None):
    lds = [f" buffer_load_dwordx4 {vr(base+4*i,4)}, v14, {WS}, s{4+i} offen sc1" for i in range(4)]
    P(lds); P.mark(name)
    if shadow: P(shadow)
    P.vmwait(name)
    P(f"L_{name}:")
    P(f" v_xor_b32 v4, {sTAG}, v{base+1}")
    for i in range(1, 8): P(f" v_bitop3_b32 v4, v4, v{base+2*i+1}, {sTAG} bitop3:0xf6")
    P(f" v_cmp_ne_u32 vcc, 0, v4\n s_cbranch_vccnz L_{name}_r\nL_{name}_ok:\n s_mov_b64 exec, -1")
    P.tail += L(f"""L_{name}_r:
 s_mov_b64 exec, vcc
 s_sleep {sleep}""") + lds + L(f""" s_waitcnt vmcnt(0)
 s_sub_u32 {sSPIN}, {sSPIN}, 1
 s_cbranch_scc0 L_{name}
 s_mov_b32 {sSPIN}, 0
 s_branch L_{name}_ok""")
def canary_issue(cfg, stride):
    m = cfg["cmask"]
    return L(f"""
 s_bfe_u32 {sT}, {sP}, 0x20003
 s_mul_i32 {sT}, {sT}, {stride}
 s_add_u32 {sT}, {sT}, s4
 s_bfe_u32 s3, {sP}, 0x20001
 s_lshl_b32 s3, s3, 2
 s_mov_b32 s100, {m}
 s_mov_b32 s101, {m}
 s_lshl_b64 s[100:101], s[100:101], s3
 v_mov_b32 v7, {sTAG}
 s_mov_b64 exec, s[100:101]
 buffer_load_dword v7, v14, {WS}, {sT} offen offset:4 sc1
 s_mov_b64 exec, -1
MARK:can""")
def canary_check(P, name, sleep):
    P.tail += L(f"""L_{name}_r:
 s_sub_u32 {sSPIN}, {sSPIN}, 1
 s_cbranch_scc1 L_{name}_x
 s_mov_b64 exec, vcc
 s_sleep {sleep}
 buffer_load_dword v7, v14, {WS}, {sT} offen offset:4 sc1
 s_mov_b64 exec, -1
 s_waitcnt vmcnt(0)
 v_cmp_ne_u32 vcc, {sTAG}, v7
 s_cbranch_vccnz L_{name}_r
 s_branch L_{name}_b
L_{name}_x:
 s_mov_b32 {sSPIN}, 0
 s_branch L_{name}_b""")
    return ["WAIT:can", f" v_cmp_ne_u32 vcc, {sTAG}, v7", f" s_cbranch_vccnz L_{name}_r", f"L_{name}_b:"]
def kv_to_lds(P):
    for i in range(4):
        P(f" v_perm_b32 v{vIN+4*i+1}, v{vIN+4*i}, v{vIN+4*i+2}, {sLO}")
        P(f" v_perm_b32 v{vIN+4*i+3}, v{vIN+4*i}, v{vIN+4*i+2}, {sHI}")
        P(f" ds_write2st64_b32 v13, v{vIN+4*i+1}, v{vIN+4*i+3} offset0:{(3-i)*4} offset1:{(3-i)*4+KVCH//256}")
    P(" s_waitcnt lgkmcnt(0)\n s_barrier")
QD = 144
def conv_epi_consts():
    return L(f"""
 v_bfe_u32 v13, v0, 4, 2
 v_lshlrev_b32 v14, 6, v13
 v_xor_b32 v13, v14, v6
 s_lshl_b32 s3, {sW}, 13
 s_add_u32 s3, s3, {PART}
 v_add_u32 v13, s3, v13
 v_bfe_u32 v15, v0, 1, 2
 v_bfe_u32 v14, v0, 3, 4
 v_lshlrev_b32 v12, 2, v15
 v_xor_b32 v14, v14, v12
 v_lshlrev_b32 v14, 4, v14
 v_lshl_add_u32 v14, v15, 8, v14
 v_lshrrev_b32 v15, 7, v0
 v_lshl_add_u32 v14, v15, 10, v14
 v_and_b32 v15, 1, v0
 v_lshl_add_u32 v14, v15, 3, v14
 v_add_u32 v14, {PART}, v14
 s_mul_i32 s4, {sC}, {OB}
 s_add_u32 s4, s4, {YBOX}
 s_add_u32 s5, s4, 4096
 s_add_u32 s6, s4, 8192
 s_add_u32 s7, s4, 12288""")
def conv_mfma(P, bulk, sched):
    extra = conv_epi_consts()
    lazy = P.cfg['lazy']
    def rd(bb): return [f" ds_read_b128 {vr(vB+32*(bb&1)+4*d,4)}, v{vBB[bb]} offset:{(7-d)*512}" for d in range(8)]
    def mf(j, a, bb, first): P(f" v_mfma_f32_16x16x32_bf16 {ar(aC+4*j,4)}, {vr(vA+16*a+4*bb,4)}, {vr(vB+32*(bb&1)+4*(j-a),4)}, {'0' if first else ar(aC+4*j,4)}")
    used = [0]
    def due(n):
        allowed = sum(min(2*c, max(0, (n - s0)//e + 1)) for (s0, c, e) in sched)
        return used[0] < allowed
    P(rd(0))
    n = 0
    for bb in range(3):
        pend = []
        perms = [a_perm(a, i) for a in range(8) for i in range(4*(bb+1), 4*(bb+2))] if bb+1 >= lazy else []
        for d in range(8):
            if d == 0 and bb == 0: P(" s_waitcnt lgkmcnt(7)")
            elif (bb == 0 and d == 1) or d == 0: P(" s_waitcnt lgkmcnt(0)")
            if d == 1: pend = rd(bb+1)
            for a in range(8-d):
                mf(a+d, a, bb, bb == 0 and d == 0); n += 1
                if perms: P(perms.pop(0))
                if pend: P(pend.pop(0))
                elif bulk and due(n): P(bulk.pop(0)); used[0] += 1
                elif extra: P(extra.pop(0))
    P(extra)
    P(" s_waitcnt lgkmcnt(0)\n s_barrier")
    tags = [f" v_mov_b32 v{QD+2*i+1}, {sTAG}" for i in range(8)]
    wr = []; cnt = 0
    for j in range(8):
        for a in range(j+1):
            mf(j, a, 3, False); cnt += 1
            if wr and wr[0][1] + 4 <= cnt: P(wr.pop(0)[0])
            elif bulk and due(108 + cnt): P(bulk.pop(0)); used[0] += 1
            elif tags: P(tags.pop(0))
        wr.append((f" ds_write_b128 v13, {ar(aC+4*j,4)} offset:{j*1024}", cnt))
    P(tags)
    for x in wr: P(x[0])
def conv_epilogue(P):
    R = 16
    P(" s_waitcnt lgkmcnt(0)\n s_barrier")
    for i in range(4):
        for c in range(2): P(f" ds_read2st64_b64 {vr(R+8*i+4*c,4)}, v14 offset0:{4*i+32*c} offset1:{4*i+32*c+16}")
    for i in range(4):
        P(f" s_waitcnt lgkmcnt({6-2*i})")
        b = R+8*i
        P(f""" v_pk_add_f32 {vr(b,2)}, {vr(b,2)}, {vr(b+2,2)}
 v_pk_add_f32 {vr(b+4,2)}, {vr(b+4,2)}, {vr(b+6,2)}
 v_cvt_pk_bf16_f32 v{QD+4*i}, v{b}, v{b+4}
 v_cvt_pk_bf16_f32 v{QD+4*i+2}, v{b+1}, v{b+5}
 buffer_store_dwordx4 {vr(QD+4*i,4)}, v9, {WS}, s{4+i} offen sc1""")

vSR = 15
def stat_consts():
    return L(f"""
 v_bfe_u32 v{vSW}, v0, 4, 4
 v_lshl_add_u32 v{vSW}, v1, 4, v{vSW}
 v_lshlrev_b32 v{vSW}, 2, v{vSW}
 v_add_u32 v{vSW}, {STAT}, v{vSW}
 v_lshlrev_b32 v{vSR}, 6, v1
 v_add_u32 v{vSR}, {STAT}, v{vSR}
 s_mov_b32 s30, 0x3b000000
 s_mov_b32 s31, 0x3b000000""")
def row_stats(src, tmp, off, mr, shadow):
    o = []
    a = tmp+8
    for r in range(2):
        b = src+8*r
        o.append(f" v_pk_add_f32 {vr(a+4*r,2)}, {vr(b,2)}, {vr(b+2,2)}")
        o.append(f" v_pk_mul_f32 {vr(a+4*r+2,2)}, {vr(b,2)}, {vr(b,2)}")
    for i in range(1, 4):
        for r in range(2):
            b = src+8*r+2*i
            if i >= 2: o.append(f" v_pk_add_f32 {vr(a+4*r,2)}, {vr(a+4*r,2)}, {vr(b,2)}")
            o.append(f" v_pk_fma_f32 {vr(a+4*r+2,2)}, {vr(b,2)}, {vr(b,2)}, {vr(a+4*r+2,2)}")
    for k in range(4): o.append(f" v_add_f32 v{tmp+k}, v{a+2*k}, v{a+2*k+1}")
    sh = list(shadow)
    def S(n): return take(sh, n)
    o += S(2) + [f" v_permlane32_swap_b32 v{tmp}, v{tmp+1}", f" v_permlane32_swap_b32 v{tmp+2}, v{tmp+3}",
          f" v_add_f32 v{tmp}, v{tmp}, v{tmp+1}", f" v_add_f32 v{tmp+2}, v{tmp+2}, v{tmp+3}"] + S(2) + \
         [f" v_permlane16_swap_b32 v{tmp}, v{tmp+2}", f" v_add_f32 v{tmp}, v{tmp}, v{tmp+2}"] + S(2) + \
         [f" v_add_f32_dpp v{tmp}, v{tmp}, v{tmp} row_ror:4 row_mask:0xf bank_mask:0xf"] + S(2) + \
         [f" v_add_f32_dpp v{tmp}, v{tmp}, v{tmp} row_ror:8 row_mask:0xf bank_mask:0xf", f" ds_write_b32 v{vSW}, v{tmp} offset:{off}"] + S(8) + \
         [" s_waitcnt lgkmcnt(0)", " s_barrier"] + \
         [f" ds_read_b128 {vr(tmp+8+4*k,4)}, v{vSR} offset:{off+16*k}" for k in range(4)] + S(99) + [" s_waitcnt lgkmcnt(0)"]
    o += L(f"""
 v_pk_add_f32 {vr(a,2)}, {vr(a,2)}, {vr(a+4,2)}
 v_pk_add_f32 {vr(a+8,2)}, {vr(a+8,2)}, {vr(a+12,2)}
 v_pk_add_f32 {vr(a+2,2)}, {vr(a+2,2)}, {vr(a+6,2)}
 v_pk_add_f32 {vr(a+10,2)}, {vr(a+10,2)}, {vr(a+14,2)}
 v_pk_add_f32 {vr(tmp,2)}, {vr(a,2)}, {vr(a+8,2)}
 v_pk_add_f32 {vr(tmp+2,2)}, {vr(a+2,2)}, {vr(a+10,2)}
 v_pk_mul_f32 {vr(tmp,2)}, {vr(tmp,2)}, s[30:31]
 v_pk_mul_f32 {vr(tmp+2,2)}, {vr(tmp+2,2)}, s[30:31]
 v_pk_fma_f32 {vr(tmp+2,2)}, {vr(tmp,2)}, {vr(tmp,2)}, {vr(tmp+2,2)} neg_lo:[1,0,0] neg_hi:[1,0,0]
 v_cvt_pk_bf16_f32 v{tmp+4}, v{tmp}, v{tmp+1}
 v_max_f32 v{tmp+2}, 0, v{tmp+2}
 v_max_f32 v{tmp+3}, 0, v{tmp+3}
 v_cvt_pk_bf16_f32 v{tmp+5}, v{tmp+2}, v{tmp+3}
 v_lshlrev_b32 v{tmp+2}, 16, v{tmp+5}
 v_and_b32 v{tmp+3}, {sMASK}, v{tmp+5}
 v_add_f32 v{tmp+2}, 0x3727c5ac, v{tmp+2}
 v_add_f32 v{tmp+3}, 0x3727c5ac, v{tmp+3}
 v_cvt_pk_bf16_f32 v{tmp+5}, v{tmp+2}, v{tmp+3}
 v_lshlrev_b32 v{tmp+2}, 16, v{tmp+5}
 v_and_b32 v{tmp+3}, {sMASK}, v{tmp+5}
 v_sqrt_f32 v{tmp+2}, v{tmp+2}
 v_sqrt_f32 v{tmp+3}, v{tmp+3}
 v_lshlrev_b32 v{mr}, 16, v{tmp+4}
 v_cvt_pk_bf16_f32 v{tmp+5}, v{tmp+2}, v{tmp+3}
 v_lshlrev_b32 v{tmp+2}, 16, v{tmp+5}
 v_and_b32 v{tmp+3}, {sMASK}, v{tmp+5}
 v_rcp_f32 v{mr+2}, v{tmp+2}
 v_rcp_f32 v{mr+3}, v{tmp+3}
 v_and_b32 v{mr+1}, {sMASK}, v{tmp+4}
 v_pk_mul_f32 {vr(mr,2)}, {vr(mr,2)}, {vr(mr+2,2)} neg_lo:[1,0] neg_hi:[1,0]""")
    return o
def norm_row(dst, src, mr, row):
    sel = f"op_sel:[0,{row},{row}] op_sel_hi:[1,{row},{row}]"
    return [f" v_pk_fma_f32 {vr(dst+8*row+2*i,2)}, {vr(src+8*row+2*i,2)}, {vr(mr+2,2)}, {vr(mr,2)} {sel}" for i in range(4)]
def unpack(dst, src): return [f" v_lshlrev_b32 v{dst}, 16, v{src}", f" v_and_b32 v{dst+1}, {sMASK}, v{src}"]
def ln1():
    tmp = 176; mr = 200; kd = 160
    o = []
    for r in range(2):
        for t in range(4): o += unpack(kd+8*r+2*t, vQ+4*t+2*r)
    for i in range(8): o += unpack(vu1+2*i, vX+i)
    sh = []
    for i in range(4): sh += unpack(vX+2*i, vD+i)
    for r in range(2):
        for t in range(4): sh.append(f" v_pk_mul_f32 {vr(kd+8*r+2*t,2)}, {vr(kd+8*r+2*t,2)}, {vr(vX+2*t,2)}")
    o += row_stats(vu1, tmp, 0, mr, sh)
    o += norm_row(vq, vu1, mr, 0) + norm_row(vq, vu1, mr, 1)
    for i in range(8): o.append(f" v_pk_fma_f32 {vr(vu1+2*i,2)}, {vr(vq+2*i,2)}, {vr(kd+2*i,2)}, {vr(vu1+2*i,2)}")
    return o
vY = 64
def ln2(P0, bulk, every):
    P = G(); P.cfg = P0.cfg
    vh, vn, tmp, mr = 80, 104, 112, 136
    for r in range(2):
        for t in range(4): P(unpack(vh+8*r+2*t, vY+4*t+2*r))
    for i in range(8): P(f" v_pk_fma_f32 {vr(vh+2*i,2)}, {vr(vq+2*i,2)}, {vr(vh+2*i,2)}, {vr(vu1+2*i,2)}")
    sh = [f" v_cvt_pk_bf16_f32 v{vHP+i}, v{vh+2*i}, v{vh+2*i+1}" for i in range(8)]
    for i in range(8): sh += unpack(vh+2*i, vHP+i)
    P(row_stats(vh, tmp, 256, mr, sh))
    for r in range(2):
        P(norm_row(vh, vh, mr, r))
        for i in range(4*r, 4*r+4): P(f" v_cvt_pk_bf16_f32 v{vn+i}, v{vh+2*i}, v{vh+2*i+1}")
        P(f" buffer_store_dwordx4 {vr(vn+4*r,4)}, v5, {WS}, {sHNst} offen offset:{64*r} sc1")
        P(f" v_xad_u32 v{tmp+r}, v{vn+4*r}, v{vn+4*r+1}, v{vn+4*r+2}\n v_add_u32 v{tmp+r}, v{tmp+r}, v{vn+4*r+3}")
    P(f"""
 v_permlane16_swap_b32 v{tmp}, v{tmp+1}
 v_add_u32 v{tmp}, v{tmp}, v{tmp+1}
 v_add_u32_dpp v{tmp}, v{tmp}, v{tmp} row_ror:8 row_mask:0xf bank_mask:0xf
 v_add_u32 v{tmp}, {sTAG}, v{tmp}
 buffer_store_dword v{tmp}, v{vC}, {WS}, {sHCst} offen sc1
""")
    if P.cfg["hnh"]: P(f" buffer_store_dword v{vY+1}, v13, {WS}, {sF0} offen sc1")
    interleave(P0, P.lines, bulk, every)
    assert not bulk
def h2_consts():
    return L(f"""
 v_mul_u32_u24 v14, {4*OB}, v2
 v_lshl_add_u32 v14, v1, 4, v14
 v_lshlrev_b32 v5, 9, v2
 v_lshl_add_u32 v5, v1, 4, v5
 v_lshrrev_b32 v{vC}, 2, v6
 v_add_u32 v{vC}, 4096, v{vC}
 s_lshr_b32 {sHNst}, {sP}, 2
 s_lshl_b32 {sHNst}, {sHNst}, 15
 s_and_b32 s3, {sP}, 3
 s_lshl_b32 s3, s3, 7
 s_add_u32 {sHNst}, {sHNst}, s3
 s_add_u32 {sHNst}, {sHNst}, {HN}
 s_lshl_b32 {sHCst}, {sP}, 2
 s_add_u32 {sHCst}, {sHCst}, {sW}
 s_lshl_b32 {sF0}, {sHCst}, 9
 s_add_u32 {sF0}, {sF0}, {HI}
 v_lshrrev_b32 v13, 6, v6
 v_lshlrev_b32 v13, 25, v13
 v_lshl_add_u32 v13, v1, 7, v13
 s_lshl_b32 {sFLst}, {sHCst}, 6
 s_add_u32 {sFLst}, {sFLst}, {FL-4352}
 s_lshl_b32 {sHCst}, {sHCst}, 8
 s_add_u32 {sHCst}, {sHCst}, {HC-4096}
 s_mov_b32 {sHRES}, {HRES}
 s_lshl_b32 s4, {sP}, 6
 s_add_u32 s4, s4, {YBOX}
 s_add_u32 s5, s4, {OB}
 s_add_u32 s6, s4, {2*OB}
 s_add_u32 s7, s4, {3*OB}""")

WARM = [0]
def warm_ops(n0, n1):
    o = []
    if n0 == 0:
        o += L(f""" v_bfe_u32 v16, v0, 3, 3
 v_min_u32 v16, 6, v16
 v_and_b32 v17, 7, v0
 v_lshlrev_b32 v17, 10, v17
 v_lshl_add_u32 v17, v16, 7, v17
 s_mul_i32 s4, {sW}, {448*1024}
 s_lshl_b32 s5, {sL3}, 13
 s_add_u32 s4, s4, s5
 s_add_u32 s5, s4, 32768""")
    for j in range(n0, n1):
        if j & 1 == 0:
            if j: o += [" v_add_u32 v16, 1, v16", " v_cmp_eq_u32 vcc, 7, v16", " v_cndmask_b32 v16, v16, 0, vcc"]
            o.append(" v_lshl_add_u32 v18, v16, 16, v17")
        o.append(f" buffer_load_dword v19, v18, {srd('WD')}, s{4 + (j & 1)} offen")
    return o
def wd_consts(a8):
    if a8: head = f"""
 s_bfe_u32 s3, s2, 0x20001
 s_lshl_b32 s3, s3, 3
 s_bfe_u32 {sT}, s2, 0x30003
 s_add_u32 {sSB}, s3, {sT}
 s_and_b32 {sE}, s2, 1
 s_lshl_b32 {sE}, {sE}, 2
 s_lshr_b32 s3, s2, 6
 s_add_u32 {sE}, {sE}, s3
 s_lshl_b32 {sE}, {sE}, 7
 s_lshl_b32 s3, s3, 1
 s_add_u32 s3, s3, {sT}"""
    else: head = f"""
 s_and_b32 s3, s2, 7
 s_lshl_b32 s3, s3, 2
 s_add_u32 {sSB}, s3, {sL3}
 s_lshl_b32 {sE}, {sJL}, 7
 s_lshl_b32 s3, {sL3}, 1""" + (f"""
 s_cmp_ge_u32 {sJL}, 7
 s_cselect_b32 s3, s3, 0""" if WARM[0] else "") + f"""
 s_add_u32 s3, s3, {sJL}"""
    o = L(head + f"""
 s_mul_i32 {sRING}, {sW}, {NR*1024}
 s_add_u32 {sRING}, {sRING}, {RING}
 s_mul_i32 s100, {sW}, {448*1024}
 s_add_u32 s100, s100, {sE}""")
    for i in range(7):
        if WARM[0] == 2:
            if i < 3: o += [f" s_add_u32 s101, s3, {i}"]
            else: o += L(f""" s_add_u32 s101, {sL3}, {i-3}
 s_and_b32 s101, s101, 3
 s_cmp_ge_u32 {sJL}, 7
 s_cselect_b32 s101, {i-3}, s101
 s_add_u32 s101, s101, 3
 s_add_u32 s101, s101, s3""")
            for rep in range(2): o += L(f""" s_cmp_ge_u32 s101, 7
 s_cselect_b32 {sT}, 7, 0
 s_sub_u32 s101, s101, {sT}""")
            o += [f" s_lshl_b32 {sT}, s101, 16", f" s_add_u32 s{sWD+i}, {sT}, s100"]
            continue
        o += L(f""" s_cmp_ge_u32 s3, 7
 s_cselect_b32 {sT}, 7, 0
 s_sub_u32 s3, s3, {sT}
 s_lshl_b32 {sT}, s3, 16
 s_add_u32 s{sWD+i}, {sT}, s100
 s_add_u32 s3, s3, 1""")
    return o
def wd_rconsts(t):
    return L(f"""
 v_bfe_u32 v{t}, v0, 5, 1
 v_bfe_u32 v{t+1}, v0, 4, 1
 v_bfe_u32 v{t+2}, v0, 2, 2
 v_lshl_add_u32 v{t}, v{t}, 2, v{t+2}
 v_lshlrev_b32 v{t}, 7, v{t}
 v_lshl_add_u32 v{t}, v1, 3, v{t}
 v_add_u32 v{t}, {sRING}, v{t}
 v_and_b32 v{t+2}, 2, v{t+2}
 v_or_b32 v{t+2}, v{t+2}, v{t+1}
 v_lshl_add_u32 v{vWr[0]}, v{t+2}, 5, v{t}
 v_xor_b32 v{t+2}, 2, v{t+2}
 v_lshl_add_u32 v{vWr[1]}, v{t+2}, 5, v{t}""")
def wd_dma(m, base=sRING, slot=None):
    i, r = m // 8, m & 7
    o = []
    if slot is None:
        slot = m % NR
        if m >= NR: o.append(f"DWAIT:wd{m-NR}")
    o.append(f" s_add_u32 m0, {base}, {slot*1024}")
    if r: o += [f" s_add_u32 s100, s{sWD+i}, {r*8192}", f" buffer_load_dwordx4 v{vWD}, {srd('WD')}, s100 offen lds"]
    else: o += [f" buffer_load_dwordx4 v{vWD}, {srd('WD')}, s{sWD+i} offen lds"]
    return o + [f"MARK:wd{m}"]
def wd_read(m, slot=None):
    d = (m >> 1)*8 + 2*(m & 1)
    if slot is None: slot = m % NR
    return [f"WAIT:wd{m}"] + [f" ds_read_b64_tr_b16 {ar(d+4*tau,2)}, v{vWr[tau]} offset:{slot*1024}" for tau in range(2)] + [f"DMARK:wd{m}"]
def wd_stream(d, rd, N):
    o = []
    while d < min(N, rd + NR - 1): o += wd_dma(d); d += 1
    for m in range(rd, N):
        o += wd_read(m)
        if d < N and d <= m + NR - 1: o += wd_dma(d); d += 1
    return o

def wd_raw(m):
    i, r = m // 8, m & 7
    if r: return [f" s_add_u32 s100, s{sWD+i}, {r*8192}", f" buffer_load_dwordx4 {ar(4*m,4)}, v{vWD}, {srd('WD')}, s100 offen"]
    return ["SKIP", f" buffer_load_dwordx4 {ar(4*m,4)}, v{vWD}, {srd('WD')}, s{sWD+i} offen"]
def bounce(u, va):
    d = u*8; off = (u % 3)*2048
    o = [f" ds_write_b128 v{va}, {ar(d,4)} offset:{off}", f" ds_write_b128 v{va}, {ar(d+4,4)} offset:{off+1024}"]
    for tau in range(2):
        for io in range(2): o.append(f" ds_read_b64_tr_b16 {ar(d+4*tau+2*io,2)}, v{vWr[tau]} offset:{off+io*1024}")
    return o
def g_sconsts(nbig):
    o = [f" s_mul_i32 s3, {sSB}, {56*GS}", f" s_add_u32 s3, s3, {HH}"]
    for i in range(7):
        o += L(f""" s_lshr_b32 {sT}, s{sWD+i}, 16
 s_mul_i32 {sT}, {sT}, {GS}
 s_add_u32 s{sHL+i}, {sT}, s3
 s_add_u32 s{sHL+7+i}, s{sHL+i}, {28*GS}""")
    o += L(f"""
 s_lshl_b32 {sO0}, {sSB}, 16
 s_add_u32 {sO0}, {sO0}, {sE}
 s_add_u32 {sO1}, {sO0}, 32768
 s_add_u32 {sHR0}, {sO0}, {HRES}
 s_add_u32 {sHR1}, {sO1}, {HRES}
 s_lshl_b32 s3, {sG}, 2
 s_add_u32 s3, s3, {sW}
 s_mul_i32 {sHS0}, s3, 56
 s_add_u32 {sHS0}, {sHS0}, {sJ}
 s_mul_i32 {sHS0}, {sHS0}, {GS}
 s_add_u32 {sHS0}, {sHS0}, {HH}
 s_add_u32 {sHS1}, {sHS0}, {28*GS}
 s_lshl_b32 {sFLld}, s3, 13
 s_add_u32 {sFLld}, {sFLld}, {HC}
 s_lshl_b32 s3, s3, 16
 s_add_u32 s3, s3, {HN}""")
    for g in range(8):
        o += [f" s_add_u32 {sT}, {sJL}, {g}", f" s_and_b32 {sT}, {sT}, 7", f" s_lshl_b32 s{sHC+g}, {sT}, 7", f" s_add_u32 s{sHC+g}, s{sHC+g}, {sFLld}", f" s_lshl_b32 {sT}, {sT}, 12", f" s_add_u32 s{sHN+g}, {sT}, s3"]
    o += L(f"""
 s_lshl_b32 {sFLld}, {sSB}, 3
 s_add_u32 {sFLld}, {sFLld}, {sW}
 s_mul_i32 {sPH0}, {sFLld}, {7*GS}
 s_add_u32 {sPH0}, {sPH0}, {HH+4352}
 s_add_u32 {sPH1}, {sPH0}, {28*GS}
 s_lshl_b32 {sFLld}, {sFLld}, 2
 s_lshr_b32 s3, {sE}, 8
 s_add_u32 {sFLld}, {sFLld}, s3
 s_lshl_b32 {sFLld}, {sFLld}, 6
 s_add_u32 {sFLld}, {sFLld}, {FL}
 s_and_b32 s3, {sW}, 1
 s_mul_i32 s3, s3, {nbig*1024}
 s_lshr_b32 {sBIG}, {sW}, 1
 s_lshl_b32 {sBIG}, {sBIG}, 16
 s_add_u32 {sBIG}, {sBIG}, s3""") + srdc(("OUT",))
    return o
def g_vconsts():
    t = 232
    o = L(f"""
 v_bfe_u32 v{t}, v0, 5, 1
 v_bfe_u32 v{t+1}, v0, 4, 1
 v_bfe_u32 v{t+2}, v0, 2, 2
 v_bfe_u32 v{vHC}, v0, 3, 2
 v_lshlrev_b32 v{vHC}, 10, v{vHC}
 v_lshl_add_u32 v{vHC}, v{t}, 4, v{vHC}
 v_lshl_add_u32 v{t}, v{t}, 3, v{t+2}
 v_lshlrev_b32 v{t+4}, 7, v{t}
 v_lshl_add_u32 v{t+4}, v1, 3, v{t+4}
 v_lshl_add_u32 v{t+4}, v{t+1}, 16, v{t+4}
 v_lshrrev_b32 v{t+2}, 1, v{t+2}
 v_lshl_add_u32 v{t+2}, v{t+1}, 1, v{t+2}
 v_add_u32 v{vL2}, 32768, v6""")
    for k in range(4): o += [f" v_xor_b32 v{t+3}, {k}, v{t+2}", f" v_lshl_add_u32 v{vRa+k}, v{t+3}, 5, v{t+4}"]
    o += L(f"""
 v_bfe_u32 v4, v0, 2, 1
 v_lshl_add_u32 v{vHC}, v4, 6, v{vHC}
 v_lshl_add_u32 v{vHC}, v1, 2, v{vHC}
 v_add_u32 v{vHC1}, 4096, v{vHC}
 v_lshrrev_b32 v{t}, 3, v0
 v_and_b32 v{t+1}, 24, v{t}
 v_and_b32 v{t+2}, 3, v{t}
 v_lshl_add_u32 v{t+1}, v{t+2}, 1, v{t+1}
 v_bfe_u32 v{t+2}, v{t}, 2, 1
 v_add_u32 v{t+1}, v{t+1}, v{t+2}
 v_lshlrev_b32 v{t+1}, 10, v{t+1}
 v_and_b32 v{t+2}, 7, v0
 v_lshl_add_u32 v{vOUT}, v{t+2}, 4, v{t+1}
 v_mul_u32_u24 v{vPH}, {GS//16}, v6
 v_add_u32 v4, 16, v6
 v_lshrrev_b32 v4, 7, v4
 v_lshl_add_u32 v{vPH}, v4, 25, v{vPH}
 v_lshlrev_b32 v{vONE}, 21, v6
 v_add_u32 v{vONE}, 4352, v{vONE}
 v_mov_b32 v{vTG}, {sTAG}""")
    return o
HST = [f" buffer_store_dwordx4 {vr(vHP,4)}, v3, {WS}, {sHRES} offen sc1", f" buffer_store_dwordx4 {vr(vHP+4,4)}, v3, {WS}, {sHRES} offen offset:1024 sc1", "MARK:HST"]
FLAGST = f" buffer_store_dword v{vTG}, v{vONE}, {WS}, {sFLst} offen sc1"
FLAGLD = [" v_lshrrev_b32 v1, 5, v6\n v_lshlrev_b32 v1, 25, v1", " v_lshl_add_u32 v1, v6, 6, v1", f" v_mov_b32 v3, 0\n buffer_atomic_or v3, v1, {WS}, {sFLld} offen sc0 sc1"]
HRESLD = [f" buffer_load_dwordx4 {vr(vE,4)}, v{vOUT}, {WS}, {sHR0} offen sc1", f" buffer_load_dwordx4 {vr(vE+4,4)}, v{vOUT}, {WS}, {sHR1} offen sc1", "MARK:hres"]
def poll(dst, voff, soff): return f" v_mov_b32 v{dst}, 0\n buffer_atomic_or v{dst}, v{voff}, {WS}, {soff} offen sc0 sc1"
def pollcmp(dst, mask): return [f" v_cmp_ne_u32 vcc, {sTAG}, v{dst}", f" s_and_b64 vcc, vcc, {mask}"]
def hn_regs(G_): return vHN + 16*(G_ % 4)
def hn_loads(G_):
    return [f" buffer_load_dwordx4 {vr(hn_regs(G_)+4*k,4)}, v{6 if G_ < 8 else vL2}, {WS}, s{sHN+(G_&7)} offen offset:{k*1024} sc1" for k in range(4)] + \
           [f" buffer_load_dword v{CHN[G_%4]}, v{vHC if G_ < 8 else vHC1}, {WS}, s{sHC+(G_&7)} offen sc1"]
def hh_loads(u, i):
    return [f" buffer_load_dwordx4 {vr(HREG[(u,i)]+4*t,4)}, v6, {WS}, s{sHL+7*u+i} offen offset:{t*1024} sc1" for t in range(4)] + \
           [f" buffer_load_dword v{CHH[(u,i)]}, v{vC}, {WS}, s{sHL+7*u+i} offen sc1"]
def hashchain(r, chk):
    o = []
    for f in range(4):
        b = r + 4*f
        o.append(f" v_xad_u32 v4, v{b}, v{b+1}, {sTAG if f == 0 else 'v4'}")
        o.append(f" v_add3_u32 v4, v4, v{b+2}, v{b+3}")
    return o + [f" v_cmp_ne_u32 vcc, v4, v{chk}"]
def retry_check(P, o, loads, later, name, sleep):
    blk = [f"L_{name}_r:", f" s_sub_u32 {sSPIN}, {sSPIN}, 1", f" s_cbranch_scc1 L_{name}_x", f" s_sleep {sleep}"] + loads + [" s_waitcnt vmcnt(0)"] + o + [f" s_cbranch_vccnz L_{name}_r"]
    blk += later + ([" s_waitcnt vmcnt(0)"] if later else []) + [f" s_branch L_{name}_b", f"L_{name}_x:", f" s_mov_b32 {sSPIN}, 0", f" s_branch L_{name}_b"]
    P.tail += blk
    return o + [f" s_cbranch_vccnz L_{name}_r\nL_{name}_b:"]
def hint_spin(name, s, back):
    return [f"L_{name}:", poll(vPD, vPH, s), " s_waitcnt vmcnt(0)"] + pollcmp(vPD, 0x7f) + [f" s_cbranch_vccz {back}", " s_sleep 8",
            f" s_sub_u32 {sSPIN}, {sSPIN}, 1", f" s_cbranch_scc0 L_{name}", f" s_mov_b32 {sSPIN}, 0"]
def epi_tile(acc, ups, t, out, pk):
    o = []
    if pk:
        for i in range(4): o.append(f" v_pk_mul_f32 {vr(vE+2*i,2)}, {vr(acc+2*i,2)}, s[4:5]")
    else:
        for i in range(8): o.append(f" v_mul_f32 v{vE+i}, 0xbfb8aa3b, v{acc+i}")
    for i in range(8): o.append(f" v_exp_f32 v{vE+i}, v{vE+i}")
    if pk:
        for i in range(4): o.append(f" v_pk_add_f32 {vr(vE+2*i,2)}, {vr(vE+2*i,2)}, 1.0 op_sel_hi:[1,0]")
    else:
        for i in range(8): o.append(f" v_add_f32 v{vE+i}, 1.0, v{vE+i}")
    for i in range(8): o.append(f" v_rcp_f32 v{vE+i}, v{vE+i}")
    if pk:
        for i in range(4): o.append(f" v_pk_mul_f32 {vr(vE+2*i,2)}, {vr(vE+2*i,2)}, {vr(acc+8+2*i,2)}")
    else:
        for i in range(8): o.append(f" v_mul_f32 v{vE+i}, v{vE+i}, v{acc+8+i}")
    for i in range(4): o.append(f" v_cvt_pk_bf16_f32 v{out+i}, v{vE+2*i}, v{vE+2*i+1}")
    sb = sHS1 if ups else sHS0
    o.append(f" buffer_store_dwordx4 {vr(out,4)}, v6, {WS}, {sb} offen offset:{t*1024} sc1")
    o.append(f" v_xad_u32 v{vHASH}, v{out}, v{out+1}, {sTAG if t == 0 else 'v%d' % vHASH}")
    o.append(f" v_add3_u32 v{vHASH}, v{vHASH}, v{out+2}, v{out+3}")
    if t == 3:
        o.append(f" buffer_store_dword v{vHASH}, v{vC}, {WS}, {sb} offen sc1")
        o.append(f" buffer_store_dword v{vTG}, v{vONE}, {WS}, {sb} offen sc1")
    return o

def gemm1(P, cfg, wds):
    seq = [(u, k, t) for u in range(2) for k in range(32) for t in range(4)]
    D = 6; LA = 3
    MB = cfg["wd_big"]
    def reads(n):
        u, k, t = seq[n]; d = aC + 4*(n % 8)
        return [f" ds_read_b64_tr_b16 {ar(d+2*io,2)}, v{vRa+t} offset:{k*2048+io*512}" for io in range(2)] + [f"DMARK:w{n}"]
    def hn_issue(g): return hn_loads(g) + [f"MARK:hn{g}"]
    def hn_check(g):
        later = []
        for gg in range(g+1, min(16, g+LA)): later += hn_loads(gg)
        return [f"WAIT:hn{g}"] + retry_check(P, hashchain(hn_regs(g), CHN[g%4]), hn_loads(g), later, f"hn{g}", cfg["bo"])
    for n in range(D): P(reads(n))
    if cfg["hnh"]:
        hl = f" buffer_load_dword v{vPD}, v221, {WS}, {sF0} offen sc1"
        P(["WAIT:phn"] + retry_check(P, [f" v_cmp_ne_u32 vcc, {sTAG}, v{vPD}"], [hl], [], "phn", cfg["hbo"]))
    P.st("hint")
    for g in range(LA): P(hn_issue(g))
    P(hn_check(0))
    P.st("hn0")
    wq_ = list(wds); fill = []; urgent = []; wacc = 0.0; lastv = -9
    h0 = poll(vPD, vPH, sPH0)
    for n, (u, k, t) in enumerate(seq):
        budget = cfg["slots"][u]
        g = 8*u + k//4
        if t == 0:
            if k % 4 == 0:
                while urgent: P(urgent.pop(0))
                if g + LA < 16: urgent += hn_issue(g + LA)
            if k % 4 == 3 and g + 1 < 16: urgent += hn_check(g + 1)
            if (u, k) == (1, 0):
                P.st("p0")
                P(urgent); urgent = []
                P(" s_mov_b32 s4, 0xbfb8aa3b\n s_mov_b32 s5, 0xbfb8aa3b")
                held = []; ex = []
                for tt in range(4):
                    pk = tt < cfg["e0_exp"]
                    for x in epi_tile(acc0+16*tt, 0, tt, acc0+16*tt, pk):
                        (held if x.lstrip().startswith("buffer_store") else (ex if pk else fill)).append(x)
                P(ex)
                fill += held + (["WAIT:HST", FLAGST] if cfg['h_early'] else HST)
                if cfg["e0_exp"] == 4: P(fill); fill = []
                P.st("e0")
            if u == 1 and k == cfg["h0_k"] and cfg["hhh"]: urgent += [h0, "MARK:ph0"]
            if u == 1 and k in cfg["hh_at"]:
                i = cfg["hh_at"][k]
                assert not fill
                if i == 0:
                    if not cfg['h_early']: urgent += ["WAIT:HST", FLAGST]
                    if cfg["hhh"]: urgent += ["WAIT:ph0"] + retry_check(P, pollcmp(vPD, 0x7f), [h0], [], "ph0", cfg["hbo"])
                urgent += hh_loads(0, i) + [f"MARK:hh0_{i}"]
        if n % 2 == 0: P(f"DWAIT:w{n+1}")
        else: budget -= 1
        a = (acc1 if u else acc0) + 16*t
        P(f" v_mfma_f32_32x32x16_bf16 {vr(a,16)}, {ar(aC+4*(n%8),4)}, {vr(hn_regs(g)+4*(k&3),4)}, {'0' if k == 0 else vr(a,16)}")
        if n + D < len(seq):
            P(reads(n+D)); budget -= 2
        wacc += cfg["wd_rate"][u]
        had = bool(fill)
        for q in (urgent, wq_, fill):
            while q and (budget >= P.cost(q[0]) or P.cost(q[0]) == 0):
                if q[0].lstrip().startswith("buffer_"):
                    if n - lastv < cfg["vgap"]: break
                    lastv = n
                if q is wq_:
                    if wacc < 1 and P.cost(q[0]) > 0: break
                    wacc -= P.cost(q[0])
                x = q.pop(0); budget -= P.cost(x); P(x)
        if had and not fill: print("epilogue0 done at k", k)
    print('left: wd', len(wq_), 'fill', len(fill))
    P(urgent); P(wq_); P(fill)
    P.st("p1")
    P(" s_mov_b32 s4, 0xbfb8aa3b\n s_mov_b32 s5, 0xbfb8aa3b")
    big = []
    if MB < 56:
        P(" s_barrier")
        for m in range(MB, 56): big.append("\n".join(wd_dma(m, sBIG, m - MB)))
    e1 = []; held = []
    for tt in range(4):
        for x in epi_tile(acc1+16*tt, 1, tt, acc1+16*tt, True):
            (held if (cfg["hold"] and x.lstrip().startswith("buffer_store")) else e1).append(x)
    pre = []
    for i in range(len(cfg["hh_at"]), 7): pre += hh_loads(0, i) + [f"MARK:hh0_{i}"]
    pre = FLAGLD + ["MARK:flag"] + pre + take(big, cfg["big_pre"])
    if cfg["pre_late"]: P(e1)
    else: interleave(P, e1, pre, cfg["big_every"])
    P(held)
    P(pre)
    P.big = big
    P.st("epi")
    P.st("ld0")

def red_consts():
    return L(f"""
 s_mul_i32 s3, {sW}, {REDW}
 v_add_u32 v12, s3, v6
 v_and_b32 v15, 7, v0
 v_lshrrev_b32 v13, 3, v0
 v_mul_u32_u24 v15, {BS}, v15
 v_lshl_add_u32 v13, v13, 4, v15
 v_add_u32 v14, {2*REDW}, v13""")
def red_write(ups): return [f" ds_write_b128 v12, {vr(acc2+4*blk,4)} offset:{blk*BS}" for blk in range(8*ups, 8*ups+8)]
def red_read(ups, b): return [f" ds_read_b128 {vr(b+8*w+4*h,4)}, {'v13' if w < 2 else 'v14'} offset:{ups*8*BS + h*512 + (w&1)*REDW}" for w in range(4) for h in range(2)]
def red_fin(ups, b, hx, pk, fl):
    o = []
    for (x, y) in ((0, b+8), (16, b+24), (0, hx), (0, b+16)):
        if pk:
            for i in range(4): o.append(f" v_pk_add_f32 {vr(b+x+2*i,2)}, {vr(b+x+2*i,2)}, {vr(y+2*i,2)}")
        else:
            for i in range(8): o.append(f" v_add_f32 v{b+x+i}, v{b+x+i}, v{y+i}")
    for i in range(4): o.append(f" v_cvt_pk_bf16_f32 v{b+16+i}, v{b+2*i}, v{b+2*i+1}")
    o.append(f" buffer_store_dwordx4 {vr(b+16,4)}, v{vOUT}, {srd('OUT')}, {sO0 if ups == 0 else sO1} offen {fl}")
    return o
def gemm2(P, cfg):
    order = [(0, i) for i in range(7)] + [(1, i) for i in range(7)]
    MB = cfg["wd_big"]
    issued = order[:7]
    sched = cfg["b1_at"]
    def chk(pos):
        u, i = order[pos]
        later = []
        for x in order[pos+1:]:
            if x in issued and x[0] == u: later += hh_loads(*x)
        return [f"WAIT:hh{u}_{i}"] + retry_check(P, hashchain(HREG[(u,i)], CHH[(u,i)]), hh_loads(u, i), later, f"hh{u}_{i}", cfg["bo"])
    bigrd = []
    if MB < 56:
        P([f" s_sub_u32 s3, {sBIG}, {sRING}", f" v_add_u32 v{vWr[0]}, s3, v{vWr[0]}", f" v_add_u32 v{vWr[1]}, s3, v{vWr[1]}"])
        for m in range(MB, 56): bigrd += wd_read(m, m - MB)
    P(chk(0))
    hres = [f" buffer_load_dwordx4 {vr(vE,4)}, v{vOUT}, {WS}, {sHR0} offen sc1", f" buffer_load_dwordx4 {vr(vE+4,4)}, v{vOUT}, {WS}, {sHR1} offen sc1", "MARK:hres"]
    flag = [f" buffer_load_dword v3, v1, {WS}, {sFLld} offen sc1"]
    T0 = 112; HX = 16
    for pos, (u, i) in enumerate(order):
        fill = []
        h1 = poll(vPD, vPH, sPH1)
        p1st = min(sched)
        if pos == p1st - cfg["h1_lead"] and cfg["hh1"]: fill += [h1, "MARK:ph1"]
        if pos == p1st:
            if cfg["hh1"]: fill += ["WAIT:ph1"] + retry_check(P, pollcmp(vPD, 0x7f), [h1], [], "ph1", cfg["hbo"])
            else:
                P.tail += hint_spin("ip1", sPH1, "L_ip1b") + [" s_branch L_ip1b"]
                fill += [f" s_cmp_ge_u32 {sJL}, 7\n s_cbranch_scc1 L_ip1\nL_ip1b:"]
        for gi in sched.get(pos, []):
            x = (1, gi)
            prev = [y for y in order[:order.index(x)] if HREG[y] == HREG[x]]
            assert all(order.index(y) < pos for y in prev), x
            fill += hh_loads(*x) + [f"MARK:hh{x[0]}_{x[1]}"]; issued.append(x)
        if pos < 3:
            for x in take(P.big, cfg["big_per"]): fill += x.split("\n")
        if pos == cfg["hres_at"]: fill += ["WAIT:flag"] + retry_check(P, pollcmp(3, 3), FLAGLD[2:], [], "flag", cfg["bo"]) + HRESLD
        if pos == MB//8 - 1:
            assert not P.big
            fill += bigrd + [" s_waitcnt lgkmcnt(0)"]
        if pos == 7: fill += red_consts() + [" s_barrier"]
        if pos == 8: fill += red_write(0)
        if pos == 9: fill += [" s_waitcnt lgkmcnt(0)", " s_barrier"] + red_read(0, T0)
        if pos == 11:
            fill += ["WAIT:hres"]
            for k in range(8): fill += unpack(HX+2*k, vE+k)
            fill += [" s_waitcnt lgkmcnt(0)"]
        if pos == 12: fill += red_fin(0, T0, HX, False, cfg["outf"])[:24]
        if pos == 13: fill += red_fin(0, T0, HX, False, cfg["outf"])[24:]
        assert MB >= 32
        late = chk(pos+1) if pos+1 < len(order) else []
        n = 0
        for t in range(4):
            for tau in range(2):
                a = acc2+32*u+16*tau
                P(f" v_mfma_f32_32x32x16_bf16 {vr(a,16)}, {ar(((i*4+t)*2+tau)*4,4)}, {vr(HREG[(u,i)]+4*t,4)}, {'0' if (i == 0 and t == 0) else vr(a,16)}")
                n += 1
                if n <= 5:
                    b = 5; nv = 0
                    while fill and b > 0:
                        if fill[0].lstrip().startswith("buffer_"):
                            if nv >= cfg["v2"]: break
                            nv += 1
                        b -= P.cost(fill[0]); P(fill.pop(0))
                else:
                    P(take(fill, 99)); P(take(late, 5))
        P(late)
        if pos == 6: P.st("b0")
    P.st("g2")
    P(red_write(1))
    P(" s_waitcnt lgkmcnt(0)\n s_barrier")
    P(red_read(1, 144))
    P(" s_waitcnt lgkmcnt(0)")
    P(red_fin(1, 144, HX+8, True, cfg["outf"]))

def build(cfg, stamps=False):
    P = G(stamps); P.cfg = cfg; WARM[0] = cfg['warm']
    if cfg.get("dbg"): P.only = cfg["dbg"].split(",")
    entry(P, cfg)
    setupB = a_consts() + roles()
    P(take(setupB, cfg["nsetB"]))
    if cfg["f_at"] == 0: P(filter_dma(cfg))
    else: P(f""" v_and_b32 v4, 79, v0
 v_lshrrev_b32 v5, 2, v4
 v_and_or_b32 v4, v5, 16, v4
 v_and_b32 v4, 31, v4
 v_lshlrev_b32 v4, 7, v4
 buffer_load_dword v{vDUM}, v4, {srd('SSMK')}, {sF0} offen {cfg['fnt']}""")
    if cfg["x_at"] == 0: P(x_loads())
    if cfg["wt"] == 0: P(w_touch(cfg["wtnt"], cfg["wth"]))
    if cfg["wdc_at"] == -1: P(wd_consts(cfg['a8']))
    P(tag_setup())
    raw = []
    for m in range(cfg["nraw"]): raw += wd_raw(m)
    P.st("pre")
    P.vmwait("L1")
    P.st("L1")
    p0_kv(P)
    P.st("kvst")
    if cfg["f_at"] == 1:
        if cfg["kbar"]: P(" s_barrier")
        P(filter_dma(dict(fnt=cfg["fnt2"])))
    P(take(raw, 2*cfg["raw0"]))
    if cfg["wdm"] == 1: P(wd_mall())
    if cfg["wt"] == 1: P(w_touch(cfg["wtnt"], cfg["wth"]))
    if cfg["x_at"] == 1: P(x_loads())
    P(setupB)
    late = conv_setup() + h1_addr()
    if cfg["f_at"] == 1: P(late + w_table()); late = []
    if cfg["wdc_at"] == 0: P(wd_consts(cfg['a8']))
    P.vmwait("A")
    P(" s_barrier")
    P.st("bar")
    if late: P(late + w_table())
    ap = a_prep(cfg['lazy']) + (wd_consts(cfg['a8']) if cfg["wdc_at"] == 1 else [])
    if cfg["can1"]: P(canary_issue(cfg, 64*OB))
    P(take(ap, cfg["ap_pre"]))
    if cfg["can1"]: P(canary_check(P, "c1", cfg["cbo"]))
    P.st("aprep")
    ng = cfg["g1"]
    early = []
    for i in range(ng): early += w_pair(i, cfg["wnt"])[:2]
    early += take(raw, 2*cfg["raw1"])
    box_recv(P, vIN, "h1", cfg["bo"], ([" s_barrier"] + early if ng else []) + ap)
    kv_to_lds(P)
    P.st("h1")
    if cfg["im"]:
        o, n = idle_mall("im", cfg["im"]); P(o); P.nvm -= n
    wq = []
    for i in range(cfg.get("nw", 16)):
        p = w_pair(i, cfg["wnt"])
        if i < ng: wq += [p[0] + "\n" + p[2], p[3]]
        else: wq += p
    if cfg["x_at"] == 2: P(x_loads())
    if cfg["wdm"] == 2: P(wd_mall())
    nraw = cfg["nraw"]
    if nraw:
        nwc = 2*cfg["wsched"][0][1]
        raw2 = raw[2*cfg["raw_c"]:]; raw = raw[:2*cfg["raw_c"]]
        wq = wq[:nwc] + raw + wq[nwc:]
    conv_mfma(P, wq, cfg["wsched"])
    assert not any("a[" in x for x in wq)
    print("W ops left after conv:", len(wq)//2)
    P.st("mfma")
    conv_epilogue(P)
    P.mark("YST")
    P.st("yst")
    P(" s_barrier")
    if cfg["wdc_at"] == 2: P(wd_consts(cfg['a8']))
    nd = cfg["wd_pre"]
    wl = wq[2*cfg["w3"]:]; wq = wq[:2*cfg["w3"]]
    n3 = cfg["wd3"]
    b3 = ["\n".join(wd_dma(m)) for m in range(n3)] + wq
    if nraw: P.mark("RAWC"); P(raw2); P.mark("RAW")
    if cfg["wdm"] == 3: P(wd_mall())
    P.vmwait("X")
    interleave(P, stat_consts() + ln1(), b3, cfg["w3_every"])
    P(b3)
    gs = g_sconsts(56 - cfg["wd_big"])
    P(h2_consts())
    if cfg.get("dly2"): P(f" s_sleep {cfg['dly2']}")
    if cfg["can2"]: P(canary_issue(cfg, OB))
    P(wd_rconsts(48))
    nb1 = cfg["nb1"] if nraw else 0
    if nb1:
        P([f" v_add_u32 v48, {sRING}, v6"])
        P.marks["RB"] = P.marks["YST"] - 4 if 2*nb1 <= cfg["raw_c"] + cfg["raw0"] + cfg["raw1"] else P.marks["RAW"]
        P.vmwait("RB")
        for u in range(nb1): P(bounce(u, 48))
    P.st("ln1")
    anyw = True
    q4 = take(wl, 2*cfg["w4"])
    box_recv(P, vY, "h2", cfg["bo"], [" s_barrier"] + q4 if q4 else None)
    P.st("h2")
    ln2(P, take(wl, 2*cfg["w5"]), cfg["w5_every"])
    if cfg["h_early"]: P(HST)
    P.st("hnst")
    if cfg["warm"]:
        P([f" s_cmp_lt_u32 {sJL}, 7", " s_cbranch_scc1 L_nowarm"] + ([] if cfg["h_early"] else HST[:2]) + warm_ops(0, cfg["mw_at"]) + idle_mall("x", 8)[0][2:-1] + warm_ops(cfg["mw_at"], cfg["nwarm"]) + ["L_nowarm:"]); P.nvm -= (2 if cfg["h_early"] else 4) + cfg["nwarm"]
    d = n3
    for m in range(d): P(wd_read(m))
    rd = d
    if nraw:
        assert n3 == 0 and nd == 0
        d = rd = nraw
        for m in range(nraw): P.dmarks[f"wd{m}"] = 0
    if cfg["wd_first"]:
        while d < nd: P(wd_dma(d)); d += 1
    P(wl); P.mark("WALL")
    while d < nd: P(wd_dma(d)); d += 1
    post = g_vconsts() + gs
    P(take(post, cfg["hn_hint_at"]))
    if cfg["hnh"]:
        P(f""" s_lshl_b32 {sF0}, {sG}, 2
 s_add_u32 {sF0}, {sF0}, {sW}
 s_lshl_b32 {sF0}, {sF0}, 14
 s_bfe_u32 s30, s2, 0x20001
 s_lshl_b32 s30, s30, 7
 s_add_u32 {sF0}, {sF0}, s30
 s_add_u32 {sF0}, {sF0}, {HI}
 v_and_b32 v221, {cfg['hn_nh']-1}, v0
 v_lshlrev_b32 v221, 9, v221
 buffer_load_dword v{vPD}, v221, {WS}, {sF0} offen sc1
MARK:phn""")
    P(post)
    if nraw:
        P([f" v_add_u32 v4, {sRING}, v6", "WAIT:RAW"])
        for u in range(nb1, nraw//2): P(bounce(u, 4))
        P(" s_waitcnt lgkmcnt(0)")
    P(f"""
 s_or_b32 s3, s2, {sW}
 s_cmp_lg_u32 s3, 0
 s_cbranch_scc1 L_notag
 v_lshlrev_b32 v4, 21, v6
 buffer_store_dword v{vTG}, v4, {WS}, 0 offen sc1
L_notag:
""")
    P.nvm -= 1
    if cfg.get("dly3"): P(f" s_sleep {cfg['dly3']}")
    if anyw: P("WAIT:WALL\n s_barrier")
    P.st("g1go")
    P(f" s_cmp_ge_u32 {sJL}, 7\n s_cbranch_scc1 L_idle")
    save = (P.nvm, P.nds, P.vmdone, P.dsdone, dict(P.marks), dict(P.dmarks))
    MB = cfg["wd_big"]
    if cfg.get("nowd"): cfg["wd_big"] = MB = 56; d = rd = 56
    gemm1(P, cfg, wd_stream(d, rd, MB))
    P(" s_waitcnt lgkmcnt(0)\nL_join:")
    gemm2(P, cfg)
    if stamps:
        P(" s_waitcnt vmcnt(0)"); P.st("end")
        P(f" v_writelane_b32 v11, {sSPIN}, 63\n s_lshl_b32 s3, s2, 10\n s_add_u32 s3, s3, {STAMPS}\n v_lshlrev_b32 v1, 2, v0\n buffer_store_dword v11, v1, {WS}, s3 offen")
    P("L_end:\n s_endpgm")
    P.nvm, P.nds, P.vmdone, P.dsdone, P.marks, P.dmarks = save
    P("L_idle:")
    if cfg["warm"]: P([" s_waitcnt vmcnt(0)", FLAGST])
    else: P(([] if cfg["h_early"] else HST) + ["WAIT:HST", FLAGST])
    P(wd_stream(d, rd, MB))
    for m in range(MB, min(56, MB + cfg["big_pre"])): P(wd_dma(m, sBIG, m - MB))
    for nm in ("hint","hn0","p0","e0","p1","epi"): P.st(nm)
    P(hint_spin("ip0", sPH0, "L_ip0b") + ["L_ip0b:"])
    for i in range(7): P(hh_loads(0, i))
    P(FLAGLD)
    P(" s_waitcnt vmcnt(0) lgkmcnt(0)")
    P.st("ld0")
    P(" s_branch L_join")
    P(P.tail)
    P("L_codeend:")
    if os.environ.get("STAMP") == "2": P.lines = [l.replace("s_memrealtime", "s_memtime") for l in P.lines]
    body = P.fix()
    head = open("sequential_preLN__ssm_conv_h3__glu_gated_glu__prompt.s.ref").read().split("; Override launch")[0]
    out = head + f"; @launch grid=(256,1,1) block=(256,1,1) lds={LDS_BYTES}\n"
    out += f'.amdgcn_target "amdgcn-amd-amdhsa--gfx950"\n.text\n.globl {NAME}\n.p2align 8\n.type {NAME},@function\n{NAME}:\n' + body
    out += f""" s_endpgm
.section .rodata,"a"
.p2align 6
.amdhsa_kernel {NAME}
  .amdhsa_next_free_vgpr 512
  .amdhsa_next_free_sgpr 102
  .amdhsa_accum_offset 256
  .amdhsa_group_segment_fixed_size 0
  .amdhsa_kernarg_size 104
  .amdhsa_user_sgpr_count 2
  .amdhsa_user_sgpr_kernarg_segment_ptr 1
  .amdhsa_system_sgpr_workgroup_id_x 1
.end_amdhsa_kernel
"""
    if cfg.get("probe"):
        idx = P.stn.index(cfg["probe"])
        Q = G()
        Q(f"""
 s_cmp_ge_u32 s2, 1
 s_cbranch_scc1 L_pend
 s_load_dwordx2 s[48:49], s[0:1], 96
 s_mov_b32 s50, {WS_BYTES}
 s_mov_b32 s51, 0x20000
 v_lshlrev_b32 v1, 8, v0
 v_mov_b32 v2, 0
 s_waitcnt lgkmcnt(0)
 s_mov_b32 s3, {STAMPS}
 buffer_load_dword v3, v2, s[48:51], s3 offen
 v_mov_b32 v4, 0x7fffffff
 v_mov_b32 v5, 0x80000000
 s_mov_b32 s4, {16 if cfg['probe'] == 'end' else 14}
L_pl:
 buffer_load_dword v6, v1, s[48:51], s3 offen
 buffer_load_dword v7, v1, s[48:51], s3 offen offset:{4*idx}
 s_waitcnt vmcnt(0)
 v_sub_u32 v6, v6, v3
 v_sub_u32 v7, v7, v3
 v_min_i32 v4, v4, v6
 v_max_i32 v5, v5, v7
 s_add_u32 s3, s3, 16384
 s_sub_u32 s4, s4, 1
 s_cmp_lg_u32 s4, 0
 s_cbranch_scc1 L_pl
 s_mov_b32 s5, 0x7fffffff
 s_mov_b32 s6, 0x80000000
 s_mov_b32 s4, 0
L_pr:
 v_readlane_b32 s7, v4, s4
 v_readlane_b32 s8, v5, s4
 s_nop 1
 s_min_i32 s5, s5, s7
 s_max_i32 s6, s6, s8
 s_add_u32 s4, s4, 1
 s_cmp_lg_u32 s4, 64
 s_cbranch_scc1 L_pr
 s_sub_u32 s6, s6, s5
 s_min_u32 s6, s6, 10000
 s_mul_i32 s6, s6, {cfg.get('pmul', 10)}
 s_memrealtime s[10:11]
 s_waitcnt lgkmcnt(0)
L_ps:
 s_memrealtime s[12:13]
 s_waitcnt lgkmcnt(0)
 s_sub_u32 s7, s12, s10
 s_cmp_lt_u32 s7, s6
 s_cbranch_scc1 L_ps
L_pend:
 s_endpgm
""")
        out = out.replace(f"; @launch grid=(256,1,1) block=(256,1,1) lds={LDS_BYTES}\n", f"; @launch kernel={NAME} grid=(256,1,1) block=(256,1,1) lds={LDS_BYTES}\n; @launch kernel=probe_kernel grid=(1,1,1) block=(64,1,1) lds=0\n")
        out = out.replace('.section .rodata,"a"', '.globl probe_kernel\n.p2align 8\n.type probe_kernel,@function\nprobe_kernel:\n' + Q.fix() + '.section .rodata,"a"')
        kd = out[out.index(".p2align 6\n.amdhsa_kernel"):]
        out += kd.replace(NAME, "probe_kernel").replace("vgpr 512", "vgpr 16").replace("offset 256", "offset 16")
    return out, P
CFG = dict(raw0=0, raw1=0, nraw=0, raw_c=0, nb1=0, h_early=1, pre_late=0, big_per=6, v2=2, g1=4, w4=8, mw_at=4, nwarm=6, warm=0, lazy=1, vgap=1, wt=9, wtnt="", wth=0, a8=0, can1=0, can2=0, cmask=0x00010001, cbo=6, hnh=0, hn_nh=16, hn_hint_at=999, hbo=8, ap_pre=10, wsched=[(1,6,1),(90,6,3)],
           f_at=1, kbar=1, fnt2="", pf_after="SHK", nsetB=47, fnt="nt", x_at=0, wdm=0, wdc_at=2, bo=8, wnt="", w3=0, w3_every=4, wd3=0, wd_pre=0, wd_first=1, im=0,
           w5=0, w5_every=2, wd_rate=(1.0,1.2), wd_big=44, slots=(6,6), big_pre=0, big_every=8, outf="", dly3=8, dly2=12, hold=1,
           e0_exp=4, hhh=1, h0_k=12, hh_at={17:0, 20:1, 23:2, 26:3, 29:4}, hh1=0, h1_lead=2, b1_at={6:[0,1],7:[2,3],8:[4],9:[5],10:[6]}, hres_at=0)
if __name__ == "__main__":
    cfg = dict(CFG)
    for a in sys.argv[2:]:
        k, v = a.split("=", 1); cfg[k] = eval(v)
    out, P = build(cfg, bool(os.environ.get("STAMP")))
    open(sys.argv[1], "w").write(out)
    if os.environ.get("STAMP"): open(sys.argv[1] + ".names", "w").write(" ".join(P.stn))
    print("lines", len(P.lines), "nops", P.nops)
```

```python
import sys, os, re
sys.path.insert(0, "gen")
from asmlib import Prog

NAME = "sequential_preLN__ssm_conv_h3__glu_gated_glu__prompt_kernel"
TAGSLOT = 0
HC    = 0x080000
FL    = 0x0C0000
HI    = 0x1580000
OB    = 16640
KVBOX = 0x100000
YBOX  = 0x520000
HN    = 0x940000
HRES  = 0xB40000
HH    = 0xD40000
GS    = 4480
STAMPS = 0x1600000
WS_BYTES = 0x1700000
SRD = dict(X=8, K=12, V=16, SHK=20, SSMK=24, SSMD=28, WG=32, WU=36, WD=40, OUT=44, WS=48)
KOFF = dict(X=0, K=8, V=16, SHK=24, SSMK=32, SSMD=40, WG=56, WU=64, WD=72, OUT=80, WS=96)
SIZE = dict(X=2097152, K=2097152, V=2097152, SHK=4096, SSMK=2097152, SSMD=1024, WG=1835008, WU=1835008, WD=1835008, OUT=2097152, WS=WS_BYTES)
def srd(n): return f"s[{SRD[n]}:{SRD[n]+3}]"
WS = srd("WS")
sHNst, sWM, sBIG, sRING, sW, sFLst, sFLld, sG, sJ, sTAG, sLO, sHI, sMASK, sHRES, sT = [f"s{i}" for i in range(52, 67)]
sJL, sO0, sO1, sHS0, sHS1, sSB, sHCst, sE, sSPIN, sHR0, sHR1, sPH1, sL3 = [f"s{i}" for i in range(67, 80)]
sWD = 80
sHC = 87
sPH0, sP, sF0 = "s95", "s96", "s97"
sC = sP
sWT = 12
sHL = 8
sHN = 22
def vr(b, n): return f"v[{b}:{b+n-1}]" if n > 1 else f"v{b}"
def ar(b, n): return f"a[{b}:{b+n-1}]" if n > 1 else f"a{b}"
def L(text): return [l for l in text.split("\n") if l.strip()]
def take(l, n):
    o = l[:n]; del l[:n]; return o

WGB, WUB = 0, 65536
PART = 131072; FC = 96256; CS2 = 4352
KVR = 131072; KVCH = 4608
RING = 131072; NR = 7
STAT = 163840 - 512
BS = 1088; REDW = 16*BS
LDS_BYTES = 163840
SPIN = 20000

class G(Prog):
    def __init__(self, stamps=False):
        super().__init__(); self.nvm = 0; self.nds = 0; self.vmdone = 0; self.dsdone = 0
        self.marks = {}; self.dmarks = {}; self.stamps = stamps; self.tail = []; self.only = None; self.stn = ["start"]
    def __call__(self, text):
        if isinstance(text, list):
            for t in text: self(t)
            return
        for l in text.split("\n"):
            s = l.strip()
            if not s: continue
            if s.startswith("WAIT:"): self.vmwait(s[5:]); continue
            if s.startswith("MARK:"): self.mark(s[5:]); continue
            if s.startswith("DWAIT:"): self.dwait(s[6:]); continue
            if s.startswith("DMARK:"): self.dmarks[s[6:]] = self.nds; continue
            if s == "SKIP": continue
            if s.startswith(("buffer_", "global_")): self.nvm += 1
            if s.startswith("ds_"): self.nds += 1
            if s.startswith("s_waitcnt"):
                m = re.search(r"vmcnt\((\d+)\)", s)
                if m: self.vmdone = max(self.vmdone, self.nvm - int(m.group(1)))
                m = re.search(r"lgkmcnt\((\d+)\)", s)
                if m: self.dsdone = max(self.dsdone, self.nds - int(m.group(1)))
            self.lines.append(l.rstrip())
    def mark(self, name): self.marks[name] = self.nvm
    def vmwait(self, name):
        if self.vmdone < self.marks[name]: self(f" s_waitcnt vmcnt({min(self.nvm - self.marks[name], 63)})")
    def dwait(self, name):
        if self.dsdone < self.dmarks[name]: self(f" s_waitcnt lgkmcnt({min(self.nds - self.dmarks[name], 15)})")
    def cost(self, s):
        t = s.strip()
        if t.startswith(("MARK:", "DMARK:")): return 0
        if t.startswith("WAIT:"): return 0 if self.vmdone >= self.marks[t[5:]] else 1
        if t.startswith("DWAIT:"): return 0 if self.dsdone >= self.dmarks[t[6:]] else 1
        if t == "SKIP": return 3
        if t.startswith(("v_exp", "v_rcp")): return 2
        return 1
    def st(self, i):
        if self.stamps and (self.only is None or i in self.only):
            if i not in self.stn: self.stn.append(i)
            self.lines += [" s_memrealtime s[98:99]", " s_waitcnt lgkmcnt(0)", f" v_writelane_b32 v11, s98, {self.stn.index(i)}", f" v_writelane_b32 v11, {sSPIN}, {32+self.stn.index(i)}"]
def interleave(P, work, bulk, every):
    n = 0
    for wk in work:
        P(wk); n += 1
        if bulk and n % every == 0: P(bulk.pop(0))

vK, vW, vV, vKS, vT = 144, 164, 180, 188, 204
vD, vQ, vX = 220, 224, 240
vBB = [8, 10, 248, 249]
vSW, vDUM, vR, vWD = 250, 251, 252, 254
vWr = (8, 255)
vA, vAx, vB, vIN, aC = 16, 240, 144, 160, 224
vSEL = 7
PA = 131072 + 16384
sYS = 87
vq, vu1 = 208, 224
vONE, vTG, vC, vHC, vHC1, vPH, vHASH, vL2, vOUT, vPD, vHP = 7, 10, 2, 252, 253, 220, 222, 223, 9, 5, 224
vHN, vRa = 16, 12
acc0, acc1, acc2, vE = 80, 144, 16, 240
CHN = [248, 249, 251, 250]
CHH = {(0,i): 212+i for i in range(7)}
CHH.update({(1,0):208,(1,1):209,(1,2):210,(1,3):211,(1,4):219,(1,5):221,(1,6):212})
HREG = {(0,0):224, (0,1):80, (0,2):96, (0,3):112, (0,4):128, (0,5):48, (0,6):64,
        (1,0):144, (1,1):160, (1,2):176, (1,3):192, (1,4):224, (1,5):80, (1,6):96}

def srdc(names): return [x for n in names for x in (f" s_mov_b32 s{SRD[n]+2}, {SIZE[n]}", f" s_mov_b32 s{SRD[n]+3}, 0x20000")]
def entry(P, cfg):
    P(" s_cmp_ge_u32 s2, 256\n s_cbranch_scc1 L_end")
    if P.stamps: P(" s_memrealtime s[98:99]")
    for n in ("K","V","SHK","WS","SSMK","X","SSMD","WD","WG","WU","OUT"):
        P(f" s_load_dwordx2 s[{SRD[n]}:{SRD[n]+1}], s[0:1], {KOFF[n]}")
        if n == cfg["pf_after"]:
            P(f"""
 s_getpc_b64 s[4:5]
L_pc:
 s_bfe_u32 s3, s2, 0x20003
 s_mul_i32 s3, s3, 12288
 v_lshlrev_b32 v4, 7, v0
 v_add_u32 v5, s3, v4
 v_cmp_gt_u32 vcc, 32, v0
 v_cndmask_b32 v4, v5, v4, vcc
 v_min_u32 v4, L_codeend-L_pc-4, v4
 v_cmp_gt_u32 vcc, 128, v0
 s_and_saveexec_b64 s[6:7], vcc
 s_cbranch_execz L_nopf
 global_load_dword v{vDUM}, v4, s[4:5]
L_nopf:
 s_mov_b64 exec, s[6:7]
""")
    P(f"""
 s_and_b32 s3, s2, 7
 s_lshl_b32 s3, s3, 5
 s_lshr_b32 {sP}, s2, 3
 s_or_b32 {sP}, {sP}, s3
 v_lshrrev_b32 v4, 6, v0
 v_and_b32 v1, 3, v0
 v_readfirstlane_b32 {sW}, v4
 v_lshrrev_b32 v2, 2, v0
 s_lshl_b32 s3, {sP}, 13
 v_lshlrev_b32 v3, 11, v1
 v_lshl_add_u32 v3, v2, 4, v3
 v_add_u32 v3, s3, v3
 v_subrev_u32 v4, 3072, v3
 v_subrev_u32 v5, 2048, v3
 v_subrev_u32 v8, 1024, v3
 v_lshlrev_b32 v9, 4, v0
""")
    P(srdc(("K","V","SHK")))
    pre2 = L(f"""
 v_and_b32 v6, 63, v0
 v_lshlrev_b32 v6, 4, v6
 s_lshl_b32 {sF0}, {sC}, 1
 s_lshr_b32 s7, {sW}, 1
 s_add_u32 {sF0}, {sF0}, s7
 s_lshl_b32 {sF0}, {sF0}, 12
 s_mul_i32 s7, {sW}, {2*CS2}
 s_add_u32 s7, s7, {FC}
 s_bitcmp1_b32 {sW}, 0
 s_cselect_b32 s3, 160, 0
 s_cselect_b32 {sT}, 32, 128
 s_cselect_b32 s5, 8, 0
 s_add_u32 s3, s3, s7
 s_add_u32 {sT}, {sT}, s7
 s_add_u32 {sT}, {sT}, {CS2}
 v_mov_b32 v12, 0
 v_and_b32 v14, 7, v0
 v_lshl_add_u32 v13, v14, 2, s3
 v_lshl_add_u32 v14, v14, 2, {sT}
 ds_write_b32 v13, v12
 ds_write_b32 v14, v12
 s_sub_u32 s3, s3, s5
 s_sub_u32 {sT}, {sT}, s5
 s_add_u32 m0, s3, 32
 s_mul_i32 s4, {sP}, {OB}
 s_add_u32 s4, s4, {KVBOX}
 s_add_u32 s5, s4, 4096
 s_add_u32 s6, s4, 8192
 s_add_u32 s7, s4, 12288
 s_mov_b32 {sLO}, 0x05040100
 s_mov_b32 {sHI}, 0x07060302
 s_mov_b32 {sMASK}, 0xffff0000
 s_mov_b32 {sSPIN}, {SPIN}
 v_lshlrev_b32 v7, 4, v2""") + srdc(("SSMK","WS","X","SSMD","WD")) + [f" v_mov_b32 v{vKS+i}, 0" for i in range(16)]
    P(pre2)
    if P.stamps: P(" v_mov_b32 v11, 0\n s_waitcnt lgkmcnt(0)\n v_writelane_b32 v11, s98, 0"); P.st("karg")
    P(f"""
 s_waitcnt lgkmcnt(0)
 buffer_load_dwordx4 {vr(vK,4)}, v4, {srd('K')}, 0 offen nt
 buffer_load_dwordx4 {vr(vK+4,4)}, v5, {srd('K')}, 0 offen nt
 buffer_load_dwordx4 {vr(vK+8,4)}, v8, {srd('K')}, 0 offen nt
 buffer_load_dwordx4 {vr(vK+12,4)}, v3, {srd('K')}, 0 offen nt
 buffer_load_dwordx4 {vr(vK+16,4)}, v3, {srd('K')}, 0 offen offset:1024 nt
 buffer_load_dwordx4 {vr(vV,4)}, v3, {srd('V')}, 0 offen nt
 buffer_load_dwordx4 {vr(vV+4,4)}, v3, {srd('V')}, 0 offen offset:1024 nt
 buffer_load_dwordx4 {vr(vW,4)}, v9, {srd('SHK')}, 0 offen
MARK:L1
 s_load_dword {sTAG}, s[{SRD['WS']}:{SRD['WS']+1}], {TAGSLOT}
""")
def filter_dma(cfg):
    nt = cfg["fnt"]
    o = [f" buffer_load_dwordx4 v6, {srd('SSMK')}, {sF0} offen offset:{1024*i} {nt} lds" for i in range(4)]
    o.append(f" s_add_u32 m0, {sT}, 28")
    o += [f" buffer_load_dwordx4 v6, {srd('SSMK')}, {sF0} offen offset:{1024*i} {nt} lds" for i in range(4)]
    return o + ["MARK:A"]
def x_loads():
    return [f" buffer_load_dwordx4 {vr(vX,4)}, v3, {srd('X')}, 0 offen nt",
            f" buffer_load_dwordx4 {vr(vX+4,4)}, v3, {srd('X')}, 0 offen offset:1024 nt",
            f" buffer_load_dwordx4 {vr(vD,4)}, v7, {srd('SSMD')}, 0 offen", "MARK:X"]
def tag_setup():
    return [" s_waitcnt lgkmcnt(0)", f" s_add_u32 {sTAG}, {sTAG}, 0x9E3779B1"] + [f" v_mov_b32 v{vQ+2*t+1}, {sTAG}" for t in range(8)]
def p0_kv(P):
    Krow = lambda i, d: vK + 4*i + d
    prs = [(3,2),(1,0),(4,3),(2,1)]
    for t in range(4):
        T = vT + 8*(t & 1)
        for c in range(2):
            for n,(x,y) in enumerate(prs):
                P(f" v_perm_b32 v{T+4*c+n}, v{Krow(y,t)}, v{Krow(x,t)}, {sHI if c else sLO}")
        ks = vKS + 4*t
        qp = f"quad_perm:[{t},{t},{t},{t}] row_mask:0xf bank_mask:0xf"
        for hi in (1, 0):
            for c in range(2):
                P(f" v_dot2c_f32_bf16_dpp v{ks+c}, v{vW+2*c+hi}, v{T+4*c+hi} {qp}")
                P(f" v_dot2c_f32_bf16_dpp v{ks+2+c}, v{vW+2*c+hi}, v{T+4*c+2+hi} {qp}")
        P(f""" v_lshlrev_b32 v{T}, 16, v{vV+t}
 v_and_b32 v{T+1}, {sMASK}, v{vV+t}
 v_lshlrev_b32 v{T+2}, 16, v{vV+4+t}
 v_and_b32 v{T+3}, {sMASK}, v{vV+4+t}
 v_pk_mul_f32 {vr(ks,2)}, {vr(ks,2)}, {vr(T,2)}
 v_pk_mul_f32 {vr(ks+2,2)}, {vr(ks+2,2)}, {vr(T+2,2)}
 v_cvt_pk_bf16_f32 v{vQ+4*t}, v{ks}, v{ks+1}
 v_cvt_pk_bf16_f32 v{vQ+4*t+2}, v{ks+2}, v{ks+3}
 buffer_store_dwordx4 {vr(vQ+4*t,4)}, v9, {WS}, s{4+t} offen sc1""")
def wd_mall():
    return L(f""" s_lshl_b32 s100, s2, 2
 s_add_u32 s100, s100, {sW}
 s_mul_i32 s100, s100, 1792
 v_lshlrev_b32 v4, 3, v6
 v_min_u32 v4, {13*128}, v4
 buffer_load_dword v{vDUM}, v4, {srd('WD')}, s100 offen""")
def idle_mall(name, nx):
    per = 112*(8//nx)
    o = L(f""" s_cmp_lt_u32 {sJL}, 7
 s_cbranch_scc1 L_{name}
 s_and_b32 s100, s2, {nx-1}
 s_lshl_b32 s100, s100, 2
 s_add_u32 s100, s100, {sL3}
 s_lshl_b32 s100, s100, 2
 s_add_u32 s100, s100, {sW}
 s_mul_i32 s100, s100, {per*128}
 v_lshlrev_b32 v4, 3, v6
 v_min_u32 v4, {55*128}, v4""")
    for i in range(per//56): o += [f" buffer_load_dword v{vDUM}, v4, {srd('WD')}, s100 offen", f" s_add_u32 s100, s100, {56*128}"]
    return o + [f"L_{name}:"], per//56
def w_touch(nt, half):
    o = L(f""" s_lshl_b32 s100, {sL3}, 7
 s_and_b32 s3, s2, 1
 s_lshl_b32 s3, s3, 6
 s_add_u32 s100, s100, s3
 s_lshl_b32 s3, {sW}, {4 if half else 5}
 s_add_u32 s100, s100, s3
 v_and_b32 v4, {15 if half else 31}, v0
 v_add_u32 v4, s100, v4
 v_and_b32 v4, 511, v4
 v_mul_u32_u24 v4, 3584, v4
 s_lshl_b32 s100, {sJ}, 7
 buffer_load_dword v{vDUM}, v4, {srd('WG')}, s100 offen {nt}
 buffer_load_dword v{vDUM}, v4, {srd('WU')}, s100 offen {nt}""")
    return o
def a_consts():
    return L(f"""
 v_and_b32 v4, 15, v0
 v_add_u32 v4, 1, v4
 v_bfe_u32 v15, v4, 1, 2
 v_lshlrev_b32 v12, 3, v15
 s_mov_b32 s3, 0x020A0800
 v_bfe_u32 v12, s3, v12, 8
 v_mul_u32_u24 v15, {CS2}, v15
 v_lshrrev_b32 v4, 3, v4
 v_add_u32 v4, v4, v12
 v_lshl_add_u32 v15, v4, 4, v15
 v_bfe_u32 v4, v0, 4, 3
 v_lshl_add_u32 v15, v4, 6, v15
 s_lshr_b32 s3, {sW}, 1
 s_mul_i32 s3, s3, {4*CS2}
 s_add_u32 s3, s3, {FC}
 v_add_u32 v15, s3, v15
 v_and_b32 v12, 1, v0
 v_mul_u32_u24 v12, 0x020202, v12
 v_lshl_or_b32 v12, v12, 8, v12
 v_sub_u32 v12, 0x05040302, v12""")
def a_perm(a, i):
    nxt = vA+16*a+i+1 if i < 15 else vAx+a
    return f" v_perm_b32 v{vA+16*a+i}, v{nxt}, v{vA+16*a+i}, v{vSEL}"
def a_prep(na):
    def rd(a): return [f" ds_read_b128 {vr(vA+16*a+4*bb,4)}, v15 offset:{512*a+16*bb}" for bb in range(4)] + [f" ds_read_b32 v{vAx+a}, v15 offset:{512*a+64}", f"DMARK:a{a}"]
    o = [f" v_mov_b32 v{vSEL}, v12"] + rd(0) + rd(1)
    for a in range(8):
        if a+2 < 8: o += rd(a+2)
        o.append(f"DWAIT:a{a}")
        if a < na:
            for i in range(16): o.append(a_perm(a, i))
    return o
def roles():
    t = 168
    o = L(f"""
 s_bfe_u32 {sL3}, s2, 0x20003
 s_lshr_b32 {sJL}, s2, 5
 s_and_b32 s3, s2, 1
 s_lshl_b32 s3, s3, 2
 s_add_u32 {sG}, s3, {sL3}
 s_bfe_u32 s3, s2, 0x20001
 s_mul_i32 s3, s3, 7
 s_add_u32 {sJ}, s3, {sJL}
 s_cmp_ge_u32 {sJL}, 7
 s_cselect_b32 s{SRD['WG']+2}, 0, {SIZE['WG']}
 s_mov_b32 s{SRD['WG']+3}, 0x20000
 s_mov_b32 s{SRD['WU']+2}, s{SRD['WG']+2}
 s_mov_b32 s{SRD['WU']+3}, 0x20000
 v_bfe_u32 v{t+1}, v0, 3, 3
 v_and_b32 v{t+3}, 7, v0
 v_mul_u32_u24 v{t+2}, 3584, v{t+1}
 v_and_b32 v{t+4}, 2, v{t+1}
 v_xor_b32 v{t+5}, v{t+3}, v{t+4}
 s_lshl_b32 s3, {sJ}, 7
 v_add_u32 v{t+2}, s3, v{t+2}
 v_lshl_add_u32 v{vR}, v{t+5}, 4, v{t+2}
 v_xor_b32 v{t+5}, 4, v{t+5}
 v_lshl_add_u32 v{vR+1}, v{t+5}, 4, v{t+2}
 v_lshlrev_b32 v{t+4}, 1, v{t+4}
 v_xor_b32 v{t+3}, v{t+3}, v{t+4}
 v_lshlrev_b32 v{t+1}, 10, v{t+1}
 v_lshl_add_u32 v{vWD}, v{t+3}, 4, v{t+1}""")
    return o
def w_table():
    o = L(f""" s_lshl_b32 s100, {sL3}, 4
 s_and_b32 s3, s2, 1
 s_lshl_b32 s3, s3, 3
 s_add_u32 s100, s100, s3
 s_add_u32 s100, s100, {sW}
 s_lshl_b32 s3, {sJL}, 3
 s_sub_u32 {sWM}, s100, s3
 s_lshl_b32 {sWM}, {sWM}, 10""")
    for idx in range(16): o += [f" s_add_u32 s3, s100, {4*idx}", " s_and_b32 s3, s3, 63", f" s_mul_i32 s{sWT+idx}, s3, {8*3584}"]
    return o
def w_pair(idx, nt):
    return [f" s_add_u32 s101, {sWM}, {idx*4096}\n s_and_b32 m0, s101, 0xffff", f" buffer_load_dwordx4 v{vR}, {srd('WG')}, s{sWT+idx} offen {nt} lds",
            f" s_add_u32 m0, m0, 65536", f" buffer_load_dwordx4 v{vR+1}, {srd('WU')}, s{sWT+idx} offen {nt} lds"]
def conv_setup():
    t = 176
    o = L(f"""
 v_mov_b32 v{t}, 0
 v_and_b32 v13, 127, v0
 v_lshlrev_b32 v13, 2, v13
 v_lshrrev_b32 v14, 7, v0
 v_mul_u32_u24 v14, {KVCH}, v14
 s_mov_b32 s3, {KVR+4096}
 v_add3_u32 v13, v13, v14, s3
 ds_write_b32 v13, v{t}
 v_and_b32 v13, 15, v0
 v_lshlrev_b32 v13, 5, v13
 v_bfe_u32 v14, v0, 4, 3
 v_lshlrev_b32 v14, 6, v14
 v_sub_u32 v14, v14, v13
 v_add_u32 v14, 480, v14
 s_lshr_b32 s3, {sW}, 1
 s_mul_i32 s3, s3, {KVCH}
 s_add_u32 s3, s3, {KVR}""")
    for bb in range(4):
        o += L(f""" v_add_u32 v13, {16*bb}, v14
 v_lshrrev_b32 v{t+1}, 4, v13
 v_and_b32 v{t+1}, 16, v{t+1}
 v_xor_b32 v13, v13, v{t+1}
 v_add_u32 v{vBB[bb]}, s3, v13""")
    o += L(f"""
 v_lshlrev_b32 v13, 2, v0
 v_sub_u32 v13, 1020, v13
 v_lshrrev_b32 v{t+1}, 4, v13
 v_and_b32 v{t+1}, 16, v{t+1}
 v_xor_b32 v13, v13, v{t+1}
 v_add_u32 v13, {KVR}, v13
 v_mul_u32_u24 v14, {OB}, v2
 v_lshl_add_u32 v14, v1, 4, v14""")
    return o
def h1_addr():
    return L(f"""
 s_and_b32 s4, {sC}, 3
 s_lshl_b32 s4, s4, 12
 s_lshr_b32 s3, {sC}, 2
 s_lshl_b32 s3, s3, 6
 s_add_u32 s4, s4, s3
 s_add_u32 s4, s4, {KVBOX}
 s_add_u32 s5, s4, {64*OB}
 s_add_u32 s6, s4, {128*OB}
 s_add_u32 s7, s4, {192*OB}""")
def box_loads(base, va): return [f" buffer_load_dwordx4 {vr(base+4*i,4)}, v{va}, {WS}, s{4+i} offen sc1" for i in range(4)]
def box_recv(P, base, name, sleep, shadow=None, va=14, issued=False):
    lds = box_loads(base, va)
    if not issued: P(lds); P.mark(name)
    if shadow: P(shadow)
    P.vmwait(name)
    P(f"L_{name}:")
    P(f" v_xor_b32 v4, {sTAG}, v{base+1}")
    for i in range(1, 8): P(f" v_bitop3_b32 v4, v4, v{base+2*i+1}, {sTAG} bitop3:0xf6")
    P(f" v_cmp_ne_u32 vcc, 0, v4\n s_cbranch_vccnz L_{name}_r\nL_{name}_ok:\n s_mov_b64 exec, -1")
    P.tail += L(f"""L_{name}_r:
 s_mov_b64 exec, vcc
 s_sleep {sleep}""") + lds + L(f""" s_waitcnt vmcnt(0)
 s_sub_u32 {sSPIN}, {sSPIN}, 1
 s_cbranch_scc0 L_{name}
 s_mov_b32 {sSPIN}, 0
 s_branch L_{name}_ok""")
def canary_issue(cfg, stride):
    m = cfg["cmask"]
    return L(f"""
 s_bfe_u32 {sT}, {sP}, 0x20003
 s_mul_i32 {sT}, {sT}, {stride}
 s_add_u32 {sT}, {sT}, s4
 s_bfe_u32 s3, {sP}, 0x20001
 s_lshl_b32 s3, s3, 2
 s_mov_b32 s100, {m}
 s_mov_b32 s101, {m}
 s_lshl_b64 s[100:101], s[100:101], s3
 v_mov_b32 v7, {sTAG}
 s_mov_b64 exec, s[100:101]
 buffer_load_dword v7, v14, {WS}, {sT} offen offset:4 sc1
 s_mov_b64 exec, -1
MARK:can""")
def canary_check(P, name, sleep):
    P.tail += L(f"""L_{name}_r:
 s_sub_u32 {sSPIN}, {sSPIN}, 1
 s_cbranch_scc1 L_{name}_x
 s_mov_b64 exec, vcc
 s_sleep {sleep}
 buffer_load_dword v7, v14, {WS}, {sT} offen offset:4 sc1
 s_mov_b64 exec, -1
 s_waitcnt vmcnt(0)
 v_cmp_ne_u32 vcc, {sTAG}, v7
 s_cbranch_vccnz L_{name}_r
 s_branch L_{name}_b
L_{name}_x:
 s_mov_b32 {sSPIN}, 0
 s_branch L_{name}_b""")
    return ["WAIT:can", f" v_cmp_ne_u32 vcc, {sTAG}, v7", f" s_cbranch_vccnz L_{name}_r", f"L_{name}_b:"]
def kv_to_lds(P):
    for i in range(4):
        P(f" v_perm_b32 v{vIN+4*i+1}, v{vIN+4*i}, v{vIN+4*i+2}, {sLO}")
        P(f" v_perm_b32 v{vIN+4*i+3}, v{vIN+4*i}, v{vIN+4*i+2}, {sHI}")
        P(f" ds_write2st64_b32 v13, v{vIN+4*i+1}, v{vIN+4*i+3} offset0:{(3-i)*4} offset1:{(3-i)*4+KVCH//256}")
    P(" s_waitcnt lgkmcnt(0)\n s_barrier")
vY = 160
def conv_epi_consts():
    return L(f"""
 v_bfe_u32 v13, v0, 4, 2
 v_lshlrev_b32 v14, 6, v13
 v_xor_b32 v13, v14, v6
 s_lshl_b32 s3, {sW}, 12
 s_add_u32 s3, s3, {PA}
 v_add_u32 v13, s3, v13
 v_bfe_u32 v15, v0, 1, 2
 v_bfe_u32 v14, v0, 3, 4
 v_lshlrev_b32 v12, 2, v15
 v_xor_b32 v14, v14, v12
 v_lshlrev_b32 v14, 4, v14
 v_lshl_add_u32 v14, v15, 8, v14
 v_lshrrev_b32 v15, 7, v0
 v_lshl_add_u32 v14, v15, 10, v14
 v_and_b32 v15, 1, v0
 v_lshl_add_u32 v14, v15, 3, v14
 v_add_u32 v14, {PA}, v14""")
def y_consts():
    return L(f"""
 s_mul_i32 s{sYS}, {sC}, {OB}
 s_add_u32 s{sYS}, s{sYS}, {YBOX}
 s_add_u32 s{sYS+1}, s{sYS}, 4096
 s_add_u32 s{sYS+2}, s{sYS}, 8192
 s_add_u32 s{sYS+3}, s{sYS}, 12288""")
def gather_consts():
    return L(f"""
 v_mul_u32_u24 v12, {4*OB}, v2
 v_lshl_add_u32 v12, v1, 4, v12
 s_lshl_b32 s4, {sP}, 6
 s_add_u32 s4, s4, {YBOX}
 s_add_u32 s5, s4, {OB}
 s_add_u32 s6, s4, {2*OB}
 s_add_u32 s7, s4, {3*OB}""")
def epi_reads(i, b): return [f" ds_read2st64_b64 {vr(b+4*c,4)}, v14 offset0:{4*i+16*c} offset1:{4*i+16*c+8}" for c in range(2)]
def gatherA(P):
    P([f" s_cmp_ge_u32 {sP}, 128", " s_cbranch_scc1 L_noga"] + box_loads(vY, 12) + ["L_noga:"]); P.nvm -= 4; P.mark("preY")
def conv_mfma(P, bulk, sched):
    cfg = P.cfg
    breg = {}
    def rd(bb, d, r): breg[(bb, d)] = r; return f" ds_read_b128 {vr(r,4)}, v{vBB[bb]} offset:{(7-d)*512}"
    started = set()
    def mf(j, a, bb):
        c = ar(aC+4*j,4) if j in started else "0"; started.add(j)
        P(f" v_mfma_f32_16x16x32_bf16 {ar(aC+4*j,4)}, {vr(vA+16*a+4*bb,4)}, {vr(breg[(bb,j-a)],4)}, {c}")
    used = [0]; n = [0]
    def due():
        allowed = sum(min(2*c, max(0, (n[0] - s0)//e + 1)) for (s0, c, e) in sched)
        return used[0] < allowed
    def buf(bb, d): return vB + 32*(bb & 1) + 4*d
    q1 = []; q2 = []
    def fillers():
        n[0] += 1; k = 2
        while k > 0:
            if q1:
                x = q1.pop(0); k -= P.cost(x) if x != "SKIP" else 2; P(x)
            elif bulk and due() and k == 2: P(bulk.pop(0)); used[0] += 1; k -= 1
            elif q2: P(q2.pop(0)); k -= 1
            else: break
    for bb in (2, 3, 0, 1):
        for d in range(4): P(rd(bb, d, buf(bb, d + (4 if bb >= 2 else 0))))
        P(f"DMARK:b{bb}")
    q2 += conv_epi_consts() + [a_perm(a, i) for a in range(cfg["na"], 8) for i in range(16)]
    wr = []
    for bb in (2, 3, 0, 1):
        P(f"DWAIT:b{bb}")
        order = [(a+d, a) for d in range(4) for a in range(4-d)] if bb != 1 else [(j, a) for j in range(4) for a in range(j+1)]
        for (j, a) in order:
            mf(j, a, bb); fillers()
        if bb in (2, 3): q1 += [rd(bb-2, d, buf(bb, d)) for d in range(4, 8)] + [f"DMARK:c{bb-2}"]
    P(q1); P(q2); del q1[:]; del q2[:]
    E = vAx
    q1 += ["SKIP", "SKIP"] + [f" ds_write_b128 v13, {ar(aC+4*j,4)} offset:{j*1024}" for j in range(4)] + ["SKIP"]*cfg["ea_gap"] + [" s_waitcnt lgkmcnt(0)", " s_barrier"]
    for i in range(2):
        q1 += epi_reads(i, E) + ["DMARK:ea", "SKIP", "SKIP", "SKIP", "DWAIT:ea"]
        q1 += [f" v_add_f32 v{E+x}, v{E+x}, v{E+x+2}" for x in (0, 1, 4, 5)]
        q1 += [f" v_cvt_pk_bf16_f32 v{E}, v{E}, v{E+4}", f" v_cvt_pk_bf16_f32 v{E+2}, v{E+1}, v{E+5}", f" v_mov_b32 v{E+1}, {sTAG}", f" v_mov_b32 v{E+3}, {sTAG}",
               f" buffer_store_dwordx4 {vr(E,4)}, v9, {WS}, s{sYS+i} offen sc1", "SKIP"]
    q2 += gather_consts() + cfg["_conv_extra"]
    for bb in range(4):
        P(f"DWAIT:c{bb}")
        if bb == 3:
            assert not q1
            P(q2); del q2[:]
            P(" s_waitcnt lgkmcnt(0)\n s_barrier")
            q2 += [f" v_mov_b32 v{vB+2*i+1}, {sTAG}" for i in range(4)]
        order = [(a+d, a) for d in range(8) for a in range(8-d) if a+d >= 4] if bb < 3 else [(j, a) for j in range(4, 8) for a in range(j+1)]
        cnt = 0; pend = []
        for (j, a) in order:
            mf(j, a, bb); cnt += 1
            if bb in (1, 2) and cnt == 2:
                nb = bb + 1
                ins = [f" ds_read_b128 {vr(buf(nb,d),4)}, v{vBB[nb]} offset:{(7-d)*512}" for d in range(8)] + [f"DMARK:c{nb}"]
                q1 += ins
            if bb == 3:
                if cnt == cfg["ga_at"]: gatherA(P)
                if pend and pend[0][1] + 4 <= cnt: q1.append(pend.pop(0)[0])
                if a == j: pend.append((f" ds_write_b128 v13, {ar(aC+4*j,4)} offset:{(j-4)*1024}", cnt))
            fillers()
        if bb in (1, 2):
            P(q1); del q1[:]
            for d in range(8): breg[(bb+1, d)] = buf(bb+1, d)
    P(q1); P(q2)
    for x in pend: P(x[0])
def conv_epilogue(P):
    R = 16
    P(" s_waitcnt lgkmcnt(0)\n s_barrier")
    for i in range(2): P(epi_reads(i, R+8*i))
    if P.cfg["ga_at"] == 99: gatherA(P)
    for i in range(2):
        P(f" s_waitcnt lgkmcnt({2-2*i})")
        b = R+8*i
        P(f""" v_pk_add_f32 {vr(b,2)}, {vr(b,2)}, {vr(b+2,2)}
 v_pk_add_f32 {vr(b+4,2)}, {vr(b+4,2)}, {vr(b+6,2)}
 v_cvt_pk_bf16_f32 v{vB+4*i}, v{b}, v{b+4}
 v_cvt_pk_bf16_f32 v{vB+4*i+2}, v{b+1}, v{b+5}
 buffer_store_dwordx4 {vr(vB+4*i,4)}, v9, {WS}, s{sYS+2+i} offen sc1""")

vSR = 15
def stat_consts(vSW, vSR):
    return L(f"""
 v_bfe_u32 v{vSW}, v0, 4, 4
 v_lshl_add_u32 v{vSW}, v1, 4, v{vSW}
 v_lshlrev_b32 v{vSW}, 2, v{vSW}
 v_add_u32 v{vSW}, {STAT}, v{vSW}
 v_lshlrev_b32 v{vSR}, 6, v1
 v_add_u32 v{vSR}, {STAT}, v{vSR}
 s_mov_b32 s30, 0x3b000000
 s_mov_b32 s31, 0x3b000000""")
def row_stats(src, tmp, off, mr, shadow, vSW, vSR):
    o = []
    a = tmp+8
    for r in range(2):
        b = src+8*r
        o.append(f" v_pk_add_f32 {vr(a+4*r,2)}, {vr(b,2)}, {vr(b+2,2)}")
        o.append(f" v_pk_mul_f32 {vr(a+4*r+2,2)}, {vr(b,2)}, {vr(b,2)}")
    for i in range(1, 4):
        for r in range(2):
            b = src+8*r+2*i
            if i >= 2: o.append(f" v_pk_add_f32 {vr(a+4*r,2)}, {vr(a+4*r,2)}, {vr(b,2)}")
            o.append(f" v_pk_fma_f32 {vr(a+4*r+2,2)}, {vr(b,2)}, {vr(b,2)}, {vr(a+4*r+2,2)}")
    for k in range(4): o.append(f" v_add_f32 v{tmp+k}, v{a+2*k}, v{a+2*k+1}")
    sh = list(shadow)
    def S(n): return take(sh, n)
    o += S(2) + [f" v_permlane32_swap_b32 v{tmp}, v{tmp+1}", f" v_permlane32_swap_b32 v{tmp+2}, v{tmp+3}",
          f" v_add_f32 v{tmp}, v{tmp}, v{tmp+1}", f" v_add_f32 v{tmp+2}, v{tmp+2}, v{tmp+3}"] + S(2) + \
         [f" v_permlane16_swap_b32 v{tmp}, v{tmp+2}", f" v_add_f32 v{tmp}, v{tmp}, v{tmp+2}"] + S(2) + \
         [f" v_add_f32_dpp v{tmp}, v{tmp}, v{tmp} row_ror:4 row_mask:0xf bank_mask:0xf"] + S(2) + \
         [f" v_add_f32_dpp v{tmp}, v{tmp}, v{tmp} row_ror:8 row_mask:0xf bank_mask:0xf", f" ds_write_b32 v{vSW}, v{tmp} offset:{off}"] + S(8) + \
         [" s_waitcnt lgkmcnt(0)", " s_barrier"] + \
         [f" ds_read_b128 {vr(tmp+8+4*k,4)}, v{vSR} offset:{off+16*k}" for k in range(4)] + S(99) + [" s_waitcnt lgkmcnt(0)"]
    o += L(f"""
 v_pk_add_f32 {vr(a,2)}, {vr(a,2)}, {vr(a+4,2)}
 v_pk_add_f32 {vr(a+8,2)}, {vr(a+8,2)}, {vr(a+12,2)}
 v_pk_add_f32 {vr(a+2,2)}, {vr(a+2,2)}, {vr(a+6,2)}
 v_pk_add_f32 {vr(a+10,2)}, {vr(a+10,2)}, {vr(a+14,2)}
 v_pk_add_f32 {vr(tmp,2)}, {vr(a,2)}, {vr(a+8,2)}
 v_pk_add_f32 {vr(tmp+2,2)}, {vr(a+2,2)}, {vr(a+10,2)}
 v_pk_mul_f32 {vr(tmp,2)}, {vr(tmp,2)}, s[30:31]
 v_pk_mul_f32 {vr(tmp+2,2)}, {vr(tmp+2,2)}, s[30:31]
 v_pk_fma_f32 {vr(tmp+2,2)}, {vr(tmp,2)}, {vr(tmp,2)}, {vr(tmp+2,2)} neg_lo:[1,0,0] neg_hi:[1,0,0]
 v_cvt_pk_bf16_f32 v{tmp+4}, v{tmp}, v{tmp+1}
 v_max_f32 v{tmp+2}, 0, v{tmp+2}
 v_max_f32 v{tmp+3}, 0, v{tmp+3}
 v_cvt_pk_bf16_f32 v{tmp+5}, v{tmp+2}, v{tmp+3}
 v_lshlrev_b32 v{tmp+2}, 16, v{tmp+5}
 v_and_b32 v{tmp+3}, {sMASK}, v{tmp+5}
 v_add_f32 v{tmp+2}, 0x3727c5ac, v{tmp+2}
 v_add_f32 v{tmp+3}, 0x3727c5ac, v{tmp+3}
 v_cvt_pk_bf16_f32 v{tmp+5}, v{tmp+2}, v{tmp+3}
 v_lshlrev_b32 v{tmp+2}, 16, v{tmp+5}
 v_and_b32 v{tmp+3}, {sMASK}, v{tmp+5}
 v_sqrt_f32 v{tmp+2}, v{tmp+2}
 v_sqrt_f32 v{tmp+3}, v{tmp+3}
 v_lshlrev_b32 v{mr}, 16, v{tmp+4}
 v_cvt_pk_bf16_f32 v{tmp+5}, v{tmp+2}, v{tmp+3}
 v_lshlrev_b32 v{tmp+2}, 16, v{tmp+5}
 v_and_b32 v{tmp+3}, {sMASK}, v{tmp+5}
 v_rcp_f32 v{mr+2}, v{tmp+2}
 v_rcp_f32 v{mr+3}, v{tmp+3}
 v_and_b32 v{mr+1}, {sMASK}, v{tmp+4}
 v_pk_mul_f32 {vr(mr,2)}, {vr(mr,2)}, {vr(mr+2,2)} neg_lo:[1,0] neg_hi:[1,0]""")
    return o
def norm_row(dst, src, mr, row):
    sel = f"op_sel:[0,{row},{row}] op_sel_hi:[1,{row},{row}]"
    return [f" v_pk_fma_f32 {vr(dst+8*row+2*i,2)}, {vr(src+8*row+2*i,2)}, {vr(mr+2,2)}, {vr(mr,2)} {sel}" for i in range(4)]
def unpack(dst, src): return [f" v_lshlrev_b32 v{dst}, 16, v{src}", f" v_and_b32 v{dst+1}, {sMASK}, v{src}"]
def ln1():
    tmp = 176; mr = 200; kd = 160
    o = []
    for r in range(2):
        for t in range(4): o += unpack(kd+8*r+2*t, vQ+4*t+2*r)
    for i in range(8): o += unpack(vu1+2*i, vX+i)
    sh = []
    for i in range(4): sh += unpack(vX+2*i, vD+i)
    for r in range(2):
        for t in range(4): sh.append(f" v_pk_mul_f32 {vr(kd+8*r+2*t,2)}, {vr(kd+8*r+2*t,2)}, {vr(vX+2*t,2)}")
    o += row_stats(vu1, tmp, 0, mr, sh, 204, 205)
    o += norm_row(vq, vu1, mr, 0) + norm_row(vq, vu1, mr, 1)
    for i in range(8): o.append(f" v_pk_fma_f32 {vr(vu1+2*i,2)}, {vr(vq+2*i,2)}, {vr(kd+2*i,2)}, {vr(vu1+2*i,2)}")
    return o
def ln2():
    P = G()
    vh, vn, tmp, mr = 80, 104, 112, 136
    for r in range(2):
        for t in range(4): P(unpack(vh+8*r+2*t, vY+4*t+2*r))
    for i in range(8): P(f" v_pk_fma_f32 {vr(vh+2*i,2)}, {vr(vq+2*i,2)}, {vr(vh+2*i,2)}, {vr(vu1+2*i,2)}")
    sh = [f" v_cvt_pk_bf16_f32 v{vHP+i}, v{vh+2*i}, v{vh+2*i+1}" for i in range(8)]
    for i in range(8): sh += unpack(vh+2*i, vHP+i)
    P(row_stats(vh, tmp, 256, mr, sh, vSW, vSR))
    for r in range(2):
        P(norm_row(vh, vh, mr, r))
        for i in range(4*r, 4*r+4): P(f" v_cvt_pk_bf16_f32 v{vn+i}, v{vh+2*i}, v{vh+2*i+1}")
        P(f" buffer_store_dwordx4 {vr(vn+4*r,4)}, v5, {WS}, {sHNst} offen offset:{64*r} sc1")
        P(f" v_xad_u32 v{tmp+r}, v{vn+4*r}, v{vn+4*r+1}, v{vn+4*r+2}\n v_add_u32 v{tmp+r}, v{tmp+r}, v{vn+4*r+3}")
    P(f"""
 v_permlane16_swap_b32 v{tmp}, v{tmp+1}
 v_add_u32 v{tmp}, v{tmp}, v{tmp+1}
 v_add_u32_dpp v{tmp}, v{tmp}, v{tmp} row_ror:8 row_mask:0xf bank_mask:0xf
 v_add_u32 v{tmp}, {sTAG}, v{tmp}
 buffer_store_dword v{tmp}, v{vC}, {WS}, {sHCst} offen sc1
""")
    return P.lines
def h2_consts():
    return L(f"""
 v_lshlrev_b32 v5, 9, v2
 v_lshl_add_u32 v5, v1, 4, v5
 v_lshrrev_b32 v{vC}, 2, v6
 v_add_u32 v{vC}, 4096, v{vC}
 s_lshr_b32 {sHNst}, {sP}, 2
 s_lshl_b32 {sHNst}, {sHNst}, 15
 s_and_b32 s3, {sP}, 3
 s_lshl_b32 s3, s3, 7
 s_add_u32 {sHNst}, {sHNst}, s3
 s_add_u32 {sHNst}, {sHNst}, {HN}
 s_lshl_b32 {sHCst}, {sP}, 2
 s_add_u32 {sHCst}, {sHCst}, {sW}
 s_lshl_b32 {sFLst}, {sHCst}, 6
 s_add_u32 {sFLst}, {sFLst}, {FL-4352}
 s_lshl_b32 {sHCst}, {sHCst}, 8
 s_add_u32 {sHCst}, {sHCst}, {HC-4096}
 s_mov_b32 {sHRES}, {HRES}""")

WARM = [0]
def warm_ops(n0, n1):
    o = []
    if n0 == 0:
        o += L(f""" v_bfe_u32 v16, v0, 3, 3
 v_min_u32 v16, 6, v16
 v_and_b32 v17, 7, v0
 v_lshlrev_b32 v17, 10, v17
 v_lshl_add_u32 v17, v16, 7, v17
 s_mul_i32 s4, {sW}, {448*1024}
 s_lshl_b32 s5, {sL3}, 13
 s_add_u32 s4, s4, s5
 s_add_u32 s5, s4, 32768""")
    for j in range(n0, n1):
        if j & 1 == 0:
            if j: o += [" v_add_u32 v16, 1, v16", " v_cmp_eq_u32 vcc, 7, v16", " v_cndmask_b32 v16, v16, 0, vcc"]
            o.append(" v_lshl_add_u32 v18, v16, 16, v17")
        o.append(f" buffer_load_dword v19, v18, {srd('WD')}, s{4 + (j & 1)} offen")
    return o
def wd_consts(a8):
    if a8: head = f"""
 s_bfe_u32 s3, s2, 0x20001
 s_lshl_b32 s3, s3, 3
 s_bfe_u32 {sT}, s2, 0x30003
 s_add_u32 {sSB}, s3, {sT}
 s_and_b32 {sE}, s2, 1
 s_lshl_b32 {sE}, {sE}, 2
 s_lshr_b32 s3, s2, 6
 s_add_u32 {sE}, {sE}, s3
 s_lshl_b32 {sE}, {sE}, 7
 s_lshl_b32 s3, s3, 1
 s_add_u32 s3, s3, {sT}"""
    else: head = f"""
 s_and_b32 s3, s2, 7
 s_lshl_b32 s3, s3, 2
 s_add_u32 {sSB}, s3, {sL3}
 s_lshl_b32 {sE}, {sJL}, 7
 s_lshl_b32 s3, {sL3}, 1""" + (f"""
 s_cmp_ge_u32 {sJL}, 7
 s_cselect_b32 s3, s3, 0""" if WARM[0] else "") + f"""
 s_add_u32 s3, s3, {sJL}"""
    o = L(head + f"""
 s_mul_i32 {sRING}, {sW}, {NR*1024}
 s_add_u32 {sRING}, {sRING}, {RING}
 s_mul_i32 s100, {sW}, {448*1024}
 s_add_u32 s100, s100, {sE}""")
    for i in range(7):
        if WARM[0] == 2:
            if i < 3: o += [f" s_add_u32 s101, s3, {i}"]
            else: o += L(f""" s_add_u32 s101, {sL3}, {i-3}
 s_and_b32 s101, s101, 3
 s_cmp_ge_u32 {sJL}, 7
 s_cselect_b32 s101, {i-3}, s101
 s_add_u32 s101, s101, 3
 s_add_u32 s101, s101, s3""")
            for rep in range(2): o += L(f""" s_cmp_ge_u32 s101, 7
 s_cselect_b32 {sT}, 7, 0
 s_sub_u32 s101, s101, {sT}""")
            o += [f" s_lshl_b32 {sT}, s101, 16", f" s_add_u32 s{sWD+i}, {sT}, s100"]
            continue
        o += L(f""" s_cmp_ge_u32 s3, 7
 s_cselect_b32 {sT}, 7, 0
 s_sub_u32 s3, s3, {sT}
 s_lshl_b32 {sT}, s3, 16
 s_add_u32 s{sWD+i}, {sT}, s100
 s_add_u32 s3, s3, 1""")
    return o
def wd_rconsts(t):
    return L(f"""
 v_bfe_u32 v{t}, v0, 5, 1
 v_bfe_u32 v{t+1}, v0, 4, 1
 v_bfe_u32 v{t+2}, v0, 2, 2
 v_lshl_add_u32 v{t}, v{t}, 2, v{t+2}
 v_lshlrev_b32 v{t}, 7, v{t}
 v_lshl_add_u32 v{t}, v1, 3, v{t}
 v_add_u32 v{t}, {sRING}, v{t}
 v_and_b32 v{t+2}, 2, v{t+2}
 v_or_b32 v{t+2}, v{t+2}, v{t+1}
 v_lshl_add_u32 v{vWr[0]}, v{t+2}, 5, v{t}
 v_xor_b32 v{t+2}, 2, v{t+2}
 v_lshl_add_u32 v{vWr[1]}, v{t+2}, 5, v{t}""")
def wd_dma(m, base=sRING, slot=None):
    i, r = m // 8, m & 7
    o = []
    if slot is None:
        slot = m % NR
        if m >= NR: o.append(f"DWAIT:wd{m-NR}")
    o.append(f" s_add_u32 m0, {base}, {slot*1024}")
    if r: o += [f" s_add_u32 s100, s{sWD+i}, {r*8192}", f" buffer_load_dwordx4 v{vWD}, {srd('WD')}, s100 offen lds"]
    else: o += [f" buffer_load_dwordx4 v{vWD}, {srd('WD')}, s{sWD+i} offen lds"]
    return o + [f"MARK:wd{m}"]
def wd_read(m, slot=None):
    d = (m >> 1)*8 + 2*(m & 1)
    if slot is None: slot = m % NR
    return [f"WAIT:wd{m}"] + [f" ds_read_b64_tr_b16 {ar(d+4*tau,2)}, v{vWr[tau]} offset:{slot*1024}" for tau in range(2)] + [f"DMARK:wd{m}"]
def wd_stream(d, rd, N):
    o = []
    while d < min(N, rd + NR - 1): o += wd_dma(d); d += 1
    for m in range(rd, N):
        o += wd_read(m)
        if d < N and d <= m + NR - 1: o += wd_dma(d); d += 1
    return o

def wd_raw(m):
    i, r = m // 8, m & 7
    if r: return [f" s_add_u32 s100, s{sWD+i}, {r*8192}", f" buffer_load_dwordx4 {ar(4*m,4)}, v{vWD}, {srd('WD')}, s100 offen"]
    return ["SKIP", f" buffer_load_dwordx4 {ar(4*m,4)}, v{vWD}, {srd('WD')}, s{sWD+i} offen"]
def bounce(u, va):
    d = u*8; off = (u % 3)*2048
    o = [f" ds_write_b128 v{va}, {ar(d,4)} offset:{off}", f" ds_write_b128 v{va}, {ar(d+4,4)} offset:{off+1024}"]
    for tau in range(2):
        for io in range(2): o.append(f" ds_read_b64_tr_b16 {ar(d+4*tau+2*io,2)}, v{vWr[tau]} offset:{off+io*1024}")
    return o
def g_sconsts(nbig):
    o = [f" s_mul_i32 s3, {sSB}, {56*GS}", f" s_add_u32 s3, s3, {HH}"]
    for i in range(7):
        o += L(f""" s_lshr_b32 {sT}, s{sWD+i}, 16
 s_mul_i32 {sT}, {sT}, {GS}
 s_add_u32 s{sHL+i}, {sT}, s3
 s_add_u32 s{sHL+7+i}, s{sHL+i}, {28*GS}""")
    o += L(f"""
 s_lshl_b32 {sO0}, {sSB}, 15
 s_add_u32 {sO0}, {sO0}, {sE}
 s_add_u32 {sO1}, {sO0}, {1<<20}
 s_add_u32 {sHR0}, {sO0}, {HRES}
 s_add_u32 {sHR1}, {sO1}, {HRES}
 s_lshl_b32 s3, {sG}, 2
 s_add_u32 s3, s3, {sW}
 s_mul_i32 {sHS0}, s3, 56
 s_add_u32 {sHS0}, {sHS0}, {sJ}
 s_mul_i32 {sHS0}, {sHS0}, {GS}
 s_add_u32 {sHS0}, {sHS0}, {HH}
 s_add_u32 {sHS1}, {sHS0}, {28*GS}
 s_lshl_b32 {sFLld}, s3, 12
 s_add_u32 {sFLld}, {sFLld}, {HC}
 s_lshl_b32 s3, s3, 15
 s_add_u32 s3, s3, {HN}""")
    for g in range(8):
        o += [f" s_add_u32 {sT}, {sJL}, {g}", f" s_and_b32 {sT}, {sT}, 7", f" s_lshl_b32 s{sHC+g}, {sT}, 7", f" s_add_u32 s{sHC+g}, s{sHC+g}, {sFLld}", f" s_lshl_b32 {sT}, {sT}, 12", f" s_add_u32 s{sHN+g}, {sT}, s3"]
    o += L(f"""
 s_lshl_b32 {sFLld}, {sSB}, 3
 s_add_u32 {sFLld}, {sFLld}, {sW}
 s_mul_i32 {sPH0}, {sFLld}, {7*GS}
 s_add_u32 {sPH0}, {sPH0}, {HH+4352}
 s_add_u32 {sPH1}, {sPH0}, {28*GS}
 s_lshl_b32 {sFLld}, {sSB}, 2
 s_add_u32 {sFLld}, {sFLld}, {sW}
 s_lshl_b32 {sFLld}, {sFLld}, 2
 s_lshr_b32 s3, {sE}, 8
 s_add_u32 {sFLld}, {sFLld}, s3
 s_lshl_b32 {sFLld}, {sFLld}, 6
 s_add_u32 {sFLld}, {sFLld}, {FL}
 s_and_b32 s3, {sW}, 1
 s_mul_i32 s3, s3, {nbig*1024}
 s_lshr_b32 {sBIG}, {sW}, 1
 s_lshl_b32 {sBIG}, {sBIG}, 16
 s_add_u32 {sBIG}, {sBIG}, s3""") + srdc(("OUT",))
    return o
def hc_consts():
    return L(f"""
 v_bfe_u32 v{vHC}, v0, 3, 2
 v_lshlrev_b32 v{vHC}, 10, v{vHC}
 v_bfe_u32 v{vHC1}, v0, 5, 1
 v_lshl_add_u32 v{vHC}, v{vHC1}, 4, v{vHC}
 v_bfe_u32 v{vHC1}, v0, 2, 1
 v_lshl_add_u32 v{vHC}, v{vHC1}, 6, v{vHC}
 v_lshl_add_u32 v{vHC}, v1, 2, v{vHC}
 v_add_u32 v{vHC1}, {32*4096}, v{vHC}""")
def g_vconsts():
    t = 232
    o = L(f"""
 v_bfe_u32 v{t}, v0, 5, 1
 v_bfe_u32 v{t+1}, v0, 4, 1
 v_bfe_u32 v{t+2}, v0, 2, 2
 v_lshl_add_u32 v{t}, v{t}, 3, v{t+2}
 v_lshlrev_b32 v{t+4}, 7, v{t}
 v_lshl_add_u32 v{t+4}, v1, 3, v{t+4}
 v_lshl_add_u32 v{t+4}, v{t+1}, 16, v{t+4}
 v_lshrrev_b32 v{t+2}, 1, v{t+2}
 v_lshl_add_u32 v{t+2}, v{t+1}, 1, v{t+2}
 v_add_u32 v{vL2}, {1<<20}, v6""")
    for k in range(4): o += [f" v_xor_b32 v{t+3}, {k}, v{t+2}", f" v_lshl_add_u32 v{vRa+k}, v{t+3}, 5, v{t+4}"]
    o += L(f"""
 v_lshrrev_b32 v{t}, 3, v0
 v_and_b32 v{t+1}, 24, v{t}
 v_and_b32 v{t+2}, 3, v{t}
 v_lshl_add_u32 v{t+1}, v{t+2}, 1, v{t+1}
 v_bfe_u32 v{t+2}, v{t}, 2, 1
 v_add_u32 v{t+1}, v{t+1}, v{t+2}
 v_lshlrev_b32 v{t+1}, 10, v{t+1}
 v_and_b32 v{t+2}, 7, v0
 v_lshl_add_u32 v{vOUT}, v{t+2}, 4, v{t+1}
 v_mul_u32_u24 v{vPH}, {GS//16}, v6
 v_add_u32 v4, 16, v6
 v_lshrrev_b32 v4, 7, v4
 v_lshl_add_u32 v{vPH}, v4, 25, v{vPH}
 v_lshlrev_b32 v{vONE}, 21, v6
 v_add_u32 v{vONE}, 4352, v{vONE}
 v_mov_b32 v{vTG}, {sTAG}""")
    return o
HST = [f" buffer_store_dwordx4 {vr(vHP,4)}, v3, {WS}, {sHRES} offen sc1", f" buffer_store_dwordx4 {vr(vHP+4,4)}, v3, {WS}, {sHRES} offen offset:1024 sc1", "MARK:HST"]
FLAGST = f" buffer_store_dword v{vTG}, v{vONE}, {WS}, {sFLst} offen sc1"
FLAGLD = [" v_lshrrev_b32 v1, 5, v6\n v_lshlrev_b32 v1, 25, v1", " v_lshl_add_u32 v1, v6, 11, v1", f" v_mov_b32 v3, 0\n buffer_atomic_or v3, v1, {WS}, {sFLld} offen sc0 sc1"]
HRESLD = [f" buffer_load_dwordx4 {vr(vE,4)}, v{vOUT}, {WS}, {sHR0} offen sc1", f" buffer_load_dwordx4 {vr(vE+4,4)}, v{vOUT}, {WS}, {sHR1} offen sc1", "MARK:hres"]
def poll(dst, voff, soff): return f" v_mov_b32 v{dst}, 0\n buffer_atomic_or v{dst}, v{voff}, {WS}, {soff} offen sc0 sc1"
def pollcmp(dst, mask): return [f" v_cmp_ne_u32 vcc, {sTAG}, v{dst}", f" s_and_b64 vcc, vcc, {mask}"]
def hn_regs(G_): return vHN + 16*(G_ % 4)
def hn_loads(G_):
    return [f" buffer_load_dwordx4 {vr(hn_regs(G_)+4*k,4)}, v{6 if G_ < 8 else vL2}, {WS}, s{sHN+(G_&7)} offen offset:{k*1024} sc1" for k in range(4)] + \
           [f" buffer_load_dword v{CHN[G_%4]}, v{vHC if G_ < 8 else vHC1}, {WS}, s{sHC+(G_&7)} offen sc1"]
def hh_loads(u, i):
    return [f" buffer_load_dwordx4 {vr(HREG[(u,i)]+4*t,4)}, v6, {WS}, s{sHL+7*u+i} offen offset:{t*1024} sc1" for t in range(4)] + \
           [f" buffer_load_dword v{CHH[(u,i)]}, v{vC}, {WS}, s{sHL+7*u+i} offen sc1"]
def hashchain(r, chk):
    o = []
    for f in range(4):
        b = r + 4*f
        o.append(f" v_xad_u32 v4, v{b}, v{b+1}, {sTAG if f == 0 else 'v4'}")
        o.append(f" v_add3_u32 v4, v4, v{b+2}, v{b+3}")
    return o + [f" v_cmp_ne_u32 vcc, v4, v{chk}"]
def retry_check(P, o, loads, later, name, sleep):
    blk = [f"L_{name}_r:", f" s_sub_u32 {sSPIN}, {sSPIN}, 1", f" s_cbranch_scc1 L_{name}_x", f" s_sleep {sleep}"] + loads + [" s_waitcnt vmcnt(0)"] + o + [f" s_cbranch_vccnz L_{name}_r"]
    blk += later + ([" s_waitcnt vmcnt(0)"] if later else []) + [f" s_branch L_{name}_b", f"L_{name}_x:", f" s_mov_b32 {sSPIN}, 0", f" s_branch L_{name}_b"]
    P.tail += blk
    return o + [f" s_cbranch_vccnz L_{name}_r\nL_{name}_b:"]
def retry_fast(P, o, loads, later, name, sleep):
    blk = [f"L_{name}_s:", f" s_sleep {sleep}", f"L_{name}_r:", f" s_sub_u32 {sSPIN}, {sSPIN}, 1", f" s_cbranch_scc1 L_{name}_x"] + loads + later + [f" s_waitcnt vmcnt({len(later)})"] + o + [f" s_cbranch_vccnz L_{name}_s"]
    blk += [f" s_branch L_{name}_b", f"L_{name}_x:", f" s_mov_b32 {sSPIN}, 0", f" s_branch L_{name}_b"]
    P.tail += blk
    return o + [f" s_cbranch_vccnz L_{name}_r\nL_{name}_b:"]
def hint_spin(name, s, back):
    return [f"L_{name}:", poll(vPD, vPH, s), " s_waitcnt vmcnt(0)"] + pollcmp(vPD, 0x7f) + [f" s_cbranch_vccz {back}", " s_sleep 8",
            f" s_sub_u32 {sSPIN}, {sSPIN}, 1", f" s_cbranch_scc0 L_{name}", f" s_mov_b32 {sSPIN}, 0"]
def epi_tile(acc, ups, t, out, pk):
    o = []
    if pk:
        for i in range(4): o.append(f" v_pk_mul_f32 {vr(vE+2*i,2)}, {vr(acc+2*i,2)}, s[4:5]")
    else:
        for i in range(8): o.append(f" v_mul_f32 v{vE+i}, 0xbfb8aa3b, v{acc+i}")
    for i in range(8): o.append(f" v_exp_f32 v{vE+i}, v{vE+i}")
    if pk:
        for i in range(4): o.append(f" v_pk_add_f32 {vr(vE+2*i,2)}, {vr(vE+2*i,2)}, 1.0 op_sel_hi:[1,0]")
    else:
        for i in range(8): o.append(f" v_add_f32 v{vE+i}, 1.0, v{vE+i}")
    for i in range(8): o.append(f" v_rcp_f32 v{vE+i}, v{vE+i}")
    if pk:
        for i in range(4): o.append(f" v_pk_mul_f32 {vr(vE+2*i,2)}, {vr(vE+2*i,2)}, {vr(acc+8+2*i,2)}")
    else:
        for i in range(8): o.append(f" v_mul_f32 v{vE+i}, v{vE+i}, v{acc+8+i}")
    for i in range(4): o.append(f" v_cvt_pk_bf16_f32 v{out+i}, v{vE+2*i}, v{vE+2*i+1}")
    sb = sHS1 if ups else sHS0
    o.append(f" buffer_store_dwordx4 {vr(out,4)}, v6, {WS}, {sb} offen offset:{t*1024} sc1")
    o.append(f" v_xad_u32 v{vHASH}, v{out}, v{out+1}, {sTAG if t == 0 else 'v%d' % vHASH}")
    o.append(f" v_add3_u32 v{vHASH}, v{vHASH}, v{out+2}, v{out+3}")
    if t == 3:
        o.append(f" buffer_store_dword v{vHASH}, v{vC}, {WS}, {sb} offen sc1")
        o.append(f" buffer_store_dword v{vTG}, v{vONE}, {WS}, {sb} offen sc1")
    return o

def gemm1(P, cfg, wds):
    seq = [(u, k, t) for u in range(2) for k in range(32) for t in range(4)]
    D = 6; LA = 3
    MB = cfg["wd_big"]
    def reads(n):
        u, k, t = seq[n]; d = aC + 4*(n % 8)
        return [f" ds_read_b64_tr_b16 {ar(d+2*io,2)}, v{vRa+t} offset:{k*2048+io*512}" for io in range(2)] + [f"DMARK:w{n}"]
    def hn_issue(g): return hn_loads(g) + [f"MARK:hn{g}"]
    def hn_check(g):
        later = []
        for gg in range(g+1, min(16, g+LA)): later += hn_loads(gg)
        return [f"WAIT:hn{g}"] + (retry_fast if g < 12 else retry_check)(P, hashchain(hn_regs(g), CHN[g%4]), hn_loads(g), later, f"hn{g}", cfg["bo"])
    for n in range(D): P(reads(n))
    P(hn_check(0))
    P.st("hn0")
    wq_ = list(wds); fill = []; urgent = []; wacc = 0.0; lastv = -9
    h0 = poll(vPD, vPH, sPH0)
    for n, (u, k, t) in enumerate(seq):
        budget = cfg["slots"][u]
        g = 8*u + k//4
        if t == 0:
            if k % 4 == 0:
                while urgent: P(urgent.pop(0))
                if g + LA < 16: urgent += hn_issue(g + LA)
            if k % 4 == 3 and g + 1 < 16: urgent += hn_check(g + 1)
            if (u, k) == (1, 0):
                P.st("p0")
                P(urgent); urgent = []
                P(" s_mov_b32 s4, 0xbfb8aa3b\n s_mov_b32 s5, 0xbfb8aa3b")
                held = []; ex = []
                for tt in range(4):
                    pk = tt < cfg["e0_exp"]
                    for x in epi_tile(acc0+16*tt, 0, tt, acc0+16*tt, pk):
                        (held if x.lstrip().startswith("buffer_store") else (ex if pk else fill)).append(x)
                P(ex)
                fill += held + (["WAIT:HST", FLAGST] if cfg['h_early'] else HST)
                if cfg["e0_exp"] == 4: P(fill); fill = []
                P.st("e0")
            if u == 1 and k == cfg["h0_k"] and cfg["hhh"]: urgent += [h0, "MARK:ph0"]
            if u == 1 and k in cfg["hh_at"]:
                i = cfg["hh_at"][k]
                assert not fill
                if i == 0:
                    if not cfg['h_early']: urgent += ["WAIT:HST", FLAGST]
                    if cfg["hhh"]: urgent += ["WAIT:ph0"] + retry_check(P, pollcmp(vPD, 0x7f), [h0], [], "ph0", cfg["hbo"])
                urgent += hh_loads(0, i) + [f"MARK:hh0_{i}"]
        if n % 2 == 0: P(f"DWAIT:w{n+1}")
        else: budget -= 1
        a = (acc1 if u else acc0) + 16*t
        P(f" v_mfma_f32_32x32x16_bf16 {vr(a,16)}, {ar(aC+4*(n%8),4)}, {vr(hn_regs(g)+4*(k&3),4)}, {'0' if k == 0 else vr(a,16)}")
        if n + D < len(seq):
            P(reads(n+D)); budget -= 2
        wacc += cfg["wd_rate"][u]
        had = bool(fill)
        for q in (urgent, wq_, fill):
            while q and (budget >= P.cost(q[0]) or P.cost(q[0]) == 0):
                if q[0].lstrip().startswith("buffer_"):
                    if n - lastv < cfg["vgap"]: break
                    lastv = n
                if q is wq_:
                    if wacc < 1 and P.cost(q[0]) > 0: break
                    wacc -= P.cost(q[0])
                x = q.pop(0); budget -= P.cost(x); P(x)
        if had and not fill: print("epilogue0 done at k", k)
    print('left: wd', len(wq_), 'fill', len(fill))
    P(urgent); P(wq_); P(fill)
    P.st("p1")
    P(" s_mov_b32 s4, 0xbfb8aa3b\n s_mov_b32 s5, 0xbfb8aa3b")
    big = []
    if MB < 56:
        if not cfg["bar_late"]: P(" s_barrier")
        for m in range(MB, 56): big.append("\n".join(wd_dma(m, sBIG, m - MB)))
    e1 = []; held = []
    for tt in range(4):
        for x in epi_tile(acc1+16*tt, 1, tt, acc1+16*tt, True):
            (held if (cfg["hold"] and x.lstrip().startswith("buffer_store")) else e1).append(x)
    pre = []
    for i in range(len(cfg["hh_at"]), 7): pre += hh_loads(0, i) + [f"MARK:hh0_{i}"]
    pre = FLAGLD + ["MARK:flag"] + pre + take(big, cfg["big_pre"])
    if cfg["pre_late"]: P(e1)
    else: interleave(P, e1, pre, cfg["big_every"])
    P(held)
    P(pre)
    if cfg["bar_late"] and MB < 56:
        assert cfg["big_pre"] == 0
        P(" s_barrier")
    P.big = big
    P.st("epi")
    P.st("ld0")

def red_consts():
    return L(f"""
 s_mul_i32 s3, {sW}, {REDW}
 v_add_u32 v12, s3, v6
 v_and_b32 v15, 7, v0
 v_lshrrev_b32 v13, 3, v0
 v_mul_u32_u24 v15, {BS}, v15
 v_lshl_add_u32 v13, v13, 4, v15
 v_add_u32 v14, {2*REDW}, v13""")
def red_write(ups): return [f" ds_write_b128 v12, {vr(acc2+4*blk,4)} offset:{blk*BS}" for blk in range(8*ups, 8*ups+8)]
def red_read(ups, b): return [f" ds_read_b128 {vr(b+8*w+4*h,4)}, {'v13' if w < 2 else 'v14'} offset:{ups*8*BS + h*512 + (w&1)*REDW}" for w in range(4) for h in range(2)]
def red_fin(ups, b, hx, pk, fl):
    o = []
    for (x, y) in ((0, b+8), (16, b+24), (0, hx), (0, b+16)):
        if pk:
            for i in range(4): o.append(f" v_pk_add_f32 {vr(b+x+2*i,2)}, {vr(b+x+2*i,2)}, {vr(y+2*i,2)}")
        else:
            for i in range(8): o.append(f" v_add_f32 v{b+x+i}, v{b+x+i}, v{y+i}")
    for i in range(4): o.append(f" v_cvt_pk_bf16_f32 v{b+16+i}, v{b+2*i}, v{b+2*i+1}")
    o.append(f" buffer_store_dwordx4 {vr(b+16,4)}, v{vOUT}, {srd('OUT')}, {sO0 if ups == 0 else sO1} offen {fl}")
    return o
def gemm2(P, cfg):
    order = [(0, i) for i in range(7)] + [(1, i) for i in range(7)]
    MB = cfg["wd_big"]
    issued = order[:7]
    sched = cfg["b1_at"]
    def chk(pos):
        u, i = order[pos]
        later = []
        for x in order[pos+1:]:
            if x in issued and x[0] == u: later += hh_loads(*x)
        return [f"WAIT:hh{u}_{i}"] + retry_check(P, hashchain(HREG[(u,i)], CHH[(u,i)]), hh_loads(u, i), later, f"hh{u}_{i}", cfg["bo"])
    bigrd = []
    if MB < 56:
        P([f" s_sub_u32 s3, {sBIG}, {sRING}", f" v_add_u32 v{vWr[0]}, s3, v{vWr[0]}", f" v_add_u32 v{vWr[1]}, s3, v{vWr[1]}"])
        for m in range(MB, 56): bigrd += wd_read(m, m - MB)
    P(chk(0))
    hres = [f" buffer_load_dwordx4 {vr(vE,4)}, v{vOUT}, {WS}, {sHR0} offen sc1", f" buffer_load_dwordx4 {vr(vE+4,4)}, v{vOUT}, {WS}, {sHR1} offen sc1", "MARK:hres"]
    flag = [f" buffer_load_dword v3, v1, {WS}, {sFLld} offen sc1"]
    T0 = 112; HX = 16
    for pos, (u, i) in enumerate(order):
        fill = []
        h1 = poll(vPD, vPH, sPH1)
        p1st = min(sched)
        if pos == p1st - cfg["h1_lead"] and cfg["hh1"]: fill += [h1, "MARK:ph1"]
        if pos == p1st:
            if cfg["hh1"]: fill += ["WAIT:ph1"] + retry_check(P, pollcmp(vPD, 0x7f), [h1], [], "ph1", cfg["hbo"])
            else:
                P.tail += hint_spin("ip1", sPH1, "L_ip1b") + [" s_branch L_ip1b"]
                fill += [f" s_cmp_ge_u32 {sJL}, 7\n s_cbranch_scc1 L_ip1\nL_ip1b:"]
        for gi in sched.get(pos, []):
            x = (1, gi)
            prev = [y for y in order[:order.index(x)] if HREG[y] == HREG[x]]
            assert all(order.index(y) < pos for y in prev), x
            fill += hh_loads(*x) + [f"MARK:hh{x[0]}_{x[1]}"]; issued.append(x)
        if pos < 3:
            for x in take(P.big, cfg["big_per"]): fill += x.split("\n")
        if pos == cfg["hres_at"]: fill += ["WAIT:flag"] + retry_check(P, pollcmp(3, 3), FLAGLD[2:], [], "flag", cfg["bo"]) + HRESLD
        if pos == MB//8 - 1:
            assert not P.big
            fill += bigrd + [" s_waitcnt lgkmcnt(0)"]
        if pos == 7: fill += red_consts() + [" s_barrier"]
        if pos == 8: fill += red_write(0)
        if pos == 9: fill += [" s_waitcnt lgkmcnt(0)", " s_barrier"] + red_read(0, T0)
        if pos == 11:
            fill += ["WAIT:hres"]
            for k in range(8): fill += unpack(HX+2*k, vE+k)
            fill += [" s_waitcnt lgkmcnt(0)"]
        if pos == 12: fill += red_fin(0, T0, HX, False, cfg["outf"])[:24]
        if pos == 13: fill += red_fin(0, T0, HX, False, cfg["outf"])[24:]
        assert MB >= 32
        late = chk(pos+1) if pos+1 < len(order) else []
        n = 0
        for t in range(4):
            for tau in range(2):
                a = acc2+32*u+16*tau
                P(f" v_mfma_f32_32x32x16_bf16 {vr(a,16)}, {ar(((i*4+t)*2+tau)*4,4)}, {vr(HREG[(u,i)]+4*t,4)}, {'0' if (i == 0 and t == 0) else vr(a,16)}")
                n += 1
                if n <= 5:
                    b = 5; nv = 0
                    while fill and b > 0:
                        if fill[0].lstrip().startswith("buffer_"):
                            if nv >= cfg["v2"]: break
                            nv += 1
                        b -= P.cost(fill[0]); P(fill.pop(0))
                else:
                    P(take(fill, 99)); P(take(late, 5))
        P(late)
        if pos == 6: P.st("b0")
    P.st("g2")
    P(red_write(1))
    P(" s_waitcnt lgkmcnt(0)\n s_barrier")
    P(red_read(1, 144))
    P(" s_waitcnt lgkmcnt(0)")
    P(red_fin(1, 144, HX+8, True, cfg["outf"]))

def build(cfg, stamps=False):
    P = G(stamps); P.cfg = cfg; WARM[0] = cfg['warm']
    if cfg.get("dbg"): P.only = cfg["dbg"].split(",")
    entry(P, cfg)
    setupB = a_consts() + roles()
    P(take(setupB, cfg["nsetB"]))
    if cfg["f_at"] == 0: P(filter_dma(cfg))
    else: P(f""" v_and_b32 v4, 79, v0
 v_lshrrev_b32 v5, 2, v4
 v_and_or_b32 v4, v5, 16, v4
 v_and_b32 v4, 31, v4
 v_lshlrev_b32 v4, 7, v4
 buffer_load_dword v{vDUM}, v4, {srd('SSMK')}, {sF0} offen {cfg['fnt']}""")
    if cfg["x_at"] == 0: P(x_loads())
    if cfg["wt"] == 0: P(w_touch(cfg["wtnt"], cfg["wth"]))
    P(tag_setup())
    P.st("pre")
    P.vmwait("L1")
    P.st("L1")
    p0_kv(P)
    P.st("kvst")
    if cfg["f_at"] == 1:
        if cfg["kbar"]: P(" s_barrier")
        P(filter_dma(dict(fnt=cfg["fnt2"])))
    if cfg["wdm"] == 1: P(wd_mall())
    P(setupB)
    P(conv_setup() + h1_addr() + w_table() + y_consts() + wd_consts(cfg['a8']))
    P.vmwait("X")
    P(stat_consts(204, 205) + ln1())
    P.vmwait("A")
    P(" s_barrier")
    P.st("bar")
    ap = a_prep(cfg['na'])
    P(take(ap, cfg["ap_pre"]))
    P.st("aprep")
    ng = cfg["g1"]
    early = []
    for i in range(ng): early += w_pair(i, cfg["wnt"])[:2]
    box_recv(P, vIN, "h1", cfg["bo"], ([" s_barrier"] + early if ng else []) + ap)
    kv_to_lds(P)
    P.st("h1")
    wq = []
    for i in range(cfg.get("nw", 16)):
        p = w_pair(i, cfg["wnt"])
        if i < ng: wq += [p[0] + "\n" + p[2], p[3]]
        else: wq += p
    nraw = cfg["nraw"]; raw = []
    for m in range(nraw): raw += wd_raw(m)
    nwc = 2*cfg["wsched"][0][1]
    wq = wq[:nwc] + raw + wq[nwc:]
    bnc = [f" v_add_u32 v4, {sRING}, v6", "WAIT:RAW"]
    for u in range(nraw//2): bnc += bounce(u, 4)
    bnc += [" s_waitcnt lgkmcnt(0)"]
    cfg["_conv_extra"] = h2_consts() + stat_consts(vSW, vSR)
    conv_mfma(P, wq, cfg["wsched"])
    print("W ops left after conv:", len(wq)//2)
    assert not any("a[" in x for x in wq)
    P.mark("RAW")
    P.st("mfma")
    conv_epilogue(P)
    P.st("yst")
    P(" s_barrier")
    gs = g_sconsts(56 - cfg["wd_big"])
    hn3 = []
    for g in range(3): hn3 += hn_loads(g) + [f"MARK:hn{g}"]
    skip_idle = lambda nm, l: [f" s_cmp_ge_u32 {sJL}, 7", f" s_cbranch_scc1 L_{nm}"] + l + [f"L_{nm}:"]
    P(f" s_cmp_ge_u32 {sP}, 128\n s_cbranch_scc1 L_pathB")
    sv = (P.nvm, P.nds, P.vmdone, P.dsdone, dict(P.marks), dict(P.dmarks))
    main_lines = P.lines; P.lines = []
    P("L_pathB:")
    wb = list(wq)
    P(take(wb, 2*cfg["wb3"]))
    P(wd_rconsts(48) + bnc)
    if cfg.get("dly2"): P(f" s_sleep {cfg['dly2']}")
    P.st("ln1")
    box_recv(P, vY, "h2b", cfg["bo"], [" s_barrier"] + wb + ["MARK:WALL"] + gs + hc_consts(), va=12)
    P.st("h2")
    l2 = ln2(); ib = l2.index(" s_barrier")
    l2.insert(ib, "WAIT:WALL")
    at = cfg["hnb_at"]
    nb = 6*cfg["hnb_n"]
    P(l2[:at]); P(skip_idle("sib", hn3[:nb])); P(l2[at:])
    P(HST)
    P.st("hnst")
    if nb < 18: P(skip_idle("sib2", hn3[nb:]))
    P(g_vconsts())
    P.st("g1go")
    P(" s_branch L_joinAB")
    pathB = P.lines; P.lines = main_lines
    P.nvm, P.nds, P.vmdone, P.dsdone, P.marks, P.dmarks = sv
    preA = wd_rconsts(48)
    P.st("ln1")
    if cfg["ga_at"] == 100:
        if cfg["a_pre"]: P(preA); preA = []
        if cfg["wa4"]: preA = [" s_barrier"] + take(wq, 2*cfg["wa4"]) + preA
        if cfg["a_bnc"]: preA += bnc; bnc = []
        box_recv(P, vY, "h2a", cfg["bo"], preA, va=12)
    else:
        P.marks["h2a"] = P.marks["preY"]; P.vmdone = min(P.vmdone, P.marks["preY"] - 1)
        box_recv(P, vY, "h2a", cfg["bo"], preA, va=12, issued=True)
    P.st("h2")
    P(ln2()); P(HST)
    P.st("hnst")
    if cfg["a_mix"]:
        P(take(wq, 2*cfg["a_mix"]))
        gv = g_vconsts()
        interleave(P, gv + bnc, wq, 2); P(wq); P.mark("WALL")
        P(gs + hc_consts())
    else:
        P(wq); P.mark("WALL")
        P(g_vconsts() + gs + hc_consts() + bnc)
    P(f"""
 s_or_b32 s3, s2, {sW}
 s_cmp_lg_u32 s3, 0
 s_cbranch_scc1 L_notag
 v_lshlrev_b32 v4, 21, v6
 buffer_store_dword v{vTG}, v4, {WS}, 0 offen sc1
L_notag:
""")
    P.nvm -= 1
    if cfg.get("dly3"): P(f" s_sleep {cfg['dly3']}")
    P("WAIT:WALL\n s_barrier")
    P.st("g1go")
    P(skip_idle("sia", hn3))
    P("L_joinAB:")
    P.mark("HST"); P.vmdone = 0; P.dsdone = 0
    d = rd = nraw
    for m in range(nraw): P.dmarks[f"wd{m}"] = 0
    P(f" s_cmp_ge_u32 {sJL}, 7\n s_cbranch_scc1 L_idle")
    save = (P.nvm, P.nds, P.vmdone, P.dsdone, dict(P.marks), dict(P.dmarks))
    MB = cfg["wd_big"]
    if cfg.get("nowd"): cfg["wd_big"] = MB = 56; d = rd = 56
    gemm1(P, cfg, wd_stream(d, rd, MB))
    P(" s_waitcnt lgkmcnt(0)\nL_join:")
    gemm2(P, cfg)
    if stamps:
        P(" s_waitcnt vmcnt(0)"); P.st("end")
        P(f" v_writelane_b32 v11, {sSPIN}, 63\n s_lshl_b32 s3, s2, 10\n s_add_u32 s3, s3, {STAMPS}\n v_lshlrev_b32 v1, 2, v0\n buffer_store_dword v11, v1, {WS}, s3 offen")
    P("L_end:\n s_endpgm")
    P.nvm, P.nds, P.vmdone, P.dsdone, P.marks, P.dmarks = save
    P("L_idle:")
    P([" s_waitcnt vmcnt(0)", FLAGST])
    P(wd_stream(d, rd, MB))
    for m in range(MB, min(56, MB + cfg["big_pre"])): P(wd_dma(m, sBIG, m - MB))
    for nm in ("hn0","p0","e0","p1","epi"): P.st(nm)
    P(hint_spin("ip0", sPH0, "L_ip0b") + ["L_ip0b:"])
    for i in range(7): P(hh_loads(0, i))
    P(FLAGLD)
    P(" s_waitcnt vmcnt(0) lgkmcnt(0)")
    P.st("ld0")
    P(" s_branch L_join")
    P.lines += pathB
    P(P.tail)
    P("L_codeend:")
    if os.environ.get("STAMP") == "2": P.lines = [l.replace("s_memrealtime", "s_memtime") for l in P.lines]
    body = P.fix()
    head = open("sequential_preLN__ssm_conv_h3__glu_gated_glu__prompt.s.ref").read().split("; Override launch")[0]
    out = head + f"; @launch grid=(256,1,1) block=(256,1,1) lds={LDS_BYTES}\n"
    out += f'.amdgcn_target "amdgcn-amd-amdhsa--gfx950"\n.text\n.globl {NAME}\n.p2align 8\n.type {NAME},@function\n{NAME}:\n' + body
    out += f""" s_endpgm
.section .rodata,"a"
.p2align 6
.amdhsa_kernel {NAME}
  .amdhsa_next_free_vgpr 512
  .amdhsa_next_free_sgpr 102
  .amdhsa_accum_offset 256
  .amdhsa_group_segment_fixed_size 0
  .amdhsa_kernarg_size 104
  .amdhsa_user_sgpr_count 2
  .amdhsa_user_sgpr_kernarg_segment_ptr 1
  .amdhsa_system_sgpr_workgroup_id_x 1
.end_amdhsa_kernel
"""
    if cfg.get("probe"):
        idx = P.stn.index(cfg["probe"])
        Q = G()
        Q(f"""
 s_cmp_ge_u32 s2, 1
 s_cbranch_scc1 L_pend
 s_load_dwordx2 s[48:49], s[0:1], 96
 s_mov_b32 s50, {WS_BYTES}
 s_mov_b32 s51, 0x20000
 v_lshlrev_b32 v1, 8, v0
 v_mov_b32 v2, 0
 s_waitcnt lgkmcnt(0)
 s_mov_b32 s3, {STAMPS}
 buffer_load_dword v3, v2, s[48:51], s3 offen
 v_mov_b32 v4, 0x7fffffff
 v_mov_b32 v5, 0x80000000
 s_mov_b32 s4, {16 if cfg['probe'] == 'end' else 14}
L_pl:
 buffer_load_dword v6, v1, s[48:51], s3 offen
 buffer_load_dword v7, v1, s[48:51], s3 offen offset:{4*idx}
 s_waitcnt vmcnt(0)
 v_sub_u32 v6, v6, v3
 v_sub_u32 v7, v7, v3
 v_min_i32 v4, v4, v6
 v_max_i32 v5, v5, v7
 s_add_u32 s3, s3, 16384
 s_sub_u32 s4, s4, 1
 s_cmp_lg_u32 s4, 0
 s_cbranch_scc1 L_pl
 s_mov_b32 s5, 0x7fffffff
 s_mov_b32 s6, 0x80000000
 s_mov_b32 s4, 0
L_pr:
 v_readlane_b32 s7, v4, s4
 v_readlane_b32 s8, v5, s4
 s_nop 1
 s_min_i32 s5, s5, s7
 s_max_i32 s6, s6, s8
 s_add_u32 s4, s4, 1
 s_cmp_lg_u32 s4, 64
 s_cbranch_scc1 L_pr
 s_sub_u32 s6, s6, s5
 s_min_u32 s6, s6, 10000
 s_mul_i32 s6, s6, {cfg.get('pmul', 10)}
 s_memrealtime s[10:11]
 s_waitcnt lgkmcnt(0)
L_ps:
 s_memrealtime s[12:13]
 s_waitcnt lgkmcnt(0)
 s_sub_u32 s7, s12, s10
 s_cmp_lt_u32 s7, s6
 s_cbranch_scc1 L_ps
L_pend:
 s_endpgm
""")
        out = out.replace(f"; @launch grid=(256,1,1) block=(256,1,1) lds={LDS_BYTES}\n", f"; @launch kernel={NAME} grid=(256,1,1) block=(256,1,1) lds={LDS_BYTES}\n; @launch kernel=probe_kernel grid=(1,1,1) block=(64,1,1) lds=0\n")
        out = out.replace('.section .rodata,"a"', '.globl probe_kernel\n.p2align 8\n.type probe_kernel,@function\nprobe_kernel:\n' + Q.fix() + '.section .rodata,"a"')
        kd = out[out.index(".p2align 6\n.amdhsa_kernel"):]
        out += kd.replace(NAME, "probe_kernel").replace("vgpr 512", "vgpr 16").replace("offset 256", "offset 16")
    return out, P
CFG = dict(a_mix=8, bar_late=1, wa4=0, a_bnc=0, nraw=8, hnb_n=2, a_pre=1, na=5, ea_gap=4, ga_at=100, wb3=14, hnb_at=80, h_early=1, pre_late=1, big_per=6, v2=2, g1=4, w4=8, mw_at=4, nwarm=6, warm=0, lazy=1, vgap=1, wt=9, wtnt="", wth=0, a8=0, can1=0, can2=0, cmask=0x00010001, cbo=6, hnh=0, hn_nh=16, hn_hint_at=999, hbo=8, ap_pre=10, wsched=[(1,4,1),(30,8,5)],
           f_at=1, kbar=1, fnt2="", pf_after="SHK", nsetB=47, fnt="nt", x_at=0, wdm=0, wdc_at=2, bo=4, wnt="", w3=0, w3_every=4, wd3=0, wd_pre=0, wd_first=1, im=0,
           w5=0, w5_every=2, wd_rate=(0.8,0.9), wd_big=44, slots=(6,6), big_pre=0, big_every=8, outf="", dly3=0, dly2=0, hold=0,
           e0_exp=4, hhh=1, h0_k=12, hh_at={17:0, 20:1, 23:2, 26:3, 29:4}, hh1=0, h1_lead=2, b1_at={5:[0,1],6:[2,3],7:[4],8:[5],9:[6]}, hres_at=3)
if __name__ == "__main__":
    cfg = dict(CFG)
    for a in sys.argv[2:]:
        k, v = a.split("=", 1); cfg[k] = eval(v)
    out, P = build(cfg, bool(os.environ.get("STAMP")))
    open(sys.argv[1], "w").write(out)
    if os.environ.get("STAMP"): open(sys.argv[1] + ".names", "w").write(" ".join(P.stn))
    print("lines", len(P.lines), "nops", P.nops)
```

```python
import sys, os, re
sys.path.insert(0, "gen")
from asmlib import Prog

NAME = "sequential_preLN__ssm_conv_h3__glu_gated_glu__prompt_kernel"
TAGSLOT = 0
HC    = 0x080000
FL    = 0x0C0000
HI    = 0x1580000
OB    = 16640
KVBOX = 0x100000
YBOX  = 0x520000
HN    = 0x940000
HRES  = 0xB40000
HH    = 0xD40000
GS    = 4480
STAMPS = 0x1600000
WS_BYTES = 0x1700000
SRD = dict(X=8, K=12, V=16, SHK=20, SSMK=24, SSMD=28, WG=32, WU=36, WD=40, OUT=44, WS=48)
KOFF = dict(X=0, K=8, V=16, SHK=24, SSMK=32, SSMD=40, WG=56, WU=64, WD=72, OUT=80, WS=96)
SIZE = dict(X=2097152, K=2097152, V=2097152, SHK=4096, SSMK=2097152, SSMD=1024, WG=1835008, WU=1835008, WD=1835008, OUT=2097152, WS=WS_BYTES)
def srd(n): return f"s[{SRD[n]}:{SRD[n]+3}]"
WS = srd("WS")
sHNst, sWM, sBIG, sRING, sW, sFLst, sFLld, sG, sJ, sTAG, sLO, sHI, sMASK, sHRES, sT = [f"s{i}" for i in range(52, 67)]
sJL, sO0, sO1, sHS0, sHS1, sSB, sHCst, sE, sSPIN, sHR0, sHR1, sPH1, sL3 = [f"s{i}" for i in range(67, 80)]
sWD = 80
sHC = 87
sPH0, sP, sF0 = "s95", "s96", "s97"
sC = sP
sWT = 12
sHL = 8
sHN = 22
def vr(b, n): return f"v[{b}:{b+n-1}]" if n > 1 else f"v{b}"
def ar(b, n): return f"a[{b}:{b+n-1}]" if n > 1 else f"a{b}"
def L(text): return [l for l in text.split("\n") if l.strip()]
def take(l, n):
    o = l[:n]; del l[:n]; return o

WGB, WUB = 0, 65536
PART = 131072; FC = 96256; CS2 = 4352
KVR = 131072; KVCH = 4608
RING = 131072; NR = 7
STAT = 163840 - 512
BS = 1088; REDW = 16*BS
LDS_BYTES = 163840
SPIN = 20000

class G(Prog):
    def __init__(self, stamps=False):
        super().__init__(); self.nvm = 0; self.nds = 0; self.vmdone = 0; self.dsdone = 0
        self.marks = {}; self.dmarks = {}; self.stamps = stamps; self.tail = []; self.only = None; self.stn = ["start"]
    def __call__(self, text):
        if isinstance(text, list):
            for t in text: self(t)
            return
        for l in text.split("\n"):
            s = l.strip()
            if not s: continue
            if s.startswith("WAIT:"): self.vmwait(s[5:]); continue
            if s.startswith("MARK:"): self.mark(s[5:]); continue
            if s.startswith("DWAIT:"): self.dwait(s[6:]); continue
            if s.startswith("DMARK:"): self.dmarks[s[6:]] = self.nds; continue
            if s == "SKIP": continue
            if s.startswith(("buffer_", "global_")): self.nvm += 1
            if s.startswith("ds_"): self.nds += 1
            if s.startswith("s_waitcnt"):
                m = re.search(r"vmcnt\((\d+)\)", s)
                if m: self.vmdone = max(self.vmdone, self.nvm - int(m.group(1)))
                m = re.search(r"lgkmcnt\((\d+)\)", s)
                if m: self.dsdone = max(self.dsdone, self.nds - int(m.group(1)))
            self.lines.append(l.rstrip())
    def mark(self, name): self.marks[name] = self.nvm
    def vmwait(self, name):
        if self.vmdone < self.marks[name]: self(f" s_waitcnt vmcnt({min(self.nvm - self.marks[name], 63)})")
    def dwait(self, name):
        if self.dsdone < self.dmarks[name]: self(f" s_waitcnt lgkmcnt({min(self.nds - self.dmarks[name], 15)})")
    def cost(self, s):
        t = s.strip()
        if t.startswith(("MARK:", "DMARK:")): return 0
        if t.startswith("WAIT:"): return 0 if self.vmdone >= self.marks[t[5:]] else 1
        if t.startswith("DWAIT:"): return 0 if self.dsdone >= self.dmarks[t[6:]] else 1
        if t == "SKIP": return 3
        if t.startswith(("v_exp", "v_rcp")): return 2
        return 1
    def st(self, i):
        if self.stamps and (self.only is None or i in self.only):
            if i not in self.stn: self.stn.append(i)
            self.lines += [" s_memrealtime s[98:99]", " s_waitcnt lgkmcnt(0)", f" v_writelane_b32 v11, s98, {self.stn.index(i)}", f" v_writelane_b32 v11, {sSPIN}, {32+self.stn.index(i)}"]
def interleave(P, work, bulk, every):
    n = 0
    for wk in work:
        P(wk); n += 1
        if bulk and n % every == 0: P(bulk.pop(0))

vK, vW, vV, vKS, vT = 144, 164, 180, 188, 204
vD, vQ, vX = 220, 224, 240
vBB = [8, 10, 248, 249]
vSW, vDUM, vR, vWD = 250, 251, 252, 254
vWr = (8, 255)
vA, vAx, vB, vIN, aC = 16, 208, 144, 160, 224
vSEL = 216
vq, vu1 = 208, 224
vONE, vTG, vC, vHC, vHC1, vPH, vHASH, vL2, vOUT, vPD, vHP = 7, 10, 2, 252, 253, 220, 222, 223, 9, 5, 224
vHN, vRa = 16, 12
acc0, acc1, acc2, vE = 80, 144, 16, 240
CHN = [208, 209, 210, 211]
CHH = {(0,i): 212+i for i in range(7)}
CHH.update({(1,0):208,(1,1):209,(1,2):210,(1,3):211,(1,4):219,(1,5):221,(1,6):212})
HREG = {(0,0):224, (0,1):80, (0,2):96, (0,3):112, (0,4):128, (0,5):48, (0,6):64,
        (1,0):144, (1,1):160, (1,2):176, (1,3):192, (1,4):224, (1,5):80, (1,6):96}

def srdc(names): return [x for n in names for x in (f" s_mov_b32 s{SRD[n]+2}, {SIZE[n]}", f" s_mov_b32 s{SRD[n]+3}, 0x20000")]
def entry(P, cfg):
    P(" s_cmp_ge_u32 s2, 256\n s_cbranch_scc1 L_end")
    if P.stamps: P(" s_memrealtime s[98:99]")
    for n in ("K","V","SHK","WS","SSMK","X","SSMD","WD","WG","WU","OUT"):
        P(f" s_load_dwordx2 s[{SRD[n]}:{SRD[n]+1}], s[0:1], {KOFF[n]}")
        if n == cfg["pf_after"]:
            P(f"""
 s_getpc_b64 s[4:5]
L_pc:
 s_bfe_u32 s3, s2, 0x20003
 s_mul_i32 s3, s3, 12288
 v_lshlrev_b32 v4, 7, v0
 v_add_u32 v5, s3, v4
 v_cmp_gt_u32 vcc, 32, v0
 v_cndmask_b32 v4, v5, v4, vcc
 v_min_u32 v4, L_codeend-L_pc-4, v4
 v_cmp_gt_u32 vcc, 128, v0
 s_and_saveexec_b64 s[6:7], vcc
 s_cbranch_execz L_nopf
 global_load_dword v{vDUM}, v4, s[4:5]
L_nopf:
 s_mov_b64 exec, s[6:7]
""")
    P(f"""
 s_and_b32 s3, s2, 7
 s_lshl_b32 s3, s3, 5
 s_lshr_b32 {sP}, s2, 3
 s_or_b32 {sP}, {sP}, s3
 v_lshrrev_b32 v4, 6, v0
 v_and_b32 v1, 3, v0
 v_readfirstlane_b32 {sW}, v4
 v_lshrrev_b32 v2, 2, v0
 s_lshl_b32 s3, {sP}, 13
 v_lshlrev_b32 v3, 11, v1
 v_lshl_add_u32 v3, v2, 4, v3
 v_add_u32 v3, s3, v3
 v_subrev_u32 v4, 3072, v3
 v_subrev_u32 v5, 2048, v3
 v_subrev_u32 v8, 1024, v3
 v_lshlrev_b32 v9, 4, v0
""")
    P(srdc(("K","V","SHK")))
    pre2 = L(f"""
 v_and_b32 v6, 63, v0
 v_lshlrev_b32 v6, 4, v6
 s_lshl_b32 {sF0}, {sC}, 1
 s_lshr_b32 s7, {sW}, 1
 s_add_u32 {sF0}, {sF0}, s7
 s_lshl_b32 {sF0}, {sF0}, 12
 s_mul_i32 s7, {sW}, {2*CS2}
 s_add_u32 s7, s7, {FC}
 s_bitcmp1_b32 {sW}, 0
 s_cselect_b32 s3, 160, 0
 s_cselect_b32 {sBIG}, 32, 128
 s_cselect_b32 s5, 8, 0
 s_add_u32 s3, s3, s7
 s_add_u32 {sBIG}, {sBIG}, s7
 s_add_u32 {sBIG}, {sBIG}, {CS2}
 v_mov_b32 v12, 0
 v_and_b32 v14, 7, v0
 v_lshl_add_u32 v13, v14, 2, s3
 v_lshl_add_u32 v14, v14, 2, {sBIG}
 ds_write_b32 v13, v12
 ds_write_b32 v14, v12
 s_sub_u32 s3, s3, s5
 s_sub_u32 {sBIG}, {sBIG}, s5
 s_add_u32 m0, s3, 32
 s_mul_i32 s4, {sP}, {OB}
 s_add_u32 s4, s4, {KVBOX}
 s_add_u32 s5, s4, 4096
 s_add_u32 s6, s4, 8192
 s_add_u32 s7, s4, 12288
 s_mov_b32 {sLO}, 0x05040100
 s_mov_b32 {sHI}, 0x07060302
 s_mov_b32 {sMASK}, 0xffff0000
 s_mov_b32 {sSPIN}, {SPIN}
 v_lshlrev_b32 v7, 4, v2""") + srdc(("SSMK","WS","X","SSMD","WD")) + [f" v_mov_b32 v{vKS+i}, 0" for i in range(16)]
    P(pre2)
    if P.stamps: P(" v_mov_b32 v11, 0\n s_waitcnt lgkmcnt(0)\n v_writelane_b32 v11, s98, 0"); P.st("karg")
    P(f"""
 s_waitcnt lgkmcnt(0)
 buffer_load_dwordx4 {vr(vK,4)}, v4, {srd('K')}, 0 offen nt
 buffer_load_dwordx4 {vr(vK+4,4)}, v5, {srd('K')}, 0 offen nt
 buffer_load_dwordx4 {vr(vK+8,4)}, v8, {srd('K')}, 0 offen nt
 buffer_load_dwordx4 {vr(vK+12,4)}, v3, {srd('K')}, 0 offen nt
 buffer_load_dwordx4 {vr(vK+16,4)}, v3, {srd('K')}, 0 offen offset:1024 nt
 buffer_load_dwordx4 {vr(vV,4)}, v3, {srd('V')}, 0 offen nt
 buffer_load_dwordx4 {vr(vV+4,4)}, v3, {srd('V')}, 0 offen offset:1024 nt
 buffer_load_dwordx4 {vr(vW,4)}, v9, {srd('SHK')}, 0 offen
MARK:L1
 s_load_dword {sTAG}, s[{SRD['WS']}:{SRD['WS']+1}], {TAGSLOT}
""")
def filter_dma(cfg):
    nt = cfg["fnt"]
    o = [f" buffer_load_dwordx4 v6, {srd('SSMK')}, {sF0} offen offset:{1024*i} {nt} lds" for i in range(4)]
    o.append(f" s_add_u32 m0, {sBIG}, 28")
    o += [f" buffer_load_dwordx4 v6, {srd('SSMK')}, {sF0} offen offset:{1024*i} {nt} lds" for i in range(4)]
    return o + ["MARK:A"]
def x_loads():
    return [f" buffer_load_dwordx4 {vr(vX,4)}, v3, {srd('X')}, 0 offen nt",
            f" buffer_load_dwordx4 {vr(vX+4,4)}, v3, {srd('X')}, 0 offen offset:1024 nt",
            f" buffer_load_dwordx4 {vr(vD,4)}, v7, {srd('SSMD')}, 0 offen", "MARK:X"]
def tag_setup():
    return [" s_waitcnt lgkmcnt(0)", f" s_add_u32 {sTAG}, {sTAG}, 0x9E3779B1"] + [f" v_mov_b32 v{vQ+2*t+1}, {sTAG}" for t in range(8)]
def p0_kv(P):
    Krow = lambda i, d: vK + 4*i + d
    prs = [(3,2),(1,0),(4,3),(2,1)]
    for t in range(4):
        T = vT + 8*(t & 1)
        for c in range(2):
            for n,(x,y) in enumerate(prs):
                P(f" v_perm_b32 v{T+4*c+n}, v{Krow(y,t)}, v{Krow(x,t)}, {sHI if c else sLO}")
        ks = vKS + 4*t
        qp = f"quad_perm:[{t},{t},{t},{t}] row_mask:0xf bank_mask:0xf"
        for hi in (1, 0):
            for c in range(2):
                P(f" v_dot2c_f32_bf16_dpp v{ks+c}, v{vW+2*c+hi}, v{T+4*c+hi} {qp}")
                P(f" v_dot2c_f32_bf16_dpp v{ks+2+c}, v{vW+2*c+hi}, v{T+4*c+2+hi} {qp}")
        P(f""" v_lshlrev_b32 v{T}, 16, v{vV+t}
 v_and_b32 v{T+1}, {sMASK}, v{vV+t}
 v_lshlrev_b32 v{T+2}, 16, v{vV+4+t}
 v_and_b32 v{T+3}, {sMASK}, v{vV+4+t}
 v_pk_mul_f32 {vr(ks,2)}, {vr(ks,2)}, {vr(T,2)}
 v_pk_mul_f32 {vr(ks+2,2)}, {vr(ks+2,2)}, {vr(T+2,2)}
 v_cvt_pk_bf16_f32 v{vQ+4*t}, v{ks}, v{ks+1}
 v_cvt_pk_bf16_f32 v{vQ+4*t+2}, v{ks+2}, v{ks+3}
 buffer_store_dwordx4 {vr(vQ+4*t,4)}, v9, {WS}, s{4+t} offen sc1""")
def wd_mall():
    return L(f""" s_lshl_b32 s100, s2, 2
 s_add_u32 s100, s100, {sW}
 s_mul_i32 s100, s100, 1792
 v_lshlrev_b32 v4, 3, v6
 v_min_u32 v4, {13*128}, v4
 buffer_load_dword v{vDUM}, v4, {srd('WD')}, s100 offen""")
def idle_mall(name, nx):
    per = 112*(8//nx)
    o = L(f""" s_cmp_lt_u32 {sJL}, 7
 s_cbranch_scc1 L_{name}
 s_and_b32 s100, s2, {nx-1}
 s_lshl_b32 s100, s100, 2
 s_add_u32 s100, s100, {sL3}
 s_lshl_b32 s100, s100, 2
 s_add_u32 s100, s100, {sW}
 s_mul_i32 s100, s100, {per*128}
 v_lshlrev_b32 v4, 3, v6
 v_min_u32 v4, {55*128}, v4""")
    for i in range(per//56): o += [f" buffer_load_dword v{vDUM}, v4, {srd('WD')}, s100 offen", f" s_add_u32 s100, s100, {56*128}"]
    return o + [f"L_{name}:"], per//56
def w_touch(nt, half):
    o = L(f""" s_lshl_b32 s100, {sL3}, 7
 s_and_b32 s3, s2, 1
 s_lshl_b32 s3, s3, 6
 s_add_u32 s100, s100, s3
 s_lshl_b32 s3, {sW}, {4 if half else 5}
 s_add_u32 s100, s100, s3
 v_and_b32 v4, {15 if half else 31}, v0
 v_add_u32 v4, s100, v4
 v_and_b32 v4, 511, v4
 v_mul_u32_u24 v4, 3584, v4
 s_lshl_b32 s100, {sJ}, 7
 buffer_load_dword v{vDUM}, v4, {srd('WG')}, s100 offen {nt}
 buffer_load_dword v{vDUM}, v4, {srd('WU')}, s100 offen {nt}""")
    return o
def a_consts():
    return L(f"""
 v_and_b32 v4, 15, v0
 v_add_u32 v4, 1, v4
 v_bfe_u32 v15, v4, 1, 2
 v_lshlrev_b32 v12, 3, v15
 s_mov_b32 s3, 0x020A0800
 v_bfe_u32 v12, s3, v12, 8
 v_mul_u32_u24 v15, {CS2}, v15
 v_lshrrev_b32 v4, 3, v4
 v_add_u32 v4, v4, v12
 v_lshl_add_u32 v15, v4, 4, v15
 v_bfe_u32 v4, v0, 4, 3
 v_lshl_add_u32 v15, v4, 6, v15
 s_lshr_b32 s3, {sW}, 1
 s_mul_i32 s3, s3, {4*CS2}
 s_add_u32 s3, s3, {FC}
 v_add_u32 v15, s3, v15
 v_and_b32 v12, 1, v0
 v_mul_u32_u24 v12, 0x020202, v12
 v_lshl_or_b32 v12, v12, 8, v12
 v_sub_u32 v12, 0x05040302, v12""")
def a_perm(a, i):
    nxt = vA+16*a+i+1 if i < 15 else vAx+a
    return f" v_perm_b32 v{vA+16*a+i}, v{nxt}, v{vA+16*a+i}, v{vSEL}"
def a_prep(lazy):
    def rd(a): return [f" ds_read_b128 {vr(vA+16*a+4*bb,4)}, v15 offset:{512*a+16*bb}" for bb in range(4)] + [f" ds_read_b32 v{vAx+a}, v15 offset:{512*a+64}", f"DMARK:a{a}"]
    o = [f" v_mov_b32 v{vSEL}, v12"] + rd(0) + rd(1)
    for a in range(8):
        if a+2 < 8: o += rd(a+2)
        o.append(f"DWAIT:a{a}")
        for i in range(4*lazy): o.append(a_perm(a, i))
    return o
def roles():
    t = 168
    o = L(f"""
 s_bfe_u32 {sL3}, s2, 0x20003
 s_lshr_b32 {sJL}, s2, 5
 s_and_b32 s3, s2, 1
 s_lshl_b32 s3, s3, 2
 s_add_u32 {sG}, s3, {sL3}
 s_bfe_u32 s3, s2, 0x20001
 s_mul_i32 s3, s3, 7
 s_add_u32 {sJ}, s3, {sJL}
 s_cmp_ge_u32 {sJL}, 7
 s_cselect_b32 s{SRD['WG']+2}, 0, {SIZE['WG']}
 s_mov_b32 s{SRD['WG']+3}, 0x20000
 s_mov_b32 s{SRD['WU']+2}, s{SRD['WG']+2}
 s_mov_b32 s{SRD['WU']+3}, 0x20000
 v_bfe_u32 v{t+1}, v0, 3, 3
 v_and_b32 v{t+3}, 7, v0
 v_mul_u32_u24 v{t+2}, 3584, v{t+1}
 v_and_b32 v{t+4}, 2, v{t+1}
 v_xor_b32 v{t+5}, v{t+3}, v{t+4}
 s_lshl_b32 s3, {sJ}, 7
 v_add_u32 v{t+2}, s3, v{t+2}
 v_lshl_add_u32 v{vR}, v{t+5}, 4, v{t+2}
 v_xor_b32 v{t+5}, 4, v{t+5}
 v_lshl_add_u32 v{vR+1}, v{t+5}, 4, v{t+2}
 v_lshlrev_b32 v{t+4}, 1, v{t+4}
 v_xor_b32 v{t+3}, v{t+3}, v{t+4}
 v_lshlrev_b32 v{t+1}, 10, v{t+1}
 v_lshl_add_u32 v{vWD}, v{t+3}, 4, v{t+1}""")
    return o
def w_table():
    o = L(f""" s_lshl_b32 s100, {sL3}, 4
 s_and_b32 s3, s2, 1
 s_lshl_b32 s3, s3, 3
 s_add_u32 s100, s100, s3
 s_add_u32 s100, s100, {sW}
 s_lshl_b32 s3, {sJL}, 3
 s_sub_u32 {sWM}, s100, s3
 s_lshl_b32 {sWM}, {sWM}, 10""")
    for idx in range(16): o += [f" s_add_u32 s3, s100, {4*idx}", " s_and_b32 s3, s3, 63", f" s_mul_i32 s{sWT+idx}, s3, {8*3584}"]
    return o
def w_pair(idx, nt):
    return [f" s_add_u32 s101, {sWM}, {idx*4096}\n s_and_b32 m0, s101, 0xffff", f" buffer_load_dwordx4 v{vR}, {srd('WG')}, s{sWT+idx} offen {nt} lds",
            f" s_add_u32 m0, m0, 65536", f" buffer_load_dwordx4 v{vR+1}, {srd('WU')}, s{sWT+idx} offen {nt} lds"]
def conv_setup():
    t = 176
    o = L(f"""
 v_mov_b32 v{t}, 0
 v_and_b32 v13, 127, v0
 v_lshlrev_b32 v13, 2, v13
 v_lshrrev_b32 v14, 7, v0
 v_mul_u32_u24 v14, {KVCH}, v14
 s_mov_b32 s3, {KVR+4096}
 v_add3_u32 v13, v13, v14, s3
 ds_write_b32 v13, v{t}
 v_and_b32 v13, 15, v0
 v_lshlrev_b32 v13, 5, v13
 v_bfe_u32 v14, v0, 4, 3
 v_lshlrev_b32 v14, 6, v14
 v_sub_u32 v14, v14, v13
 v_add_u32 v14, 480, v14
 s_lshr_b32 s3, {sW}, 1
 s_mul_i32 s3, s3, {KVCH}
 s_add_u32 s3, s3, {KVR}""")
    for bb in range(4):
        o += L(f""" v_add_u32 v13, {16*bb}, v14
 v_lshrrev_b32 v{t+1}, 4, v13
 v_and_b32 v{t+1}, 16, v{t+1}
 v_xor_b32 v13, v13, v{t+1}
 v_add_u32 v{vBB[bb]}, s3, v13""")
    o += L(f"""
 v_lshlrev_b32 v13, 2, v0
 v_sub_u32 v13, 1020, v13
 v_lshrrev_b32 v{t+1}, 4, v13
 v_and_b32 v{t+1}, 16, v{t+1}
 v_xor_b32 v13, v13, v{t+1}
 v_add_u32 v13, {KVR}, v13
 v_mul_u32_u24 v14, {OB}, v2
 v_lshl_add_u32 v14, v1, 4, v14""")
    return o
def h1_addr():
    return L(f"""
 s_and_b32 s4, {sC}, 3
 s_lshl_b32 s4, s4, 12
 s_lshr_b32 s3, {sC}, 2
 s_lshl_b32 s3, s3, 6
 s_add_u32 s4, s4, s3
 s_add_u32 s4, s4, {KVBOX}
 s_add_u32 s5, s4, {64*OB}
 s_add_u32 s6, s4, {128*OB}
 s_add_u32 s7, s4, {192*OB}""")
def box_recv(P, base, name, sleep, shadow=None):
    lds = [f" buffer_load_dwordx4 {vr(base+4*i,4)}, v14, {WS}, s{4+i} offen sc1" for i in range(4)]
    P(lds); P.mark(name)
    if shadow: P(shadow)
    P.vmwait(name)
    P(f"L_{name}:")
    P(f" v_xor_b32 v4, {sTAG}, v{base+1}")
    for i in range(1, 8): P(f" v_bitop3_b32 v4, v4, v{base+2*i+1}, {sTAG} bitop3:0xf6")
    P(f" v_cmp_ne_u32 vcc, 0, v4\n s_cbranch_vccnz L_{name}_r\nL_{name}_ok:\n s_mov_b64 exec, -1")
    P.tail += L(f"""L_{name}_r:
 s_mov_b64 exec, vcc
 s_sleep {sleep}""") + lds + L(f""" s_waitcnt vmcnt(0)
 s_sub_u32 {sSPIN}, {sSPIN}, 1
 s_cbranch_scc0 L_{name}
 s_mov_b32 {sSPIN}, 0
 s_branch L_{name}_ok""")
def canary_issue(cfg, stride):
    m = cfg["cmask"]
    return L(f"""
 s_bfe_u32 {sT}, {sP}, 0x20003
 s_mul_i32 {sT}, {sT}, {stride}
 s_add_u32 {sT}, {sT}, s4
 s_bfe_u32 s3, {sP}, 0x20001
 s_lshl_b32 s3, s3, 2
 s_mov_b32 s100, {m}
 s_mov_b32 s101, {m}
 s_lshl_b64 s[100:101], s[100:101], s3
 v_mov_b32 v7, {sTAG}
 s_mov_b64 exec, s[100:101]
 buffer_load_dword v7, v14, {WS}, {sT} offen offset:4 sc1
 s_mov_b64 exec, -1
MARK:can""")
def canary_check(P, name, sleep):
    P.tail += L(f"""L_{name}_r:
 s_sub_u32 {sSPIN}, {sSPIN}, 1
 s_cbranch_scc1 L_{name}_x
 s_mov_b64 exec, vcc
 s_sleep {sleep}
 buffer_load_dword v7, v14, {WS}, {sT} offen offset:4 sc1
 s_mov_b64 exec, -1
 s_waitcnt vmcnt(0)
 v_cmp_ne_u32 vcc, {sTAG}, v7
 s_cbranch_vccnz L_{name}_r
 s_branch L_{name}_b
L_{name}_x:
 s_mov_b32 {sSPIN}, 0
 s_branch L_{name}_b""")
    return ["WAIT:can", f" v_cmp_ne_u32 vcc, {sTAG}, v7", f" s_cbranch_vccnz L_{name}_r", f"L_{name}_b:"]
def kv_to_lds(P):
    for i in range(4):
        P(f" v_perm_b32 v{vIN+4*i+1}, v{vIN+4*i}, v{vIN+4*i+2}, {sLO}")
        P(f" v_perm_b32 v{vIN+4*i+3}, v{vIN+4*i}, v{vIN+4*i+2}, {sHI}")
        P(f" ds_write2st64_b32 v13, v{vIN+4*i+1}, v{vIN+4*i+3} offset0:{(3-i)*4} offset1:{(3-i)*4+KVCH//256}")
    P(" s_waitcnt lgkmcnt(0)\n s_barrier")
QD = 144
def conv_epi_consts():
    return L(f"""
 v_bfe_u32 v13, v0, 4, 2
 v_lshlrev_b32 v14, 6, v13
 v_xor_b32 v13, v14, v6
 s_lshl_b32 s3, {sW}, 13
 s_add_u32 s3, s3, {PART}
 v_add_u32 v13, s3, v13
 v_bfe_u32 v15, v0, 1, 2
 v_bfe_u32 v14, v0, 3, 4
 v_lshlrev_b32 v12, 2, v15
 v_xor_b32 v14, v14, v12
 v_lshlrev_b32 v14, 4, v14
 v_lshl_add_u32 v14, v15, 8, v14
 v_lshrrev_b32 v15, 7, v0
 v_lshl_add_u32 v14, v15, 10, v14
 v_and_b32 v15, 1, v0
 v_lshl_add_u32 v14, v15, 3, v14
 v_add_u32 v14, {PART}, v14
 s_mul_i32 s4, {sC}, {OB}
 s_add_u32 s4, s4, {YBOX}
 s_add_u32 s5, s4, 4096
 s_add_u32 s6, s4, 8192
 s_add_u32 s7, s4, 12288""")
def conv_mfma(P, bulk, sched):
    extra = conv_epi_consts()
    lazy = P.cfg['lazy']
    def rd(bb): return [f" ds_read_b128 {vr(vB+32*(bb&1)+4*d,4)}, v{vBB[bb]} offset:{(7-d)*512}" for d in range(8)]
    def mf(j, a, bb, first): P(f" v_mfma_f32_16x16x32_bf16 {ar(aC+4*j,4)}, {vr(vA+16*a+4*bb,4)}, {vr(vB+32*(bb&1)+4*(j-a),4)}, {'0' if first else ar(aC+4*j,4)}")
    used = [0]
    def due(n):
        allowed = sum(min(2*c, max(0, (n - s0)//e + 1)) for (s0, c, e) in sched)
        return used[0] < allowed
    P(rd(0))
    n = 0
    for bb in range(3):
        pend = []
        perms = [a_perm(a, i) for a in range(8) for i in range(4*(bb+1), 4*(bb+2))] if bb+1 >= lazy else []
        for d in range(8):
            if d == 0 and bb == 0: P(" s_waitcnt lgkmcnt(7)")
            elif (bb == 0 and d == 1) or d == 0: P(" s_waitcnt lgkmcnt(0)")
            if d == 1: pend = rd(bb+1)
            for a in range(8-d):
                mf(a+d, a, bb, bb == 0 and d == 0); n += 1
                if perms: P(perms.pop(0))
                if pend: P(pend.pop(0))
                elif bulk and due(n): P(bulk.pop(0)); used[0] += 1
                elif extra: P(extra.pop(0))
    P(extra)
    P(" s_waitcnt lgkmcnt(0)\n s_barrier")
    tags = [f" v_mov_b32 v{QD+2*i+1}, {sTAG}" for i in range(8)]
    wr = []; cnt = 0
    for j in range(8):
        for a in range(j+1):
            mf(j, a, 3, False); cnt += 1
            if wr and wr[0][1] + 4 <= cnt: P(wr.pop(0)[0])
            elif bulk and due(108 + cnt): P(bulk.pop(0)); used[0] += 1
            elif tags: P(tags.pop(0))
        wr.append((f" ds_write_b128 v13, {ar(aC+4*j,4)} offset:{j*1024}", cnt))
    P(tags)
    for x in wr: P(x[0])
def conv_epilogue(P):
    R = 16
    P(" s_waitcnt lgkmcnt(0)\n s_barrier")
    for i in range(4):
        for c in range(2): P(f" ds_read2st64_b64 {vr(R+8*i+4*c,4)}, v14 offset0:{4*i+32*c} offset1:{4*i+32*c+16}")
    for i in range(4):
        P(f" s_waitcnt lgkmcnt({6-2*i})")
        b = R+8*i
        P(f""" v_pk_add_f32 {vr(b,2)}, {vr(b,2)}, {vr(b+2,2)}
 v_pk_add_f32 {vr(b+4,2)}, {vr(b+4,2)}, {vr(b+6,2)}
 v_cvt_pk_bf16_f32 v{QD+4*i}, v{b}, v{b+4}
 v_cvt_pk_bf16_f32 v{QD+4*i+2}, v{b+1}, v{b+5}
 buffer_store_dwordx4 {vr(QD+4*i,4)}, v9, {WS}, s{4+i} offen sc1""")

vSR = 15
def stat_consts():
    return L(f"""
 v_bfe_u32 v{vSW}, v0, 4, 4
 v_lshl_add_u32 v{vSW}, v1, 4, v{vSW}
 v_lshlrev_b32 v{vSW}, 2, v{vSW}
 v_add_u32 v{vSW}, {STAT}, v{vSW}
 v_lshlrev_b32 v{vSR}, 6, v1
 v_add_u32 v{vSR}, {STAT}, v{vSR}
 s_mov_b32 s30, 0x3b000000
 s_mov_b32 s31, 0x3b000000""")
def row_stats(src, tmp, off, mr, shadow):
    o = []
    a = tmp+8
    for r in range(2):
        b = src+8*r
        o.append(f" v_pk_add_f32 {vr(a+4*r,2)}, {vr(b,2)}, {vr(b+2,2)}")
        o.append(f" v_pk_mul_f32 {vr(a+4*r+2,2)}, {vr(b,2)}, {vr(b,2)}")
    for i in range(1, 4):
        for r in range(2):
            b = src+8*r+2*i
            if i >= 2: o.append(f" v_pk_add_f32 {vr(a+4*r,2)}, {vr(a+4*r,2)}, {vr(b,2)}")
            o.append(f" v_pk_fma_f32 {vr(a+4*r+2,2)}, {vr(b,2)}, {vr(b,2)}, {vr(a+4*r+2,2)}")
    for k in range(4): o.append(f" v_add_f32 v{tmp+k}, v{a+2*k}, v{a+2*k+1}")
    sh = list(shadow)
    def S(n): return take(sh, n)
    o += S(2) + [f" v_permlane32_swap_b32 v{tmp}, v{tmp+1}", f" v_permlane32_swap_b32 v{tmp+2}, v{tmp+3}",
          f" v_add_f32 v{tmp}, v{tmp}, v{tmp+1}", f" v_add_f32 v{tmp+2}, v{tmp+2}, v{tmp+3}"] + S(2) + \
         [f" v_permlane16_swap_b32 v{tmp}, v{tmp+2}", f" v_add_f32 v{tmp}, v{tmp}, v{tmp+2}"] + S(2) + \
         [f" v_add_f32_dpp v{tmp}, v{tmp}, v{tmp} row_ror:4 row_mask:0xf bank_mask:0xf"] + S(2) + \
         [f" v_add_f32_dpp v{tmp}, v{tmp}, v{tmp} row_ror:8 row_mask:0xf bank_mask:0xf", f" ds_write_b32 v{vSW}, v{tmp} offset:{off}"] + S(8) + \
         [" s_waitcnt lgkmcnt(0)", " s_barrier"] + \
         [f" ds_read_b128 {vr(tmp+8+4*k,4)}, v{vSR} offset:{off+16*k}" for k in range(4)] + S(99) + [" s_waitcnt lgkmcnt(0)"]
    o += L(f"""
 v_pk_add_f32 {vr(a,2)}, {vr(a,2)}, {vr(a+4,2)}
 v_pk_add_f32 {vr(a+8,2)}, {vr(a+8,2)}, {vr(a+12,2)}
 v_pk_add_f32 {vr(a+2,2)}, {vr(a+2,2)}, {vr(a+6,2)}
 v_pk_add_f32 {vr(a+10,2)}, {vr(a+10,2)}, {vr(a+14,2)}
 v_pk_add_f32 {vr(tmp,2)}, {vr(a,2)}, {vr(a+8,2)}
 v_pk_add_f32 {vr(tmp+2,2)}, {vr(a+2,2)}, {vr(a+10,2)}
 v_pk_mul_f32 {vr(tmp,2)}, {vr(tmp,2)}, s[30:31]
 v_pk_mul_f32 {vr(tmp+2,2)}, {vr(tmp+2,2)}, s[30:31]
 v_pk_fma_f32 {vr(tmp+2,2)}, {vr(tmp,2)}, {vr(tmp,2)}, {vr(tmp+2,2)} neg_lo:[1,0,0] neg_hi:[1,0,0]
 v_cvt_pk_bf16_f32 v{tmp+4}, v{tmp}, v{tmp+1}
 v_max_f32 v{tmp+2}, 0, v{tmp+2}
 v_max_f32 v{tmp+3}, 0, v{tmp+3}
 v_cvt_pk_bf16_f32 v{tmp+5}, v{tmp+2}, v{tmp+3}
 v_lshlrev_b32 v{tmp+2}, 16, v{tmp+5}
 v_and_b32 v{tmp+3}, {sMASK}, v{tmp+5}
 v_add_f32 v{tmp+2}, 0x3727c5ac, v{tmp+2}
 v_add_f32 v{tmp+3}, 0x3727c5ac, v{tmp+3}
 v_cvt_pk_bf16_f32 v{tmp+5}, v{tmp+2}, v{tmp+3}
 v_lshlrev_b32 v{tmp+2}, 16, v{tmp+5}
 v_and_b32 v{tmp+3}, {sMASK}, v{tmp+5}
 v_sqrt_f32 v{tmp+2}, v{tmp+2}
 v_sqrt_f32 v{tmp+3}, v{tmp+3}
 v_lshlrev_b32 v{mr}, 16, v{tmp+4}
 v_cvt_pk_bf16_f32 v{tmp+5}, v{tmp+2}, v{tmp+3}
 v_lshlrev_b32 v{tmp+2}, 16, v{tmp+5}
 v_and_b32 v{tmp+3}, {sMASK}, v{tmp+5}
 v_rcp_f32 v{mr+2}, v{tmp+2}
 v_rcp_f32 v{mr+3}, v{tmp+3}
 v_and_b32 v{mr+1}, {sMASK}, v{tmp+4}
 v_pk_mul_f32 {vr(mr,2)}, {vr(mr,2)}, {vr(mr+2,2)} neg_lo:[1,0] neg_hi:[1,0]""")
    return o
def norm_row(dst, src, mr, row):
    sel = f"op_sel:[0,{row},{row}] op_sel_hi:[1,{row},{row}]"
    return [f" v_pk_fma_f32 {vr(dst+8*row+2*i,2)}, {vr(src+8*row+2*i,2)}, {vr(mr+2,2)}, {vr(mr,2)} {sel}" for i in range(4)]
def unpack(dst, src): return [f" v_lshlrev_b32 v{dst}, 16, v{src}", f" v_and_b32 v{dst+1}, {sMASK}, v{src}"]
def ln1():
    tmp = 176; mr = 200; kd = 160
    o = []
    for r in range(2):
        for t in range(4): o += unpack(kd+8*r+2*t, vQ+4*t+2*r)
    for i in range(8): o += unpack(vu1+2*i, vX+i)
    sh = []
    for i in range(4): sh += unpack(vX+2*i, vD+i)
    for r in range(2):
        for t in range(4): sh.append(f" v_pk_mul_f32 {vr(kd+8*r+2*t,2)}, {vr(kd+8*r+2*t,2)}, {vr(vX+2*t,2)}")
    o += row_stats(vu1, tmp, 0, mr, sh)
    o += norm_row(vq, vu1, mr, 0) + norm_row(vq, vu1, mr, 1)
    for i in range(8): o.append(f" v_pk_fma_f32 {vr(vu1+2*i,2)}, {vr(vq+2*i,2)}, {vr(kd+2*i,2)}, {vr(vu1+2*i,2)}")
    return o
vY = 64
def ln2(P0, bulk, every):
    P = G(); P.cfg = P0.cfg
    vh, vn, tmp, mr = 80, 104, 112, 136
    for r in range(2):
        for t in range(4): P(unpack(vh+8*r+2*t, vY+4*t+2*r))
    for i in range(8): P(f" v_pk_fma_f32 {vr(vh+2*i,2)}, {vr(vq+2*i,2)}, {vr(vh+2*i,2)}, {vr(vu1+2*i,2)}")
    sh = [f" v_cvt_pk_bf16_f32 v{vHP+i}, v{vh+2*i}, v{vh+2*i+1}" for i in range(8)]
    for i in range(8): sh += unpack(vh+2*i, vHP+i)
    P(row_stats(vh, tmp, 256, mr, sh))
    for r in range(2):
        P(norm_row(vh, vh, mr, r))
        for i in range(4*r, 4*r+4): P(f" v_cvt_pk_bf16_f32 v{vn+i}, v{vh+2*i}, v{vh+2*i+1}")
        P(f" buffer_store_dwordx4 {vr(vn+4*r,4)}, v5, {WS}, {sHNst} offen offset:{64*r} sc1")
        P(f" v_xad_u32 v{tmp+r}, v{vn+4*r}, v{vn+4*r+1}, v{vn+4*r+2}\n v_add_u32 v{tmp+r}, v{tmp+r}, v{vn+4*r+3}")
    P(f"""
 v_permlane16_swap_b32 v{tmp}, v{tmp+1}
 v_add_u32 v{tmp}, v{tmp}, v{tmp+1}
 v_add_u32_dpp v{tmp}, v{tmp}, v{tmp} row_ror:8 row_mask:0xf bank_mask:0xf
 v_add_u32 v{tmp}, {sTAG}, v{tmp}
 buffer_store_dword v{tmp}, v{vC}, {WS}, {sHCst} offen sc1
""")
    if P.cfg["hnh"]: P(f" buffer_store_dword v{vY+1}, v13, {WS}, {sF0} offen sc1")
    interleave(P0, P.lines, bulk, every)
    assert not bulk
def h2_consts():
    return L(f"""
 v_mul_u32_u24 v14, {4*OB}, v2
 v_lshl_add_u32 v14, v1, 4, v14
 v_lshlrev_b32 v5, 9, v2
 v_lshl_add_u32 v5, v1, 4, v5
 v_lshrrev_b32 v{vC}, 2, v6
 v_add_u32 v{vC}, 4096, v{vC}
 s_lshr_b32 {sHNst}, {sP}, 2
 s_lshl_b32 {sHNst}, {sHNst}, 15
 s_and_b32 s3, {sP}, 3
 s_lshl_b32 s3, s3, 7
 s_add_u32 {sHNst}, {sHNst}, s3
 s_add_u32 {sHNst}, {sHNst}, {HN}
 s_lshl_b32 {sHCst}, {sP}, 2
 s_add_u32 {sHCst}, {sHCst}, {sW}
 s_lshl_b32 {sF0}, {sHCst}, 9
 s_add_u32 {sF0}, {sF0}, {HI}
 v_lshrrev_b32 v13, 6, v6
 v_lshlrev_b32 v13, 25, v13
 v_lshl_add_u32 v13, v1, 7, v13
 s_lshl_b32 {sFLst}, {sHCst}, 6
 s_add_u32 {sFLst}, {sFLst}, {FL-4352}
 s_lshl_b32 {sHCst}, {sHCst}, 8
 s_add_u32 {sHCst}, {sHCst}, {HC-4096}
 s_mov_b32 {sHRES}, {HRES}
 s_lshl_b32 s4, {sP}, 6
 s_add_u32 s4, s4, {YBOX}
 s_add_u32 s5, s4, {OB}
 s_add_u32 s6, s4, {2*OB}
 s_add_u32 s7, s4, {3*OB}""")

WARM = [0]
def warm_ops(n0, n1):
    o = []
    if n0 == 0:
        o += L(f""" v_bfe_u32 v16, v0, 3, 3
 v_min_u32 v16, 6, v16
 v_and_b32 v17, 7, v0
 v_lshlrev_b32 v17, 10, v17
 v_lshl_add_u32 v17, v16, 7, v17
 s_mul_i32 s4, {sW}, {448*1024}
 s_lshl_b32 s5, {sL3}, 13
 s_add_u32 s4, s4, s5
 s_add_u32 s5, s4, 32768""")
    for j in range(n0, n1):
        if j & 1 == 0:
            if j: o += [" v_add_u32 v16, 1, v16", " v_cmp_eq_u32 vcc, 7, v16", " v_cndmask_b32 v16, v16, 0, vcc"]
            o.append(" v_lshl_add_u32 v18, v16, 16, v17")
        o.append(f" buffer_load_dword v19, v18, {srd('WD')}, s{4 + (j & 1)} offen")
    return o
def wd_consts(a8):
    if a8: head = f"""
 s_bfe_u32 s3, s2, 0x20001
 s_lshl_b32 s3, s3, 3
 s_bfe_u32 {sT}, s2, 0x30003
 s_add_u32 {sSB}, s3, {sT}
 s_and_b32 {sE}, s2, 1
 s_lshl_b32 {sE}, {sE}, 2
 s_lshr_b32 s3, s2, 6
 s_add_u32 {sE}, {sE}, s3
 s_lshl_b32 {sE}, {sE}, 7
 s_lshl_b32 s3, s3, 1
 s_add_u32 s3, s3, {sT}"""
    else: head = f"""
 s_and_b32 s3, s2, 7
 s_lshl_b32 s3, s3, 2
 s_add_u32 {sSB}, s3, {sL3}
 s_lshl_b32 {sE}, {sJL}, 7
 s_lshl_b32 s3, {sL3}, 1""" + (f"""
 s_cmp_ge_u32 {sJL}, 7
 s_cselect_b32 s3, s3, 0""" if WARM[0] else "") + f"""
 s_add_u32 s3, s3, {sJL}"""
    o = L(head + f"""
 s_mul_i32 {sRING}, {sW}, {NR*1024}
 s_add_u32 {sRING}, {sRING}, {RING}
 s_mul_i32 s100, {sW}, {448*1024}
 s_add_u32 s100, s100, {sE}""")
    for i in range(7):
        if WARM[0] == 2:
            if i < 3: o += [f" s_add_u32 s101, s3, {i}"]
            else: o += L(f""" s_add_u32 s101, {sL3}, {i-3}
 s_and_b32 s101, s101, 3
 s_cmp_ge_u32 {sJL}, 7
 s_cselect_b32 s101, {i-3}, s101
 s_add_u32 s101, s101, 3
 s_add_u32 s101, s101, s3""")
            for rep in range(2): o += L(f""" s_cmp_ge_u32 s101, 7
 s_cselect_b32 {sT}, 7, 0
 s_sub_u32 s101, s101, {sT}""")
            o += [f" s_lshl_b32 {sT}, s101, 16", f" s_add_u32 s{sWD+i}, {sT}, s100"]
            continue
        o += L(f""" s_cmp_ge_u32 s3, 7
 s_cselect_b32 {sT}, 7, 0
 s_sub_u32 s3, s3, {sT}
 s_lshl_b32 {sT}, s3, 16
 s_add_u32 s{sWD+i}, {sT}, s100
 s_add_u32 s3, s3, 1""")
    return o
def wd_rconsts(t):
    return L(f"""
 v_bfe_u32 v{t}, v0, 5, 1
 v_bfe_u32 v{t+1}, v0, 4, 1
 v_bfe_u32 v{t+2}, v0, 2, 2
 v_lshl_add_u32 v{t}, v{t}, 2, v{t+2}
 v_lshlrev_b32 v{t}, 7, v{t}
 v_lshl_add_u32 v{t}, v1, 3, v{t}
 v_add_u32 v{t}, {sRING}, v{t}
 v_and_b32 v{t+2}, 2, v{t+2}
 v_or_b32 v{t+2}, v{t+2}, v{t+1}
 v_lshl_add_u32 v{vWr[0]}, v{t+2}, 5, v{t}
 v_xor_b32 v{t+2}, 2, v{t+2}
 v_lshl_add_u32 v{vWr[1]}, v{t+2}, 5, v{t}""")
def wd_dma(m, base=sRING, slot=None):
    i, r = m // 8, m & 7
    o = []
    if slot is None:
        slot = m % NR
        if m >= NR: o.append(f"DWAIT:wd{m-NR}")
    o.append(f" s_add_u32 m0, {base}, {slot*1024}")
    if r: o += [f" s_add_u32 s100, s{sWD+i}, {r*8192}", f" buffer_load_dwordx4 v{vWD}, {srd('WD')}, s100 offen lds"]
    else: o += [f" buffer_load_dwordx4 v{vWD}, {srd('WD')}, s{sWD+i} offen lds"]
    return o + [f"MARK:wd{m}"]
def wd_read(m, slot=None):
    d = (m >> 1)*8 + 2*(m & 1)
    if slot is None: slot = m % NR
    return [f"WAIT:wd{m}"] + [f" ds_read_b64_tr_b16 {ar(d+4*tau,2)}, v{vWr[tau]} offset:{slot*1024}" for tau in range(2)] + [f"DMARK:wd{m}"]
def wd_stream(d, rd, N):
    o = []
    while d < min(N, rd + NR - 1): o += wd_dma(d); d += 1
    for m in range(rd, N):
        o += wd_read(m)
        if d < N and d <= m + NR - 1: o += wd_dma(d); d += 1
    return o

def wd_raw(m):
    i, r = m // 8, m & 7
    if r: return [f" s_add_u32 s100, s{sWD+i}, {r*8192}", f" buffer_load_dwordx4 {ar(4*m,4)}, v{vWD}, {srd('WD')}, s100 offen"]
    return ["SKIP", f" buffer_load_dwordx4 {ar(4*m,4)}, v{vWD}, {srd('WD')}, s{sWD+i} offen"]
def bounce(u, va):
    d = u*8; off = (u % 3)*2048
    o = [f" ds_write_b128 v{va}, {ar(d,4)} offset:{off}", f" ds_write_b128 v{va}, {ar(d+4,4)} offset:{off+1024}"]
    for tau in range(2):
        for io in range(2): o.append(f" ds_read_b64_tr_b16 {ar(d+4*tau+2*io,2)}, v{vWr[tau]} offset:{off+io*1024}")
    return o
def g_sconsts(nbig):
    o = [f" s_mul_i32 s3, {sSB}, {56*GS}", f" s_add_u32 s3, s3, {HH}"]
    for i in range(7):
        o += L(f""" s_lshr_b32 {sT}, s{sWD+i}, 16
 s_mul_i32 {sT}, {sT}, {GS}
 s_add_u32 s{sHL+i}, {sT}, s3
 s_add_u32 s{sHL+7+i}, s{sHL+i}, {28*GS}""")
    o += L(f"""
 s_lshl_b32 {sO0}, {sSB}, 16
 s_add_u32 {sO0}, {sO0}, {sE}
 s_add_u32 {sO1}, {sO0}, 32768
 s_add_u32 {sHR0}, {sO0}, {HRES}
 s_add_u32 {sHR1}, {sO1}, {HRES}
 s_lshl_b32 s3, {sG}, 2
 s_add_u32 s3, s3, {sW}
 s_mul_i32 {sHS0}, s3, 56
 s_add_u32 {sHS0}, {sHS0}, {sJ}
 s_mul_i32 {sHS0}, {sHS0}, {GS}
 s_add_u32 {sHS0}, {sHS0}, {HH}
 s_add_u32 {sHS1}, {sHS0}, {28*GS}
 s_lshl_b32 {sFLld}, s3, 13
 s_add_u32 {sFLld}, {sFLld}, {HC}
 s_lshl_b32 s3, s3, 16
 s_add_u32 s3, s3, {HN}""")
    for g in range(8):
        o += [f" s_add_u32 {sT}, {sJL}, {g}", f" s_and_b32 {sT}, {sT}, 7", f" s_lshl_b32 s{sHC+g}, {sT}, 7", f" s_add_u32 s{sHC+g}, s{sHC+g}, {sFLld}", f" s_lshl_b32 {sT}, {sT}, 12", f" s_add_u32 s{sHN+g}, {sT}, s3"]
    o += L(f"""
 s_lshl_b32 {sFLld}, {sSB}, 3
 s_add_u32 {sFLld}, {sFLld}, {sW}
 s_mul_i32 {sPH0}, {sFLld}, {7*GS}
 s_add_u32 {sPH0}, {sPH0}, {HH+4352}
 s_add_u32 {sPH1}, {sPH0}, {28*GS}
 s_lshl_b32 {sFLld}, {sFLld}, 2
 s_lshr_b32 s3, {sE}, 8
 s_add_u32 {sFLld}, {sFLld}, s3
 s_lshl_b32 {sFLld}, {sFLld}, 6
 s_add_u32 {sFLld}, {sFLld}, {FL}
 s_and_b32 s3, {sW}, 1
 s_mul_i32 s3, s3, {nbig*1024}
 s_lshr_b32 {sBIG}, {sW}, 1
 s_lshl_b32 {sBIG}, {sBIG}, 16
 s_add_u32 {sBIG}, {sBIG}, s3""") + srdc(("OUT",))
    return o
def g_vconsts():
    t = 232
    o = L(f"""
 v_bfe_u32 v{t}, v0, 5, 1
 v_bfe_u32 v{t+1}, v0, 4, 1
 v_bfe_u32 v{t+2}, v0, 2, 2
 v_bfe_u32 v{vHC}, v0, 3, 2
 v_lshlrev_b32 v{vHC}, 10, v{vHC}
 v_lshl_add_u32 v{vHC}, v{t}, 4, v{vHC}
 v_lshl_add_u32 v{t}, v{t}, 3, v{t+2}
 v_lshlrev_b32 v{t+4}, 7, v{t}
 v_lshl_add_u32 v{t+4}, v1, 3, v{t+4}
 v_lshl_add_u32 v{t+4}, v{t+1}, 16, v{t+4}
 v_lshrrev_b32 v{t+2}, 1, v{t+2}
 v_lshl_add_u32 v{t+2}, v{t+1}, 1, v{t+2}
 v_add_u32 v{vL2}, 32768, v6""")
    for k in range(4): o += [f" v_xor_b32 v{t+3}, {k}, v{t+2}", f" v_lshl_add_u32 v{vRa+k}, v{t+3}, 5, v{t+4}"]
    o += L(f"""
 v_bfe_u32 v4, v0, 2, 1
 v_lshl_add_u32 v{vHC}, v4, 6, v{vHC}
 v_lshl_add_u32 v{vHC}, v1, 2, v{vHC}
 v_add_u32 v{vHC1}, 4096, v{vHC}
 v_lshrrev_b32 v{t}, 3, v0
 v_and_b32 v{t+1}, 24, v{t}
 v_and_b32 v{t+2}, 3, v{t}
 v_lshl_add_u32 v{t+1}, v{t+2}, 1, v{t+1}
 v_bfe_u32 v{t+2}, v{t}, 2, 1
 v_add_u32 v{t+1}, v{t+1}, v{t+2}
 v_lshlrev_b32 v{t+1}, 10, v{t+1}
 v_and_b32 v{t+2}, 7, v0
 v_lshl_add_u32 v{vOUT}, v{t+2}, 4, v{t+1}
 v_mul_u32_u24 v{vPH}, {GS//16}, v6
 v_add_u32 v4, 16, v6
 v_lshrrev_b32 v4, 7, v4
 v_lshl_add_u32 v{vPH}, v4, 25, v{vPH}
 v_lshlrev_b32 v{vONE}, 21, v6
 v_add_u32 v{vONE}, 4352, v{vONE}
 v_mov_b32 v{vTG}, {sTAG}""")
    return o
HST = [f" buffer_store_dwordx4 {vr(vHP,4)}, v3, {WS}, {sHRES} offen sc1", f" buffer_store_dwordx4 {vr(vHP+4,4)}, v3, {WS}, {sHRES} offen offset:1024 sc1", "MARK:HST"]
FLAGST = f" buffer_store_dword v{vTG}, v{vONE}, {WS}, {sFLst} offen sc1"
FLAGLD = [" v_lshrrev_b32 v1, 5, v6\n v_lshlrev_b32 v1, 25, v1", " v_lshl_add_u32 v1, v6, 6, v1", f" v_mov_b32 v3, 0\n buffer_atomic_or v3, v1, {WS}, {sFLld} offen sc0 sc1"]
HRESLD = [f" buffer_load_dwordx4 {vr(vE,4)}, v{vOUT}, {WS}, {sHR0} offen sc1", f" buffer_load_dwordx4 {vr(vE+4,4)}, v{vOUT}, {WS}, {sHR1} offen sc1", "MARK:hres"]
def poll(dst, voff, soff): return f" v_mov_b32 v{dst}, 0\n buffer_atomic_or v{dst}, v{voff}, {WS}, {soff} offen sc0 sc1"
def pollcmp(dst, mask): return [f" v_cmp_ne_u32 vcc, {sTAG}, v{dst}", f" s_and_b64 vcc, vcc, {mask}"]
def hn_regs(G_): return vHN + 16*(G_ % 4)
def hn_loads(G_):
    return [f" buffer_load_dwordx4 {vr(hn_regs(G_)+4*k,4)}, v{6 if G_ < 8 else vL2}, {WS}, s{sHN+(G_&7)} offen offset:{k*1024} sc1" for k in range(4)] + \
           [f" buffer_load_dword v{CHN[G_%4]}, v{vHC if G_ < 8 else vHC1}, {WS}, s{sHC+(G_&7)} offen sc1"]
def hh_loads(u, i):
    return [f" buffer_load_dwordx4 {vr(HREG[(u,i)]+4*t,4)}, v6, {WS}, s{sHL+7*u+i} offen offset:{t*1024} sc1" for t in range(4)] + \
           [f" buffer_load_dword v{CHH[(u,i)]}, v{vC}, {WS}, s{sHL+7*u+i} offen sc1"]
def hashchain(r, chk):
    o = []
    for f in range(4):
        b = r + 4*f
        o.append(f" v_xad_u32 v4, v{b}, v{b+1}, {sTAG if f == 0 else 'v4'}")
        o.append(f" v_add3_u32 v4, v4, v{b+2}, v{b+3}")
    return o + [f" v_cmp_ne_u32 vcc, v4, v{chk}"]
def retry_check(P, o, loads, later, name, sleep):
    blk = [f"L_{name}_r:", f" s_sub_u32 {sSPIN}, {sSPIN}, 1", f" s_cbranch_scc1 L_{name}_x", f" s_sleep {sleep}"] + loads + [" s_waitcnt vmcnt(0)"] + o + [f" s_cbranch_vccnz L_{name}_r"]
    blk += later + ([" s_waitcnt vmcnt(0)"] if later else []) + [f" s_branch L_{name}_b", f"L_{name}_x:", f" s_mov_b32 {sSPIN}, 0", f" s_branch L_{name}_b"]
    P.tail += blk
    return o + [f" s_cbranch_vccnz L_{name}_r\nL_{name}_b:"]
def retry_fast(P, o, loads, later, name, sleep):
    blk = [f"L_{name}_s:", f" s_sleep {sleep}", f"L_{name}_r:", f" s_sub_u32 {sSPIN}, {sSPIN}, 1", f" s_cbranch_scc1 L_{name}_x"] + loads + later + [f" s_waitcnt vmcnt({len(later)})"] + o + [f" s_cbranch_vccnz L_{name}_s"]
    blk += [f" s_branch L_{name}_b", f"L_{name}_x:", f" s_mov_b32 {sSPIN}, 0", f" s_branch L_{name}_b"]
    P.tail += blk
    return o + [f" s_cbranch_vccnz L_{name}_r\nL_{name}_b:"]
def hint_spin(name, s, back):
    return [f"L_{name}:", poll(vPD, vPH, s), " s_waitcnt vmcnt(0)"] + pollcmp(vPD, 0x7f) + [f" s_cbranch_vccz {back}", " s_sleep 8",
            f" s_sub_u32 {sSPIN}, {sSPIN}, 1", f" s_cbranch_scc0 L_{name}", f" s_mov_b32 {sSPIN}, 0"]
def epi_tile(acc, ups, t, out, pk):
    o = []
    if pk:
        for i in range(4): o.append(f" v_pk_mul_f32 {vr(vE+2*i,2)}, {vr(acc+2*i,2)}, s[4:5]")
    else:
        for i in range(8): o.append(f" v_mul_f32 v{vE+i}, 0xbfb8aa3b, v{acc+i}")
    for i in range(8): o.append(f" v_exp_f32 v{vE+i}, v{vE+i}")
    if pk:
        for i in range(4): o.append(f" v_pk_add_f32 {vr(vE+2*i,2)}, {vr(vE+2*i,2)}, 1.0 op_sel_hi:[1,0]")
    else:
        for i in range(8): o.append(f" v_add_f32 v{vE+i}, 1.0, v{vE+i}")
    for i in range(8): o.append(f" v_rcp_f32 v{vE+i}, v{vE+i}")
    if pk:
        for i in range(4): o.append(f" v_pk_mul_f32 {vr(vE+2*i,2)}, {vr(vE+2*i,2)}, {vr(acc+8+2*i,2)}")
    else:
        for i in range(8): o.append(f" v_mul_f32 v{vE+i}, v{vE+i}, v{acc+8+i}")
    for i in range(4): o.append(f" v_cvt_pk_bf16_f32 v{out+i}, v{vE+2*i}, v{vE+2*i+1}")
    sb = sHS1 if ups else sHS0
    o.append(f" buffer_store_dwordx4 {vr(out,4)}, v6, {WS}, {sb} offen offset:{t*1024} sc1")
    o.append(f" v_xad_u32 v{vHASH}, v{out}, v{out+1}, {sTAG if t == 0 else 'v%d' % vHASH}")
    o.append(f" v_add3_u32 v{vHASH}, v{vHASH}, v{out+2}, v{out+3}")
    if t == 3:
        o.append(f" buffer_store_dword v{vHASH}, v{vC}, {WS}, {sb} offen sc1")
        o.append(f" buffer_store_dword v{vTG}, v{vONE}, {WS}, {sb} offen sc1")
    return o

def gemm1(P, cfg, wds):
    seq = [(u, k, t) for u in range(2) for k in range(32) for t in range(4)]
    D = 6; LA = 3
    MB = cfg["wd_big"]
    def reads(n):
        u, k, t = seq[n]; d = aC + 4*(n % 8)
        return [f" ds_read_b64_tr_b16 {ar(d+2*io,2)}, v{vRa+t} offset:{k*2048+io*512}" for io in range(2)] + [f"DMARK:w{n}"]
    def hn_issue(g): return hn_loads(g) + [f"MARK:hn{g}"]
    def hn_check(g):
        later = []
        for gg in range(g+1, min(16, g+LA)): later += hn_loads(gg)
        return [f"WAIT:hn{g}"] + (retry_fast if g < 12 else retry_check)(P, hashchain(hn_regs(g), CHN[g%4]), hn_loads(g), later, f"hn{g}", cfg["bo"])
    for n in range(D): P(reads(n))
    if cfg["hnh"]:
        hl = f" buffer_load_dword v{vPD}, v221, {WS}, {sF0} offen sc1"
        P(["WAIT:phn"] + retry_check(P, [f" v_cmp_ne_u32 vcc, {sTAG}, v{vPD}"], [hl], [], "phn", cfg["hbo"]))
    P.st("hint")
    for g in range(LA): P(hn_issue(g))
    P(hn_check(0))
    P.st("hn0")
    wq_ = list(wds); fill = []; urgent = []; wacc = 0.0; lastv = -9
    h0 = poll(vPD, vPH, sPH0)
    for n, (u, k, t) in enumerate(seq):
        budget = cfg["slots"][u]
        g = 8*u + k//4
        if t == 0:
            if k % 4 == 0:
                while urgent: P(urgent.pop(0))
                if g + LA < 16: urgent += hn_issue(g + LA)
            if k % 4 == 3 and g + 1 < 16: urgent += hn_check(g + 1)
            if (u, k) == (1, 0):
                P.st("p0")
                P(urgent); urgent = []
                P(" s_mov_b32 s4, 0xbfb8aa3b\n s_mov_b32 s5, 0xbfb8aa3b")
                held = []; ex = []
                for tt in range(4):
                    pk = tt < cfg["e0_exp"]
                    for x in epi_tile(acc0+16*tt, 0, tt, acc0+16*tt, pk):
                        (held if x.lstrip().startswith("buffer_store") else (ex if pk else fill)).append(x)
                P(ex)
                fill += held + (["WAIT:HST", FLAGST] if cfg['h_early'] else HST)
                if cfg["e0_exp"] == 4: P(fill); fill = []
                P.st("e0")
            if u == 1 and k == cfg["h0_k"] and cfg["hhh"]: urgent += [h0, "MARK:ph0"]
            if u == 1 and k in cfg["hh_at"]:
                i = cfg["hh_at"][k]
                assert not fill
                if i == 0:
                    if not cfg['h_early']: urgent += ["WAIT:HST", FLAGST]
                    if cfg["hhh"]: urgent += ["WAIT:ph0"] + retry_check(P, pollcmp(vPD, 0x7f), [h0], [], "ph0", cfg["hbo"])
                urgent += hh_loads(0, i) + [f"MARK:hh0_{i}"]
        if n % 2 == 0: P(f"DWAIT:w{n+1}")
        else: budget -= 1
        a = (acc1 if u else acc0) + 16*t
        P(f" v_mfma_f32_32x32x16_bf16 {vr(a,16)}, {ar(aC+4*(n%8),4)}, {vr(hn_regs(g)+4*(k&3),4)}, {'0' if k == 0 else vr(a,16)}")
        if n + D < len(seq):
            P(reads(n+D)); budget -= 2
        wacc += cfg["wd_rate"][u]
        had = bool(fill)
        for q in (urgent, wq_, fill):
            while q and (budget >= P.cost(q[0]) or P.cost(q[0]) == 0):
                if q[0].lstrip().startswith("buffer_"):
                    if n - lastv < cfg["vgap"]: break
                    lastv = n
                if q is wq_:
                    if wacc < 1 and P.cost(q[0]) > 0: break
                    wacc -= P.cost(q[0])
                x = q.pop(0); budget -= P.cost(x); P(x)
        if had and not fill: print("epilogue0 done at k", k)
    print('left: wd', len(wq_), 'fill', len(fill))
    P(urgent); P(wq_); P(fill)
    P.st("p1")
    P(" s_mov_b32 s4, 0xbfb8aa3b\n s_mov_b32 s5, 0xbfb8aa3b")
    big = []
    if MB < 56:
        P(" s_barrier")
        for m in range(MB, 56): big.append("\n".join(wd_dma(m, sBIG, m - MB)))
    e1 = []; held = []
    for tt in range(4):
        for x in epi_tile(acc1+16*tt, 1, tt, acc1+16*tt, True):
            (held if (cfg["hold"] and x.lstrip().startswith("buffer_store")) else e1).append(x)
    pre = []
    for i in range(len(cfg["hh_at"]), 7): pre += hh_loads(0, i) + [f"MARK:hh0_{i}"]
    pre = FLAGLD + ["MARK:flag"] + pre + take(big, cfg["big_pre"])
    if cfg["pre_late"]: P(e1)
    else: interleave(P, e1, pre, cfg["big_every"])
    P(held)
    P(pre)
    P.big = big
    P.st("epi")
    P.st("ld0")

def red_consts():
    return L(f"""
 s_mul_i32 s3, {sW}, {REDW}
 v_add_u32 v12, s3, v6
 v_and_b32 v15, 7, v0
 v_lshrrev_b32 v13, 3, v0
 v_mul_u32_u24 v15, {BS}, v15
 v_lshl_add_u32 v13, v13, 4, v15
 v_add_u32 v14, {2*REDW}, v13""")
def red_write(ups): return [f" ds_write_b128 v12, {vr(acc2+4*blk,4)} offset:{blk*BS}" for blk in range(8*ups, 8*ups+8)]
def red_read(ups, b): return [f" ds_read_b128 {vr(b+8*w+4*h,4)}, {'v13' if w < 2 else 'v14'} offset:{ups*8*BS + h*512 + (w&1)*REDW}" for w in range(4) for h in range(2)]
def red_fin(ups, b, hx, pk, fl):
    o = []
    for (x, y) in ((0, b+8), (16, b+24), (0, hx), (0, b+16)):
        if pk:
            for i in range(4): o.append(f" v_pk_add_f32 {vr(b+x+2*i,2)}, {vr(b+x+2*i,2)}, {vr(y+2*i,2)}")
        else:
            for i in range(8): o.append(f" v_add_f32 v{b+x+i}, v{b+x+i}, v{y+i}")
    for i in range(4): o.append(f" v_cvt_pk_bf16_f32 v{b+16+i}, v{b+2*i}, v{b+2*i+1}")
    o.append(f" buffer_store_dwordx4 {vr(b+16,4)}, v{vOUT}, {srd('OUT')}, {sO0 if ups == 0 else sO1} offen {fl}")
    return o
def gemm2(P, cfg):
    order = [(0, i) for i in range(7)] + [(1, i) for i in range(7)]
    MB = cfg["wd_big"]
    issued = order[:7]
    sched = cfg["b1_at"]
    def chk(pos):
        u, i = order[pos]
        later = []
        for x in order[pos+1:]:
            if x in issued and x[0] == u: later += hh_loads(*x)
        return [f"WAIT:hh{u}_{i}"] + retry_check(P, hashchain(HREG[(u,i)], CHH[(u,i)]), hh_loads(u, i), later, f"hh{u}_{i}", cfg["bo"])
    bigrd = []
    if MB < 56:
        P([f" s_sub_u32 s3, {sBIG}, {sRING}", f" v_add_u32 v{vWr[0]}, s3, v{vWr[0]}", f" v_add_u32 v{vWr[1]}, s3, v{vWr[1]}"])
        for m in range(MB, 56): bigrd += wd_read(m, m - MB)
    P(chk(0))
    hres = [f" buffer_load_dwordx4 {vr(vE,4)}, v{vOUT}, {WS}, {sHR0} offen sc1", f" buffer_load_dwordx4 {vr(vE+4,4)}, v{vOUT}, {WS}, {sHR1} offen sc1", "MARK:hres"]
    flag = [f" buffer_load_dword v3, v1, {WS}, {sFLld} offen sc1"]
    T0 = 112; HX = 16
    for pos, (u, i) in enumerate(order):
        fill = []
        h1 = poll(vPD, vPH, sPH1)
        p1st = min(sched)
        if pos == p1st - cfg["h1_lead"] and cfg["hh1"]: fill += [h1, "MARK:ph1"]
        if pos == p1st:
            if cfg["hh1"]: fill += ["WAIT:ph1"] + retry_check(P, pollcmp(vPD, 0x7f), [h1], [], "ph1", cfg["hbo"])
            else:
                P.tail += hint_spin("ip1", sPH1, "L_ip1b") + [" s_branch L_ip1b"]
                fill += [f" s_cmp_ge_u32 {sJL}, 7\n s_cbranch_scc1 L_ip1\nL_ip1b:"]
        for gi in sched.get(pos, []):
            x = (1, gi)
            prev = [y for y in order[:order.index(x)] if HREG[y] == HREG[x]]
            assert all(order.index(y) < pos for y in prev), x
            fill += hh_loads(*x) + [f"MARK:hh{x[0]}_{x[1]}"]; issued.append(x)
        if pos < 3:
            for x in take(P.big, cfg["big_per"]): fill += x.split("\n")
        if pos == cfg["hres_at"]: fill += ["WAIT:flag"] + retry_check(P, pollcmp(3, 3), FLAGLD[2:], [], "flag", cfg["bo"]) + HRESLD
        if pos == MB//8 - 1:
            assert not P.big
            fill += bigrd + [" s_waitcnt lgkmcnt(0)"]
        if pos == 7: fill += red_consts() + [" s_barrier"]
        if pos == 8: fill += red_write(0)
        if pos == 9: fill += [" s_waitcnt lgkmcnt(0)", " s_barrier"] + red_read(0, T0)
        if pos == 11:
            fill += ["WAIT:hres"]
            for k in range(8): fill += unpack(HX+2*k, vE+k)
            fill += [" s_waitcnt lgkmcnt(0)"]
        if pos == 12: fill += red_fin(0, T0, HX, False, cfg["outf"])[:24]
        if pos == 13: fill += red_fin(0, T0, HX, False, cfg["outf"])[24:]
        assert MB >= 32
        late = chk(pos+1) if pos+1 < len(order) else []
        n = 0
        for t in range(4):
            for tau in range(2):
                a = acc2+32*u+16*tau
                P(f" v_mfma_f32_32x32x16_bf16 {vr(a,16)}, {ar(((i*4+t)*2+tau)*4,4)}, {vr(HREG[(u,i)]+4*t,4)}, {'0' if (i == 0 and t == 0) else vr(a,16)}")
                n += 1
                if n <= 5:
                    b = 5; nv = 0
                    while fill and b > 0:
                        if fill[0].lstrip().startswith("buffer_"):
                            if nv >= cfg["v2"]: break
                            nv += 1
                        b -= P.cost(fill[0]); P(fill.pop(0))
                else:
                    P(take(fill, 99)); P(take(late, 5))
        P(late)
        if pos == 6: P.st("b0")
    P.st("g2")
    P(red_write(1))
    P(" s_waitcnt lgkmcnt(0)\n s_barrier")
    P(red_read(1, 144))
    P(" s_waitcnt lgkmcnt(0)")
    P(red_fin(1, 144, HX+8, True, cfg["outf"]))

def build(cfg, stamps=False):
    P = G(stamps); P.cfg = cfg; WARM[0] = cfg['warm']
    if cfg.get("dbg"): P.only = cfg["dbg"].split(",")
    entry(P, cfg)
    setupB = a_consts() + roles()
    P(take(setupB, cfg["nsetB"]))
    if cfg["f_at"] == 0: P(filter_dma(cfg))
    else: P(f""" v_and_b32 v4, 79, v0
 v_lshrrev_b32 v5, 2, v4
 v_and_or_b32 v4, v5, 16, v4
 v_and_b32 v4, 31, v4
 v_lshlrev_b32 v4, 7, v4
 buffer_load_dword v{vDUM}, v4, {srd('SSMK')}, {sF0} offen {cfg['fnt']}""")
    if cfg["x_at"] == 0: P(x_loads())
    if cfg["wt"] == 0: P(w_touch(cfg["wtnt"], cfg["wth"]))
    if cfg["wdc_at"] == -1: P(wd_consts(cfg['a8']))
    P(tag_setup())
    raw = []
    for m in range(cfg["nraw"]): raw += wd_raw(m)
    P.st("pre")
    P.vmwait("L1")
    P.st("L1")
    p0_kv(P)
    P.st("kvst")
    if cfg["f_at"] == 1:
        if cfg["kbar"]: P(" s_barrier")
        P(filter_dma(dict(fnt=cfg["fnt2"])))
    P(take(raw, 2*cfg["raw0"]))
    if cfg["wdm"] == 1: P(wd_mall())
    if cfg["wt"] == 1: P(w_touch(cfg["wtnt"], cfg["wth"]))
    if cfg["x_at"] == 1: P(x_loads())
    P(setupB)
    late = conv_setup() + h1_addr()
    if cfg["f_at"] == 1: P(late + w_table()); late = []
    if cfg["wdc_at"] == 0: P(wd_consts(cfg['a8']))
    P.vmwait("A")
    P(" s_barrier")
    P.st("bar")
    if late: P(late + w_table())
    ap = a_prep(cfg['lazy']) + (wd_consts(cfg['a8']) if cfg["wdc_at"] == 1 else [])
    if cfg["can1"]: P(canary_issue(cfg, 64*OB))
    P(take(ap, cfg["ap_pre"]))
    if cfg["can1"]: P(canary_check(P, "c1", cfg["cbo"]))
    P.st("aprep")
    ng = cfg["g1"]
    early = []
    for i in range(ng): early += w_pair(i, cfg["wnt"])[:2]
    early += take(raw, 2*cfg["raw1"])
    box_recv(P, vIN, "h1", cfg["bo"], ([" s_barrier"] + early if ng else []) + ap)
    kv_to_lds(P)
    P.st("h1")
    if cfg["im"]:
        o, n = idle_mall("im", cfg["im"]); P(o); P.nvm -= n
    wq = []
    for i in range(cfg.get("nw", 16)):
        p = w_pair(i, cfg["wnt"])
        if i < ng: wq += [p[0] + "\n" + p[2], p[3]]
        else: wq += p
    if cfg["x_at"] == 2: P(x_loads())
    if cfg["wdm"] == 2: P(wd_mall())
    nraw = cfg["nraw"]
    if nraw:
        nwc = 2*cfg["wsched"][0][1]
        raw2 = raw[2*cfg["raw_c"]:]; raw = raw[:2*cfg["raw_c"]]
        wq = wq[:nwc] + raw + wq[nwc:]
    conv_mfma(P, wq, cfg["wsched"])
    assert not any("a[" in x for x in wq)
    print("W ops left after conv:", len(wq)//2)
    P.st("mfma")
    conv_epilogue(P)
    P.mark("YST")
    P.st("yst")
    P(" s_barrier")
    if cfg["wdc_at"] == 2: P(wd_consts(cfg['a8']))
    nd = cfg["wd_pre"]
    wl = wq[2*cfg["w3"]:]; wq = wq[:2*cfg["w3"]]
    n3 = cfg["wd3"]
    b3 = ["\n".join(wd_dma(m)) for m in range(n3)] + wq
    if nraw: P.mark("RAWC"); P(raw2); P.mark("RAW")
    if cfg["wdm"] == 3: P(wd_mall())
    P.vmwait("X")
    interleave(P, stat_consts() + ln1(), b3, cfg["w3_every"])
    P(b3)
    gs = g_sconsts(56 - cfg["wd_big"])
    P(h2_consts())
    if cfg.get("dly2"): P(f" s_sleep {cfg['dly2']}")
    if cfg["can2"]: P(canary_issue(cfg, OB))
    P(wd_rconsts(48))
    nb1 = cfg["nb1"] if nraw else 0
    if nb1:
        P([f" v_add_u32 v48, {sRING}, v6"])
        P.marks["RB"] = P.marks["YST"] - 4 if 2*nb1 <= cfg["raw_c"] + cfg["raw0"] + cfg["raw1"] else P.marks["RAW"]
        P.vmwait("RB")
        for u in range(nb1): P(bounce(u, 48))
    P.st("ln1")
    anyw = True
    q4 = take(wl, 2*cfg["w4"])
    box_recv(P, vY, "h2", cfg["bo"], [" s_barrier"] + q4 if q4 else None)
    P.st("h2")
    ln2(P, take(wl, 2*cfg["w5"]), cfg["w5_every"])
    if cfg["h_early"]: P(HST)
    P.st("hnst")
    if cfg["warm"]:
        P([f" s_cmp_lt_u32 {sJL}, 7", " s_cbranch_scc1 L_nowarm"] + ([] if cfg["h_early"] else HST[:2]) + warm_ops(0, cfg["mw_at"]) + idle_mall("x", 8)[0][2:-1] + warm_ops(cfg["mw_at"], cfg["nwarm"]) + ["L_nowarm:"]); P.nvm -= (2 if cfg["h_early"] else 4) + cfg["nwarm"]
    d = n3
    for m in range(d): P(wd_read(m))
    rd = d
    if nraw:
        assert n3 == 0 and nd == 0
        d = rd = nraw
        for m in range(nraw): P.dmarks[f"wd{m}"] = 0
    if cfg["wd_first"]:
        while d < nd: P(wd_dma(d)); d += 1
    P(wl); P.mark("WALL")
    while d < nd: P(wd_dma(d)); d += 1
    post = g_vconsts() + gs
    P(take(post, cfg["hn_hint_at"]))
    if cfg["hnh"]:
        P(f""" s_lshl_b32 {sF0}, {sG}, 2
 s_add_u32 {sF0}, {sF0}, {sW}
 s_lshl_b32 {sF0}, {sF0}, 14
 s_bfe_u32 s30, s2, 0x20001
 s_lshl_b32 s30, s30, 7
 s_add_u32 {sF0}, {sF0}, s30
 s_add_u32 {sF0}, {sF0}, {HI}
 v_and_b32 v221, {cfg['hn_nh']-1}, v0
 v_lshlrev_b32 v221, 9, v221
 buffer_load_dword v{vPD}, v221, {WS}, {sF0} offen sc1
MARK:phn""")
    P(post)
    if nraw:
        P([f" v_add_u32 v4, {sRING}, v6", "WAIT:RAW"])
        for u in range(nb1, nraw//2): P(bounce(u, 4))
        P(" s_waitcnt lgkmcnt(0)")
    P(f"""
 s_or_b32 s3, s2, {sW}
 s_cmp_lg_u32 s3, 0
 s_cbranch_scc1 L_notag
 v_lshlrev_b32 v4, 21, v6
 buffer_store_dword v{vTG}, v4, {WS}, 0 offen sc1
L_notag:
""")
    P.nvm -= 1
    if cfg.get("dly3"): P(f" s_sleep {cfg['dly3']}")
    if anyw: P("WAIT:WALL\n s_barrier")
    P.st("g1go")
    P(f" s_cmp_ge_u32 {sJL}, 7\n s_cbranch_scc1 L_idle")
    save = (P.nvm, P.nds, P.vmdone, P.dsdone, dict(P.marks), dict(P.dmarks))
    MB = cfg["wd_big"]
    if cfg.get("nowd"): cfg["wd_big"] = MB = 56; d = rd = 56
    gemm1(P, cfg, wd_stream(d, rd, MB))
    P(" s_waitcnt lgkmcnt(0)\nL_join:")
    gemm2(P, cfg)
    if stamps:
        P(" s_waitcnt vmcnt(0)"); P.st("end")
        P(f" v_writelane_b32 v11, {sSPIN}, 63\n s_lshl_b32 s3, s2, 10\n s_add_u32 s3, s3, {STAMPS}\n v_lshlrev_b32 v1, 2, v0\n buffer_store_dword v11, v1, {WS}, s3 offen")
    P("L_end:\n s_endpgm")
    P.nvm, P.nds, P.vmdone, P.dsdone, P.marks, P.dmarks = save
    P("L_idle:")
    if cfg["warm"]: P([" s_waitcnt vmcnt(0)", FLAGST])
    else: P(([] if cfg["h_early"] else HST) + ["WAIT:HST", FLAGST])
    P(wd_stream(d, rd, MB))
    for m in range(MB, min(56, MB + cfg["big_pre"])): P(wd_dma(m, sBIG, m - MB))
    for nm in ("hint","hn0","p0","e0","p1","epi"): P.st(nm)
    P(hint_spin("ip0", sPH0, "L_ip0b") + ["L_ip0b:"])
    for i in range(7): P(hh_loads(0, i))
    P(FLAGLD)
    P(" s_waitcnt vmcnt(0) lgkmcnt(0)")
    P.st("ld0")
    P(" s_branch L_join")
    P(P.tail)
    P("L_codeend:")
    if os.environ.get("STAMP") == "2": P.lines = [l.replace("s_memrealtime", "s_memtime") for l in P.lines]
    body = P.fix()
    head = open("sequential_preLN__ssm_conv_h3__glu_gated_glu__prompt.s.ref").read().split("; Override launch")[0]
    out = head + f"; @launch grid=(256,1,1) block=(256,1,1) lds={LDS_BYTES}\n"
    out += f'.amdgcn_target "amdgcn-amd-amdhsa--gfx950"\n.text\n.globl {NAME}\n.p2align 8\n.type {NAME},@function\n{NAME}:\n' + body
    out += f""" s_endpgm
.section .rodata,"a"
.p2align 6
.amdhsa_kernel {NAME}
  .amdhsa_next_free_vgpr 512
  .amdhsa_next_free_sgpr 102
  .amdhsa_accum_offset 256
  .amdhsa_group_segment_fixed_size 0
  .amdhsa_kernarg_size 104
  .amdhsa_user_sgpr_count 2
  .amdhsa_user_sgpr_kernarg_segment_ptr 1
  .amdhsa_system_sgpr_workgroup_id_x 1
.end_amdhsa_kernel
"""
    if cfg.get("probe"):
        idx = P.stn.index(cfg["probe"])
        Q = G()
        Q(f"""
 s_cmp_ge_u32 s2, 1
 s_cbranch_scc1 L_pend
 s_load_dwordx2 s[48:49], s[0:1], 96
 s_mov_b32 s50, {WS_BYTES}
 s_mov_b32 s51, 0x20000
 v_lshlrev_b32 v1, 8, v0
 v_mov_b32 v2, 0
 s_waitcnt lgkmcnt(0)
 s_mov_b32 s3, {STAMPS}
 buffer_load_dword v3, v2, s[48:51], s3 offen
 v_mov_b32 v4, 0x7fffffff
 v_mov_b32 v5, {0 if cfg.get('pmean') else 0x80000000}
 s_mov_b32 s4, {16 if (cfg['probe'] == 'end' and not cfg.get('pmean')) else 14}
L_pl:
 buffer_load_dword v6, v1, s[48:51], s3 offen
 buffer_load_dword v7, v1, s[48:51], s3 offen offset:{4*idx}
 s_waitcnt vmcnt(0)
 v_sub_u32 v6, v6, v3
 v_sub_u32 v7, v7, v3
 v_min_i32 v4, v4, v6
 {'v_add_u32' if cfg.get('pmean') else 'v_max_i32'} v5, v5, v7
 s_add_u32 s3, s3, 16384
 s_sub_u32 s4, s4, 1
 s_cmp_lg_u32 s4, 0
 s_cbranch_scc1 L_pl
 s_mov_b32 s5, 0x7fffffff
 s_mov_b32 s6, {0 if cfg.get('pmean') else 0x80000000}
 s_mov_b32 s4, 0
L_pr:
 v_readlane_b32 s7, v4, s4
 v_readlane_b32 s8, v5, s4
 s_nop 1
 s_min_i32 s5, s5, s7
 {'s_add_u32' if cfg.get('pmean') else 's_max_i32'} s6, s6, s8
 s_add_u32 s4, s4, 1
 s_cmp_lg_u32 s4, 64
 s_cbranch_scc1 L_pr
 {'s_mul_hi_u32 s6, s6, 4793490' if cfg.get('pmean') else 's_nop 0'}
 s_sub_u32 s6, s6, s5
 s_min_u32 s6, s6, 10000
 s_mul_i32 s6, s6, {cfg.get('pmul', 10)}
 s_memrealtime s[10:11]
 s_waitcnt lgkmcnt(0)
L_ps:
 s_memrealtime s[12:13]
 s_waitcnt lgkmcnt(0)
 s_sub_u32 s7, s12, s10
 s_cmp_lt_u32 s7, s6
 s_cbranch_scc1 L_ps
L_pend:
 s_endpgm
""")
        out = out.replace(f"; @launch grid=(256,1,1) block=(256,1,1) lds={LDS_BYTES}\n", f"; @launch kernel={NAME} grid=(256,1,1) block=(256,1,1) lds={LDS_BYTES}\n; @launch kernel=probe_kernel grid=(1,1,1) block=(64,1,1) lds=0\n")
        out = out.replace('.section .rodata,"a"', '.globl probe_kernel\n.p2align 8\n.type probe_kernel,@function\nprobe_kernel:\n' + Q.fix() + '.section .rodata,"a"')
        kd = out[out.index(".p2align 6\n.amdhsa_kernel"):]
        out += kd.replace(NAME, "probe_kernel").replace("vgpr 512", "vgpr 16").replace("offset 256", "offset 16")
    return out, P
CFG = dict(raw0=0, raw1=0, nraw=8, raw_c=8, nb1=4, h_early=1, pre_late=0, big_per=6, v2=2, g1=4, w4=10, mw_at=4, nwarm=6, warm=0, lazy=1, vgap=1, wt=9, wtnt="", wth=0, a8=0, can1=0, can2=0, cmask=0x00010001, cbo=6, hnh=0, hn_nh=16, hn_hint_at=999, hbo=8, ap_pre=10, wsched=[(1,4,1),(30,8,5)],
           f_at=1, kbar=1, fnt2="", pf_after="SHK", nsetB=47, fnt="nt", x_at=0, wdm=0, wdc_at=0, bo=8, wnt="", w3=0, w3_every=4, wd3=0, wd_pre=0, wd_first=1, im=0,
           w5=0, w5_every=2, wd_rate=(0.8,0.9), wd_big=44, slots=(6,6), big_pre=0, big_every=8, outf="", dly3=0, dly2=0, hold=1,
           e0_exp=4, hhh=1, h0_k=12, hh_at={17:0, 20:1, 23:2, 26:3, 29:4}, hh1=0, h1_lead=2, b1_at={6:[0,1],7:[2,3],8:[4],9:[5],10:[6]}, hres_at=0)
if __name__ == "__main__":
    cfg = dict(CFG)
    for a in sys.argv[2:]:
        k, v = a.split("=", 1); cfg[k] = eval(v)
    out, P = build(cfg, bool(os.environ.get("STAMP")))
    open(sys.argv[1], "w").write(out)
    if os.environ.get("STAMP"): open(sys.argv[1] + ".names", "w").write(" ".join(P.stn))
    print("lines", len(P.lines), "nops", P.nops)
```

```python
import sys, os, re
sys.path.insert(0, "gen")
from asmlib import Prog

NAME = "sequential_preLN__ssm_conv_h3__glu_gated_glu__prompt_kernel"
TAGSLOT = 0
HC    = 0x080000
FL    = 0x0C0000
HI    = 0x1580000
OB    = 16640
KVBOX = 0x100000
YBOX  = 0x520000
HN    = 0x940000
HRES  = 0xB40000
HH    = 0xD40000
GS    = 4480
STAMPS = 0x1600000
WS_BYTES = 0x1700000
SRD = dict(X=8, K=12, V=16, SHK=20, SSMK=24, SSMD=28, WG=32, WU=36, WD=40, OUT=44, WS=48)
KOFF = dict(X=0, K=8, V=16, SHK=24, SSMK=32, SSMD=40, WG=56, WU=64, WD=72, OUT=80, WS=96)
SIZE = dict(X=2097152, K=2097152, V=2097152, SHK=4096, SSMK=2097152, SSMD=1024, WG=1835008, WU=1835008, WD=1835008, OUT=2097152, WS=WS_BYTES)
def srd(n): return f"s[{SRD[n]}:{SRD[n]+3}]"
WS = srd("WS")
sHNst, sWM, sBIG, sRING, sW, sFLst, sFLld, sG, sJ, sTAG, sLO, sHI, sMASK, sHRES, sT = [f"s{i}" for i in range(52, 67)]
sJL, sO0, sO1, sHS0, sHS1, sSB, sHCst, sE, sSPIN, sHR0, sHR1, sPH1, sL3 = [f"s{i}" for i in range(67, 80)]
sWD = 80
sHC = 87
sPH0, sP, sF0 = "s95", "s96", "s97"
sC = sP
sWT = 12
sHL = 8
sHN = 22
def vr(b, n): return f"v[{b}:{b+n-1}]" if n > 1 else f"v{b}"
def ar(b, n): return f"a[{b}:{b+n-1}]" if n > 1 else f"a{b}"
def L(text): return [l for l in text.split("\n") if l.strip()]
def take(l, n):
    o = l[:n]; del l[:n]; return o

WGB, WUB = 0, 65536
PART = 131072; FC = 96256; CS2 = 4352
KVR = 131072; KVCH = 4608
RING = 131072; NR = 7
STAT = 163840 - 512
BS = 1088; REDW = 16*BS
LDS_BYTES = 163840
SPIN = 20000

class G(Prog):
    def __init__(self, stamps=False):
        super().__init__(); self.nvm = 0; self.nds = 0; self.vmdone = 0; self.dsdone = 0
        self.marks = {}; self.dmarks = {}; self.stamps = stamps; self.tail = []; self.only = None; self.stn = ["start"]
    def __call__(self, text):
        if isinstance(text, list):
            for t in text: self(t)
            return
        for l in text.split("\n"):
            s = l.strip()
            if not s: continue
            if s.startswith("WAIT:"): self.vmwait(s[5:]); continue
            if s.startswith("MARK:"): self.mark(s[5:]); continue
            if s.startswith("DWAIT:"): self.dwait(s[6:]); continue
            if s.startswith("DMARK:"): self.dmarks[s[6:]] = self.nds; continue
            if s == "SKIP": continue
            if s.startswith(("buffer_", "global_")): self.nvm += 1
            if s.startswith("ds_"): self.nds += 1
            if s.startswith("s_waitcnt"):
                m = re.search(r"vmcnt\((\d+)\)", s)
                if m: self.vmdone = max(self.vmdone, self.nvm - int(m.group(1)))
                m = re.search(r"lgkmcnt\((\d+)\)", s)
                if m: self.dsdone = max(self.dsdone, self.nds - int(m.group(1)))
            self.lines.append(l.rstrip())
    def mark(self, name): self.marks[name] = self.nvm
    def vmwait(self, name):
        if self.vmdone < self.marks[name]: self(f" s_waitcnt vmcnt({min(self.nvm - self.marks[name], 63)})")
    def dwait(self, name):
        if self.dsdone < self.dmarks[name]: self(f" s_waitcnt lgkmcnt({min(self.nds - self.dmarks[name], 15)})")
    def cost(self, s):
        t = s.strip()
        if t.startswith(("MARK:", "DMARK:")): return 0
        if t.startswith("WAIT:"): return 0 if self.vmdone >= self.marks[t[5:]] else 1
        if t.startswith("DWAIT:"): return 0 if self.dsdone >= self.dmarks[t[6:]] else 1
        if t == "SKIP": return 3
        if t.startswith(("v_exp", "v_rcp")): return 2
        return 1
    def st(self, i):
        if self.stamps and (self.only is None or i in self.only):
            if i not in self.stn: self.stn.append(i)
            self.lines += [" s_memrealtime s[98:99]", " s_waitcnt lgkmcnt(0)", f" v_writelane_b32 v11, s98, {self.stn.index(i)}", f" v_writelane_b32 v11, {sSPIN}, {32+self.stn.index(i)}"]
def interleave(P, work, bulk, every):
    n = 0
    for wk in work:
        P(wk); n += 1
        if bulk and n % every == 0: P(bulk.pop(0))

vK, vW, vV, vKS, vT = 144, 164, 180, 188, 204
vD, vQ, vX = 220, 224, 240
vBB = [8, 10, 248, 249]
vSW, vDUM, vR, vWD = 250, 251, 252, 254
vWr = (8, 255)
vA, vAx, vB, vIN, aC = 16, 208, 144, 160, 224
vSEL = 216
vq, vu1 = 208, 224
vONE, vTG, vC, vHC, vHC1, vPH, vHASH, vL2, vOUT, vPD, vHP = 7, 10, 2, 252, 253, 220, 222, 223, 9, 5, 224
vHN, vRa = 16, 12
acc0, acc1, acc2, vE = 80, 144, 16, 240
CHN = [208, 209, 210, 211]
CHH = {(0,i): 212+i for i in range(7)}
CHH.update({(1,0):208,(1,1):209,(1,2):210,(1,3):211,(1,4):219,(1,5):221,(1,6):212})
HREG = {(0,0):224, (0,1):80, (0,2):96, (0,3):112, (0,4):128, (0,5):48, (0,6):64,
        (1,0):144, (1,1):160, (1,2):176, (1,3):192, (1,4):224, (1,5):80, (1,6):96}

def srdc(names): return [x for n in names for x in (f" s_mov_b32 s{SRD[n]+2}, {SIZE[n]}", f" s_mov_b32 s{SRD[n]+3}, 0x20000")]
def entry(P, cfg):
    P(" s_cmp_ge_u32 s2, 256\n s_cbranch_scc1 L_end")
    if P.stamps: P(" s_memrealtime s[98:99]")
    for n in ("K","V","SHK","WS","SSMK","X","SSMD","WD","WG","WU","OUT"):
        P(f" s_load_dwordx2 s[{SRD[n]}:{SRD[n]+1}], s[0:1], {KOFF[n]}")
        if n == cfg["pf_after"]:
            P(f"""
 s_getpc_b64 s[4:5]
L_pc:
 s_bfe_u32 s3, s2, 0x20003
 s_mul_i32 s3, s3, 12288
 v_lshlrev_b32 v4, 7, v0
 v_add_u32 v5, s3, v4
 v_cmp_gt_u32 vcc, 32, v0
 v_cndmask_b32 v4, v5, v4, vcc
 v_min_u32 v4, L_codeend-L_pc-4, v4
 v_cmp_gt_u32 vcc, 128, v0
 s_and_saveexec_b64 s[6:7], vcc
 s_cbranch_execz L_nopf
 global_load_dword v{vDUM}, v4, s[4:5]
L_nopf:
 s_mov_b64 exec, s[6:7]
""")
    P(f"""
 s_and_b32 s3, s2, 7
 s_lshl_b32 s3, s3, 5
 s_lshr_b32 {sP}, s2, 3
 s_or_b32 {sP}, {sP}, s3
 v_lshrrev_b32 v4, 6, v0
 v_and_b32 v1, 3, v0
 v_readfirstlane_b32 {sW}, v4
 v_lshrrev_b32 v2, 2, v0
 s_lshl_b32 s3, {sP}, 13
 v_lshlrev_b32 v3, 11, v1
 v_lshl_add_u32 v3, v2, 4, v3
 v_add_u32 v3, s3, v3
 v_subrev_u32 v4, 3072, v3
 v_subrev_u32 v5, 2048, v3
 v_subrev_u32 v8, 1024, v3
 v_lshlrev_b32 v9, 4, v0
""")
    P(srdc(("K","V","SHK")))
    pre2 = L(f"""
 v_and_b32 v6, 63, v0
 v_lshlrev_b32 v6, 4, v6
 s_lshl_b32 {sF0}, {sC}, 1
 s_lshr_b32 s7, {sW}, 1
 s_add_u32 {sF0}, {sF0}, s7
 s_lshl_b32 {sF0}, {sF0}, 12
 s_mul_i32 s7, {sW}, {2*CS2}
 s_add_u32 s7, s7, {FC}
 s_bitcmp1_b32 {sW}, 0
 s_cselect_b32 s3, 160, 0
 s_cselect_b32 {sBIG}, 32, 128
 s_cselect_b32 s5, 8, 0
 s_add_u32 s3, s3, s7
 s_add_u32 {sBIG}, {sBIG}, s7
 s_add_u32 {sBIG}, {sBIG}, {CS2}
 v_mov_b32 v12, 0
 v_and_b32 v14, 7, v0
 v_lshl_add_u32 v13, v14, 2, s3
 v_lshl_add_u32 v14, v14, 2, {sBIG}
 ds_write_b32 v13, v12
 ds_write_b32 v14, v12
 s_sub_u32 s3, s3, s5
 s_sub_u32 {sBIG}, {sBIG}, s5
 s_add_u32 m0, s3, 32
 s_mul_i32 s4, {sP}, {OB}
 s_add_u32 s4, s4, {KVBOX}
 s_add_u32 s5, s4, 4096
 s_add_u32 s6, s4, 8192
 s_add_u32 s7, s4, 12288
 s_mov_b32 {sLO}, 0x05040100
 s_mov_b32 {sHI}, 0x07060302
 s_mov_b32 {sMASK}, 0xffff0000
 s_mov_b32 {sSPIN}, {SPIN}
 v_lshlrev_b32 v7, 4, v2""") + srdc(("SSMK","WS","X","SSMD","WD")) + [f" v_mov_b32 v{vKS+i}, 0" for i in range(16)]
    P(pre2)
    if P.stamps: P(" v_mov_b32 v11, 0\n s_waitcnt lgkmcnt(0)\n v_writelane_b32 v11, s98, 0"); P.st("karg")
    P(f"""
 s_waitcnt lgkmcnt(0)
 buffer_load_dwordx4 {vr(vK,4)}, v4, {srd('K')}, 0 offen nt
 buffer_load_dwordx4 {vr(vK+4,4)}, v5, {srd('K')}, 0 offen nt
 buffer_load_dwordx4 {vr(vK+8,4)}, v8, {srd('K')}, 0 offen nt
 buffer_load_dwordx4 {vr(vK+12,4)}, v3, {srd('K')}, 0 offen nt
 buffer_load_dwordx4 {vr(vK+16,4)}, v3, {srd('K')}, 0 offen offset:1024 nt
 buffer_load_dwordx4 {vr(vV,4)}, v3, {srd('V')}, 0 offen nt
 buffer_load_dwordx4 {vr(vV+4,4)}, v3, {srd('V')}, 0 offen offset:1024 nt
 buffer_load_dwordx4 {vr(vW,4)}, v9, {srd('SHK')}, 0 offen
MARK:L1
 s_load_dword {sTAG}, s[{SRD['WS']}:{SRD['WS']+1}], {TAGSLOT}
""")
def filter_dma(cfg):
    nt = cfg["fnt"]
    o = [f" buffer_load_dwordx4 v6, {srd('SSMK')}, {sF0} offen offset:{1024*i} {nt} lds" for i in range(4)]
    o.append(f" s_add_u32 m0, {sBIG}, 28")
    o += [f" buffer_load_dwordx4 v6, {srd('SSMK')}, {sF0} offen offset:{1024*i} {nt} lds" for i in range(4)]
    return o + ["MARK:A"]
def x_loads():
    return [f" buffer_load_dwordx4 {vr(vX,4)}, v3, {srd('X')}, 0 offen nt",
            f" buffer_load_dwordx4 {vr(vX+4,4)}, v3, {srd('X')}, 0 offen offset:1024 nt",
            f" buffer_load_dwordx4 {vr(vD,4)}, v7, {srd('SSMD')}, 0 offen", "MARK:X"]
def tag_setup():
    return [" s_waitcnt lgkmcnt(0)", f" s_add_u32 {sTAG}, {sTAG}, 0x9E3779B1"] + [f" v_mov_b32 v{vQ+2*t+1}, {sTAG}" for t in range(8)]
def p0_kv(P):
    Krow = lambda i, d: vK + 4*i + d
    prs = [(3,2),(1,0),(4,3),(2,1)]
    for t in range(4):
        T = vT + 8*(t & 1)
        for c in range(2):
            for n,(x,y) in enumerate(prs):
                P(f" v_perm_b32 v{T+4*c+n}, v{Krow(y,t)}, v{Krow(x,t)}, {sHI if c else sLO}")
        ks = vKS + 4*t
        qp = f"quad_perm:[{t},{t},{t},{t}] row_mask:0xf bank_mask:0xf"
        for hi in (1, 0):
            for c in range(2):
                P(f" v_dot2c_f32_bf16_dpp v{ks+c}, v{vW+2*c+hi}, v{T+4*c+hi} {qp}")
                P(f" v_dot2c_f32_bf16_dpp v{ks+2+c}, v{vW+2*c+hi}, v{T+4*c+2+hi} {qp}")
        P(f""" v_lshlrev_b32 v{T}, 16, v{vV+t}
 v_and_b32 v{T+1}, {sMASK}, v{vV+t}
 v_lshlrev_b32 v{T+2}, 16, v{vV+4+t}
 v_and_b32 v{T+3}, {sMASK}, v{vV+4+t}
 v_pk_mul_f32 {vr(ks,2)}, {vr(ks,2)}, {vr(T,2)}
 v_pk_mul_f32 {vr(ks+2,2)}, {vr(ks+2,2)}, {vr(T+2,2)}
 v_cvt_pk_bf16_f32 v{vQ+4*t}, v{ks}, v{ks+1}
 v_cvt_pk_bf16_f32 v{vQ+4*t+2}, v{ks+2}, v{ks+3}
 buffer_store_dwordx4 {vr(vQ+4*t,4)}, v9, {WS}, s{4+t} offen sc1""")
def wd_mall():
    return L(f""" s_lshl_b32 s100, s2, 2
 s_add_u32 s100, s100, {sW}
 s_mul_i32 s100, s100, 1792
 v_lshlrev_b32 v4, 3, v6
 v_min_u32 v4, {13*128}, v4
 buffer_load_dword v{vDUM}, v4, {srd('WD')}, s100 offen""")
def idle_mall(name, nx):
    per = 112*(8//nx)
    o = L(f""" s_cmp_lt_u32 {sJL}, 7
 s_cbranch_scc1 L_{name}
 s_and_b32 s100, s2, {nx-1}
 s_lshl_b32 s100, s100, 2
 s_add_u32 s100, s100, {sL3}
 s_lshl_b32 s100, s100, 2
 s_add_u32 s100, s100, {sW}
 s_mul_i32 s100, s100, {per*128}
 v_lshlrev_b32 v4, 3, v6
 v_min_u32 v4, {55*128}, v4""")
    for i in range(per//56): o += [f" buffer_load_dword v{vDUM}, v4, {srd('WD')}, s100 offen", f" s_add_u32 s100, s100, {56*128}"]
    return o + [f"L_{name}:"], per//56
def w_touch(nt, half):
    o = L(f""" s_lshl_b32 s100, {sL3}, 7
 s_and_b32 s3, s2, 1
 s_lshl_b32 s3, s3, 6
 s_add_u32 s100, s100, s3
 s_lshl_b32 s3, {sW}, {4 if half else 5}
 s_add_u32 s100, s100, s3
 v_and_b32 v4, {15 if half else 31}, v0
 v_add_u32 v4, s100, v4
 v_and_b32 v4, 511, v4
 v_mul_u32_u24 v4, 3584, v4
 s_lshl_b32 s100, {sJ}, 7
 buffer_load_dword v{vDUM}, v4, {srd('WG')}, s100 offen {nt}
 buffer_load_dword v{vDUM}, v4, {srd('WU')}, s100 offen {nt}""")
    return o
def a_consts():
    return L(f"""
 v_and_b32 v4, 15, v0
 v_add_u32 v4, 1, v4
 v_bfe_u32 v15, v4, 1, 2
 v_lshlrev_b32 v12, 3, v15
 s_mov_b32 s3, 0x020A0800
 v_bfe_u32 v12, s3, v12, 8
 v_mul_u32_u24 v15, {CS2}, v15
 v_lshrrev_b32 v4, 3, v4
 v_add_u32 v4, v4, v12
 v_lshl_add_u32 v15, v4, 4, v15
 v_bfe_u32 v4, v0, 4, 3
 v_lshl_add_u32 v15, v4, 6, v15
 s_lshr_b32 s3, {sW}, 1
 s_mul_i32 s3, s3, {4*CS2}
 s_add_u32 s3, s3, {FC}
 v_add_u32 v15, s3, v15
 v_and_b32 v12, 1, v0
 v_mul_u32_u24 v12, 0x020202, v12
 v_lshl_or_b32 v12, v12, 8, v12
 v_sub_u32 v12, 0x05040302, v12""")
def a_perm(a, i):
    nxt = vA+16*a+i+1 if i < 15 else vAx+a
    return f" v_perm_b32 v{vA+16*a+i}, v{nxt}, v{vA+16*a+i}, v{vSEL}"
def a_prep(lazy):
    def rd(a): return [f" ds_read_b128 {vr(vA+16*a+4*bb,4)}, v15 offset:{512*a+16*bb}" for bb in range(4)] + [f" ds_read_b32 v{vAx+a}, v15 offset:{512*a+64}", f"DMARK:a{a}"]
    o = [f" v_mov_b32 v{vSEL}, v12"] + rd(0) + rd(1)
    for a in range(8):
        if a+2 < 8: o += rd(a+2)
        o.append(f"DWAIT:a{a}")
        for i in range(4*lazy): o.append(a_perm(a, i))
    return o
def roles():
    t = 168
    o = L(f"""
 s_bfe_u32 {sL3}, s2, 0x20003
 s_lshr_b32 {sJL}, s2, 5
 s_and_b32 s3, s2, 1
 s_lshl_b32 s3, s3, 2
 s_add_u32 {sG}, s3, {sL3}
 s_bfe_u32 s3, s2, 0x20001
 s_mul_i32 s3, s3, 7
 s_add_u32 {sJ}, s3, {sJL}
 s_cmp_ge_u32 {sJL}, 7
 s_cselect_b32 s{SRD['WG']+2}, 0, {SIZE['WG']}
 s_mov_b32 s{SRD['WG']+3}, 0x20000
 s_mov_b32 s{SRD['WU']+2}, s{SRD['WG']+2}
 s_mov_b32 s{SRD['WU']+3}, 0x20000
 v_bfe_u32 v{t+1}, v0, 3, 3
 v_and_b32 v{t+3}, 7, v0
 v_mul_u32_u24 v{t+2}, 3584, v{t+1}
 v_and_b32 v{t+4}, 2, v{t+1}
 v_xor_b32 v{t+5}, v{t+3}, v{t+4}
 s_lshl_b32 s3, {sJ}, 7
 v_add_u32 v{t+2}, s3, v{t+2}
 v_lshl_add_u32 v{vR}, v{t+5}, 4, v{t+2}
 v_xor_b32 v{t+5}, 4, v{t+5}
 v_lshl_add_u32 v{vR+1}, v{t+5}, 4, v{t+2}
 v_lshlrev_b32 v{t+4}, 1, v{t+4}
 v_xor_b32 v{t+3}, v{t+3}, v{t+4}
 v_lshlrev_b32 v{t+1}, 10, v{t+1}
 v_lshl_add_u32 v{vWD}, v{t+3}, 4, v{t+1}""")
    return o
def w_table():
    o = L(f""" s_lshl_b32 s100, {sL3}, 4
 s_and_b32 s3, s2, 1
 s_lshl_b32 s3, s3, 3
 s_add_u32 s100, s100, s3
 s_add_u32 s100, s100, {sW}
 s_lshl_b32 s3, {sJL}, 3
 s_sub_u32 {sWM}, s100, s3
 s_lshl_b32 {sWM}, {sWM}, 10""")
    for idx in range(16): o += [f" s_add_u32 s3, s100, {4*idx}", " s_and_b32 s3, s3, 63", f" s_mul_i32 s{sWT+idx}, s3, {8*3584}"]
    return o
def w_pair(idx, nt):
    return [f" s_add_u32 s101, {sWM}, {idx*4096}\n s_and_b32 m0, s101, 0xffff", f" buffer_load_dwordx4 v{vR}, {srd('WG')}, s{sWT+idx} offen {nt} lds",
            f" s_add_u32 m0, m0, 65536", f" buffer_load_dwordx4 v{vR+1}, {srd('WU')}, s{sWT+idx} offen {nt} lds"]
def conv_setup():
    t = 176
    o = L(f"""
 v_mov_b32 v{t}, 0
 v_and_b32 v13, 127, v0
 v_lshlrev_b32 v13, 2, v13
 v_lshrrev_b32 v14, 7, v0
 v_mul_u32_u24 v14, {KVCH}, v14
 s_mov_b32 s3, {KVR+4096}
 v_add3_u32 v13, v13, v14, s3
 ds_write_b32 v13, v{t}
 v_and_b32 v13, 15, v0
 v_lshlrev_b32 v13, 5, v13
 v_bfe_u32 v14, v0, 4, 3
 v_lshlrev_b32 v14, 6, v14
 v_sub_u32 v14, v14, v13
 v_add_u32 v14, 480, v14
 s_lshr_b32 s3, {sW}, 1
 s_mul_i32 s3, s3, {KVCH}
 s_add_u32 s3, s3, {KVR}""")
    for bb in range(4):
        o += L(f""" v_add_u32 v13, {16*bb}, v14
 v_lshrrev_b32 v{t+1}, 4, v13
 v_and_b32 v{t+1}, 16, v{t+1}
 v_xor_b32 v13, v13, v{t+1}
 v_add_u32 v{vBB[bb]}, s3, v13""")
    o += L(f"""
 v_lshlrev_b32 v13, 2, v0
 v_sub_u32 v13, 1020, v13
 v_lshrrev_b32 v{t+1}, 4, v13
 v_and_b32 v{t+1}, 16, v{t+1}
 v_xor_b32 v13, v13, v{t+1}
 v_add_u32 v13, {KVR}, v13
 v_mul_u32_u24 v14, {OB}, v2
 v_lshl_add_u32 v14, v1, 4, v14""")
    return o
def h1_addr():
    return L(f"""
 s_and_b32 s4, {sC}, 3
 s_lshl_b32 s4, s4, 12
 s_lshr_b32 s3, {sC}, 2
 s_lshl_b32 s3, s3, 6
 s_add_u32 s4, s4, s3
 s_add_u32 s4, s4, {KVBOX}
 s_add_u32 s5, s4, {64*OB}
 s_add_u32 s6, s4, {128*OB}
 s_add_u32 s7, s4, {192*OB}""")
def box_recv(P, base, name, sleep, shadow=None):
    lds = [f" buffer_load_dwordx4 {vr(base+4*i,4)}, v14, {WS}, s{4+i} offen sc1" for i in range(4)]
    P(lds); P.mark(name)
    if shadow: P(shadow)
    P.vmwait(name)
    P(f"L_{name}:")
    P(f" v_xor_b32 v4, {sTAG}, v{base+1}")
    for i in range(1, 8): P(f" v_bitop3_b32 v4, v4, v{base+2*i+1}, {sTAG} bitop3:0xf6")
    P(f" v_cmp_ne_u32 vcc, 0, v4\n s_cbranch_vccnz L_{name}_r\nL_{name}_ok:\n s_mov_b64 exec, -1")
    P.tail += L(f"""L_{name}_r:
 s_mov_b64 exec, vcc
 s_sleep {sleep}""") + lds + L(f""" s_waitcnt vmcnt(0)
 s_sub_u32 {sSPIN}, {sSPIN}, 1
 s_cbranch_scc0 L_{name}
 s_mov_b32 {sSPIN}, 0
 s_branch L_{name}_ok""")
def canary_issue(cfg, stride):
    m = cfg["cmask"]
    return L(f"""
 s_bfe_u32 {sT}, {sP}, 0x20003
 s_mul_i32 {sT}, {sT}, {stride}
 s_add_u32 {sT}, {sT}, s4
 s_bfe_u32 s3, {sP}, 0x20001
 s_lshl_b32 s3, s3, 2
 s_mov_b32 s100, {m}
 s_mov_b32 s101, {m}
 s_lshl_b64 s[100:101], s[100:101], s3
 v_mov_b32 v7, {sTAG}
 s_mov_b64 exec, s[100:101]
 buffer_load_dword v7, v14, {WS}, {sT} offen offset:4 sc1
 s_mov_b64 exec, -1
MARK:can""")
def canary_check(P, name, sleep):
    P.tail += L(f"""L_{name}_r:
 s_sub_u32 {sSPIN}, {sSPIN}, 1
 s_cbranch_scc1 L_{name}_x
 s_mov_b64 exec, vcc
 s_sleep {sleep}
 buffer_load_dword v7, v14, {WS}, {sT} offen offset:4 sc1
 s_mov_b64 exec, -1
 s_waitcnt vmcnt(0)
 v_cmp_ne_u32 vcc, {sTAG}, v7
 s_cbranch_vccnz L_{name}_r
 s_branch L_{name}_b
L_{name}_x:
 s_mov_b32 {sSPIN}, 0
 s_branch L_{name}_b""")
    return ["WAIT:can", f" v_cmp_ne_u32 vcc, {sTAG}, v7", f" s_cbranch_vccnz L_{name}_r", f"L_{name}_b:"]
def kv_to_lds(P):
    for i in range(4):
        P(f" v_perm_b32 v{vIN+4*i+1}, v{vIN+4*i}, v{vIN+4*i+2}, {sLO}")
        P(f" v_perm_b32 v{vIN+4*i+3}, v{vIN+4*i}, v{vIN+4*i+2}, {sHI}")
        P(f" ds_write2st64_b32 v13, v{vIN+4*i+1}, v{vIN+4*i+3} offset0:{(3-i)*4} offset1:{(3-i)*4+KVCH//256}")
    P(" s_waitcnt lgkmcnt(0)\n s_barrier")
QD = 144
def conv_epi_consts():
    return L(f"""
 v_bfe_u32 v13, v0, 4, 2
 v_lshlrev_b32 v14, 6, v13
 v_xor_b32 v13, v14, v6
 s_lshl_b32 s3, {sW}, 13
 s_add_u32 s3, s3, {PART}
 v_add_u32 v13, s3, v13
 v_bfe_u32 v15, v0, 1, 2
 v_bfe_u32 v14, v0, 3, 4
 v_lshlrev_b32 v12, 2, v15
 v_xor_b32 v14, v14, v12
 v_lshlrev_b32 v14, 4, v14
 v_lshl_add_u32 v14, v15, 8, v14
 v_lshrrev_b32 v15, 7, v0
 v_lshl_add_u32 v14, v15, 10, v14
 v_and_b32 v15, 1, v0
 v_lshl_add_u32 v14, v15, 3, v14
 v_add_u32 v14, {PART}, v14
 s_mul_i32 s4, {sC}, {OB}
 s_add_u32 s4, s4, {YBOX}
 s_add_u32 s5, s4, 4096
 s_add_u32 s6, s4, 8192
 s_add_u32 s7, s4, 12288""")
def conv_mfma(P, bulk, sched):
    extra = conv_epi_consts()
    lazy = P.cfg['lazy']
    def rd(bb): return [f" ds_read_b128 {vr(vB+32*(bb&1)+4*d,4)}, v{vBB[bb]} offset:{(7-d)*512}" for d in range(8)]
    def mf(j, a, bb, first): P(f" v_mfma_f32_16x16x32_bf16 {ar(aC+4*j,4)}, {vr(vA+16*a+4*bb,4)}, {vr(vB+32*(bb&1)+4*(j-a),4)}, {'0' if first else ar(aC+4*j,4)}")
    used = [0]
    def due(n):
        allowed = sum(min(2*c, max(0, (n - s0)//e + 1)) for (s0, c, e) in sched)
        return used[0] < allowed
    P(rd(0))
    n = 0
    for bb in range(3):
        pend = []
        perms = [a_perm(a, i) for a in range(8) for i in range(4*(bb+1), 4*(bb+2))] if bb+1 >= lazy else []
        for d in range(8):
            if d == 0 and bb == 0: P(" s_waitcnt lgkmcnt(7)")
            elif (bb == 0 and d == 1) or d == 0: P(" s_waitcnt lgkmcnt(0)")
            if d == 1: pend = rd(bb+1)
            for a in range(8-d):
                mf(a+d, a, bb, bb == 0 and d == 0); n += 1
                if perms: P(perms.pop(0))
                if pend: P(pend.pop(0))
                elif bulk and due(n): P(bulk.pop(0)); used[0] += 1
                elif extra: P(extra.pop(0))
    P(extra)
    P(" s_waitcnt lgkmcnt(0)\n s_barrier")
    tags = [f" v_mov_b32 v{QD+2*i+1}, {sTAG}" for i in range(8)]
    wr = []; cnt = 0
    for j in range(8):
        for a in range(j+1):
            mf(j, a, 3, False); cnt += 1
            if wr and wr[0][1] + 4 <= cnt: P(wr.pop(0)[0])
            elif bulk and due(108 + cnt): P(bulk.pop(0)); used[0] += 1
            elif tags: P(tags.pop(0))
        wr.append((f" ds_write_b128 v13, {ar(aC+4*j,4)} offset:{j*1024}", cnt))
    P(tags)
    for x in wr: P(x[0])
def conv_epilogue(P):
    R = 16
    P(" s_waitcnt lgkmcnt(0)\n s_barrier")
    for i in range(4):
        for c in range(2): P(f" ds_read2st64_b64 {vr(R+8*i+4*c,4)}, v14 offset0:{4*i+32*c} offset1:{4*i+32*c+16}")
    for i in range(4):
        P(f" s_waitcnt lgkmcnt({6-2*i})")
        b = R+8*i
        P(f""" v_pk_add_f32 {vr(b,2)}, {vr(b,2)}, {vr(b+2,2)}
 v_pk_add_f32 {vr(b+4,2)}, {vr(b+4,2)}, {vr(b+6,2)}
 v_cvt_pk_bf16_f32 v{QD+4*i}, v{b}, v{b+4}
 v_cvt_pk_bf16_f32 v{QD+4*i+2}, v{b+1}, v{b+5}
 buffer_store_dwordx4 {vr(QD+4*i,4)}, v9, {WS}, s{4+i} offen sc1""")

vSR = 15
def stat_consts():
    return L(f"""
 v_bfe_u32 v{vSW}, v0, 4, 4
 v_lshl_add_u32 v{vSW}, v1, 4, v{vSW}
 v_lshlrev_b32 v{vSW}, 2, v{vSW}
 v_add_u32 v{vSW}, {STAT}, v{vSW}
 v_lshlrev_b32 v{vSR}, 6, v1
 v_add_u32 v{vSR}, {STAT}, v{vSR}
 s_mov_b32 s30, 0x3b000000
 s_mov_b32 s31, 0x3b000000""")
def row_stats(src, tmp, off, mr, shadow):
    o = []
    a = tmp+8
    for r in range(2):
        b = src+8*r
        o.append(f" v_pk_add_f32 {vr(a+4*r,2)}, {vr(b,2)}, {vr(b+2,2)}")
        o.append(f" v_pk_mul_f32 {vr(a+4*r+2,2)}, {vr(b,2)}, {vr(b,2)}")
    for i in range(1, 4):
        for r in range(2):
            b = src+8*r+2*i
            if i >= 2: o.append(f" v_pk_add_f32 {vr(a+4*r,2)}, {vr(a+4*r,2)}, {vr(b,2)}")
            o.append(f" v_pk_fma_f32 {vr(a+4*r+2,2)}, {vr(b,2)}, {vr(b,2)}, {vr(a+4*r+2,2)}")
    for k in range(4): o.append(f" v_add_f32 v{tmp+k}, v{a+2*k}, v{a+2*k+1}")
    sh = list(shadow)
    def S(n): return take(sh, n)
    o += S(2) + [f" v_permlane32_swap_b32 v{tmp}, v{tmp+1}", f" v_permlane32_swap_b32 v{tmp+2}, v{tmp+3}",
          f" v_add_f32 v{tmp}, v{tmp}, v{tmp+1}", f" v_add_f32 v{tmp+2}, v{tmp+2}, v{tmp+3}"] + S(2) + \
         [f" v_permlane16_swap_b32 v{tmp}, v{tmp+2}", f" v_add_f32 v{tmp}, v{tmp}, v{tmp+2}"] + S(2) + \
         [f" v_add_f32_dpp v{tmp}, v{tmp}, v{tmp} row_ror:4 row_mask:0xf bank_mask:0xf"] + S(2) + \
         [f" v_add_f32_dpp v{tmp}, v{tmp}, v{tmp} row_ror:8 row_mask:0xf bank_mask:0xf", f" ds_write_b32 v{vSW}, v{tmp} offset:{off}"] + S(8) + \
         [" s_waitcnt lgkmcnt(0)", " s_barrier"] + \
         [f" ds_read_b128 {vr(tmp+8+4*k,4)}, v{vSR} offset:{off+16*k}" for k in range(4)] + S(99) + [" s_waitcnt lgkmcnt(0)"]
    o += L(f"""
 v_pk_add_f32 {vr(a,2)}, {vr(a,2)}, {vr(a+4,2)}
 v_pk_add_f32 {vr(a+8,2)}, {vr(a+8,2)}, {vr(a+12,2)}
 v_pk_add_f32 {vr(a+2,2)}, {vr(a+2,2)}, {vr(a+6,2)}
 v_pk_add_f32 {vr(a+10,2)}, {vr(a+10,2)}, {vr(a+14,2)}
 v_pk_add_f32 {vr(tmp,2)}, {vr(a,2)}, {vr(a+8,2)}
 v_pk_add_f32 {vr(tmp+2,2)}, {vr(a+2,2)}, {vr(a+10,2)}
 v_pk_mul_f32 {vr(tmp,2)}, {vr(tmp,2)}, s[30:31]
 v_pk_mul_f32 {vr(tmp+2,2)}, {vr(tmp+2,2)}, s[30:31]
 v_pk_fma_f32 {vr(tmp+2,2)}, {vr(tmp,2)}, {vr(tmp,2)}, {vr(tmp+2,2)} neg_lo:[1,0,0] neg_hi:[1,0,0]
 v_cvt_pk_bf16_f32 v{tmp+4}, v{tmp}, v{tmp+1}
 v_max_f32 v{tmp+2}, 0, v{tmp+2}
 v_max_f32 v{tmp+3}, 0, v{tmp+3}
 v_cvt_pk_bf16_f32 v{tmp+5}, v{tmp+2}, v{tmp+3}
 v_lshlrev_b32 v{tmp+2}, 16, v{tmp+5}
 v_and_b32 v{tmp+3}, {sMASK}, v{tmp+5}
 v_add_f32 v{tmp+2}, 0x3727c5ac, v{tmp+2}
 v_add_f32 v{tmp+3}, 0x3727c5ac, v{tmp+3}
 v_cvt_pk_bf16_f32 v{tmp+5}, v{tmp+2}, v{tmp+3}
 v_lshlrev_b32 v{tmp+2}, 16, v{tmp+5}
 v_and_b32 v{tmp+3}, {sMASK}, v{tmp+5}
 v_sqrt_f32 v{tmp+2}, v{tmp+2}
 v_sqrt_f32 v{tmp+3}, v{tmp+3}
 v_lshlrev_b32 v{mr}, 16, v{tmp+4}
 v_cvt_pk_bf16_f32 v{tmp+5}, v{tmp+2}, v{tmp+3}
 v_lshlrev_b32 v{tmp+2}, 16, v{tmp+5}
 v_and_b32 v{tmp+3}, {sMASK}, v{tmp+5}
 v_rcp_f32 v{mr+2}, v{tmp+2}
 v_rcp_f32 v{mr+3}, v{tmp+3}
 v_and_b32 v{mr+1}, {sMASK}, v{tmp+4}
 v_pk_mul_f32 {vr(mr,2)}, {vr(mr,2)}, {vr(mr+2,2)} neg_lo:[1,0] neg_hi:[1,0]""")
    return o
def norm_row(dst, src, mr, row):
    sel = f"op_sel:[0,{row},{row}] op_sel_hi:[1,{row},{row}]"
    return [f" v_pk_fma_f32 {vr(dst+8*row+2*i,2)}, {vr(src+8*row+2*i,2)}, {vr(mr+2,2)}, {vr(mr,2)} {sel}" for i in range(4)]
def unpack(dst, src): return [f" v_lshlrev_b32 v{dst}, 16, v{src}", f" v_and_b32 v{dst+1}, {sMASK}, v{src}"]
def ln1():
    tmp = 176; mr = 200; kd = 160
    o = []
    for r in range(2):
        for t in range(4): o += unpack(kd+8*r+2*t, vQ+4*t+2*r)
    for i in range(8): o += unpack(vu1+2*i, vX+i)
    sh = []
    for i in range(4): sh += unpack(vX+2*i, vD+i)
    for r in range(2):
        for t in range(4): sh.append(f" v_pk_mul_f32 {vr(kd+8*r+2*t,2)}, {vr(kd+8*r+2*t,2)}, {vr(vX+2*t,2)}")
    o += row_stats(vu1, tmp, 0, mr, sh)
    o += norm_row(vq, vu1, mr, 0) + norm_row(vq, vu1, mr, 1)
    for i in range(8): o.append(f" v_pk_fma_f32 {vr(vu1+2*i,2)}, {vr(vq+2*i,2)}, {vr(kd+2*i,2)}, {vr(vu1+2*i,2)}")
    return o
vY = 64
def ln2(P0, bulk, every):
    P = G(); P.cfg = P0.cfg
    vh, vn, tmp, mr = 80, 104, 112, 136
    for r in range(2):
        for t in range(4): P(unpack(vh+8*r+2*t, vY+4*t+2*r))
    for i in range(8): P(f" v_pk_fma_f32 {vr(vh+2*i,2)}, {vr(vq+2*i,2)}, {vr(vh+2*i,2)}, {vr(vu1+2*i,2)}")
    sh = [f" v_cvt_pk_bf16_f32 v{vHP+i}, v{vh+2*i}, v{vh+2*i+1}" for i in range(8)]
    for i in range(8): sh += unpack(vh+2*i, vHP+i)
    P(row_stats(vh, tmp, 256, mr, sh))
    for r in range(2):
        P(norm_row(vh, vh, mr, r))
        for i in range(4*r, 4*r+4): P(f" v_cvt_pk_bf16_f32 v{vn+i}, v{vh+2*i}, v{vh+2*i+1}")
        P(f" buffer_store_dwordx4 {vr(vn+4*r,4)}, v5, {WS}, {sHNst} offen offset:{64*r} sc1")
        P(f" v_xad_u32 v{tmp+r}, v{vn+4*r}, v{vn+4*r+1}, v{vn+4*r+2}\n v_add_u32 v{tmp+r}, v{tmp+r}, v{vn+4*r+3}")
    P(f"""
 v_permlane16_swap_b32 v{tmp}, v{tmp+1}
 v_add_u32 v{tmp}, v{tmp}, v{tmp+1}
 v_add_u32_dpp v{tmp}, v{tmp}, v{tmp} row_ror:8 row_mask:0xf bank_mask:0xf
 v_add_u32 v{tmp}, {sTAG}, v{tmp}
 buffer_store_dword v{tmp}, v{vC}, {WS}, {sHCst} offen sc1
""")
    if P.cfg["hnh"]: P(f" buffer_store_dword v{vY+1}, v13, {WS}, {sF0} offen sc1")
    interleave(P0, P.lines, bulk, every)
    assert not bulk
def h2_consts():
    return L(f"""
 v_mul_u32_u24 v14, {4*OB}, v2
 v_lshl_add_u32 v14, v1, 4, v14
 v_lshlrev_b32 v5, 9, v2
 v_lshl_add_u32 v5, v1, 4, v5
 v_lshrrev_b32 v{vC}, 2, v6
 v_add_u32 v{vC}, 4096, v{vC}
 s_lshr_b32 {sHNst}, {sP}, 2
 s_lshl_b32 {sHNst}, {sHNst}, 15
 s_and_b32 s3, {sP}, 3
 s_lshl_b32 s3, s3, 7
 s_add_u32 {sHNst}, {sHNst}, s3
 s_add_u32 {sHNst}, {sHNst}, {HN}
 s_lshl_b32 {sHCst}, {sP}, 2
 s_add_u32 {sHCst}, {sHCst}, {sW}
 s_lshl_b32 {sF0}, {sHCst}, 9
 s_add_u32 {sF0}, {sF0}, {HI}
 v_lshrrev_b32 v13, 6, v6
 v_lshlrev_b32 v13, 25, v13
 v_lshl_add_u32 v13, v1, 7, v13
 s_lshl_b32 {sFLst}, {sHCst}, 6
 s_add_u32 {sFLst}, {sFLst}, {FL-4352}
 s_lshl_b32 {sHCst}, {sHCst}, 8
 s_add_u32 {sHCst}, {sHCst}, {HC-4096}
 s_mov_b32 {sHRES}, {HRES}
 s_lshl_b32 s4, {sP}, 6
 s_add_u32 s4, s4, {YBOX}
 s_add_u32 s5, s4, {OB}
 s_add_u32 s6, s4, {2*OB}
 s_add_u32 s7, s4, {3*OB}""")

WARM = [0]
def warm_ops(n0, n1):
    o = []
    if n0 == 0:
        o += L(f""" v_bfe_u32 v16, v0, 3, 3
 v_min_u32 v16, 6, v16
 v_and_b32 v17, 7, v0
 v_lshlrev_b32 v17, 10, v17
 v_lshl_add_u32 v17, v16, 7, v17
 s_mul_i32 s4, {sW}, {448*1024}
 s_lshl_b32 s5, {sL3}, 13
 s_add_u32 s4, s4, s5
 s_add_u32 s5, s4, 32768""")
    for j in range(n0, n1):
        if j & 1 == 0:
            if j: o += [" v_add_u32 v16, 1, v16", " v_cmp_eq_u32 vcc, 7, v16", " v_cndmask_b32 v16, v16, 0, vcc"]
            o.append(" v_lshl_add_u32 v18, v16, 16, v17")
        o.append(f" buffer_load_dword v19, v18, {srd('WD')}, s{4 + (j & 1)} offen")
    return o
def wd_consts(a8):
    if a8: head = f"""
 s_bfe_u32 s3, s2, 0x20001
 s_lshl_b32 s3, s3, 3
 s_bfe_u32 {sT}, s2, 0x30003
 s_add_u32 {sSB}, s3, {sT}
 s_and_b32 {sE}, s2, 1
 s_lshl_b32 {sE}, {sE}, 2
 s_lshr_b32 s3, s2, 6
 s_add_u32 {sE}, {sE}, s3
 s_lshl_b32 {sE}, {sE}, 7
 s_lshl_b32 s3, s3, 1
 s_add_u32 s3, s3, {sT}"""
    else: head = f"""
 s_and_b32 s3, s2, 7
 s_lshl_b32 s3, s3, 2
 s_add_u32 {sSB}, s3, {sL3}
 s_lshl_b32 {sE}, {sJL}, 7
 s_lshl_b32 s3, {sL3}, 1""" + (f"""
 s_cmp_ge_u32 {sJL}, 7
 s_cselect_b32 s3, s3, 0""" if WARM[0] else "") + f"""
 s_add_u32 s3, s3, {sJL}"""
    o = L(head + f"""
 s_mul_i32 {sRING}, {sW}, {NR*1024}
 s_add_u32 {sRING}, {sRING}, {RING}
 s_mul_i32 s100, {sW}, {448*1024}
 s_add_u32 s100, s100, {sE}""")
    for i in range(7):
        if WARM[0] == 2:
            if i < 3: o += [f" s_add_u32 s101, s3, {i}"]
            else: o += L(f""" s_add_u32 s101, {sL3}, {i-3}
 s_and_b32 s101, s101, 3
 s_cmp_ge_u32 {sJL}, 7
 s_cselect_b32 s101, {i-3}, s101
 s_add_u32 s101, s101, 3
 s_add_u32 s101, s101, s3""")
            for rep in range(2): o += L(f""" s_cmp_ge_u32 s101, 7
 s_cselect_b32 {sT}, 7, 0
 s_sub_u32 s101, s101, {sT}""")
            o += [f" s_lshl_b32 {sT}, s101, 16", f" s_add_u32 s{sWD+i}, {sT}, s100"]
            continue
        o += L(f""" s_cmp_ge_u32 s3, 7
 s_cselect_b32 {sT}, 7, 0
 s_sub_u32 s3, s3, {sT}
 s_lshl_b32 {sT}, s3, 16
 s_add_u32 s{sWD+i}, {sT}, s100
 s_add_u32 s3, s3, 1""")
    return o
def wd_rconsts(t):
    return L(f"""
 v_bfe_u32 v{t}, v0, 5, 1
 v_bfe_u32 v{t+1}, v0, 4, 1
 v_bfe_u32 v{t+2}, v0, 2, 2
 v_lshl_add_u32 v{t}, v{t}, 2, v{t+2}
 v_lshlrev_b32 v{t}, 7, v{t}
 v_lshl_add_u32 v{t}, v1, 3, v{t}
 v_add_u32 v{t}, {sRING}, v{t}
 v_and_b32 v{t+2}, 2, v{t+2}
 v_or_b32 v{t+2}, v{t+2}, v{t+1}
 v_lshl_add_u32 v{vWr[0]}, v{t+2}, 5, v{t}
 v_xor_b32 v{t+2}, 2, v{t+2}
 v_lshl_add_u32 v{vWr[1]}, v{t+2}, 5, v{t}""")
def wd_dma(m, base=sRING, slot=None):
    i, r = m // 8, m & 7
    o = []
    if slot is None:
        slot = m % NR
        if m >= NR: o.append(f"DWAIT:wd{m-NR}")
    o.append(f" s_add_u32 m0, {base}, {slot*1024}")
    if r: o += [f" s_add_u32 s100, s{sWD+i}, {r*8192}", f" buffer_load_dwordx4 v{vWD}, {srd('WD')}, s100 offen lds"]
    else: o += [f" buffer_load_dwordx4 v{vWD}, {srd('WD')}, s{sWD+i} offen lds"]
    return o + [f"MARK:wd{m}"]
def wd_read(m, slot=None):
    d = (m >> 1)*8 + 2*(m & 1)
    if slot is None: slot = m % NR
    return [f"WAIT:wd{m}"] + [f" ds_read_b64_tr_b16 {ar(d+4*tau,2)}, v{vWr[tau]} offset:{slot*1024}" for tau in range(2)] + [f"DMARK:wd{m}"]
def wd_stream(d, rd, N):
    o = []
    while d < min(N, rd + NR - 1): o += wd_dma(d); d += 1
    for m in range(rd, N):
        o += wd_read(m)
        if d < N and d <= m + NR - 1: o += wd_dma(d); d += 1
    return o

def wd_raw(m):
    i, r = m // 8, m & 7
    if r: return [f" s_add_u32 s100, s{sWD+i}, {r*8192}", f" buffer_load_dwordx4 {ar(4*m,4)}, v{vWD}, {srd('WD')}, s100 offen"]
    return ["SKIP", f" buffer_load_dwordx4 {ar(4*m,4)}, v{vWD}, {srd('WD')}, s{sWD+i} offen"]
def bounce(u, va):
    d = u*8; off = (u % 3)*2048
    o = [f" ds_write_b128 v{va}, {ar(d,4)} offset:{off}", f" ds_write_b128 v{va}, {ar(d+4,4)} offset:{off+1024}"]
    for tau in range(2):
        for io in range(2): o.append(f" ds_read_b64_tr_b16 {ar(d+4*tau+2*io,2)}, v{vWr[tau]} offset:{off+io*1024}")
    return o
def g_sconsts(nbig):
    o = [f" s_mul_i32 s3, {sSB}, {56*GS}", f" s_add_u32 s3, s3, {HH}"]
    for i in range(7):
        o += L(f""" s_lshr_b32 {sT}, s{sWD+i}, 16
 s_mul_i32 {sT}, {sT}, {GS}
 s_add_u32 s{sHL+i}, {sT}, s3
 s_add_u32 s{sHL+7+i}, s{sHL+i}, {28*GS}""")
    o += L(f"""
 s_lshl_b32 {sO0}, {sSB}, 16
 s_add_u32 {sO0}, {sO0}, {sE}
 s_add_u32 {sO1}, {sO0}, 32768
 s_add_u32 {sHR0}, {sO0}, {HRES}
 s_add_u32 {sHR1}, {sO1}, {HRES}
 s_lshl_b32 s3, {sG}, 2
 s_add_u32 s3, s3, {sW}
 s_mul_i32 {sHS0}, s3, 56
 s_add_u32 {sHS0}, {sHS0}, {sJ}
 s_mul_i32 {sHS0}, {sHS0}, {GS}
 s_add_u32 {sHS0}, {sHS0}, {HH}
 s_add_u32 {sHS1}, {sHS0}, {28*GS}
 s_lshl_b32 {sFLld}, s3, 13
 s_add_u32 {sFLld}, {sFLld}, {HC}
 s_lshl_b32 s3, s3, 16
 s_add_u32 s3, s3, {HN}""")
    for g in range(8):
        o += [f" s_add_u32 {sT}, {sJL}, {g}", f" s_and_b32 {sT}, {sT}, 7", f" s_lshl_b32 s{sHC+g}, {sT}, 7", f" s_add_u32 s{sHC+g}, s{sHC+g}, {sFLld}", f" s_lshl_b32 {sT}, {sT}, 12", f" s_add_u32 s{sHN+g}, {sT}, s3"]
    o += L(f"""
 s_lshl_b32 {sFLld}, {sSB}, 3
 s_add_u32 {sFLld}, {sFLld}, {sW}
 s_mul_i32 {sPH0}, {sFLld}, {7*GS}
 s_add_u32 {sPH0}, {sPH0}, {HH+4352}
 s_add_u32 {sPH1}, {sPH0}, {28*GS}
 s_lshl_b32 {sFLld}, {sFLld}, 2
 s_lshr_b32 s3, {sE}, 8
 s_add_u32 {sFLld}, {sFLld}, s3
 s_lshl_b32 {sFLld}, {sFLld}, 6
 s_add_u32 {sFLld}, {sFLld}, {FL}
 s_and_b32 s3, {sW}, 1
 s_mul_i32 s3, s3, {nbig*1024}
 s_lshr_b32 {sBIG}, {sW}, 1
 s_lshl_b32 {sBIG}, {sBIG}, 16
 s_add_u32 {sBIG}, {sBIG}, s3""") + srdc(("OUT",))
    return o
def g_vconsts():
    t = 232
    o = L(f"""
 v_bfe_u32 v{t}, v0, 5, 1
 v_bfe_u32 v{t+1}, v0, 4, 1
 v_bfe_u32 v{t+2}, v0, 2, 2
 v_bfe_u32 v{vHC}, v0, 3, 2
 v_lshlrev_b32 v{vHC}, 10, v{vHC}
 v_lshl_add_u32 v{vHC}, v{t}, 4, v{vHC}
 v_lshl_add_u32 v{t}, v{t}, 3, v{t+2}
 v_lshlrev_b32 v{t+4}, 7, v{t}
 v_lshl_add_u32 v{t+4}, v1, 3, v{t+4}
 v_lshl_add_u32 v{t+4}, v{t+1}, 16, v{t+4}
 v_lshrrev_b32 v{t+2}, 1, v{t+2}
 v_lshl_add_u32 v{t+2}, v{t+1}, 1, v{t+2}
 v_add_u32 v{vL2}, 32768, v6""")
    for k in range(4): o += [f" v_xor_b32 v{t+3}, {k}, v{t+2}", f" v_lshl_add_u32 v{vRa+k}, v{t+3}, 5, v{t+4}"]
    o += L(f"""
 v_bfe_u32 v4, v0, 2, 1
 v_lshl_add_u32 v{vHC}, v4, 6, v{vHC}
 v_lshl_add_u32 v{vHC}, v1, 2, v{vHC}
 v_add_u32 v{vHC1}, 4096, v{vHC}
 v_lshrrev_b32 v{t}, 3, v0
 v_and_b32 v{t+1}, 24, v{t}
 v_and_b32 v{t+2}, 3, v{t}
 v_lshl_add_u32 v{t+1}, v{t+2}, 1, v{t+1}
 v_bfe_u32 v{t+2}, v{t}, 2, 1
 v_add_u32 v{t+1}, v{t+1}, v{t+2}
 v_lshlrev_b32 v{t+1}, 10, v{t+1}
 v_and_b32 v{t+2}, 7, v0
 v_lshl_add_u32 v{vOUT}, v{t+2}, 4, v{t+1}
 v_mul_u32_u24 v{vPH}, {GS//16}, v6
 v_add_u32 v4, 16, v6
 v_lshrrev_b32 v4, 7, v4
 v_lshl_add_u32 v{vPH}, v4, 25, v{vPH}
 v_lshlrev_b32 v{vONE}, 21, v6
 v_add_u32 v{vONE}, 4352, v{vONE}
 v_mov_b32 v{vTG}, {sTAG}""")
    return o
HST = [f" buffer_store_dwordx4 {vr(vHP,4)}, v3, {WS}, {sHRES} offen sc1", f" buffer_store_dwordx4 {vr(vHP+4,4)}, v3, {WS}, {sHRES} offen offset:1024 sc1", "MARK:HST"]
FLAGST = f" buffer_store_dword v{vTG}, v{vONE}, {WS}, {sFLst} offen sc1"
FLAGLD = [" v_lshrrev_b32 v1, 5, v6\n v_lshlrev_b32 v1, 25, v1", " v_lshl_add_u32 v1, v6, 6, v1", f" v_mov_b32 v3, 0\n buffer_atomic_or v3, v1, {WS}, {sFLld} offen sc0 sc1"]
HRESLD = [f" buffer_load_dwordx4 {vr(vE,4)}, v{vOUT}, {WS}, {sHR0} offen sc1", f" buffer_load_dwordx4 {vr(vE+4,4)}, v{vOUT}, {WS}, {sHR1} offen sc1", "MARK:hres"]
def poll(dst, voff, soff): return f" v_mov_b32 v{dst}, 0\n buffer_atomic_or v{dst}, v{voff}, {WS}, {soff} offen sc0 sc1"
def pollcmp(dst, mask): return [f" v_cmp_ne_u32 vcc, {sTAG}, v{dst}", f" s_and_b64 vcc, vcc, {mask}"]
def hn_regs(G_): return vHN + 16*(G_ % 4)
def hn_loads(G_):
    return [f" buffer_load_dwordx4 {vr(hn_regs(G_)+4*k,4)}, v{6 if G_ < 8 else vL2}, {WS}, s{sHN+(G_&7)} offen offset:{k*1024} sc1" for k in range(4)] + \
           [f" buffer_load_dword v{CHN[G_%4]}, v{vHC if G_ < 8 else vHC1}, {WS}, s{sHC+(G_&7)} offen sc1"]
def hh_loads(u, i):
    return [f" buffer_load_dwordx4 {vr(HREG[(u,i)]+4*t,4)}, v6, {WS}, s{sHL+7*u+i} offen offset:{t*1024} sc1" for t in range(4)] + \
           [f" buffer_load_dword v{CHH[(u,i)]}, v{vC}, {WS}, s{sHL+7*u+i} offen sc1"]
def hashchain(r, chk):
    o = []
    for f in range(4):
        b = r + 4*f
        o.append(f" v_xad_u32 v4, v{b}, v{b+1}, {sTAG if f == 0 else 'v4'}")
        o.append(f" v_add3_u32 v4, v4, v{b+2}, v{b+3}")
    return o + [f" v_cmp_ne_u32 vcc, v4, v{chk}"]
def retry_check(P, o, loads, later, name, sleep):
    blk = [f"L_{name}_r:", f" s_sub_u32 {sSPIN}, {sSPIN}, 1", f" s_cbranch_scc1 L_{name}_x", f" s_sleep {sleep}"] + loads + [" s_waitcnt vmcnt(0)"] + o + [f" s_cbranch_vccnz L_{name}_r"]
    blk += later + ([" s_waitcnt vmcnt(0)"] if later else []) + [f" s_branch L_{name}_b", f"L_{name}_x:", f" s_mov_b32 {sSPIN}, 0", f" s_branch L_{name}_b"]
    P.tail += blk
    return o + [f" s_cbranch_vccnz L_{name}_r\nL_{name}_b:"]
def retry_fast(P, o, loads, later, name, sleep):
    blk = [f"L_{name}_s:", f" s_sleep {sleep}", f"L_{name}_r:", f" s_sub_u32 {sSPIN}, {sSPIN}, 1", f" s_cbranch_scc1 L_{name}_x"] + loads + later + [f" s_waitcnt vmcnt({len(later)})"] + o + [f" s_cbranch_vccnz L_{name}_s"]
    blk += [f" s_branch L_{name}_b", f"L_{name}_x:", f" s_mov_b32 {sSPIN}, 0", f" s_branch L_{name}_b"]
    P.tail += blk
    return o + [f" s_cbranch_vccnz L_{name}_r\nL_{name}_b:"]
def hint_spin(name, s, back):
    return [f"L_{name}:", poll(vPD, vPH, s), " s_waitcnt vmcnt(0)"] + pollcmp(vPD, 0x7f) + [f" s_cbranch_vccz {back}", " s_sleep 8",
            f" s_sub_u32 {sSPIN}, {sSPIN}, 1", f" s_cbranch_scc0 L_{name}", f" s_mov_b32 {sSPIN}, 0"]
def epi_tile(acc, ups, t, out, pk):
    o = []
    if pk:
        for i in range(4): o.append(f" v_pk_mul_f32 {vr(vE+2*i,2)}, {vr(acc+2*i,2)}, s[4:5]")
    else:
        for i in range(8): o.append(f" v_mul_f32 v{vE+i}, 0xbfb8aa3b, v{acc+i}")
    for i in range(8): o.append(f" v_exp_f32 v{vE+i}, v{vE+i}")
    if pk:
        for i in range(4): o.append(f" v_pk_add_f32 {vr(vE+2*i,2)}, {vr(vE+2*i,2)}, 1.0 op_sel_hi:[1,0]")
    else:
        for i in range(8): o.append(f" v_add_f32 v{vE+i}, 1.0, v{vE+i}")
    for i in range(8): o.append(f" v_rcp_f32 v{vE+i}, v{vE+i}")
    if pk:
        for i in range(4): o.append(f" v_pk_mul_f32 {vr(vE+2*i,2)}, {vr(vE+2*i,2)}, {vr(acc+8+2*i,2)}")
    else:
        for i in range(8): o.append(f" v_mul_f32 v{vE+i}, v{vE+i}, v{acc+8+i}")
    for i in range(4): o.append(f" v_cvt_pk_bf16_f32 v{out+i}, v{vE+2*i}, v{vE+2*i+1}")
    sb = sHS1 if ups else sHS0
    o.append(f" buffer_store_dwordx4 {vr(out,4)}, v6, {WS}, {sb} offen offset:{t*1024} sc1")
    o.append(f" v_xad_u32 v{vHASH}, v{out}, v{out+1}, {sTAG if t == 0 else 'v%d' % vHASH}")
    o.append(f" v_add3_u32 v{vHASH}, v{vHASH}, v{out+2}, v{out+3}")
    if t == 3:
        o.append(f" buffer_store_dword v{vHASH}, v{vC}, {WS}, {sb} offen sc1")
        o.append(f" buffer_store_dword v{vTG}, v{vONE}, {WS}, {sb} offen sc1")
    return o

def gemm1(P, cfg, wds):
    seq = [(u, k, t) for u in range(2) for k in range(32) for t in range(4)]
    D = 6; LA = 3
    MB = cfg["wd_big"]
    def reads(n):
        u, k, t = seq[n]; d = aC + 4*(n % 8)
        return [f" ds_read_b64_tr_b16 {ar(d+2*io,2)}, v{vRa+t} offset:{k*2048+io*512}" for io in range(2)] + [f"DMARK:w{n}"]
    def hn_issue(g): return hn_loads(g) + [f"MARK:hn{g}"]
    def hn_check(g):
        later = []
        for gg in range(g+1, min(16, g+LA)): later += hn_loads(gg)
        return [f"WAIT:hn{g}"] + (retry_fast if g < 12 else retry_check)(P, hashchain(hn_regs(g), CHN[g%4]), hn_loads(g), later, f"hn{g}", cfg["bo"])
    for n in range(D): P(reads(n))
    if cfg["hnh"]:
        hl = f" buffer_load_dword v{vPD}, v221, {WS}, {sF0} offen sc1"
        P(["WAIT:phn"] + retry_check(P, [f" v_cmp_ne_u32 vcc, {sTAG}, v{vPD}"], [hl], [], "phn", cfg["hbo"]))
    P.st("hint")
    for g in range(LA): P(hn_issue(g))
    P(hn_check(0))
    P.st("hn0")
    wq_ = list(wds); fill = []; urgent = []; wacc = 0.0; lastv = -9
    h0 = poll(vPD, vPH, sPH0)
    for n, (u, k, t) in enumerate(seq):
        budget = cfg["slots"][u]
        g = 8*u + k//4
        if t == 0:
            if k % 4 == 0:
                while urgent: P(urgent.pop(0))
                if g + LA < 16: urgent += hn_issue(g + LA)
            if k % 4 == 3 and g + 1 < 16: urgent += hn_check(g + 1)
            if (u, k) == (1, 0):
                P.st("p0")
                P(urgent); urgent = []
                P(" s_mov_b32 s4, 0xbfb8aa3b\n s_mov_b32 s5, 0xbfb8aa3b")
                held = []; ex = []
                for tt in range(4):
                    pk = tt < cfg["e0_exp"]
                    for x in epi_tile(acc0+16*tt, 0, tt, acc0+16*tt, pk):
                        (held if x.lstrip().startswith("buffer_store") else (ex if pk else fill)).append(x)
                P(ex)
                fill += held + (["WAIT:HST", FLAGST] if cfg['h_early'] else HST)
                if cfg["e0_exp"] == 4: P(fill); fill = []
                P.st("e0")
            if u == 1 and k == cfg["h0_k"] and cfg["hhh"]: urgent += [h0, "MARK:ph0"]
            if u == 1 and k in cfg["hh_at"]:
                i = cfg["hh_at"][k]
                assert not fill
                if i == 0:
                    if not cfg['h_early']: urgent += ["WAIT:HST", FLAGST]
                    if cfg["hhh"]: urgent += ["WAIT:ph0"] + retry_check(P, pollcmp(vPD, 0x7f), [h0], [], "ph0", cfg["hbo"])
                urgent += hh_loads(0, i) + [f"MARK:hh0_{i}"]
        if n % 2 == 0: P(f"DWAIT:w{n+1}")
        else: budget -= 1
        a = (acc1 if u else acc0) + 16*t
        P(f" v_mfma_f32_32x32x16_bf16 {vr(a,16)}, {ar(aC+4*(n%8),4)}, {vr(hn_regs(g)+4*(k&3),4)}, {'0' if k == 0 else vr(a,16)}")
        if n + D < len(seq):
            P(reads(n+D)); budget -= 2
        wacc += cfg["wd_rate"][u]
        had = bool(fill)
        for q in (urgent, wq_, fill):
            while q and (budget >= P.cost(q[0]) or P.cost(q[0]) == 0):
                if q[0].lstrip().startswith("buffer_"):
                    if n - lastv < cfg["vgap"]: break
                    lastv = n
                if q is wq_:
                    if wacc < 1 and P.cost(q[0]) > 0: break
                    wacc -= P.cost(q[0])
                x = q.pop(0); budget -= P.cost(x); P(x)
        if had and not fill: print("epilogue0 done at k", k)
    print('left: wd', len(wq_), 'fill', len(fill))
    P(urgent); P(wq_); P(fill)
    P.st("p1")
    P(" s_mov_b32 s4, 0xbfb8aa3b\n s_mov_b32 s5, 0xbfb8aa3b")
    big = []
    if MB < 56:
        if not cfg["bar_late"]: P(" s_barrier")
        for m in range(MB, 56): big.append("\n".join(wd_dma(m, sBIG, m - MB)))
    e1 = []; held = []
    for tt in range(4):
        for x in epi_tile(acc1+16*tt, 1, tt, acc1+16*tt, True):
            (held if (cfg["hold"] and x.lstrip().startswith("buffer_store")) else e1).append(x)
    pre = []
    for i in range(len(cfg["hh_at"]), 7): pre += hh_loads(0, i) + [f"MARK:hh0_{i}"]
    pre = FLAGLD + ["MARK:flag"] + pre + take(big, cfg["big_pre"])
    if cfg["pre_late"]: P(e1)
    else: interleave(P, e1, pre, cfg["big_every"])
    P(held)
    P(pre)
    if cfg["bar_late"] and MB < 56:
        assert cfg["big_pre"] == 0
        P(" s_barrier")
    P.big = big
    P.st("epi")
    P.st("ld0")

def red_consts():
    return L(f"""
 s_mul_i32 s3, {sW}, {REDW}
 v_add_u32 v12, s3, v6
 v_and_b32 v15, 7, v0
 v_lshrrev_b32 v13, 3, v0
 v_mul_u32_u24 v15, {BS}, v15
 v_lshl_add_u32 v13, v13, 4, v15
 v_add_u32 v14, {2*REDW}, v13""")
def red_write(ups): return [f" ds_write_b128 v12, {vr(acc2+4*blk,4)} offset:{blk*BS}" for blk in range(8*ups, 8*ups+8)]
def red_read(ups, b): return [f" ds_read_b128 {vr(b+8*w+4*h,4)}, {'v13' if w < 2 else 'v14'} offset:{ups*8*BS + h*512 + (w&1)*REDW}" for w in range(4) for h in range(2)]
def red_fin(ups, b, hx, pk, fl):
    o = []
    for (x, y) in ((0, b+8), (16, b+24), (0, hx), (0, b+16)):
        if pk:
            for i in range(4): o.append(f" v_pk_add_f32 {vr(b+x+2*i,2)}, {vr(b+x+2*i,2)}, {vr(y+2*i,2)}")
        else:
            for i in range(8): o.append(f" v_add_f32 v{b+x+i}, v{b+x+i}, v{y+i}")
    for i in range(4): o.append(f" v_cvt_pk_bf16_f32 v{b+16+i}, v{b+2*i}, v{b+2*i+1}")
    o.append(f" buffer_store_dwordx4 {vr(b+16,4)}, v{vOUT}, {srd('OUT')}, {sO0 if ups == 0 else sO1} offen {fl}")
    return o
def gemm2(P, cfg):
    order = [(0, i) for i in range(7)] + [(1, i) for i in range(7)]
    MB = cfg["wd_big"]
    issued = order[:7]
    sched = cfg["b1_at"]
    def chk(pos):
        u, i = order[pos]
        later = []
        for x in order[pos+1:]:
            if x in issued and x[0] == u: later += hh_loads(*x)
        return [f"WAIT:hh{u}_{i}"] + retry_check(P, hashchain(HREG[(u,i)], CHH[(u,i)]), hh_loads(u, i), later, f"hh{u}_{i}", cfg["bo"])
    bigrd = []
    if MB < 56:
        P([f" s_sub_u32 s3, {sBIG}, {sRING}", f" v_add_u32 v{vWr[0]}, s3, v{vWr[0]}", f" v_add_u32 v{vWr[1]}, s3, v{vWr[1]}"])
        for m in range(MB, 56): bigrd += wd_read(m, m - MB)
    P(chk(0))
    hres = [f" buffer_load_dwordx4 {vr(vE,4)}, v{vOUT}, {WS}, {sHR0} offen sc1", f" buffer_load_dwordx4 {vr(vE+4,4)}, v{vOUT}, {WS}, {sHR1} offen sc1", "MARK:hres"]
    flag = [f" buffer_load_dword v3, v1, {WS}, {sFLld} offen sc1"]
    T0 = 112; HX = 16
    for pos, (u, i) in enumerate(order):
        fill = []
        h1 = poll(vPD, vPH, sPH1)
        p1st = min(sched)
        if pos == p1st - cfg["h1_lead"] and cfg["hh1"]: fill += [h1, "MARK:ph1"]
        if pos == p1st:
            if cfg["hh1"]: fill += ["WAIT:ph1"] + retry_check(P, pollcmp(vPD, 0x7f), [h1], [], "ph1", cfg["hbo"])
            else:
                P.tail += hint_spin("ip1", sPH1, "L_ip1b") + [" s_branch L_ip1b"]
                fill += [f" s_cmp_ge_u32 {sJL}, 7\n s_cbranch_scc1 L_ip1\nL_ip1b:"]
        for gi in sched.get(pos, []):
            x = (1, gi)
            prev = [y for y in order[:order.index(x)] if HREG[y] == HREG[x]]
            assert all(order.index(y) < pos for y in prev), x
            fill += hh_loads(*x) + [f"MARK:hh{x[0]}_{x[1]}"]; issued.append(x)
        if pos < 3:
            for x in take(P.big, cfg["big_per"]): fill += x.split("\n")
        if pos == cfg["hres_at"]: fill += ["WAIT:flag"] + retry_check(P, pollcmp(3, 3), FLAGLD[2:], [], "flag", cfg["bo"]) + HRESLD
        if pos == MB//8 - 1:
            assert not P.big
            fill += bigrd + [" s_waitcnt lgkmcnt(0)"]
        if pos == 7: fill += red_consts() + [" s_barrier"]
        if pos == 8: fill += red_write(0)
        if pos == 9: fill += [" s_waitcnt lgkmcnt(0)", " s_barrier"] + red_read(0, T0)
        if pos == 11:
            fill += ["WAIT:hres"]
            for k in range(8): fill += unpack(HX+2*k, vE+k)
            fill += [" s_waitcnt lgkmcnt(0)"]
        if pos == 12: fill += red_fin(0, T0, HX, False, cfg["outf"])[:24]
        if pos == 13: fill += red_fin(0, T0, HX, False, cfg["outf"])[24:]
        assert MB >= 32
        late = chk(pos+1) if pos+1 < len(order) else []
        n = 0
        for t in range(4):
            for tau in range(2):
                a = acc2+32*u+16*tau
                P(f" v_mfma_f32_32x32x16_bf16 {vr(a,16)}, {ar(((i*4+t)*2+tau)*4,4)}, {vr(HREG[(u,i)]+4*t,4)}, {'0' if (i == 0 and t == 0) else vr(a,16)}")
                n += 1
                if n <= 5:
                    b = 5; nv = 0
                    while fill and b > 0:
                        if fill[0].lstrip().startswith("buffer_"):
                            if nv >= cfg["v2"]: break
                            nv += 1
                        b -= P.cost(fill[0]); P(fill.pop(0))
                else:
                    P(take(fill, 99)); P(take(late, 5))
        P(late)
        if pos == 6: P.st("b0")
    P.st("g2")
    P(red_write(1))
    P(" s_waitcnt lgkmcnt(0)\n s_barrier")
    P(red_read(1, 144))
    P(" s_waitcnt lgkmcnt(0)")
    P(red_fin(1, 144, HX+8, True, cfg["outf"]))

def build(cfg, stamps=False):
    P = G(stamps); P.cfg = cfg; WARM[0] = cfg['warm']
    if cfg.get("dbg"): P.only = cfg["dbg"].split(",")
    entry(P, cfg)
    setupB = a_consts() + roles()
    P(take(setupB, cfg["nsetB"]))
    if cfg["f_at"] == 0: P(filter_dma(cfg))
    else: P(f""" v_and_b32 v4, 79, v0
 v_lshrrev_b32 v5, 2, v4
 v_and_or_b32 v4, v5, 16, v4
 v_and_b32 v4, 31, v4
 v_lshlrev_b32 v4, 7, v4
 buffer_load_dword v{vDUM}, v4, {srd('SSMK')}, {sF0} offen {cfg['fnt']}""")
    if cfg["x_at"] == 0: P(x_loads())
    if cfg["wt"] == 0: P(w_touch(cfg["wtnt"], cfg["wth"]))
    if cfg["wdc_at"] == -1: P(wd_consts(cfg['a8']))
    P(tag_setup())
    raw = []
    for m in range(cfg["nraw"]): raw += wd_raw(m)
    P.st("pre")
    P.vmwait("L1")
    P.st("L1")
    p0_kv(P)
    P.st("kvst")
    if cfg["f_at"] == 1:
        if cfg["kbar"]: P(" s_barrier")
        P(filter_dma(dict(fnt=cfg["fnt2"])))
    P(take(raw, 2*cfg["raw0"]))
    if cfg["wdm"] == 1: P(wd_mall())
    if cfg["wt"] == 1: P(w_touch(cfg["wtnt"], cfg["wth"]))
    if cfg["x_at"] == 1: P(x_loads())
    P(setupB)
    late = conv_setup() + h1_addr()
    if cfg["f_at"] == 1: P(late + w_table()); late = []
    if cfg["wdc_at"] == 0: P(wd_consts(cfg['a8']))
    P.vmwait("A")
    P(" s_barrier")
    P.st("bar")
    if late: P(late + w_table())
    ap = a_prep(cfg['lazy']) + (wd_consts(cfg['a8']) if cfg["wdc_at"] == 1 else [])
    if cfg["can1"]: P(canary_issue(cfg, 64*OB))
    P(take(ap, cfg["ap_pre"]))
    if cfg["can1"]: P(canary_check(P, "c1", cfg["cbo"]))
    P.st("aprep")
    ng = cfg["g1"]
    early = []
    for i in range(ng): early += w_pair(i, cfg["wnt"])[:2]
    early += take(raw, 2*cfg["raw1"])
    box_recv(P, vIN, "h1", cfg["bo"], ([" s_barrier"] + early if ng else []) + ap)
    kv_to_lds(P)
    P.st("h1")
    if cfg["im"]:
        o, n = idle_mall("im", cfg["im"]); P(o); P.nvm -= n
    wq = []
    for i in range(cfg.get("nw", 16)):
        p = w_pair(i, cfg["wnt"])
        if i < ng: wq += [p[0] + "\n" + p[2], p[3]]
        else: wq += p
    if cfg["x_at"] == 2: P(x_loads())
    if cfg["wdm"] == 2: P(wd_mall())
    nraw = cfg["nraw"]
    if nraw:
        nwc = 2*cfg["wsched"][0][1]
        raw2 = raw[2*cfg["raw_c"]:]; raw = raw[:2*cfg["raw_c"]]
        wq = wq[:nwc] + raw + wq[nwc:]
    conv_mfma(P, wq, cfg["wsched"])
    assert not any("a[" in x for x in wq)
    print("W ops left after conv:", len(wq)//2)
    P.st("mfma")
    conv_epilogue(P)
    P.mark("YST")
    P.st("yst")
    P(" s_barrier")
    if cfg["wdc_at"] == 2: P(wd_consts(cfg['a8']))
    nd = cfg["wd_pre"]
    wl = wq[2*cfg["w3"]:]; wq = wq[:2*cfg["w3"]]
    n3 = cfg["wd3"]
    b3 = ["\n".join(wd_dma(m)) for m in range(n3)] + wq
    if nraw: P.mark("RAWC"); P(raw2); P.mark("RAW")
    if cfg["wdm"] == 3: P(wd_mall())
    P.vmwait("X")
    interleave(P, stat_consts() + ln1(), b3, cfg["w3_every"])
    P(b3)
    gs = g_sconsts(56 - cfg["wd_big"])
    P(h2_consts())
    if cfg.get("dly2"): P(f" s_sleep {cfg['dly2']}")
    if cfg["can2"]: P(canary_issue(cfg, OB))
    P(wd_rconsts(48))
    nb1 = cfg["nb1"] if nraw else 0
    if nb1:
        P([f" v_add_u32 v48, {sRING}, v6"])
        P.marks["RB"] = P.marks["YST"] - 4 if 2*nb1 <= cfg["raw_c"] + cfg["raw0"] + cfg["raw1"] else P.marks["RAW"]
        P.vmwait("RB")
        for u in range(nb1): P(bounce(u, 48))
    P.st("ln1")
    anyw = True
    q4 = take(wl, 2*cfg["w4"])
    box_recv(P, vY, "h2", cfg["bo"], [" s_barrier"] + q4 if q4 else None)
    P.st("h2")
    ln2(P, take(wl, 2*cfg["w5"]), cfg["w5_every"])
    if cfg["h_early"]: P(HST)
    P.st("hnst")
    if cfg["warm"]:
        P([f" s_cmp_lt_u32 {sJL}, 7", " s_cbranch_scc1 L_nowarm"] + ([] if cfg["h_early"] else HST[:2]) + warm_ops(0, cfg["mw_at"]) + idle_mall("x", 8)[0][2:-1] + warm_ops(cfg["mw_at"], cfg["nwarm"]) + ["L_nowarm:"]); P.nvm -= (2 if cfg["h_early"] else 4) + cfg["nwarm"]
    d = n3
    for m in range(d): P(wd_read(m))
    rd = d
    if nraw:
        assert n3 == 0 and nd == 0
        d = rd = nraw
        for m in range(nraw): P.dmarks[f"wd{m}"] = 0
    if cfg["wd_first"]:
        while d < nd: P(wd_dma(d)); d += 1
    P(wl); P.mark("WALL")
    while d < nd: P(wd_dma(d)); d += 1
    post = g_vconsts() + gs
    P(take(post, cfg["hn_hint_at"]))
    if cfg["hnh"]:
        P(f""" s_lshl_b32 {sF0}, {sG}, 2
 s_add_u32 {sF0}, {sF0}, {sW}
 s_lshl_b32 {sF0}, {sF0}, 14
 s_bfe_u32 s30, s2, 0x20001
 s_lshl_b32 s30, s30, 7
 s_add_u32 {sF0}, {sF0}, s30
 s_add_u32 {sF0}, {sF0}, {HI}
 v_and_b32 v221, {cfg['hn_nh']-1}, v0
 v_lshlrev_b32 v221, 9, v221
 buffer_load_dword v{vPD}, v221, {WS}, {sF0} offen sc1
MARK:phn""")
    P(post)
    if nraw:
        P([f" v_add_u32 v4, {sRING}, v6", "WAIT:RAW"])
        for u in range(nb1, nraw//2): P(bounce(u, 4))
        P(" s_waitcnt lgkmcnt(0)")
    P(f"""
 s_or_b32 s3, s2, {sW}
 s_cmp_lg_u32 s3, 0
 s_cbranch_scc1 L_notag
 v_lshlrev_b32 v4, 21, v6
 buffer_store_dword v{vTG}, v4, {WS}, 0 offen sc1
L_notag:
""")
    P.nvm -= 1
    if cfg.get("dly3"): P(f" s_sleep {cfg['dly3']}")
    if anyw: P("WAIT:WALL\n s_barrier")
    P.st("g1go")
    P(f" s_cmp_ge_u32 {sJL}, 7\n s_cbranch_scc1 L_idle")
    save = (P.nvm, P.nds, P.vmdone, P.dsdone, dict(P.marks), dict(P.dmarks))
    MB = cfg["wd_big"]
    if cfg.get("nowd"): cfg["wd_big"] = MB = 56; d = rd = 56
    gemm1(P, cfg, wd_stream(d, rd, MB))
    P(" s_waitcnt lgkmcnt(0)\nL_join:")
    gemm2(P, cfg)
    if stamps:
        P(" s_waitcnt vmcnt(0)"); P.st("end")
        P(f" v_writelane_b32 v11, {sSPIN}, 63\n s_lshl_b32 s3, s2, 10\n s_add_u32 s3, s3, {STAMPS}\n v_lshlrev_b32 v1, 2, v0\n buffer_store_dword v11, v1, {WS}, s3 offen")
    P("L_end:\n s_endpgm")
    P.nvm, P.nds, P.vmdone, P.dsdone, P.marks, P.dmarks = save
    P("L_idle:")
    if cfg["warm"]: P([" s_waitcnt vmcnt(0)", FLAGST])
    else: P(([] if cfg["h_early"] else HST) + ["WAIT:HST", FLAGST])
    P(wd_stream(d, rd, MB))
    for m in range(MB, min(56, MB + cfg["big_pre"])): P(wd_dma(m, sBIG, m - MB))
    for nm in ("hint","hn0","p0","e0","p1","epi"): P.st(nm)
    P(hint_spin("ip0", sPH0, "L_ip0b") + ["L_ip0b:"])
    for i in range(7): P(hh_loads(0, i))
    P(FLAGLD)
    P(" s_waitcnt vmcnt(0) lgkmcnt(0)")
    P.st("ld0")
    P(" s_branch L_join")
    P(P.tail)
    P("L_codeend:")
    if os.environ.get("STAMP") == "2": P.lines = [l.replace("s_memrealtime", "s_memtime") for l in P.lines]
    if cfg.get("nont"): P.lines = [l.replace(" nt", "") if l.lstrip().startswith("buffer_load") else l for l in P.lines]
    body = P.fix()
    head = open("sequential_preLN__ssm_conv_h3__glu_gated_glu__prompt.s.ref").read().split("; Override launch")[0]
    out = head + f"; @launch grid=(256,1,1) block=(256,1,1) lds={LDS_BYTES}\n"
    out += f'.amdgcn_target "amdgcn-amd-amdhsa--gfx950"\n.text\n.globl {NAME}\n.p2align 8\n.type {NAME},@function\n{NAME}:\n' + body
    out += f""" s_endpgm
.section .rodata,"a"
.p2align 6
.amdhsa_kernel {NAME}
  .amdhsa_next_free_vgpr 512
  .amdhsa_next_free_sgpr 102
  .amdhsa_accum_offset 256
  .amdhsa_group_segment_fixed_size 0
  .amdhsa_kernarg_size 104
  .amdhsa_user_sgpr_count 2
  .amdhsa_user_sgpr_kernarg_segment_ptr 1
  .amdhsa_system_sgpr_workgroup_id_x 1
.end_amdhsa_kernel
"""
    if cfg.get("probe"):
        idx = P.stn.index(cfg["probe"])
        Q = G()
        Q(f"""
 s_cmp_ge_u32 s2, 1
 s_cbranch_scc1 L_pend
 s_load_dwordx2 s[48:49], s[0:1], 96
 s_mov_b32 s50, {WS_BYTES}
 s_mov_b32 s51, 0x20000
 v_lshlrev_b32 v1, 8, v0
 v_mov_b32 v2, 0
 s_waitcnt lgkmcnt(0)
 s_mov_b32 s3, {STAMPS}
 buffer_load_dword v3, v2, s[48:51], s3 offen
 v_mov_b32 v4, 0x7fffffff
 v_mov_b32 v5, {0 if cfg.get('pmean') else 0x80000000}
 s_mov_b32 s4, {16 if (cfg['probe'] == 'end' and not cfg.get('pmean')) else 14}
L_pl:
 buffer_load_dword v6, v1, s[48:51], s3 offen
 buffer_load_dword v7, v1, s[48:51], s3 offen offset:{4*idx}
 s_waitcnt vmcnt(0)
 v_sub_u32 v6, v6, v3
 v_sub_u32 v7, v7, v3
 v_min_i32 v4, v4, v6
 {'v_add_u32' if cfg.get('pmean') else 'v_max_i32'} v5, v5, v7
 s_add_u32 s3, s3, 16384
 s_sub_u32 s4, s4, 1
 s_cmp_lg_u32 s4, 0
 s_cbranch_scc1 L_pl
 s_mov_b32 s5, 0x7fffffff
 s_mov_b32 s6, {0 if cfg.get('pmean') else 0x80000000}
 s_mov_b32 s4, 0
L_pr:
 v_readlane_b32 s7, v4, s4
 v_readlane_b32 s8, v5, s4
 s_nop 1
 s_min_i32 s5, s5, s7
 {'s_add_u32' if cfg.get('pmean') else 's_max_i32'} s6, s6, s8
 s_add_u32 s4, s4, 1
 s_cmp_lg_u32 s4, 64
 s_cbranch_scc1 L_pr
 {'s_mul_hi_u32 s6, s6, 4793490' if cfg.get('pmean') else 's_nop 0'}
 s_sub_u32 s6, s6, s5
 s_min_u32 s6, s6, 10000
 s_mul_i32 s6, s6, {cfg.get('pmul', 10)}
 s_memrealtime s[10:11]
 s_waitcnt lgkmcnt(0)
L_ps:
 s_memrealtime s[12:13]
 s_waitcnt lgkmcnt(0)
 s_sub_u32 s7, s12, s10
 s_cmp_lt_u32 s7, s6
 s_cbranch_scc1 L_ps
L_pend:
 s_endpgm
""")
        out = out.replace(f"; @launch grid=(256,1,1) block=(256,1,1) lds={LDS_BYTES}\n", f"; @launch kernel={NAME} grid=(256,1,1) block=(256,1,1) lds={LDS_BYTES}\n; @launch kernel=probe_kernel grid=(1,1,1) block=(64,1,1) lds=0\n")
        out = out.replace('.section .rodata,"a"', '.globl probe_kernel\n.p2align 8\n.type probe_kernel,@function\nprobe_kernel:\n' + Q.fix() + '.section .rodata,"a"')
        kd = out[out.index(".p2align 6\n.amdhsa_kernel"):]
        out += kd.replace(NAME, "probe_kernel").replace("vgpr 512", "vgpr 16").replace("offset 256", "offset 16")
    return out, P
CFG = dict(bar_late=1, raw0=0, raw1=0, nraw=8, raw_c=8, nb1=4, h_early=1, pre_late=1, big_per=6, v2=2, g1=4, w4=10, mw_at=4, nwarm=6, warm=0, lazy=1, vgap=1, wt=9, wtnt="", wth=0, a8=0, can1=0, can2=0, cmask=0x00010001, cbo=6, hnh=0, hn_nh=16, hn_hint_at=999, hbo=8, ap_pre=10, wsched=[(1,4,1),(30,8,5)],
           f_at=1, kbar=1, fnt2="", pf_after="SHK", nsetB=47, fnt="nt", x_at=0, wdm=0, wdc_at=0, bo=4, wnt="", w3=0, w3_every=4, wd3=0, wd_pre=0, wd_first=1, im=0,
           w5=0, w5_every=2, wd_rate=(0.8,0.9), wd_big=44, slots=(6,6), big_pre=0, big_every=8, outf="", dly3=0, dly2=0, hold=0,
           e0_exp=4, hhh=1, h0_k=12, hh_at={17:0, 20:1, 23:2, 26:3, 29:4}, hh1=0, h1_lead=2, b1_at={5:[0,1],6:[2,3],7:[4],8:[5],9:[6]}, hres_at=3)
if __name__ == "__main__":
    cfg = dict(CFG)
    for a in sys.argv[2:]:
        k, v = a.split("=", 1); cfg[k] = eval(v)
    out, P = build(cfg, bool(os.environ.get("STAMP")))
    open(sys.argv[1], "w").write(out)
    if os.environ.get("STAMP"): open(sys.argv[1] + ".names", "w").write(" ".join(P.stn))
    print("lines", len(P.lines), "nops", P.nops)
```

```python
import sys, os, re
sys.path.insert(0, "gen")
from asmlib import Prog

NAME = "sequential_preLN__ssm_conv_h3__glu_gated_glu__prompt_kernel"
TAGSLOT = 0
HC    = 0x080000
FL    = 0x0C0000
HI    = 0x1580000
OB    = 16640
KVBOX = 0x100000
YBOX  = 0x520000
HN    = 0x940000
HRES  = 0xB40000
HH    = 0xD40000
GS    = 4480
STAMPS = 0x1600000
WS_BYTES = 0x1700000
SRD = dict(X=8, K=12, V=16, SHK=20, SSMK=24, SSMD=28, WG=32, WU=36, WD=40, OUT=44, WS=48)
KOFF = dict(X=0, K=8, V=16, SHK=24, SSMK=32, SSMD=40, WG=56, WU=64, WD=72, OUT=80, WS=96)
SIZE = dict(X=2097152, K=2097152, V=2097152, SHK=4096, SSMK=2097152, SSMD=1024, WG=1835008, WU=1835008, WD=1835008, OUT=2097152, WS=WS_BYTES)
def srd(n): return f"s[{SRD[n]}:{SRD[n]+3}]"
WS = srd("WS")
sHNst, sWM, sBIG, sRING, sW, sFLst, sFLld, sG, sJ, sTAG, sLO, sHI, sMASK, sHRES, sT = [f"s{i}" for i in range(52, 67)]
sJL, sO0, sO1, sHS0, sHS1, sSB, sHCst, sE, sSPIN, sHR0, sHR1, sPH1, sL3 = [f"s{i}" for i in range(67, 80)]
sWD = 80
sHC = 87
sPH0, sP, sF0 = "s95", "s96", "s97"
sC = sP
sWT = 12
sHL = 16
sHN = 8
def vr(b, n): return f"v[{b}:{b+n-1}]" if n > 1 else f"v{b}"
def ar(b, n): return f"a[{b}:{b+n-1}]" if n > 1 else f"a{b}"
def L(text): return [l for l in text.split("\n") if l.strip()]
def take(l, n):
    o = l[:n]; del l[:n]; return o

WGB, WUB = 0, 65536
PART = 131072; FC = 96256; CS2 = 4352
KVR = 131072; KVCH = 4608
RING = 131072; NR = 7
STAT = 163840 - 512
BS = 1088; REDW = 16*BS
LDS_BYTES = 163840
SPIN = 20000

class G(Prog):
    def __init__(self, stamps=False):
        super().__init__(); self.nvm = 0; self.nds = 0; self.vmdone = 0; self.dsdone = 0
        self.marks = {}; self.dmarks = {}; self.stamps = stamps; self.tail = []; self.only = None; self.stn = ["start"]
    def __call__(self, text):
        if isinstance(text, list):
            for t in text: self(t)
            return
        for l in text.split("\n"):
            s = l.strip()
            if not s: continue
            if s.startswith("WAIT:"): self.vmwait(s[5:]); continue
            if s.startswith("MARK:"): self.mark(s[5:]); continue
            if s.startswith("DWAIT:"): self.dwait(s[6:]); continue
            if s.startswith("DMARK:"): self.dmarks[s[6:]] = self.nds; continue
            if s in ("SKIP", "GAP"): continue
            if s.startswith(("buffer_", "global_")): self.nvm += 1
            if s.startswith("ds_"): self.nds += 1
            if s.startswith("s_waitcnt"):
                m = re.search(r"vmcnt\((\d+)\)", s)
                if m: self.vmdone = max(self.vmdone, self.nvm - int(m.group(1)))
                m = re.search(r"lgkmcnt\((\d+)\)", s)
                if m: self.dsdone = max(self.dsdone, self.nds - int(m.group(1)))
            self.lines.append(l.rstrip())
    def mark(self, name): self.marks[name] = self.nvm
    def vmwait(self, name):
        if self.vmdone < self.marks[name]: self(f" s_waitcnt vmcnt({min(self.nvm - self.marks[name], 63)})")
    def dwait(self, name):
        if self.dsdone < self.dmarks[name]: self(f" s_waitcnt lgkmcnt({min(self.nds - self.dmarks[name], 15)})")
    def cost(self, s):
        t = s.strip()
        if t.startswith(("MARK:", "DMARK:")): return 0
        if t.startswith("WAIT:"): return 0 if self.vmdone >= self.marks[t[5:]] else 1
        if t.startswith("DWAIT:"): return 0 if self.dsdone >= self.dmarks[t[6:]] else 1
        if t == "SKIP": return 3
        if t == "GAP": return 0
        if t.startswith("s_cbranch"): return 2
        if t.startswith(("v_exp", "v_rcp")): return 2
        return 1
    def st(self, i):
        if self.stamps and (self.only is None or i in self.only):
            if i not in self.stn: self.stn.append(i)
            self.lines += [" s_memrealtime s[98:99]", " s_waitcnt lgkmcnt(0)", f" v_writelane_b32 v11, s98, {self.stn.index(i)}", f" v_writelane_b32 v11, {sSPIN}, {32+self.stn.index(i)}"]
def interleave(P, work, bulk, every):
    n = 0
    for wk in work:
        P(wk); n += 1
        if bulk and n % every == 0: P(bulk.pop(0))

vK, vW, vV, vKS, vT = 144, 164, 180, 188, 204
vD, vQ, vX = 220, 224, 240
vBB = [8, 10, 248, 249]
vSW, vDUM, vR, vWD = 250, 251, 252, 254
vWr = (8, 255)
vA, vAx, vB, vIN, aC = 16, 208, 144, 160, 224
vSEL = 216
vq, vu1 = 208, 224
vONE, vTG, vC, vHC, vHC1, vPH, vHASH, vL2, vOUT, vPD, vHP = 7, 10, 2, 248, 249, 220, 222, 223, 9, 5, 224
vHN, vRa = 16, 12
acc0, acc1, acc2, vE = 80, 144, 16, 240
CHN = [208, 209, 210, 211]
CHH = {(0,i): 212+i for i in range(7)}
CHH.update({(1,0):208,(1,1):209,(1,2):210,(1,3):211,(1,4):219,(1,5):221,(1,6):212})
HREG = {(0,0):224, (0,1):80, (0,2):96, (0,3):112, (0,4):128, (0,5):48, (0,6):64,
        (1,0):144, (1,1):160, (1,2):176, (1,3):192, (1,4):224, (1,5):80, (1,6):96}

def srdc(names): return [x for n in names for x in (f" s_mov_b32 s{SRD[n]+2}, {SIZE[n]}", f" s_mov_b32 s{SRD[n]+3}, 0x20000")]
def entry(P, cfg):
    P(" s_cmp_ge_u32 s2, 256\n s_cbranch_scc1 L_end")
    if P.stamps: P(" s_memrealtime s[98:99]")
    for n in ("K","V","SHK","WS","SSMK","X","SSMD","WD","WG","WU","OUT"):
        P(f" s_load_dwordx2 s[{SRD[n]}:{SRD[n]+1}], s[0:1], {KOFF[n]}")
        if n == cfg["pf_after"]:
            P(f"""
 s_getpc_b64 s[4:5]
L_pc:
 s_bfe_u32 s3, s2, 0x20003
 s_mul_i32 s3, s3, 12288
 v_lshlrev_b32 v4, 7, v0
 v_add_u32 v5, s3, v4
 v_cmp_gt_u32 vcc, 32, v0
 v_cndmask_b32 v4, v5, v4, vcc
 v_min_u32 v4, L_codeend-L_pc-4, v4
 v_cmp_gt_u32 vcc, 128, v0
 s_and_saveexec_b64 s[6:7], vcc
 s_cbranch_execz L_nopf
 global_load_dword v{vDUM}, v4, s[4:5]
L_nopf:
 s_mov_b64 exec, s[6:7]
""")
    P(f"""
 s_and_b32 s3, s2, 7
 s_lshl_b32 s3, s3, 5
 s_lshr_b32 {sP}, s2, 3
 s_or_b32 {sP}, {sP}, s3
 v_lshrrev_b32 v4, 6, v0
 v_and_b32 v1, 3, v0
 v_readfirstlane_b32 {sW}, v4
 v_lshrrev_b32 v2, 2, v0
 s_lshl_b32 s3, {sP}, 13
 v_lshlrev_b32 v3, 11, v1
 v_lshl_add_u32 v3, v2, 4, v3
 v_add_u32 v3, s3, v3
 v_subrev_u32 v4, 3072, v3
 v_subrev_u32 v5, 2048, v3
 v_subrev_u32 v8, 1024, v3
 v_lshlrev_b32 v9, 4, v0
""")
    P(srdc(("K","V","SHK")))
    pre2 = L(f"""
 v_and_b32 v6, 63, v0
 v_lshlrev_b32 v6, 4, v6
 s_lshl_b32 {sF0}, {sC}, 1
 s_lshr_b32 s7, {sW}, 1
 s_add_u32 {sF0}, {sF0}, s7
 s_lshl_b32 {sF0}, {sF0}, 12
 s_mul_i32 s7, {sW}, {2*CS2}
 s_add_u32 s7, s7, {FC}
 s_bitcmp1_b32 {sW}, 0
 s_cselect_b32 s3, 160, 0
 s_cselect_b32 {sBIG}, 32, 128
 s_cselect_b32 s5, 8, 0
 s_add_u32 s3, s3, s7
 s_add_u32 {sBIG}, {sBIG}, s7
 s_add_u32 {sBIG}, {sBIG}, {CS2}
 v_mov_b32 v12, 0
 v_and_b32 v14, 7, v0
 v_lshl_add_u32 v13, v14, 2, s3
 v_lshl_add_u32 v14, v14, 2, {sBIG}
 ds_write_b32 v13, v12
 ds_write_b32 v14, v12
 s_sub_u32 s3, s3, s5
 s_sub_u32 {sBIG}, {sBIG}, s5
 s_add_u32 m0, s3, 32
 s_mul_i32 s4, {sP}, {OB}
 s_add_u32 s4, s4, {KVBOX}
 s_add_u32 s5, s4, 4096
 s_add_u32 s6, s4, 8192
 s_add_u32 s7, s4, 12288
 s_mov_b32 {sLO}, 0x05040100
 s_mov_b32 {sHI}, 0x07060302
 s_mov_b32 {sMASK}, 0xffff0000
 s_mov_b32 {sSPIN}, {SPIN if P.stamps else 400000}
 v_lshlrev_b32 v7, 4, v2""") + srdc(("SSMK","WS","X","SSMD","WD")) + [f" v_mov_b32 v{vKS+i}, 0" for i in range(16)]
    P(pre2)
    if P.stamps: P(" v_mov_b32 v11, 0\n s_waitcnt lgkmcnt(0)\n v_writelane_b32 v11, s98, 0"); P.st("karg")
    P(f"""
 s_waitcnt lgkmcnt(0)
 buffer_load_dwordx4 {vr(vK,4)}, v4, {srd('K')}, 0 offen nt
 buffer_load_dwordx4 {vr(vK+4,4)}, v5, {srd('K')}, 0 offen nt
 buffer_load_dwordx4 {vr(vK+8,4)}, v8, {srd('K')}, 0 offen nt
 buffer_load_dwordx4 {vr(vK+12,4)}, v3, {srd('K')}, 0 offen nt
 buffer_load_dwordx4 {vr(vK+16,4)}, v3, {srd('K')}, 0 offen offset:1024 nt
 buffer_load_dwordx4 {vr(vV,4)}, v3, {srd('V')}, 0 offen nt
 buffer_load_dwordx4 {vr(vV+4,4)}, v3, {srd('V')}, 0 offen offset:1024 nt
 buffer_load_dwordx4 {vr(vW,4)}, v9, {srd('SHK')}, 0 offen
MARK:L1
 s_load_dword {sTAG}, s[{SRD['WS']}:{SRD['WS']+1}], {TAGSLOT}
""")
def filter_dma(cfg):
    nt = cfg["fnt"]
    o = [f" buffer_load_dwordx4 v6, {srd('SSMK')}, {sF0} offen offset:{1024*i} {nt} lds" for i in range(4)]
    o.append(f" s_add_u32 m0, {sBIG}, 28")
    o += [f" buffer_load_dwordx4 v6, {srd('SSMK')}, {sF0} offen offset:{1024*i} {nt} lds" for i in range(4)]
    return o + ["MARK:A"]
def x_loads():
    return [f" buffer_load_dwordx4 {vr(vX,4)}, v3, {srd('X')}, 0 offen nt",
            f" buffer_load_dwordx4 {vr(vX+4,4)}, v3, {srd('X')}, 0 offen offset:1024 nt",
            f" buffer_load_dwordx4 {vr(vD,4)}, v7, {srd('SSMD')}, 0 offen", "MARK:X"]
def tag_setup():
    return [" s_waitcnt lgkmcnt(0)", f" s_add_u32 {sTAG}, {sTAG}, 0x9E3779B1"] + [f" v_mov_b32 v{vQ+2*t+1}, {sTAG}" for t in range(8)]
def p0_kv(P):
    Krow = lambda i, d: vK + 4*i + d
    prs = [(3,2),(1,0),(4,3),(2,1)]
    for t in range(4):
        T = vT + 8*(t & 1)
        for c in range(2):
            for n,(x,y) in enumerate(prs):
                P(f" v_perm_b32 v{T+4*c+n}, v{Krow(y,t)}, v{Krow(x,t)}, {sHI if c else sLO}")
        ks = vKS + 4*t
        qp = f"quad_perm:[{t},{t},{t},{t}] row_mask:0xf bank_mask:0xf"
        for hi in (1, 0):
            for c in range(2):
                P(f" v_dot2c_f32_bf16_dpp v{ks+c}, v{vW+2*c+hi}, v{T+4*c+hi} {qp}")
                P(f" v_dot2c_f32_bf16_dpp v{ks+2+c}, v{vW+2*c+hi}, v{T+4*c+2+hi} {qp}")
        P(f""" v_lshlrev_b32 v{T}, 16, v{vV+t}
 v_and_b32 v{T+1}, {sMASK}, v{vV+t}
 v_lshlrev_b32 v{T+2}, 16, v{vV+4+t}
 v_and_b32 v{T+3}, {sMASK}, v{vV+4+t}
 v_pk_mul_f32 {vr(ks,2)}, {vr(ks,2)}, {vr(T,2)}
 v_pk_mul_f32 {vr(ks+2,2)}, {vr(ks+2,2)}, {vr(T+2,2)}
 v_cvt_pk_bf16_f32 v{vQ+4*t}, v{ks}, v{ks+1}
 v_cvt_pk_bf16_f32 v{vQ+4*t+2}, v{ks+2}, v{ks+3}
 buffer_store_dwordx4 {vr(vQ+4*t,4)}, v9, {WS}, s{4+t} offen sc1""")
def wd_mall():
    return L(f""" s_lshl_b32 s100, s2, 2
 s_add_u32 s100, s100, {sW}
 s_mul_i32 s100, s100, 1792
 v_lshlrev_b32 v4, 3, v6
 v_min_u32 v4, {13*128}, v4
 buffer_load_dword v{vDUM}, v4, {srd('WD')}, s100 offen""")
def idle_mall(name, nx):
    per = 112*(8//nx)
    o = L(f""" s_cmp_lt_u32 {sJL}, 7
 s_cbranch_scc1 L_{name}
 s_and_b32 s100, s2, {nx-1}
 s_lshl_b32 s100, s100, 2
 s_add_u32 s100, s100, {sL3}
 s_lshl_b32 s100, s100, 2
 s_add_u32 s100, s100, {sW}
 s_mul_i32 s100, s100, {per*128}
 v_lshlrev_b32 v4, 3, v6
 v_min_u32 v4, {55*128}, v4""")
    for i in range(per//56): o += [f" buffer_load_dword v{vDUM}, v4, {srd('WD')}, s100 offen", f" s_add_u32 s100, s100, {56*128}"]
    return o + [f"L_{name}:"], per//56
def w_touch(nt, half):
    o = L(f""" s_lshl_b32 s100, {sL3}, 7
 s_and_b32 s3, s2, 1
 s_lshl_b32 s3, s3, 6
 s_add_u32 s100, s100, s3
 s_lshl_b32 s3, {sW}, {4 if half else 5}
 s_add_u32 s100, s100, s3
 v_and_b32 v4, {15 if half else 31}, v0
 v_add_u32 v4, s100, v4
 v_and_b32 v4, 511, v4
 v_mul_u32_u24 v4, 3584, v4
 s_lshl_b32 s100, {sJ}, 7
 buffer_load_dword v{vDUM}, v4, {srd('WG')}, s100 offen {nt}
 buffer_load_dword v{vDUM}, v4, {srd('WU')}, s100 offen {nt}""")
    return o
def a_consts():
    return L(f"""
 v_and_b32 v4, 15, v0
 v_add_u32 v4, 1, v4
 v_bfe_u32 v15, v4, 1, 2
 v_lshlrev_b32 v12, 3, v15
 s_mov_b32 s3, 0x020A0800
 v_bfe_u32 v12, s3, v12, 8
 v_mul_u32_u24 v15, {CS2}, v15
 v_lshrrev_b32 v4, 3, v4
 v_add_u32 v4, v4, v12
 v_lshl_add_u32 v15, v4, 4, v15
 v_bfe_u32 v4, v0, 4, 3
 v_lshl_add_u32 v15, v4, 6, v15
 s_lshr_b32 s3, {sW}, 1
 s_mul_i32 s3, s3, {4*CS2}
 s_add_u32 s3, s3, {FC}
 v_add_u32 v15, s3, v15
 v_and_b32 v12, 1, v0
 v_mul_u32_u24 v12, 0x020202, v12
 v_lshl_or_b32 v12, v12, 8, v12
 v_sub_u32 v12, 0x05040302, v12""")
def a_perm(a, i):
    nxt = vA+16*a+i+1 if i < 15 else vAx+a
    return f" v_perm_b32 v{vA+16*a+i}, v{nxt}, v{vA+16*a+i}, v{vSEL}"
def a_prep(lazy):
    def rd(a): return [f" ds_read_b128 {vr(vA+16*a+4*bb,4)}, v15 offset:{512*a+16*bb}" for bb in range(4)] + [f" ds_read_b32 v{vAx+a}, v15 offset:{512*a+64}", f"DMARK:a{a}"]
    o = [f" v_mov_b32 v{vSEL}, v12"] + rd(0) + rd(1)
    for a in range(8):
        if a+2 < 8: o += rd(a+2)
        o.append(f"DWAIT:a{a}")
        for i in range(4*lazy): o.append(a_perm(a, i))
    return o
def roles():
    t = 168
    o = L(f"""
 s_bfe_u32 {sL3}, s2, 0x20003
 s_lshr_b32 {sJL}, s2, 5
 s_and_b32 s3, s2, 1
 s_lshl_b32 s3, s3, 2
 s_add_u32 {sG}, s3, {sL3}
 s_bfe_u32 s3, s2, 0x20001
 s_mul_i32 s3, s3, 7
 s_add_u32 {sJ}, s3, {sJL}
 s_cmp_ge_u32 {sJL}, 7
 s_cselect_b32 s{SRD['WG']+2}, 0, {SIZE['WG']}
 s_mov_b32 s{SRD['WG']+3}, 0x20000
 s_mov_b32 s{SRD['WU']+2}, s{SRD['WG']+2}
 s_mov_b32 s{SRD['WU']+3}, 0x20000
 v_bfe_u32 v{t+1}, v0, 3, 3
 v_and_b32 v{t+3}, 7, v0
 v_mul_u32_u24 v{t+2}, 3584, v{t+1}
 v_and_b32 v{t+4}, 2, v{t+1}
 v_xor_b32 v{t+5}, v{t+3}, v{t+4}
 s_lshl_b32 s3, {sJ}, 7
 v_add_u32 v{t+2}, s3, v{t+2}
 v_lshl_add_u32 v{vR}, v{t+5}, 4, v{t+2}
 v_xor_b32 v{t+5}, 4, v{t+5}
 v_lshl_add_u32 v{vR+1}, v{t+5}, 4, v{t+2}
 v_lshlrev_b32 v{t+4}, 1, v{t+4}
 v_xor_b32 v{t+3}, v{t+3}, v{t+4}
 v_lshlrev_b32 v{t+1}, 10, v{t+1}
 v_lshl_add_u32 v{vWD}, v{t+3}, 4, v{t+1}""")
    return o
def w_table():
    o = L(f""" s_lshl_b32 s100, {sL3}, 4
 s_and_b32 s3, s2, 1
 s_lshl_b32 s3, s3, 3
 s_add_u32 s100, s100, s3
 s_add_u32 s100, s100, {sW}
 s_lshl_b32 s3, {sJL}, 3
 s_sub_u32 {sWM}, s100, s3
 s_lshl_b32 {sWM}, {sWM}, 10""")
    for idx in range(16): o += [f" s_add_u32 s3, s100, {4*idx}", " s_and_b32 s3, s3, 63", f" s_mul_i32 s{sWT+idx}, s3, {8*3584}"]
    return o
def w_pair(idx, nt):
    return [f" s_add_u32 s101, {sWM}, {idx*4096}\n s_and_b32 m0, s101, 0xffff", f" buffer_load_dwordx4 v{vR}, {srd('WG')}, s{sWT+idx} offen {nt} lds",
            f" s_add_u32 m0, m0, 65536", f" buffer_load_dwordx4 v{vR+1}, {srd('WU')}, s{sWT+idx} offen {nt} lds"]
def conv_setup():
    t = 176
    o = L(f"""
 v_mov_b32 v{t}, 0
 v_and_b32 v13, 127, v0
 v_lshlrev_b32 v13, 2, v13
 v_lshrrev_b32 v14, 7, v0
 v_mul_u32_u24 v14, {KVCH}, v14
 s_mov_b32 s3, {KVR+4096}
 v_add3_u32 v13, v13, v14, s3
 ds_write_b32 v13, v{t}
 v_and_b32 v13, 15, v0
 v_lshlrev_b32 v13, 5, v13
 v_bfe_u32 v14, v0, 4, 3
 v_lshlrev_b32 v14, 6, v14
 v_sub_u32 v14, v14, v13
 v_add_u32 v14, 480, v14
 s_lshr_b32 s3, {sW}, 1
 s_mul_i32 s3, s3, {KVCH}
 s_add_u32 s3, s3, {KVR}""")
    for bb in range(4):
        o += L(f""" v_add_u32 v13, {16*bb}, v14
 v_lshrrev_b32 v{t+1}, 4, v13
 v_and_b32 v{t+1}, 16, v{t+1}
 v_xor_b32 v13, v13, v{t+1}
 v_add_u32 v{vBB[bb]}, s3, v13""")
    o += L(f"""
 v_lshlrev_b32 v13, 2, v0
 v_sub_u32 v13, 1020, v13
 v_lshrrev_b32 v{t+1}, 4, v13
 v_and_b32 v{t+1}, 16, v{t+1}
 v_xor_b32 v13, v13, v{t+1}
 v_add_u32 v13, {KVR}, v13
 v_mul_u32_u24 v14, {OB}, v2
 v_lshl_add_u32 v14, v1, 4, v14""")
    return o
def h1_addr():
    return L(f"""
 s_and_b32 s4, {sC}, 3
 s_lshl_b32 s4, s4, 12
 s_lshr_b32 s3, {sC}, 2
 s_lshl_b32 s3, s3, 6
 s_add_u32 s4, s4, s3
 s_add_u32 s4, s4, {KVBOX}
 s_add_u32 s5, s4, {64*OB}
 s_add_u32 s6, s4, {128*OB}
 s_add_u32 s7, s4, {192*OB}""")
def box_recv(P, base, name, sleep, shadow=None, spec=()):
    lds = [f" buffer_load_dwordx4 {vr(base+4*i,4)}, v14, {WS}, s{4+i} offen sc1" for i in range(4)]
    P(lds); P.mark(name)
    if shadow: P(shadow)
    P.vmwait(name)
    P(f"L_{name}:")
    P(f" v_xor_b32 v4, {sTAG}, v{base+1}")
    for i in range(1, 8): P(f" v_bitop3_b32 v4, v4, v{base+2*i+1}, {sTAG} bitop3:0xf6")
    P(f" v_cmp_ne_u32 vcc, 0, v4\n s_mov_b64 exec, -1")
    P(list(spec))
    P(f" s_cbranch_vccnz L_{name}_r\nL_{name}_ok:")
    P.tail += L(f"""L_{name}_r:
 s_mov_b64 exec, vcc
 s_sleep {sleep}""") + lds + L(f""" s_waitcnt vmcnt(0)
 s_sub_u32 {sSPIN}, {sSPIN}, 1
 s_cbranch_scc0 L_{name}
 s_mov_b32 {sSPIN}, 0
 s_mov_b64 exec, -1
 s_branch L_{name}_ok""")
def canary_issue(cfg, stride):
    m = cfg["cmask"]
    return L(f"""
 s_bfe_u32 {sT}, {sP}, 0x20003
 s_mul_i32 {sT}, {sT}, {stride}
 s_add_u32 {sT}, {sT}, s4
 s_bfe_u32 s3, {sP}, 0x20001
 s_lshl_b32 s3, s3, 2
 s_mov_b32 s100, {m}
 s_mov_b32 s101, {m}
 s_lshl_b64 s[100:101], s[100:101], s3
 v_mov_b32 v7, {sTAG}
 s_mov_b64 exec, s[100:101]
 buffer_load_dword v7, v14, {WS}, {sT} offen offset:4 sc1
 s_mov_b64 exec, -1
MARK:can""")
def canary_check(P, name, sleep):
    P.tail += L(f"""L_{name}_r:
 s_sub_u32 {sSPIN}, {sSPIN}, 1
 s_cbranch_scc1 L_{name}_x
 s_mov_b64 exec, vcc
 s_sleep {sleep}
 buffer_load_dword v7, v14, {WS}, {sT} offen offset:4 sc1
 s_mov_b64 exec, -1
 s_waitcnt vmcnt(0)
 v_cmp_ne_u32 vcc, {sTAG}, v7
 s_cbranch_vccnz L_{name}_r
 s_branch L_{name}_b
L_{name}_x:
 s_mov_b32 {sSPIN}, 0
 s_branch L_{name}_b""")
    return ["WAIT:can", f" v_cmp_ne_u32 vcc, {sTAG}, v7", f" s_cbranch_vccnz L_{name}_r", f"L_{name}_b:"]
KP = 176
def kv_perm(): return [f" v_perm_b32 v{KP+2*i+c}, v{vIN+4*i}, v{vIN+4*i+2}, {sHI if c else sLO}" for i in range(4) for c in range(2)]
def kv_to_lds(P):
    for i in range(4): P(f" ds_write2st64_b32 v13, v{KP+2*i}, v{KP+2*i+1} offset0:{(3-i)*4} offset1:{(3-i)*4+KVCH//256}")
    P(" s_waitcnt lgkmcnt(0)\n s_barrier")
QD = 144
def conv_epi_consts():
    return L(f"""
 v_bfe_u32 v13, v0, 4, 2
 v_lshlrev_b32 v14, 6, v13
 v_xor_b32 v13, v14, v6
 s_lshl_b32 s3, {sW}, 13
 s_add_u32 s3, s3, {PART}
 v_add_u32 v13, s3, v13
 v_bfe_u32 v15, v0, 1, 2
 v_bfe_u32 v14, v0, 3, 4
 v_lshlrev_b32 v12, 2, v15
 v_xor_b32 v14, v14, v12
 v_lshlrev_b32 v14, 4, v14
 v_lshl_add_u32 v14, v15, 8, v14
 v_lshrrev_b32 v15, 7, v0
 v_lshl_add_u32 v14, v15, 10, v14
 v_and_b32 v15, 1, v0
 v_lshl_add_u32 v14, v15, 3, v14
 v_add_u32 v14, {PART}, v14
 s_mul_i32 s4, {sC}, {OB}
 s_add_u32 s4, s4, {YBOX}
 s_add_u32 s5, s4, 4096
 s_add_u32 s6, s4, 8192
 s_add_u32 s7, s4, 12288""")
def conv_mfma(P, bulk, sched):
    lazy = P.cfg['lazy']
    def rd(bb): return [f" ds_read_b128 {vr(vB+32*(bb&1)+4*d,4)}, v{vBB[bb]} offset:{(7-d)*512}" for d in range(8)]
    def mf(j, a, bb, first): P(f" v_mfma_f32_16x16x32_bf16 {ar(aC+4*j,4)}, {vr(vA+16*a+4*bb,4)}, {vr(vB+32*(bb&1)+4*(j-a),4)}, {'0' if first else ar(aC+4*j,4)}")
    used = [0]; n = [0]; cur = []
    def due():
        allowed = sum(min(2*c, max(0, (n[0] - s0)//e + 1)) for (s0, c, e) in sched)
        return used[0] < allowed
    q1 = []; q2 = []; extra = conv_epi_consts()
    def fillers(k=2):
        n[0] += 1
        while k > 0:
            if not cur and bulk and due():
                cur.extend(x for x in bulk.pop(0).split("\n") if x.strip() != "SKIP"); used[0] += 1
                continue
            if q1: P(q1.pop(0))
            elif cur:
                x = cur.pop(0); P(x)
                if " m0," in x and not cur and k == 2 and not q2 and not extra: k -= 1
            elif q2: P(q2.pop(0))
            elif extra: P(extra.pop(0))
            else: break
            k -= 1
    P(rd(0))
    for bb in range(3):
        q2 += [a_perm(a, i) for a in range(8) for i in range(4*(bb+1), 4*(bb+2))] if bb+1 >= lazy else []
        order = [(a+d, a, d) for d in range(8) for a in range(8-d)]
        for idx, (j, a, d) in enumerate(order):
            if idx == 0: P(" s_waitcnt lgkmcnt(7)" if bb == 0 else " s_waitcnt lgkmcnt(0)")
            if bb == 0 and idx == 8: P(" s_waitcnt lgkmcnt(0)")
            if idx == 8: q1 += rd(bb+1)
            mf(j, a, bb, bb == 0 and d == 0)
            fillers(1 if (idx == 35 or (bb == 0 and idx == 7)) else 2)
        if q2: print("perm spill", len(q2), end=" ")
        P(q2); del q2[:]
    P(extra); del extra[:]
    P(" s_waitcnt lgkmcnt(0)\n s_barrier")
    q2 += [f" v_mov_b32 v{QD+2*i+1}, {sTAG}" for i in range(8)]
    wr = []; cnt = 0
    for j in range(8):
        for a in range(j+1):
            mf(j, a, 3, False); cnt += 1
            if wr and wr[0][1] + 4 <= cnt: q1.append(wr.pop(0)[0])
            fillers()
        wr.append((f" ds_write_b128 v13, {ar(aC+4*j,4)} offset:{j*1024}", cnt))
    P(q1); P(cur); P(q2)
    for x in wr: P(x[0])
def conv_epilogue(P):
    R = 16
    P(" s_waitcnt lgkmcnt(0)\n s_barrier")
    for i in range(4):
        for c in range(2): P(f" ds_read2st64_b64 {vr(R+8*i+4*c,4)}, v14 offset0:{4*i+32*c} offset1:{4*i+32*c+16}")
    for i in range(4):
        P(f" s_waitcnt lgkmcnt({6-2*i})")
        b = R+8*i
        P(f""" v_pk_add_f32 {vr(b,2)}, {vr(b,2)}, {vr(b+2,2)}
 v_pk_add_f32 {vr(b+4,2)}, {vr(b+4,2)}, {vr(b+6,2)}
 v_cvt_pk_bf16_f32 v{QD+4*i}, v{b}, v{b+4}
 v_cvt_pk_bf16_f32 v{QD+4*i+2}, v{b+1}, v{b+5}
 buffer_store_dwordx4 {vr(QD+4*i,4)}, v9, {WS}, s{4+i} offen sc1""")

vSR = 15
def stat_consts():
    return L(f"""
 v_bfe_u32 v{vSW}, v0, 4, 4
 v_lshl_add_u32 v{vSW}, v1, 4, v{vSW}
 v_lshlrev_b32 v{vSW}, 2, v{vSW}
 v_add_u32 v{vSW}, {STAT}, v{vSW}
 v_lshlrev_b32 v{vSR}, 6, v1
 v_add_u32 v{vSR}, {STAT}, v{vSR}
 s_mov_b32 s30, 0x3b000000
 s_mov_b32 s31, 0x3b000000""")
def row_stats(src, tmp, off, mr, shadow):
    o = []
    a = tmp+8
    for r in range(2):
        b = src+8*r
        o.append(f" v_pk_add_f32 {vr(a+4*r,2)}, {vr(b,2)}, {vr(b+2,2)}")
        o.append(f" v_pk_mul_f32 {vr(a+4*r+2,2)}, {vr(b,2)}, {vr(b,2)}")
    for i in range(1, 4):
        for r in range(2):
            b = src+8*r+2*i
            if i >= 2: o.append(f" v_pk_add_f32 {vr(a+4*r,2)}, {vr(a+4*r,2)}, {vr(b,2)}")
            o.append(f" v_pk_fma_f32 {vr(a+4*r+2,2)}, {vr(b,2)}, {vr(b,2)}, {vr(a+4*r+2,2)}")
    for k in range(4): o.append(f" v_add_f32 v{tmp+k}, v{a+2*k}, v{a+2*k+1}")
    sh = list(shadow)
    def S(n): return take(sh, n)
    o += S(2) + [f" v_permlane32_swap_b32 v{tmp}, v{tmp+1}", f" v_permlane32_swap_b32 v{tmp+2}, v{tmp+3}",
          f" v_add_f32 v{tmp}, v{tmp}, v{tmp+1}", f" v_add_f32 v{tmp+2}, v{tmp+2}, v{tmp+3}"] + S(2) + \
         [f" v_permlane16_swap_b32 v{tmp}, v{tmp+2}", f" v_add_f32 v{tmp}, v{tmp}, v{tmp+2}"] + S(2) + \
         [f" v_add_f32_dpp v{tmp}, v{tmp}, v{tmp} row_ror:4 row_mask:0xf bank_mask:0xf"] + S(2) + \
         [f" v_add_f32_dpp v{tmp}, v{tmp}, v{tmp} row_ror:8 row_mask:0xf bank_mask:0xf", f" ds_write_b32 v{vSW}, v{tmp} offset:{off}"] + S(8) + \
         [" s_waitcnt lgkmcnt(0)", " s_barrier"] + \
         [f" ds_read_b128 {vr(tmp+8+4*k,4)}, v{vSR} offset:{off+16*k}" for k in range(4)] + S(99) + [" s_waitcnt lgkmcnt(0)"]
    o += L(f"""
 v_pk_add_f32 {vr(a,2)}, {vr(a,2)}, {vr(a+4,2)}
 v_pk_add_f32 {vr(a+8,2)}, {vr(a+8,2)}, {vr(a+12,2)}
 v_pk_add_f32 {vr(a+2,2)}, {vr(a+2,2)}, {vr(a+6,2)}
 v_pk_add_f32 {vr(a+10,2)}, {vr(a+10,2)}, {vr(a+14,2)}
 v_pk_add_f32 {vr(tmp,2)}, {vr(a,2)}, {vr(a+8,2)}
 v_pk_add_f32 {vr(tmp+2,2)}, {vr(a+2,2)}, {vr(a+10,2)}
 v_pk_mul_f32 {vr(tmp,2)}, {vr(tmp,2)}, s[30:31]
 v_pk_mul_f32 {vr(tmp+2,2)}, {vr(tmp+2,2)}, s[30:31]
 v_pk_fma_f32 {vr(tmp+2,2)}, {vr(tmp,2)}, {vr(tmp,2)}, {vr(tmp+2,2)} neg_lo:[1,0,0] neg_hi:[1,0,0]
 v_cvt_pk_bf16_f32 v{tmp+4}, v{tmp}, v{tmp+1}
 v_max_f32 v{tmp+2}, 0, v{tmp+2}
 v_max_f32 v{tmp+3}, 0, v{tmp+3}
 v_cvt_pk_bf16_f32 v{tmp+5}, v{tmp+2}, v{tmp+3}
 v_lshlrev_b32 v{tmp+2}, 16, v{tmp+5}
 v_and_b32 v{tmp+3}, {sMASK}, v{tmp+5}
 v_add_f32 v{tmp+2}, 0x3727c5ac, v{tmp+2}
 v_add_f32 v{tmp+3}, 0x3727c5ac, v{tmp+3}
 v_cvt_pk_bf16_f32 v{tmp+5}, v{tmp+2}, v{tmp+3}
 v_lshlrev_b32 v{tmp+2}, 16, v{tmp+5}
 v_and_b32 v{tmp+3}, {sMASK}, v{tmp+5}
 v_sqrt_f32 v{tmp+2}, v{tmp+2}
 v_sqrt_f32 v{tmp+3}, v{tmp+3}
 v_lshlrev_b32 v{mr}, 16, v{tmp+4}
 v_cvt_pk_bf16_f32 v{tmp+5}, v{tmp+2}, v{tmp+3}
 v_lshlrev_b32 v{tmp+2}, 16, v{tmp+5}
 v_and_b32 v{tmp+3}, {sMASK}, v{tmp+5}
 v_rcp_f32 v{mr+2}, v{tmp+2}
 v_rcp_f32 v{mr+3}, v{tmp+3}
 v_and_b32 v{mr+1}, {sMASK}, v{tmp+4}
 v_pk_mul_f32 {vr(mr,2)}, {vr(mr,2)}, {vr(mr+2,2)} neg_lo:[1,0] neg_hi:[1,0]""")
    return o
def norm_row(dst, src, mr, row):
    sel = f"op_sel:[0,{row},{row}] op_sel_hi:[1,{row},{row}]"
    return [f" v_pk_fma_f32 {vr(dst+8*row+2*i,2)}, {vr(src+8*row+2*i,2)}, {vr(mr+2,2)}, {vr(mr,2)} {sel}" for i in range(4)]
def unpack(dst, src): return [f" v_lshlrev_b32 v{dst}, 16, v{src}", f" v_and_b32 v{dst+1}, {sMASK}, v{src}"]
def ln1():
    tmp = 176; mr = 200; kd = 160
    o = []
    for r in range(2):
        for t in range(4): o += unpack(kd+8*r+2*t, vQ+4*t+2*r)
    for i in range(8): o += unpack(vu1+2*i, vX+i)
    sh = []
    for i in range(4): sh += unpack(vX+2*i, vD+i)
    for r in range(2):
        for t in range(4): sh.append(f" v_pk_mul_f32 {vr(kd+8*r+2*t,2)}, {vr(kd+8*r+2*t,2)}, {vr(vX+2*t,2)}")
    o += row_stats(vu1, tmp, 0, mr, sh)
    o += norm_row(vq, vu1, mr, 0) + norm_row(vq, vu1, mr, 1)
    for i in range(8): o.append(f" v_pk_fma_f32 {vr(vu1+2*i,2)}, {vr(vq+2*i,2)}, {vr(kd+2*i,2)}, {vr(vu1+2*i,2)}")
    return o
vY = 64
def ln2(P0, bulk, every):
    P = G(); P.cfg = P0.cfg
    vh, vn, tmp, mr = 80, 104, 112, 136
    for t in range(4): P(unpack(vh+8+2*t, vY+4*t+2))
    for i in range(8): P(f" v_pk_fma_f32 {vr(vh+2*i,2)}, {vr(vq+2*i,2)}, {vr(vh+2*i,2)}, {vr(vu1+2*i,2)}")
    sh = [f" v_cvt_pk_bf16_f32 v{vHP+i}, v{vh+2*i}, v{vh+2*i+1}" for i in range(8)]
    for i in range(8): sh += unpack(vh+2*i, vHP+i)
    P(row_stats(vh, tmp, 256, mr, sh))
    for r in range(2):
        P(norm_row(vh, vh, mr, r))
        for i in range(4*r, 4*r+4): P(f" v_cvt_pk_bf16_f32 v{vn+i}, v{vh+2*i}, v{vh+2*i+1}")
        P(f" buffer_store_dwordx4 {vr(vn+4*r,4)}, v5, {WS}, {sHNst} offen offset:{64*r} sc1")
        P(f" v_xad_u32 v{tmp+r}, v{vn+4*r}, v{vn+4*r+1}, v{vn+4*r+2}\n v_add_u32 v{tmp+r}, v{tmp+r}, v{vn+4*r+3}")
    P(f"""
 v_permlane16_swap_b32 v{tmp}, v{tmp+1}
 v_add_u32 v{tmp}, v{tmp}, v{tmp+1}
 v_add_u32_dpp v{tmp}, v{tmp}, v{tmp} row_ror:8 row_mask:0xf bank_mask:0xf
 v_add_u32 v{tmp}, {sTAG}, v{tmp}
 buffer_store_dword v{tmp}, v{vC}, {WS}, {sHCst} offen sc1
""")
    if P.cfg["hnh"]: P(f" buffer_store_dword v{vY+1}, v13, {WS}, {sF0} offen sc1")
    interleave(P0, P.lines, bulk, every)
    assert not bulk
def h2_consts():
    return L(f"""
 v_mul_u32_u24 v14, {4*OB}, v2
 v_lshl_add_u32 v14, v1, 4, v14
 v_lshlrev_b32 v5, 9, v2
 v_lshl_add_u32 v5, v1, 4, v5
 v_lshrrev_b32 v{vC}, 2, v6
 v_add_u32 v{vC}, 4096, v{vC}
 s_lshr_b32 {sHNst}, {sP}, 2
 s_lshl_b32 {sHNst}, {sHNst}, 15
 s_and_b32 s3, {sP}, 3
 s_lshl_b32 s3, s3, 7
 s_add_u32 {sHNst}, {sHNst}, s3
 s_add_u32 {sHNst}, {sHNst}, {HN}
 s_lshl_b32 {sHCst}, {sP}, 2
 s_add_u32 {sHCst}, {sHCst}, {sW}
 s_lshl_b32 {sF0}, {sHCst}, 9
 s_add_u32 {sF0}, {sF0}, {HI}
 v_lshrrev_b32 v13, 6, v6
 v_lshlrev_b32 v13, 25, v13
 v_lshl_add_u32 v13, v1, 7, v13
 s_lshl_b32 {sFLst}, {sHCst}, 6
 s_add_u32 {sFLst}, {sFLst}, {FL-4352}
 s_lshl_b32 {sHCst}, {sHCst}, 8
 s_add_u32 {sHCst}, {sHCst}, {HC-4096}
 s_mov_b32 {sHRES}, {HRES}
 s_lshl_b32 s4, {sP}, 6
 s_add_u32 s4, s4, {YBOX}
 s_add_u32 s5, s4, {OB}
 s_add_u32 s6, s4, {2*OB}
 s_add_u32 s7, s4, {3*OB}""")

WARM = [0]
def warm_ops(n0, n1):
    o = []
    if n0 == 0:
        o += L(f""" v_bfe_u32 v16, v0, 3, 3
 v_min_u32 v16, 6, v16
 v_and_b32 v17, 7, v0
 v_lshlrev_b32 v17, 10, v17
 v_lshl_add_u32 v17, v16, 7, v17
 s_mul_i32 s4, {sW}, {448*1024}
 s_lshl_b32 s5, {sL3}, 13
 s_add_u32 s4, s4, s5
 s_add_u32 s5, s4, 32768""")
    for j in range(n0, n1):
        if j & 1 == 0:
            if j: o += [" v_add_u32 v16, 1, v16", " v_cmp_eq_u32 vcc, 7, v16", " v_cndmask_b32 v16, v16, 0, vcc"]
            o.append(" v_lshl_add_u32 v18, v16, 16, v17")
        o.append(f" buffer_load_dword v19, v18, {srd('WD')}, s{4 + (j & 1)} offen")
    return o
def wd_consts(a8):
    if a8: head = f"""
 s_bfe_u32 s3, s2, 0x20001
 s_lshl_b32 s3, s3, 3
 s_bfe_u32 {sT}, s2, 0x30003
 s_add_u32 {sSB}, s3, {sT}
 s_and_b32 {sE}, s2, 1
 s_lshl_b32 {sE}, {sE}, 2
 s_lshr_b32 s3, s2, 6
 s_add_u32 {sE}, {sE}, s3
 s_lshl_b32 {sE}, {sE}, 7
 s_lshl_b32 s3, s3, 1
 s_add_u32 s3, s3, {sT}"""
    else: head = f"""
 s_and_b32 s3, s2, 7
 s_lshl_b32 s3, s3, 2
 s_add_u32 {sSB}, s3, {sL3}
 s_lshl_b32 {sE}, {sJL}, 7
 s_lshl_b32 s3, {sL3}, 1""" + (f"""
 s_cmp_ge_u32 {sJL}, 7
 s_cselect_b32 s3, s3, 0""" if WARM[0] else "") + f"""
 s_add_u32 s3, s3, {sJL}"""
    o = L(head + f"""
 s_mul_i32 {sRING}, {sW}, {NR*1024}
 s_add_u32 {sRING}, {sRING}, {RING}
 s_mul_i32 s100, {sW}, {448*1024}
 s_add_u32 s100, s100, {sE}""")
    for i in range(7):
        if WARM[0] == 2:
            if i < 3: o += [f" s_add_u32 s101, s3, {i}"]
            else: o += L(f""" s_add_u32 s101, {sL3}, {i-3}
 s_and_b32 s101, s101, 3
 s_cmp_ge_u32 {sJL}, 7
 s_cselect_b32 s101, {i-3}, s101
 s_add_u32 s101, s101, 3
 s_add_u32 s101, s101, s3""")
            for rep in range(2): o += L(f""" s_cmp_ge_u32 s101, 7
 s_cselect_b32 {sT}, 7, 0
 s_sub_u32 s101, s101, {sT}""")
            o += [f" s_lshl_b32 {sT}, s101, 16", f" s_add_u32 s{sWD+i}, {sT}, s100"]
            continue
        o += L(f""" s_cmp_ge_u32 s3, 7
 s_cselect_b32 {sT}, 7, 0
 s_sub_u32 s3, s3, {sT}
 s_lshl_b32 {sT}, s3, 16
 s_add_u32 s{sWD+i}, {sT}, s100
 s_add_u32 s3, s3, 1""")
    return o
def wd_rconsts(t):
    return L(f"""
 v_bfe_u32 v{t}, v0, 5, 1
 v_bfe_u32 v{t+1}, v0, 4, 1
 v_bfe_u32 v{t+2}, v0, 2, 2
 v_lshl_add_u32 v{t}, v{t}, 2, v{t+2}
 v_lshlrev_b32 v{t}, 7, v{t}
 v_lshl_add_u32 v{t}, v1, 3, v{t}
 v_add_u32 v{t}, {sRING}, v{t}
 v_and_b32 v{t+2}, 2, v{t+2}
 v_or_b32 v{t+2}, v{t+2}, v{t+1}
 v_lshl_add_u32 v{vWr[0]}, v{t+2}, 5, v{t}
 v_xor_b32 v{t+2}, 2, v{t+2}
 v_lshl_add_u32 v{vWr[1]}, v{t+2}, 5, v{t}""")
def wd_dma(m, base=sRING, slot=None):
    i, r = m // 8, m & 7
    o = []
    if slot is None:
        slot = m % NR
        if m >= NR: o.append(f"DWAIT:wd{m-NR}")
    o.append(f" s_add_u32 m0, {base}, {slot*1024}")
    if r: o += [f" s_add_u32 s100, s{sWD+i}, {r*8192}", f" buffer_load_dwordx4 v{vWD}, {srd('WD')}, s100 offen lds"]
    else: o += [f" buffer_load_dwordx4 v{vWD}, {srd('WD')}, s{sWD+i} offen lds"]
    return o + [f"MARK:wd{m}"]
def wd_read(m, slot=None):
    d = (m >> 1)*8 + 2*(m & 1)
    if slot is None: slot = m % NR
    return [f"WAIT:wd{m}"] + [f" ds_read_b64_tr_b16 {ar(d+4*tau,2)}, v{vWr[tau]} offset:{slot*1024}" for tau in range(2)] + [f"DMARK:wd{m}"]
def wd_stream(d, rd, N):
    o = []
    while d < min(N, rd + NR - 1): o += wd_dma(d); d += 1
    for m in range(rd, N):
        o += wd_read(m)
        if d < N and d <= m + NR - 1: o += wd_dma(d); d += 1
    return o

def wd_raw(m):
    i, r = m // 8, m & 7
    if r: return [f" s_add_u32 s100, s{sWD+i}, {r*8192}", f" buffer_load_dwordx4 {ar(4*m,4)}, v{vWD}, {srd('WD')}, s100 offen"]
    return ["SKIP", f" buffer_load_dwordx4 {ar(4*m,4)}, v{vWD}, {srd('WD')}, s{sWD+i} offen"]
def bounce(u, va):
    d = u*8; off = (u % 3)*2048
    o = [f" ds_write_b128 v{va}, {ar(d,4)} offset:{off}", f" ds_write_b128 v{va}, {ar(d+4,4)} offset:{off+1024}"]
    for tau in range(2):
        for io in range(2): o.append(f" ds_read_b64_tr_b16 {ar(d+4*tau+2*io,2)}, v{vWr[tau]} offset:{off+io*1024}")
    return o
def g_sconsts(nbig):
    o = [f" s_mul_i32 s3, {sSB}, {56*GS}", f" s_add_u32 s3, s3, {HH}"]
    for i in range(7):
        o += L(f""" s_lshr_b32 {sT}, s{sWD+i}, 16
 s_mul_i32 {sT}, {sT}, {GS}
 s_add_u32 s{sHL+i}, {sT}, s3
 s_add_u32 s{sHL+7+i}, s{sHL+i}, {28*GS}""")
    o += L(f"""
 s_lshl_b32 {sO0}, {sSB}, 16
 s_add_u32 {sO0}, {sO0}, {sE}
 s_add_u32 {sO1}, {sO0}, 32768
 s_add_u32 {sHR0}, {sO0}, {HRES}
 s_add_u32 {sHR1}, {sO1}, {HRES}
 s_lshl_b32 s3, {sG}, 2
 s_add_u32 s3, s3, {sW}
 s_mul_i32 {sHS0}, s3, 56
 s_add_u32 {sHS0}, {sHS0}, {sJ}
 s_mul_i32 {sHS0}, {sHS0}, {GS}
 s_add_u32 {sHS0}, {sHS0}, {HH}
 s_add_u32 {sHS1}, {sHS0}, {28*GS}""")
    o += L(f"""
 s_lshl_b32 {sFLld}, {sSB}, 3
 s_add_u32 {sFLld}, {sFLld}, {sW}
 s_mul_i32 {sPH0}, {sFLld}, {7*GS}
 s_add_u32 {sPH0}, {sPH0}, {HH+4352}
 s_add_u32 {sPH1}, {sPH0}, {28*GS}
 s_lshl_b32 {sFLld}, {sFLld}, 2
 s_lshr_b32 s3, {sE}, 8
 s_add_u32 {sFLld}, {sFLld}, s3
 s_lshl_b32 {sFLld}, {sFLld}, 6
 s_add_u32 {sFLld}, {sFLld}, {FL}
 s_and_b32 s3, {sW}, 1
 s_mul_i32 s3, s3, {nbig*1024}
 s_lshr_b32 {sBIG}, {sW}, 1
 s_lshl_b32 {sBIG}, {sBIG}, 16
 s_add_u32 {sBIG}, {sBIG}, s3""") + srdc(("OUT",))
    return o
def hn_consts():
    o = L(f"""
 s_lshl_b32 s3, {sG}, 2
 s_add_u32 s3, s3, {sW}
 s_lshl_b32 {sFLld}, s3, 13
 s_add_u32 {sFLld}, {sFLld}, {HC}
 s_lshl_b32 s3, s3, 16
 s_add_u32 s3, s3, {HN}""")
    for g in range(8):
        o += [f" s_add_u32 {sT}, {sJL}, {g}", f" s_and_b32 {sT}, {sT}, 7", f" s_lshl_b32 s{sHC+g}, {sT}, 7", f" s_add_u32 s{sHC+g}, s{sHC+g}, {sFLld}", f" s_lshl_b32 {sT}, {sT}, 12", f" s_add_u32 s{sHN+g}, {sT}, s3"]
    o += L(f"""
 v_bfe_u32 v{vHC}, v0, 3, 2
 v_lshlrev_b32 v{vHC}, 10, v{vHC}
 v_bfe_u32 v{vHC1}, v0, 5, 1
 v_lshl_add_u32 v{vHC}, v{vHC1}, 4, v{vHC}
 v_bfe_u32 v{vHC1}, v0, 2, 1
 v_lshl_add_u32 v{vHC}, v{vHC1}, 6, v{vHC}
 v_lshl_add_u32 v{vHC}, v1, 2, v{vHC}
 v_add_u32 v{vHC1}, 4096, v{vHC}""")
    return o
def g_vconsts():
    t = 232
    o = L(f"""
 v_bfe_u32 v{t}, v0, 5, 1
 v_bfe_u32 v{t+1}, v0, 4, 1
 v_bfe_u32 v{t+2}, v0, 2, 2
 v_lshl_add_u32 v{t}, v{t}, 3, v{t+2}
 v_lshlrev_b32 v{t+4}, 7, v{t}
 v_lshl_add_u32 v{t+4}, v1, 3, v{t+4}
 v_lshl_add_u32 v{t+4}, v{t+1}, 16, v{t+4}
 v_lshrrev_b32 v{t+2}, 1, v{t+2}
 v_lshl_add_u32 v{t+2}, v{t+1}, 1, v{t+2}
 v_add_u32 v{vL2}, 32768, v6""")
    for k in range(4): o += [f" v_xor_b32 v{t+3}, {k}, v{t+2}", f" v_lshl_add_u32 v{vRa+k}, v{t+3}, 5, v{t+4}"]
    o += L(f"""
 v_lshrrev_b32 v{t}, 3, v0
 v_and_b32 v{t+1}, 24, v{t}
 v_and_b32 v{t+2}, 3, v{t}
 v_lshl_add_u32 v{t+1}, v{t+2}, 1, v{t+1}
 v_bfe_u32 v{t+2}, v{t}, 2, 1
 v_add_u32 v{t+1}, v{t+1}, v{t+2}
 v_lshlrev_b32 v{t+1}, 10, v{t+1}
 v_and_b32 v{t+2}, 7, v0
 v_lshl_add_u32 v{vOUT}, v{t+2}, 4, v{t+1}
 v_mul_u32_u24 v{vPH}, {GS//16}, v6
 v_add_u32 v4, 16, v6
 v_lshrrev_b32 v4, 7, v4
 v_lshl_add_u32 v{vPH}, v4, 25, v{vPH}
 v_lshlrev_b32 v{vONE}, 21, v6
 v_add_u32 v{vONE}, 4352, v{vONE}
 v_mov_b32 v{vTG}, {sTAG}""")
    return o
HST = [f" buffer_store_dwordx4 {vr(vHP,4)}, v3, {WS}, {sHRES} offen sc1", f" buffer_store_dwordx4 {vr(vHP+4,4)}, v3, {WS}, {sHRES} offen offset:1024 sc1", "MARK:HST"]
FLAGST = f" buffer_store_dword v{vTG}, v{vONE}, {WS}, {sFLst} offen sc1"
FLAGLD = [" v_lshrrev_b32 v1, 5, v6\n v_lshlrev_b32 v1, 25, v1", " v_lshl_add_u32 v1, v6, 6, v1", f" v_mov_b32 v3, 0\n buffer_atomic_or v3, v1, {WS}, {sFLld} offen sc0 sc1"]
HRESLD = [f" buffer_load_dwordx4 {vr(vE,4)}, v{vOUT}, {WS}, {sHR0} offen sc1", f" buffer_load_dwordx4 {vr(vE+4,4)}, v{vOUT}, {WS}, {sHR1} offen sc1", "MARK:hres"]
def poll(dst, voff, soff): return f" v_mov_b32 v{dst}, 0\n buffer_atomic_or v{dst}, v{voff}, {WS}, {soff} offen sc0 sc1"
def pollcmp(dst, mask): return [f" v_cmp_ne_u32 vcc, {sTAG}, v{dst}", f" s_and_b64 vcc, vcc, {mask}"]
def hn_regs(G_): return vHN + 16*(G_ % 4)
def hn_loads(G_):
    return [f" buffer_load_dwordx4 {vr(hn_regs(G_)+4*k,4)}, v{6 if G_ < 8 else vL2}, {WS}, s{sHN+(G_&7)} offen offset:{k*1024} sc1" for k in range(4)] + \
           [f" buffer_load_dword v{CHN[G_%4]}, v{vHC if G_ < 8 else vHC1}, {WS}, s{sHC+(G_&7)} offen sc1"]
def hh_loads(u, i):
    return [f" buffer_load_dwordx4 {vr(HREG[(u,i)]+4*t,4)}, v6, {WS}, s{sHL+7*u+i} offen offset:{t*1024} sc1" for t in range(4)] + \
           [f" buffer_load_dword v{CHH[(u,i)]}, v{vC}, {WS}, s{sHL+7*u+i} offen sc1"]
def hashchain(r, chk):
    o = []
    for f in range(4):
        b = r + 4*f
        o.append(f" v_xad_u32 v4, v{b}, v{b+1}, {sTAG if f == 0 else 'v4'}")
        o.append(f" v_add3_u32 v4, v4, v{b+2}, v{b+3}")
    return o + [f" v_cmp_ne_u32 vcc, v4, v{chk}"]
def retry_check(P, o, loads, later, name, sleep):
    blk = [f"L_{name}_r:", f" s_sub_u32 {sSPIN}, {sSPIN}, 1", f" s_cbranch_scc1 L_{name}_x", f" s_sleep {sleep}"] + loads + [" s_waitcnt vmcnt(0)"] + o + [f" s_cbranch_vccnz L_{name}_r"]
    blk += later + ([" s_waitcnt vmcnt(0)"] if later else []) + [f" s_branch L_{name}_b", f"L_{name}_x:", f" s_mov_b32 {sSPIN}, 0", f" s_branch L_{name}_b"]
    P.tail += blk
    return o + ["GAP", f" s_cbranch_vccnz L_{name}_r\nL_{name}_b:"]
def retry_fast(P, o, loads, later, name, sleep):
    blk = [f"L_{name}_s:", f" s_sleep {sleep}", f"L_{name}_r:", f" s_sub_u32 {sSPIN}, {sSPIN}, 1", f" s_cbranch_scc1 L_{name}_x"] + loads + later + [f" s_waitcnt vmcnt({len(later)})"] + o + [f" s_cbranch_vccnz L_{name}_s"]
    blk += [f" s_branch L_{name}_b", f"L_{name}_x:", f" s_mov_b32 {sSPIN}, 0", f" s_branch L_{name}_b"]
    P.tail += blk
    return o + ["GAP", f" s_cbranch_vccnz L_{name}_r\nL_{name}_b:"]
def hint_spin(name, s, back):
    return [f"L_{name}:", poll(vPD, vPH, s), " s_waitcnt vmcnt(0)"] + pollcmp(vPD, 0x7f) + [f" s_cbranch_vccz {back}", " s_sleep 8",
            f" s_sub_u32 {sSPIN}, {sSPIN}, 1", f" s_cbranch_scc0 L_{name}", f" s_mov_b32 {sSPIN}, 0"]
def epi_tile(acc, ups, t, out, pk):
    o = []
    if pk:
        for i in range(4): o.append(f" v_pk_mul_f32 {vr(vE+2*i,2)}, {vr(acc+2*i,2)}, s[4:5]")
    else:
        for i in range(8): o.append(f" v_mul_f32 v{vE+i}, 0xbfb8aa3b, v{acc+i}")
    for i in range(8): o.append(f" v_exp_f32 v{vE+i}, v{vE+i}")
    if pk:
        for i in range(4): o.append(f" v_pk_add_f32 {vr(vE+2*i,2)}, {vr(vE+2*i,2)}, 1.0 op_sel_hi:[1,0]")
    else:
        for i in range(8): o.append(f" v_add_f32 v{vE+i}, 1.0, v{vE+i}")
    for i in range(8): o.append(f" v_rcp_f32 v{vE+i}, v{vE+i}")
    if pk:
        for i in range(4): o.append(f" v_pk_mul_f32 {vr(vE+2*i,2)}, {vr(vE+2*i,2)}, {vr(acc+8+2*i,2)}")
    else:
        for i in range(8): o.append(f" v_mul_f32 v{vE+i}, v{vE+i}, v{acc+8+i}")
    for i in range(4): o.append(f" v_cvt_pk_bf16_f32 v{out+i}, v{vE+2*i}, v{vE+2*i+1}")
    sb = sHS1 if ups else sHS0
    o.append(f" buffer_store_dwordx4 {vr(out,4)}, v6, {WS}, {sb} offen offset:{t*1024} sc1")
    o.append(f" v_xad_u32 v{vHASH}, v{out}, v{out+1}, {sTAG if t == 0 else 'v%d' % vHASH}")
    o.append(f" v_add3_u32 v{vHASH}, v{vHASH}, v{out+2}, v{out+3}")
    if t == 3:
        o.append(f" buffer_store_dword v{vHASH}, v{vC}, {WS}, {sb} offen sc1")
        o.append(f" buffer_store_dword v{vTG}, v{vONE}, {WS}, {sb} offen sc1")
    return o

def gemm1(P, cfg, wds):
    seq = [(u, k, t) for u in range(2) for k in range(32) for t in range(4)]
    D = 6; LA = 3
    MB = cfg["wd_big"]
    def reads(n):
        u, k, t = seq[n]; d = aC + 4*(n % 8)
        return [f" ds_read_b64_tr_b16 {ar(d+2*io,2)}, v{vRa+t} offset:{k*2048+io*512}" for io in range(2)] + [f"DMARK:w{n}"]
    def hn_issue(g): return hn_loads(g) + [f"MARK:hn{g}"]
    def hn_check(g):
        later = []
        for gg in range(g+1, min(16, g+LA)): later += hn_loads(gg)
        return [f"WAIT:hn{g}"] + (retry_fast if g < 12 else retry_check)(P, hashchain(hn_regs(g), CHN[g%4]), hn_loads(g), later, f"hn{g}", cfg["bo"])
    for n in range(D): P(reads(n))
    P(hn_check(0))
    P.st("hn0")
    wq_ = list(wds); fill = []; urgent = []; wacc = 0.0; lastv = -9; gapn = None
    h0 = poll(vPD, vPH, sPH0)
    for n, (u, k, t) in enumerate(seq):
        budget = cfg["slots"][u]
        g = 8*u + k//4
        if t == 0:
            if k % 4 == 0:
                while urgent: P(urgent.pop(0))
                gapn = None
                if g + LA < 16: urgent += hn_issue(g + LA)
        if n % 16 == cfg['chk_at'] and g + 1 < 16: urgent += hn_check(g + 1)
        if t == 0:
            if (u, k) == (1, 0):
                P.st("p0")
                P(urgent); urgent = []
                P(" s_mov_b32 s4, 0xbfb8aa3b\n s_mov_b32 s5, 0xbfb8aa3b")
                held = []; ex = []
                for tt in range(4):
                    pk = tt < cfg["e0_exp"]
                    for x in epi_tile(acc0+16*tt, 0, tt, acc0+16*tt, pk):
                        (held if x.lstrip().startswith("buffer_store") else (ex if pk else fill)).append(x)
                P(ex)
                fill += held + (["WAIT:HST", FLAGST] if cfg['h_early'] else HST)
                if cfg["e0_exp"] == 4: P(fill); fill = []
                P.st("e0")
            if u == 1 and k == cfg["h0_k"] and cfg["hhh"]: urgent += [h0, "MARK:ph0"]
            if u == 1 and k in cfg["hh_at"]:
                i = cfg["hh_at"][k]
                assert not fill
                if i == 0:
                    if not cfg['h_early']: urgent += ["WAIT:HST", FLAGST]
                    if cfg["hhh"]: urgent += ["WAIT:ph0"] + retry_check(P, pollcmp(vPD, 0x7f), [h0], [], "ph0", cfg["hbo"])
                urgent += hh_loads(0, i) + [f"MARK:hh0_{i}"]
        if n % 2 == 0: P(f"DWAIT:w{n+1}")
        else: budget -= 1
        a = (acc1 if u else acc0) + 16*t
        P(f" v_mfma_f32_32x32x16_bf16 {vr(a,16)}, {ar(aC+4*(n%8),4)}, {vr(hn_regs(g)+4*(k&3),4)}, {'0' if k == 0 else vr(a,16)}")
        if n + D < len(seq):
            P(reads(n+D)); budget -= 2
        wacc += cfg["wd_rate"][u]
        had = bool(fill)
        for q in (urgent, wq_, fill):
            while q and (budget >= P.cost(q[0]) or P.cost(q[0]) == 0):
                if q[0] == "GAP":
                    if gapn is None: gapn = n
                    if n - gapn < cfg["gapd"]: break
                    gapn = None
                if q[0].lstrip().startswith("buffer_"):
                    if n - lastv < cfg["vgap"]: break
                    lastv = n
                if q is wq_:
                    if wacc < 1 and P.cost(q[0]) > 0: break
                    wacc -= P.cost(q[0])
                x = q.pop(0); budget -= P.cost(x); P(x)
        if had and not fill: print("epilogue0 done at k", k)
    print('left: wd', len(wq_), 'fill', len(fill))
    P(urgent); P(wq_); P(fill)
    P.st("p1")
    P(" s_mov_b32 s4, 0xbfb8aa3b\n s_mov_b32 s5, 0xbfb8aa3b")
    big = []
    if MB < 56:
        if not cfg["bar_late"]: P(" s_barrier")
        for m in range(MB, 56): big.append("\n".join(wd_dma(m, sBIG, m - MB)))
    e1 = []; held = []
    for tt in range(4):
        for x in epi_tile(acc1+16*tt, 1, tt, acc1+16*tt, True):
            (held if (cfg["hold"] and x.lstrip().startswith("buffer_store")) else e1).append(x)
    pre = []
    for i in range(len(cfg["hh_at"]), 7): pre += hh_loads(0, i) + [f"MARK:hh0_{i}"]
    pre = FLAGLD + ["MARK:flag"] + pre + take(big, cfg["big_pre"])
    if cfg["pre_late"]: P(e1)
    else: interleave(P, e1, pre, cfg["big_every"])
    P(held)
    P(pre)
    if cfg["bar_late"] and MB < 56:
        assert cfg["big_pre"] == 0
        P(" s_barrier")
    P.big = big
    P.st("epi")
    P.st("ld0")

def red_consts():
    return L(f"""
 s_mul_i32 s3, {sW}, {REDW}
 v_add_u32 v12, s3, v6
 v_and_b32 v15, 7, v0
 v_lshrrev_b32 v13, 3, v0
 v_mul_u32_u24 v15, {BS}, v15
 v_lshl_add_u32 v13, v13, 4, v15
 v_add_u32 v14, {2*REDW}, v13""")
def red_write(ups): return [f" ds_write_b128 v12, {vr(acc2+4*blk,4)} offset:{blk*BS}" for blk in range(8*ups, 8*ups+8)]
def red_read(ups, b): return [f" ds_read_b128 {vr(b+8*w+4*h,4)}, {'v13' if w < 2 else 'v14'} offset:{ups*8*BS + h*512 + (w&1)*REDW}" for w in range(4) for h in range(2)]
def red_fin(ups, b, hx, pk, fl):
    o = []
    for (x, y) in ((0, b+8), (16, b+24), (0, hx), (0, b+16)):
        if pk:
            for i in range(4): o.append(f" v_pk_add_f32 {vr(b+x+2*i,2)}, {vr(b+x+2*i,2)}, {vr(y+2*i,2)}")
        else:
            for i in range(8): o.append(f" v_add_f32 v{b+x+i}, v{b+x+i}, v{y+i}")
    for i in range(4): o.append(f" v_cvt_pk_bf16_f32 v{b+16+i}, v{b+2*i}, v{b+2*i+1}")
    o.append(f" buffer_store_dwordx4 {vr(b+16,4)}, v{vOUT}, {srd('OUT')}, {sO0 if ups == 0 else sO1} offen {fl}")
    return o
def gemm2(P, cfg):
    order = [(0, i) for i in range(7)] + [(1, i) for i in range(7)]
    MB = cfg["wd_big"]
    issued = order[:7]
    sched = cfg["b1_at"]
    def chk(pos):
        u, i = order[pos]
        later = []
        for x in order[pos+1:]:
            if x in issued and x[0] == u: later += hh_loads(*x)
        return [f"WAIT:hh{u}_{i}"] + retry_check(P, hashchain(HREG[(u,i)], CHH[(u,i)]), hh_loads(u, i), later, f"hh{u}_{i}", cfg["bo"])
    bigrd = []
    if MB < 56:
        P([f" s_sub_u32 s3, {sBIG}, {sRING}", f" v_add_u32 v{vWr[0]}, s3, v{vWr[0]}", f" v_add_u32 v{vWr[1]}, s3, v{vWr[1]}"])
        for m in range(MB, 56): bigrd += wd_read(m, m - MB)
    P(chk(0))
    hres = [f" buffer_load_dwordx4 {vr(vE,4)}, v{vOUT}, {WS}, {sHR0} offen sc1", f" buffer_load_dwordx4 {vr(vE+4,4)}, v{vOUT}, {WS}, {sHR1} offen sc1", "MARK:hres"]
    flag = [f" buffer_load_dword v3, v1, {WS}, {sFLld} offen sc1"]
    T0 = 112; HX = 16
    for pos, (u, i) in enumerate(order):
        fill = []
        h1 = poll(vPD, vPH, sPH1)
        p1st = min(sched)
        if pos == p1st - cfg["h1_lead"] and cfg["hh1"]: fill += [h1, "MARK:ph1"]
        if pos == p1st:
            if cfg["hh1"]: fill += ["WAIT:ph1"] + retry_check(P, pollcmp(vPD, 0x7f), [h1], [], "ph1", cfg["hbo"])
            else:
                P.tail += hint_spin("ip1", sPH1, "L_ip1b") + [" s_branch L_ip1b"]
                fill += [f" s_cmp_ge_u32 {sJL}, 7\n s_cbranch_scc1 L_ip1\nL_ip1b:"]
        for gi in sched.get(pos, []):
            x = (1, gi)
            prev = [y for y in order[:order.index(x)] if HREG[y] == HREG[x]]
            assert all(order.index(y) < pos for y in prev), x
            fill += hh_loads(*x) + [f"MARK:hh{x[0]}_{x[1]}"]; issued.append(x)
        if pos < 3:
            for x in take(P.big, cfg["big_per"]): fill += x.split("\n")
        if pos == cfg["hres_at"]: fill += ["WAIT:flag"] + retry_check(P, pollcmp(3, 3), FLAGLD[2:], [], "flag", cfg["bo"]) + HRESLD
        if pos == MB//8 - 1:
            assert not P.big
            fill += bigrd + [" s_waitcnt lgkmcnt(0)"]
        if pos == 7: fill += red_consts() + [" s_barrier"]
        if pos == 8: fill += red_write(0)
        if pos == 9: fill += [" s_waitcnt lgkmcnt(0)", " s_barrier"] + red_read(0, T0)
        if pos == 11:
            fill += ["WAIT:hres"]
            for k in range(8): fill += unpack(HX+2*k, vE+k)
            fill += [" s_waitcnt lgkmcnt(0)"]
        if pos == 12: fill += red_fin(0, T0, HX, False, cfg["outf"])[:24]
        if pos == 13: fill += red_fin(0, T0, HX, False, cfg["outf"])[24:]
        assert MB >= 32
        late = chk(pos+1) if pos+1 < len(order) else []
        n = 0
        for t in range(4):
            for tau in range(2):
                a = acc2+32*u+16*tau
                P(f" v_mfma_f32_32x32x16_bf16 {vr(a,16)}, {ar(((i*4+t)*2+tau)*4,4)}, {vr(HREG[(u,i)]+4*t,4)}, {'0' if (i == 0 and t == 0) else vr(a,16)}")
                n += 1
                if n <= cfg["g2_fill"]:
                    b = 5; nv = 0
                    while fill and b > 0:
                        if fill[0].lstrip().startswith("buffer_"):
                            if nv >= cfg["v2"]: break
                            nv += 1
                        b -= P.cost(fill[0]); P(fill.pop(0))
                else:
                    P(take(fill, 99))
                    if late and late[0] != "GAP":
                        k_ = late.index("GAP"); P(take(late, min(5, k_)))
        P(late)
        if pos == 6: P.st("b0")
    P.st("g2")
    P(red_write(1))
    P(" s_waitcnt lgkmcnt(0)\n s_barrier")
    P(red_read(1, 144))
    P(" s_waitcnt lgkmcnt(0)")
    P(red_fin(1, 144, HX+8, True, cfg["outf"]))

def build(cfg, stamps=False):
    P = G(stamps); P.cfg = cfg; WARM[0] = cfg['warm']
    if cfg.get("dbg"): P.only = cfg["dbg"].split(",")
    entry(P, cfg)
    setupB = a_consts() + roles()
    P(take(setupB, cfg["nsetB"]))
    if cfg["f_at"] == 0: P(filter_dma(cfg))
    else: P(f""" v_and_b32 v4, 79, v0
 v_lshrrev_b32 v5, 2, v4
 v_and_or_b32 v4, v5, 16, v4
 v_and_b32 v4, 31, v4
 v_lshlrev_b32 v4, 7, v4
 buffer_load_dword v{vDUM}, v4, {srd('SSMK')}, {sF0} offen {cfg['fnt']}""")
    if cfg["x_at"] == 0: P(x_loads())
    if cfg["wt"] == 0: P(w_touch(cfg["wtnt"], cfg["wth"]))
    raw = []
    for m in range(cfg["nraw"]): raw += wd_raw(m)
    if cfg["wdc_at"] == -1: P(wd_consts(cfg['a8'])); P(take(raw, 2*cfg["rawE"]))
    P(tag_setup())
    P.st("pre")
    P.vmwait("L1")
    P.st("L1")
    p0_kv(P)
    P.st("kvst")
    if cfg["f_at"] == 1:
        if cfg["kbar"]: P(" s_barrier")
        P(filter_dma(dict(fnt="")))
    if cfg["x_at"] == 1: P(x_loads())
    P(take(raw, 2*cfg["raw0"]))
    P(setupB)
    P(conv_setup() + h1_addr() + w_table() + (wd_consts(cfg['a8']) if cfg["wdc_at"] != -1 else []))
    ng = cfg["g1"]
    early = []
    for i in range(ng): early += w_pair(i, cfg["wnt"])[:2]
    early += take(raw, 2*cfg["raw1"])
    if cfg["x_at"] == 2: early += x_loads()
    ap = ["WAIT:A", " s_barrier"] + a_prep(cfg['lazy'])
    P(take(ap, cfg["ap_pre"]))
    if cfg.get("dly1"): P(f" s_sleep {cfg['dly1']}")
    P.st("aprep")
    if cfg["ap_pre"] < 2: sh = take(ap, 2 - cfg["ap_pre"]) + early + ap
    else: sh = [" s_barrier"] + early + ap
    box_recv(P, vIN, "h1", cfg["bo"], sh, kv_perm())
    kv_to_lds(P)
    P.st("h1")
    wq = []
    for i in range(16):
        p = w_pair(i, cfg["wnt"])
        if i < ng: wq += [p[0] + "\n" + p[2], p[3]]
        else: wq += p
    nraw = cfg["nraw"]
    nwc = 2*cfg["wsched"][0][1]
    raw2 = raw[2*cfg["raw_c"]:]; raw = raw[:2*cfg["raw_c"]]
    wq = wq[:nwc] + raw + wq[nwc:]
    conv_mfma(P, wq, cfg["wsched"])
    assert not any("a[" in x for x in wq)
    print("W ops left after conv:", len(wq)//2)
    P.mark("RAWC")
    P.st("mfma")
    conv_epilogue(P)
    P.st("yst")
    P(" s_barrier")
    b3 = take(wq, 2*cfg["w3"]) + take(raw2, 2*cfg["raw3"])
    P.vmwait("X")
    interleave(P, stat_consts() + ln1(), b3, cfg["w3_every"])
    P(b3)
    P(h2_consts() + wd_rconsts(48))
    hc = hn_consts()
    if cfg["hc_at"] == 0: P(hc); hc = []
    nb1 = cfg["nb1"]
    assert 2*nb1 <= cfg["raw_c"] + cfg["rawE"] + cfg["raw0"] + cfg["raw1"]
    if nb1:
        P([f" v_add_u32 v48, {sRING}, v6", "WAIT:RAWC"])
        for u in range(nb1): P(bounce(u, 48))
    if cfg.get("dly2"): P(f" s_sleep {cfg['dly2']}")
    P.st("ln1")
    q4 = take(wq, 2*cfg["w4"]) + take(raw2, 2*cfg["raw4"])
    box_recv(P, vY, "h2", cfg["bo"], [" s_barrier"] + q4 + hc, [x for t in range(4) for x in unpack(80+2*t, vY+4*t)])
    P.st("h2")
    ln2(P, take(wq, 2*cfg["w5"]), cfg["w5_every"])
    if cfg["h_at"] == 0: P(HST)
    P.st("hnst")
    P(wq); P.mark("WALL"); P(raw2); P.mark("RAW")
    post = g_vconsts() + g_sconsts(56 - cfg["wd_big"])
    bn = [f" v_add_u32 v4, {sRING}, v6", "WAIT:RAW"]
    for u in range(nb1, nraw//2): bn += bounce(u, 4)
    if nraw//2 > nb1: post += bn + [" s_waitcnt lgkmcnt(0)"]
    post += ["WAIT:WALL", " s_barrier"]
    P(take(post, cfg["hn_at"]))
    P.st("g1go")
    hn3 = []
    for g in range(3): hn3 += hn_loads(g) + [f"MARK:hn{g}"]
    P([f" s_cmp_ge_u32 {sJL}, 7", " s_cbranch_scc1 L_sia_i"] + hn3 + ["L_sia:"])
    P.tail += ["L_sia_i:", " s_waitcnt vmcnt(0)", " s_branch L_sia"]
    P(post)
    if cfg["h_at"] == 1: P(HST)
    P(f"""
 s_or_b32 s3, s2, {sW}
 s_cmp_lg_u32 s3, 0
 s_cbranch_scc1 L_notag
 v_lshlrev_b32 v4, 21, v6
 buffer_store_dword v{vTG}, v4, {WS}, 0 offen sc1
L_notag:
""")
    P.nvm -= 1
    d = rd = nraw
    for m in range(nraw): P.dmarks[f"wd{m}"] = 0
    P(f" s_cmp_ge_u32 {sJL}, 7\n s_cbranch_scc1 L_idle")
    save = (P.nvm, P.nds, P.vmdone, P.dsdone, dict(P.marks), dict(P.dmarks))
    MB = cfg["wd_big"]
    if cfg.get("nowd"): cfg["wd_big"] = MB = 56; d = rd = 56
    gemm1(P, cfg, wd_stream(d, rd, MB))
    P(" s_waitcnt lgkmcnt(0)\nL_join:")
    gemm2(P, cfg)
    if stamps:
        P(" s_waitcnt vmcnt(0)"); P.st("end")
        P(f" v_writelane_b32 v11, {sSPIN}, 63\n s_lshl_b32 s3, s2, 10\n s_add_u32 s3, s3, {STAMPS}\n v_lshlrev_b32 v1, 2, v0\n buffer_store_dword v11, v1, {WS}, s3 offen")
    P("L_end:\n s_endpgm")
    P.nvm, P.nds, P.vmdone, P.dsdone, P.marks, P.dmarks = save
    P("L_idle:")
    P([" s_waitcnt vmcnt(0)", FLAGST])
    P(wd_stream(d, rd, MB))
    for m in range(MB, min(56, MB + cfg["big_pre"])): P(wd_dma(m, sBIG, m - MB))
    for nm in ("hn0","p0","e0","p1","epi"): P.st(nm)
    P(hint_spin("ip0", sPH0, "L_ip0b") + ["L_ip0b:"])
    for i in range(7): P(hh_loads(0, i))
    P(FLAGLD)
    P(" s_waitcnt vmcnt(0) lgkmcnt(0)")
    P.st("ld0")
    P(" s_branch L_join")
    P(P.tail)
    P("L_codeend:")
    if os.environ.get("STAMP") == "2": P.lines = [l.replace("s_memrealtime", "s_memtime") for l in P.lines]
    if cfg.get("nont"): P.lines = [l.replace(" nt", "") if l.lstrip().startswith("buffer_load") else l for l in P.lines]
    body = P.fix()
    head = open("sequential_preLN__ssm_conv_h3__glu_gated_glu__prompt.s.ref").read().split("; Override launch")[0]
    out = head + f"; @launch grid=(256,1,1) block=(256,1,1) lds={LDS_BYTES}\n"
    out += f'.amdgcn_target "amdgcn-amd-amdhsa--gfx950"\n.text\n.globl {NAME}\n.p2align 8\n.type {NAME},@function\n{NAME}:\n' + body
    out += f""" s_endpgm
.section .rodata,"a"
.p2align 6
.amdhsa_kernel {NAME}
  .amdhsa_next_free_vgpr 512
  .amdhsa_next_free_sgpr 102
  .amdhsa_accum_offset 256
  .amdhsa_group_segment_fixed_size 0
  .amdhsa_kernarg_size 104
  .amdhsa_user_sgpr_count 2
  .amdhsa_user_sgpr_kernarg_segment_ptr 1
  .amdhsa_system_sgpr_workgroup_id_x 1
.end_amdhsa_kernel
"""
    if cfg.get("probe"):
        idx = P.stn.index(cfg["probe"])
        Q = G()
        Q(f"""
 s_cmp_ge_u32 s2, 1
 s_cbranch_scc1 L_pend
 s_load_dwordx2 s[48:49], s[0:1], 96
 s_mov_b32 s50, {WS_BYTES}
 s_mov_b32 s51, 0x20000
 v_lshlrev_b32 v1, 8, v0
 v_mov_b32 v2, 0
 s_waitcnt lgkmcnt(0)
 s_mov_b32 s3, {STAMPS}
 buffer_load_dword v3, v2, s[48:51], s3 offen
 v_mov_b32 v4, 0x7fffffff
 v_mov_b32 v5, {0 if cfg.get('pmean') else 0x80000000}
 s_mov_b32 s4, {16 if (cfg['probe'] == 'end' and not cfg.get('pmean')) else 14}
L_pl:
 buffer_load_dword v6, v1, s[48:51], s3 offen
 buffer_load_dword v7, v1, s[48:51], s3 offen offset:{4*idx}
 s_waitcnt vmcnt(0)
 v_sub_u32 v6, v6, v3
 v_sub_u32 v7, v7, v3
 v_min_i32 v4, v4, v6
 {'v_add_u32' if cfg.get('pmean') else 'v_max_i32'} v5, v5, v7
 s_add_u32 s3, s3, 16384
 s_sub_u32 s4, s4, 1
 s_cmp_lg_u32 s4, 0
 s_cbranch_scc1 L_pl
 s_mov_b32 s5, 0x7fffffff
 s_mov_b32 s6, {0 if cfg.get('pmean') else 0x80000000}
 s_mov_b32 s4, 0
L_pr:
 v_readlane_b32 s7, v4, s4
 v_readlane_b32 s8, v5, s4
 s_nop 1
 s_min_i32 s5, s5, s7
 {'s_add_u32' if cfg.get('pmean') else 's_max_i32'} s6, s6, s8
 s_add_u32 s4, s4, 1
 s_cmp_lg_u32 s4, 64
 s_cbranch_scc1 L_pr
 {'s_mul_hi_u32 s6, s6, 4793490' if cfg.get('pmean') else 's_nop 0'}
 s_sub_u32 s6, s6, s5
 s_min_u32 s6, s6, 10000
 s_mul_i32 s6, s6, {cfg.get('pmul', 10)}
 s_memrealtime s[10:11]
 s_waitcnt lgkmcnt(0)
L_ps:
 s_memrealtime s[12:13]
 s_waitcnt lgkmcnt(0)
 s_sub_u32 s7, s12, s10
 s_cmp_lt_u32 s7, s6
 s_cbranch_scc1 L_ps
L_pend:
 s_endpgm
""")
        out = out.replace(f"; @launch grid=(256,1,1) block=(256,1,1) lds={LDS_BYTES}\n", f"; @launch kernel={NAME} grid=(256,1,1) block=(256,1,1) lds={LDS_BYTES}\n; @launch kernel=probe_kernel grid=(1,1,1) block=(64,1,1) lds=0\n")
        out = out.replace('.section .rodata,"a"', '.globl probe_kernel\n.p2align 8\n.type probe_kernel,@function\nprobe_kernel:\n' + Q.fix() + '.section .rodata,"a"')
        kd = out[out.index(".p2align 6\n.amdhsa_kernel"):]
        out += kd.replace(NAME, "probe_kernel").replace("vgpr 512", "vgpr 16").replace("offset 256", "offset 16")
    return out, P
CFG = dict(bar_late=1, raw0=0, raw1=0, nraw=8, raw_c=8, nb1=4, h_early=1, pre_late=1, big_per=6, v2=2, g1=4, w4=6, mw_at=4, nwarm=6, warm=0, lazy=4, vgap=1, wt=9, wtnt="", wth=0, a8=0, can1=0, can2=0, cmask=0x00010001, cbo=6, hnh=0, hn_nh=16, hn_hint_at=999, hbo=8, ap_pre=2, wsched=[(1,4,1),(30,8,5)],
           f_at=1, kbar=1, fnt2="", pf_after="SHK", nsetB=47, fnt="nt", x_at=0, wdm=0, wdc_at=0, bo=4, wnt="", w3=0, w3_every=4, wd3=0, wd_pre=0, wd_first=1, im=0,
           w5=0, w5_every=2, wd_rate=(0.8,0.9), wd_big=44, slots=(6,6), big_pre=0, big_every=8, outf="", dly3=0, dly2=0, hold=0,
           e0_exp=4, hhh=0, h0_k=12, hh_at={17:0, 20:1, 23:2, 26:3, 29:4}, hh1=0, h1_lead=2, b1_at={5:[0,1],6:[2,3],7:[4],8:[5],9:[6]}, hres_at=3)
if __name__ == "__main__":
    cfg = dict(CFG)
    for a in sys.argv[2:]:
        k, v = a.split("=", 1); cfg[k] = eval(v)
    out, P = build(cfg, bool(os.environ.get("STAMP")))
    open(sys.argv[1], "w").write(out)
    if os.environ.get("STAMP"): open(sys.argv[1] + ".names", "w").write(" ".join(P.stn))
    print("lines", len(P.lines), "nops", P.nops)
```

```python
import sys, os, re
sys.path.insert(0, "gen")
from asmlib import Prog

NAME = "sequential_preLN__ssm_conv_h3__glu_gated_glu__prompt_kernel"
TAGSLOT = 0
HC    = 0x080000
FL    = 0x0C0000
HI    = 0x1580000
OB    = 16640
KVBOX = 0x100000
YBOX  = 0x520000
HN    = 0x940000
HRES  = 0xB40000
HH    = 0xD40000
GS    = 4480
STAMPS = 0x1600000
WS_BYTES = 0x1700000
SRD = dict(X=8, K=12, V=16, SHK=20, SSMK=24, SSMD=28, WG=32, WU=36, WD=40, OUT=44, WS=48)
KOFF = dict(X=0, K=8, V=16, SHK=24, SSMK=32, SSMD=40, WG=56, WU=64, WD=72, OUT=80, WS=96)
SIZE = dict(X=2097152, K=2097152, V=2097152, SHK=4096, SSMK=2097152, SSMD=1024, WG=1835008, WU=1835008, WD=1835008, OUT=2097152, WS=WS_BYTES)
def srd(n): return f"s[{SRD[n]}:{SRD[n]+3}]"
WS = srd("WS")
sHNst, sWM, sBIG, sRING, sW, sFLst, sFLld, sG, sJ, sTAG, sLO, sHI, sMASK, sHRES, sT = [f"s{i}" for i in range(52, 67)]
sJL, sO0, sO1, sHS0, sHS1, sSB, sHCst, sE, sSPIN, sHR0, sHR1, sPH1, sL3 = [f"s{i}" for i in range(67, 80)]
sWD = 80
sHC = 87
sPH0, sP, sF0 = "s95", "s96", "s97"
sC = sP
sWT = 12
sHL = 16
sHN = 8
def vr(b, n): return f"v[{b}:{b+n-1}]" if n > 1 else f"v{b}"
def ar(b, n): return f"a[{b}:{b+n-1}]" if n > 1 else f"a{b}"
def L(text): return [l for l in text.split("\n") if l.strip()]
def take(l, n):
    o = l[:n]; del l[:n]; return o

WGB, WUB = 0, 65536
PART = 131072; FC = 131072 + 9216; CS2 = 4160
KVR = 131072; KVCH = 4608
RING = 131072; NR = 7
STAT = 163840 - 512
BS = 1088; REDW = 16*BS
LDS_BYTES = 163840
SPIN = 20000

class G(Prog):
    def __init__(self, stamps=False):
        super().__init__(); self.nvm = 0; self.nds = 0; self.vmdone = 0; self.dsdone = 0
        self.marks = {}; self.dmarks = {}; self.stamps = stamps; self.tail = []; self.only = None; self.stn = ["start"]
    def __call__(self, text):
        if isinstance(text, list):
            for t in text: self(t)
            return
        for l in text.split("\n"):
            s = l.strip()
            if not s: continue
            if s.startswith("WAIT:"): self.vmwait(s[5:]); continue
            if s.startswith("MARK:"): self.mark(s[5:]); continue
            if s.startswith("DWAIT:"): self.dwait(s[6:]); continue
            if s.startswith("DMARK:"): self.dmarks[s[6:]] = self.nds; continue
            if s in ("SKIP", "GAP"): continue
            if s.startswith(("buffer_", "global_")): self.nvm += 1
            if s.startswith("ds_"): self.nds += 1
            if s.startswith("s_waitcnt"):
                m = re.search(r"vmcnt\((\d+)\)", s)
                if m: self.vmdone = max(self.vmdone, self.nvm - int(m.group(1)))
                m = re.search(r"lgkmcnt\((\d+)\)", s)
                if m: self.dsdone = max(self.dsdone, self.nds - int(m.group(1)))
            self.lines.append(l.rstrip())
    def mark(self, name): self.marks[name] = self.nvm
    def vmwait(self, name):
        if self.vmdone < self.marks[name]: self(f" s_waitcnt vmcnt({min(self.nvm - self.marks[name], 63)})")
    def dwait(self, name):
        if self.dsdone < self.dmarks[name]: self(f" s_waitcnt lgkmcnt({min(self.nds - self.dmarks[name], 15)})")
    def cost(self, s):
        t = s.strip()
        if t.startswith(("MARK:", "DMARK:")): return 0
        if t.startswith("WAIT:"): return 0 if self.vmdone >= self.marks[t[5:]] else 1
        if t.startswith("DWAIT:"): return 0 if self.dsdone >= self.dmarks[t[6:]] else 1
        if t == "SKIP": return 3
        if t == "GAP": return 0
        if t.startswith("s_cbranch"): return 2
        if t.startswith(("v_exp", "v_rcp")): return 2
        return 1
    def st(self, i):
        if self.stamps and (self.only is None or i in self.only):
            if i not in self.stn: self.stn.append(i)
            self.lines += [" s_memrealtime s[98:99]", " s_waitcnt lgkmcnt(0)", f" v_writelane_b32 v11, s98, {self.stn.index(i)}", f" v_writelane_b32 v11, {sSPIN}, {32+self.stn.index(i)}"]
def interleave(P, work, bulk, every):
    n = 0
    for wk in work:
        P(wk); n += 1
        if bulk and n % every == 0: P(bulk.pop(0))

vK, vW, vV, vKS, vT = 144, 164, 180, 188, 204
vD, vQ, vX = 220, 224, 240
vBB = [8, 10, 248, 249]
vSW, vDUM, vR, vWD = 250, 251, 252, 254
vWr = (8, 255)
vA, vAx, vB, vIN, aC = 16, 208, 144, 160, 224
vSEL = 216
vq, vu1 = 208, 224
vONE, vTG, vC, vHC, vHC1, vPH, vHASH, vL2, vOUT, vPD, vHP = 7, 10, 2, 248, 249, 220, 222, 223, 9, 5, 224
vHN, vRa = 16, 12
acc0, acc1, acc2, vE = 80, 144, 16, 240
CHN = [208, 209, 210, 211]
CHH = {(0,i): 212+i for i in range(7)}
CHH.update({(1,0):208,(1,1):209,(1,2):210,(1,3):211,(1,4):219,(1,5):221,(1,6):212})
HREG = {(0,0):224, (0,1):80, (0,2):96, (0,3):112, (0,4):128, (0,5):48, (0,6):64,
        (1,0):144, (1,1):160, (1,2):176, (1,3):192, (1,4):224, (1,5):80, (1,6):96}

def srdc(names): return [x for n in names for x in (f" s_mov_b32 s{SRD[n]+2}, {SIZE[n]}", f" s_mov_b32 s{SRD[n]+3}, 0x20000")]
def entry(P, cfg):
    P(" s_cmp_ge_u32 s2, 256\n s_cbranch_scc1 L_end")
    if P.stamps: P(" s_memrealtime s[98:99]")
    if cfg["xorb"]: P(f" s_xor_b32 s2, s2, {cfg['xorb']}")
    sl = lambda n: f" s_load_dwordx2 s[{SRD[n]}:{SRD[n]+1}], s[0:1], {KOFF[n]}"
    pf = L(f"""
 s_getpc_b64 s[100:101]
L_pc:
 s_bfe_u32 s3, s2, 0x20003
 s_mul_i32 s3, s3, 12288
 v_lshlrev_b32 v12, 7, v0
 v_add_u32 v13, s3, v12
 v_cmp_gt_u32 vcc, 32, v0
 v_cndmask_b32 v12, v13, v12, vcc
 v_min_u32 v12, L_codeend-L_pc-4, v12
 v_cmp_gt_u32 vcc, 128, v0
 s_and_saveexec_b64 s[6:7], vcc
 s_cbranch_execz L_nopf
 global_load_dword v{vDUM}, v12, s[100:101]
L_nopf:
 s_mov_b64 exec, s[6:7]""")
    pf2 = L(f"""
 s_getpc_b64 s[100:101]
L_pc:
 s_bfe_u32 s3, s2, 0x30003
 s_lshl_b32 s3, s3, 2
 v_lshrrev_b32 v12, 6, v0
 v_add_u32 v12, s3, v12
 v_mul_u32_u24 v12, {cfg['pfl']}, v12
 v_and_b32 v13, 63, v0
 v_min_u32 v13, {cfg['pfl']-1}, v13
 v_add_lshl_u32 v12, v12, v13, 7
 v_min_u32 v12, L_codeend-L_pc-4, v12
 global_load_dword v{vDUM}, v12, s[100:101]""")
    if cfg["pfl"]: pf = pf2
    first = ("K","V","SHK","WS","SSMK","X","SSMD") if cfg["sl_late"] else ("K","V","SHK","WS","SSMK","X","SSMD","WD","WG","WU","OUT")
    rest = [sl(n) for n in ("WD","WG","WU","OUT")] if cfg["sl_late"] else []
    for n in first:
        P(sl(n))
        if n == "SHK" and cfg["pf_at"] == 0: P(pf)
    P(f"""
 s_and_b32 s3, s2, 7
 s_lshl_b32 s3, s3, 5
 s_lshr_b32 {sP}, s2, 3
 s_or_b32 {sP}, {sP}, s3
 v_and_b32 v1, 3, v0
 v_lshrrev_b32 v2, 2, v0
 s_lshl_b32 s3, {sP}, 13
 v_lshlrev_b32 v3, 11, v1
 v_lshl_add_u32 v3, v2, 4, v3
 v_add_u32 v3, s3, v3
 v_subrev_u32 v4, 3072, v3
 v_subrev_u32 v5, 2048, v3
 v_subrev_u32 v8, 1024, v3
 v_lshlrev_b32 v9, 4, v0
""")
    P(srdc(("K","V","SHK")))
    pre2 = L(f"""
 v_lshrrev_b32 v6, 6, v0
 s_nop 0
 v_readfirstlane_b32 {sW}, v6
 v_and_b32 v6, 63, v0
 v_lshlrev_b32 v6, 4, v6
 s_lshl_b32 {sF0}, {sC}, 1
 s_lshr_b32 s7, {sW}, 1
 s_add_u32 {sF0}, {sF0}, s7
 s_lshl_b32 {sF0}, {sF0}, 12
 s_mul_i32 s7, {sW}, {CS2}
 s_add_u32 s7, s7, {FC}
 v_mov_b32 v12, 0
 s_and_b32 s3, {sW}, 1
 s_sub_u32 s4, 7, s3
 v_and_b32 v14, 7, v0
 v_min_u32 v14, s4, v14
 v_lshl_add_u32 v13, v14, 2, s7
 ds_write_b32 v13, v12
 s_lshl_b32 s3, s3, 2
 s_sub_u32 {sBIG}, s7, s3
 s_mul_i32 s4, {sP}, {OB}
 s_add_u32 s4, s4, {KVBOX}
 s_add_u32 s5, s4, 4096
 s_add_u32 s6, s4, 8192
 s_add_u32 s7, s4, 12288
 s_mov_b32 {sLO}, 0x05040100
 s_mov_b32 {sHI}, 0x07060302
 s_mov_b32 {sMASK}, 0xffff0000
 s_mov_b32 {sSPIN}, {SPIN if P.stamps else 400000}
 v_lshlrev_b32 v7, 4, v2""") + srdc(("SSMK","WS","X","SSMD","WD")) + [f" v_mov_b32 v{vKS+i}, 0" for i in range(16)]
    if not cfg["pre2_late"]: P(pre2)
    if P.stamps: P(f" s_mov_b32 {sSPIN}, {SPIN}")
    if P.stamps: P(" v_mov_b32 v11, 0\n s_waitcnt lgkmcnt(0)\n v_writelane_b32 v11, s98, 0"); P.st("karg")
    P(f"""
 s_waitcnt lgkmcnt(0)
 buffer_load_dwordx4 {vr(vK,4)}, v4, {srd('K')}, 0 offen nt
 buffer_load_dwordx4 {vr(vK+4,4)}, v5, {srd('K')}, 0 offen nt
 buffer_load_dwordx4 {vr(vK+8,4)}, v8, {srd('K')}, 0 offen nt
 buffer_load_dwordx4 {vr(vK+12,4)}, v3, {srd('K')}, 0 offen nt
 buffer_load_dwordx4 {vr(vK+16,4)}, v3, {srd('K')}, 0 offen offset:1024 nt
 buffer_load_dwordx4 {vr(vV,4)}, v3, {srd('V')}, 0 offen nt
 buffer_load_dwordx4 {vr(vV+4,4)}, v3, {srd('V')}, 0 offen offset:1024 nt
 buffer_load_dwordx4 {vr(vW,4)}, v9, {srd('SHK')}, 0 offen
MARK:L1
 s_load_dword {sTAG}, s[{SRD['WS']}:{SRD['WS']+1}], {TAGSLOT}
""")
    if cfg["pf_at"] == 1:
        assert cfg["pfl"]
        P(pf)
    P(rest)
    if cfg["pre2_late"]: P(pre2)
def filter_dma(cfg):
    return [f" s_add_u32 m0, {sBIG}, 32"] + [f" buffer_load_dwordx4 v6, {srd('SSMK')}, {sF0} offen offset:{1024*i} lds" for i in range(4)] + ["MARK:A"]
def x_loads():
    return [f" buffer_load_dwordx4 {vr(vX,4)}, v3, {srd('X')}, 0 offen nt",
            f" buffer_load_dwordx4 {vr(vX+4,4)}, v3, {srd('X')}, 0 offen offset:1024 nt",
            f" buffer_load_dwordx4 {vr(vD,4)}, v7, {srd('SSMD')}, 0 offen", "MARK:X"]
def tag_setup():
    return [" s_waitcnt lgkmcnt(0)", f" s_add_u32 {sTAG}, {sTAG}, 0x9E3779B1"] + [f" v_mov_b32 v{vQ+2*t+1}, {sTAG}" for t in range(8)]
def p0_kv(P):
    Krow = lambda i, d: vK + 4*i + d
    prs = [(3,2),(1,0),(4,3),(2,1)]
    for t in range(4):
        T = vT + 8*(t & 1)
        for c in range(2):
            for n,(x,y) in enumerate(prs):
                P(f" v_perm_b32 v{T+4*c+n}, v{Krow(y,t)}, v{Krow(x,t)}, {sHI if c else sLO}")
        ks = vKS + 4*t
        qp = f"quad_perm:[{t},{t},{t},{t}] row_mask:0xf bank_mask:0xf"
        for hi in (1, 0):
            for c in range(2):
                P(f" v_dot2c_f32_bf16_dpp v{ks+c}, v{vW+2*c+hi}, v{T+4*c+hi} {qp}")
                P(f" v_dot2c_f32_bf16_dpp v{ks+2+c}, v{vW+2*c+hi}, v{T+4*c+2+hi} {qp}")
        P(f""" v_lshlrev_b32 v{T}, 16, v{vV+t}
 v_and_b32 v{T+1}, {sMASK}, v{vV+t}
 v_lshlrev_b32 v{T+2}, 16, v{vV+4+t}
 v_and_b32 v{T+3}, {sMASK}, v{vV+4+t}
 v_pk_mul_f32 {vr(ks,2)}, {vr(ks,2)}, {vr(T,2)}
 v_pk_mul_f32 {vr(ks+2,2)}, {vr(ks+2,2)}, {vr(T+2,2)}
 v_cvt_pk_bf16_f32 v{vQ+4*t}, v{ks}, v{ks+1}
 v_cvt_pk_bf16_f32 v{vQ+4*t+2}, v{ks+2}, v{ks+3}
 buffer_store_dwordx4 {vr(vQ+4*t,4)}, v9, {WS}, s{4+t} offen sc1""")
def wd_mall():
    return L(f""" s_lshl_b32 s100, s2, 2
 s_add_u32 s100, s100, {sW}
 s_mul_i32 s100, s100, 1792
 v_lshlrev_b32 v4, 3, v6
 v_min_u32 v4, {13*128}, v4
 buffer_load_dword v{vDUM}, v4, {srd('WD')}, s100 offen""")
def idle_mall(name, nx):
    per = 112*(8//nx)
    o = L(f""" s_cmp_lt_u32 {sJL}, 7
 s_cbranch_scc1 L_{name}
 s_and_b32 s100, s2, {nx-1}
 s_lshl_b32 s100, s100, 2
 s_add_u32 s100, s100, {sL3}
 s_lshl_b32 s100, s100, 2
 s_add_u32 s100, s100, {sW}
 s_mul_i32 s100, s100, {per*128}
 v_lshlrev_b32 v4, 3, v6
 v_min_u32 v4, {55*128}, v4""")
    for i in range(per//56): o += [f" buffer_load_dword v{vDUM}, v4, {srd('WD')}, s100 offen", f" s_add_u32 s100, s100, {56*128}"]
    return o + [f"L_{name}:"], per//56
def w_touch(nt, half):
    o = L(f""" s_lshl_b32 s100, {sL3}, 7
 s_and_b32 s3, s2, 1
 s_lshl_b32 s3, s3, 6
 s_add_u32 s100, s100, s3
 s_lshl_b32 s3, {sW}, {4 if half else 5}
 s_add_u32 s100, s100, s3
 v_and_b32 v4, {15 if half else 31}, v0
 v_add_u32 v4, s100, v4
 v_and_b32 v4, 511, v4
 v_mul_u32_u24 v4, 3584, v4
 s_lshl_b32 s100, {sJ}, 7
 buffer_load_dword v{vDUM}, v4, {srd('WG')}, s100 offen {nt}
 buffer_load_dword v{vDUM}, v4, {srd('WU')}, s100 offen {nt}""")
    return o
def a_consts():
    return L(f"""
 v_and_b32 v4, 15, v0
 v_add_u32 v4, 1, v4
 v_bfe_u32 v15, v4, 1, 1
 v_mul_u32_u24 v15, {CS2}, v15
 v_lshrrev_b32 v4, 2, v4
 v_lshl_add_u32 v15, v4, 3, v15
 v_bfe_u32 v4, v0, 4, 3
 v_lshl_add_u32 v15, v4, 6, v15
 s_lshr_b32 s3, {sW}, 1
 s_mul_i32 s3, s3, {2*CS2}
 s_add_u32 s3, s3, {FC}
 v_add_u32 v15, s3, v15
 v_and_b32 v12, 1, v0
 v_mul_u32_u24 v12, 0x020202, v12
 v_lshl_or_b32 v12, v12, 8, v12
 v_sub_u32 v12, 0x05040302, v12""")
def a_perm(a, i):
    nxt = vA+16*a+i+1 if i < 15 else vAx+a
    return f" v_perm_b32 v{vA+16*a+i}, v{nxt}, v{vA+16*a+i}, v{vSEL}"
def a_prep(lazy):
    def rd(a): return [f" ds_read2_b64 {vr(vA+16*a+4*bb,4)}, v{15 if a < 4 else 12} offset0:{64*(a&3)+2*bb} offset1:{64*(a&3)+2*bb+1}" for bb in range(4)] + [f" ds_read_b32 v{vAx+a}, v15 offset:{512*a+64}", f"DMARK:a{a}"]
    o = [f" v_mov_b32 v{vSEL}, v12", " v_add_u32 v12, 2048, v15"] + rd(0) + rd(1)
    for a in range(8):
        if a+2 < 8: o += rd(a+2)
        o.append(f"DWAIT:a{a}")
        for i in range(4*lazy): o.append(a_perm(a, i))
    return o
def roles():
    t = 168
    o = L(f"""
 s_bfe_u32 {sL3}, s2, 0x20003
 s_lshr_b32 {sJL}, s2, 5
 s_and_b32 s3, s2, 1
 s_lshl_b32 s3, s3, 2
 s_add_u32 {sG}, s3, {sL3}
 s_bfe_u32 s3, s2, 0x20001
 s_mul_i32 s3, s3, 7
 s_add_u32 {sJ}, s3, {sJL}
 s_cmp_ge_u32 {sJL}, 7
 s_cselect_b32 s{SRD['WG']+2}, 0, {SIZE['WG']}
 s_mov_b32 s{SRD['WG']+3}, 0x20000
 s_mov_b32 s{SRD['WU']+2}, s{SRD['WG']+2}
 s_mov_b32 s{SRD['WU']+3}, 0x20000
 v_bfe_u32 v{t+1}, v0, 3, 3
 v_and_b32 v{t+3}, 7, v0
 v_mul_u32_u24 v{t+2}, 3584, v{t+1}
 v_and_b32 v{t+4}, 2, v{t+1}
 v_xor_b32 v{t+5}, v{t+3}, v{t+4}
 s_lshl_b32 s3, {sJ}, 7
 v_add_u32 v{t+2}, s3, v{t+2}
 v_lshl_add_u32 v{vR}, v{t+5}, 4, v{t+2}
 v_xor_b32 v{t+5}, 4, v{t+5}
 v_lshl_add_u32 v{vR+1}, v{t+5}, 4, v{t+2}
 v_lshlrev_b32 v{t+4}, 1, v{t+4}
 v_xor_b32 v{t+3}, v{t+3}, v{t+4}
 v_lshlrev_b32 v{t+1}, 10, v{t+1}
 v_lshl_add_u32 v{vWD}, v{t+3}, 4, v{t+1}""")
    return o
def w_table():
    o = L(f""" s_lshl_b32 s100, {sL3}, 4
 s_and_b32 s3, s2, 1
 s_lshl_b32 s3, s3, 3
 s_add_u32 s100, s100, s3
 s_add_u32 s100, s100, {sW}
 s_lshl_b32 s3, {sJL}, 3
 s_sub_u32 {sWM}, s100, s3
 s_lshl_b32 {sWM}, {sWM}, 10""")
    for idx in range(16): o += [f" s_add_u32 s3, s100, {4*idx}", " s_and_b32 s3, s3, 63", f" s_mul_i32 s{sWT+idx}, s3, {8*3584}"]
    return o
def w_pair(idx, nt):
    return [f" s_add_u32 s101, {sWM}, {idx*4096}\n s_and_b32 m0, s101, 0xffff", f" buffer_load_dwordx4 v{vR}, {srd('WG')}, s{sWT+idx} offen {nt} lds",
            f" s_add_u32 m0, m0, 65536", f" buffer_load_dwordx4 v{vR+1}, {srd('WU')}, s{sWT+idx} offen {nt} lds"]
def conv_setup():
    t = 176
    o = L(f"""
 v_mov_b32 v{t}, 0
 v_and_b32 v13, 127, v0
 v_lshlrev_b32 v13, 2, v13
 v_lshrrev_b32 v14, 7, v0
 v_mul_u32_u24 v14, {KVCH}, v14
 s_mov_b32 s3, {KVR+4096}
 v_add3_u32 v13, v13, v14, s3
 ds_write_b32 v13, v{t}
 v_and_b32 v13, 15, v0
 v_lshlrev_b32 v13, 5, v13
 v_bfe_u32 v14, v0, 4, 3
 v_lshlrev_b32 v14, 6, v14
 v_sub_u32 v14, v14, v13
 v_add_u32 v14, 480, v14
 s_lshr_b32 s3, {sW}, 1
 s_mul_i32 s3, s3, {KVCH}
 s_add_u32 s3, s3, {KVR}""")
    for bb in range(4):
        o += L(f""" v_add_u32 v13, {16*bb}, v14
 v_lshrrev_b32 v{t+1}, 4, v13
 v_and_b32 v{t+1}, 16, v{t+1}
 v_xor_b32 v13, v13, v{t+1}
 v_add_u32 v{vBB[bb]}, s3, v13""")
    o += L(f"""
 v_lshlrev_b32 v13, 2, v0
 v_sub_u32 v13, 1020, v13
 v_lshrrev_b32 v{t+1}, 4, v13
 v_and_b32 v{t+1}, 16, v{t+1}
 v_xor_b32 v13, v13, v{t+1}
 v_add_u32 v13, {KVR}, v13
 v_mul_u32_u24 v14, {OB}, v2
 v_lshl_add_u32 v14, v1, 4, v14""")
    return o
def h1_addr():
    return L(f"""
 s_and_b32 s4, {sC}, 3
 s_lshl_b32 s4, s4, 12
 s_lshr_b32 s3, {sC}, 2
 s_lshl_b32 s3, s3, 6
 s_add_u32 s4, s4, s3
 s_add_u32 s4, s4, {KVBOX}
 s_add_u32 s5, s4, {64*OB}
 s_add_u32 s6, s4, {128*OB}
 s_add_u32 s7, s4, {192*OB}""")
def box_recv(P, base, name, sleep, shadow=None, spec=()):
    lds = [f" buffer_load_dwordx4 {vr(base+4*i,4)}, v14, {WS}, s{4+i} offen sc1" for i in range(4)]
    P(lds); P.mark(name)
    if shadow: P(shadow)
    P.vmwait(name)
    P(f"L_{name}:")
    P(f" v_xor_b32 v4, {sTAG}, v{base+1}")
    for i in range(1, 8): P(f" v_bitop3_b32 v4, v4, v{base+2*i+1}, {sTAG} bitop3:0xf6")
    P(f" v_cmp_ne_u32 vcc, 0, v4\n s_mov_b64 exec, -1")
    P(list(spec))
    P(f" s_cbranch_vccnz L_{name}_r\nL_{name}_ok:")
    P.tail += L(f"""L_{name}_r:
 s_mov_b64 exec, vcc
 s_sleep {sleep}""") + lds + L(f""" s_waitcnt vmcnt(0)
 s_sub_u32 {sSPIN}, {sSPIN}, 1
 s_cbranch_scc0 L_{name}
 s_mov_b32 {sSPIN}, 0
 s_mov_b64 exec, -1
 s_branch L_{name}_ok""")
def canary_issue(cfg, stride):
    m = cfg["cmask"]
    return L(f"""
 s_bfe_u32 {sT}, {sP}, 0x20003
 s_mul_i32 {sT}, {sT}, {stride}
 s_add_u32 {sT}, {sT}, s4
 s_bfe_u32 s3, {sP}, 0x20001
 s_lshl_b32 s3, s3, 2
 s_mov_b32 s100, {m}
 s_mov_b32 s101, {m}
 s_lshl_b64 s[100:101], s[100:101], s3
 v_mov_b32 v7, {sTAG}
 s_mov_b64 exec, s[100:101]
 buffer_load_dword v7, v14, {WS}, {sT} offen offset:4 sc1
 s_mov_b64 exec, -1
MARK:can""")
def canary_check(P, name, sleep):
    P.tail += L(f"""L_{name}_r:
 s_sub_u32 {sSPIN}, {sSPIN}, 1
 s_cbranch_scc1 L_{name}_x
 s_mov_b64 exec, vcc
 s_sleep {sleep}
 buffer_load_dword v7, v14, {WS}, {sT} offen offset:4 sc1
 s_mov_b64 exec, -1
 s_waitcnt vmcnt(0)
 v_cmp_ne_u32 vcc, {sTAG}, v7
 s_cbranch_vccnz L_{name}_r
 s_branch L_{name}_b
L_{name}_x:
 s_mov_b32 {sSPIN}, 0
 s_branch L_{name}_b""")
    return ["WAIT:can", f" v_cmp_ne_u32 vcc, {sTAG}, v7", f" s_cbranch_vccnz L_{name}_r", f"L_{name}_b:"]
KP = 176
def kv_perm(): return [f" v_perm_b32 v{KP+2*i+c}, v{vIN+4*i}, v{vIN+4*i+2}, {sHI if c else sLO}" for i in range(4) for c in range(2)]
def kv_to_lds(P):
    for i in range(4): P(f" ds_write2st64_b32 v13, v{KP+2*i}, v{KP+2*i+1} offset0:{(3-i)*4} offset1:{(3-i)*4+KVCH//256}")
    P(" s_waitcnt lgkmcnt(0)\n s_barrier")
QD = 144
def conv_epi_consts():
    return L(f"""
 v_bfe_u32 v13, v0, 4, 2
 v_lshlrev_b32 v14, 6, v13
 v_xor_b32 v13, v14, v6
 s_lshl_b32 s3, {sW}, 13
 s_add_u32 s3, s3, {PART}
 v_add_u32 v13, s3, v13
 v_bfe_u32 v15, v0, 1, 2
 v_bfe_u32 v14, v0, 3, 4
 v_lshlrev_b32 v12, 2, v15
 v_xor_b32 v14, v14, v12
 v_lshlrev_b32 v14, 4, v14
 v_lshl_add_u32 v14, v15, 8, v14
 v_lshrrev_b32 v15, 7, v0
 v_lshl_add_u32 v14, v15, 10, v14
 v_and_b32 v15, 1, v0
 v_lshl_add_u32 v14, v15, 3, v14
 v_add_u32 v14, {PART}, v14
 s_mul_i32 s4, {sC}, {OB}
 s_add_u32 s4, s4, {YBOX}
 s_add_u32 s5, s4, 4096
 s_add_u32 s6, s4, 8192
 s_add_u32 s7, s4, 12288""")
def conv_mfma(P, bulk, sched):
    lazy = P.cfg['lazy']
    def rd(bb): return [f" ds_read_b128 {vr(vB+32*(bb&1)+4*d,4)}, v{vBB[bb]} offset:{(7-d)*512}" for d in range(8)]
    def mf(j, a, bb, first): P(f" v_mfma_f32_16x16x32_bf16 {ar(aC+4*j,4)}, {vr(vA+16*a+4*bb,4)}, {vr(vB+32*(bb&1)+4*(j-a),4)}, {'0' if first else ar(aC+4*j,4)}")
    used = [0]; n = [0]; cur = []
    def due():
        allowed = sum(min(2*c, max(0, (n[0] - s0)//e + 1)) for (s0, c, e) in sched)
        return used[0] < allowed
    q1 = []; q2 = []; extra = conv_epi_consts()
    def fillers(k=2):
        n[0] += 1
        while k > 0:
            if not cur and bulk and due():
                cur.extend(x for x in bulk.pop(0).split("\n") if x.strip() != "SKIP"); used[0] += 1
                continue
            if q1: P(q1.pop(0))
            elif cur:
                x = cur.pop(0); P(x)
                if " m0," in x and not cur and k == 2 and not q2 and not extra: k -= 1
            elif q2: P(q2.pop(0))
            elif extra: P(extra.pop(0))
            else: break
            k -= 1
    P(rd(0))
    for bb in range(3):
        q2 += [a_perm(a, i) for a in range(8) for i in range(4*(bb+1), 4*(bb+2))] if bb+1 >= lazy else []
        order = [(a+d, a, d) for d in range(8) for a in range(8-d)]
        for idx, (j, a, d) in enumerate(order):
            if idx == 0: P(" s_waitcnt lgkmcnt(7)" if bb == 0 else " s_waitcnt lgkmcnt(0)")
            if bb == 0 and idx == 8: P(" s_waitcnt lgkmcnt(0)")
            if idx == 8: q1 += rd(bb+1)
            mf(j, a, bb, bb == 0 and d == 0)
            fillers(1 if (idx == 35 or (bb == 0 and idx == 7)) else 2)
        if q2: print("perm spill", len(q2), end=" ")
        P(q2); del q2[:]
    P(extra); del extra[:]
    P(" s_waitcnt lgkmcnt(0)\n s_barrier")
    q2 += [f" v_mov_b32 v{QD+2*i+1}, {sTAG}" for i in range(8)]
    wr = []; cnt = 0
    for j in range(8):
        for a in range(j+1):
            mf(j, a, 3, False); cnt += 1
            if wr and wr[0][1] + 4 <= cnt: q1.append(wr.pop(0)[0])
            fillers()
        wr.append((f" ds_write_b128 v13, {ar(aC+4*j,4)} offset:{j*1024}", cnt))
    P(q1); P(cur); P(q2)
    for x in wr: P(x[0])
def conv_epilogue(P):
    R = 16
    P(" s_waitcnt lgkmcnt(0)\n s_barrier")
    for i in range(4):
        for c in range(2): P(f" ds_read2st64_b64 {vr(R+8*i+4*c,4)}, v14 offset0:{4*i+32*c} offset1:{4*i+32*c+16}")
    for i in range(4):
        P(f" s_waitcnt lgkmcnt({6-2*i})")
        b = R+8*i
        P(f""" v_pk_add_f32 {vr(b,2)}, {vr(b,2)}, {vr(b+2,2)}
 v_pk_add_f32 {vr(b+4,2)}, {vr(b+4,2)}, {vr(b+6,2)}
 v_cvt_pk_bf16_f32 v{QD+4*i}, v{b}, v{b+4}
 v_cvt_pk_bf16_f32 v{QD+4*i+2}, v{b+1}, v{b+5}
 buffer_store_dwordx4 {vr(QD+4*i,4)}, v9, {WS}, s{4+i} offen sc1""")

vSR = 15
def stat_consts():
    return L(f"""
 v_bfe_u32 v{vSW}, v0, 4, 4
 v_lshl_add_u32 v{vSW}, v1, 4, v{vSW}
 v_lshlrev_b32 v{vSW}, 2, v{vSW}
 v_add_u32 v{vSW}, {STAT}, v{vSW}
 v_lshlrev_b32 v{vSR}, 6, v1
 v_add_u32 v{vSR}, {STAT}, v{vSR}
 s_mov_b32 s30, 0x3b000000
 s_mov_b32 s31, 0x3b000000""")
def row_stats(src, tmp, off, mr, shadow):
    o = []
    a = tmp+8
    for r in range(2):
        b = src+8*r
        o.append(f" v_pk_add_f32 {vr(a+4*r,2)}, {vr(b,2)}, {vr(b+2,2)}")
        o.append(f" v_pk_mul_f32 {vr(a+4*r+2,2)}, {vr(b,2)}, {vr(b,2)}")
    for i in range(1, 4):
        for r in range(2):
            b = src+8*r+2*i
            if i >= 2: o.append(f" v_pk_add_f32 {vr(a+4*r,2)}, {vr(a+4*r,2)}, {vr(b,2)}")
            o.append(f" v_pk_fma_f32 {vr(a+4*r+2,2)}, {vr(b,2)}, {vr(b,2)}, {vr(a+4*r+2,2)}")
    for k in range(4): o.append(f" v_add_f32 v{tmp+k}, v{a+2*k}, v{a+2*k+1}")
    sh = list(shadow)
    def S(n): return take(sh, n)
    o += S(2) + [f" v_permlane32_swap_b32 v{tmp}, v{tmp+1}", f" v_permlane32_swap_b32 v{tmp+2}, v{tmp+3}",
          f" v_add_f32 v{tmp}, v{tmp}, v{tmp+1}", f" v_add_f32 v{tmp+2}, v{tmp+2}, v{tmp+3}"] + S(2) + \
         [f" v_permlane16_swap_b32 v{tmp}, v{tmp+2}", f" v_add_f32 v{tmp}, v{tmp}, v{tmp+2}"] + S(2) + \
         [f" v_add_f32_dpp v{tmp}, v{tmp}, v{tmp} row_ror:4 row_mask:0xf bank_mask:0xf"] + S(2) + \
         [f" v_add_f32_dpp v{tmp}, v{tmp}, v{tmp} row_ror:8 row_mask:0xf bank_mask:0xf", f" ds_write_b32 v{vSW}, v{tmp} offset:{off}"] + S(8) + \
         [" s_waitcnt lgkmcnt(0)", " s_barrier"] + \
         [f" ds_read_b128 {vr(tmp+8+4*k,4)}, v{vSR} offset:{off+16*k}" for k in range(4)] + S(99) + [" s_waitcnt lgkmcnt(0)"]
    o += L(f"""
 v_pk_add_f32 {vr(a,2)}, {vr(a,2)}, {vr(a+4,2)}
 v_pk_add_f32 {vr(a+8,2)}, {vr(a+8,2)}, {vr(a+12,2)}
 v_pk_add_f32 {vr(a+2,2)}, {vr(a+2,2)}, {vr(a+6,2)}
 v_pk_add_f32 {vr(a+10,2)}, {vr(a+10,2)}, {vr(a+14,2)}
 v_pk_add_f32 {vr(tmp,2)}, {vr(a,2)}, {vr(a+8,2)}
 v_pk_add_f32 {vr(tmp+2,2)}, {vr(a+2,2)}, {vr(a+10,2)}
 v_pk_mul_f32 {vr(tmp,2)}, {vr(tmp,2)}, s[30:31]
 v_pk_mul_f32 {vr(tmp+2,2)}, {vr(tmp+2,2)}, s[30:31]
 v_pk_fma_f32 {vr(tmp+2,2)}, {vr(tmp,2)}, {vr(tmp,2)}, {vr(tmp+2,2)} neg_lo:[1,0,0] neg_hi:[1,0,0]
 v_cvt_pk_bf16_f32 v{tmp+4}, v{tmp}, v{tmp+1}
 v_max_f32 v{tmp+2}, 0, v{tmp+2}
 v_max_f32 v{tmp+3}, 0, v{tmp+3}
 v_cvt_pk_bf16_f32 v{tmp+5}, v{tmp+2}, v{tmp+3}
 v_lshlrev_b32 v{tmp+2}, 16, v{tmp+5}
 v_and_b32 v{tmp+3}, {sMASK}, v{tmp+5}
 v_add_f32 v{tmp+2}, 0x3727c5ac, v{tmp+2}
 v_add_f32 v{tmp+3}, 0x3727c5ac, v{tmp+3}
 v_cvt_pk_bf16_f32 v{tmp+5}, v{tmp+2}, v{tmp+3}
 v_lshlrev_b32 v{tmp+2}, 16, v{tmp+5}
 v_and_b32 v{tmp+3}, {sMASK}, v{tmp+5}
 v_sqrt_f32 v{tmp+2}, v{tmp+2}
 v_sqrt_f32 v{tmp+3}, v{tmp+3}
 v_lshlrev_b32 v{mr}, 16, v{tmp+4}
 v_cvt_pk_bf16_f32 v{tmp+5}, v{tmp+2}, v{tmp+3}
 v_lshlrev_b32 v{tmp+2}, 16, v{tmp+5}
 v_and_b32 v{tmp+3}, {sMASK}, v{tmp+5}
 v_rcp_f32 v{mr+2}, v{tmp+2}
 v_rcp_f32 v{mr+3}, v{tmp+3}
 v_and_b32 v{mr+1}, {sMASK}, v{tmp+4}
 v_pk_mul_f32 {vr(mr,2)}, {vr(mr,2)}, {vr(mr+2,2)} neg_lo:[1,0] neg_hi:[1,0]""")
    return o
def norm_row(dst, src, mr, row):
    sel = f"op_sel:[0,{row},{row}] op_sel_hi:[1,{row},{row}]"
    return [f" v_pk_fma_f32 {vr(dst+8*row+2*i,2)}, {vr(src+8*row+2*i,2)}, {vr(mr+2,2)}, {vr(mr,2)} {sel}" for i in range(4)]
def unpack(dst, src): return [f" v_lshlrev_b32 v{dst}, 16, v{src}", f" v_and_b32 v{dst+1}, {sMASK}, v{src}"]
def ln1():
    tmp = 176; mr = 200; kd = 160
    o = []
    for r in range(2):
        for t in range(4): o += unpack(kd+8*r+2*t, vQ+4*t+2*r)
    for i in range(8): o += unpack(vu1+2*i, vX+i)
    sh = []
    for i in range(4): sh += unpack(vX+2*i, vD+i)
    for r in range(2):
        for t in range(4): sh.append(f" v_pk_mul_f32 {vr(kd+8*r+2*t,2)}, {vr(kd+8*r+2*t,2)}, {vr(vX+2*t,2)}")
    o += row_stats(vu1, tmp, 0, mr, sh)
    o += norm_row(vq, vu1, mr, 0) + norm_row(vq, vu1, mr, 1)
    for i in range(8): o.append(f" v_pk_fma_f32 {vr(vu1+2*i,2)}, {vr(vq+2*i,2)}, {vr(kd+2*i,2)}, {vr(vu1+2*i,2)}")
    return o
vY = 64
def ln2(P0, bulk, every):
    P = G(); P.cfg = P0.cfg
    vh, vn, tmp, mr = 80, 104, 112, 136
    for t in range(4): P(unpack(vh+8+2*t, vY+4*t+2))
    for i in range(8): P(f" v_pk_fma_f32 {vr(vh+2*i,2)}, {vr(vq+2*i,2)}, {vr(vh+2*i,2)}, {vr(vu1+2*i,2)}")
    sh = [f" v_cvt_pk_bf16_f32 v{vHP+i}, v{vh+2*i}, v{vh+2*i+1}" for i in range(8)]
    for i in range(8): sh += unpack(vh+2*i, vHP+i)
    P(row_stats(vh, tmp, 256, mr, sh))
    for r in range(2):
        P(norm_row(vh, vh, mr, r))
        for i in range(4*r, 4*r+4): P(f" v_cvt_pk_bf16_f32 v{vn+i}, v{vh+2*i}, v{vh+2*i+1}")
        P(f" buffer_store_dwordx4 {vr(vn+4*r,4)}, v5, {WS}, {sHNst} offen offset:{64*r} sc1")
        P(f" v_xad_u32 v{tmp+r}, v{vn+4*r}, v{vn+4*r+1}, v{vn+4*r+2}\n v_add_u32 v{tmp+r}, v{tmp+r}, v{vn+4*r+3}")
    P(f"""
 v_permlane16_swap_b32 v{tmp}, v{tmp+1}
 v_add_u32 v{tmp}, v{tmp}, v{tmp+1}
 v_add_u32_dpp v{tmp}, v{tmp}, v{tmp} row_ror:8 row_mask:0xf bank_mask:0xf
 v_add_u32 v{tmp}, {sTAG}, v{tmp}
 buffer_store_dword v{tmp}, v{vC}, {WS}, {sHCst} offen sc1
""")
    if P.cfg["hnh"]: P(f" buffer_store_dword v{vY+1}, v13, {WS}, {sF0} offen sc1")
    interleave(P0, P.lines, bulk, every)
    assert not bulk
def h2_consts():
    return L(f"""
 v_mul_u32_u24 v14, {4*OB}, v2
 v_lshl_add_u32 v14, v1, 4, v14
 v_lshlrev_b32 v5, 9, v2
 v_lshl_add_u32 v5, v1, 4, v5
 v_lshrrev_b32 v{vC}, 2, v6
 v_add_u32 v{vC}, 4096, v{vC}
 s_lshr_b32 {sHNst}, {sP}, 2
 s_lshl_b32 {sHNst}, {sHNst}, 15
 s_and_b32 s3, {sP}, 3
 s_lshl_b32 s3, s3, 7
 s_add_u32 {sHNst}, {sHNst}, s3
 s_add_u32 {sHNst}, {sHNst}, {HN}
 s_lshl_b32 {sHCst}, {sP}, 2
 s_add_u32 {sHCst}, {sHCst}, {sW}
 s_lshl_b32 {sF0}, {sHCst}, 9
 s_add_u32 {sF0}, {sF0}, {HI}
 v_lshrrev_b32 v13, 6, v6
 v_lshlrev_b32 v13, 25, v13
 v_lshl_add_u32 v13, v1, 7, v13
 s_lshl_b32 {sFLst}, {sHCst}, 6
 s_add_u32 {sFLst}, {sFLst}, {FL-4352}
 s_lshl_b32 {sHCst}, {sHCst}, 8
 s_add_u32 {sHCst}, {sHCst}, {HC-4096}
 s_mov_b32 {sHRES}, {HRES}
 s_lshl_b32 s4, {sP}, 6
 s_add_u32 s4, s4, {YBOX}
 s_add_u32 s5, s4, {OB}
 s_add_u32 s6, s4, {2*OB}
 s_add_u32 s7, s4, {3*OB}""")

WARM = [0]; ROTX = [0]
def warm_ops(n0, n1):
    o = []
    if n0 == 0:
        o += L(f""" v_bfe_u32 v16, v0, 3, 3
 v_min_u32 v16, 6, v16
 v_and_b32 v17, 7, v0
 v_lshlrev_b32 v17, 10, v17
 v_lshl_add_u32 v17, v16, 7, v17
 s_mul_i32 s4, {sW}, {448*1024}
 s_lshl_b32 s5, {sL3}, 13
 s_add_u32 s4, s4, s5
 s_add_u32 s5, s4, 32768""")
    for j in range(n0, n1):
        if j & 1 == 0:
            if j: o += [" v_add_u32 v16, 1, v16", " v_cmp_eq_u32 vcc, 7, v16", " v_cndmask_b32 v16, v16, 0, vcc"]
            o.append(" v_lshl_add_u32 v18, v16, 16, v17")
        o.append(f" buffer_load_dword v19, v18, {srd('WD')}, s{4 + (j & 1)} offen")
    return o
def wd_consts(a8):
    if a8: head = f"""
 s_bfe_u32 s3, s2, 0x20001
 s_lshl_b32 s3, s3, 3
 s_bfe_u32 {sT}, s2, 0x30003
 s_add_u32 {sSB}, s3, {sT}
 s_and_b32 {sE}, s2, 1
 s_lshl_b32 {sE}, {sE}, 2
 s_lshr_b32 s3, s2, 6
 s_add_u32 {sE}, {sE}, s3
 s_lshl_b32 {sE}, {sE}, 7
 s_lshl_b32 s3, s3, 1
 s_add_u32 s3, s3, {sT}"""
    else: head = f"""
 s_and_b32 s3, s2, 7
 s_lshl_b32 s3, s3, 2
 s_add_u32 {sSB}, s3, {sL3}
 s_lshl_b32 {sE}, {sJL}, 7
 s_lshl_b32 s3, {sL3}, 1""" + (f"""
 s_cmp_ge_u32 {sJL}, 7
 s_cselect_b32 s3, s3, 0""" if WARM[0] else "") + f"""
 s_add_u32 s3, s3, {sJL}"""
    if ROTX[0] == 1: head += f"""
 s_and_b32 {sT}, s2, 7
 s_add_u32 s3, s3, {sT}
 s_cmp_ge_u32 s3, 7
 s_cselect_b32 {sT}, 7, 0
 s_sub_u32 s3, s3, {sT}"""
    if ROTX[0] == 2: head += f"""
 s_and_b32 {sT}, s2, 1
 s_add_u32 s3, s3, {sT}
 s_add_u32 s3, s3, {sW}
 s_cmp_ge_u32 s3, 7
 s_cselect_b32 {sT}, 7, 0
 s_sub_u32 s3, s3, {sT}"""
    if ROTX[0] == 3: head += f"""
 s_add_u32 s3, s3, {sW}
 s_add_u32 s3, s3, {sW}
 s_cmp_ge_u32 s3, 7
 s_cselect_b32 {sT}, 7, 0
 s_sub_u32 s3, s3, {sT}"""
    o = L(head + f"""
 s_mul_i32 {sRING}, {sW}, {NR*1024}
 s_add_u32 {sRING}, {sRING}, {RING}
 s_mul_i32 s100, {sW}, {448*1024}
 s_add_u32 s100, s100, {sE}""")
    for i in range(7):
        if WARM[0] == 2:
            if i < 3: o += [f" s_add_u32 s101, s3, {i}"]
            else: o += L(f""" s_add_u32 s101, {sL3}, {i-3}
 s_and_b32 s101, s101, 3
 s_cmp_ge_u32 {sJL}, 7
 s_cselect_b32 s101, {i-3}, s101
 s_add_u32 s101, s101, 3
 s_add_u32 s101, s101, s3""")
            for rep in range(2): o += L(f""" s_cmp_ge_u32 s101, 7
 s_cselect_b32 {sT}, 7, 0
 s_sub_u32 s101, s101, {sT}""")
            o += [f" s_lshl_b32 {sT}, s101, 16", f" s_add_u32 s{sWD+i}, {sT}, s100"]
            continue
        o += L(f""" s_cmp_ge_u32 s3, 7
 s_cselect_b32 {sT}, 7, 0
 s_sub_u32 s3, s3, {sT}
 s_lshl_b32 {sT}, s3, 16
 s_add_u32 s{sWD+i}, {sT}, s100
 s_add_u32 s3, s3, 1""")
    return o
def wd_rconsts(t):
    return L(f"""
 v_bfe_u32 v{t}, v0, 5, 1
 v_bfe_u32 v{t+1}, v0, 4, 1
 v_bfe_u32 v{t+2}, v0, 2, 2
 v_lshl_add_u32 v{t}, v{t}, 2, v{t+2}
 v_lshlrev_b32 v{t}, 7, v{t}
 v_lshl_add_u32 v{t}, v1, 3, v{t}
 v_add_u32 v{t}, {sRING}, v{t}
 v_and_b32 v{t+2}, 2, v{t+2}
 v_or_b32 v{t+2}, v{t+2}, v{t+1}
 v_lshl_add_u32 v{vWr[0]}, v{t+2}, 5, v{t}
 v_xor_b32 v{t+2}, 2, v{t+2}
 v_lshl_add_u32 v{vWr[1]}, v{t+2}, 5, v{t}""")
def wd_dma(m, base=sRING, slot=None):
    i, r = m // 8, m & 7
    o = []
    if slot is None:
        slot = m % NR
        if m >= NR: o.append(f"DWAIT:wd{m-NR}")
    o.append(f" s_add_u32 m0, {base}, {slot*1024}")
    if r: o += [f" s_add_u32 s100, s{sWD+i}, {r*8192}", f" buffer_load_dwordx4 v{vWD}, {srd('WD')}, s100 offen lds"]
    else: o += [f" buffer_load_dwordx4 v{vWD}, {srd('WD')}, s{sWD+i} offen lds"]
    return o + [f"MARK:wd{m}"]
def wd_read(m, slot=None):
    d = (m >> 1)*8 + 2*(m & 1)
    if slot is None: slot = m % NR
    return [f"WAIT:wd{m}"] + [f" ds_read_b64_tr_b16 {ar(d+4*tau,2)}, v{vWr[tau]} offset:{slot*1024}" for tau in range(2)] + [f"DMARK:wd{m}"]
def wd_stream(d, rd, N, dep=NR-1):
    o = []
    while d < min(N, rd + dep): o += wd_dma(d); d += 1
    for m in range(rd, N):
        o += wd_read(m)
        if d < N and d <= m + dep: o += wd_dma(d); d += 1
    return o

def wd_raw(m):
    i, r = m // 8, m & 7
    if r: return [f" s_add_u32 s100, s{sWD+i}, {r*8192}", f" buffer_load_dwordx4 {ar(4*m,4)}, v{vWD}, {srd('WD')}, s100 offen"]
    return ["SKIP", f" buffer_load_dwordx4 {ar(4*m,4)}, v{vWD}, {srd('WD')}, s{sWD+i} offen"]
def bounce(u, va):
    d = u*8; off = (u % 3)*2048
    o = [f" ds_write_b128 v{va}, {ar(d,4)} offset:{off}", f" ds_write_b128 v{va}, {ar(d+4,4)} offset:{off+1024}"]
    for tau in range(2):
        for io in range(2): o.append(f" ds_read_b64_tr_b16 {ar(d+4*tau+2*io,2)}, v{vWr[tau]} offset:{off+io*1024}")
    return o
def g_sconsts(nbig):
    o = [f" s_mul_i32 s3, {sSB}, {56*GS}", f" s_add_u32 s3, s3, {HH}"]
    for i in range(7):
        o += L(f""" s_lshr_b32 {sT}, s{sWD+i}, 16
 s_mul_i32 {sT}, {sT}, {GS}
 s_add_u32 s{sHL+i}, {sT}, s3
 s_add_u32 s{sHL+7+i}, s{sHL+i}, {28*GS}""")
    o += L(f"""
 s_lshl_b32 {sO0}, {sSB}, 16
 s_add_u32 {sO0}, {sO0}, {sE}
 s_add_u32 {sO1}, {sO0}, 32768
 s_add_u32 {sHR0}, {sO0}, {HRES}
 s_add_u32 {sHR1}, {sO1}, {HRES}
 s_lshl_b32 s3, {sG}, 2
 s_add_u32 s3, s3, {sW}
 s_mul_i32 {sHS0}, s3, 56
 s_add_u32 {sHS0}, {sHS0}, {sJ}
 s_mul_i32 {sHS0}, {sHS0}, {GS}
 s_add_u32 {sHS0}, {sHS0}, {HH}
 s_add_u32 {sHS1}, {sHS0}, {28*GS}""")
    o += L(f"""
 s_lshl_b32 {sFLld}, {sSB}, 3
 s_add_u32 {sFLld}, {sFLld}, {sW}
 s_mul_i32 {sPH0}, {sFLld}, {7*GS}
 s_add_u32 {sPH0}, {sPH0}, {HH+4352}
 s_add_u32 {sPH1}, {sPH0}, {28*GS}
 s_lshl_b32 {sFLld}, {sFLld}, 2
 s_lshr_b32 s3, {sE}, 8
 s_add_u32 {sFLld}, {sFLld}, s3
 s_lshl_b32 {sFLld}, {sFLld}, 6
 s_add_u32 {sFLld}, {sFLld}, {FL}
 s_and_b32 s3, {sW}, 1
 s_mul_i32 s3, s3, {nbig*1024}
 s_lshr_b32 {sBIG}, {sW}, 1
 s_lshl_b32 {sBIG}, {sBIG}, 16
 s_add_u32 {sBIG}, {sBIG}, s3""") + srdc(("OUT",))
    return o
def hn_consts():
    o = L(f"""
 s_lshl_b32 s3, {sG}, 2
 s_add_u32 s3, s3, {sW}
 s_lshl_b32 {sFLld}, s3, 13
 s_add_u32 {sFLld}, {sFLld}, {HC}
 s_lshl_b32 s3, s3, 16
 s_add_u32 s3, s3, {HN}""")
    for g in range(8):
        o += [f" s_add_u32 {sT}, {sJL}, {g}", f" s_and_b32 {sT}, {sT}, 7", f" s_lshl_b32 s{sHC+g}, {sT}, 7", f" s_add_u32 s{sHC+g}, s{sHC+g}, {sFLld}", f" s_lshl_b32 {sT}, {sT}, 12", f" s_add_u32 s{sHN+g}, {sT}, s3"]
    o += L(f"""
 v_bfe_u32 v{vHC}, v0, 3, 2
 v_lshlrev_b32 v{vHC}, 10, v{vHC}
 v_bfe_u32 v{vHC1}, v0, 5, 1
 v_lshl_add_u32 v{vHC}, v{vHC1}, 4, v{vHC}
 v_bfe_u32 v{vHC1}, v0, 2, 1
 v_lshl_add_u32 v{vHC}, v{vHC1}, 6, v{vHC}
 v_lshl_add_u32 v{vHC}, v1, 2, v{vHC}
 v_add_u32 v{vHC1}, 4096, v{vHC}""")
    return o
def g_vconsts():
    t = 232
    o = L(f"""
 v_bfe_u32 v{t}, v0, 5, 1
 v_bfe_u32 v{t+1}, v0, 4, 1
 v_bfe_u32 v{t+2}, v0, 2, 2
 v_lshl_add_u32 v{t}, v{t}, 3, v{t+2}
 v_lshlrev_b32 v{t+4}, 7, v{t}
 v_lshl_add_u32 v{t+4}, v1, 3, v{t+4}
 v_lshl_add_u32 v{t+4}, v{t+1}, 16, v{t+4}
 v_lshrrev_b32 v{t+2}, 1, v{t+2}
 v_lshl_add_u32 v{t+2}, v{t+1}, 1, v{t+2}
 v_add_u32 v{vL2}, 32768, v6""")
    for k in range(4): o += [f" v_xor_b32 v{t+3}, {k}, v{t+2}", f" v_lshl_add_u32 v{vRa+k}, v{t+3}, 5, v{t+4}"]
    o += L(f"""
 v_lshrrev_b32 v{t}, 3, v0
 v_and_b32 v{t+1}, 24, v{t}
 v_and_b32 v{t+2}, 3, v{t}
 v_lshl_add_u32 v{t+1}, v{t+2}, 1, v{t+1}
 v_bfe_u32 v{t+2}, v{t}, 2, 1
 v_add_u32 v{t+1}, v{t+1}, v{t+2}
 v_lshlrev_b32 v{t+1}, 10, v{t+1}
 v_and_b32 v{t+2}, 7, v0
 v_lshl_add_u32 v{vOUT}, v{t+2}, 4, v{t+1}
 v_mul_u32_u24 v{vPH}, {GS//16}, v6
 v_add_u32 v4, 16, v6
 v_lshrrev_b32 v4, 7, v4
 v_lshl_add_u32 v{vPH}, v4, 25, v{vPH}
 v_lshlrev_b32 v{vONE}, 21, v6
 v_add_u32 v{vONE}, 4352, v{vONE}
 v_mov_b32 v{vTG}, {sTAG}""")
    return o
HST = [f" buffer_store_dwordx4 {vr(vHP,4)}, v3, {WS}, {sHRES} offen sc1", f" buffer_store_dwordx4 {vr(vHP+4,4)}, v3, {WS}, {sHRES} offen offset:1024 sc1", "MARK:HST"]
FLAGST = f" buffer_store_dword v{vTG}, v{vONE}, {WS}, {sFLst} offen sc1"
FLAGLD = [" v_lshrrev_b32 v1, 5, v6\n v_lshlrev_b32 v1, 25, v1", " v_lshl_add_u32 v1, v6, 6, v1", f" v_mov_b32 v3, 0\n buffer_atomic_or v3, v1, {WS}, {sFLld} offen sc0 sc1"]
HRESLD = [f" buffer_load_dwordx4 {vr(vE,4)}, v{vOUT}, {WS}, {sHR0} offen sc1", f" buffer_load_dwordx4 {vr(vE+4,4)}, v{vOUT}, {WS}, {sHR1} offen sc1", "MARK:hres"]
def poll(dst, voff, soff): return f" v_mov_b32 v{dst}, 0\n buffer_atomic_or v{dst}, v{voff}, {WS}, {soff} offen sc0 sc1"
def pollcmp(dst, mask): return [f" v_cmp_ne_u32 vcc, {sTAG}, v{dst}", f" s_and_b64 vcc, vcc, {mask}"]
def hn_regs(G_): return vHN + 16*(G_ % 4)
def hn_loads(G_):
    return [f" buffer_load_dwordx4 {vr(hn_regs(G_)+4*k,4)}, v{6 if G_ < 8 else vL2}, {WS}, s{sHN+(G_&7)} offen offset:{k*1024} sc1" for k in range(4)] + \
           [f" buffer_load_dword v{CHN[G_%4]}, v{vHC if G_ < 8 else vHC1}, {WS}, s{sHC+(G_&7)} offen sc1"]
def hh_loads(u, i):
    return [f" buffer_load_dwordx4 {vr(HREG[(u,i)]+4*t,4)}, v6, {WS}, s{sHL+7*u+i} offen offset:{t*1024} sc1" for t in range(4)] + \
           [f" buffer_load_dword v{CHH[(u,i)]}, v{vC}, {WS}, s{sHL+7*u+i} offen sc1"]
def hashchain(r, chk):
    o = []
    for f in range(4):
        b = r + 4*f
        o.append(f" v_xad_u32 v4, v{b}, v{b+1}, {sTAG if f == 0 else 'v4'}")
        o.append(f" v_add3_u32 v4, v4, v{b+2}, v{b+3}")
    return o + [f" v_cmp_ne_u32 vcc, v4, v{chk}"]
def retry_check(P, o, loads, later, name, sleep):
    blk = [f"L_{name}_r:", f" s_sub_u32 {sSPIN}, {sSPIN}, 1", f" s_cbranch_scc1 L_{name}_x", f" s_sleep {sleep}"] + loads + [" s_waitcnt vmcnt(0)"] + o + [f" s_cbranch_vccnz L_{name}_r"]
    blk += later + ([" s_waitcnt vmcnt(0)"] if later else []) + [f" s_branch L_{name}_b", f"L_{name}_x:", f" s_mov_b32 {sSPIN}, 0", f" s_branch L_{name}_b"]
    P.tail += blk
    return o + ["GAP", f" s_cbranch_vccnz L_{name}_r\nL_{name}_b:"]
def retry_fast(P, o, loads, later, name, sleep):
    blk = [f"L_{name}_s:", f" s_sleep {sleep}", f"L_{name}_r:", f" s_sub_u32 {sSPIN}, {sSPIN}, 1", f" s_cbranch_scc1 L_{name}_x"] + loads + later + [f" s_waitcnt vmcnt({len(later)})"] + o + [f" s_cbranch_vccnz L_{name}_s"]
    blk += [f" s_branch L_{name}_b", f"L_{name}_x:", f" s_mov_b32 {sSPIN}, 0", f" s_branch L_{name}_b"]
    P.tail += blk
    return o + ["GAP", f" s_cbranch_vccnz L_{name}_r\nL_{name}_b:"]
def hint_spin(name, s, back):
    return [f"L_{name}:", poll(vPD, vPH, s), " s_waitcnt vmcnt(0)"] + pollcmp(vPD, 0x7f) + [f" s_cbranch_vccz {back}", " s_sleep 8",
            f" s_sub_u32 {sSPIN}, {sSPIN}, 1", f" s_cbranch_scc0 L_{name}", f" s_mov_b32 {sSPIN}, 0"]
def epi_tile(acc, ups, t, out, pk):
    o = []
    if pk:
        for i in range(4): o.append(f" v_pk_mul_f32 {vr(vE+2*i,2)}, {vr(acc+2*i,2)}, s[4:5]")
    else:
        for i in range(8): o.append(f" v_mul_f32 v{vE+i}, 0xbfb8aa3b, v{acc+i}")
    for i in range(8): o.append(f" v_exp_f32 v{vE+i}, v{vE+i}")
    if pk:
        for i in range(4): o.append(f" v_pk_add_f32 {vr(vE+2*i,2)}, {vr(vE+2*i,2)}, 1.0 op_sel_hi:[1,0]")
    else:
        for i in range(8): o.append(f" v_add_f32 v{vE+i}, 1.0, v{vE+i}")
    for i in range(8): o.append(f" v_rcp_f32 v{vE+i}, v{vE+i}")
    if pk:
        for i in range(4): o.append(f" v_pk_mul_f32 {vr(vE+2*i,2)}, {vr(vE+2*i,2)}, {vr(acc+8+2*i,2)}")
    else:
        for i in range(8): o.append(f" v_mul_f32 v{vE+i}, v{vE+i}, v{acc+8+i}")
    for i in range(4): o.append(f" v_cvt_pk_bf16_f32 v{out+i}, v{vE+2*i}, v{vE+2*i+1}")
    sb = sHS1 if ups else sHS0
    o.append(f" buffer_store_dwordx4 {vr(out,4)}, v6, {WS}, {sb} offen offset:{t*1024} sc1")
    o.append(f" v_xad_u32 v{vHASH}, v{out}, v{out+1}, {sTAG if t == 0 else 'v%d' % vHASH}")
    o.append(f" v_add3_u32 v{vHASH}, v{vHASH}, v{out+2}, v{out+3}")
    if t == 3:
        o.append(f" buffer_store_dword v{vHASH}, v{vC}, {WS}, {sb} offen sc1")
        o.append(f" buffer_store_dword v{vTG}, v{vONE}, {WS}, {sb} offen sc1")
    return o

def gemm1(P, cfg, wds):
    seq = [(u, k, t) for u in range(2) for k in range(32) for t in range(4)]
    D = 6; LA = 3
    MB = cfg["wd_big"]
    def reads(n):
        u, k, t = seq[n]; d = aC + 4*(n % 8)
        return [f" ds_read_b64_tr_b16 {ar(d+2*io,2)}, v{vRa+t} offset:{k*2048+io*512}" for io in range(2)] + [f"DMARK:w{n}"]
    def hn_issue(g): return hn_loads(g) + [f"MARK:hn{g}"]
    def hn_check(g):
        later = []
        for gg in range(g+1, min(16, g+LA)): later += hn_loads(gg)
        return [f"WAIT:hn{g}"] + (retry_fast if g < 12 else retry_check)(P, hashchain(hn_regs(g), CHN[g%4]), hn_loads(g), later, f"hn{g}", cfg["bo"])
    for n in range(D): P(reads(n))
    P(hn_check(0))
    P.st("hn0")
    wq_ = list(wds); fill = []; urgent = []; wacc = 0.0; lastv = -9; gapn = None
    h0 = poll(vPD, vPH, sPH0)
    for n, (u, k, t) in enumerate(seq):
        budget = cfg["slots"][u]
        g = 8*u + k//4
        if t == 0:
            if k % 4 == 0:
                while urgent: P(urgent.pop(0))
                gapn = None
                if g + LA < 16: urgent += hn_issue(g + LA)
        if n % 16 == cfg['chk_at'] and g + 1 < 16: urgent += hn_check(g + 1)
        if t == 0:
            if (u, k) == (1, 0):
                P.st("p0")
                P(urgent); urgent = []
                P(" s_mov_b32 s4, 0xbfb8aa3b\n s_mov_b32 s5, 0xbfb8aa3b")
                held = []; ex = []
                for tt in range(4):
                    pk = tt < cfg["e0_exp"]
                    for x in epi_tile(acc0+16*tt, 0, tt, acc0+16*tt, pk):
                        (held if (x.lstrip().startswith("buffer_store") and cfg["hold0"]) else (ex if pk else fill)).append(x)
                nx = take(wq_, cfg["e0_wd"])
                interleave(P, ex, nx, cfg["e0_every"]); P(nx)
                fill += held + (["WAIT:HST", FLAGST] if cfg['h_early'] else HST)
                if cfg["e0_exp"] == 4: P(fill); fill = []
                P.st("e0")
            if u == 1 and k == cfg["h0_k"] and cfg["hhh"]: urgent += [h0, "MARK:ph0"]
            if u == 1 and k in cfg["hh_at"]:
                i = cfg["hh_at"][k]
                assert not fill
                if i == 0:
                    if not cfg['h_early']: urgent += ["WAIT:HST", FLAGST]
                    if cfg["hhh"]: urgent += ["WAIT:ph0"] + retry_check(P, pollcmp(vPD, 0x7f), [h0], [], "ph0", cfg["hbo"])
                urgent += hh_loads(0, i) + [f"MARK:hh0_{i}"]
        if n % 2 == 0: P(f"DWAIT:w{n+1}")
        else: budget -= 1
        a = (acc1 if u else acc0) + 16*t
        P(f" v_mfma_f32_32x32x16_bf16 {vr(a,16)}, {ar(aC+4*(n%8),4)}, {vr(hn_regs(g)+4*(k&3),4)}, {'0' if k == 0 else vr(a,16)}")
        if n + D < len(seq):
            P(reads(n+D)); budget -= 2
        wacc += cfg["wd_rate"][u]
        had = bool(fill)
        for q in (urgent, wq_, fill):
            while q and (budget >= P.cost(q[0]) or P.cost(q[0]) == 0):
                if q[0] == "GAP":
                    if gapn is None: gapn = n
                    if n - gapn < cfg["gapd"]: break
                    gapn = None
                if q[0].lstrip().startswith("buffer_"):
                    if n - lastv < cfg["vgap"]: break
                    lastv = n
                if q is wq_:
                    if wacc < 1 and P.cost(q[0]) > 0: break
                    wacc -= P.cost(q[0])
                x = q.pop(0); budget -= P.cost(x); P(x)
        if had and not fill: print("epilogue0 done at k", k)
    print('left: wd', len(wq_), 'fill', len(fill))
    P(urgent); P(wq_); P(fill)
    P.st("p1")
    P(" s_mov_b32 s4, 0xbfb8aa3b\n s_mov_b32 s5, 0xbfb8aa3b")
    big = []
    if MB < 56:
        if not cfg["bar_late"]: P(" s_barrier")
        for m in range(MB, 56): big.append("\n".join(wd_dma(m, sBIG, m - MB)))
    e1 = []; held = []
    for tt in range(4):
        for x in epi_tile(acc1+16*tt, 1, tt, acc1+16*tt, True):
            (held if (cfg["hold"] and x.lstrip().startswith("buffer_store")) else e1).append(x)
    pre = []
    for i in range(len(cfg["hh_at"]), 7): pre += hh_loads(0, i) + [f"MARK:hh0_{i}"]
    pre = FLAGLD + ["MARK:flag"] + pre + take(big, cfg["big_pre"])
    if cfg["pre_late"]: P(e1)
    else: interleave(P, e1, pre, cfg["big_every"])
    P(held)
    P(pre)
    if cfg["bar_late"] and MB < 56:
        assert cfg["big_pre"] == 0
        P(" s_barrier")
    P.big = big
    P.st("epi")
    P.st("ld0")

def red_consts():
    return L(f"""
 s_mul_i32 s3, {sW}, {REDW}
 v_add_u32 v12, s3, v6
 v_and_b32 v15, 7, v0
 v_lshrrev_b32 v13, 3, v0
 v_mul_u32_u24 v15, {BS}, v15
 v_lshl_add_u32 v13, v13, 4, v15
 v_add_u32 v14, {2*REDW}, v13""")
def red_write(ups): return [f" ds_write_b128 v12, {vr(acc2+4*blk,4)} offset:{blk*BS}" for blk in range(8*ups, 8*ups+8)]
def red_read(ups, b): return [f" ds_read_b128 {vr(b+8*w+4*h,4)}, {'v13' if w < 2 else 'v14'} offset:{ups*8*BS + h*512 + (w&1)*REDW}" for w in range(4) for h in range(2)]
def red_fin(ups, b, hx, pk, fl):
    o = []
    for (x, y) in ((0, b+8), (16, b+24), (0, hx), (0, b+16)):
        if pk:
            for i in range(4): o.append(f" v_pk_add_f32 {vr(b+x+2*i,2)}, {vr(b+x+2*i,2)}, {vr(y+2*i,2)}")
        else:
            for i in range(8): o.append(f" v_add_f32 v{b+x+i}, v{b+x+i}, v{y+i}")
    for i in range(4): o.append(f" v_cvt_pk_bf16_f32 v{b+16+i}, v{b+2*i}, v{b+2*i+1}")
    o.append(f" buffer_store_dwordx4 {vr(b+16,4)}, v{vOUT}, {srd('OUT')}, {sO0 if ups == 0 else sO1} offen {fl}")
    return o
def gemm2(P, cfg):
    order = [(0, i) for i in range(7)] + [(1, i) for i in range(7)]
    MB = cfg["wd_big"]
    issued = order[:7]
    sched = cfg["b1_at"]
    def chk(pos):
        u, i = order[pos]
        later = []
        for x in order[pos+1:]:
            if x in issued and x[0] == u: later += hh_loads(*x)
        return [f"WAIT:hh{u}_{i}"] + retry_check(P, hashchain(HREG[(u,i)], CHH[(u,i)]), hh_loads(u, i), later, f"hh{u}_{i}", cfg["bo"])
    bigrd = []
    if MB < 56:
        P([f" s_sub_u32 s3, {sBIG}, {sRING}", f" v_add_u32 v{vWr[0]}, s3, v{vWr[0]}", f" v_add_u32 v{vWr[1]}, s3, v{vWr[1]}"])
        for m in range(MB, 56): bigrd += wd_read(m, m - MB)
    P(chk(0))
    hres = [f" buffer_load_dwordx4 {vr(vE,4)}, v{vOUT}, {WS}, {sHR0} offen sc1", f" buffer_load_dwordx4 {vr(vE+4,4)}, v{vOUT}, {WS}, {sHR1} offen sc1", "MARK:hres"]
    flag = [f" buffer_load_dword v3, v1, {WS}, {sFLld} offen sc1"]
    T0 = 112; HX = 16
    for pos, (u, i) in enumerate(order):
        fill = []
        h1 = poll(vPD, vPH, sPH1)
        p1st = min(sched)
        if pos == p1st - cfg["h1_lead"] and cfg["hh1"]: fill += [h1, "MARK:ph1"]
        if pos == p1st:
            if cfg["hh1"]: fill += ["WAIT:ph1"] + retry_check(P, pollcmp(vPD, 0x7f), [h1], [], "ph1", cfg["hbo"])
            else:
                P.tail += hint_spin("ip1", sPH1, "L_ip1b") + [" s_branch L_ip1b"]
                fill += [f" s_cmp_ge_u32 {sJL}, 7\n s_cbranch_scc1 L_ip1\nL_ip1b:"]
        for gi in sched.get(pos, []):
            x = (1, gi)
            prev = [y for y in order[:order.index(x)] if HREG[y] == HREG[x]]
            assert all(order.index(y) < pos for y in prev), x
            fill += hh_loads(*x) + [f"MARK:hh{x[0]}_{x[1]}"]; issued.append(x)
        if pos < 3:
            for x in take(P.big, cfg["big_per"]): fill += x.split("\n")
        if pos == cfg["hres_at"]: fill += ["WAIT:flag"] + retry_check(P, pollcmp(3, 3), FLAGLD[2:], [], "flag", cfg["bo"]) + HRESLD
        if pos == MB//8 - 1:
            assert not P.big
            fill += bigrd + [" s_waitcnt lgkmcnt(0)"]
        if pos == 7: fill += red_consts() + [" s_barrier"]
        if pos == 8: fill += red_write(0)
        if pos == 9: fill += [" s_waitcnt lgkmcnt(0)", " s_barrier"] + red_read(0, T0)
        if pos == 11:
            fill += ["WAIT:hres"]
            for k in range(8): fill += unpack(HX+2*k, vE+k)
            fill += [" s_waitcnt lgkmcnt(0)"]
        if pos == 12: fill += red_fin(0, T0, HX, False, cfg["outf"])[:24]
        if pos == 13: fill += red_fin(0, T0, HX, False, cfg["outf"])[24:]
        assert MB >= 32
        late = chk(pos+1) if pos+1 < len(order) else []
        n = 0
        for t in range(4):
            for tau in range(2):
                a = acc2+32*u+16*tau
                P(f" v_mfma_f32_32x32x16_bf16 {vr(a,16)}, {ar(((i*4+t)*2+tau)*4,4)}, {vr(HREG[(u,i)]+4*t,4)}, {'0' if (i == 0 and t == 0) else vr(a,16)}")
                n += 1
                if n <= cfg["g2_fill"]:
                    b = 5; nv = 0
                    while fill and b > 0:
                        if fill[0].lstrip().startswith("buffer_"):
                            if nv >= cfg["v2"]: break
                            nv += 1
                        b -= P.cost(fill[0]); P(fill.pop(0))
                else:
                    P(take(fill, 99))
                    if late and late[0] != "GAP":
                        k_ = late.index("GAP"); P(take(late, min(5, k_)))
        P(late)
        if pos == 6: P.st("b0")
    P.st("g2")
    P(red_write(1))
    P(" s_waitcnt lgkmcnt(0)\n s_barrier")
    P(red_read(1, 144))
    P(" s_waitcnt lgkmcnt(0)")
    P(red_fin(1, 144, HX+8, True, cfg["outf"]))

def build(cfg, stamps=False):
    P = G(stamps); P.cfg = cfg; WARM[0] = cfg['warm']; ROTX[0] = cfg['rotx']; globals()['OB'] = cfg['ob']
    if cfg.get("dbg"): P.only = cfg["dbg"].split(",")
    entry(P, cfg)
    setupB = a_consts() + roles()
    P(take(setupB, cfg["nsetB"]))
    if cfg["f_at"] == 0: P(filter_dma(cfg))
    else: P(f""" v_and_b32 v4, 79, v0
 v_lshrrev_b32 v5, 2, v4
 v_and_or_b32 v4, v5, 16, v4
 v_and_b32 v4, 31, v4
 v_lshlrev_b32 v4, 7, v4
 buffer_load_dword v{vDUM}, v4, {srd('SSMK')}, {sF0} offen {cfg['fnt']}""")
    if cfg["x_at"] == 0: P(x_loads())
    if cfg["wt"] == 0: P(w_touch(cfg["wtnt"], cfg["wth"]))
    raw = []
    for m in range(cfg["nraw"]): raw += wd_raw(m)
    if cfg["wdc_at"] == -1: P(wd_consts(cfg['a8'])); P(take(raw, 2*cfg["rawE"]))
    P(tag_setup())
    P.st("pre")
    P.vmwait("L1")
    P.st("L1")
    p0_kv(P)
    P.mark("KV")
    P.st("kvst")
    if cfg["f_at"] == 1:
        if cfg["kbar"]: P(" s_barrier")
        P(filter_dma(dict(fnt="")))
    if cfg["x_at"] == 1: P(x_loads())
    P(take(raw, 2*cfg["raw0"]))
    P(setupB)
    P(conv_setup() + h1_addr() + w_table() + (wd_consts(cfg['a8']) if cfg["wdc_at"] != -1 else []))
    ng = cfg["g1"]
    early = []
    gp = cfg["gp"]
    for i in range(ng): early += w_pair(i, cfg["wnt"])[:(4 if i < gp else 2)]
    P(take(early, 2*cfg["w0"]))
    early += take(raw, 2*cfg["raw1"])
    if cfg["x_at"] == 2: early += x_loads()
    ap = ["WAIT:A", " s_barrier"] + a_prep(cfg['lazy'])
    P(take(ap, cfg["ap_pre"]))
    if cfg.get("kvw"): P(["WAIT:KV"] + ([" s_barrier"] if cfg["kvw"] == 2 else []))
    if cfg.get("dly1"): P(f" s_sleep {cfg['dly1']}")
    P.st("aprep")
    if cfg["ap_pre"] < 2: sh = take(ap, 2 - cfg["ap_pre"]) + early + ap
    else: sh = [" s_barrier"] + early + ap
    box_recv(P, vIN, "h1", cfg["bo"], sh, kv_perm())
    kv_to_lds(P)
    P.st("h1")
    wq = []
    for i in range(16):
        p = w_pair(i, cfg["wnt"])
        if i < gp: continue
        if i < ng: wq += [p[0] + "\n" + p[2], p[3]]
        else: wq += p
    nraw = cfg["nraw"]
    nwc = 2*cfg["wsched"][0][1]
    raw2 = raw[2*cfg["raw_c"]:]; raw = raw[:2*cfg["raw_c"]]
    wq = wq[:nwc] + raw + wq[nwc:]
    conv_mfma(P, wq, cfg["wsched"])
    assert not any("a[" in x for x in wq)
    print("W ops left after conv:", len(wq)//2)
    P.mark("RAWC")
    P.st("mfma")
    conv_epilogue(P)
    P.st("yst")
    P(" s_barrier")
    b3 = take(wq, 2*cfg["w3"]) + take(raw2, 2*cfg["raw3"])
    P.vmwait("X")
    interleave(P, stat_consts() + ln1(), b3, cfg["w3_every"])
    P(b3)
    P(h2_consts() + wd_rconsts(48))
    hc = hn_consts()
    if cfg["hc_at"] == 0: P(hc); hc = []
    nb1 = cfg["nb1"]
    assert 2*nb1 <= cfg["raw_c"] + cfg["rawE"] + cfg["raw0"] + cfg["raw1"]
    if nb1:
        P([f" v_add_u32 v48, {sRING}, v6", "WAIT:RAWC"])
        for u in range(nb1): P(bounce(u, 48))
    if cfg.get("dly2"): P(f" s_sleep {cfg['dly2']}")
    P.st("ln1")
    q4 = take(wq, 2*cfg["w4"]) + take(raw2, 2*cfg["raw4"])
    box_recv(P, vY, "h2", cfg["bo"], [" s_barrier"] + q4 + hc, [x for t in range(4) for x in unpack(80+2*t, vY+4*t)])
    P.st("h2")
    ln2(P, take(wq, 2*cfg["w5"]), cfg["w5_every"])
    if cfg["h_at"] == 0: P(HST)
    P.st("hnst")
    P(wq); P.mark("WALL"); P(raw2); P.mark("RAW")
    post = g_vconsts() + g_sconsts(56 - cfg["wd_big"])
    bn = [f" v_add_u32 v4, {sRING}, v6", "WAIT:RAW"]
    for u in range(nb1, nraw//2): bn += bounce(u, 4)
    if nraw//2 > nb1: post += bn + [" s_waitcnt lgkmcnt(0)"]
    post += ["WAIT:WALL", " s_barrier"]
    P(take(post, cfg["hn_at"]))
    P.st("g1go")
    hn3 = []
    for g in range(3): hn3 += hn_loads(g) + [f"MARK:hn{g}"]
    P([f" s_cmp_ge_u32 {sJL}, 7", " s_cbranch_scc1 L_sia_i"] + hn3 + ["L_sia:"])
    P.tail += ["L_sia_i:", " s_waitcnt vmcnt(0)", " s_branch L_sia"]
    P(post)
    if cfg["h_at"] == 1: P(HST)
    P(f"""
 s_or_b32 s3, s2, {sW}
 s_cmp_lg_u32 s3, 0
 s_cbranch_scc1 L_notag
 v_lshlrev_b32 v4, 21, v6
 buffer_store_dword v{vTG}, v4, {WS}, 0 offen sc1
L_notag:
""")
    P.nvm -= 1
    d = rd = nraw
    for m in range(nraw): P.dmarks[f"wd{m}"] = 0
    P(f" s_cmp_ge_u32 {sJL}, 7\n s_cbranch_scc1 L_idle")
    save = (P.nvm, P.nds, P.vmdone, P.dsdone, dict(P.marks), dict(P.dmarks))
    MB = cfg["wd_big"]
    if cfg.get("nowd"): cfg["wd_big"] = MB = 56; d = rd = 56
    gemm1(P, cfg, wd_stream(d, rd, MB))
    P(" s_waitcnt lgkmcnt(0)\nL_join:")
    gemm2(P, cfg)
    if stamps:
        P(" s_waitcnt vmcnt(0)"); P.st("end")
        P(f" v_writelane_b32 v11, {sSPIN}, 63\n s_lshl_b32 s3, s2, 10\n s_add_u32 s3, s3, {STAMPS}\n v_lshlrev_b32 v1, 2, v0\n buffer_store_dword v11, v1, {WS}, s3 offen")
    P("L_end:\n s_endpgm")
    P.nvm, P.nds, P.vmdone, P.dsdone, P.marks, P.dmarks = save
    P("L_idle:")
    P([" s_waitcnt vmcnt(0)", FLAGST])
    P(wd_stream(d, rd, MB, cfg['idep']))
    for m in range(MB, min(56, MB + cfg["big_pre"])): P(wd_dma(m, sBIG, m - MB))
    for nm in ("hn0","p0","e0","p1","epi"): P.st(nm)
    P(hint_spin("ip0", sPH0, "L_ip0b") + ["L_ip0b:"])
    for i in range(7): P(hh_loads(0, i))
    P(FLAGLD)
    P(" s_waitcnt vmcnt(0) lgkmcnt(0)")
    P.st("ld0")
    P(" s_branch L_join")
    P(P.tail)
    P("L_codeend:")
    if os.environ.get("STAMP") == "2": P.lines = [l.replace("s_memrealtime", "s_memtime") for l in P.lines]
    if cfg.get("nont"): P.lines = [l.replace(" nt", "") if l.lstrip().startswith("buffer_load") else l for l in P.lines]
    body = P.fix()
    head = open("sequential_preLN__ssm_conv_h3__glu_gated_glu__prompt.s.ref").read().split("; Override launch")[0]
    out = head + f"; @launch grid=(256,1,1) block=(256,1,1) lds={LDS_BYTES}\n"
    out += f'.amdgcn_target "amdgcn-amd-amdhsa--gfx950"\n.text\n.globl {NAME}\n.p2align 8\n.type {NAME},@function\n{NAME}:\n' + body
    out += f""" s_endpgm
.section .rodata,"a"
.p2align 6
.amdhsa_kernel {NAME}
  .amdhsa_next_free_vgpr 512
  .amdhsa_next_free_sgpr 102
  .amdhsa_accum_offset 256
  .amdhsa_group_segment_fixed_size 0
  .amdhsa_kernarg_size 104
  .amdhsa_user_sgpr_count 2
  .amdhsa_user_sgpr_kernarg_segment_ptr 1
  .amdhsa_system_sgpr_workgroup_id_x 1
.end_amdhsa_kernel
"""
    if cfg.get("probe"):
        idx = P.stn.index(cfg["probe"])
        Q = G()
        Q(f"""
 s_cmp_ge_u32 s2, 1
 s_cbranch_scc1 L_pend
 s_load_dwordx2 s[48:49], s[0:1], 96
 s_mov_b32 s50, {WS_BYTES}
 s_mov_b32 s51, 0x20000
 v_lshlrev_b32 v1, 8, v0
 v_mov_b32 v2, 0
 s_waitcnt lgkmcnt(0)
 s_mov_b32 s3, {STAMPS}
 buffer_load_dword v3, v2, s[48:51], s3 offen
 v_mov_b32 v4, 0x7fffffff
 v_mov_b32 v5, {0 if cfg.get('pmean') else 0x80000000}
 s_mov_b32 s4, {16 if (cfg['probe'] == 'end' and not cfg.get('pmean')) else 14}
L_pl:
 buffer_load_dword v6, v1, s[48:51], s3 offen
 buffer_load_dword v7, v1, s[48:51], s3 offen offset:{4*idx}
 s_waitcnt vmcnt(0)
 v_sub_u32 v6, v6, v3
 v_sub_u32 v7, v7, v3
 v_min_i32 v4, v4, v6
 {'v_add_u32' if cfg.get('pmean') else 'v_max_i32'} v5, v5, v7
 s_add_u32 s3, s3, 16384
 s_sub_u32 s4, s4, 1
 s_cmp_lg_u32 s4, 0
 s_cbranch_scc1 L_pl
 s_mov_b32 s5, 0x7fffffff
 s_mov_b32 s6, {0 if cfg.get('pmean') else 0x80000000}
 s_mov_b32 s4, 0
L_pr:
 v_readlane_b32 s7, v4, s4
 v_readlane_b32 s8, v5, s4
 s_nop 1
 s_min_i32 s5, s5, s7
 {'s_add_u32' if cfg.get('pmean') else 's_max_i32'} s6, s6, s8
 s_add_u32 s4, s4, 1
 s_cmp_lg_u32 s4, 64
 s_cbranch_scc1 L_pr
 {'s_mul_hi_u32 s6, s6, 4793490' if cfg.get('pmean') else 's_nop 0'}
 s_sub_u32 s6, s6, s5
 s_min_u32 s6, s6, 10000
 s_mul_i32 s6, s6, {cfg.get('pmul', 10)}
 s_memrealtime s[10:11]
 s_waitcnt lgkmcnt(0)
L_ps:
 s_memrealtime s[12:13]
 s_waitcnt lgkmcnt(0)
 s_sub_u32 s7, s12, s10
 s_cmp_lt_u32 s7, s6
 s_cbranch_scc1 L_ps
L_pend:
 s_endpgm
""")
        out = out.replace(f"; @launch grid=(256,1,1) block=(256,1,1) lds={LDS_BYTES}\n", f"; @launch kernel={NAME} grid=(256,1,1) block=(256,1,1) lds={LDS_BYTES}\n; @launch kernel=probe_kernel grid=(1,1,1) block=(64,1,1) lds=0\n")
        out = out.replace('.section .rodata,"a"', '.globl probe_kernel\n.p2align 8\n.type probe_kernel,@function\nprobe_kernel:\n' + Q.fix() + '.section .rodata,"a"')
        kd = out[out.index(".p2align 6\n.amdhsa_kernel"):]
        out += kd.replace(NAME, "probe_kernel").replace("vgpr 512", "vgpr 16").replace("offset 256", "offset 16")
    return out, P
CFG = dict(bar_late=1, raw0=0, raw1=0, nraw=8, raw_c=8, nb1=4, h_early=1, pre_late=1, big_per=6, v2=2, g1=4, w4=6, mw_at=4, nwarm=6, warm=0, lazy=4, vgap=1, wt=9, wtnt="", wth=0, a8=0, can1=0, can2=0, cmask=0x00010001, cbo=6, hnh=0, hn_nh=16, hn_hint_at=999, hbo=8, ap_pre=140, wsched=[(1,2,1),(20,8,5)],
           f_at=0, kbar=1, fnt2="", pf_after="SHK", nsetB=99, fnt="nt", x_at=0, wdm=0, wdc_at=0, bo=4, wnt="", w3=0, w3_every=4, wd3=0, wd_pre=0, wd_first=1, im=0,
           w5=0, w5_every=2, wd_rate=(0.8,0.9), wd_big=44, slots=(6,6), big_pre=0, big_every=8, outf="", dly3=0, dly2=0, hold=0,
           e0_exp=4, hhh=0, h0_k=12, hh_at={17:0, 20:1, 23:2, 26:3, 29:4}, hh1=0, h1_lead=2, b1_at={5:[0,1],6:[2,3],7:[4],8:[5],9:[6]}, hres_at=3)
if __name__ == "__main__":
    cfg = dict(CFG)
    for a in sys.argv[2:]:
        k, v = a.split("=", 1); cfg[k] = eval(v)
    out, P = build(cfg, bool(os.environ.get("STAMP")))
    open(sys.argv[1], "w").write(out)
    if os.environ.get("STAMP"): open(sys.argv[1] + ".names", "w").write(" ".join(P.stn))
    print("lines", len(P.lines), "nops", P.nops)
```

```python
import sys, os, re
sys.path.insert(0, "gen")
from asmlib import Prog

NAME = "sequential_preLN__ssm_conv_h3__glu_gated_glu__prompt_kernel"
TAGSLOT = 0
HC    = 0x080000
FL    = 0x0C0000
HI    = 0x1580000
OB    = 16640
KVBOX = 0x100000
YBOX  = 0x520000
HN    = 0x940000
HRES  = 0xB40000
HH    = 0xD40000
GS    = 4480
STAMPS = 0x1600000
WS_BYTES = 0x1700000
SRD = dict(X=8, K=12, V=16, SHK=20, SSMK=24, SSMD=28, WG=32, WU=36, WD=40, OUT=44, WS=48)
KOFF = dict(X=0, K=8, V=16, SHK=24, SSMK=32, SSMD=40, WG=56, WU=64, WD=72, OUT=80, WS=96)
SIZE = dict(X=2097152, K=2097152, V=2097152, SHK=4096, SSMK=2097152, SSMD=1024, WG=1835008, WU=1835008, WD=1835008, OUT=2097152, WS=WS_BYTES)
def srd(n): return f"s[{SRD[n]}:{SRD[n]+3}]"
WS = srd("WS")
sHNst, sWM, sBIG, sRING, sW, sFLst, sFLld, sG, sJ, sTAG, sLO, sHI, sMASK, sHRES, sT = [f"s{i}" for i in range(52, 67)]
sJL, sO0, sO1, sHS0, sHS1, sSB, sHCst, sE, sSPIN, sHR0, sHR1, sPH1, sL3 = [f"s{i}" for i in range(67, 80)]
sWD = 80
sHC = 87
sPH0, sP, sF0 = "s95", "s96", "s97"
sKR = "s78"
M8 = [0]
sC = sP
sWT = 12
sHL = 16
sHN = 8
def vr(b, n): return f"v[{b}:{b+n-1}]" if n > 1 else f"v{b}"
def ar(b, n): return f"a[{b}:{b+n-1}]" if n > 1 else f"a{b}"
def L(text): return [l for l in text.split("\n") if l.strip()]
def take(l, n):
    o = l[:n]; del l[:n]; return o

WGB, WUB = 0, 65536
PART = 131072; FC = 131072 + 9216; CS2 = 4160
KVR = 131072; KVCH = 4608
RING = 131072; NR = 7
STAT = 163840 - 512
BS = 1088; REDW = 16*BS
LDS_BYTES = 163840
SPIN = 20000

class G(Prog):
    def __init__(self, stamps=False):
        super().__init__(); self.nvm = 0; self.nds = 0; self.vmdone = 0; self.dsdone = 0
        self.marks = {}; self.dmarks = {}; self.stamps = stamps; self.tail = []; self.only = None; self.stn = ["start"]
    def __call__(self, text):
        if isinstance(text, list):
            for t in text: self(t)
            return
        for l in text.split("\n"):
            s = l.strip()
            if not s: continue
            if s.startswith("WAIT:"): self.vmwait(s[5:]); continue
            if s.startswith("MARK:"): self.mark(s[5:]); continue
            if s.startswith("DWAIT:"): self.dwait(s[6:]); continue
            if s.startswith("DMARK:"): self.dmarks[s[6:]] = self.nds; continue
            if s in ("SKIP", "GAP"): continue
            if s.startswith(("buffer_", "global_")): self.nvm += 1
            if s.startswith("ds_"): self.nds += 1
            if s.startswith("s_waitcnt"):
                m = re.search(r"vmcnt\((\d+)\)", s)
                if m: self.vmdone = max(self.vmdone, self.nvm - int(m.group(1)))
                m = re.search(r"lgkmcnt\((\d+)\)", s)
                if m: self.dsdone = max(self.dsdone, self.nds - int(m.group(1)))
            self.lines.append(l.rstrip())
    def mark(self, name): self.marks[name] = self.nvm
    def vmwait(self, name):
        if self.vmdone < self.marks[name]: self(f" s_waitcnt vmcnt({min(self.nvm - self.marks[name], 63)})")
    def dwait(self, name):
        if self.dsdone < self.dmarks[name]: self(f" s_waitcnt lgkmcnt({min(self.nds - self.dmarks[name], 15)})")
    def cost(self, s):
        t = s.strip()
        if t.startswith(("MARK:", "DMARK:")): return 0
        if t.startswith("WAIT:"): return 0 if self.vmdone >= self.marks[t[5:]] else 1
        if t.startswith("DWAIT:"): return 0 if self.dsdone >= self.dmarks[t[6:]] else 1
        if t == "SKIP": return 3
        if t == "GAP": return 0
        if t.startswith("s_cbranch"): return 2
        if t.startswith(("v_exp", "v_rcp")): return 2
        return 1
    def st(self, i):
        j = getattr(self, "cfg", {}).get("jit")
        if j and i in ("L1","h1","mfma","h2","g1go","p0","p1","b0","ln1","hn0","e0","epi"):
            self.jn = getattr(self, "jn", 0) + 1
            k = (j*2654435761 + self.jn*40503) & 0x7fffffff
            self.lines += [f" s_lshl_b32 s98, s2, 2", f" s_add_u32 s98, s98, {sW}" if j & 1 else " s_nop 0", f" s_add_u32 s98, s98, {k & 0xffff}", f" s_mul_i32 s98, s98, {k | 1}", " s_lshr_b32 s98, s98, 13", " s_and_b32 s98, s98, 15",
                           " s_cmp_lg_u32 s98, 3", f" s_cbranch_scc1 L_jit{self.jn}", " s_sleep 127", " s_sleep 64", f"L_jit{self.jn}:"]
        if self.stamps and (self.only is None or i in self.only):
            if i not in self.stn: self.stn.append(i)
            self.lines += [" s_memrealtime s[98:99]", " s_waitcnt lgkmcnt(0)", f" v_writelane_b32 v11, s98, {self.stn.index(i)}", f" v_writelane_b32 v11, {sSPIN}, {32+self.stn.index(i)}"]
def interleave(P, work, bulk, every):
    n = 0
    for wk in work:
        P(wk); n += 1
        if bulk and n % every == 0: P(bulk.pop(0))

vK, vW, vV, vKS, vT = 144, 164, 180, 188, 204
vD, vQ, vX = 220, 224, 240
vBB = [8, 10, 248, 249]
vSW, vDUM, vR, vWD = 250, 251, 252, 254
vWr = (8, 255)
vA, vAx, vB, vIN, aC = 16, 208, 144, 160, 224
vSEL = 216
vq, vu1 = 208, 224
vONE, vTG, vC, vHC, vHC1, vPH, vHASH, vL2, vOUT, vPD, vHP = 7, 10, 2, 248, 249, 220, 222, 223, 9, 5, 224
vHN, vRa = 16, 12
acc0, acc1, acc2, vE = 80, 144, 16, 240
CHN = [208, 209, 210, 211]
CHH = {(0,i): 212+i for i in range(7)}
CHH.update({(1,0):208,(1,1):209,(1,2):210,(1,3):211,(1,4):219,(1,5):221,(1,6):212})
HREG = {(0,0):224, (0,1):80, (0,2):96, (0,3):112, (0,4):128, (0,5):16, (0,6):32,
        (1,0):144, (1,1):160, (1,2):176, (1,3):192, (1,4):224, (1,5):80, (1,6):96}

def srdc(names): return [x for n in names for x in (f" s_mov_b32 s{SRD[n]+2}, {SIZE[n]}", f" s_mov_b32 s{SRD[n]+3}, 0x20000")]
def entry(P, cfg):
    P(" s_cmp_ge_u32 s2, 256\n s_cbranch_scc1 L_end")
    if P.stamps: P(" s_memrealtime s[98:99]")
    if cfg["xorb"]: P(f" s_xor_b32 s2, s2, {cfg['xorb']}")
    sl = lambda n: f" s_load_dwordx2 s[{SRD[n]}:{SRD[n]+1}], s[0:1], {KOFF[n]}"
    pf = L(f"""
 s_getpc_b64 s[100:101]
L_pc:
 s_bfe_u32 s3, s2, 0x20003
 s_mul_i32 s3, s3, 12288
 v_lshlrev_b32 v12, 7, v0
 v_add_u32 v13, s3, v12
 v_cmp_gt_u32 vcc, 32, v0
 v_cndmask_b32 v12, v13, v12, vcc
 v_min_u32 v12, L_codeend-L_pc-4, v12
 v_cmp_gt_u32 vcc, 128, v0
 s_and_saveexec_b64 s[6:7], vcc
 s_cbranch_execz L_nopf
 global_load_dword v{vDUM}, v12, s[100:101]
L_nopf:
 s_mov_b64 exec, s[6:7]""")
    pf2 = L(f"""
 s_getpc_b64 s[100:101]
L_pc:
 s_bfe_u32 s3, s2, 0x30003
 s_lshl_b32 s3, s3, 2
 v_lshrrev_b32 v12, 6, v0
 v_add_u32 v12, s3, v12
 v_mul_u32_u24 v12, {cfg['pfl']}, v12
 v_and_b32 v13, 63, v0
 v_min_u32 v13, {cfg['pfl']-1}, v13
 v_add_lshl_u32 v12, v12, v13, 7
 v_min_u32 v12, L_codeend-L_pc-4, v12
 global_load_dword v{vDUM}, v12, s[100:101]""")
    if cfg["pfl"]: pf = pf2
    first = ("K","V","SHK","WS","SSMK","X","SSMD") if cfg["sl_late"] else ("K","V","SHK","WS","SSMK","X","SSMD","WD","WG","WU","OUT")
    rest = [sl(n) for n in ("WD","WG","WU","OUT")] if cfg["sl_late"] else []
    for n in first:
        P(sl(n))
        if n == "SHK" and cfg["pf_at"] == 0: P(pf)
    P(f"""
 s_and_b32 s3, s2, 7
 s_lshl_b32 s3, s3, 5
 s_lshr_b32 {sP}, s2, 3
 s_or_b32 {sP}, {sP}, s3
 v_and_b32 v1, 3, v0
 v_lshrrev_b32 v2, 2, v0
 s_lshl_b32 s3, {sP}, 13
 v_lshlrev_b32 v3, 11, v1
 v_lshl_add_u32 v3, v2, 4, v3
 v_add_u32 v3, s3, v3
 v_subrev_u32 v4, 3072, v3
 v_subrev_u32 v5, 2048, v3
 v_subrev_u32 v8, 1024, v3
 v_lshlrev_b32 v9, 4, v0
""")
    P(srdc(("K","V","SHK")))
    pre2 = L(f"""
 v_lshrrev_b32 v6, 6, v0
 s_nop 0
 v_readfirstlane_b32 {sW}, v6
 v_and_b32 v6, 63, v0
 v_lshlrev_b32 v6, 4, v6
 s_lshl_b32 {sF0}, {sC}, 1
 s_lshr_b32 s7, {sW}, 1
 s_add_u32 {sF0}, {sF0}, s7
 s_lshl_b32 {sF0}, {sF0}, 12
 s_mul_i32 s7, {sW}, {CS2}
 s_add_u32 s7, s7, {FC}
 v_mov_b32 v12, 0
 s_and_b32 s3, {sW}, 1
 s_sub_u32 s4, 7, s3
 v_and_b32 v14, 7, v0
 v_min_u32 v14, s4, v14
 v_lshl_add_u32 v13, v14, 2, s7
 ds_write_b32 v13, v12
 s_lshl_b32 s3, s3, 2
 s_sub_u32 {sBIG}, s7, s3
 s_mul_i32 s4, {sP}, {OB}
 s_add_u32 s4, s4, {KVBOX}
 s_add_u32 s5, s4, 4096
 s_add_u32 s6, s4, 8192
 s_add_u32 s7, s4, 12288
 s_mov_b32 {sLO}, 0x05040100
 s_mov_b32 {sHI}, 0x07060302
 s_mov_b32 {sMASK}, 0xffff0000
 s_mov_b32 {sSPIN}, {SPIN if P.stamps else 400000}
 v_lshlrev_b32 v7, 4, v2""") + srdc(("SSMK","WS","X","SSMD","WD")) + [f" v_mov_b32 v{vKS+i}, 0" for i in range(16)]
    if not cfg["pre2_late"]: P(pre2)
    if P.stamps: P(f" s_mov_b32 {sSPIN}, {SPIN}")
    if P.stamps: P(" v_mov_b32 v11, 0\n s_waitcnt lgkmcnt(0)\n v_writelane_b32 v11, s98, 0"); P.st("karg")
    lds_ = [f" buffer_load_dwordx4 {vr(vK,4)}, v4, {srd('K')}, 0 offen nt", f" buffer_load_dwordx4 {vr(vK+4,4)}, v5, {srd('K')}, 0 offen nt", f" buffer_load_dwordx4 {vr(vK+8,4)}, v8, {srd('K')}, 0 offen nt", f" buffer_load_dwordx4 {vr(vK+12,4)}, v3, {srd('K')}, 0 offen nt", f" buffer_load_dwordx4 {vr(vK+16,4)}, v3, {srd('K')}, 0 offen offset:1024 nt", f" buffer_load_dwordx4 {vr(vV,4)}, v3, {srd('V')}, 0 offen nt", f" buffer_load_dwordx4 {vr(vV+4,4)}, v3, {srd('V')}, 0 offen offset:1024 nt", f" buffer_load_dwordx4 {vr(vW,4)}, v9, {srd('SHK')}, 0 offen"]
    ORD = "\n".join(lds_[i] for i in cfg["lord"])
    P(f"""
 s_waitcnt lgkmcnt(0)
{ORD}
MARK:L1
 s_load_dword {sTAG}, s[{SRD['WS']}:{SRD['WS']+1}], {TAGSLOT}
""")
    if cfg["pf_at"] == 1:
        assert cfg["pfl"]
        P(pf)
    P(rest)
    if cfg["pre2_late"]: P(pre2)
def filter_dma(cfg):
    return [f" s_add_u32 m0, {sBIG}, 32"] + [f" buffer_load_dwordx4 v6, {srd('SSMK')}, {sF0} offen offset:{1024*i} lds" for i in range(4)] + ["MARK:A"]
def x_loads():
    return [f" buffer_load_dwordx4 {vr(vX,4)}, v3, {srd('X')}, 0 offen nt",
            f" buffer_load_dwordx4 {vr(vX+4,4)}, v3, {srd('X')}, 0 offen offset:1024 nt",
            f" buffer_load_dwordx4 {vr(vD,4)}, v7, {srd('SSMD')}, 0 offen", "MARK:X"]
def tag_setup():
    return [" s_waitcnt lgkmcnt(0)", f" s_add_u32 {sTAG}, {sTAG}, 0x9E3779B1"] + [f" v_mov_b32 v{vQ+2*t+1}, {sTAG}" for t in range(8)]
def p0_kv(P):
    Krow = lambda i, d: vK + 4*i + d
    prs = [(3,2),(1,0),(4,3),(2,1)]
    def A(t):
        T = vT + 8*(t & 1); o = []
        for c in range(2):
            for n,(x,y) in enumerate(prs):
                o.append(f" v_perm_b32 v{T+4*c+n}, v{Krow(y,t)}, v{Krow(x,t)}, {sHI if c else sLO}")
        ks = vKS + 4*t
        qp = f"quad_perm:[{t},{t},{t},{t}] row_mask:0xf bank_mask:0xf"
        for hi in (1, 0):
            for c in range(2):
                o.append(f" v_dot2c_f32_bf16_dpp v{ks+c}, v{vW+2*c+hi}, v{T+4*c+hi} {qp}")
                o.append(f" v_dot2c_f32_bf16_dpp v{ks+2+c}, v{vW+2*c+hi}, v{T+4*c+2+hi} {qp}")
        return o
    def B(t):
        T = vT + 8*(t & 1); ks = vKS + 4*t
        return L(f""" v_lshlrev_b32 v{T}, 16, v{vV+t}
 v_and_b32 v{T+1}, {sMASK}, v{vV+t}
 v_lshlrev_b32 v{T+2}, 16, v{vV+4+t}
 v_and_b32 v{T+3}, {sMASK}, v{vV+4+t}
 v_pk_mul_f32 {vr(ks,2)}, {vr(ks,2)}, {vr(T,2)}
 v_pk_mul_f32 {vr(ks+2,2)}, {vr(ks+2,2)}, {vr(T+2,2)}
 v_cvt_pk_bf16_f32 v{vQ+4*t}, v{ks}, v{ks+1}
 v_cvt_pk_bf16_f32 v{vQ+4*t+2}, v{ks+2}, v{ks+3}
 buffer_store_dwordx4 {vr(vQ+4*t,4)}, v9, {WS}, s{4+t} offen sc1""")
    na = P.cfg["ksplit"]
    for t in range(na): P(A(t))
    P.vmwait("L1")
    for t in range(4):
        if t >= na: P(A(t))
        P(B(t))
def wd_mall():
    return L(f""" s_lshl_b32 s100, s2, 2
 s_add_u32 s100, s100, {sW}
 s_mul_i32 s100, s100, 1792
 v_lshlrev_b32 v4, 3, v6
 v_min_u32 v4, {13*128}, v4
 buffer_load_dword v{vDUM}, v4, {srd('WD')}, s100 offen""")
def idle_mall(name, nx):
    per = 112*(8//nx)
    o = L(f""" s_cmp_lt_u32 {sJL}, 7
 s_cbranch_scc1 L_{name}
 s_and_b32 s100, s2, {nx-1}
 s_lshl_b32 s100, s100, 2
 s_add_u32 s100, s100, {sL3}
 s_lshl_b32 s100, s100, 2
 s_add_u32 s100, s100, {sW}
 s_mul_i32 s100, s100, {per*128}
 v_lshlrev_b32 v4, 3, v6
 v_min_u32 v4, {55*128}, v4""")
    for i in range(per//56): o += [f" buffer_load_dword v{vDUM}, v4, {srd('WD')}, s100 offen", f" s_add_u32 s100, s100, {56*128}"]
    return o + [f"L_{name}:"], per//56
def w_touch(nt, half):
    o = L(f""" s_lshl_b32 s100, {sL3}, 7
 s_and_b32 s3, s2, 1
 s_lshl_b32 s3, s3, 6
 s_add_u32 s100, s100, s3
 s_lshl_b32 s3, {sW}, {4 if half else 5}
 s_add_u32 s100, s100, s3
 v_and_b32 v4, {15 if half else 31}, v0
 v_add_u32 v4, s100, v4
 v_and_b32 v4, 511, v4
 v_mul_u32_u24 v4, 3584, v4
 s_lshl_b32 s100, {sJ}, 7
 buffer_load_dword v{vDUM}, v4, {srd('WG')}, s100 offen {nt}
 buffer_load_dword v{vDUM}, v4, {srd('WU')}, s100 offen {nt}""")
    return o
def a_consts():
    return L(f"""
 v_and_b32 v4, 15, v0
 v_add_u32 v4, 1, v4
 v_bfe_u32 v15, v4, 1, 1
 v_mul_u32_u24 v15, {CS2}, v15
 v_lshrrev_b32 v4, 2, v4
 v_lshl_add_u32 v15, v4, 3, v15
 v_bfe_u32 v4, v0, 4, 3
 v_lshl_add_u32 v15, v4, 6, v15
 s_lshr_b32 s3, {sW}, 1
 s_mul_i32 s3, s3, {2*CS2}
 s_add_u32 s3, s3, {FC}
 v_add_u32 v15, s3, v15
 v_and_b32 v12, 1, v0
 v_mul_u32_u24 v12, 0x020202, v12
 v_lshl_or_b32 v12, v12, 8, v12
 v_sub_u32 v12, 0x05040302, v12""")
def a_perm(a, i):
    nxt = vA+16*a+i+1 if i < 15 else vAx+a
    return f" v_perm_b32 v{vA+16*a+i}, v{nxt}, v{vA+16*a+i}, v{vSEL}"
def a_prep(lazy):
    def rd(a): return [f" ds_read2_b64 {vr(vA+16*a+4*bb,4)}, v{15 if a < 4 else 12} offset0:{64*(a&3)+2*bb} offset1:{64*(a&3)+2*bb+1}" for bb in range(4)] + [f" ds_read_b32 v{vAx+a}, v15 offset:{512*a+64}", f"DMARK:a{a}"]
    o = [f" v_mov_b32 v{vSEL}, v12", " v_add_u32 v12, 2048, v15"] + rd(0) + rd(1)
    for a in range(8):
        if a+2 < 8: o += rd(a+2)
        o.append(f"DWAIT:a{a}")
        for i in range(4*lazy): o.append(a_perm(a, i))
    return o
def roles():
    t = 168
    o = L(f"""
 s_bfe_u32 {sL3}, s2, 0x20003
 s_lshr_b32 {sJL}, s2, 5
 s_and_b32 s3, s2, 1
 s_lshl_b32 s3, s3, 2
 s_add_u32 {sG}, s3, {sL3}
 s_bfe_u32 s3, s2, 0x20001
 s_mul_i32 s3, s3, 7
 s_add_u32 {sJ}, s3, {sJL}
 s_mov_b32 {sKR}, {sJL}""" + (f"""
 s_lshr_b32 {sKR}, s2, 6
 s_and_b32 {sJ}, s2, 1
 s_lshl_b32 {sJ}, {sJ}, 2
 s_add_u32 {sJ}, {sJ}, {sKR}
 s_bfe_u32 s100, s2, 0x30003
 s_cmp_eq_u32 {sKR}, 3
 s_cselect_b32 {sJ}, 3, {sJ}
 s_cselect_b32 {sG}, {sG}, s100
 s_add_u32 {sJ}, {sJ}, s3
 s_lshl_b32 {sKR}, {sKR}, 1""" if M8[0] == 1 else "") + (f"""
 s_and_b32 {sG}, s2, 3
 s_lshl_b32 {sG}, {sG}, 1
 s_bfe_u32 s100, s2, 0x10003
 s_add_u32 {sG}, {sG}, s100
 s_bfe_u32 {sJ}, s2, 0x10002
 s_mul_i32 {sJ}, {sJ}, 14
 s_lshr_b32 {sKR}, s2, 4
 s_add_u32 {sJ}, {sJ}, {sKR}
 s_and_b32 {sKR}, {sKR}, 7""" if M8[0] == 2 else "") + f"""
 s_cmp_ge_u32 {sJL}, 7
 s_cselect_b32 s{SRD['WG']+2}, 0, {SIZE['WG']}
 s_mov_b32 s{SRD['WG']+3}, 0x20000
 s_mov_b32 s{SRD['WU']+2}, s{SRD['WG']+2}
 s_mov_b32 s{SRD['WU']+3}, 0x20000
 v_bfe_u32 v{t+1}, v0, 3, 3
 v_and_b32 v{t+3}, 7, v0
 v_mul_u32_u24 v{t+2}, 3584, v{t+1}
 v_and_b32 v{t+4}, 2, v{t+1}
 v_xor_b32 v{t+5}, v{t+3}, v{t+4}
 s_lshl_b32 s3, {sJ}, 7
 v_add_u32 v{t+2}, s3, v{t+2}
 v_lshl_add_u32 v{vR}, v{t+5}, 4, v{t+2}
 v_xor_b32 v{t+5}, 4, v{t+5}
 v_lshl_add_u32 v{vR+1}, v{t+5}, 4, v{t+2}
 v_lshlrev_b32 v{t+4}, 1, v{t+4}
 v_xor_b32 v{t+3}, v{t+3}, v{t+4}
 v_lshlrev_b32 v{t+1}, 10, v{t+1}
 v_lshl_add_u32 v{vWD}, v{t+3}, 4, v{t+1}""")
    return o
def w_table():
    o = L((f""" s_lshl_b32 s100, {sL3}, 4
 s_and_b32 s3, s2, 1
 s_lshl_b32 s3, s3, 3
 s_add_u32 s100, s100, s3""" if not M8[0] else f""" s_and_b32 s100, {sG}, 1
 s_lshl_b32 s100, s100, 2
 s_lshr_b32 s3, {sG}, 1
 s_add_u32 s100, s100, s3
 s_lshl_b32 s100, s100, 3""" if M8[0] == 2 else f""" s_lshr_b32 s3, {sG}, 2
 s_and_b32 s100, {sG}, 3
 s_lshl_b32 s100, s100, 1
 s_add_u32 s100, s100, s3
 s_lshl_b32 s100, s100, 3""") + f"""
 s_add_u32 s100, s100, {sW}
 s_lshl_b32 s3, {sKR}, 3
 s_sub_u32 {sWM}, s100, s3
 s_lshl_b32 {sWM}, {sWM}, 10""")
    for idx in range(16): o += [f" s_add_u32 s3, s100, {4*idx}", " s_and_b32 s3, s3, 63", f" s_mul_i32 s{sWT+idx}, s3, {8*3584}"]
    return o
def w_pair(idx, nt):
    return [f" s_add_u32 s101, {sWM}, {idx*4096}\n s_and_b32 m0, s101, 0xffff", f" buffer_load_dwordx4 v{vR}, {srd('WG')}, s{sWT+idx} offen {nt} lds",
            f" s_add_u32 m0, m0, 65536", f" buffer_load_dwordx4 v{vR+1}, {srd('WU')}, s{sWT+idx} offen {nt} lds"]
def conv_setup():
    t = 176
    o = L(f"""
 v_mov_b32 v{t}, 0
 v_and_b32 v13, 127, v0
 v_lshlrev_b32 v13, 2, v13
 v_lshrrev_b32 v14, 7, v0
 v_mul_u32_u24 v14, {KVCH}, v14
 s_mov_b32 s3, {KVR+4096}
 v_add3_u32 v13, v13, v14, s3
 ds_write_b32 v13, v{t}
 v_and_b32 v13, 15, v0
 v_lshlrev_b32 v13, 5, v13
 v_bfe_u32 v14, v0, 4, 3
 v_lshlrev_b32 v14, 6, v14
 v_sub_u32 v14, v14, v13
 v_add_u32 v14, 480, v14
 s_lshr_b32 s3, {sW}, 1
 s_mul_i32 s3, s3, {KVCH}
 s_add_u32 s3, s3, {KVR}""")
    for bb in range(4):
        o += L(f""" v_add_u32 v13, {16*bb}, v14
 v_lshrrev_b32 v{t+1}, 4, v13
 v_and_b32 v{t+1}, 16, v{t+1}
 v_xor_b32 v13, v13, v{t+1}
 v_add_u32 v{vBB[bb]}, s3, v13""")
    o += L(f"""
 v_lshlrev_b32 v13, 2, v0
 v_sub_u32 v13, 1020, v13
 v_lshrrev_b32 v{t+1}, 4, v13
 v_and_b32 v{t+1}, 16, v{t+1}
 v_xor_b32 v13, v13, v{t+1}
 v_add_u32 v13, {KVR}, v13
 v_mul_u32_u24 v14, {OB}, v2
 v_lshl_add_u32 v14, v1, 4, v14""")
    return o
def h1_addr():
    return L(f"""
 s_and_b32 s4, {sC}, 3
 s_lshl_b32 s4, s4, 12
 s_lshr_b32 s3, {sC}, 2
 s_lshl_b32 s3, s3, 6
 s_add_u32 s4, s4, s3
 s_add_u32 s4, s4, {KVBOX}
 s_add_u32 s5, s4, {64*OB}
 s_add_u32 s6, s4, {128*OB}
 s_add_u32 s7, s4, {192*OB}""")
def box_recv(P, base, name, sleep, shadow=None, spec=()):
    lds = [f" buffer_load_dwordx4 {vr(base+4*i,4)}, v14, {WS}, s{4+i} offen sc1" for i in range(4)]
    P(lds); P.mark(name)
    if shadow: P(shadow)
    P.vmwait(name)
    P(f"L_{name}:")
    P(f" v_xor_b32 v4, {sTAG}, v{base+1}")
    for i in range(1, 8): P(f" v_bitop3_b32 v4, v4, v{base+2*i+1}, {sTAG} bitop3:0xf6")
    P(f" v_cmp_ne_u32 vcc, 0, v4\n s_mov_b64 exec, -1")
    P(list(spec))
    P(f" s_cbranch_vccnz L_{name}_r\nL_{name}_ok:")
    P.tail += L(f"""L_{name}_r:
 s_mov_b64 exec, vcc
 s_sleep {sleep}""") + lds + L(f""" s_waitcnt vmcnt(0)
 s_sub_u32 {sSPIN}, {sSPIN}, 1
 s_cbranch_scc0 L_{name}
 s_mov_b32 {sSPIN}, 0
 s_mov_b64 exec, -1
 s_branch L_{name}_ok""")
def canary_issue(cfg, stride):
    m = cfg["cmask"]
    return L(f"""
 s_bfe_u32 {sT}, {sP}, 0x20003
 s_mul_i32 {sT}, {sT}, {stride}
 s_add_u32 {sT}, {sT}, s4
 s_bfe_u32 s3, {sP}, 0x20001
 s_lshl_b32 s3, s3, 2
 s_mov_b32 s100, {m}
 s_mov_b32 s101, {m}
 s_lshl_b64 s[100:101], s[100:101], s3
 v_mov_b32 v7, {sTAG}
 s_mov_b64 exec, s[100:101]
 buffer_load_dword v7, v14, {WS}, {sT} offen offset:4 sc1
 s_mov_b64 exec, -1
MARK:can""")
def canary_check(P, name, sleep):
    P.tail += L(f"""L_{name}_r:
 s_sub_u32 {sSPIN}, {sSPIN}, 1
 s_cbranch_scc1 L_{name}_x
 s_mov_b64 exec, vcc
 s_sleep {sleep}
 buffer_load_dword v7, v14, {WS}, {sT} offen offset:4 sc1
 s_mov_b64 exec, -1
 s_waitcnt vmcnt(0)
 v_cmp_ne_u32 vcc, {sTAG}, v7
 s_cbranch_vccnz L_{name}_r
 s_branch L_{name}_b
L_{name}_x:
 s_mov_b32 {sSPIN}, 0
 s_branch L_{name}_b""")
    return ["WAIT:can", f" v_cmp_ne_u32 vcc, {sTAG}, v7", f" s_cbranch_vccnz L_{name}_r", f"L_{name}_b:"]
KP = 176
def kv_perm(): return [f" v_perm_b32 v{KP+2*i+c}, v{vIN+4*i}, v{vIN+4*i+2}, {sHI if c else sLO}" for i in range(4) for c in range(2)]
def kv_to_lds(P):
    for i in range(4): P(f" ds_write2st64_b32 v13, v{KP+2*i}, v{KP+2*i+1} offset0:{(3-i)*4} offset1:{(3-i)*4+KVCH//256}")
    P(" s_waitcnt lgkmcnt(0)\n s_barrier")
QD = 144
def conv_epi_consts():
    return L(f"""
 v_bfe_u32 v13, v0, 4, 2
 v_lshlrev_b32 v14, 6, v13
 v_xor_b32 v13, v14, v6
 s_lshl_b32 s3, {sW}, 13
 s_add_u32 s3, s3, {PART}
 v_add_u32 v13, s3, v13
 v_bfe_u32 v15, v0, 1, 2
 v_bfe_u32 v14, v0, 3, 4
 v_lshlrev_b32 v12, 2, v15
 v_xor_b32 v14, v14, v12
 v_lshlrev_b32 v14, 4, v14
 v_lshl_add_u32 v14, v15, 8, v14
 v_lshrrev_b32 v15, 7, v0
 v_lshl_add_u32 v14, v15, 10, v14
 v_and_b32 v15, 1, v0
 v_lshl_add_u32 v14, v15, 3, v14
 v_add_u32 v14, {PART}, v14
 s_mul_i32 s4, {sC}, {OB}
 s_add_u32 s4, s4, {YBOX}
 s_add_u32 s5, s4, 4096
 s_add_u32 s6, s4, 8192
 s_add_u32 s7, s4, 12288""")
def conv_mfma(P, bulk, sched):
    lazy = P.cfg['lazy']
    def rd(bb): return [f" ds_read_b128 {vr(vB+32*(bb&1)+4*d,4)}, v{vBB[bb]} offset:{(7-d)*512}" for d in range(8)]
    def mf(j, a, bb, first): P(f" v_mfma_f32_16x16x32_bf16 {ar(aC+4*j,4)}, {vr(vA+16*a+4*bb,4)}, {vr(vB+32*(bb&1)+4*(j-a),4)}, {'0' if first else ar(aC+4*j,4)}")
    used = [0]; n = [0]; cur = []
    def due():
        allowed = sum(min(2*c, max(0, (n[0] - s0)//e + 1)) for (s0, c, e) in sched)
        return used[0] < allowed
    q1 = []; q2 = []; extra = conv_epi_consts()
    def fillers(k=2):
        n[0] += 1
        while k > 0:
            if not cur and bulk and due():
                cur.extend(x for x in bulk.pop(0).split("\n") if x.strip() != "SKIP"); used[0] += 1
                continue
            if q1: P(q1.pop(0))
            elif cur:
                x = cur.pop(0); P(x)
                if " m0," in x and not cur and k == 2 and not q2 and not extra: k -= 1
            elif q2: P(q2.pop(0))
            elif extra: P(extra.pop(0))
            else: break
            k -= 1
    P(rd(0))
    for bb in range(3):
        q2 += [a_perm(a, i) for a in range(8) for i in range(4*(bb+1), 4*(bb+2))] if bb+1 >= lazy else []
        order = [(a+d, a, d) for d in range(8) for a in range(8-d)]
        for idx, (j, a, d) in enumerate(order):
            if idx == 0: P(" s_waitcnt lgkmcnt(7)" if bb == 0 else " s_waitcnt lgkmcnt(0)")
            if bb == 0 and idx == 8: P(" s_waitcnt lgkmcnt(0)")
            if idx == 8: q1 += rd(bb+1)
            mf(j, a, bb, bb == 0 and d == 0)
            fillers(1 if (idx == 35 or (bb == 0 and idx == 7)) else 2)
        if q2: print("perm spill", len(q2), end=" ")
        P(q2); del q2[:]
    P(extra); del extra[:]
    P(" s_waitcnt lgkmcnt(0)\n s_barrier")
    q2 += [f" v_mov_b32 v{QD+2*i+1}, {sTAG}" for i in range(8)]
    wr = []; cnt = 0
    for j in range(8):
        for a in range(j+1):
            mf(j, a, 3, False); cnt += 1
            if wr and wr[0][1] + 4 <= cnt: q1.append(wr.pop(0)[0])
            fillers()
        wr.append((f" ds_write_b128 v13, {ar(aC+4*j,4)} offset:{j*1024}", cnt))
    P(q1); P(cur); P(q2)
    for x in wr: P(x[0])
def conv_epilogue(P):
    R = 16
    P(" s_waitcnt lgkmcnt(0)\n s_barrier")
    for i in range(4):
        for c in range(2): P(f" ds_read2st64_b64 {vr(R+8*i+4*c,4)}, v14 offset0:{4*i+32*c} offset1:{4*i+32*c+16}")
    for i in range(4):
        P(f" s_waitcnt lgkmcnt({6-2*i})")
        b = R+8*i
        P(f""" v_pk_add_f32 {vr(b,2)}, {vr(b,2)}, {vr(b+2,2)}
 v_pk_add_f32 {vr(b+4,2)}, {vr(b+4,2)}, {vr(b+6,2)}
 v_cvt_pk_bf16_f32 v{QD+4*i}, v{b}, v{b+4}
 v_cvt_pk_bf16_f32 v{QD+4*i+2}, v{b+1}, v{b+5}
 buffer_store_dwordx4 {vr(QD+4*i,4)}, v9, {WS}, s{4+i} offen sc1""")

vSR = 15
def stat_consts():
    return L(f"""
 v_bfe_u32 v{vSW}, v0, 4, 4
 v_lshl_add_u32 v{vSW}, v1, 4, v{vSW}
 v_lshlrev_b32 v{vSW}, 2, v{vSW}
 v_add_u32 v{vSW}, {STAT}, v{vSW}
 v_lshlrev_b32 v{vSR}, 6, v1
 v_add_u32 v{vSR}, {STAT}, v{vSR}
 s_mov_b32 s30, 0x3b000000
 s_mov_b32 s31, 0x3b000000""")
def row_stats(src, tmp, off, mr, shadow):
    o = []
    a = tmp+8
    for r in range(2):
        b = src+8*r
        o.append(f" v_pk_add_f32 {vr(a+4*r,2)}, {vr(b,2)}, {vr(b+2,2)}")
        o.append(f" v_pk_mul_f32 {vr(a+4*r+2,2)}, {vr(b,2)}, {vr(b,2)}")
    for i in range(1, 4):
        for r in range(2):
            b = src+8*r+2*i
            if i >= 2: o.append(f" v_pk_add_f32 {vr(a+4*r,2)}, {vr(a+4*r,2)}, {vr(b,2)}")
            o.append(f" v_pk_fma_f32 {vr(a+4*r+2,2)}, {vr(b,2)}, {vr(b,2)}, {vr(a+4*r+2,2)}")
    for k in range(4): o.append(f" v_add_f32 v{tmp+k}, v{a+2*k}, v{a+2*k+1}")
    sh = list(shadow)
    def S(n): return take(sh, n)
    o += S(2) + [f" v_permlane32_swap_b32 v{tmp}, v{tmp+1}", f" v_permlane32_swap_b32 v{tmp+2}, v{tmp+3}",
          f" v_add_f32 v{tmp}, v{tmp}, v{tmp+1}", f" v_add_f32 v{tmp+2}, v{tmp+2}, v{tmp+3}"] + S(2) + \
         [f" v_permlane16_swap_b32 v{tmp}, v{tmp+2}", f" v_add_f32 v{tmp}, v{tmp}, v{tmp+2}"] + S(2) + \
         [f" v_add_f32_dpp v{tmp}, v{tmp}, v{tmp} row_ror:4 row_mask:0xf bank_mask:0xf"] + S(2) + \
         [f" v_add_f32_dpp v{tmp}, v{tmp}, v{tmp} row_ror:8 row_mask:0xf bank_mask:0xf", f" ds_write_b32 v{vSW}, v{tmp} offset:{off}"] + S(8) + \
         [" s_waitcnt lgkmcnt(0)", " s_barrier"] + \
         [f" ds_read_b128 {vr(tmp+8+4*k,4)}, v{vSR} offset:{off+16*k}" for k in range(4)] + S(99) + [" s_waitcnt lgkmcnt(0)"]
    o += L(f"""
 v_pk_add_f32 {vr(a,2)}, {vr(a,2)}, {vr(a+4,2)}
 v_pk_add_f32 {vr(a+8,2)}, {vr(a+8,2)}, {vr(a+12,2)}
 v_pk_add_f32 {vr(a+2,2)}, {vr(a+2,2)}, {vr(a+6,2)}
 v_pk_add_f32 {vr(a+10,2)}, {vr(a+10,2)}, {vr(a+14,2)}
 v_pk_add_f32 {vr(tmp,2)}, {vr(a,2)}, {vr(a+8,2)}
 v_pk_add_f32 {vr(tmp+2,2)}, {vr(a+2,2)}, {vr(a+10,2)}
 v_pk_mul_f32 {vr(tmp,2)}, {vr(tmp,2)}, s[30:31]
 v_pk_mul_f32 {vr(tmp+2,2)}, {vr(tmp+2,2)}, s[30:31]
 v_pk_fma_f32 {vr(tmp+2,2)}, {vr(tmp,2)}, {vr(tmp,2)}, {vr(tmp+2,2)} neg_lo:[1,0,0] neg_hi:[1,0,0]
 v_cvt_pk_bf16_f32 v{tmp+4}, v{tmp}, v{tmp+1}
 v_max_f32 v{tmp+2}, 0, v{tmp+2}
 v_max_f32 v{tmp+3}, 0, v{tmp+3}
 v_cvt_pk_bf16_f32 v{tmp+5}, v{tmp+2}, v{tmp+3}
 v_lshlrev_b32 v{tmp+2}, 16, v{tmp+5}
 v_and_b32 v{tmp+3}, {sMASK}, v{tmp+5}
 v_add_f32 v{tmp+2}, 0x3727c5ac, v{tmp+2}
 v_add_f32 v{tmp+3}, 0x3727c5ac, v{tmp+3}
 v_cvt_pk_bf16_f32 v{tmp+5}, v{tmp+2}, v{tmp+3}
 v_lshlrev_b32 v{tmp+2}, 16, v{tmp+5}
 v_and_b32 v{tmp+3}, {sMASK}, v{tmp+5}
 v_sqrt_f32 v{tmp+2}, v{tmp+2}
 v_sqrt_f32 v{tmp+3}, v{tmp+3}
 v_lshlrev_b32 v{mr}, 16, v{tmp+4}
 v_cvt_pk_bf16_f32 v{tmp+5}, v{tmp+2}, v{tmp+3}
 v_lshlrev_b32 v{tmp+2}, 16, v{tmp+5}
 v_and_b32 v{tmp+3}, {sMASK}, v{tmp+5}
 v_rcp_f32 v{mr+2}, v{tmp+2}
 v_rcp_f32 v{mr+3}, v{tmp+3}
 v_and_b32 v{mr+1}, {sMASK}, v{tmp+4}
 v_pk_mul_f32 {vr(mr,2)}, {vr(mr,2)}, {vr(mr+2,2)} neg_lo:[1,0] neg_hi:[1,0]""")
    return o
def norm_row(dst, src, mr, row):
    sel = f"op_sel:[0,{row},{row}] op_sel_hi:[1,{row},{row}]"
    return [f" v_pk_fma_f32 {vr(dst+8*row+2*i,2)}, {vr(src+8*row+2*i,2)}, {vr(mr+2,2)}, {vr(mr,2)} {sel}" for i in range(4)]
def unpack(dst, src): return [f" v_lshlrev_b32 v{dst}, 16, v{src}", f" v_and_b32 v{dst+1}, {sMASK}, v{src}"]
def ln1():
    tmp = 176; mr = 200; kd = 160
    o = []
    for r in range(2):
        for t in range(4): o += unpack(kd+8*r+2*t, vQ+4*t+2*r)
    for i in range(8): o += unpack(vu1+2*i, vX+i)
    sh = []
    for i in range(4): sh += unpack(vX+2*i, vD+i)
    for r in range(2):
        for t in range(4): sh.append(f" v_pk_mul_f32 {vr(kd+8*r+2*t,2)}, {vr(kd+8*r+2*t,2)}, {vr(vX+2*t,2)}")
    o += row_stats(vu1, tmp, 0, mr, sh)
    o += norm_row(vq, vu1, mr, 0) + norm_row(vq, vu1, mr, 1)
    for i in range(8): o.append(f" v_pk_fma_f32 {vr(vu1+2*i,2)}, {vr(vq+2*i,2)}, {vr(kd+2*i,2)}, {vr(vu1+2*i,2)}")
    return o
vY = 64
def ln2(P0, bulk, every):
    P = G(); P.cfg = P0.cfg
    vh, vn, tmp, mr = 80, 104, 112, 136
    for t in range(4): P(unpack(vh+8+2*t, vY+4*t+2))
    for i in range(8): P(f" v_pk_fma_f32 {vr(vh+2*i,2)}, {vr(vq+2*i,2)}, {vr(vh+2*i,2)}, {vr(vu1+2*i,2)}")
    sh = [f" v_cvt_pk_bf16_f32 v{vHP+i}, v{vh+2*i}, v{vh+2*i+1}" for i in range(8)]
    for i in range(8): sh += unpack(vh+2*i, vHP+i)
    P(row_stats(vh, tmp, 256, mr, sh))
    for r in range(2):
        P(norm_row(vh, vh, mr, r))
        for i in range(4*r, 4*r+4): P(f" v_cvt_pk_bf16_f32 v{vn+i}, v{vh+2*i}, v{vh+2*i+1}")
        P(f" buffer_store_dwordx4 {vr(vn+4*r,4)}, v5, {WS}, {sHNst} offen offset:{64*r} sc1")
        P(f" v_xad_u32 v{tmp+r}, v{vn+4*r}, v{vn+4*r+1}, v{vn+4*r+2}\n v_add_u32 v{tmp+r}, v{tmp+r}, v{vn+4*r+3}")
    P(f"""
 v_permlane16_swap_b32 v{tmp}, v{tmp+1}
 v_add_u32 v{tmp}, v{tmp}, v{tmp+1}
 v_add_u32_dpp v{tmp}, v{tmp}, v{tmp} row_ror:8 row_mask:0xf bank_mask:0xf
 v_add_u32 v{tmp}, {sTAG}, v{tmp}
 buffer_store_dword v{tmp}, v{vC}, {WS}, {sHCst} offen sc1
""")
    if P.cfg["hnh"]: P(f" buffer_store_dword v{vY+1}, v13, {WS}, {sF0} offen sc1")
    interleave(P0, P.lines, bulk, every)
    assert not bulk
def h2_consts():
    return L(f"""
 v_mul_u32_u24 v14, {4*OB}, v2
 v_lshl_add_u32 v14, v1, 4, v14
 v_lshlrev_b32 v5, 9, v2
 v_lshl_add_u32 v5, v1, 4, v5
 v_lshrrev_b32 v{vC}, 2, v6
 v_add_u32 v{vC}, 4096, v{vC}
 s_lshr_b32 {sHNst}, {sP}, 2
 s_lshl_b32 {sHNst}, {sHNst}, 15
 s_and_b32 s3, {sP}, 3
 s_lshl_b32 s3, s3, 7
 s_add_u32 {sHNst}, {sHNst}, s3
 s_add_u32 {sHNst}, {sHNst}, {HN}
 s_lshl_b32 {sHCst}, {sP}, 2
 s_add_u32 {sHCst}, {sHCst}, {sW}
 s_lshl_b32 {sFLst}, {sHCst}, 7
 s_add_u32 {sFLst}, {sFLst}, {FL-4352}
 s_lshl_b32 {sHCst}, {sHCst}, 8
 s_add_u32 {sHCst}, {sHCst}, {HC-4096}
 s_mov_b32 {sHRES}, {HRES}
 s_lshl_b32 s4, {sP}, 6
 s_add_u32 s4, s4, {YBOX}
 s_add_u32 s5, s4, {OB}
 s_add_u32 s6, s4, {2*OB}
 s_add_u32 s7, s4, {3*OB}""")

WARM = [0]; ROTX = [0]
def warm_ops(n0, n1):
    o = []
    if n0 == 0:
        o += L(f""" v_bfe_u32 v16, v0, 3, 3
 v_min_u32 v16, 6, v16
 v_and_b32 v17, 7, v0
 v_lshlrev_b32 v17, 10, v17
 v_lshl_add_u32 v17, v16, 7, v17
 s_mul_i32 s4, {sW}, {448*1024}
 s_lshl_b32 s5, {sL3}, 13
 s_add_u32 s4, s4, s5
 s_add_u32 s5, s4, 32768""")
    for j in range(n0, n1):
        if j & 1 == 0:
            if j: o += [" v_add_u32 v16, 1, v16", " v_cmp_eq_u32 vcc, 7, v16", " v_cndmask_b32 v16, v16, 0, vcc"]
            o.append(" v_lshl_add_u32 v18, v16, 16, v17")
        o.append(f" buffer_load_dword v19, v18, {srd('WD')}, s{4 + (j & 1)} offen")
    return o
def wd_consts(a8):
    if a8: head = f"""
 s_bfe_u32 s3, s2, 0x20001
 s_lshl_b32 s3, s3, 3
 s_bfe_u32 {sT}, s2, 0x30003
 s_add_u32 {sSB}, s3, {sT}
 s_and_b32 {sE}, s2, 1
 s_lshl_b32 {sE}, {sE}, 2
 s_lshr_b32 s3, s2, 6
 s_add_u32 {sE}, {sE}, s3
 s_lshl_b32 {sE}, {sE}, 7
 s_lshl_b32 s3, s3, 1
 s_add_u32 s3, s3, {sT}"""
    else: head = f"""
 s_and_b32 s3, s2, 7
 s_lshl_b32 s3, s3, 2
 s_add_u32 {sSB}, s3, {sL3}
 s_lshl_b32 {sE}, {sJL}, 7
 s_lshl_b32 s3, {sL3}, 1""" + (f"""
 s_cmp_ge_u32 {sJL}, 7
 s_cselect_b32 s3, s3, 0""" if WARM[0] else "") + f"""
 s_add_u32 s3, s3, {sJL}"""
    if ROTX[0] == 1: head += f"""
 s_and_b32 {sT}, s2, 7
 s_add_u32 s3, s3, {sT}
 s_cmp_ge_u32 s3, 7
 s_cselect_b32 {sT}, 7, 0
 s_sub_u32 s3, s3, {sT}"""
    if ROTX[0] == 2: head += f"""
 s_and_b32 {sT}, s2, 1
 s_add_u32 s3, s3, {sT}
 s_add_u32 s3, s3, {sW}
 s_cmp_ge_u32 s3, 7
 s_cselect_b32 {sT}, 7, 0
 s_sub_u32 s3, s3, {sT}"""
    if ROTX[0] == 3: head += f"""
 s_add_u32 s3, s3, {sW}
 s_add_u32 s3, s3, {sW}
 s_cmp_ge_u32 s3, 7
 s_cselect_b32 {sT}, 7, 0
 s_sub_u32 s3, s3, {sT}"""
    o = L(head + f"""
 s_mul_i32 {sRING}, {sW}, {NR*1024}
 s_add_u32 {sRING}, {sRING}, {RING}
 s_mul_i32 s100, {sW}, {448*1024}
 s_add_u32 s100, s100, {sE}""")
    for i in range(7):
        if WARM[0] == 2:
            if i < 3: o += [f" s_add_u32 s101, s3, {i}"]
            else: o += L(f""" s_add_u32 s101, {sL3}, {i-3}
 s_and_b32 s101, s101, 3
 s_cmp_ge_u32 {sJL}, 7
 s_cselect_b32 s101, {i-3}, s101
 s_add_u32 s101, s101, 3
 s_add_u32 s101, s101, s3""")
            for rep in range(2): o += L(f""" s_cmp_ge_u32 s101, 7
 s_cselect_b32 {sT}, 7, 0
 s_sub_u32 s101, s101, {sT}""")
            o += [f" s_lshl_b32 {sT}, s101, 16", f" s_add_u32 s{sWD+i}, {sT}, s100"]
            continue
        o += L(f""" s_cmp_ge_u32 s3, 7
 s_cselect_b32 {sT}, 7, 0
 s_sub_u32 s3, s3, {sT}
 s_lshl_b32 {sT}, s3, 16
 s_add_u32 s{sWD+i}, {sT}, s100
 s_add_u32 s3, s3, 1""")
    return o
def wd_rconsts(t):
    return L(f"""
 v_bfe_u32 v{t}, v0, 5, 1
 v_bfe_u32 v{t+1}, v0, 4, 1
 v_bfe_u32 v{t+2}, v0, 2, 2
 v_lshl_add_u32 v{t}, v{t}, 2, v{t+2}
 v_lshlrev_b32 v{t}, 7, v{t}
 v_lshl_add_u32 v{t}, v1, 3, v{t}
 v_add_u32 v{t}, {sRING}, v{t}
 v_and_b32 v{t+2}, 2, v{t+2}
 v_or_b32 v{t+2}, v{t+2}, v{t+1}
 v_lshl_add_u32 v{vWr[0]}, v{t+2}, 5, v{t}
 v_xor_b32 v{t+2}, 2, v{t+2}
 v_lshl_add_u32 v{vWr[1]}, v{t+2}, 5, v{t}""")
def wd_dma(m, base=sRING, slot=None):
    i, r = m // 8, m & 7
    o = []
    if slot is None:
        slot = m % NR
        if m >= NR: o.append(f"DWAIT:wd{m-NR}")
    o.append(f" s_add_u32 m0, {base}, {slot*1024}")
    if r: o += [f" s_add_u32 s100, s{sWD+i}, {r*8192}", f" buffer_load_dwordx4 v{vWD}, {srd('WD')}, s100 offen lds"]
    else: o += [f" buffer_load_dwordx4 v{vWD}, {srd('WD')}, s{sWD+i} offen lds"]
    return o + [f"MARK:wd{m}"]
def wd_read(m, slot=None):
    d = (m >> 1)*8 + 2*(m & 1)
    if slot is None: slot = m % NR
    return [f"WAIT:wd{m}"] + [f" ds_read_b64_tr_b16 {ar(d+4*tau,2)}, v{vWr[tau]} offset:{slot*1024}" for tau in range(2)] + [f"DMARK:wd{m}"]
def wd_stream(d, rd, N, dep=NR-1):
    o = []
    while d < min(N, rd + dep): o += wd_dma(d); d += 1
    for m in range(rd, N):
        o += wd_read(m)
        if d < N and d <= m + dep: o += wd_dma(d); d += 1
    return o

def wd_raw(m):
    i, r = m // 8, m & 7
    if r: return [f" s_add_u32 s100, s{sWD+i}, {r*8192}", f" buffer_load_dwordx4 {ar(4*m,4)}, v{vWD}, {srd('WD')}, s100 offen"]
    return ["SKIP", f" buffer_load_dwordx4 {ar(4*m,4)}, v{vWD}, {srd('WD')}, s{sWD+i} offen"]
def bounce(u, va):
    d = u*8; off = (u % 3)*2048
    o = [f" ds_write_b128 v{va}, {ar(d,4)} offset:{off}", f" ds_write_b128 v{va}, {ar(d+4,4)} offset:{off+1024}"]
    for tau in range(2):
        for io in range(2): o.append(f" ds_read_b64_tr_b16 {ar(d+4*tau+2*io,2)}, v{vWr[tau]} offset:{off+io*1024}")
    return o
def g_sconsts(nbig):
    o = [f" s_mul_i32 s3, {sSB}, {56*GS}", f" s_add_u32 s3, s3, {HH}"]
    for i in range(7):
        o += L(f""" s_lshr_b32 {sT}, s{sWD+i}, 16
 s_mul_i32 {sT}, {sT}, {GS}
 s_add_u32 s{sHL+i}, {sT}, s3
 s_add_u32 s{sHL+7+i}, s{sHL+i}, {28*GS}""")
    o += L(f"""
 s_lshl_b32 {sO0}, {sSB}, 16
 s_add_u32 {sO0}, {sO0}, {sE}
 s_add_u32 {sO1}, {sO0}, 32768
 s_add_u32 {sHR0}, {sO0}, {HRES}
 s_add_u32 {sHR1}, {sO1}, {HRES}
 s_lshl_b32 s3, {sG}, 2
 s_add_u32 s3, s3, {sW}
 s_mul_i32 {sHS0}, s3, 56
 s_add_u32 {sHS0}, {sHS0}, {sJ}
 s_mul_i32 {sHS0}, {sHS0}, {GS}
 s_add_u32 {sHS0}, {sHS0}, {HH}
 s_add_u32 {sHS1}, {sHS0}, {28*GS}""")
    o += L(f"""
 s_lshl_b32 {sFLld}, {sSB}, 3
 s_add_u32 {sFLld}, {sFLld}, {sW}
 s_mul_i32 {sPH0}, {sFLld}, {7*GS}
 s_add_u32 {sPH0}, {sPH0}, {HH+4352}
 s_add_u32 {sPH1}, {sPH0}, {28*GS}
 s_lshl_b32 {sFLld}, {sFLld}, 2
 s_lshr_b32 s3, {sE}, 8
 s_add_u32 {sFLld}, {sFLld}, s3
 s_lshl_b32 {sFLld}, {sFLld}, 7
 s_add_u32 {sFLld}, {sFLld}, {FL}
 s_and_b32 s3, {sW}, 1
 s_mul_i32 s3, s3, {nbig*1024}
 s_lshr_b32 {sBIG}, {sW}, 1
 s_lshl_b32 {sBIG}, {sBIG}, 16
 s_add_u32 {sBIG}, {sBIG}, s3""") + srdc(("OUT",))
    return o
def hn_consts():
    o = L(f"""
 s_lshl_b32 s3, {sG}, 2
 s_add_u32 s3, s3, {sW}
 s_lshl_b32 {sFLld}, s3, 13
 s_add_u32 {sFLld}, {sFLld}, {HC}
 s_lshl_b32 s3, s3, 16
 s_add_u32 s3, s3, {HN}""")
    for g in range(8):
        o += [f" s_add_u32 {sT}, {sKR}, {g}", f" s_and_b32 {sT}, {sT}, 7", f" s_lshl_b32 s{sHC+g}, {sT}, 7", f" s_add_u32 s{sHC+g}, s{sHC+g}, {sFLld}", f" s_lshl_b32 {sT}, {sT}, 12", f" s_add_u32 s{sHN+g}, {sT}, s3"]
    o += L(f"""
 v_bfe_u32 v{vHC}, v0, 3, 2
 v_lshlrev_b32 v{vHC}, 10, v{vHC}
 v_bfe_u32 v{vHC1}, v0, 5, 1
 v_lshl_add_u32 v{vHC}, v{vHC1}, 4, v{vHC}
 v_bfe_u32 v{vHC1}, v0, 2, 1
 v_lshl_add_u32 v{vHC}, v{vHC1}, 6, v{vHC}
 v_lshl_add_u32 v{vHC}, v1, 2, v{vHC}
 v_and_b32 v{vHC1}, 31, v0
 v_lshlrev_b32 v{vHC1}, 7, v{vHC1}
 s_lshl_b32 {sF0}, {sG}, 2
 s_add_u32 {sF0}, {sF0}, {sW}
 s_lshl_b32 {sF0}, {sF0}, 12
 s_add_u32 {sF0}, {sF0}, {FL}""")
    return o
def g_vconsts():
    t = 232
    o = L(f"""
 v_bfe_u32 v{t}, v0, 5, 1
 v_bfe_u32 v{t+1}, v0, 4, 1
 v_bfe_u32 v{t+2}, v0, 2, 2
 v_lshl_add_u32 v{t}, v{t}, 3, v{t+2}
 v_lshlrev_b32 v{t+4}, 7, v{t}
 v_lshl_add_u32 v{t+4}, v1, 3, v{t+4}
 v_lshl_add_u32 v{t+4}, v{t+1}, 16, v{t+4}
 v_lshrrev_b32 v{t+2}, 1, v{t+2}
 v_lshl_add_u32 v{t+2}, v{t+1}, 1, v{t+2}
 v_add_u32 v{vL2}, 32768, v6""")
    for k in range(4): o += [f" v_xor_b32 v{t+3}, {k}, v{t+2}", f" v_lshl_add_u32 v{vRa+k}, v{t+3}, 5, v{t+4}"]
    o += L(f"""
 v_lshrrev_b32 v{t}, 3, v0
 v_and_b32 v{t+1}, 24, v{t}
 v_and_b32 v{t+2}, 3, v{t}
 v_lshl_add_u32 v{t+1}, v{t+2}, 1, v{t+1}
 v_bfe_u32 v{t+2}, v{t}, 2, 1
 v_add_u32 v{t+1}, v{t+1}, v{t+2}
 v_lshlrev_b32 v{t+1}, 10, v{t+1}
 v_and_b32 v{t+2}, 7, v0
 v_lshl_add_u32 v{vOUT}, v{t+2}, 4, v{t+1}
 v_mul_u32_u24 v{vPH}, {GS//16}, v6
 v_add_u32 v4, 16, v6
 v_lshrrev_b32 v4, 7, v4
 v_lshl_add_u32 v{vPH}, v4, 25, v{vPH}
 v_lshlrev_b32 v{vONE}, 21, v6
 v_add_u32 v{vONE}, 4352, v{vONE}
 v_mov_b32 v{vTG}, {sTAG}""")
    return o
HST = [f" buffer_store_dwordx4 {vr(vHP,4)}, v3, {WS}, {sHRES} offen sc1", f" buffer_store_dwordx4 {vr(vHP+4,4)}, v3, {WS}, {sHRES} offen offset:1024 sc1", "MARK:HST"]
FLAGST = f" buffer_store_dword v{vTG}, v{vONE}, {WS}, {sFLst} offen sc1"
FLAGLD = [" v_lshrrev_b32 v1, 5, v6\n v_lshlrev_b32 v1, 25, v1", " v_lshl_add_u32 v1, v6, 7, v1", f" v_mov_b32 v3, 0\n buffer_atomic_or v3, v1, {WS}, {sFLld} offen sc0 sc1"]
HRESLD = [f" buffer_load_dwordx4 {vr(vE,4)}, v{vOUT}, {WS}, {sHR0} offen sc1", f" buffer_load_dwordx4 {vr(vE+4,4)}, v{vOUT}, {WS}, {sHR1} offen sc1", "MARK:hres"]
def poll(dst, voff, soff): return f" v_mov_b32 v{dst}, 0\n buffer_atomic_or v{dst}, v{voff}, {WS}, {soff} offen sc0 sc1"
def pollcmp(dst, mask): return [f" v_cmp_ne_u32 vcc, {sTAG}, v{dst}", f" s_and_b64 vcc, vcc, {mask}"]
NOCHK = [0]; NCHK = [16]
def hn_regs(G_): return vHN + 16*(G_ % 4)
def hn_loads(G_):
    return [f" buffer_load_dwordx4 {vr(hn_regs(G_)+4*k,4)}, v{6 if G_ < 8 else vL2}, {WS}, s{sHN+(G_&7)} offen offset:{k*1024} sc1" for k in range(4)] + \
           ([f" buffer_load_dword v{CHN[G_%4]}, v{vHC if G_ < 8 else vHC1}, {WS}, s{sHC+(G_&7)} offen sc1"] if G_ < NCHK[0] else [])
def hh_loads(u, i):
    return [f" buffer_load_dwordx4 {vr(HREG[(u,i)]+4*t,4)}, v6, {WS}, s{sHL+7*u+i} offen offset:{t*1024} sc1" for t in range(4)] + \
           ([f" buffer_load_dword v{CHH[(u,i)]}, v{vC}, {WS}, s{sHL+7*u+i} offen sc1"] if not NOCHK[0] & 2 else [])
def hashchain(r, chk):
    o = []
    for f in range(4):
        b = r + 4*f
        o.append(f" v_xad_u32 v4, v{b}, v{b+1}, {sTAG if f == 0 else 'v4'}")
        o.append(f" v_add3_u32 v4, v4, v{b+2}, v{b+3}")
    return o + [f" v_cmp_ne_u32 vcc, v4, v{chk}"]
def retry_check(P, o, loads, later, name, sleep):
    blk = [f"L_{name}_r:", f" s_sub_u32 {sSPIN}, {sSPIN}, 1", f" s_cbranch_scc1 L_{name}_x", f" s_sleep {sleep}"] + loads + [" s_waitcnt vmcnt(0)"] + o + [f" s_cbranch_vccnz L_{name}_r"]
    blk += later + ([" s_waitcnt vmcnt(0)"] if later else []) + [f" s_branch L_{name}_b", f"L_{name}_x:", f" s_mov_b32 {sSPIN}, 0", f" s_branch L_{name}_b"]
    P.tail += blk
    return o + ["GAP", f" s_cbranch_vccnz L_{name}_r\nL_{name}_b:"]
def retry_fast(P, o, loads, later, name, sleep):
    blk = [f"L_{name}_s:", f" s_sleep {sleep}", f"L_{name}_r:", f" s_sub_u32 {sSPIN}, {sSPIN}, 1", f" s_cbranch_scc1 L_{name}_x"] + loads + later + [f" s_waitcnt vmcnt({len(later)})"] + o + [f" s_cbranch_vccnz L_{name}_s"]
    blk += [f" s_branch L_{name}_b", f"L_{name}_x:", f" s_mov_b32 {sSPIN}, 0", f" s_branch L_{name}_b"]
    P.tail += blk
    return o + ["GAP", f" s_cbranch_vccnz L_{name}_r\nL_{name}_b:"]
def hint_spin(name, s, back):
    return [f"L_{name}:", poll(vPD, vPH, s), " s_waitcnt vmcnt(0)"] + pollcmp(vPD, 0x7f) + [f" s_cbranch_vccz {back}", " s_sleep 8",
            f" s_sub_u32 {sSPIN}, {sSPIN}, 1", f" s_cbranch_scc0 L_{name}", f" s_mov_b32 {sSPIN}, 0"]
def epi_tile(acc, ups, t, out, pk):
    o = []
    if pk:
        for i in range(4): o.append(f" v_pk_mul_f32 {vr(vE+2*i,2)}, {vr(acc+2*i,2)}, s[4:5]")
    else:
        for i in range(8): o.append(f" v_mul_f32 v{vE+i}, 0xbfb8aa3b, v{acc+i}")
    for i in range(8): o.append(f" v_exp_f32 v{vE+i}, v{vE+i}")
    if pk:
        for i in range(4): o.append(f" v_pk_add_f32 {vr(vE+2*i,2)}, {vr(vE+2*i,2)}, 1.0 op_sel_hi:[1,0]")
    else:
        for i in range(8): o.append(f" v_add_f32 v{vE+i}, 1.0, v{vE+i}")
    for i in range(8): o.append(f" v_rcp_f32 v{vE+i}, v{vE+i}")
    if pk:
        for i in range(4): o.append(f" v_pk_mul_f32 {vr(vE+2*i,2)}, {vr(vE+2*i,2)}, {vr(acc+8+2*i,2)}")
    else:
        for i in range(8): o.append(f" v_mul_f32 v{vE+i}, v{vE+i}, v{acc+8+i}")
    for i in range(4): o.append(f" v_cvt_pk_bf16_f32 v{out+i}, v{vE+2*i}, v{vE+2*i+1}")
    sb = sHS1 if ups else sHS0
    o.append(f" buffer_store_dwordx4 {vr(out,4)}, v6, {WS}, {sb} offen offset:{t*1024} sc1")
    o.append(f" v_xad_u32 v{vHASH}, v{out}, v{out+1}, {sTAG if t == 0 else 'v%d' % vHASH}")
    o.append(f" v_add3_u32 v{vHASH}, v{vHASH}, v{out+2}, v{out+3}")
    if t == 3:
        o.append(f" buffer_store_dword v{vHASH}, v{vC}, {WS}, {sb} offen sc1")
        o.append(f" buffer_store_dword v{vTG}, v{vONE}, {WS}, {sb} offen sc1")
    return o

def gemm1(P, cfg, wds):
    seq = [(u, k, t) for u in range(2) for k in range(32) for t in range(4)]
    D = 6; LA = 3
    MB = cfg["wd_big"]
    def reads(n):
        u, k, t = seq[n]; d = aC + 4*(n % 8)
        return [f" ds_read_b64_tr_b16 {ar(d+2*io,2)}, v{vRa+t} offset:{k*2048+io*512}" for io in range(2)] + [f"DMARK:w{n}"]
    def hn_issue(g): return hn_loads(g) + [f"MARK:hn{g}"]
    def hn_check(g):
        later = []
        for gg in range(g+1, min(16, g+LA)): later += hn_loads(gg)
        if g >= NCHK[0]: return [f"WAIT:hn{g}"]
        later = [x for gg in range(g+1, min(NCHK[0], g+LA)) for x in hn_loads(gg)]
        return [f"WAIT:hn{g}"] + (retry_fast if g < 12 else retry_check)(P, hashchain(hn_regs(g), CHN[g%4]), hn_loads(g), later, f"hn{g}", cfg["bo"])
    for n in range(D): P(reads(n))
    P(hn_check(0))
    P.st("hn0")
    wq_ = list(wds); fill = []; urgent = []; wacc = 0.0; lastv = -9; gapn = None
    h0 = poll(vPD, vPH, sPH0)
    for n, (u, k, t) in enumerate(seq):
        budget = cfg["slots"][u]
        g = 8*u + k//4
        if t == 0:
            if k % 4 == 0:
                while urgent: P(urgent.pop(0))
                gapn = None
                if g + LA < 16 and not cfg['hn_ph']: urgent += hn_issue(g + LA)
        if cfg['hn_ph'] and n % 16 == cfg['hn_ph'] and g + LA < 16: urgent += hn_issue(g + LA)
        fp = f" buffer_load_dword v{vPD}, v{vHC1}, {WS}, {sF0} offen sc1"
        if n == cfg["fp_at"]: urgent += [fp, "MARK:fp"]
        if n == 16*(cfg["nchk"] - LA) - cfg["fc_lead"]: urgent += ["WAIT:fp"] + retry_check(P, [f" v_cmp_ne_u32 vcc, {sTAG}, v{vPD}"], [fp], [], "fp", cfg["bo"])
        if n % 16 == cfg['chk_at'] and g + 1 < 16: urgent += hn_check(g + 1)
        if t == 0:
            if (u, k) == (1, 0):
                P.st("p0")
                P(urgent); urgent = []
                P(" s_mov_b32 s4, 0xbfb8aa3b\n s_mov_b32 s5, 0xbfb8aa3b")
                held = []; ex = []
                for tt in range(4):
                    pk = tt < cfg["e0_exp"]
                    for x in epi_tile(acc0+16*tt, 0, tt, acc0+16*tt, pk):
                        (held if (x.lstrip().startswith("buffer_store") and cfg["hold0"]) else (ex if pk else fill)).append(x)
                nx = take(wq_, cfg["e0_wd"])
                interleave(P, ex, nx, cfg["e0_every"]); P(nx)
                fill += held
                if cfg["e0_exp"] == 4: P(fill); fill = []
                P.st("e0")
            if u == 1 and k == cfg["h0_k"] and cfg["hhh"]: urgent += [h0, "MARK:ph0"]
            if u == 1 and k in cfg["hh_at"]:
                i = cfg["hh_at"][k]
                assert not fill and (i < 5 or k >= 20 + 4*(i-5))
                if i == 0:
                    if not cfg['h_early']: urgent += ["WAIT:HST", FLAGST]
                    if cfg["hhh"]: urgent += ["WAIT:ph0"] + retry_check(P, pollcmp(vPD, 0x7f), [h0], [], "ph0", cfg["hbo"])
                urgent += hh_loads(0, i) + [f"MARK:hh0_{i}"]
        if n % 2 == 0: P(f"DWAIT:w{n+1}")
        else: budget -= 1
        a = (acc1 if u else acc0) + 16*t
        P(f" v_mfma_f32_32x32x16_bf16 {vr(a,16)}, {ar(aC+4*(n%8),4)}, {vr(hn_regs(g)+4*(k&3),4)}, {'0' if k == 0 else vr(a,16)}")
        if n + D < len(seq):
            P(reads(n+D)); budget -= 2
        wacc += cfg["wd_rate"][u] if not any(a_ <= n < b_ for a_, b_ in cfg['wd_off']) else 0
        had = bool(fill)
        for q in (urgent, wq_, fill):
            while q and (budget >= P.cost(q[0]) or P.cost(q[0]) == 0):
                if q[0] == "GAP":
                    if gapn is None: gapn = n
                    if n - gapn < cfg["gapd"]: break
                    gapn = None
                if q[0].lstrip().startswith("buffer_"):
                    if n - lastv < cfg["vgap"]: break
                    lastv = n
                if q is wq_:
                    if wacc < 1 and P.cost(q[0]) > 0: break
                    wacc -= P.cost(q[0])
                x = q.pop(0); budget -= P.cost(x); P(x)
        if had and not fill: print("epilogue0 done at k", k)
    print('left: wd', len(wq_), 'fill', len(fill))
    P(urgent); P(wq_); P(fill)
    P.st("p1")
    P(" s_mov_b32 s4, 0xbfb8aa3b\n s_mov_b32 s5, 0xbfb8aa3b")
    big = []
    if MB < 56:
        if not cfg["bar_late"]: P(" s_barrier")
        for m in range(MB, 56): big.append("\n".join(wd_dma(m, sBIG, m - MB)))
    e1 = []; held = []
    for tt in range(4):
        for x in epi_tile(acc1+16*tt, 1, tt, acc1+16*tt, True):
            (held if (cfg["hold"] and x.lstrip().startswith("buffer_store")) else e1).append(x)
    pre = []
    for i in range(len(cfg["hh_at"]), 7): pre += hh_loads(0, i) + [f"MARK:hh0_{i}"]
    pre = FLAGLD + ["MARK:flag"] + pre + take(big, cfg["big_pre"])
    if cfg["pre_late"]: P(e1)
    else: interleave(P, e1, pre, cfg["big_every"])
    P(held)
    P(pre)
    if cfg["bar_late"] and MB < 56:
        assert cfg["big_pre"] == 0
        P(" s_barrier")
    P.big = big
    P.st("epi")
    P.st("ld0")

def red_consts():
    return L(f"""
 s_mul_i32 s3, {sW}, {REDW}
 v_add_u32 v12, s3, v6
 v_and_b32 v15, 7, v0
 v_lshrrev_b32 v13, 3, v0
 v_mul_u32_u24 v15, {BS}, v15
 v_lshl_add_u32 v13, v13, 4, v15
 v_add_u32 v14, {2*REDW}, v13""")
ACC2 = (48, 16)
def red_write(ups): return [f" ds_write_b128 v12, {vr(ACC2[ups]+4*blk,4)} offset:{(8*ups+blk)*BS}" for blk in range(8)]
def red_read(ups, b): return [f" ds_read_b128 {vr(b+8*w+4*h,4)}, {'v13' if w < 2 else 'v14'} offset:{ups*8*BS + h*512 + (w&1)*REDW}" for w in range(4) for h in range(2)]
def red_fin(ups, b, hx, pk, fl):
    o = []
    for (x, y) in ((0, b+8), (16, b+24), (0, hx), (0, b+16)):
        if pk:
            for i in range(4): o.append(f" v_pk_add_f32 {vr(b+x+2*i,2)}, {vr(b+x+2*i,2)}, {vr(y+2*i,2)}")
        else:
            for i in range(8): o.append(f" v_add_f32 v{b+x+i}, v{b+x+i}, v{y+i}")
    for i in range(4): o.append(f" v_cvt_pk_bf16_f32 v{b+16+i}, v{b+2*i}, v{b+2*i+1}")
    o.append(f" buffer_store_dwordx4 {vr(b+16,4)}, v{vOUT}, {srd('OUT')}, {sO0 if ups == 0 else sO1} offen {fl}")
    return o
def gemm2(P, cfg):
    order = [(0, i) for i in range(7)] + [(1, i) for i in range(7)]
    MB = cfg["wd_big"]
    issued = order[:7]
    sched = cfg["b1_at"]
    def chk(pos):
        u, i = order[pos]
        later = []
        for x in order[pos+1:]:
            if x in issued and x[0] == u: later += hh_loads(*x)
        if NOCHK[0] & 2: return [f"WAIT:hh{u}_{i}"] + (hashchain(HREG[(u,i)], 4)[:8] if NOCHK[0] & 4 else []) + ["GAP"]
        return [f"WAIT:hh{u}_{i}"] + retry_check(P, hashchain(HREG[(u,i)], CHH[(u,i)]), hh_loads(u, i), later, f"hh{u}_{i}", cfg["bo"])
    bigrd = []
    if MB < 56:
        P([f" s_sub_u32 s3, {sBIG}, {sRING}", f" v_add_u32 v{vWr[0]}, s3, v{vWr[0]}", f" v_add_u32 v{vWr[1]}, s3, v{vWr[1]}"])
        for m in range(MB, 56): bigrd += wd_read(m, m - MB)
    P(chk(0))
    hres = [f" buffer_load_dwordx4 {vr(vE,4)}, v{vOUT}, {WS}, {sHR0} offen sc1", f" buffer_load_dwordx4 {vr(vE+4,4)}, v{vOUT}, {WS}, {sHR1} offen sc1", "MARK:hres"]
    flag = [f" buffer_load_dword v3, v1, {WS}, {sFLld} offen sc1"]
    T0 = 112; HX = 48
    for pos, (u, i) in enumerate(order):
        fill = []
        h1 = poll(vPD, vPH, sPH1)
        p1st = min(sched)
        if pos == p1st - cfg["h1_lead"] and cfg["hh1"]: fill += [h1, "MARK:ph1"]
        if pos == p1st:
            if cfg["hh1"]: fill += ["WAIT:ph1"] + retry_check(P, pollcmp(vPD, 0x7f), [h1], [], "ph1", cfg["hbo"])
            else:
                P.tail += hint_spin("ip1", sPH1, "L_ip1b") + [" s_branch L_ip1b"]
                fill += [f" s_cmp_ge_u32 {sJL}, 7\n s_cbranch_scc1 L_ip1\nL_ip1b:"]
        for gi in sched.get(pos, []):
            x = (1, gi)
            prev = [y for y in order[:order.index(x)] if HREG[y] == HREG[x]]
            assert all(order.index(y) < pos for y in prev), x
            fill += hh_loads(*x) + [f"MARK:hh{x[0]}_{x[1]}"]; issued.append(x)
        if pos < 3:
            for x in take(P.big, cfg["big_per"]): fill += x.split("\n")
        if pos == cfg["hres_at"]: fill += ["WAIT:flag"] + retry_check(P, pollcmp(3, 3), FLAGLD[2:], [], "flag", cfg["bo"]) + HRESLD
        if pos == MB//8 - 1:
            assert not P.big
            fill += bigrd + [" s_waitcnt lgkmcnt(0)"]
        if pos == 7: fill += red_consts() + [" s_barrier"]
        if pos == 8: fill += red_write(0)
        if pos == 9: fill += [" s_waitcnt lgkmcnt(0)", " s_barrier"] + red_read(0, T0)
        if pos == 11:
            fill += ["WAIT:hres"]
            for k in range(8): fill += unpack(HX+2*k, vE+k)
            fill += [" s_waitcnt lgkmcnt(0)"]
        if pos == 12: fill += red_fin(0, T0, HX, False, cfg["outf"])[:24]
        if pos == 13: fill += red_fin(0, T0, HX, False, cfg["outf"])[24:]
        assert MB >= 32
        late = chk(pos+1) if pos+1 < len(order) else []
        n = 0
        for t in range(4):
            for tau in range(2):
                a = ACC2[u]+16*tau
                P(f" v_mfma_f32_32x32x16_bf16 {vr(a,16)}, {ar(((i*4+t)*2+tau)*4,4)}, {vr(HREG[(u,i)]+4*t,4)}, {'0' if (i == 0 and t == 0) else vr(a,16)}")
                n += 1
                if n <= cfg["g2_fill"]:
                    b = 5; nv = 0
                    while fill and b > 0:
                        if fill[0].lstrip().startswith("buffer_"):
                            if nv >= cfg["v2"]: break
                            nv += 1
                        b -= P.cost(fill[0]); P(fill.pop(0))
                else:
                    P(take(fill, 99))
                    if late and late[0] != "GAP":
                        k_ = late.index("GAP"); P(take(late, min(5, k_)))
        P(late)
        if pos == 6: P.st("b0")
    P.st("g2")
    P(red_write(1))
    P(" s_waitcnt lgkmcnt(0)\n s_barrier")
    P(red_read(1, 144))
    P(" s_waitcnt lgkmcnt(0)")
    P(red_fin(1, 144, HX+8, True, cfg["outf"]))

def build(cfg, stamps=False):
    P = G(stamps); P.cfg = cfg; WARM[0] = cfg['warm']; ROTX[0] = cfg['rotx']; NOCHK[0] = cfg.get('nochk', 0); M8[0] = cfg.get('m8', 0); NCHK[0] = cfg['nchk']; globals()['OB'] = cfg['ob']
    if cfg.get("dbg"): P.only = cfg["dbg"].split(",")
    entry(P, cfg)
    setupB = a_consts() + roles()
    P(take(setupB, cfg["nsetB"]))
    if cfg["f_at"] == 0: P(filter_dma(cfg))
    else: P(f""" v_and_b32 v4, 79, v0
 v_lshrrev_b32 v5, 2, v4
 v_and_or_b32 v4, v5, 16, v4
 v_and_b32 v4, 31, v4
 v_lshlrev_b32 v4, 7, v4
 buffer_load_dword v{vDUM}, v4, {srd('SSMK')}, {sF0} offen {cfg['fnt']}""")
    if cfg["x_at"] == 0: P(x_loads())
    if cfg["wt"] == 0: P(w_touch(cfg["wtnt"], cfg["wth"]))
    raw = []
    for m in range(cfg["nraw"]): raw += wd_raw(m)
    if cfg["wdc_at"] == -1: P(wd_consts(cfg['a8'])); P(take(raw, 2*cfg["rawE"]))
    P(tag_setup())
    P.st("pre")
    if cfg["ksplit"]:
        assert cfg["lord"][-2:] == [5, 6]
        P.marks["LK"] = P.marks["L1"] - 2; P.vmwait("LK")
    else: P.vmwait("L1")
    P.st("L1")
    p0_kv(P)
    P.mark("KV")
    P.st("kvst")
    if cfg["f_at"] == 1:
        if cfg["kbar"]: P(" s_barrier")
        P(filter_dma(dict(fnt="")))
    if cfg["x_at"] == 1: P(x_loads())
    P(take(raw, 2*cfg["raw0"]))
    P(setupB)
    P(conv_setup() + h1_addr() + w_table() + (wd_consts(cfg['a8']) if cfg["wdc_at"] != -1 else []))
    ng = cfg["g1"]
    early = []
    gp = cfg["gp"]
    for i in range(ng): early += w_pair(i, cfg["wnt"])[:(4 if i < gp else 2)]
    P(take(early, 2*cfg["w0"]))
    early += take(raw, 2*cfg["raw1"])
    if cfg["x_at"] == 2: early += x_loads()
    ap = ["WAIT:A", " s_barrier"] + a_prep(cfg['lazy'])
    P(take(ap, cfg["ap_pre"]))
    if cfg.get("kvw"): P(["WAIT:KV"] + ([" s_barrier"] if cfg["kvw"] == 2 else []))
    if cfg.get("dly1"): P(f" s_sleep {cfg['dly1']}")
    P.st("aprep")
    if cfg["ap_pre"] < 2: sh = take(ap, 2 - cfg["ap_pre"]) + early + ap
    else: sh = [" s_barrier"] + early + ap
    box_recv(P, vIN, "h1", cfg["bo"], sh, kv_perm())
    kv_to_lds(P)
    P.st("h1")
    wq = []
    for i in range(16):
        p = w_pair(i, cfg["wnt"])
        if i < gp: continue
        if i < ng: wq += [p[0] + "\n" + p[2], p[3]]
        else: wq += p
    nraw = cfg["nraw"]
    nwc = 2*cfg["wsched"][0][1]
    raw2 = raw[2*cfg["raw_c"]:]; raw = raw[:2*cfg["raw_c"]]
    wq = wq[:nwc] + raw + wq[nwc:]
    conv_mfma(P, wq, cfg["wsched"])
    assert not any("a[" in x for x in wq)
    print("W ops left after conv:", len(wq)//2)
    P.mark("RAWC")
    P.st("mfma")
    conv_epilogue(P)
    P.st("yst")
    P(" s_barrier")
    b3 = take(wq, 2*cfg["w3"]) + take(raw2, 2*cfg["raw3"])
    P.vmwait("X")
    interleave(P, stat_consts() + ln1(), b3, cfg["w3_every"])
    P(b3)
    P(h2_consts() + wd_rconsts(48))
    hc = hn_consts()
    if cfg["hc_at"] == 0: P(hc); hc = []
    nb1 = cfg["nb1"]
    assert 2*nb1 <= cfg["raw_c"] + cfg["rawE"] + cfg["raw0"] + cfg["raw1"]
    if nb1:
        P([f" v_add_u32 v48, {sRING}, v6", "WAIT:RAWC"])
        for u in range(nb1): P(bounce(u, 48))
    if cfg.get("dly2"): P(f" s_sleep {cfg['dly2']}")
    P.st("ln1")
    q4 = take(wq, 2*cfg["w4"]) + take(raw2, 2*cfg["raw4"])
    box_recv(P, vY, "h2", cfg["bo"], [" s_barrier"] + q4 + hc, [x for t in range(4) for x in unpack(80+2*t, vY+4*t)])
    P.st("h2")
    ln2(P, take(wq, 2*cfg["w5"]), cfg["w5_every"])
    if cfg["h_at"] == 0: P(HST)
    P.st("hnst")
    winl = []
    if cfg.get("wdrop"): wq = wq[:len(wq) - 2*cfg["wdrop"]]
    if cfg.get("winl"): winl = wq[len(wq) - 2*cfg["winl"]:]; wq = wq[:len(wq) - 2*cfg["winl"]]
    P(wq); P.mark("WALL"); P(raw2); P.mark("RAW")
    post = g_vconsts() + g_sconsts(56 - cfg["wd_big"])
    bn = [f" v_add_u32 v4, {sRING}, v6", "WAIT:RAW"]
    for u in range(nb1, nraw//2): bn += bounce(u, 4)
    if nraw//2 > nb1: post += bn + [" s_waitcnt lgkmcnt(0)"]
    post += ["WAIT:WALL", " s_barrier"]
    P(take(post, cfg["hn_at"]))
    if cfg.get("dly3"): P(f" s_sleep {cfg['dly3']}")
    assert cfg["hn_at"] >= 40 and cfg["h_at"] == 0 and cfg["nchk"] <= 8
    P(["WAIT:HST", FLAGST])
    P.st("g1go")
    hn3 = []
    for g in range(3): hn3 += hn_loads(g) + [f"MARK:hn{g}"]
    P([f" s_cmp_ge_u32 {sJL}, 7", " s_cbranch_scc1 L_sia_i"] + hn3 + ["L_sia:"])
    P.tail += ["L_sia_i:", " s_waitcnt vmcnt(0)", " s_branch L_sia"]
    P(winl)
    P(post)
    if cfg["h_at"] == 1: P(HST)
    P(f"""
 s_or_b32 s3, s2, {sW}
 s_cmp_lg_u32 s3, 0
 s_cbranch_scc1 L_notag
 v_lshlrev_b32 v4, 21, v6
 buffer_store_dword v{vTG}, v4, {WS}, 0 offen sc1
L_notag:
""")
    P.nvm -= 1
    d = rd = nraw
    for m in range(nraw): P.dmarks[f"wd{m}"] = 0
    P(f" s_cmp_ge_u32 {sJL}, 7\n s_cbranch_scc1 L_idle")
    save = (P.nvm, P.nds, P.vmdone, P.dsdone, dict(P.marks), dict(P.dmarks))
    MB = cfg["wd_big"]
    if cfg.get("nowd"): cfg["wd_big"] = MB = 56; d = rd = 56
    gemm1(P, cfg, wd_stream(d, rd, MB, cfg['adep']))
    P(" s_waitcnt lgkmcnt(0)\nL_join:")
    gemm2(P, cfg)
    if stamps:
        P(" s_waitcnt vmcnt(0)"); P.st("end")
        P(f" v_writelane_b32 v11, {sSPIN}, 63\n s_lshl_b32 s3, s2, 10\n s_add_u32 s3, s3, {STAMPS}\n v_lshlrev_b32 v1, 2, v0\n buffer_store_dword v11, v1, {WS}, s3 offen")
    P("L_end:\n s_endpgm")
    P.nvm, P.nds, P.vmdone, P.dsdone, P.marks, P.dmarks = save
    P("L_idle:")
    P([" s_waitcnt vmcnt(0)"])
    iw = wd_stream(d, rd, MB, cfg['idep'])
    P(take(iw, cfg["hw_at"]))
    if cfg["hwarm"]:
        P(f" v_lshlrev_b32 v16, 3, v6\n s_add_u32 s4, s{sHN+1}, 32768")
        for i in range(4): P(f" buffer_load_dword v17, v16, {WS}, s4 offen sc1\n s_add_u32 s4, s4, 8192")
    P(iw)
    for m in range(MB, min(56, MB + cfg["big_pre"])): P(wd_dma(m, sBIG, m - MB))
    for nm in ("hn0","p0","e0","p1","epi"): P.st(nm)
    P(hint_spin("ip0", sPH0, "L_ip0b") + ["L_ip0b:"])
    for i in range(7): P(hh_loads(0, i))
    P(FLAGLD)
    P(" s_waitcnt vmcnt(0) lgkmcnt(0)")
    P.st("ld0")
    P(" s_branch L_join")
    P(P.tail)
    P("L_codeend:")
    if os.environ.get("STAMP") == "2": P.lines = [l.replace("s_memrealtime", "s_memtime") for l in P.lines]
    if cfg.get("hack16"):
        out_ = []; i = 0; Ls = P.lines; cnt = {}
        while i < len(Ls):
            l = Ls[i]
            m = re.match(r" v_mfma_f32_32x32x16_bf16 v\[(\d+):\d+\], (\S+), (\S+), (\S+)", l)
            if not m or (cfg["hack16"] == 2 and int(m.group(1)) >= 80): out_.append(l); i += 1; continue
            d = int(m.group(1)); z = m.group(4) == "0"
            if z: cnt[d] = 0
            c = cnt[d]; cnt[d] = c + 1
            j = i + 1
            while j < len(Ls) and j - i <= 8 and "v_mfma" not in Ls[j]: j += 1
            fl = Ls[i+1:j]; h = (len(fl) + 1)//2 if len(fl) < 8 else 0
            b0 = int(re.match(r"v\[(\d+)", m.group(3)).group(1)) & ~7
            def mm(o, bb): return f" v_mfma_f32_16x16x32_bf16 v[{o}:{o+3}], {m.group(2)}, v[{bb}:{bb+3}], " + ("0" if c < 2 else f"v[{o}:{o+3}]")
            o = d + 8*(c & 1)
            out_ += [mm(o, b0)] + fl[:h] + [mm(o+4, b0+4)] + fl[h:]; i = j
        P.lines = out_
    if cfg.get("nont"): P.lines = [l.replace(" nt", "") if l.lstrip().startswith("buffer_load") else l for l in P.lines]
    body = P.fix()
    head = open("sequential_preLN__ssm_conv_h3__glu_gated_glu__prompt.s.ref").read().split("; Override launch")[0]
    out = head + f"; @launch grid=(256,1,1) block=(256,1,1) lds={LDS_BYTES}\n"
    out += f'.amdgcn_target "amdgcn-amd-amdhsa--gfx950"\n.text\n.globl {NAME}\n.p2align 8\n.type {NAME},@function\n{NAME}:\n' + body
    out += f""" s_endpgm
.section .rodata,"a"
.p2align 6
.amdhsa_kernel {NAME}
  .amdhsa_next_free_vgpr 512
  .amdhsa_next_free_sgpr 102
  .amdhsa_accum_offset 256
  .amdhsa_group_segment_fixed_size 0
  .amdhsa_kernarg_size 104
  .amdhsa_user_sgpr_count 2
  .amdhsa_user_sgpr_kernarg_segment_ptr 1
  .amdhsa_system_sgpr_workgroup_id_x 1
.end_amdhsa_kernel
"""
    if cfg.get("probe"):
        idx = P.stn.index(cfg["probe"])
        Q = G()
        Q(f"""
 s_cmp_ge_u32 s2, 1
 s_cbranch_scc1 L_pend
 s_load_dwordx2 s[48:49], s[0:1], 96
 s_mov_b32 s50, {WS_BYTES}
 s_mov_b32 s51, 0x20000
 v_lshlrev_b32 v1, 8, v0
 v_mov_b32 v2, 0
 s_waitcnt lgkmcnt(0)
 s_mov_b32 s3, {STAMPS}
 buffer_load_dword v3, v2, s[48:51], s3 offen
 v_mov_b32 v4, 0x7fffffff
 v_mov_b32 v5, {0 if cfg.get('pmean') else 0x80000000}
 s_mov_b32 s4, {16 if (cfg['probe'] == 'end' and not cfg.get('pmean')) else 14}
L_pl:
 buffer_load_dword v6, v1, s[48:51], s3 offen
 buffer_load_dword v7, v1, s[48:51], s3 offen offset:{4*idx}
 s_waitcnt vmcnt(0)
 v_sub_u32 v6, v6, v3
 v_sub_u32 v7, v7, v3
 v_min_i32 v4, v4, v6
 {'v_add_u32' if cfg.get('pmean') else 'v_max_i32'} v5, v5, v7
 s_add_u32 s3, s3, 16384
 s_sub_u32 s4, s4, 1
 s_cmp_lg_u32 s4, 0
 s_cbranch_scc1 L_pl
 s_mov_b32 s5, 0x7fffffff
 s_mov_b32 s6, {0 if cfg.get('pmean') else 0x80000000}
 s_mov_b32 s4, 0
L_pr:
 v_readlane_b32 s7, v4, s4
 v_readlane_b32 s8, v5, s4
 s_nop 1
 s_min_i32 s5, s5, s7
 {'s_add_u32' if cfg.get('pmean') else 's_max_i32'} s6, s6, s8
 s_add_u32 s4, s4, 1
 s_cmp_lg_u32 s4, 64
 s_cbranch_scc1 L_pr
 {'s_mul_hi_u32 s6, s6, 4793490' if cfg.get('pmean') else 's_nop 0'}
 s_sub_u32 s6, s6, s5
 s_min_u32 s6, s6, 10000
 s_mul_i32 s6, s6, {cfg.get('pmul', 10)}
 s_memrealtime s[10:11]
 s_waitcnt lgkmcnt(0)
L_ps:
 s_memrealtime s[12:13]
 s_waitcnt lgkmcnt(0)
 s_sub_u32 s7, s12, s10
 s_cmp_lt_u32 s7, s6
 s_cbranch_scc1 L_ps
L_pend:
 s_endpgm
""")
        out = out.replace(f"; @launch grid=(256,1,1) block=(256,1,1) lds={LDS_BYTES}\n", f"; @launch kernel={NAME} grid=(256,1,1) block=(256,1,1) lds={LDS_BYTES}\n; @launch kernel=probe_kernel grid=(1,1,1) block=(64,1,1) lds=0\n")
        out = out.replace('.section .rodata,"a"', '.globl probe_kernel\n.p2align 8\n.type probe_kernel,@function\nprobe_kernel:\n' + Q.fix() + '.section .rodata,"a"')
        kd = out[out.index(".p2align 6\n.amdhsa_kernel"):]
        out += kd.replace(NAME, "probe_kernel").replace("vgpr 512", "vgpr 16").replace("offset 256", "offset 16")
    return out, P
CFG = dict(bar_late=1, raw0=0, raw1=0, nraw=8, raw_c=8, nb1=3, h_early=1, pre_late=1, big_per=6, v2=2, g1=4, w4=6, mw_at=4, nwarm=6, warm=0, lazy=4, vgap=1, wt=9, wtnt="", wth=0, a8=0, can1=0, can2=0, cmask=0x00010001, cbo=6, hnh=0, hn_nh=16, hn_hint_at=999, hbo=8, ap_pre=140, wsched=[(1,2,1),(20,8,5)],
           f_at=0, kbar=1, fnt2="", pf_after="SHK", nsetB=0, fnt="nt", x_at=0, wdm=0, wdc_at=0, bo=4, wnt="", w3=4, w3_every=4, wd3=0, wd_pre=0, wd_first=1, im=0,
           w5=0, w5_every=2, wd_rate=(0.8,0.9), wd_big=44, slots=(6,6), big_pre=0, big_every=8, outf="", dly3=0, dly2=0, hold=0,
           e0_exp=4, hhh=0, h0_k=12, hh_at={17:0, 20:1, 23:2, 26:3, 29:4}, hh1=0, h1_lead=2, b1_at={5:[0,1],6:[2,3],7:[4],8:[5],9:[6]}, hres_at=3)
if __name__ == "__main__":
    cfg = dict(CFG)
    for a in sys.argv[2:]:
        k, v = a.split("=", 1); cfg[k] = eval(v)
    out, P = build(cfg, bool(os.environ.get("STAMP")))
    open(sys.argv[1], "w").write(out)
    if os.environ.get("STAMP"): open(sys.argv[1] + ".names", "w").write(" ".join(P.stn))
    print("lines", len(P.lines), "nops", P.nops)
```

```python
import sys, os, re
sys.path.insert(0, "gen")
from asmlib import Prog

NAME = "sequential_preLN__ssm_conv_h3__glu_gated_glu__prompt_kernel"
TAGSLOT = 0
HC    = 0x080000
FL    = 0x0C0000
HI    = 0x1580000
OB    = 16640
KVBOX = 0x100000
YBOX  = 0x520000
HN    = 0x940000
HRES  = 0xB40000
HH    = 0xD40000
GS    = 4480
STAMPS = 0x1600000
WS_BYTES = 0x1700000
SRD = dict(X=8, K=12, V=16, SHK=20, SSMK=24, SSMD=28, WG=32, WU=36, WD=40, OUT=44, WS=48)
KOFF = dict(X=0, K=8, V=16, SHK=24, SSMK=32, SSMD=40, WG=56, WU=64, WD=72, OUT=80, WS=96)
SIZE = dict(X=2097152, K=2097152, V=2097152, SHK=4096, SSMK=2097152, SSMD=1024, WG=1835008, WU=1835008, WD=1835008, OUT=2097152, WS=WS_BYTES)
def srd(n): return f"s[{SRD[n]}:{SRD[n]+3}]"
WS = srd("WS")
sHNst, sWM, sBIG, sRING, sW, sFLst, sFLld, sG, sJ, sTAG, sLO, sHI, sMASK, sHRES, sT = [f"s{i}" for i in range(52, 67)]
sJL, sO0, sO1, sHS0, sHS1, sSB, sHCst, sE, sSPIN, sHR0, sHR1, sPH1, sL3 = [f"s{i}" for i in range(67, 80)]
sWD = 80
sHC = 87
sPH0, sP, sF0 = "s95", "s96", "s97"
sC = sP
sWT = 12
sHL = 16
sHN = 8
def vr(b, n): return f"v[{b}:{b+n-1}]" if n > 1 else f"v{b}"
def ar(b, n): return f"a[{b}:{b+n-1}]" if n > 1 else f"a{b}"
def L(text): return [l for l in text.split("\n") if l.strip()]
def take(l, n):
    o = l[:n]; del l[:n]; return o

WGB, WUB = 0, 65536
PART = 131072; FC = 131072 + 9216; CS2 = 4160
KVR = 131072; KVCH = 4608
RING = 131072; NR = 7
STAT = 163840 - 512
BS = 1088; REDW = 16*BS
LDS_BYTES = 163840
SPIN = 20000

class G(Prog):
    def __init__(self, stamps=False):
        super().__init__(); self.nvm = 0; self.nds = 0; self.vmdone = 0; self.dsdone = 0
        self.marks = {}; self.dmarks = {}; self.stamps = stamps; self.tail = []; self.only = None; self.stn = ["start"]
    def __call__(self, text):
        if isinstance(text, list):
            for t in text: self(t)
            return
        for l in text.split("\n"):
            s = l.strip()
            if not s: continue
            if s.startswith("WAIT:"): self.vmwait(s[5:]); continue
            if s.startswith("MARK:"): self.mark(s[5:]); continue
            if s.startswith("DWAIT:"): self.dwait(s[6:]); continue
            if s.startswith("DMARK:"): self.dmarks[s[6:]] = self.nds; continue
            if s in ("SKIP", "GAP"): continue
            if s.startswith(("buffer_", "global_")): self.nvm += 1
            if s.startswith("ds_"): self.nds += 1
            if s.startswith("s_waitcnt"):
                m = re.search(r"vmcnt\((\d+)\)", s)
                if m: self.vmdone = max(self.vmdone, self.nvm - int(m.group(1)))
                m = re.search(r"lgkmcnt\((\d+)\)", s)
                if m: self.dsdone = max(self.dsdone, self.nds - int(m.group(1)))
            self.lines.append(l.rstrip())
    def mark(self, name): self.marks[name] = self.nvm
    def vmwait(self, name):
        if self.vmdone < self.marks[name]: self(f" s_waitcnt vmcnt({min(self.nvm - self.marks[name], 63)})")
    def dwait(self, name):
        if self.dsdone < self.dmarks[name]: self(f" s_waitcnt lgkmcnt({min(self.nds - self.dmarks[name], 15)})")
    def cost(self, s):
        t = s.strip()
        if t.startswith(("MARK:", "DMARK:")): return 0
        if t.startswith("WAIT:"): return 0 if self.vmdone >= self.marks[t[5:]] else 1
        if t.startswith("DWAIT:"): return 0 if self.dsdone >= self.dmarks[t[6:]] else 1
        if t == "SKIP": return 3
        if t == "GAP": return 0
        if t.startswith("s_cbranch"): return 2
        if t.startswith(("v_exp", "v_rcp")): return 2
        return 1
    def st(self, i):
        j = getattr(self, "cfg", {}).get("jit")
        if j and i in ("L1","h1","mfma","h2","g1go","p0","p1","b0","ln1","hn0","e0","epi"):
            self.jn = getattr(self, "jn", 0) + 1
            k = (j*2654435761 + self.jn*40503) & 0x7fffffff
            self.lines += [f" s_lshl_b32 s98, s2, 2", f" s_add_u32 s98, s98, {sW}" if j & 1 else " s_nop 0", f" s_add_u32 s98, s98, {k & 0xffff}", f" s_mul_i32 s98, s98, {k | 1}", " s_lshr_b32 s98, s98, 13", " s_and_b32 s98, s98, 15",
                           " s_cmp_lg_u32 s98, 3", f" s_cbranch_scc1 L_jit{self.jn}", " s_sleep 127", " s_sleep 64", f"L_jit{self.jn}:"]
        if self.stamps and (self.only is None or i in self.only):
            if i not in self.stn: self.stn.append(i)
            self.lines += [" s_memrealtime s[98:99]", " s_waitcnt lgkmcnt(0)", f" v_writelane_b32 v11, s98, {self.stn.index(i)}", f" v_writelane_b32 v11, {sSPIN}, {32+self.stn.index(i)}"]
def interleave(P, work, bulk, every):
    n = 0
    for wk in work:
        P(wk); n += 1
        if bulk and n % every == 0: P(bulk.pop(0))

vK, vW, vV, vKS, vT = 144, 164, 180, 188, 204
vD, vQ, vX = 220, 224, 240
vBB = [8, 10, 248, 249]
vSW, vDUM, vR, vWD = 250, 251, 252, 254
vWr = (8, 255)
vA, vAx, vB, vIN, aC = 16, 208, 144, 160, 224
vSEL = 216
vq, vu1 = 208, 224
vONE, vTG, vC, vHC, vHC1, vPH, vHASH, vL2, vOUT, vPD, vHP = 7, 10, 2, 248, 249, 220, 222, 223, 9, 5, 224
vHN, vRa = 16, 12
acc0, acc1, acc2, vE = 80, 144, 16, 240
CHN = [208, 209, 210, 211]
CHH = {(0,i): 212+i for i in range(7)}
CHH.update({(1,0):208,(1,1):209,(1,2):210,(1,3):211,(1,4):219,(1,5):221,(1,6):212})
HREG = {(0,0):224, (0,1):80, (0,2):96, (0,3):112, (0,4):128, (0,5):16, (0,6):32,
        (1,0):144, (1,1):160, (1,2):176, (1,3):192, (1,4):224, (1,5):80, (1,6):96}

def srdc(names): return [x for n in names for x in (f" s_mov_b32 s{SRD[n]+2}, {SIZE[n]}", f" s_mov_b32 s{SRD[n]+3}, 0x20000")]
def entry(P, cfg):
    P(" s_cmp_ge_u32 s2, 256\n s_cbranch_scc1 L_end")
    if P.stamps: P(" s_memrealtime s[98:99]")
    if cfg["xorb"]: P(f" s_xor_b32 s2, s2, {cfg['xorb']}")
    sl = lambda n: f" s_load_dwordx2 s[{SRD[n]}:{SRD[n]+1}], s[0:1], {KOFF[n]}"
    pf = L(f"""
 s_getpc_b64 s[100:101]
L_pc:
 s_bfe_u32 s3, s2, 0x20003
 s_mul_i32 s3, s3, 12288
 v_lshlrev_b32 v12, 7, v0
 v_add_u32 v13, s3, v12
 v_cmp_gt_u32 vcc, 32, v0
 v_cndmask_b32 v12, v13, v12, vcc
 v_min_u32 v12, L_codeend-L_pc-4, v12
 v_cmp_gt_u32 vcc, 128, v0
 s_and_saveexec_b64 s[6:7], vcc
 s_cbranch_execz L_nopf
 global_load_dword v{vDUM}, v12, s[100:101]
L_nopf:
 s_mov_b64 exec, s[6:7]""")
    pf2 = L(f"""
 s_getpc_b64 s[100:101]
L_pc:
 s_bfe_u32 s3, s2, 0x30003
 s_lshl_b32 s3, s3, 2
 v_lshrrev_b32 v12, 6, v0
 v_add_u32 v12, s3, v12
 v_mul_u32_u24 v12, {cfg['pfl']}, v12
 v_and_b32 v13, 63, v0
 v_min_u32 v13, {cfg['pfl']-1}, v13
 v_add_lshl_u32 v12, v12, v13, 7
 v_min_u32 v12, L_codeend-L_pc-4, v12
 global_load_dword v{vDUM}, v12, s[100:101]""")
    if cfg["pfl"]: pf = pf2
    first = ("K","V","SHK","WS","SSMK","X","SSMD") if cfg["sl_late"] else ("K","V","SHK","WS","SSMK","X","SSMD","WD","WG","WU","OUT")
    rest = [sl(n) for n in ("WD","WG","WU","OUT")] if cfg["sl_late"] else []
    for n in first:
        P(sl(n))
        if n == "SHK" and cfg["pf_at"] == 0: P(pf)
    P(f"""
 s_and_b32 s3, s2, 7
 s_lshl_b32 s3, s3, 5
 s_lshr_b32 {sP}, s2, 3
 s_or_b32 {sP}, {sP}, s3
 v_and_b32 v1, 3, v0
 v_lshrrev_b32 v2, 2, v0
 s_lshl_b32 s3, {sP}, 13
 v_lshlrev_b32 v3, 11, v1
 v_lshl_add_u32 v3, v2, 4, v3
 v_add_u32 v3, s3, v3
 v_subrev_u32 v4, 3072, v3
 v_subrev_u32 v5, 2048, v3
 v_subrev_u32 v8, 1024, v3
 v_lshlrev_b32 v9, 4, v0
""")
    P(srdc(("K","V","SHK")))
    pre2 = L(f"""
 v_lshrrev_b32 v6, 6, v0
 s_nop 0
 v_readfirstlane_b32 {sW}, v6
 v_and_b32 v6, 63, v0
 v_lshlrev_b32 v6, 4, v6
 s_lshl_b32 {sF0}, {sC}, 1
 s_lshr_b32 s7, {sW}, 1
 s_add_u32 {sF0}, {sF0}, s7
 s_lshl_b32 {sF0}, {sF0}, 12
 s_mul_i32 s7, {sW}, {CS2}
 s_add_u32 s7, s7, {FC}
 v_mov_b32 v12, 0
 s_and_b32 s3, {sW}, 1
 s_sub_u32 s4, 7, s3
 v_and_b32 v14, 7, v0
 v_min_u32 v14, s4, v14
 v_lshl_add_u32 v13, v14, 2, s7
 ds_write_b32 v13, v12
 s_lshl_b32 s3, s3, 2
 s_sub_u32 {sBIG}, s7, s3
 s_mul_i32 s4, {sP}, {OB}
 s_add_u32 s4, s4, {KVBOX}
 s_add_u32 s5, s4, 4096
 s_add_u32 s6, s4, 8192
 s_add_u32 s7, s4, 12288
 s_mov_b32 {sLO}, 0x05040100
 s_mov_b32 {sHI}, 0x07060302
 s_mov_b32 {sMASK}, 0xffff0000
 s_mov_b32 {sSPIN}, {SPIN if P.stamps else 400000}
 v_lshlrev_b32 v7, 4, v2""") + srdc(("SSMK","WS","X","SSMD","WD")) + [f" v_mov_b32 v{vKS+i}, 0" for i in range(16)]
    if not cfg["pre2_late"]: P(pre2)
    if P.stamps: P(f" s_mov_b32 {sSPIN}, {SPIN}")
    if P.stamps: P(" v_mov_b32 v11, 0\n s_waitcnt lgkmcnt(0)\n v_writelane_b32 v11, s98, 0"); P.st("karg")
    lds_ = [f" buffer_load_dwordx4 {vr(vK,4)}, v4, {srd('K')}, 0 offen nt", f" buffer_load_dwordx4 {vr(vK+4,4)}, v5, {srd('K')}, 0 offen nt", f" buffer_load_dwordx4 {vr(vK+8,4)}, v8, {srd('K')}, 0 offen nt", f" buffer_load_dwordx4 {vr(vK+12,4)}, v3, {srd('K')}, 0 offen nt", f" buffer_load_dwordx4 {vr(vK+16,4)}, v3, {srd('K')}, 0 offen offset:1024 nt", f" buffer_load_dwordx4 {vr(vV,4)}, v3, {srd('V')}, 0 offen nt", f" buffer_load_dwordx4 {vr(vV+4,4)}, v3, {srd('V')}, 0 offen offset:1024 nt", f" buffer_load_dwordx4 {vr(vW,4)}, v9, {srd('SHK')}, 0 offen"]
    ORD = "\n".join(lds_[i] for i in cfg["lord"])
    P(f"""
 s_waitcnt lgkmcnt(0)
{ORD}
MARK:L1
 s_load_dword {sTAG}, s[{SRD['WS']}:{SRD['WS']+1}], {TAGSLOT}
""")
    if cfg["pf_at"] == 1:
        assert cfg["pfl"]
        P(pf)
    P(rest)
    if cfg["pre2_late"]: P(pre2)
def filter_dma(cfg):
    return [f" s_add_u32 m0, {sBIG}, 32"] + [f" buffer_load_dwordx4 v6, {srd('SSMK')}, {sF0} offen offset:{1024*i} lds" for i in range(4)] + ["MARK:A"]
def x_loads():
    return [f" buffer_load_dwordx4 {vr(vX,4)}, v3, {srd('X')}, 0 offen nt",
            f" buffer_load_dwordx4 {vr(vX+4,4)}, v3, {srd('X')}, 0 offen offset:1024 nt",
            f" buffer_load_dwordx4 {vr(vD,4)}, v7, {srd('SSMD')}, 0 offen", "MARK:X"]
def tag_setup():
    return [" s_waitcnt lgkmcnt(0)", f" s_add_u32 {sTAG}, {sTAG}, 0x9E3779B1"] + [f" v_mov_b32 v{vQ+2*t+1}, {sTAG}" for t in range(8)]
def p0_kv(P):
    Krow = lambda i, d: vK + 4*i + d
    prs = [(3,2),(1,0),(4,3),(2,1)]
    for t in range(4):
        T = vT + 8*(t & 1)
        for c in range(2):
            for n,(x,y) in enumerate(prs):
                P(f" v_perm_b32 v{T+4*c+n}, v{Krow(y,t)}, v{Krow(x,t)}, {sHI if c else sLO}")
        ks = vKS + 4*t
        qp = f"quad_perm:[{t},{t},{t},{t}] row_mask:0xf bank_mask:0xf"
        for hi in (1, 0):
            for c in range(2):
                P(f" v_dot2c_f32_bf16_dpp v{ks+c}, v{vW+2*c+hi}, v{T+4*c+hi} {qp}")
                P(f" v_dot2c_f32_bf16_dpp v{ks+2+c}, v{vW+2*c+hi}, v{T+4*c+2+hi} {qp}")
        P(f""" v_lshlrev_b32 v{T}, 16, v{vV+t}
 v_and_b32 v{T+1}, {sMASK}, v{vV+t}
 v_lshlrev_b32 v{T+2}, 16, v{vV+4+t}
 v_and_b32 v{T+3}, {sMASK}, v{vV+4+t}
 v_pk_mul_f32 {vr(ks,2)}, {vr(ks,2)}, {vr(T,2)}
 v_pk_mul_f32 {vr(ks+2,2)}, {vr(ks+2,2)}, {vr(T+2,2)}
 v_cvt_pk_bf16_f32 v{vQ+4*t}, v{ks}, v{ks+1}
 v_cvt_pk_bf16_f32 v{vQ+4*t+2}, v{ks+2}, v{ks+3}
 buffer_store_dwordx4 {vr(vQ+4*t,4)}, v9, {WS}, s{4+t} offen sc1""")
def wd_mall():
    return L(f""" s_lshl_b32 s100, s2, 2
 s_add_u32 s100, s100, {sW}
 s_mul_i32 s100, s100, 1792
 v_lshlrev_b32 v4, 3, v6
 v_min_u32 v4, {13*128}, v4
 buffer_load_dword v{vDUM}, v4, {srd('WD')}, s100 offen""")
def idle_mall(name, nx):
    per = 112*(8//nx)
    o = L(f""" s_cmp_lt_u32 {sJL}, 7
 s_cbranch_scc1 L_{name}
 s_and_b32 s100, s2, {nx-1}
 s_lshl_b32 s100, s100, 2
 s_add_u32 s100, s100, {sL3}
 s_lshl_b32 s100, s100, 2
 s_add_u32 s100, s100, {sW}
 s_mul_i32 s100, s100, {per*128}
 v_lshlrev_b32 v4, 3, v6
 v_min_u32 v4, {55*128}, v4""")
    for i in range(per//56): o += [f" buffer_load_dword v{vDUM}, v4, {srd('WD')}, s100 offen", f" s_add_u32 s100, s100, {56*128}"]
    return o + [f"L_{name}:"], per//56
def w_touch(nt, half):
    o = L(f""" s_lshl_b32 s100, {sL3}, 7
 s_and_b32 s3, s2, 1
 s_lshl_b32 s3, s3, 6
 s_add_u32 s100, s100, s3
 s_lshl_b32 s3, {sW}, {4 if half else 5}
 s_add_u32 s100, s100, s3
 v_and_b32 v4, {15 if half else 31}, v0
 v_add_u32 v4, s100, v4
 v_and_b32 v4, 511, v4
 v_mul_u32_u24 v4, 3584, v4
 s_lshl_b32 s100, {sJ}, 7
 buffer_load_dword v{vDUM}, v4, {srd('WG')}, s100 offen {nt}
 buffer_load_dword v{vDUM}, v4, {srd('WU')}, s100 offen {nt}""")
    return o
def a_consts():
    return L(f"""
 v_and_b32 v4, 15, v0
 v_add_u32 v4, 1, v4
 v_bfe_u32 v15, v4, 1, 1
 v_mul_u32_u24 v15, {CS2}, v15
 v_lshrrev_b32 v4, 2, v4
 v_lshl_add_u32 v15, v4, 3, v15
 v_bfe_u32 v4, v0, 4, 3
 v_lshl_add_u32 v15, v4, 6, v15
 s_lshr_b32 s3, {sW}, 1
 s_mul_i32 s3, s3, {2*CS2}
 s_add_u32 s3, s3, {FC}
 v_add_u32 v15, s3, v15
 v_and_b32 v12, 1, v0
 v_mul_u32_u24 v12, 0x020202, v12
 v_lshl_or_b32 v12, v12, 8, v12
 v_sub_u32 v12, 0x05040302, v12""")
def a_perm(a, i):
    nxt = vA+16*a+i+1 if i < 15 else vAx+a
    return f" v_perm_b32 v{vA+16*a+i}, v{nxt}, v{vA+16*a+i}, v{vSEL}"
def a_prep(lazy):
    def rd(a): return [f" ds_read2_b64 {vr(vA+16*a+4*bb,4)}, v{15 if a < 4 else 12} offset0:{64*(a&3)+2*bb} offset1:{64*(a&3)+2*bb+1}" for bb in range(4)] + [f" ds_read_b32 v{vAx+a}, v15 offset:{512*a+64}", f"DMARK:a{a}"]
    o = [f" v_mov_b32 v{vSEL}, v12", " v_add_u32 v12, 2048, v15"] + rd(0) + rd(1)
    for a in range(8):
        if a+2 < 8: o += rd(a+2)
        o.append(f"DWAIT:a{a}")
        for i in range(4*lazy): o.append(a_perm(a, i))
    return o
def roles():
    t = 168
    o = L(f"""
 s_bfe_u32 {sL3}, s2, 0x20003
 s_lshr_b32 {sJL}, s2, 5
 s_and_b32 s3, s2, 1
 s_lshl_b32 s3, s3, 2
 s_add_u32 {sG}, s3, {sL3}
 s_bfe_u32 s3, s2, 0x20001
 s_mul_i32 s3, s3, 7
 s_add_u32 {sJ}, s3, {sJL}
 s_cmp_ge_u32 {sJL}, 7
 s_cselect_b32 s{SRD['WG']+2}, 0, {SIZE['WG']}
 s_mov_b32 s{SRD['WG']+3}, 0x20000
 s_mov_b32 s{SRD['WU']+2}, s{SRD['WG']+2}
 s_mov_b32 s{SRD['WU']+3}, 0x20000
 v_bfe_u32 v{t+1}, v0, 3, 3
 v_and_b32 v{t+3}, 7, v0
 v_mul_u32_u24 v{t+2}, 3584, v{t+1}
 v_and_b32 v{t+4}, 2, v{t+1}
 v_xor_b32 v{t+5}, v{t+3}, v{t+4}
 s_lshl_b32 s3, {sJ}, 7
 v_add_u32 v{t+2}, s3, v{t+2}
 v_lshl_add_u32 v{vR}, v{t+5}, 4, v{t+2}
 v_xor_b32 v{t+5}, 4, v{t+5}
 v_lshl_add_u32 v{vR+1}, v{t+5}, 4, v{t+2}
 v_lshlrev_b32 v{t+4}, 1, v{t+4}
 v_xor_b32 v{t+3}, v{t+3}, v{t+4}
 v_lshlrev_b32 v{t+1}, 10, v{t+1}
 v_lshl_add_u32 v{vWD}, v{t+3}, 4, v{t+1}""")
    return o
def w_table():
    o = L(f""" s_lshl_b32 s100, {sL3}, 4
 s_and_b32 s3, s2, 1
 s_lshl_b32 s3, s3, 3
 s_add_u32 s100, s100, s3
 s_add_u32 s100, s100, {sW}
 s_lshl_b32 s3, {sJL}, 3
 s_sub_u32 {sWM}, s100, s3
 s_lshl_b32 {sWM}, {sWM}, 10""")
    for idx in range(16): o += [f" s_add_u32 s3, s100, {4*idx}", " s_and_b32 s3, s3, 63", f" s_mul_i32 s{sWT+idx}, s3, {8*3584}"]
    return o
def w_pair(idx, nt):
    return [f" s_add_u32 s101, {sWM}, {idx*4096}\n s_and_b32 m0, s101, 0xffff", f" buffer_load_dwordx4 v{vR}, {srd('WG')}, s{sWT+idx} offen {nt} lds",
            f" s_add_u32 m0, m0, 65536", f" buffer_load_dwordx4 v{vR+1}, {srd('WU')}, s{sWT+idx} offen {nt} lds"]
def conv_setup():
    t = 176
    o = L(f"""
 v_mov_b32 v{t}, 0
 v_and_b32 v13, 127, v0
 v_lshlrev_b32 v13, 2, v13
 v_lshrrev_b32 v14, 7, v0
 v_mul_u32_u24 v14, {KVCH}, v14
 s_mov_b32 s3, {KVR+4096}
 v_add3_u32 v13, v13, v14, s3
 ds_write_b32 v13, v{t}
 v_and_b32 v13, 15, v0
 v_lshlrev_b32 v13, 5, v13
 v_bfe_u32 v14, v0, 4, 3
 v_lshlrev_b32 v14, 6, v14
 v_sub_u32 v14, v14, v13
 v_add_u32 v14, 480, v14
 s_lshr_b32 s3, {sW}, 1
 s_mul_i32 s3, s3, {KVCH}
 s_add_u32 s3, s3, {KVR}""")
    for bb in range(4):
        o += L(f""" v_add_u32 v13, {16*bb}, v14
 v_lshrrev_b32 v{t+1}, 4, v13
 v_and_b32 v{t+1}, 16, v{t+1}
 v_xor_b32 v13, v13, v{t+1}
 v_add_u32 v{vBB[bb]}, s3, v13""")
    o += L(f"""
 v_lshlrev_b32 v13, 2, v0
 v_sub_u32 v13, 1020, v13
 v_lshrrev_b32 v{t+1}, 4, v13
 v_and_b32 v{t+1}, 16, v{t+1}
 v_xor_b32 v13, v13, v{t+1}
 v_add_u32 v13, {KVR}, v13
 v_mul_u32_u24 v14, {OB}, v2
 v_lshl_add_u32 v14, v1, 4, v14""")
    return o
def h1_addr():
    return L(f"""
 s_and_b32 s4, {sC}, 3
 s_lshl_b32 s4, s4, 12
 s_lshr_b32 s3, {sC}, 2
 s_lshl_b32 s3, s3, 6
 s_add_u32 s4, s4, s3
 s_add_u32 s4, s4, {KVBOX}
 s_add_u32 s5, s4, {64*OB}
 s_add_u32 s6, s4, {128*OB}
 s_add_u32 s7, s4, {192*OB}""")
def box_recv(P, base, name, sleep, shadow=None, spec=()):
    lds = [f" buffer_load_dwordx4 {vr(base+4*i,4)}, v14, {WS}, s{4+i} offen sc1" for i in range(4)]
    P(lds); P.mark(name)
    if shadow: P(shadow)
    P.vmwait(name)
    P(f"L_{name}:")
    P(f" v_xor_b32 v4, {sTAG}, v{base+1}")
    for i in range(1, 8): P(f" v_bitop3_b32 v4, v4, v{base+2*i+1}, {sTAG} bitop3:0xf6")
    P(f" v_cmp_ne_u32 vcc, 0, v4\n s_mov_b64 exec, -1")
    P(list(spec))
    P(f" s_cbranch_vccnz L_{name}_r\nL_{name}_ok:")
    P.tail += L(f"""L_{name}_r:
 s_mov_b64 exec, vcc
 s_sleep {sleep}""") + lds + L(f""" s_waitcnt vmcnt(0)
 s_sub_u32 {sSPIN}, {sSPIN}, 1
 s_cbranch_scc0 L_{name}
 s_mov_b32 {sSPIN}, 0
 s_mov_b64 exec, -1
 s_branch L_{name}_ok""")
def canary_issue(cfg, stride):
    m = cfg["cmask"]
    return L(f"""
 s_bfe_u32 {sT}, {sP}, 0x20003
 s_mul_i32 {sT}, {sT}, {stride}
 s_add_u32 {sT}, {sT}, s4
 s_bfe_u32 s3, {sP}, 0x20001
 s_lshl_b32 s3, s3, 2
 s_mov_b32 s100, {m}
 s_mov_b32 s101, {m}
 s_lshl_b64 s[100:101], s[100:101], s3
 v_mov_b32 v7, {sTAG}
 s_mov_b64 exec, s[100:101]
 buffer_load_dword v7, v14, {WS}, {sT} offen offset:4 sc1
 s_mov_b64 exec, -1
MARK:can""")
def canary_check(P, name, sleep):
    P.tail += L(f"""L_{name}_r:
 s_sub_u32 {sSPIN}, {sSPIN}, 1
 s_cbranch_scc1 L_{name}_x
 s_mov_b64 exec, vcc
 s_sleep {sleep}
 buffer_load_dword v7, v14, {WS}, {sT} offen offset:4 sc1
 s_mov_b64 exec, -1
 s_waitcnt vmcnt(0)
 v_cmp_ne_u32 vcc, {sTAG}, v7
 s_cbranch_vccnz L_{name}_r
 s_branch L_{name}_b
L_{name}_x:
 s_mov_b32 {sSPIN}, 0
 s_branch L_{name}_b""")
    return ["WAIT:can", f" v_cmp_ne_u32 vcc, {sTAG}, v7", f" s_cbranch_vccnz L_{name}_r", f"L_{name}_b:"]
KP = 176
def kv_perm(): return [f" v_perm_b32 v{KP+2*i+c}, v{vIN+4*i}, v{vIN+4*i+2}, {sHI if c else sLO}" for i in range(4) for c in range(2)]
def kv_to_lds(P):
    for i in range(4): P(f" ds_write2st64_b32 v13, v{KP+2*i}, v{KP+2*i+1} offset0:{(3-i)*4} offset1:{(3-i)*4+KVCH//256}")
    P(" s_waitcnt lgkmcnt(0)\n s_barrier")
QD = 144
def conv_epi_consts():
    return L(f"""
 v_bfe_u32 v13, v0, 4, 2
 v_lshlrev_b32 v14, 6, v13
 v_xor_b32 v13, v14, v6
 s_lshl_b32 s3, {sW}, 13
 s_add_u32 s3, s3, {PART}
 v_add_u32 v13, s3, v13
 v_bfe_u32 v15, v0, 1, 2
 v_bfe_u32 v14, v0, 3, 4
 v_lshlrev_b32 v12, 2, v15
 v_xor_b32 v14, v14, v12
 v_lshlrev_b32 v14, 4, v14
 v_lshl_add_u32 v14, v15, 8, v14
 v_lshrrev_b32 v15, 7, v0
 v_lshl_add_u32 v14, v15, 10, v14
 v_and_b32 v15, 1, v0
 v_lshl_add_u32 v14, v15, 3, v14
 v_add_u32 v14, {PART}, v14
 s_mul_i32 s4, {sC}, {OB}
 s_add_u32 s4, s4, {YBOX}
 s_add_u32 s5, s4, 4096
 s_add_u32 s6, s4, 8192
 s_add_u32 s7, s4, 12288""")
def conv_mfma(P, bulk, sched):
    lazy = P.cfg['lazy']
    def rd(bb): return [f" ds_read_b128 {vr(vB+32*(bb&1)+4*d,4)}, v{vBB[bb]} offset:{(7-d)*512}" for d in range(8)]
    def mf(j, a, bb, first): P(f" v_mfma_f32_16x16x32_bf16 {ar(aC+4*j,4)}, {vr(vA+16*a+4*bb,4)}, {vr(vB+32*(bb&1)+4*(j-a),4)}, {'0' if first else ar(aC+4*j,4)}")
    used = [0]; n = [0]; cur = []
    def due():
        allowed = sum(min(2*c, max(0, (n[0] - s0)//e + 1)) for (s0, c, e) in sched)
        return used[0] < allowed
    q1 = []; q2 = []; extra = conv_epi_consts()
    def fillers(k=2):
        n[0] += 1
        while k > 0:
            if not cur and bulk and due():
                cur.extend(x for x in bulk.pop(0).split("\n") if x.strip() != "SKIP"); used[0] += 1
                continue
            if q1: P(q1.pop(0))
            elif cur:
                x = cur.pop(0); P(x)
                if " m0," in x and not cur and k == 2 and not q2 and not extra: k -= 1
            elif q2: P(q2.pop(0))
            elif extra: P(extra.pop(0))
            else: break
            k -= 1
    P(rd(0))
    for bb in range(3):
        q2 += [a_perm(a, i) for a in range(8) for i in range(4*(bb+1), 4*(bb+2))] if bb+1 >= lazy else []
        order = [(a+d, a, d) for d in range(8) for a in range(8-d)]
        for idx, (j, a, d) in enumerate(order):
            if idx == 0: P(" s_waitcnt lgkmcnt(7)" if bb == 0 else " s_waitcnt lgkmcnt(0)")
            if bb == 0 and idx == 8: P(" s_waitcnt lgkmcnt(0)")
            if idx == 8: q1 += rd(bb+1)
            mf(j, a, bb, bb == 0 and d == 0)
            fillers(1 if (idx == 35 or (bb == 0 and idx == 7)) else 2)
        if q2: print("perm spill", len(q2), end=" ")
        P(q2); del q2[:]
    P(extra); del extra[:]
    P(" s_waitcnt lgkmcnt(0)\n s_barrier")
    q2 += [f" v_mov_b32 v{QD+2*i+1}, {sTAG}" for i in range(8)]
    wr = []; cnt = 0
    for j in range(8):
        for a in range(j+1):
            mf(j, a, 3, False); cnt += 1
            if wr and wr[0][1] + 4 <= cnt: q1.append(wr.pop(0)[0])
            fillers()
        wr.append((f" ds_write_b128 v13, {ar(aC+4*j,4)} offset:{j*1024}", cnt))
    P(q1); P(cur); P(q2)
    for x in wr: P(x[0])
def conv_epilogue(P):
    R = 16
    P(" s_waitcnt lgkmcnt(0)\n s_barrier")
    for i in range(4):
        for c in range(2): P(f" ds_read2st64_b64 {vr(R+8*i+4*c,4)}, v14 offset0:{4*i+32*c} offset1:{4*i+32*c+16}")
    for i in range(4):
        P(f" s_waitcnt lgkmcnt({6-2*i})")
        b = R+8*i
        P(f""" v_pk_add_f32 {vr(b,2)}, {vr(b,2)}, {vr(b+2,2)}
 v_pk_add_f32 {vr(b+4,2)}, {vr(b+4,2)}, {vr(b+6,2)}
 v_cvt_pk_bf16_f32 v{QD+4*i}, v{b}, v{b+4}
 v_cvt_pk_bf16_f32 v{QD+4*i+2}, v{b+1}, v{b+5}
 buffer_store_dwordx4 {vr(QD+4*i,4)}, v9, {WS}, s{4+i} offen sc1""")

vSR = 15
def stat_consts():
    return L(f"""
 v_bfe_u32 v{vSW}, v0, 4, 4
 v_lshl_add_u32 v{vSW}, v1, 4, v{vSW}
 v_lshlrev_b32 v{vSW}, 2, v{vSW}
 v_add_u32 v{vSW}, {STAT}, v{vSW}
 v_lshlrev_b32 v{vSR}, 6, v1
 v_add_u32 v{vSR}, {STAT}, v{vSR}
 s_mov_b32 s30, 0x3b000000
 s_mov_b32 s31, 0x3b000000""")
def row_stats(src, tmp, off, mr, shadow):
    o = []
    a = tmp+8
    for r in range(2):
        b = src+8*r
        o.append(f" v_pk_add_f32 {vr(a+4*r,2)}, {vr(b,2)}, {vr(b+2,2)}")
        o.append(f" v_pk_mul_f32 {vr(a+4*r+2,2)}, {vr(b,2)}, {vr(b,2)}")
    for i in range(1, 4):
        for r in range(2):
            b = src+8*r+2*i
            if i >= 2: o.append(f" v_pk_add_f32 {vr(a+4*r,2)}, {vr(a+4*r,2)}, {vr(b,2)}")
            o.append(f" v_pk_fma_f32 {vr(a+4*r+2,2)}, {vr(b,2)}, {vr(b,2)}, {vr(a+4*r+2,2)}")
    for k in range(4): o.append(f" v_add_f32 v{tmp+k}, v{a+2*k}, v{a+2*k+1}")
    sh = list(shadow)
    def S(n): return take(sh, n)
    o += S(2) + [f" v_permlane32_swap_b32 v{tmp}, v{tmp+1}", f" v_permlane32_swap_b32 v{tmp+2}, v{tmp+3}",
          f" v_add_f32 v{tmp}, v{tmp}, v{tmp+1}", f" v_add_f32 v{tmp+2}, v{tmp+2}, v{tmp+3}"] + S(2) + \
         [f" v_permlane16_swap_b32 v{tmp}, v{tmp+2}", f" v_add_f32 v{tmp}, v{tmp}, v{tmp+2}"] + S(2) + \
         [f" v_add_f32_dpp v{tmp}, v{tmp}, v{tmp} row_ror:4 row_mask:0xf bank_mask:0xf"] + S(2) + \
         [f" v_add_f32_dpp v{tmp}, v{tmp}, v{tmp} row_ror:8 row_mask:0xf bank_mask:0xf", f" ds_write_b32 v{vSW}, v{tmp} offset:{off}"] + S(8) + \
         [" s_waitcnt lgkmcnt(0)", " s_barrier"] + \
         [f" ds_read_b128 {vr(tmp+8+4*k,4)}, v{vSR} offset:{off+16*k}" for k in range(4)] + S(99) + [" s_waitcnt lgkmcnt(0)"]
    o += L(f"""
 v_pk_add_f32 {vr(a,2)}, {vr(a,2)}, {vr(a+4,2)}
 v_pk_add_f32 {vr(a+8,2)}, {vr(a+8,2)}, {vr(a+12,2)}
 v_pk_add_f32 {vr(a+2,2)}, {vr(a+2,2)}, {vr(a+6,2)}
 v_pk_add_f32 {vr(a+10,2)}, {vr(a+10,2)}, {vr(a+14,2)}
 v_pk_add_f32 {vr(tmp,2)}, {vr(a,2)}, {vr(a+8,2)}
 v_pk_add_f32 {vr(tmp+2,2)}, {vr(a+2,2)}, {vr(a+10,2)}
 v_pk_mul_f32 {vr(tmp,2)}, {vr(tmp,2)}, s[30:31]
 v_pk_mul_f32 {vr(tmp+2,2)}, {vr(tmp+2,2)}, s[30:31]
 v_pk_fma_f32 {vr(tmp+2,2)}, {vr(tmp,2)}, {vr(tmp,2)}, {vr(tmp+2,2)} neg_lo:[1,0,0] neg_hi:[1,0,0]
 v_cvt_pk_bf16_f32 v{tmp+4}, v{tmp}, v{tmp+1}
 v_max_f32 v{tmp+2}, 0, v{tmp+2}
 v_max_f32 v{tmp+3}, 0, v{tmp+3}
 v_cvt_pk_bf16_f32 v{tmp+5}, v{tmp+2}, v{tmp+3}
 v_lshlrev_b32 v{tmp+2}, 16, v{tmp+5}
 v_and_b32 v{tmp+3}, {sMASK}, v{tmp+5}
 v_add_f32 v{tmp+2}, 0x3727c5ac, v{tmp+2}
 v_add_f32 v{tmp+3}, 0x3727c5ac, v{tmp+3}
 v_cvt_pk_bf16_f32 v{tmp+5}, v{tmp+2}, v{tmp+3}
 v_lshlrev_b32 v{tmp+2}, 16, v{tmp+5}
 v_and_b32 v{tmp+3}, {sMASK}, v{tmp+5}
 v_sqrt_f32 v{tmp+2}, v{tmp+2}
 v_sqrt_f32 v{tmp+3}, v{tmp+3}
 v_lshlrev_b32 v{mr}, 16, v{tmp+4}
 v_cvt_pk_bf16_f32 v{tmp+5}, v{tmp+2}, v{tmp+3}
 v_lshlrev_b32 v{tmp+2}, 16, v{tmp+5}
 v_and_b32 v{tmp+3}, {sMASK}, v{tmp+5}
 v_rcp_f32 v{mr+2}, v{tmp+2}
 v_rcp_f32 v{mr+3}, v{tmp+3}
 v_and_b32 v{mr+1}, {sMASK}, v{tmp+4}
 v_pk_mul_f32 {vr(mr,2)}, {vr(mr,2)}, {vr(mr+2,2)} neg_lo:[1,0] neg_hi:[1,0]""")
    return o
def norm_row(dst, src, mr, row):
    sel = f"op_sel:[0,{row},{row}] op_sel_hi:[1,{row},{row}]"
    return [f" v_pk_fma_f32 {vr(dst+8*row+2*i,2)}, {vr(src+8*row+2*i,2)}, {vr(mr+2,2)}, {vr(mr,2)} {sel}" for i in range(4)]
def unpack(dst, src): return [f" v_lshlrev_b32 v{dst}, 16, v{src}", f" v_and_b32 v{dst+1}, {sMASK}, v{src}"]
def ln1():
    tmp = 176; mr = 200; kd = 160
    o = []
    for r in range(2):
        for t in range(4): o += unpack(kd+8*r+2*t, vQ+4*t+2*r)
    for i in range(8): o += unpack(vu1+2*i, vX+i)
    sh = []
    for i in range(4): sh += unpack(vX+2*i, vD+i)
    for r in range(2):
        for t in range(4): sh.append(f" v_pk_mul_f32 {vr(kd+8*r+2*t,2)}, {vr(kd+8*r+2*t,2)}, {vr(vX+2*t,2)}")
    o += row_stats(vu1, tmp, 0, mr, sh)
    o += norm_row(vq, vu1, mr, 0) + norm_row(vq, vu1, mr, 1)
    for i in range(8): o.append(f" v_pk_fma_f32 {vr(vu1+2*i,2)}, {vr(vq+2*i,2)}, {vr(kd+2*i,2)}, {vr(vu1+2*i,2)}")
    return o
vY = 64
def ln2(P0, bulk, every):
    P = G(); P.cfg = P0.cfg
    vh, vn, tmp, mr = 80, 104, 112, 136
    for t in range(4): P(unpack(vh+8+2*t, vY+4*t+2))
    for i in range(8): P(f" v_pk_fma_f32 {vr(vh+2*i,2)}, {vr(vq+2*i,2)}, {vr(vh+2*i,2)}, {vr(vu1+2*i,2)}")
    sh = [f" v_cvt_pk_bf16_f32 v{vHP+i}, v{vh+2*i}, v{vh+2*i+1}" for i in range(8)]
    for i in range(8): sh += unpack(vh+2*i, vHP+i)
    P(row_stats(vh, tmp, 256, mr, sh))
    for r in range(2):
        P(norm_row(vh, vh, mr, r))
        for i in range(4*r, 4*r+4): P(f" v_cvt_pk_bf16_f32 v{vn+i}, v{vh+2*i}, v{vh+2*i+1}")
        P(f" buffer_store_dwordx4 {vr(vn+4*r,4)}, v5, {WS}, {sHNst} offen offset:{64*r} sc1")
        P(f" v_xad_u32 v{tmp+r}, v{vn+4*r}, v{vn+4*r+1}, v{vn+4*r+2}\n v_add_u32 v{tmp+r}, v{tmp+r}, v{vn+4*r+3}")
    P(f"""
 v_permlane16_swap_b32 v{tmp}, v{tmp+1}
 v_add_u32 v{tmp}, v{tmp}, v{tmp+1}
 v_add_u32_dpp v{tmp}, v{tmp}, v{tmp} row_ror:8 row_mask:0xf bank_mask:0xf
 v_add_u32 v{tmp}, {sTAG}, v{tmp}
 buffer_store_dword v{tmp}, v{vC}, {WS}, {sHCst} offen sc1
""")
    if P.cfg["hnh"]: P(f" buffer_store_dword v{vY+1}, v13, {WS}, {sF0} offen sc1")
    interleave(P0, P.lines, bulk, every)
    assert not bulk
def h2_consts():
    return L(f"""
 v_mul_u32_u24 v14, {4*OB}, v2
 v_lshl_add_u32 v14, v1, 4, v14
 v_lshlrev_b32 v5, 9, v2
 v_lshl_add_u32 v5, v1, 4, v5
 v_lshrrev_b32 v{vC}, 2, v6
 v_add_u32 v{vC}, 4096, v{vC}
 s_lshr_b32 {sHNst}, {sP}, 2
 s_lshl_b32 {sHNst}, {sHNst}, 15
 s_and_b32 s3, {sP}, 3
 s_lshl_b32 s3, s3, 7
 s_add_u32 {sHNst}, {sHNst}, s3
 s_add_u32 {sHNst}, {sHNst}, {HN}
 s_lshl_b32 {sHCst}, {sP}, 2
 s_add_u32 {sHCst}, {sHCst}, {sW}
 s_lshl_b32 {sF0}, {sHCst}, 9
 s_add_u32 {sF0}, {sF0}, {HI}
 v_lshrrev_b32 v13, 6, v6
 v_lshlrev_b32 v13, 25, v13
 v_lshl_add_u32 v13, v1, 7, v13
 s_lshl_b32 {sFLst}, {sHCst}, 6
 s_add_u32 {sFLst}, {sFLst}, {FL-4352}
 s_lshl_b32 {sHCst}, {sHCst}, 8
 s_add_u32 {sHCst}, {sHCst}, {HC-4096}
 s_mov_b32 {sHRES}, {HRES}
 s_lshl_b32 s4, {sP}, 6
 s_add_u32 s4, s4, {YBOX}
 s_add_u32 s5, s4, {OB}
 s_add_u32 s6, s4, {2*OB}
 s_add_u32 s7, s4, {3*OB}""")

WARM = [0]; ROTX = [0]
def warm_ops(n0, n1):
    o = []
    if n0 == 0:
        o += L(f""" v_bfe_u32 v16, v0, 3, 3
 v_min_u32 v16, 6, v16
 v_and_b32 v17, 7, v0
 v_lshlrev_b32 v17, 10, v17
 v_lshl_add_u32 v17, v16, 7, v17
 s_mul_i32 s4, {sW}, {448*1024}
 s_lshl_b32 s5, {sL3}, 13
 s_add_u32 s4, s4, s5
 s_add_u32 s5, s4, 32768""")
    for j in range(n0, n1):
        if j & 1 == 0:
            if j: o += [" v_add_u32 v16, 1, v16", " v_cmp_eq_u32 vcc, 7, v16", " v_cndmask_b32 v16, v16, 0, vcc"]
            o.append(" v_lshl_add_u32 v18, v16, 16, v17")
        o.append(f" buffer_load_dword v19, v18, {srd('WD')}, s{4 + (j & 1)} offen")
    return o
def wd_consts(a8):
    if a8: head = f"""
 s_bfe_u32 s3, s2, 0x20001
 s_lshl_b32 s3, s3, 3
 s_bfe_u32 {sT}, s2, 0x30003
 s_add_u32 {sSB}, s3, {sT}
 s_and_b32 {sE}, s2, 1
 s_lshl_b32 {sE}, {sE}, 2
 s_lshr_b32 s3, s2, 6
 s_add_u32 {sE}, {sE}, s3
 s_lshl_b32 {sE}, {sE}, 7
 s_lshl_b32 s3, s3, 1
 s_add_u32 s3, s3, {sT}"""
    else: head = f"""
 s_and_b32 s3, s2, 7
 s_lshl_b32 s3, s3, 2
 s_add_u32 {sSB}, s3, {sL3}
 s_lshl_b32 {sE}, {sJL}, 7
 s_lshl_b32 s3, {sL3}, 1""" + (f"""
 s_cmp_ge_u32 {sJL}, 7
 s_cselect_b32 s3, s3, 0""" if WARM[0] else "") + f"""
 s_add_u32 s3, s3, {sJL}"""
    if ROTX[0] == 1: head += f"""
 s_and_b32 {sT}, s2, 7
 s_add_u32 s3, s3, {sT}
 s_cmp_ge_u32 s3, 7
 s_cselect_b32 {sT}, 7, 0
 s_sub_u32 s3, s3, {sT}"""
    if ROTX[0] == 2: head += f"""
 s_and_b32 {sT}, s2, 1
 s_add_u32 s3, s3, {sT}
 s_add_u32 s3, s3, {sW}
 s_cmp_ge_u32 s3, 7
 s_cselect_b32 {sT}, 7, 0
 s_sub_u32 s3, s3, {sT}"""
    if ROTX[0] == 3: head += f"""
 s_add_u32 s3, s3, {sW}
 s_add_u32 s3, s3, {sW}
 s_cmp_ge_u32 s3, 7
 s_cselect_b32 {sT}, 7, 0
 s_sub_u32 s3, s3, {sT}"""
    o = L(head + f"""
 s_mul_i32 {sRING}, {sW}, {NR*1024}
 s_add_u32 {sRING}, {sRING}, {RING}
 s_mul_i32 s100, {sW}, {448*1024}
 s_add_u32 s100, s100, {sE}""")
    for i in range(7):
        if WARM[0] == 2:
            if i < 3: o += [f" s_add_u32 s101, s3, {i}"]
            else: o += L(f""" s_add_u32 s101, {sL3}, {i-3}
 s_and_b32 s101, s101, 3
 s_cmp_ge_u32 {sJL}, 7
 s_cselect_b32 s101, {i-3}, s101
 s_add_u32 s101, s101, 3
 s_add_u32 s101, s101, s3""")
            for rep in range(2): o += L(f""" s_cmp_ge_u32 s101, 7
 s_cselect_b32 {sT}, 7, 0
 s_sub_u32 s101, s101, {sT}""")
            o += [f" s_lshl_b32 {sT}, s101, 16", f" s_add_u32 s{sWD+i}, {sT}, s100"]
            continue
        o += L(f""" s_cmp_ge_u32 s3, 7
 s_cselect_b32 {sT}, 7, 0
 s_sub_u32 s3, s3, {sT}
 s_lshl_b32 {sT}, s3, 16
 s_add_u32 s{sWD+i}, {sT}, s100
 s_add_u32 s3, s3, 1""")
    return o
def wd_rconsts(t):
    return L(f"""
 v_bfe_u32 v{t}, v0, 5, 1
 v_bfe_u32 v{t+1}, v0, 4, 1
 v_bfe_u32 v{t+2}, v0, 2, 2
 v_lshl_add_u32 v{t}, v{t}, 2, v{t+2}
 v_lshlrev_b32 v{t}, 7, v{t}
 v_lshl_add_u32 v{t}, v1, 3, v{t}
 v_add_u32 v{t}, {sRING}, v{t}
 v_and_b32 v{t+2}, 2, v{t+2}
 v_or_b32 v{t+2}, v{t+2}, v{t+1}
 v_lshl_add_u32 v{vWr[0]}, v{t+2}, 5, v{t}
 v_xor_b32 v{t+2}, 2, v{t+2}
 v_lshl_add_u32 v{vWr[1]}, v{t+2}, 5, v{t}""")
def wd_dma(m, base=sRING, slot=None):
    i, r = m // 8, m & 7
    o = []
    if slot is None:
        slot = m % NR
        if m >= NR: o.append(f"DWAIT:wd{m-NR}")
    o.append(f" s_add_u32 m0, {base}, {slot*1024}")
    if r: o += [f" s_add_u32 s100, s{sWD+i}, {r*8192}", f" buffer_load_dwordx4 v{vWD}, {srd('WD')}, s100 offen lds"]
    else: o += [f" buffer_load_dwordx4 v{vWD}, {srd('WD')}, s{sWD+i} offen lds"]
    return o + [f"MARK:wd{m}"]
def wd_read(m, slot=None):
    d = (m >> 1)*8 + 2*(m & 1)
    if slot is None: slot = m % NR
    return [f"WAIT:wd{m}"] + [f" ds_read_b64_tr_b16 {ar(d+4*tau,2)}, v{vWr[tau]} offset:{slot*1024}" for tau in range(2)] + [f"DMARK:wd{m}"]
def wd_stream(d, rd, N, dep=NR-1):
    o = []
    while d < min(N, rd + dep): o += wd_dma(d); d += 1
    for m in range(rd, N):
        o += wd_read(m)
        if d < N and d <= m + dep: o += wd_dma(d); d += 1
    return o

def wd_raw(m):
    i, r = m // 8, m & 7
    if r: return [f" s_add_u32 s100, s{sWD+i}, {r*8192}", f" buffer_load_dwordx4 {ar(4*m,4)}, v{vWD}, {srd('WD')}, s100 offen"]
    return ["SKIP", f" buffer_load_dwordx4 {ar(4*m,4)}, v{vWD}, {srd('WD')}, s{sWD+i} offen"]
def bounce(u, va):
    d = u*8; off = (u % 3)*2048
    o = [f" ds_write_b128 v{va}, {ar(d,4)} offset:{off}", f" ds_write_b128 v{va}, {ar(d+4,4)} offset:{off+1024}"]
    for tau in range(2):
        for io in range(2): o.append(f" ds_read_b64_tr_b16 {ar(d+4*tau+2*io,2)}, v{vWr[tau]} offset:{off+io*1024}")
    return o
def g_sconsts(nbig):
    o = [f" s_mul_i32 s3, {sSB}, {56*GS}", f" s_add_u32 s3, s3, {HH}"]
    for i in range(7):
        o += L(f""" s_lshr_b32 {sT}, s{sWD+i}, 16
 s_mul_i32 {sT}, {sT}, {GS}
 s_add_u32 s{sHL+i}, {sT}, s3
 s_add_u32 s{sHL+7+i}, s{sHL+i}, {28*GS}""")
    o += L(f"""
 s_lshl_b32 {sO0}, {sSB}, 16
 s_add_u32 {sO0}, {sO0}, {sE}
 s_add_u32 {sO1}, {sO0}, 32768
 s_add_u32 {sHR0}, {sO0}, {HRES}
 s_add_u32 {sHR1}, {sO1}, {HRES}
 s_lshl_b32 s3, {sG}, 2
 s_add_u32 s3, s3, {sW}
 s_mul_i32 {sHS0}, s3, 56
 s_add_u32 {sHS0}, {sHS0}, {sJ}
 s_mul_i32 {sHS0}, {sHS0}, {GS}
 s_add_u32 {sHS0}, {sHS0}, {HH}
 s_add_u32 {sHS1}, {sHS0}, {28*GS}""")
    o += L(f"""
 s_lshl_b32 {sFLld}, {sSB}, 3
 s_add_u32 {sFLld}, {sFLld}, {sW}
 s_mul_i32 {sPH0}, {sFLld}, {7*GS}
 s_add_u32 {sPH0}, {sPH0}, {HH+4352}
 s_add_u32 {sPH1}, {sPH0}, {28*GS}
 s_lshl_b32 {sFLld}, {sFLld}, 2
 s_lshr_b32 s3, {sE}, 8
 s_add_u32 {sFLld}, {sFLld}, s3
 s_lshl_b32 {sFLld}, {sFLld}, 6
 s_add_u32 {sFLld}, {sFLld}, {FL}
 s_and_b32 s3, {sW}, 1
 s_mul_i32 s3, s3, {nbig*1024}
 s_lshr_b32 {sBIG}, {sW}, 1
 s_lshl_b32 {sBIG}, {sBIG}, 16
 s_add_u32 {sBIG}, {sBIG}, s3""") + srdc(("OUT",))
    return o
def hn_consts():
    o = L(f"""
 s_lshl_b32 s3, {sG}, 2
 s_add_u32 s3, s3, {sW}
 s_lshl_b32 {sFLld}, s3, 13
 s_add_u32 {sFLld}, {sFLld}, {HC}
 s_lshl_b32 s3, s3, 16
 s_add_u32 s3, s3, {HN}""")
    for g in range(8):
        o += [f" s_add_u32 {sT}, {sJL}, {g}", f" s_and_b32 {sT}, {sT}, 7", f" s_lshl_b32 s{sHC+g}, {sT}, 7", f" s_add_u32 s{sHC+g}, s{sHC+g}, {sFLld}", f" s_lshl_b32 {sT}, {sT}, 12", f" s_add_u32 s{sHN+g}, {sT}, s3"]
    o += L(f"""
 v_bfe_u32 v{vHC}, v0, 3, 2
 v_lshlrev_b32 v{vHC}, 10, v{vHC}
 v_bfe_u32 v{vHC1}, v0, 5, 1
 v_lshl_add_u32 v{vHC}, v{vHC1}, 4, v{vHC}
 v_bfe_u32 v{vHC1}, v0, 2, 1
 v_lshl_add_u32 v{vHC}, v{vHC1}, 6, v{vHC}
 v_lshl_add_u32 v{vHC}, v1, 2, v{vHC}
 v_add_u32 v{vHC1}, 4096, v{vHC}""")
    return o
def g_vconsts():
    t = 232
    o = L(f"""
 v_bfe_u32 v{t}, v0, 5, 1
 v_bfe_u32 v{t+1}, v0, 4, 1
 v_bfe_u32 v{t+2}, v0, 2, 2
 v_lshl_add_u32 v{t}, v{t}, 3, v{t+2}
 v_lshlrev_b32 v{t+4}, 7, v{t}
 v_lshl_add_u32 v{t+4}, v1, 3, v{t+4}
 v_lshl_add_u32 v{t+4}, v{t+1}, 16, v{t+4}
 v_lshrrev_b32 v{t+2}, 1, v{t+2}
 v_lshl_add_u32 v{t+2}, v{t+1}, 1, v{t+2}
 v_add_u32 v{vL2}, 32768, v6""")
    for k in range(4): o += [f" v_xor_b32 v{t+3}, {k}, v{t+2}", f" v_lshl_add_u32 v{vRa+k}, v{t+3}, 5, v{t+4}"]
    o += L(f"""
 v_lshrrev_b32 v{t}, 3, v0
 v_and_b32 v{t+1}, 24, v{t}
 v_and_b32 v{t+2}, 3, v{t}
 v_lshl_add_u32 v{t+1}, v{t+2}, 1, v{t+1}
 v_bfe_u32 v{t+2}, v{t}, 2, 1
 v_add_u32 v{t+1}, v{t+1}, v{t+2}
 v_lshlrev_b32 v{t+1}, 10, v{t+1}
 v_and_b32 v{t+2}, 7, v0
 v_lshl_add_u32 v{vOUT}, v{t+2}, 4, v{t+1}
 v_mul_u32_u24 v{vPH}, {GS//16}, v6
 v_add_u32 v4, 16, v6
 v_lshrrev_b32 v4, 7, v4
 v_lshl_add_u32 v{vPH}, v4, 25, v{vPH}
 v_lshlrev_b32 v{vONE}, 21, v6
 v_add_u32 v{vONE}, 4352, v{vONE}
 v_mov_b32 v{vTG}, {sTAG}""")
    return o
HST = [f" buffer_store_dwordx4 {vr(vHP,4)}, v3, {WS}, {sHRES} offen sc1", f" buffer_store_dwordx4 {vr(vHP+4,4)}, v3, {WS}, {sHRES} offen offset:1024 sc1", "MARK:HST"]
FLAGST = f" buffer_store_dword v{vTG}, v{vONE}, {WS}, {sFLst} offen sc1"
FLAGLD = [" v_lshrrev_b32 v1, 5, v6\n v_lshlrev_b32 v1, 25, v1", " v_lshl_add_u32 v1, v6, 6, v1", f" v_mov_b32 v3, 0\n buffer_atomic_or v3, v1, {WS}, {sFLld} offen sc0 sc1"]
HRESLD = [f" buffer_load_dwordx4 {vr(vE,4)}, v{vOUT}, {WS}, {sHR0} offen sc1", f" buffer_load_dwordx4 {vr(vE+4,4)}, v{vOUT}, {WS}, {sHR1} offen sc1", "MARK:hres"]
def poll(dst, voff, soff): return f" v_mov_b32 v{dst}, 0\n buffer_atomic_or v{dst}, v{voff}, {WS}, {soff} offen sc0 sc1"
def pollcmp(dst, mask): return [f" v_cmp_ne_u32 vcc, {sTAG}, v{dst}", f" s_and_b64 vcc, vcc, {mask}"]
NOCHK = [0]
def hn_regs(G_): return vHN + 16*(G_ % 4)
def hn_loads(G_):
    return [f" buffer_load_dwordx4 {vr(hn_regs(G_)+4*k,4)}, v{6 if G_ < 8 else vL2}, {WS}, s{sHN+(G_&7)} offen offset:{k*1024} sc1" for k in range(4)] + \
           ([f" buffer_load_dword v{CHN[G_%4]}, v{vHC if G_ < 8 else vHC1}, {WS}, s{sHC+(G_&7)} offen sc1"] if not (NOCHK[0] & 1 and G_ >= 3) else [])
def hh_loads(u, i):
    return [f" buffer_load_dwordx4 {vr(HREG[(u,i)]+4*t,4)}, v6, {WS}, s{sHL+7*u+i} offen offset:{t*1024} sc1" for t in range(4)] + \
           ([f" buffer_load_dword v{CHH[(u,i)]}, v{vC}, {WS}, s{sHL+7*u+i} offen sc1"] if not NOCHK[0] & 2 else [])
def hashchain(r, chk):
    o = []
    for f in range(4):
        b = r + 4*f
        o.append(f" v_xad_u32 v4, v{b}, v{b+1}, {sTAG if f == 0 else 'v4'}")
        o.append(f" v_add3_u32 v4, v4, v{b+2}, v{b+3}")
    return o + [f" v_cmp_ne_u32 vcc, v4, v{chk}"]
def retry_check(P, o, loads, later, name, sleep):
    blk = [f"L_{name}_r:", f" s_sub_u32 {sSPIN}, {sSPIN}, 1", f" s_cbranch_scc1 L_{name}_x", f" s_sleep {sleep}"] + loads + [" s_waitcnt vmcnt(0)"] + o + [f" s_cbranch_vccnz L_{name}_r"]
    blk += later + ([" s_waitcnt vmcnt(0)"] if later else []) + [f" s_branch L_{name}_b", f"L_{name}_x:", f" s_mov_b32 {sSPIN}, 0", f" s_branch L_{name}_b"]
    P.tail += blk
    return o + ["GAP", f" s_cbranch_vccnz L_{name}_r\nL_{name}_b:"]
def retry_fast(P, o, loads, later, name, sleep):
    blk = [f"L_{name}_s:", f" s_sleep {sleep}", f"L_{name}_r:", f" s_sub_u32 {sSPIN}, {sSPIN}, 1", f" s_cbranch_scc1 L_{name}_x"] + loads + later + [f" s_waitcnt vmcnt({len(later)})"] + o + [f" s_cbranch_vccnz L_{name}_s"]
    blk += [f" s_branch L_{name}_b", f"L_{name}_x:", f" s_mov_b32 {sSPIN}, 0", f" s_branch L_{name}_b"]
    P.tail += blk
    return o + ["GAP", f" s_cbranch_vccnz L_{name}_r\nL_{name}_b:"]
def hint_spin(name, s, back):
    return [f"L_{name}:", poll(vPD, vPH, s), " s_waitcnt vmcnt(0)"] + pollcmp(vPD, 0x7f) + [f" s_cbranch_vccz {back}", " s_sleep 8",
            f" s_sub_u32 {sSPIN}, {sSPIN}, 1", f" s_cbranch_scc0 L_{name}", f" s_mov_b32 {sSPIN}, 0"]
def epi_tile(acc, ups, t, out, pk):
    o = []
    if pk:
        for i in range(4): o.append(f" v_pk_mul_f32 {vr(vE+2*i,2)}, {vr(acc+2*i,2)}, s[4:5]")
    else:
        for i in range(8): o.append(f" v_mul_f32 v{vE+i}, 0xbfb8aa3b, v{acc+i}")
    for i in range(8): o.append(f" v_exp_f32 v{vE+i}, v{vE+i}")
    if pk:
        for i in range(4): o.append(f" v_pk_add_f32 {vr(vE+2*i,2)}, {vr(vE+2*i,2)}, 1.0 op_sel_hi:[1,0]")
    else:
        for i in range(8): o.append(f" v_add_f32 v{vE+i}, 1.0, v{vE+i}")
    for i in range(8): o.append(f" v_rcp_f32 v{vE+i}, v{vE+i}")
    if pk:
        for i in range(4): o.append(f" v_pk_mul_f32 {vr(vE+2*i,2)}, {vr(vE+2*i,2)}, {vr(acc+8+2*i,2)}")
    else:
        for i in range(8): o.append(f" v_mul_f32 v{vE+i}, v{vE+i}, v{acc+8+i}")
    for i in range(4): o.append(f" v_cvt_pk_bf16_f32 v{out+i}, v{vE+2*i}, v{vE+2*i+1}")
    sb = sHS1 if ups else sHS0
    o.append(f" buffer_store_dwordx4 {vr(out,4)}, v6, {WS}, {sb} offen offset:{t*1024} sc1")
    o.append(f" v_xad_u32 v{vHASH}, v{out}, v{out+1}, {sTAG if t == 0 else 'v%d' % vHASH}")
    o.append(f" v_add3_u32 v{vHASH}, v{vHASH}, v{out+2}, v{out+3}")
    if t == 3:
        o.append(f" buffer_store_dword v{vHASH}, v{vC}, {WS}, {sb} offen sc1")
        o.append(f" buffer_store_dword v{vTG}, v{vONE}, {WS}, {sb} offen sc1")
    return o

def gemm1(P, cfg, wds):
    seq = [(u, k, t) for u in range(2) for k in range(32) for t in range(4)]
    D = 6; LA = 3
    MB = cfg["wd_big"]
    def reads(n):
        u, k, t = seq[n]; d = aC + 4*(n % 8)
        return [f" ds_read_b64_tr_b16 {ar(d+2*io,2)}, v{vRa+t} offset:{k*2048+io*512}" for io in range(2)] + [f"DMARK:w{n}"]
    def hn_issue(g): return hn_loads(g) + [f"MARK:hn{g}"]
    def hn_check(g):
        later = []
        for gg in range(g+1, min(16, g+LA)): later += hn_loads(gg)
        if NOCHK[0] & 1 and g >= 3: return [f"WAIT:hn{g}"] + (hashchain(hn_regs(g), 4)[:8] if NOCHK[0] & 4 else [])
        return [f"WAIT:hn{g}"] + (retry_fast if g < 12 else retry_check)(P, hashchain(hn_regs(g), CHN[g%4]), hn_loads(g), later, f"hn{g}", cfg["bo"])
    for n in range(D): P(reads(n))
    P(hn_check(0))
    P.st("hn0")
    wq_ = list(wds); fill = []; urgent = []; wacc = 0.0; lastv = -9; gapn = None
    h0 = poll(vPD, vPH, sPH0)
    for n, (u, k, t) in enumerate(seq):
        budget = cfg["slots"][u]
        g = 8*u + k//4
        if t == 0:
            if k % 4 == 0:
                while urgent: P(urgent.pop(0))
                gapn = None
                if g + LA < 16: urgent += hn_issue(g + LA)
        if n % 16 == cfg['chk_at'] and g + 1 < 16: urgent += hn_check(g + 1)
        if t == 0:
            if (u, k) == (1, 0):
                P.st("p0")
                P(urgent); urgent = []
                P(" s_mov_b32 s4, 0xbfb8aa3b\n s_mov_b32 s5, 0xbfb8aa3b")
                held = []; ex = []
                for tt in range(4):
                    pk = tt < cfg["e0_exp"]
                    for x in epi_tile(acc0+16*tt, 0, tt, acc0+16*tt, pk):
                        (held if (x.lstrip().startswith("buffer_store") and cfg["hold0"]) else (ex if pk else fill)).append(x)
                nx = take(wq_, cfg["e0_wd"])
                interleave(P, ex, nx, cfg["e0_every"]); P(nx)
                fill += held + (["WAIT:HST", FLAGST] if cfg['h_early'] else HST)
                if cfg["e0_exp"] == 4: P(fill); fill = []
                P.st("e0")
            if u == 1 and k == cfg["h0_k"] and cfg["hhh"]: urgent += [h0, "MARK:ph0"]
            if u == 1 and k in cfg["hh_at"]:
                i = cfg["hh_at"][k]
                assert not fill and (i < 5 or k >= 20 + 4*(i-5))
                if i == 0:
                    if not cfg['h_early']: urgent += ["WAIT:HST", FLAGST]
                    if cfg["hhh"]: urgent += ["WAIT:ph0"] + retry_check(P, pollcmp(vPD, 0x7f), [h0], [], "ph0", cfg["hbo"])
                urgent += hh_loads(0, i) + [f"MARK:hh0_{i}"]
        if n % 2 == 0: P(f"DWAIT:w{n+1}")
        else: budget -= 1
        a = (acc1 if u else acc0) + 16*t
        P(f" v_mfma_f32_32x32x16_bf16 {vr(a,16)}, {ar(aC+4*(n%8),4)}, {vr(hn_regs(g)+4*(k&3),4)}, {'0' if k == 0 else vr(a,16)}")
        if n + D < len(seq):
            P(reads(n+D)); budget -= 2
        wacc += cfg["wd_rate"][u]
        had = bool(fill)
        for q in (urgent, wq_, fill):
            while q and (budget >= P.cost(q[0]) or P.cost(q[0]) == 0):
                if q[0] == "GAP":
                    if gapn is None: gapn = n
                    if n - gapn < cfg["gapd"]: break
                    gapn = None
                if q[0].lstrip().startswith("buffer_"):
                    if n - lastv < cfg["vgap"]: break
                    lastv = n
                if q is wq_:
                    if wacc < 1 and P.cost(q[0]) > 0: break
                    wacc -= P.cost(q[0])
                x = q.pop(0); budget -= P.cost(x); P(x)
        if had and not fill: print("epilogue0 done at k", k)
    print('left: wd', len(wq_), 'fill', len(fill))
    P(urgent); P(wq_); P(fill)
    P.st("p1")
    P(" s_mov_b32 s4, 0xbfb8aa3b\n s_mov_b32 s5, 0xbfb8aa3b")
    big = []
    if MB < 56:
        if not cfg["bar_late"]: P(" s_barrier")
        for m in range(MB, 56): big.append("\n".join(wd_dma(m, sBIG, m - MB)))
    e1 = []; held = []
    for tt in range(4):
        for x in epi_tile(acc1+16*tt, 1, tt, acc1+16*tt, True):
            (held if (cfg["hold"] and x.lstrip().startswith("buffer_store")) else e1).append(x)
    pre = []
    for i in range(len(cfg["hh_at"]), 7): pre += hh_loads(0, i) + [f"MARK:hh0_{i}"]
    pre = FLAGLD + ["MARK:flag"] + pre + take(big, cfg["big_pre"])
    if cfg["pre_late"]: P(e1)
    else: interleave(P, e1, pre, cfg["big_every"])
    P(held)
    P(pre)
    if cfg["bar_late"] and MB < 56:
        assert cfg["big_pre"] == 0
        P(" s_barrier")
    P.big = big
    P.st("epi")
    P.st("ld0")

def red_consts():
    return L(f"""
 s_mul_i32 s3, {sW}, {REDW}
 v_add_u32 v12, s3, v6
 v_and_b32 v15, 7, v0
 v_lshrrev_b32 v13, 3, v0
 v_mul_u32_u24 v15, {BS}, v15
 v_lshl_add_u32 v13, v13, 4, v15
 v_add_u32 v14, {2*REDW}, v13""")
ACC2 = (48, 16)
def red_write(ups): return [f" ds_write_b128 v12, {vr(ACC2[ups]+4*blk,4)} offset:{(8*ups+blk)*BS}" for blk in range(8)]
def red_read(ups, b): return [f" ds_read_b128 {vr(b+8*w+4*h,4)}, {'v13' if w < 2 else 'v14'} offset:{ups*8*BS + h*512 + (w&1)*REDW}" for w in range(4) for h in range(2)]
def red_fin(ups, b, hx, pk, fl):
    o = []
    for (x, y) in ((0, b+8), (16, b+24), (0, hx), (0, b+16)):
        if pk:
            for i in range(4): o.append(f" v_pk_add_f32 {vr(b+x+2*i,2)}, {vr(b+x+2*i,2)}, {vr(y+2*i,2)}")
        else:
            for i in range(8): o.append(f" v_add_f32 v{b+x+i}, v{b+x+i}, v{y+i}")
    for i in range(4): o.append(f" v_cvt_pk_bf16_f32 v{b+16+i}, v{b+2*i}, v{b+2*i+1}")
    o.append(f" buffer_store_dwordx4 {vr(b+16,4)}, v{vOUT}, {srd('OUT')}, {sO0 if ups == 0 else sO1} offen {fl}")
    return o
def gemm2(P, cfg):
    order = [(0, i) for i in range(7)] + [(1, i) for i in range(7)]
    MB = cfg["wd_big"]
    issued = order[:7]
    sched = cfg["b1_at"]
    def chk(pos):
        u, i = order[pos]
        later = []
        for x in order[pos+1:]:
            if x in issued and x[0] == u: later += hh_loads(*x)
        if NOCHK[0] & 2: return [f"WAIT:hh{u}_{i}"] + (hashchain(HREG[(u,i)], 4)[:8] if NOCHK[0] & 4 else []) + ["GAP"]
        return [f"WAIT:hh{u}_{i}"] + retry_check(P, hashchain(HREG[(u,i)], CHH[(u,i)]), hh_loads(u, i), later, f"hh{u}_{i}", cfg["bo"])
    bigrd = []
    if MB < 56:
        P([f" s_sub_u32 s3, {sBIG}, {sRING}", f" v_add_u32 v{vWr[0]}, s3, v{vWr[0]}", f" v_add_u32 v{vWr[1]}, s3, v{vWr[1]}"])
        for m in range(MB, 56): bigrd += wd_read(m, m - MB)
    P(chk(0))
    hres = [f" buffer_load_dwordx4 {vr(vE,4)}, v{vOUT}, {WS}, {sHR0} offen sc1", f" buffer_load_dwordx4 {vr(vE+4,4)}, v{vOUT}, {WS}, {sHR1} offen sc1", "MARK:hres"]
    flag = [f" buffer_load_dword v3, v1, {WS}, {sFLld} offen sc1"]
    T0 = 112; HX = 48
    for pos, (u, i) in enumerate(order):
        fill = []
        h1 = poll(vPD, vPH, sPH1)
        p1st = min(sched)
        if pos == p1st - cfg["h1_lead"] and cfg["hh1"]: fill += [h1, "MARK:ph1"]
        if pos == p1st:
            if cfg["hh1"]: fill += ["WAIT:ph1"] + retry_check(P, pollcmp(vPD, 0x7f), [h1], [], "ph1", cfg["hbo"])
            else:
                P.tail += hint_spin("ip1", sPH1, "L_ip1b") + [" s_branch L_ip1b"]
                fill += [f" s_cmp_ge_u32 {sJL}, 7\n s_cbranch_scc1 L_ip1\nL_ip1b:"]
        for gi in sched.get(pos, []):
            x = (1, gi)
            prev = [y for y in order[:order.index(x)] if HREG[y] == HREG[x]]
            assert all(order.index(y) < pos for y in prev), x
            fill += hh_loads(*x) + [f"MARK:hh{x[0]}_{x[1]}"]; issued.append(x)
        if pos < 3:
            for x in take(P.big, cfg["big_per"]): fill += x.split("\n")
        if pos == cfg["hres_at"]: fill += ["WAIT:flag"] + retry_check(P, pollcmp(3, 3), FLAGLD[2:], [], "flag", cfg["bo"]) + HRESLD
        if pos == MB//8 - 1:
            assert not P.big
            fill += bigrd + [" s_waitcnt lgkmcnt(0)"]
        if pos == 7: fill += red_consts() + [" s_barrier"]
        if pos == 8: fill += red_write(0)
        if pos == 9: fill += [" s_waitcnt lgkmcnt(0)", " s_barrier"] + red_read(0, T0)
        if pos == 11:
            fill += ["WAIT:hres"]
            for k in range(8): fill += unpack(HX+2*k, vE+k)
            fill += [" s_waitcnt lgkmcnt(0)"]
        if pos == 12: fill += red_fin(0, T0, HX, False, cfg["outf"])[:24]
        if pos == 13: fill += red_fin(0, T0, HX, False, cfg["outf"])[24:]
        assert MB >= 32
        late = chk(pos+1) if pos+1 < len(order) else []
        n = 0
        for t in range(4):
            for tau in range(2):
                a = ACC2[u]+16*tau
                P(f" v_mfma_f32_32x32x16_bf16 {vr(a,16)}, {ar(((i*4+t)*2+tau)*4,4)}, {vr(HREG[(u,i)]+4*t,4)}, {'0' if (i == 0 and t == 0) else vr(a,16)}")
                n += 1
                if n <= cfg["g2_fill"]:
                    b = 5; nv = 0
                    while fill and b > 0:
                        if fill[0].lstrip().startswith("buffer_"):
                            if nv >= cfg["v2"]: break
                            nv += 1
                        b -= P.cost(fill[0]); P(fill.pop(0))
                else:
                    P(take(fill, 99))
                    if late and late[0] != "GAP":
                        k_ = late.index("GAP"); P(take(late, min(5, k_)))
        P(late)
        if pos == 6: P.st("b0")
    P.st("g2")
    P(red_write(1))
    P(" s_waitcnt lgkmcnt(0)\n s_barrier")
    P(red_read(1, 144))
    P(" s_waitcnt lgkmcnt(0)")
    P(red_fin(1, 144, HX+8, True, cfg["outf"]))

def build(cfg, stamps=False):
    P = G(stamps); P.cfg = cfg; WARM[0] = cfg['warm']; ROTX[0] = cfg['rotx']; NOCHK[0] = cfg.get('nochk', 0); globals()['OB'] = cfg['ob']
    if cfg.get("dbg"): P.only = cfg["dbg"].split(",")
    entry(P, cfg)
    setupB = a_consts() + roles()
    P(take(setupB, cfg["nsetB"]))
    if cfg["f_at"] == 0: P(filter_dma(cfg))
    else: P(f""" v_and_b32 v4, 79, v0
 v_lshrrev_b32 v5, 2, v4
 v_and_or_b32 v4, v5, 16, v4
 v_and_b32 v4, 31, v4
 v_lshlrev_b32 v4, 7, v4
 buffer_load_dword v{vDUM}, v4, {srd('SSMK')}, {sF0} offen {cfg['fnt']}""")
    if cfg["x_at"] == 0: P(x_loads())
    if cfg["wt"] == 0: P(w_touch(cfg["wtnt"], cfg["wth"]))
    raw = []
    for m in range(cfg["nraw"]): raw += wd_raw(m)
    if cfg["wdc_at"] == -1: P(wd_consts(cfg['a8'])); P(take(raw, 2*cfg["rawE"]))
    P(tag_setup())
    P.st("pre")
    P.vmwait("L1")
    P.st("L1")
    p0_kv(P)
    P.mark("KV")
    P.st("kvst")
    if cfg["f_at"] == 1:
        if cfg["kbar"]: P(" s_barrier")
        P(filter_dma(dict(fnt="")))
    if cfg["x_at"] == 1: P(x_loads())
    P(take(raw, 2*cfg["raw0"]))
    P(setupB)
    P(conv_setup() + h1_addr() + w_table() + (wd_consts(cfg['a8']) if cfg["wdc_at"] != -1 else []))
    ng = cfg["g1"]
    early = []
    gp = cfg["gp"]
    for i in range(ng): early += w_pair(i, cfg["wnt"])[:(4 if i < gp else 2)]
    P(take(early, 2*cfg["w0"]))
    early += take(raw, 2*cfg["raw1"])
    if cfg["x_at"] == 2: early += x_loads()
    ap = ["WAIT:A", " s_barrier"] + a_prep(cfg['lazy'])
    P(take(ap, cfg["ap_pre"]))
    if cfg.get("kvw"): P(["WAIT:KV"] + ([" s_barrier"] if cfg["kvw"] == 2 else []))
    if cfg.get("dly1"): P(f" s_sleep {cfg['dly1']}")
    P.st("aprep")
    if cfg["ap_pre"] < 2: sh = take(ap, 2 - cfg["ap_pre"]) + early + ap
    else: sh = [" s_barrier"] + early + ap
    box_recv(P, vIN, "h1", cfg["bo"], sh, kv_perm())
    kv_to_lds(P)
    P.st("h1")
    wq = []
    for i in range(16):
        p = w_pair(i, cfg["wnt"])
        if i < gp: continue
        if i < ng: wq += [p[0] + "\n" + p[2], p[3]]
        else: wq += p
    nraw = cfg["nraw"]
    nwc = 2*cfg["wsched"][0][1]
    raw2 = raw[2*cfg["raw_c"]:]; raw = raw[:2*cfg["raw_c"]]
    wq = wq[:nwc] + raw + wq[nwc:]
    conv_mfma(P, wq, cfg["wsched"])
    assert not any("a[" in x for x in wq)
    print("W ops left after conv:", len(wq)//2)
    P.mark("RAWC")
    P.st("mfma")
    conv_epilogue(P)
    P.st("yst")
    P(" s_barrier")
    b3 = take(wq, 2*cfg["w3"]) + take(raw2, 2*cfg["raw3"])
    P.vmwait("X")
    interleave(P, stat_consts() + ln1(), b3, cfg["w3_every"])
    P(b3)
    P(h2_consts() + wd_rconsts(48))
    hc = hn_consts()
    if cfg["hc_at"] == 0: P(hc); hc = []
    nb1 = cfg["nb1"]
    assert 2*nb1 <= cfg["raw_c"] + cfg["rawE"] + cfg["raw0"] + cfg["raw1"]
    if nb1:
        P([f" v_add_u32 v48, {sRING}, v6", "WAIT:RAWC"])
        for u in range(nb1): P(bounce(u, 48))
    if cfg.get("dly2"): P(f" s_sleep {cfg['dly2']}")
    P.st("ln1")
    q4 = take(wq, 2*cfg["w4"]) + take(raw2, 2*cfg["raw4"])
    box_recv(P, vY, "h2", cfg["bo"], [" s_barrier"] + q4 + hc, [x for t in range(4) for x in unpack(80+2*t, vY+4*t)])
    P.st("h2")
    ln2(P, take(wq, 2*cfg["w5"]), cfg["w5_every"])
    if cfg["h_at"] == 0: P(HST)
    P.st("hnst")
    P(wq); P.mark("WALL"); P(raw2); P.mark("RAW")
    post = g_vconsts() + g_sconsts(56 - cfg["wd_big"])
    bn = [f" v_add_u32 v4, {sRING}, v6", "WAIT:RAW"]
    for u in range(nb1, nraw//2): bn += bounce(u, 4)
    if nraw//2 > nb1: post += bn + [" s_waitcnt lgkmcnt(0)"]
    post += ["WAIT:WALL", " s_barrier"]
    P(take(post, cfg["hn_at"]))
    P.st("g1go")
    hn3 = []
    for g in range(3): hn3 += hn_loads(g) + [f"MARK:hn{g}"]
    P([f" s_cmp_ge_u32 {sJL}, 7", " s_cbranch_scc1 L_sia_i"] + hn3 + ["L_sia:"])
    P.tail += ["L_sia_i:", " s_waitcnt vmcnt(0)", " s_branch L_sia"]
    P(post)
    if cfg["h_at"] == 1: P(HST)
    P(f"""
 s_or_b32 s3, s2, {sW}
 s_cmp_lg_u32 s3, 0
 s_cbranch_scc1 L_notag
 v_lshlrev_b32 v4, 21, v6
 buffer_store_dword v{vTG}, v4, {WS}, 0 offen sc1
L_notag:
""")
    P.nvm -= 1
    d = rd = nraw
    for m in range(nraw): P.dmarks[f"wd{m}"] = 0
    P(f" s_cmp_ge_u32 {sJL}, 7\n s_cbranch_scc1 L_idle")
    save = (P.nvm, P.nds, P.vmdone, P.dsdone, dict(P.marks), dict(P.dmarks))
    MB = cfg["wd_big"]
    if cfg.get("nowd"): cfg["wd_big"] = MB = 56; d = rd = 56
    gemm1(P, cfg, wd_stream(d, rd, MB))
    P(" s_waitcnt lgkmcnt(0)\nL_join:")
    gemm2(P, cfg)
    if stamps:
        P(" s_waitcnt vmcnt(0)"); P.st("end")
        P(f" v_writelane_b32 v11, {sSPIN}, 63\n s_lshl_b32 s3, s2, 10\n s_add_u32 s3, s3, {STAMPS}\n v_lshlrev_b32 v1, 2, v0\n buffer_store_dword v11, v1, {WS}, s3 offen")
    P("L_end:\n s_endpgm")
    P.nvm, P.nds, P.vmdone, P.dsdone, P.marks, P.dmarks = save
    P("L_idle:")
    P([" s_waitcnt vmcnt(0)", FLAGST])
    P(wd_stream(d, rd, MB, cfg['idep']))
    for m in range(MB, min(56, MB + cfg["big_pre"])): P(wd_dma(m, sBIG, m - MB))
    for nm in ("hn0","p0","e0","p1","epi"): P.st(nm)
    P(hint_spin("ip0", sPH0, "L_ip0b") + ["L_ip0b:"])
    for i in range(7): P(hh_loads(0, i))
    P(FLAGLD)
    P(" s_waitcnt vmcnt(0) lgkmcnt(0)")
    P.st("ld0")
    P(" s_branch L_join")
    P(P.tail)
    P("L_codeend:")
    if os.environ.get("STAMP") == "2": P.lines = [l.replace("s_memrealtime", "s_memtime") for l in P.lines]
    if cfg.get("hack16"):
        out_ = []; i = 0; Ls = P.lines; cnt = {}
        while i < len(Ls):
            l = Ls[i]
            m = re.match(r" v_mfma_f32_32x32x16_bf16 v\[(\d+):\d+\], (\S+), (\S+), (\S+)", l)
            if not m or (cfg["hack16"] == 2 and int(m.group(1)) >= 80): out_.append(l); i += 1; continue
            d = int(m.group(1)); z = m.group(4) == "0"
            if z: cnt[d] = 0
            c = cnt[d]; cnt[d] = c + 1
            j = i + 1
            while j < len(Ls) and j - i <= 8 and "v_mfma" not in Ls[j]: j += 1
            fl = Ls[i+1:j]; h = (len(fl) + 1)//2 if len(fl) < 8 else 0
            def mm(o): return f" v_mfma_f32_16x16x32_bf16 v[{o}:{o+3}], {m.group(2)}, {m.group(3)}, " + ("0" if c < 2 else f"v[{o}:{o+3}]")
            o = d + 4*(c & 1)
            out_ += [mm(o)] + fl[:h] + [mm(o+8)] + fl[h:]; i = j
        P.lines = out_
    if cfg.get("nont"): P.lines = [l.replace(" nt", "") if l.lstrip().startswith("buffer_load") else l for l in P.lines]
    body = P.fix()
    head = open("sequential_preLN__ssm_conv_h3__glu_gated_glu__prompt.s.ref").read().split("; Override launch")[0]
    out = head + f"; @launch grid=(256,1,1) block=(256,1,1) lds={LDS_BYTES}\n"
    out += f'.amdgcn_target "amdgcn-amd-amdhsa--gfx950"\n.text\n.globl {NAME}\n.p2align 8\n.type {NAME},@function\n{NAME}:\n' + body
    out += f""" s_endpgm
.section .rodata,"a"
.p2align 6
.amdhsa_kernel {NAME}
  .amdhsa_next_free_vgpr 512
  .amdhsa_next_free_sgpr 102
  .amdhsa_accum_offset 256
  .amdhsa_group_segment_fixed_size 0
  .amdhsa_kernarg_size 104
  .amdhsa_user_sgpr_count 2
  .amdhsa_user_sgpr_kernarg_segment_ptr 1
  .amdhsa_system_sgpr_workgroup_id_x 1
.end_amdhsa_kernel
"""
    if cfg.get("probe"):
        idx = P.stn.index(cfg["probe"])
        Q = G()
        Q(f"""
 s_cmp_ge_u32 s2, 1
 s_cbranch_scc1 L_pend
 s_load_dwordx2 s[48:49], s[0:1], 96
 s_mov_b32 s50, {WS_BYTES}
 s_mov_b32 s51, 0x20000
 v_lshlrev_b32 v1, 8, v0
 v_mov_b32 v2, 0
 s_waitcnt lgkmcnt(0)
 s_mov_b32 s3, {STAMPS}
 buffer_load_dword v3, v2, s[48:51], s3 offen
 v_mov_b32 v4, 0x7fffffff
 v_mov_b32 v5, {0 if cfg.get('pmean') else 0x80000000}
 s_mov_b32 s4, {16 if (cfg['probe'] == 'end' and not cfg.get('pmean')) else 14}
L_pl:
 buffer_load_dword v6, v1, s[48:51], s3 offen
 buffer_load_dword v7, v1, s[48:51], s3 offen offset:{4*idx}
 s_waitcnt vmcnt(0)
 v_sub_u32 v6, v6, v3
 v_sub_u32 v7, v7, v3
 v_min_i32 v4, v4, v6
 {'v_add_u32' if cfg.get('pmean') else 'v_max_i32'} v5, v5, v7
 s_add_u32 s3, s3, 16384
 s_sub_u32 s4, s4, 1
 s_cmp_lg_u32 s4, 0
 s_cbranch_scc1 L_pl
 s_mov_b32 s5, 0x7fffffff
 s_mov_b32 s6, {0 if cfg.get('pmean') else 0x80000000}
 s_mov_b32 s4, 0
L_pr:
 v_readlane_b32 s7, v4, s4
 v_readlane_b32 s8, v5, s4
 s_nop 1
 s_min_i32 s5, s5, s7
 {'s_add_u32' if cfg.get('pmean') else 's_max_i32'} s6, s6, s8
 s_add_u32 s4, s4, 1
 s_cmp_lg_u32 s4, 64
 s_cbranch_scc1 L_pr
 {'s_mul_hi_u32 s6, s6, 4793490' if cfg.get('pmean') else 's_nop 0'}
 s_sub_u32 s6, s6, s5
 s_min_u32 s6, s6, 10000
 s_mul_i32 s6, s6, {cfg.get('pmul', 10)}
 s_memrealtime s[10:11]
 s_waitcnt lgkmcnt(0)
L_ps:
 s_memrealtime s[12:13]
 s_waitcnt lgkmcnt(0)
 s_sub_u32 s7, s12, s10
 s_cmp_lt_u32 s7, s6
 s_cbranch_scc1 L_ps
L_pend:
 s_endpgm
""")
        out = out.replace(f"; @launch grid=(256,1,1) block=(256,1,1) lds={LDS_BYTES}\n", f"; @launch kernel={NAME} grid=(256,1,1) block=(256,1,1) lds={LDS_BYTES}\n; @launch kernel=probe_kernel grid=(1,1,1) block=(64,1,1) lds=0\n")
        out = out.replace('.section .rodata,"a"', '.globl probe_kernel\n.p2align 8\n.type probe_kernel,@function\nprobe_kernel:\n' + Q.fix() + '.section .rodata,"a"')
        kd = out[out.index(".p2align 6\n.amdhsa_kernel"):]
        out += kd.replace(NAME, "probe_kernel").replace("vgpr 512", "vgpr 16").replace("offset 256", "offset 16")
    return out, P
CFG = dict(bar_late=1, raw0=0, raw1=0, nraw=8, raw_c=8, nb1=3, h_early=1, pre_late=1, big_per=6, v2=2, g1=4, w4=6, mw_at=4, nwarm=6, warm=0, lazy=4, vgap=1, wt=9, wtnt="", wth=0, a8=0, can1=0, can2=0, cmask=0x00010001, cbo=6, hnh=0, hn_nh=16, hn_hint_at=999, hbo=8, ap_pre=140, wsched=[(1,2,1),(20,8,5)],
           f_at=0, kbar=1, fnt2="", pf_after="SHK", nsetB=0, fnt="nt", x_at=0, wdm=0, wdc_at=0, bo=4, wnt="", w3=4, w3_every=4, wd3=0, wd_pre=0, wd_first=1, im=0,
           w5=0, w5_every=2, wd_rate=(0.8,0.9), wd_big=44, slots=(6,6), big_pre=0, big_every=8, outf="", dly3=0, dly2=0, hold=0,
           e0_exp=4, hhh=0, h0_k=12, hh_at={17:0, 20:1, 23:2, 26:3, 29:4}, hh1=0, h1_lead=2, b1_at={5:[0,1],6:[2,3],7:[4],8:[5],9:[6]}, hres_at=3)
if __name__ == "__main__":
    cfg = dict(CFG)
    for a in sys.argv[2:]:
        k, v = a.split("=", 1); cfg[k] = eval(v)
    out, P = build(cfg, bool(os.environ.get("STAMP")))
    open(sys.argv[1], "w").write(out)
    if os.environ.get("STAMP"): open(sys.argv[1] + ".names", "w").write(" ".join(P.stn))
    print("lines", len(P.lines), "nops", P.nops)
```

```python
import sys, os, re
sys.path.insert(0, "gen")
from asmlib import Prog

NAME = "sequential_preLN__ssm_conv_h3__glu_gated_glu__prompt_kernel"
TAGSLOT = 0
HC    = 0x080000
FL    = 0x0C0000
HI    = 0x1580000
OB    = 16640
KVBOX = 0x100000
YBOX  = 0x520000
HN    = 0x940000
HRES  = 0xB40000
HH    = 0xD40000
GS    = 4480
STAMPS = 0x1600000
WS_BYTES = 0x1700000
SRD = dict(X=8, K=12, V=16, SHK=20, SSMK=24, SSMD=28, WG=32, WU=36, WD=40, OUT=44, WS=48)
KOFF = dict(X=0, K=8, V=16, SHK=24, SSMK=32, SSMD=40, WG=56, WU=64, WD=72, OUT=80, WS=96)
SIZE = dict(X=2097152, K=2097152, V=2097152, SHK=4096, SSMK=2097152, SSMD=1024, WG=1835008, WU=1835008, WD=1835008, OUT=2097152, WS=WS_BYTES)
def srd(n): return f"s[{SRD[n]}:{SRD[n]+3}]"
WS = srd("WS")
sHNst, sWM, sBIG, sRING, sW, sFLst, sFLld, sG, sJ, sTAG, sLO, sHI, sMASK, sHRES, sT = [f"s{i}" for i in range(52, 67)]
sJL, sO0, sO1, sHS0, sHS1, sSB, sHCst, sE, sSPIN, sHR0, sHR1, sPH1, sL3 = [f"s{i}" for i in range(67, 80)]
sWD = 80
sHC = 87
sPH0, sP, sF0 = "s95", "s96", "s97"
sKR = "s78"
M8 = [0]
sC = sP
sWT = 12
sHL = 16
sHN = 8
def vr(b, n): return f"v[{b}:{b+n-1}]" if n > 1 else f"v{b}"
def ar(b, n): return f"a[{b}:{b+n-1}]" if n > 1 else f"a{b}"
def L(text): return [l for l in text.split("\n") if l.strip()]
def take(l, n):
    o = l[:n]; del l[:n]; return o

WGB, WUB = 0, 65536
PART = 131072; FC = 131072 + 9216; CS2 = 4160
KVR = 131072; KVCH = 4608
RING = 131072; NR = 7
STAT = 163840 - 512
BS = 1088; REDW = 16*BS
LDS_BYTES = 163840
SPIN = 20000

class G(Prog):
    def __init__(self, stamps=False):
        super().__init__(); self.nvm = 0; self.nds = 0; self.vmdone = 0; self.dsdone = 0
        self.marks = {}; self.dmarks = {}; self.stamps = stamps; self.tail = []; self.only = None; self.stn = ["start"]
    def __call__(self, text):
        if isinstance(text, list):
            for t in text: self(t)
            return
        for l in text.split("\n"):
            s = l.strip()
            if not s: continue
            if s.startswith("WAIT:"): self.vmwait(s[5:]); continue
            if s.startswith("MARK:"): self.mark(s[5:]); continue
            if s.startswith("DWAIT:"): self.dwait(s[6:]); continue
            if s.startswith("DMARK:"): self.dmarks[s[6:]] = self.nds; continue
            if s in ("SKIP", "GAP"): continue
            if s.startswith(("buffer_", "global_")): self.nvm += 1
            if s.startswith("ds_"): self.nds += 1
            if s.startswith("s_waitcnt"):
                m = re.search(r"vmcnt\((\d+)\)", s)
                if m: self.vmdone = max(self.vmdone, self.nvm - int(m.group(1)))
                m = re.search(r"lgkmcnt\((\d+)\)", s)
                if m: self.dsdone = max(self.dsdone, self.nds - int(m.group(1)))
            self.lines.append(l.rstrip())
    def mark(self, name): self.marks[name] = self.nvm
    def vmwait(self, name):
        if self.vmdone < self.marks[name]: self(f" s_waitcnt vmcnt({min(self.nvm - self.marks[name], 63)})")
    def dwait(self, name):
        if self.dsdone < self.dmarks[name]: self(f" s_waitcnt lgkmcnt({min(self.nds - self.dmarks[name], 15)})")
    def cost(self, s):
        t = s.strip()
        if t.startswith(("MARK:", "DMARK:")): return 0
        if t.startswith("WAIT:"): return 0 if self.vmdone >= self.marks[t[5:]] else 1
        if t.startswith("DWAIT:"): return 0 if self.dsdone >= self.dmarks[t[6:]] else 1
        if t == "SKIP": return 3
        if t == "GAP": return 0
        if t.startswith("s_cbranch"): return 2
        if t.startswith(("v_exp", "v_rcp")): return 2
        return 1
    def st(self, i):
        j = getattr(self, "cfg", {}).get("jit")
        if j and i in ("L1","h1","mfma","h2","g1go","p0","p1","b0","ln1","hn0","e0","epi"):
            self.jn = getattr(self, "jn", 0) + 1
            k = (j*2654435761 + self.jn*40503) & 0x7fffffff
            self.lines += [f" s_lshl_b32 s98, s2, 2", f" s_add_u32 s98, s98, {sW}" if j & 1 else " s_nop 0", f" s_add_u32 s98, s98, {k & 0xffff}", f" s_mul_i32 s98, s98, {k | 1}", " s_lshr_b32 s98, s98, 13", " s_and_b32 s98, s98, 15",
                           " s_cmp_lg_u32 s98, 3", f" s_cbranch_scc1 L_jit{self.jn}", " s_sleep 127", " s_sleep 64", f"L_jit{self.jn}:"]
        if self.stamps and (self.only is None or i in self.only):
            if i not in self.stn: self.stn.append(i)
            self.lines += [" s_memrealtime s[98:99]", " s_waitcnt lgkmcnt(0)", f" v_writelane_b32 v11, s98, {self.stn.index(i)}", f" v_writelane_b32 v11, {sSPIN}, {32+self.stn.index(i)}"]
def interleave(P, work, bulk, every):
    n = 0
    for wk in work:
        P(wk); n += 1
        if bulk and n % every == 0: P(bulk.pop(0))

vK, vW, vV, vKS, vT = 144, 164, 180, 188, 204
vD, vQ, vX = 220, 224, 240
vBB = [8, 10, 248, 249]
vSW, vDUM, vR, vWD = 250, 251, 252, 254
vWr = (8, 255)
vA, vAx, vB, vIN, aC = 16, 208, 144, 160, 224
vSEL = 216
vq, vu1 = 208, 224
vONE, vTG, vC, vHC, vHC1, vPH, vHASH, vL2, vOUT, vPD, vHP = 7, 10, 2, 248, 249, 220, 222, 223, 9, 5, 224
vHN, vRa = 16, 12
acc0, acc1, acc2, vE = 80, 144, 16, 240
CHN = [208, 209, 210, 211]
CHH = {(0,i): 212+i for i in range(7)}
CHH.update({(1,0):208,(1,1):209,(1,2):210,(1,3):211,(1,4):219,(1,5):221,(1,6):212})
HREG = {(0,0):224, (0,1):80, (0,2):96, (0,3):112, (0,4):128, (0,5):16, (0,6):32,
        (1,0):144, (1,1):160, (1,2):176, (1,3):192, (1,4):224, (1,5):80, (1,6):96}

def srdc(names): return [x for n in names for x in (f" s_mov_b32 s{SRD[n]+2}, {SIZE[n]}", f" s_mov_b32 s{SRD[n]+3}, 0x20000")]
def entry(P, cfg):
    P(" s_cmp_ge_u32 s2, 256\n s_cbranch_scc1 L_end")
    if P.stamps: P(" s_memrealtime s[98:99]")
    if cfg["xorb"]: P(f" s_xor_b32 s2, s2, {cfg['xorb']}")
    sl = lambda n: f" s_load_dwordx2 s[{SRD[n]}:{SRD[n]+1}], s[0:1], {KOFF[n]}"
    pf = L(f"""
 s_getpc_b64 s[100:101]
L_pc:
 s_bfe_u32 s3, s2, 0x20003
 s_mul_i32 s3, s3, 12288
 v_lshlrev_b32 v12, 7, v0
 v_add_u32 v13, s3, v12
 v_cmp_gt_u32 vcc, 32, v0
 v_cndmask_b32 v12, v13, v12, vcc
 v_min_u32 v12, L_codeend-L_pc-4, v12
 v_cmp_gt_u32 vcc, 128, v0
 s_and_saveexec_b64 s[6:7], vcc
 s_cbranch_execz L_nopf
 global_load_dword v{vDUM}, v12, s[100:101]
L_nopf:
 s_mov_b64 exec, s[6:7]""")
    pf2 = L(f"""
 s_getpc_b64 s[100:101]
L_pc:
 s_bfe_u32 s3, s2, 0x30003
 s_lshl_b32 s3, s3, 2
 v_lshrrev_b32 v12, 6, v0
 v_add_u32 v12, s3, v12
 v_mul_u32_u24 v12, {cfg['pfl']}, v12
 v_and_b32 v13, 63, v0
 v_min_u32 v13, {cfg['pfl']-1}, v13
 v_add_lshl_u32 v12, v12, v13, 7
 v_min_u32 v12, L_codeend-L_pc-4, v12
 global_load_dword v{vDUM}, v12, s[100:101]""")
    if cfg["pfl"]: pf = pf2
    first = ("K","V","SHK","WS","SSMK","X","SSMD") if cfg["sl_late"] else ("K","V","SHK","WS","SSMK","X","SSMD","WD","WG","WU","OUT")
    rest = [sl(n) for n in ("WD","WG","WU","OUT")] if cfg["sl_late"] else []
    for n in first:
        P(sl(n))
        if n == "SHK" and cfg["pf_at"] == 0: P(pf)
    P(f"""
 s_and_b32 s3, s2, 7
 s_lshl_b32 s3, s3, 5
 s_lshr_b32 {sP}, s2, 3
 s_or_b32 {sP}, {sP}, s3
 v_and_b32 v1, 3, v0
 v_lshrrev_b32 v2, 2, v0
 s_lshl_b32 s3, {sP}, 13
 v_lshlrev_b32 v3, 11, v1
 v_lshl_add_u32 v3, v2, 4, v3
 v_add_u32 v3, s3, v3
 v_subrev_u32 v4, 3072, v3
 v_subrev_u32 v5, 2048, v3
 v_subrev_u32 v8, 1024, v3
 v_lshlrev_b32 v9, 4, v0
""")
    P(srdc(("K","V","SHK")))
    pre2 = L(f"""
 v_lshrrev_b32 v6, 6, v0
 s_nop 0
 v_readfirstlane_b32 {sW}, v6
 v_and_b32 v6, 63, v0
 v_lshlrev_b32 v6, 4, v6
 s_lshl_b32 {sF0}, {sC}, 1
 s_lshr_b32 s7, {sW}, 1
 s_add_u32 {sF0}, {sF0}, s7
 s_lshl_b32 {sF0}, {sF0}, 12
 s_mul_i32 s7, {sW}, {CS2}
 s_add_u32 s7, s7, {FC}
 v_mov_b32 v12, 0
 s_and_b32 s3, {sW}, 1
 s_sub_u32 s4, 7, s3
 v_and_b32 v14, 7, v0
 v_min_u32 v14, s4, v14
 v_lshl_add_u32 v13, v14, 2, s7
 ds_write_b32 v13, v12
 s_lshl_b32 s3, s3, 2
 s_sub_u32 {sBIG}, s7, s3
 s_mul_i32 s4, {sP}, {OB}
 s_add_u32 s4, s4, {KVBOX}
 s_add_u32 s5, s4, 4096
 s_add_u32 s6, s4, 8192
 s_add_u32 s7, s4, 12288
 s_mov_b32 {sLO}, 0x05040100
 s_mov_b32 {sHI}, 0x07060302
 s_mov_b32 {sMASK}, 0xffff0000
 s_mov_b32 {sSPIN}, {SPIN if P.stamps else 400000}
 v_lshlrev_b32 v7, 4, v2""") + srdc(("SSMK","WS","X","SSMD","WD")) + [f" v_mov_b32 v{vKS+i}, 0" for i in range(16)]
    if not cfg["pre2_late"]: P(pre2)
    if P.stamps: P(f" s_mov_b32 {sSPIN}, {SPIN}")
    if P.stamps: P(" v_mov_b32 v11, 0\n s_waitcnt lgkmcnt(0)\n v_writelane_b32 v11, s98, 0"); P.st("karg")
    lds_ = [f" buffer_load_dwordx4 {vr(vK,4)}, v4, {srd('K')}, 0 offen nt", f" buffer_load_dwordx4 {vr(vK+4,4)}, v5, {srd('K')}, 0 offen nt", f" buffer_load_dwordx4 {vr(vK+8,4)}, v8, {srd('K')}, 0 offen nt", f" buffer_load_dwordx4 {vr(vK+12,4)}, v3, {srd('K')}, 0 offen nt", f" buffer_load_dwordx4 {vr(vK+16,4)}, v3, {srd('K')}, 0 offen offset:1024 nt", f" buffer_load_dwordx4 {vr(vV,4)}, v3, {srd('V')}, 0 offen nt", f" buffer_load_dwordx4 {vr(vV+4,4)}, v3, {srd('V')}, 0 offen offset:1024 nt", f" buffer_load_dwordx4 {vr(vW,4)}, v9, {srd('SHK')}, 0 offen"]
    ORD = "\n".join(lds_[i] for i in cfg["lord"])
    P(f"""
 s_waitcnt lgkmcnt(0)
{ORD}
MARK:L1
 s_load_dword {sTAG}, s[{SRD['WS']}:{SRD['WS']+1}], {TAGSLOT}
""")
    if cfg["pf_at"] == 1:
        assert cfg["pfl"]
        P(pf)
    P(rest)
    if cfg["pre2_late"]: P(pre2)
def filter_dma(cfg):
    return [f" s_add_u32 m0, {sBIG}, 32"] + [f" buffer_load_dwordx4 v6, {srd('SSMK')}, {sF0} offen offset:{1024*i} lds" for i in range(4)] + ["MARK:A"]
def x_loads():
    return [f" buffer_load_dwordx4 {vr(vX,4)}, v3, {srd('X')}, 0 offen nt",
            f" buffer_load_dwordx4 {vr(vX+4,4)}, v3, {srd('X')}, 0 offen offset:1024 nt",
            f" buffer_load_dwordx4 {vr(vD,4)}, v7, {srd('SSMD')}, 0 offen", "MARK:X"]
def tag_setup():
    return [" s_waitcnt lgkmcnt(0)", f" s_add_u32 {sTAG}, {sTAG}, 0x9E3779B1"] + [f" v_mov_b32 v{vQ+2*t+1}, {sTAG}" for t in range(8)]
def p0_kv(P):
    Krow = lambda i, d: vK + 4*i + d
    prs = [(3,2),(1,0),(4,3),(2,1)]
    def A(t):
        T = vT + 8*(t & 1); o = []
        for c in range(2):
            for n,(x,y) in enumerate(prs):
                o.append(f" v_perm_b32 v{T+4*c+n}, v{Krow(y,t)}, v{Krow(x,t)}, {sHI if c else sLO}")
        ks = vKS + 4*t
        qp = f"quad_perm:[{t},{t},{t},{t}] row_mask:0xf bank_mask:0xf"
        for hi in (1, 0):
            for c in range(2):
                o.append(f" v_dot2c_f32_bf16_dpp v{ks+c}, v{vW+2*c+hi}, v{T+4*c+hi} {qp}")
                o.append(f" v_dot2c_f32_bf16_dpp v{ks+2+c}, v{vW+2*c+hi}, v{T+4*c+2+hi} {qp}")
        return o
    def B(t):
        T = vT + 8*(t & 1); ks = vKS + 4*t
        return L(f""" v_lshlrev_b32 v{T}, 16, v{vV+t}
 v_and_b32 v{T+1}, {sMASK}, v{vV+t}
 v_lshlrev_b32 v{T+2}, 16, v{vV+4+t}
 v_and_b32 v{T+3}, {sMASK}, v{vV+4+t}
 v_pk_mul_f32 {vr(ks,2)}, {vr(ks,2)}, {vr(T,2)}
 v_pk_mul_f32 {vr(ks+2,2)}, {vr(ks+2,2)}, {vr(T+2,2)}
 v_cvt_pk_bf16_f32 v{vQ+4*t}, v{ks}, v{ks+1}
 v_cvt_pk_bf16_f32 v{vQ+4*t+2}, v{ks+2}, v{ks+3}
 buffer_store_dwordx4 {vr(vQ+4*t,4)}, v9, {WS}, s{4+t} offen sc1""")
    na = P.cfg["ksplit"]
    for t in range(na): P(A(t))
    P.vmwait("L1")
    for t in range(4):
        if t >= na: P(A(t))
        P(B(t))
def wd_mall():
    return L(f""" s_lshl_b32 s100, s2, 2
 s_add_u32 s100, s100, {sW}
 s_mul_i32 s100, s100, 1792
 v_lshlrev_b32 v4, 3, v6
 v_min_u32 v4, {13*128}, v4
 buffer_load_dword v{vDUM}, v4, {srd('WD')}, s100 offen""")
def idle_mall(name, nx):
    per = 112*(8//nx)
    o = L(f""" s_cmp_lt_u32 {sJL}, 7
 s_cbranch_scc1 L_{name}
 s_and_b32 s100, s2, {nx-1}
 s_lshl_b32 s100, s100, 2
 s_add_u32 s100, s100, {sL3}
 s_lshl_b32 s100, s100, 2
 s_add_u32 s100, s100, {sW}
 s_mul_i32 s100, s100, {per*128}
 v_lshlrev_b32 v4, 3, v6
 v_min_u32 v4, {55*128}, v4""")
    for i in range(per//56): o += [f" buffer_load_dword v{vDUM}, v4, {srd('WD')}, s100 offen", f" s_add_u32 s100, s100, {56*128}"]
    return o + [f"L_{name}:"], per//56
def w_touch(nt, half):
    o = L(f""" s_lshl_b32 s100, {sL3}, 7
 s_and_b32 s3, s2, 1
 s_lshl_b32 s3, s3, 6
 s_add_u32 s100, s100, s3
 s_lshl_b32 s3, {sW}, {4 if half else 5}
 s_add_u32 s100, s100, s3
 v_and_b32 v4, {15 if half else 31}, v0
 v_add_u32 v4, s100, v4
 v_and_b32 v4, 511, v4
 v_mul_u32_u24 v4, 3584, v4
 s_lshl_b32 s100, {sJ}, 7
 buffer_load_dword v{vDUM}, v4, {srd('WG')}, s100 offen {nt}
 buffer_load_dword v{vDUM}, v4, {srd('WU')}, s100 offen {nt}""")
    return o
def a_consts():
    return L(f"""
 v_and_b32 v4, 15, v0
 v_add_u32 v4, 1, v4
 v_bfe_u32 v15, v4, 1, 1
 v_mul_u32_u24 v15, {CS2}, v15
 v_lshrrev_b32 v4, 2, v4
 v_lshl_add_u32 v15, v4, 3, v15
 v_bfe_u32 v4, v0, 4, 3
 v_lshl_add_u32 v15, v4, 6, v15
 s_lshr_b32 s3, {sW}, 1
 s_mul_i32 s3, s3, {2*CS2}
 s_add_u32 s3, s3, {FC}
 v_add_u32 v15, s3, v15
 v_and_b32 v12, 1, v0
 v_mul_u32_u24 v12, 0x020202, v12
 v_lshl_or_b32 v12, v12, 8, v12
 v_sub_u32 v12, 0x05040302, v12""")
def a_perm(a, i):
    nxt = vA+16*a+i+1 if i < 15 else vAx+a
    return f" v_perm_b32 v{vA+16*a+i}, v{nxt}, v{vA+16*a+i}, v{vSEL}"
def a_prep(lazy):
    def rd(a): return [f" ds_read2_b64 {vr(vA+16*a+4*bb,4)}, v{15 if a < 4 else 12} offset0:{64*(a&3)+2*bb} offset1:{64*(a&3)+2*bb+1}" for bb in range(4)] + [f" ds_read_b32 v{vAx+a}, v15 offset:{512*a+64}", f"DMARK:a{a}"]
    o = [f" v_mov_b32 v{vSEL}, v12", " v_add_u32 v12, 2048, v15"] + rd(0) + rd(1)
    for a in range(8):
        if a+2 < 8: o += rd(a+2)
        o.append(f"DWAIT:a{a}")
        for i in range(4*lazy): o.append(a_perm(a, i))
    return o
def roles():
    t = 168
    o = L(f"""
 s_bfe_u32 {sL3}, s2, 0x20003
 s_lshr_b32 {sJL}, s2, 5
 s_and_b32 s3, s2, 1
 s_lshl_b32 s3, s3, 2
 s_add_u32 {sG}, s3, {sL3}
 s_bfe_u32 s3, s2, 0x20001
 s_mul_i32 s3, s3, 7
 s_add_u32 {sJ}, s3, {sJL}
 s_mov_b32 {sKR}, {sJL}""" + (f"""
 s_lshr_b32 {sKR}, s2, 6
 s_and_b32 {sJ}, s2, 1
 s_lshl_b32 {sJ}, {sJ}, 2
 s_add_u32 {sJ}, {sJ}, {sKR}
 s_bfe_u32 s100, s2, 0x30003
 s_cmp_eq_u32 {sKR}, 3
 s_cselect_b32 {sJ}, 3, {sJ}
 s_cselect_b32 {sG}, {sG}, s100
 s_add_u32 {sJ}, {sJ}, s3
 s_lshl_b32 {sKR}, {sKR}, 1""" if M8[0] == 1 else "") + (f"""
 s_and_b32 {sG}, s2, 3
 s_lshl_b32 {sG}, {sG}, 1
 s_bfe_u32 s100, s2, 0x10003
 s_add_u32 {sG}, {sG}, s100
 s_bfe_u32 {sJ}, s2, 0x10002
 s_mul_i32 {sJ}, {sJ}, 14
 s_lshr_b32 {sKR}, s2, 4
 s_add_u32 {sJ}, {sJ}, {sKR}
 s_and_b32 {sKR}, {sKR}, 7""" if M8[0] == 2 else "") + f"""
 s_cmp_ge_u32 {sJL}, 7
 s_cselect_b32 s{SRD['WG']+2}, 0, {SIZE['WG']}
 s_mov_b32 s{SRD['WG']+3}, 0x20000
 s_mov_b32 s{SRD['WU']+2}, s{SRD['WG']+2}
 s_mov_b32 s{SRD['WU']+3}, 0x20000
 v_bfe_u32 v{t+1}, v0, 3, 3
 v_and_b32 v{t+3}, 7, v0
 v_mul_u32_u24 v{t+2}, 3584, v{t+1}
 v_and_b32 v{t+4}, 2, v{t+1}
 v_xor_b32 v{t+5}, v{t+3}, v{t+4}
 s_lshl_b32 s3, {sJ}, 7
 v_add_u32 v{t+2}, s3, v{t+2}
 v_lshl_add_u32 v{vR}, v{t+5}, 4, v{t+2}
 v_xor_b32 v{t+5}, 4, v{t+5}
 v_lshl_add_u32 v{vR+1}, v{t+5}, 4, v{t+2}
 v_lshlrev_b32 v{t+4}, 1, v{t+4}
 v_xor_b32 v{t+3}, v{t+3}, v{t+4}
 v_lshlrev_b32 v{t+1}, 10, v{t+1}
 v_lshl_add_u32 v{vWD}, v{t+3}, 4, v{t+1}""")
    return o
def w_table():
    o = L((f""" s_lshl_b32 s100, {sL3}, 4
 s_and_b32 s3, s2, 1
 s_lshl_b32 s3, s3, 3
 s_add_u32 s100, s100, s3""" if not M8[0] else f""" s_and_b32 s100, {sG}, 1
 s_lshl_b32 s100, s100, 2
 s_lshr_b32 s3, {sG}, 1
 s_add_u32 s100, s100, s3
 s_lshl_b32 s100, s100, 3""" if M8[0] == 2 else f""" s_lshr_b32 s3, {sG}, 2
 s_and_b32 s100, {sG}, 3
 s_lshl_b32 s100, s100, 1
 s_add_u32 s100, s100, s3
 s_lshl_b32 s100, s100, 3""") + f"""
 s_add_u32 s100, s100, {sW}
 s_lshl_b32 s3, {sKR}, 3
 s_sub_u32 {sWM}, s100, s3
 s_lshl_b32 {sWM}, {sWM}, 10""")
    for idx in range(16): o += [f" s_add_u32 s3, s100, {4*idx}", " s_and_b32 s3, s3, 63", f" s_mul_i32 s{sWT+idx}, s3, {8*3584}"]
    return o
def w_pair(idx, nt):
    return [f" s_add_u32 s101, {sWM}, {idx*4096}\n s_and_b32 m0, s101, 0xffff", f" buffer_load_dwordx4 v{vR}, {srd('WG')}, s{sWT+idx} offen {nt} lds",
            f" s_add_u32 m0, m0, 65536", f" buffer_load_dwordx4 v{vR+1}, {srd('WU')}, s{sWT+idx} offen {nt} lds"]
def conv_setup():
    t = 176
    o = L(f"""
 v_mov_b32 v{t}, 0
 v_and_b32 v13, 127, v0
 v_lshlrev_b32 v13, 2, v13
 v_lshrrev_b32 v14, 7, v0
 v_mul_u32_u24 v14, {KVCH}, v14
 s_mov_b32 s3, {KVR+4096}
 v_add3_u32 v13, v13, v14, s3
 ds_write_b32 v13, v{t}
 v_and_b32 v13, 15, v0
 v_lshlrev_b32 v13, 5, v13
 v_bfe_u32 v14, v0, 4, 3
 v_lshlrev_b32 v14, 6, v14
 v_sub_u32 v14, v14, v13
 v_add_u32 v14, 480, v14
 s_lshr_b32 s3, {sW}, 1
 s_mul_i32 s3, s3, {KVCH}
 s_add_u32 s3, s3, {KVR}""")
    for bb in range(4):
        o += L(f""" v_add_u32 v13, {16*bb}, v14
 v_lshrrev_b32 v{t+1}, 4, v13
 v_and_b32 v{t+1}, 16, v{t+1}
 v_xor_b32 v13, v13, v{t+1}
 v_add_u32 v{vBB[bb]}, s3, v13""")
    o += L(f"""
 v_lshlrev_b32 v13, 2, v0
 v_sub_u32 v13, 1020, v13
 v_lshrrev_b32 v{t+1}, 4, v13
 v_and_b32 v{t+1}, 16, v{t+1}
 v_xor_b32 v13, v13, v{t+1}
 v_add_u32 v13, {KVR}, v13
 v_mul_u32_u24 v14, {OB}, v2
 v_lshl_add_u32 v14, v1, 4, v14""")
    return o
def h1_addr():
    return L(f"""
 s_and_b32 s4, {sC}, 3
 s_lshl_b32 s4, s4, 12
 s_lshr_b32 s3, {sC}, 2
 s_lshl_b32 s3, s3, 6
 s_add_u32 s4, s4, s3
 s_add_u32 s4, s4, {KVBOX}
 s_add_u32 s5, s4, {64*OB}
 s_add_u32 s6, s4, {128*OB}
 s_add_u32 s7, s4, {192*OB}""")
def box_recv(P, base, name, sleep, shadow=None, per=None, spec=()):
    lds = [f" buffer_load_dwordx4 {vr(base+4*i,4)}, v14, {WS}, s{4+i} offen sc1" for i in range(4)]
    for i in range(4): P(lds[i]); P.mark(f"{name}{i}")
    if shadow: P(shadow)
    P.vmwait(f"{name}0")
    P(f"L_{name}:")
    for i in range(4):
        P.vmwait(f"{name}{i}")
        if i == 0: P(f" v_xor_b32 v4, {sTAG}, v{base+1}")
        else: P(f" v_bitop3_b32 v4, v4, v{base+4*i+1}, {sTAG} bitop3:0xf6")
        P(f" v_bitop3_b32 v4, v4, v{base+4*i+3}, {sTAG} bitop3:0xf6")
        if i == 3: P(" v_cmp_ne_u32 vcc, 0, v4")
        P(per(i))
    P(" s_mov_b64 exec, -1")
    P(list(spec))
    P(f" s_cbranch_vccnz L_{name}_r\nL_{name}_ok:")
    P.tail += L(f"""L_{name}_r:
 s_mov_b64 exec, vcc
 s_sleep {sleep}""") + lds + L(f""" s_waitcnt vmcnt(0) lgkmcnt(0)
 s_sub_u32 {sSPIN}, {sSPIN}, 1
 s_cbranch_scc0 L_{name}
 s_mov_b32 {sSPIN}, 0
 s_mov_b64 exec, -1
 s_branch L_{name}_ok""")
def canary_issue(cfg, stride):
    m = cfg["cmask"]
    return L(f"""
 s_bfe_u32 {sT}, {sP}, 0x20003
 s_mul_i32 {sT}, {sT}, {stride}
 s_add_u32 {sT}, {sT}, s4
 s_bfe_u32 s3, {sP}, 0x20001
 s_lshl_b32 s3, s3, 2
 s_mov_b32 s100, {m}
 s_mov_b32 s101, {m}
 s_lshl_b64 s[100:101], s[100:101], s3
 v_mov_b32 v7, {sTAG}
 s_mov_b64 exec, s[100:101]
 buffer_load_dword v7, v14, {WS}, {sT} offen offset:4 sc1
 s_mov_b64 exec, -1
MARK:can""")
def canary_check(P, name, sleep):
    P.tail += L(f"""L_{name}_r:
 s_sub_u32 {sSPIN}, {sSPIN}, 1
 s_cbranch_scc1 L_{name}_x
 s_mov_b64 exec, vcc
 s_sleep {sleep}
 buffer_load_dword v7, v14, {WS}, {sT} offen offset:4 sc1
 s_mov_b64 exec, -1
 s_waitcnt vmcnt(0)
 v_cmp_ne_u32 vcc, {sTAG}, v7
 s_cbranch_vccnz L_{name}_r
 s_branch L_{name}_b
L_{name}_x:
 s_mov_b32 {sSPIN}, 0
 s_branch L_{name}_b""")
    return ["WAIT:can", f" v_cmp_ne_u32 vcc, {sTAG}, v7", f" s_cbranch_vccnz L_{name}_r", f"L_{name}_b:"]
KP = 176
def kv_per(i): return [f" v_perm_b32 v{KP+2*i+c}, v{vIN+4*i}, v{vIN+4*i+2}, {sHI if c else sLO}" for c in range(2)] + \
    [f" ds_write2st64_b32 v13, v{KP+2*i}, v{KP+2*i+1} offset0:{(3-i)*4} offset1:{(3-i)*4+KVCH//256}"]
QD = 144
def conv_epi_consts():
    return L(f"""
 v_bfe_u32 v13, v0, 4, 2
 v_lshlrev_b32 v14, 6, v13
 v_xor_b32 v13, v14, v6
 s_lshl_b32 s3, {sW}, 13
 s_add_u32 s3, s3, {PART}
 v_add_u32 v13, s3, v13
 v_bfe_u32 v15, v0, 1, 2
 v_bfe_u32 v14, v0, 3, 4
 v_lshlrev_b32 v12, 2, v15
 v_xor_b32 v14, v14, v12
 v_lshlrev_b32 v14, 4, v14
 v_lshl_add_u32 v14, v15, 8, v14
 v_lshrrev_b32 v15, 7, v0
 v_lshl_add_u32 v14, v15, 10, v14
 v_and_b32 v15, 1, v0
 v_lshl_add_u32 v14, v15, 3, v14
 v_add_u32 v14, {PART}, v14
 s_mul_i32 s4, {sC}, {OB}
 s_add_u32 s4, s4, {YBOX}
 s_add_u32 s5, s4, 4096
 s_add_u32 s6, s4, 8192
 s_add_u32 s7, s4, 12288""")
def conv_mfma(P, bulk, sched):
    lazy = P.cfg['lazy']
    def rd(bb): return [f" ds_read_b128 {vr(vB+32*(bb&1)+4*d,4)}, v{vBB[bb]} offset:{(7-d)*512}" for d in range(8)]
    def mf(j, a, bb, first): P(f" v_mfma_f32_16x16x32_bf16 {ar(aC+4*j,4)}, {vr(vA+16*a+4*bb,4)}, {vr(vB+32*(bb&1)+4*(j-a),4)}, {'0' if first else ar(aC+4*j,4)}")
    used = [0]; n = [0]; cur = []
    def due():
        allowed = sum(min(2*c, max(0, (n[0] - s0)//e + 1)) for (s0, c, e) in sched)
        return used[0] < allowed
    q1 = []; q2 = []; extra = conv_epi_consts()
    def fillers(k=2):
        n[0] += 1
        while k > 0:
            if not cur and bulk and due():
                cur.extend(x for x in bulk.pop(0).split("\n") if x.strip() != "SKIP"); used[0] += 1
                continue
            if q1: P(q1.pop(0))
            elif cur:
                x = cur.pop(0); P(x)
                if " m0," in x and not cur and k == 2 and not q2 and not extra: k -= 1
            elif q2: P(q2.pop(0))
            elif extra: P(extra.pop(0))
            else: break
            k -= 1
    P(rd(0))
    for bb in range(3):
        q2 += [a_perm(a, i) for a in range(8) for i in range(4*(bb+1), 4*(bb+2))] if bb+1 >= lazy else []
        order = [(a+d, a, d) for d in range(8) for a in range(8-d)]
        for idx, (j, a, d) in enumerate(order):
            if idx == 0: P(" s_waitcnt lgkmcnt(7)" if bb == 0 else " s_waitcnt lgkmcnt(0)")
            if bb == 0 and idx == 8: P(" s_waitcnt lgkmcnt(0)")
            if idx == 8: q1 += rd(bb+1)
            mf(j, a, bb, bb == 0 and d == 0)
            fillers(1 if (idx == 35 or (bb == 0 and idx == 7)) else 2)
        if q2: print("perm spill", len(q2), end=" ")
        P(q2); del q2[:]
    P(extra); del extra[:]
    P(" s_waitcnt lgkmcnt(0)\n s_barrier")
    q2 += [f" v_mov_b32 v{QD+2*i+1}, {sTAG}" for i in range(8)]
    wr = []; cnt = 0
    for j in range(8):
        for a in range(j+1):
            mf(j, a, 3, False); cnt += 1
            if wr and wr[0][1] + 4 <= cnt: q1.append(wr.pop(0)[0])
            fillers()
        wr.append((f" ds_write_b128 v13, {ar(aC+4*j,4)} offset:{j*1024}", cnt))
    P(q1); P(cur); P(q2)
    for x in wr: P(x[0])
def conv_epilogue(P):
    R = 16
    P(" s_waitcnt lgkmcnt(0)\n s_barrier")
    for i in range(4):
        for c in range(2): P(f" ds_read2st64_b64 {vr(R+8*i+4*c,4)}, v14 offset0:{4*i+32*c} offset1:{4*i+32*c+16}")
    for i in range(4):
        P(f" s_waitcnt lgkmcnt({6-2*i})")
        b = R+8*i
        P(f""" v_pk_add_f32 {vr(b,2)}, {vr(b,2)}, {vr(b+2,2)}
 v_pk_add_f32 {vr(b+4,2)}, {vr(b+4,2)}, {vr(b+6,2)}
 v_cvt_pk_bf16_f32 v{QD+4*i}, v{b}, v{b+4}
 v_cvt_pk_bf16_f32 v{QD+4*i+2}, v{b+1}, v{b+5}
 buffer_store_dwordx4 {vr(QD+4*i,4)}, v9, {WS}, s{4+i} offen sc1""")

vSR = 15
def stat_consts():
    return L(f"""
 v_bfe_u32 v{vSW}, v0, 4, 4
 v_lshl_add_u32 v{vSW}, v1, 4, v{vSW}
 v_lshlrev_b32 v{vSW}, 2, v{vSW}
 v_add_u32 v{vSW}, {STAT}, v{vSW}
 v_lshlrev_b32 v{vSR}, 6, v1
 v_add_u32 v{vSR}, {STAT}, v{vSR}
 s_mov_b32 s30, 0x3b000000
 s_mov_b32 s31, 0x3b000000""")
def row_stats(src, tmp, off, mr, shadow, have=False):
    o = []
    a = tmp+8
    for r in range(2):
        b = src+8*r
        o.append(f" v_pk_add_f32 {vr(a+4*r,2)}, {vr(b,2)}, {vr(b+2,2)}")
        o.append(f" v_pk_mul_f32 {vr(a+4*r+2,2)}, {vr(b,2)}, {vr(b,2)}")
    for i in range(1, 4):
        for r in range(2):
            b = src+8*r+2*i
            if i >= 2: o.append(f" v_pk_add_f32 {vr(a+4*r,2)}, {vr(a+4*r,2)}, {vr(b,2)}")
            o.append(f" v_pk_fma_f32 {vr(a+4*r+2,2)}, {vr(b,2)}, {vr(b,2)}, {vr(a+4*r+2,2)}")
    if have: o = []
    for k in range(4): o.append(f" v_add_f32 v{tmp+k}, v{a+2*k}, v{a+2*k+1}")
    sh = list(shadow)
    def S(n): return take(sh, n)
    o += S(2) + [f" v_permlane32_swap_b32 v{tmp}, v{tmp+1}", f" v_permlane32_swap_b32 v{tmp+2}, v{tmp+3}",
          f" v_add_f32 v{tmp}, v{tmp}, v{tmp+1}", f" v_add_f32 v{tmp+2}, v{tmp+2}, v{tmp+3}"] + S(2) + \
         [f" v_permlane16_swap_b32 v{tmp}, v{tmp+2}", f" v_add_f32 v{tmp}, v{tmp}, v{tmp+2}"] + S(2) + \
         [f" v_add_f32_dpp v{tmp}, v{tmp}, v{tmp} row_ror:4 row_mask:0xf bank_mask:0xf"] + S(2) + \
         [f" v_add_f32_dpp v{tmp}, v{tmp}, v{tmp} row_ror:8 row_mask:0xf bank_mask:0xf", f" ds_write_b32 v{vSW}, v{tmp} offset:{off}"] + S(8) + \
         [" s_waitcnt lgkmcnt(0)", " s_barrier"] + \
         [f" ds_read_b128 {vr(tmp+8+4*k,4)}, v{vSR} offset:{off+16*k}" for k in range(4)] + S(99) + [" s_waitcnt lgkmcnt(0)"]
    o += L(f"""
 v_pk_add_f32 {vr(a,2)}, {vr(a,2)}, {vr(a+4,2)}
 v_pk_add_f32 {vr(a+8,2)}, {vr(a+8,2)}, {vr(a+12,2)}
 v_pk_add_f32 {vr(a+2,2)}, {vr(a+2,2)}, {vr(a+6,2)}
 v_pk_add_f32 {vr(a+10,2)}, {vr(a+10,2)}, {vr(a+14,2)}
 v_pk_add_f32 {vr(tmp,2)}, {vr(a,2)}, {vr(a+8,2)}
 v_pk_add_f32 {vr(tmp+2,2)}, {vr(a+2,2)}, {vr(a+10,2)}
 v_pk_mul_f32 {vr(tmp,2)}, {vr(tmp,2)}, s[30:31]
 v_pk_mul_f32 {vr(tmp+2,2)}, {vr(tmp+2,2)}, s[30:31]
 v_pk_fma_f32 {vr(tmp+2,2)}, {vr(tmp,2)}, {vr(tmp,2)}, {vr(tmp+2,2)} neg_lo:[1,0,0] neg_hi:[1,0,0]
 v_cvt_pk_bf16_f32 v{tmp+4}, v{tmp}, v{tmp+1}
 v_max_f32 v{tmp+2}, 0, v{tmp+2}
 v_max_f32 v{tmp+3}, 0, v{tmp+3}
 v_cvt_pk_bf16_f32 v{tmp+5}, v{tmp+2}, v{tmp+3}
 v_lshlrev_b32 v{tmp+2}, 16, v{tmp+5}
 v_and_b32 v{tmp+3}, {sMASK}, v{tmp+5}
 v_add_f32 v{tmp+2}, 0x3727c5ac, v{tmp+2}
 v_add_f32 v{tmp+3}, 0x3727c5ac, v{tmp+3}
 v_cvt_pk_bf16_f32 v{tmp+5}, v{tmp+2}, v{tmp+3}
 v_lshlrev_b32 v{tmp+2}, 16, v{tmp+5}
 v_and_b32 v{tmp+3}, {sMASK}, v{tmp+5}
 v_sqrt_f32 v{tmp+2}, v{tmp+2}
 v_sqrt_f32 v{tmp+3}, v{tmp+3}
 v_lshlrev_b32 v{mr}, 16, v{tmp+4}
 v_cvt_pk_bf16_f32 v{tmp+5}, v{tmp+2}, v{tmp+3}
 v_lshlrev_b32 v{tmp+2}, 16, v{tmp+5}
 v_and_b32 v{tmp+3}, {sMASK}, v{tmp+5}
 v_rcp_f32 v{mr+2}, v{tmp+2}
 v_rcp_f32 v{mr+3}, v{tmp+3}
 v_and_b32 v{mr+1}, {sMASK}, v{tmp+4}
 v_pk_mul_f32 {vr(mr,2)}, {vr(mr,2)}, {vr(mr+2,2)} neg_lo:[1,0] neg_hi:[1,0]""")
    return o
def norm_row(dst, src, mr, row):
    sel = f"op_sel:[0,{row},{row}] op_sel_hi:[1,{row},{row}]"
    return [f" v_pk_fma_f32 {vr(dst+8*row+2*i,2)}, {vr(src+8*row+2*i,2)}, {vr(mr+2,2)}, {vr(mr,2)} {sel}" for i in range(4)]
def unpack(dst, src): return [f" v_lshlrev_b32 v{dst}, 16, v{src}", f" v_and_b32 v{dst+1}, {sMASK}, v{src}"]
def ln1():
    tmp = 176; mr = 200; kd = 160
    o = []
    for r in range(2):
        for t in range(4): o += unpack(kd+8*r+2*t, vQ+4*t+2*r)
    for i in range(8): o += unpack(vu1+2*i, vX+i)
    sh = []
    for i in range(4): sh += unpack(vX+2*i, vD+i)
    for r in range(2):
        for t in range(4): sh.append(f" v_pk_mul_f32 {vr(kd+8*r+2*t,2)}, {vr(kd+8*r+2*t,2)}, {vr(vX+2*t,2)}")
    o += row_stats(vu1, tmp, 0, mr, sh)
    o += norm_row(vq, vu1, mr, 0) + norm_row(vq, vu1, mr, 1)
    for i in range(8): o.append(f" v_pk_fma_f32 {vr(vu1+2*i,2)}, {vr(vq+2*i,2)}, {vr(kd+2*i,2)}, {vr(vu1+2*i,2)}")
    return o
vY = 64
def ln2_per(t):
    vh, a = 80, 120
    o = []
    for r in range(2): o += unpack(vh+8*r+2*t, vY+4*t+2*r)
    for r in range(2):
        x = vh+8*r+2*t
        o.append(f" v_pk_fma_f32 {vr(x,2)}, {vr(vq+8*r+2*t,2)}, {vr(x,2)}, {vr(vu1+8*r+2*t,2)}")
    for r in range(2):
        x = vh+8*r+2*t
        if t == 0: o.append(f" v_pk_mul_f32 {vr(a+4*r+2,2)}, {vr(x,2)}, {vr(x,2)}")
        else:
            o.append(f" v_pk_add_f32 {vr(a+4*r,2)}, {vr(a+4*r if t > 1 else x-2,2)}, {vr(x,2)}")
            o.append(f" v_pk_fma_f32 {vr(a+4*r+2,2)}, {vr(x,2)}, {vr(x,2)}, {vr(a+4*r+2,2)}")
    return o
def ln2(P0, bulk, every):
    P = G(); P.cfg = P0.cfg
    vh, vn, tmp, mr = 80, 104, 112, 136
    sh = [f" v_cvt_pk_bf16_f32 v{vHP+i}, v{vh+2*i}, v{vh+2*i+1}" for i in range(8)]
    if P.cfg["h_sh"]: sh += HST[:2]
    for i in range(8): sh += unpack(vh+2*i, vHP+i)
    P(row_stats(vh, tmp, 256, mr, sh, True))
    for r in range(2):
        P(norm_row(vh, vh, mr, r))
        for i in range(4*r, 4*r+4): P(f" v_cvt_pk_bf16_f32 v{vn+i}, v{vh+2*i}, v{vh+2*i+1}")
        P(f" buffer_store_dwordx4 {vr(vn+4*r,4)}, v5, {WS}, {sHNst} offen offset:{64*r} sc1")
        P(f" v_xad_u32 v{tmp+r}, v{vn+4*r}, v{vn+4*r+1}, v{vn+4*r+2}\n v_add_u32 v{tmp+r}, v{tmp+r}, v{vn+4*r+3}")
    P(f"""
 v_permlane16_swap_b32 v{tmp}, v{tmp+1}
 v_add_u32 v{tmp}, v{tmp}, v{tmp+1}
 v_add_u32_dpp v{tmp}, v{tmp}, v{tmp} row_ror:8 row_mask:0xf bank_mask:0xf
 v_add_u32 v{tmp}, {sTAG}, v{tmp}
 buffer_store_dword v{tmp}, v{vC}, {WS}, {sHCst} offen sc1
""")
    if P.cfg["hnh"]: P(f" buffer_store_dword v{vY+1}, v13, {WS}, {sF0} offen sc1")
    interleave(P0, P.lines, bulk, every)
    assert not bulk
def h2_consts():
    return L(f"""
 v_mul_u32_u24 v14, {4*OB}, v2
 v_lshl_add_u32 v14, v1, 4, v14
 v_lshlrev_b32 v5, 9, v2
 v_lshl_add_u32 v5, v1, 4, v5
 v_lshrrev_b32 v{vC}, 2, v6
 v_add_u32 v{vC}, 4096, v{vC}
 s_lshr_b32 {sHNst}, {sP}, 2
 s_lshl_b32 {sHNst}, {sHNst}, 15
 s_and_b32 s3, {sP}, 3
 s_lshl_b32 s3, s3, 7
 s_add_u32 {sHNst}, {sHNst}, s3
 s_add_u32 {sHNst}, {sHNst}, {HN}
 s_lshl_b32 {sHCst}, {sP}, 2
 s_add_u32 {sHCst}, {sHCst}, {sW}
 s_lshl_b32 {sFLst}, {sHCst}, 7
 s_add_u32 {sFLst}, {sFLst}, {FL-4352}
 s_lshl_b32 {sHCst}, {sHCst}, 8
 s_add_u32 {sHCst}, {sHCst}, {HC-4096}
 s_mov_b32 {sHRES}, {HRES}
 s_lshl_b32 s4, {sP}, 6
 s_add_u32 s4, s4, {YBOX}
 s_add_u32 s5, s4, {OB}
 s_add_u32 s6, s4, {2*OB}
 s_add_u32 s7, s4, {3*OB}""")

WARM = [0]; ROTX = [0]
def warm_ops(n0, n1):
    o = []
    if n0 == 0:
        o += L(f""" v_bfe_u32 v16, v0, 3, 3
 v_min_u32 v16, 6, v16
 v_and_b32 v17, 7, v0
 v_lshlrev_b32 v17, 10, v17
 v_lshl_add_u32 v17, v16, 7, v17
 s_mul_i32 s4, {sW}, {448*1024}
 s_lshl_b32 s5, {sL3}, 13
 s_add_u32 s4, s4, s5
 s_add_u32 s5, s4, 32768""")
    for j in range(n0, n1):
        if j & 1 == 0:
            if j: o += [" v_add_u32 v16, 1, v16", " v_cmp_eq_u32 vcc, 7, v16", " v_cndmask_b32 v16, v16, 0, vcc"]
            o.append(" v_lshl_add_u32 v18, v16, 16, v17")
        o.append(f" buffer_load_dword v19, v18, {srd('WD')}, s{4 + (j & 1)} offen")
    return o
def warm3_ops():
    o = L(f""" v_bfe_u32 v16, v0, 3, 3
 v_min_u32 v16, 6, v16
 v_and_b32 v17, 7, v0
 v_lshlrev_b32 v17, 10, v17
 v_lshl_add_u32 v17, v16, 7, v17
 v_subrev_u32 v16, 1, v16
 s_mul_i32 s4, {sW}, {448*1024}
 s_lshl_b32 s5, {sL3}, 13
 s_add_u32 s4, s4, s5
 s_add_u32 s5, s4, 32768""")
    for j in range(3):
        o += [" v_add_u32 v16, 2, v16", " v_subrev_u32 v18, 7, v16", " v_min_u32 v16, v16, v18", " v_lshl_add_u32 v18, v16, 16, v17",
              f" buffer_load_dword v19, v18, {srd('WD')}, s4 offen", f" buffer_load_dword v19, v18, {srd('WD')}, s5 offen"]
    return o
def wd_consts(a8):
    if a8: head = f"""
 s_bfe_u32 s3, s2, 0x20001
 s_lshl_b32 s3, s3, 3
 s_bfe_u32 {sT}, s2, 0x30003
 s_add_u32 {sSB}, s3, {sT}
 s_and_b32 {sE}, s2, 1
 s_lshl_b32 {sE}, {sE}, 2
 s_lshr_b32 s3, s2, 6
 s_add_u32 {sE}, {sE}, s3
 s_lshl_b32 {sE}, {sE}, 7
 s_lshl_b32 s3, s3, 1
 s_add_u32 s3, s3, {sT}"""
    else: head = f"""
 s_and_b32 s3, s2, 7
 s_lshl_b32 s3, s3, 2
 s_add_u32 {sSB}, s3, {sL3}
 s_lshl_b32 {sE}, {sJL}, 7
 s_lshl_b32 s3, {sL3}, 1""" + (f"""
 s_cmp_ge_u32 {sJL}, 7
 s_cselect_b32 s3, s3, 0""" if WARM[0] else "") + f"""
 s_add_u32 s3, s3, {sJL}"""
    if ROTX[0] == 1: head += f"""
 s_and_b32 {sT}, s2, 7
 s_add_u32 s3, s3, {sT}
 s_cmp_ge_u32 s3, 7
 s_cselect_b32 {sT}, 7, 0
 s_sub_u32 s3, s3, {sT}"""
    if ROTX[0] == 2: head += f"""
 s_and_b32 {sT}, s2, 1
 s_add_u32 s3, s3, {sT}
 s_add_u32 s3, s3, {sW}
 s_cmp_ge_u32 s3, 7
 s_cselect_b32 {sT}, 7, 0
 s_sub_u32 s3, s3, {sT}"""
    if ROTX[0] == 3: head += f"""
 s_add_u32 s3, s3, {sW}
 s_add_u32 s3, s3, {sW}
 s_cmp_ge_u32 s3, 7
 s_cselect_b32 {sT}, 7, 0
 s_sub_u32 s3, s3, {sT}"""
    o = L(head + f"""
 s_mul_i32 {sRING}, {sW}, {NR*1024}
 s_add_u32 {sRING}, {sRING}, {RING}
 s_mul_i32 s100, {sW}, {448*1024}
 s_add_u32 s100, s100, {sE}""")
    for i in range(7):
        if WARM[0] == 3:
            if i < 4: o += [f" s_add_u32 s101, {sL3}, {i}", " s_and_b32 s101, s101, 3", " s_lshl_b32 s101, s101, 1"]
            else: o += [f" s_add_u32 s101, {sL3}, {i-4}", " s_cmp_ge_u32 s101, 3", f" s_cselect_b32 {sT}, 3, 0", f" s_sub_u32 s101, s101, {sT}", " s_lshl_b32 s101, s101, 1", " s_add_u32 s101, s101, 1"]
            o += L(f""" s_add_u32 s101, s101, {sJL}
 s_cmp_ge_u32 s101, 7
 s_cselect_b32 {sT}, 7, 0
 s_sub_u32 s101, s101, {sT}
 s_lshl_b32 {sT}, s101, 16
 s_add_u32 s{sWD+i}, {sT}, s100""")
            continue
        if WARM[0] == 2:
            if i < 3: o += [f" s_add_u32 s101, s3, {i}"]
            else: o += L(f""" s_add_u32 s101, {sL3}, {i-3}
 s_and_b32 s101, s101, 3
 s_cmp_ge_u32 {sJL}, 7
 s_cselect_b32 s101, {i-3}, s101
 s_add_u32 s101, s101, 3
 s_add_u32 s101, s101, s3""")
            for rep in range(2): o += L(f""" s_cmp_ge_u32 s101, 7
 s_cselect_b32 {sT}, 7, 0
 s_sub_u32 s101, s101, {sT}""")
            o += [f" s_lshl_b32 {sT}, s101, 16", f" s_add_u32 s{sWD+i}, {sT}, s100"]
            continue
        o += L(f""" s_cmp_ge_u32 s3, 7
 s_cselect_b32 {sT}, 7, 0
 s_sub_u32 s3, s3, {sT}
 s_lshl_b32 {sT}, s3, 16
 s_add_u32 s{sWD+i}, {sT}, s100
 s_add_u32 s3, s3, 1""")
    return o
def wd_rconsts(t):
    return L(f"""
 v_bfe_u32 v{t}, v0, 5, 1
 v_bfe_u32 v{t+1}, v0, 4, 1
 v_bfe_u32 v{t+2}, v0, 2, 2
 v_lshl_add_u32 v{t}, v{t}, 2, v{t+2}
 v_lshlrev_b32 v{t}, 7, v{t}
 v_lshl_add_u32 v{t}, v1, 3, v{t}
 v_add_u32 v{t}, {sRING}, v{t}
 v_and_b32 v{t+2}, 2, v{t+2}
 v_or_b32 v{t+2}, v{t+2}, v{t+1}
 v_lshl_add_u32 v{vWr[0]}, v{t+2}, 5, v{t}
 v_xor_b32 v{t+2}, 2, v{t+2}
 v_lshl_add_u32 v{vWr[1]}, v{t+2}, 5, v{t}""")
def wd_dma(m, base=sRING, slot=None):
    i, r = m // 8, m & 7
    o = []
    if slot is None:
        slot = m % NR
        if m >= NR: o.append(f"DWAIT:wd{m-NR}")
    o.append(f" s_add_u32 m0, {base}, {slot*1024}")
    if r: o += [f" s_add_u32 s100, s{sWD+i}, {r*8192}", f" buffer_load_dwordx4 v{vWD}, {srd('WD')}, s100 offen lds"]
    else: o += [f" buffer_load_dwordx4 v{vWD}, {srd('WD')}, s{sWD+i} offen lds"]
    return o + [f"MARK:wd{m}"]
def wd_read(m, slot=None):
    d = (m >> 1)*8 + 2*(m & 1)
    if slot is None: slot = m % NR
    return [f"WAIT:wd{m}"] + [f" ds_read_b64_tr_b16 {ar(d+4*tau,2)}, v{vWr[tau]} offset:{slot*1024}" for tau in range(2)] + [f"DMARK:wd{m}"]
def wd_stream(d, rd, N, dep=NR-1):
    o = []
    while d < min(N, rd + dep): o += wd_dma(d); d += 1
    for m in range(rd, N):
        o += wd_read(m)
        if d < N and d <= m + dep: o += wd_dma(d); d += 1
    return o

def wd_raw(m):
    i, r = m // 8, m & 7
    if r: return [f" s_add_u32 s100, s{sWD+i}, {r*8192}", f" buffer_load_dwordx4 {ar(4*m,4)}, v{vWD}, {srd('WD')}, s100 offen"]
    return ["SKIP", f" buffer_load_dwordx4 {ar(4*m,4)}, v{vWD}, {srd('WD')}, s{sWD+i} offen"]
def bounce(u, va):
    d = u*8; off = (u % 3)*2048
    o = [f" ds_write_b128 v{va}, {ar(d,4)} offset:{off}", f" ds_write_b128 v{va}, {ar(d+4,4)} offset:{off+1024}"]
    for tau in range(2):
        for io in range(2): o.append(f" ds_read_b64_tr_b16 {ar(d+4*tau+2*io,2)}, v{vWr[tau]} offset:{off+io*1024}")
    return o
def g_sconsts(nbig):
    o = [f" s_mul_i32 s3, {sSB}, {56*GS}", f" s_add_u32 s3, s3, {HH}"]
    for i in range(7):
        o += L(f""" s_lshr_b32 {sT}, s{sWD+i}, 16
 s_mul_i32 {sT}, {sT}, {GS}
 s_add_u32 s{sHL+i}, {sT}, s3
 s_add_u32 s{sHL+7+i}, s{sHL+i}, {28*GS}""")
    o += L(f"""
 s_lshl_b32 {sO0}, {sSB}, 16
 s_add_u32 {sO0}, {sO0}, {sE}
 s_add_u32 {sO1}, {sO0}, 32768
 s_add_u32 {sHR0}, {sO0}, {HRES}
 s_add_u32 {sHR1}, {sO1}, {HRES}
 s_lshl_b32 s3, {sG}, 2
 s_add_u32 s3, s3, {sW}
 s_mul_i32 {sHS0}, s3, 56
 s_add_u32 {sHS0}, {sHS0}, {sJ}
 s_mul_i32 {sHS0}, {sHS0}, {GS}
 s_add_u32 {sHS0}, {sHS0}, {HH}
 s_add_u32 {sHS1}, {sHS0}, {28*GS}""")
    o += L(f"""
 s_lshl_b32 {sFLld}, {sSB}, 3
 s_add_u32 {sFLld}, {sFLld}, {sW}
 s_mul_i32 {sPH0}, {sFLld}, {7*GS}
 s_add_u32 {sPH0}, {sPH0}, {HH+4352}
 s_add_u32 {sPH1}, {sPH0}, {28*GS}
 s_lshl_b32 {sFLld}, {sFLld}, 2
 s_lshr_b32 s3, {sE}, 8
 s_add_u32 {sFLld}, {sFLld}, s3
 s_lshl_b32 {sFLld}, {sFLld}, 7
 s_add_u32 {sFLld}, {sFLld}, {FL}
 s_and_b32 s3, {sW}, 1
 s_mul_i32 s3, s3, {nbig*1024}
 s_lshr_b32 {sBIG}, {sW}, 1
 s_lshl_b32 {sBIG}, {sBIG}, 16
 s_add_u32 {sBIG}, {sBIG}, s3""") + srdc(("OUT",))
    return o
def hn_consts():
    o = L(f"""
 s_lshl_b32 s3, {sG}, 2
 s_add_u32 s3, s3, {sW}
 s_lshl_b32 {sFLld}, s3, 13
 s_add_u32 {sFLld}, {sFLld}, {HC}
 s_lshl_b32 s3, s3, 16
 s_add_u32 s3, s3, {HN}""")
    for g in range(8):
        o += [f" s_add_u32 {sT}, {sKR}, {g}", f" s_and_b32 {sT}, {sT}, 7", f" s_lshl_b32 s{sHC+g}, {sT}, 7", f" s_add_u32 s{sHC+g}, s{sHC+g}, {sFLld}", f" s_lshl_b32 {sT}, {sT}, 12", f" s_add_u32 s{sHN+g}, {sT}, s3"]
    o += L(f"""
 v_bfe_u32 v{vHC}, v0, 3, 2
 v_lshlrev_b32 v{vHC}, 10, v{vHC}
 v_bfe_u32 v{vHC1}, v0, 5, 1
 v_lshl_add_u32 v{vHC}, v{vHC1}, 4, v{vHC}
 v_bfe_u32 v{vHC1}, v0, 2, 1
 v_lshl_add_u32 v{vHC}, v{vHC1}, 6, v{vHC}
 v_lshl_add_u32 v{vHC}, v1, 2, v{vHC}
 v_and_b32 v{vHC1}, 31, v0
 v_lshlrev_b32 v{vHC1}, 7, v{vHC1}
 s_lshl_b32 {sF0}, {sG}, 2
 s_add_u32 {sF0}, {sF0}, {sW}
 s_lshl_b32 {sF0}, {sF0}, 12
 s_add_u32 {sF0}, {sF0}, {FL}""")
    return o
def g_vconsts():
    t = 232
    o = L(f"""
 v_bfe_u32 v{t}, v0, 5, 1
 v_bfe_u32 v{t+1}, v0, 4, 1
 v_bfe_u32 v{t+2}, v0, 2, 2
 v_lshl_add_u32 v{t}, v{t}, 3, v{t+2}
 v_lshlrev_b32 v{t+4}, 7, v{t}
 v_lshl_add_u32 v{t+4}, v1, 3, v{t+4}
 v_lshl_add_u32 v{t+4}, v{t+1}, 16, v{t+4}
 v_lshrrev_b32 v{t+2}, 1, v{t+2}
 v_lshl_add_u32 v{t+2}, v{t+1}, 1, v{t+2}
 v_add_u32 v{vL2}, 32768, v6""")
    for k in range(4): o += [f" v_xor_b32 v{t+3}, {k}, v{t+2}", f" v_lshl_add_u32 v{vRa+k}, v{t+3}, 5, v{t+4}"]
    o += L(f"""
 v_lshrrev_b32 v{t}, 3, v0
 v_and_b32 v{t+1}, 24, v{t}
 v_and_b32 v{t+2}, 3, v{t}
 v_lshl_add_u32 v{t+1}, v{t+2}, 1, v{t+1}
 v_bfe_u32 v{t+2}, v{t}, 2, 1
 v_add_u32 v{t+1}, v{t+1}, v{t+2}
 v_lshlrev_b32 v{t+1}, 10, v{t+1}
 v_and_b32 v{t+2}, 7, v0
 v_lshl_add_u32 v{vOUT}, v{t+2}, 4, v{t+1}
 v_mul_u32_u24 v{vPH}, {GS//16}, v6
 v_add_u32 v4, 16, v6
 v_lshrrev_b32 v4, 7, v4
 v_lshl_add_u32 v{vPH}, v4, 25, v{vPH}
 v_lshlrev_b32 v{vONE}, 21, v6
 v_add_u32 v{vONE}, 4352, v{vONE}
 v_mov_b32 v{vTG}, {sTAG}""")
    return o
HST = [f" buffer_store_dwordx4 {vr(vHP,4)}, v3, {WS}, {sHRES} offen sc1", f" buffer_store_dwordx4 {vr(vHP+4,4)}, v3, {WS}, {sHRES} offen offset:1024 sc1", "MARK:HST"]
FLAGST = f" buffer_store_dword v{vTG}, v{vONE}, {WS}, {sFLst} offen sc1"
FLAGLD = [" v_lshrrev_b32 v1, 5, v6\n v_lshlrev_b32 v1, 25, v1", " v_lshl_add_u32 v1, v6, 7, v1", f" buffer_load_dword v3, v1, {WS}, {sFLld} offen sc1"]
HRESLD = [f" buffer_load_dwordx4 {vr(vE,4)}, v{vOUT}, {WS}, {sHR0} offen sc1", f" buffer_load_dwordx4 {vr(vE+4,4)}, v{vOUT}, {WS}, {sHR1} offen sc1", "MARK:hres"]
def poll(dst, voff, soff): return f" v_mov_b32 v{dst}, 0\n buffer_atomic_or v{dst}, v{voff}, {WS}, {soff} offen sc0 sc1"
def pollcmp(dst, mask): return [f" v_cmp_ne_u32 vcc, {sTAG}, v{dst}", f" s_and_b64 vcc, vcc, {mask}"]
NOCHK = [0]; NCHK = [16]
def hn_regs(G_): return vHN + 16*(G_ % 4)
def hn_loads(G_):
    return [f" buffer_load_dwordx4 {vr(hn_regs(G_)+4*k,4)}, v{6 if G_ < 8 else vL2}, {WS}, s{sHN+(G_&7)} offen offset:{k*1024} sc1" for k in range(4)] + \
           ([f" buffer_load_dword v{CHN[G_%4]}, v{vHC if G_ < 8 else vHC1}, {WS}, s{sHC+(G_&7)} offen sc1"] if G_ < NCHK[0] else [])
def hh_loads(u, i):
    return [f" buffer_load_dwordx4 {vr(HREG[(u,i)]+4*t,4)}, v6, {WS}, s{sHL+7*u+i} offen offset:{t*1024} sc1" for t in range(4)] + \
           ([f" buffer_load_dword v{CHH[(u,i)]}, v{vC}, {WS}, s{sHL+7*u+i} offen sc1"] if not NOCHK[0] & 2 else [])
def hashchain(r, chk):
    o = []
    for f in range(4):
        b = r + 4*f
        o.append(f" v_xad_u32 v4, v{b}, v{b+1}, {sTAG if f == 0 else 'v4'}")
        o.append(f" v_add3_u32 v4, v4, v{b+2}, v{b+3}")
    return o + [f" v_cmp_ne_u32 vcc, v4, v{chk}"]
def retry_check(P, o, loads, later, name, sleep):
    blk = [f"L_{name}_r:", f" s_sub_u32 {sSPIN}, {sSPIN}, 1", f" s_cbranch_scc1 L_{name}_x", f" s_sleep {sleep}"] + loads + [" s_waitcnt vmcnt(0)"] + o + [f" s_cbranch_vccnz L_{name}_r"]
    blk += later + ([" s_waitcnt vmcnt(0)"] if later else []) + [f" s_branch L_{name}_b", f"L_{name}_x:", f" s_mov_b32 {sSPIN}, 0", f" s_branch L_{name}_b"]
    P.tail += blk
    return o + ["GAP", f" s_cbranch_vccnz L_{name}_r\nL_{name}_b:"]
def retry_fast(P, o, loads, later, name, sleep):
    blk = [f"L_{name}_s:", f" s_sleep {sleep}", f"L_{name}_r:", f" s_sub_u32 {sSPIN}, {sSPIN}, 1", f" s_cbranch_scc1 L_{name}_x"] + loads + later + [f" s_waitcnt vmcnt({len(later)})"] + o + [f" s_cbranch_vccnz L_{name}_s"]
    blk += [f" s_branch L_{name}_b", f"L_{name}_x:", f" s_mov_b32 {sSPIN}, 0", f" s_branch L_{name}_b"]
    P.tail += blk
    return o + ["GAP", f" s_cbranch_vccnz L_{name}_r\nL_{name}_b:"]
def hint_spin(name, s, back):
    return [f"L_{name}:", poll(vPD, vPH, s), " s_waitcnt vmcnt(0)"] + pollcmp(vPD, 0x7f) + [f" s_cbranch_vccz {back}", " s_sleep 8",
            f" s_sub_u32 {sSPIN}, {sSPIN}, 1", f" s_cbranch_scc0 L_{name}", f" s_mov_b32 {sSPIN}, 0"]
def epi_tile(acc, ups, t, out, pk):
    o = []
    if pk:
        for i in range(4): o.append(f" v_pk_mul_f32 {vr(vE+2*i,2)}, {vr(acc+2*i,2)}, s[4:5]")
    else:
        for i in range(8): o.append(f" v_mul_f32 v{vE+i}, 0xbfb8aa3b, v{acc+i}")
    for i in range(8): o.append(f" v_exp_f32 v{vE+i}, v{vE+i}")
    if pk:
        for i in range(4): o.append(f" v_pk_add_f32 {vr(vE+2*i,2)}, {vr(vE+2*i,2)}, 1.0 op_sel_hi:[1,0]")
    else:
        for i in range(8): o.append(f" v_add_f32 v{vE+i}, 1.0, v{vE+i}")
    for i in range(8): o.append(f" v_rcp_f32 v{vE+i}, v{vE+i}")
    if pk:
        for i in range(4): o.append(f" v_pk_mul_f32 {vr(vE+2*i,2)}, {vr(vE+2*i,2)}, {vr(acc+8+2*i,2)}")
    else:
        for i in range(8): o.append(f" v_mul_f32 v{vE+i}, v{vE+i}, v{acc+8+i}")
    for i in range(4): o.append(f" v_cvt_pk_bf16_f32 v{out+i}, v{vE+2*i}, v{vE+2*i+1}")
    sb = sHS1 if ups else sHS0
    o.append(f" buffer_store_dwordx4 {vr(out,4)}, v6, {WS}, {sb} offen offset:{t*1024} sc1")
    o.append(f" v_xad_u32 v{vHASH}, v{out}, v{out+1}, {sTAG if t == 0 else 'v%d' % vHASH}")
    o.append(f" v_add3_u32 v{vHASH}, v{vHASH}, v{out+2}, v{out+3}")
    if t == 3:
        o.append(f" buffer_store_dword v{vHASH}, v{vC}, {WS}, {sb} offen sc1")
        o.append(f" buffer_store_dword v{vTG}, v{vONE}, {WS}, {sb} offen sc1")
    return o

def stq(P, name):
    P.st(name)
def gemm1(P, cfg, wds):
    seq = [(u, k, t) for u in range(2) for k in range(32) for t in range(4)]
    D = 6; LA = 3
    MB = cfg["wd_big"]
    def reads(n):
        u, k, t = seq[n]; d = aC + 4*(n % 8)
        return [f" ds_read_b64_tr_b16 {ar(d+2*io,2)}, v{vRa+t} offset:{k*2048+io*512}" for io in range(2)] + [f"DMARK:w{n}"]
    def hn_issue(g): return hn_loads(g) + [f"MARK:hn{g}"]
    def hn_check(g):
        later = []
        for gg in range(g+1, min(16, g+LA)): later += hn_loads(gg)
        if g >= NCHK[0]: return [f"WAIT:hn{g}"]
        later = [x for gg in range(g+1, min(NCHK[0], g+LA)) for x in hn_loads(gg)]
        return [f"WAIT:hn{g}"] + (retry_fast if g < 12 else retry_check)(P, hashchain(hn_regs(g), CHN[g%4]), hn_loads(g), later, f"hn{g}", cfg["bo"])
    for n in range(D): P(reads(n))
    for g in range(cfg["hn_n0"], LA): P(hn_issue(g))
    P(hn_check(0))
    P.st("hn0")
    wq_ = list(wds); fill = list(P.gs); urgent = []; wacc = 0.0; lastv = -9; gapn = None
    h0 = poll(vPD, vPH, sPH0)
    for n, (u, k, t) in enumerate(seq):
        budget = cfg["slots"][u]
        g = 8*u + k//4
        if t == 0:
            if k % 4 == 0:
                while urgent: P(urgent.pop(0))
                gapn = None
                if g + LA < 16 and not cfg['hn_ph']: urgent += hn_issue(g + LA)
        if cfg['hn_ph'] and n % 16 == cfg['hn_ph'] and g + LA < 16: urgent += hn_issue(g + LA)
        fp = f" buffer_load_dword v{vPD}, v{vHC1}, {WS}, {sF0} offen sc1"
        if n == cfg["fp_at"]: urgent += [fp, "MARK:fp"]
        if n == 16*(cfg["nchk"] - LA) - cfg["fc_lead"]: urgent += ["WAIT:fp"] + retry_check(P, [f" v_cmp_ne_u32 vcc, {sTAG}, v{vPD}"], [fp], [], "fp", cfg["bo"])
        if n % 16 == cfg['chk_at'] and g + 1 < 16: urgent += hn_check(g + 1)
        if t == 0:
            if (u, k) == (1, 0):
                P.st("p0")
                P(urgent); urgent = []
                P(" s_mov_b32 s4, 0xbfb8aa3b\n s_mov_b32 s5, 0xbfb8aa3b")
                held = []; ex = []
                for tt in range(4):
                    pk = tt < cfg["e0_exp"]
                    for x in epi_tile(acc0+16*tt, 0, tt, acc0+16*tt, pk):
                        (held if (x.lstrip().startswith("buffer_store") and cfg["hold0"]) else (ex if pk else fill)).append(x)
                nx = take(wq_, cfg["e0_wd"])
                interleave(P, ex, nx, cfg["e0_every"]); P(nx)
                fill += held
                if cfg["e0_exp"] == 4: P(fill); fill = []
                P.st("e0")
            if u == 1 and k == cfg["h0_k"] and cfg["hhh"]: urgent += [h0, "MARK:ph0"]
            if u == 0 and k == cfg["fl_k"]: urgent += FLAGLD[0].split("\n") + FLAGLD[1:] + ["MARK:flag"]
            if u == 1 and k in cfg["hh_at"]:
                i = cfg["hh_at"][k]
                assert not fill and (i < 5 or k >= 20 + 4*(i-5))
                if i == 0:
                    if not cfg['h_early']: urgent += ["WAIT:HST", FLAGST]
                    if cfg["hhh"]: urgent += ["WAIT:ph0"] + retry_check(P, pollcmp(vPD, 0x7f), [h0], [], "ph0", cfg["hbo"])
                urgent += hh_loads(0, i) + [f"MARK:hh0_{i}"]
        if n % 16 == 0 and n: stq(P, f"G{n//16}")
        if n % 2 == 0: P(f"DWAIT:w{n+1}")
        else: budget -= 1
        a = (acc1 if u else acc0) + 16*t
        P(f" v_mfma_f32_32x32x16_bf16 {vr(a,16)}, {ar(aC+4*(n%8),4)}, {vr(hn_regs(g)+4*(k&3),4)}, {'0' if k == 0 else vr(a,16)}")
        if n + D < len(seq):
            P(reads(n+D)); budget -= 2
        wacc += cfg["wd_rate"][u] if not any(a_ <= n < b_ for a_, b_ in cfg['wd_off']) else 0
        had = bool(fill)
        for q in (urgent, wq_, fill):
            while q and (budget >= P.cost(q[0]) or P.cost(q[0]) == 0):
                if q[0] == "GAP":
                    if gapn is None: gapn = n
                    if n - gapn < cfg["gapd"]: break
                    gapn = None
                if q[0].lstrip().startswith("buffer_"):
                    if n - lastv < cfg["vgap"]: break
                    lastv = n
                if q is wq_:
                    if wacc < 1 and P.cost(q[0]) > 0: break
                    wacc -= P.cost(q[0])
                x = q.pop(0); budget -= P.cost(x); P(x)
        if had and not fill: print("epilogue0 done at k", k)
    print('left: wd', len(wq_), 'fill', len(fill))
    P(urgent); P(wq_); P(fill)
    P.st("p1")
    P(" s_mov_b32 s4, 0xbfb8aa3b\n s_mov_b32 s5, 0xbfb8aa3b")
    big = []
    if MB < 56:
        if not cfg["bar_late"]: P(" s_barrier")
        for m in range(MB, 56): big.append("\n".join(wd_dma(m, sBIG, m - MB)))
    e1 = []; held = []
    for tt in range(4):
        for x in epi_tile(acc1+16*tt, 1, tt, acc1+16*tt, True):
            (held if (cfg["hold"] and x.lstrip().startswith("buffer_store")) else e1).append(x)
    P(e1); P(held)
    P.st("epi")
    P.st("ld0")

def red_consts():
    return L(f"""
 s_mul_i32 s3, {sW}, {REDW}
 v_add_u32 v12, s3, v6
 v_and_b32 v15, 7, v0
 v_lshrrev_b32 v13, 3, v0
 v_mul_u32_u24 v15, {BS}, v15
 v_lshl_add_u32 v13, v13, 4, v15
 v_add_u32 v14, {2*REDW}, v13""")
ACC2 = (48, 16)
def red_write(ups): return [f" ds_write_b128 v12, {vr(ACC2[ups]+4*blk,4)} offset:{(8*ups+blk)*BS}" for blk in range(8)]
def red_read(ups, b): return [f" ds_read_b128 {vr(b+8*w+4*h,4)}, {'v13' if w < 2 else 'v14'} offset:{ups*8*BS + h*512 + (w&1)*REDW}" for w in range(4) for h in range(2)]
def red_fin(ups, b, hx, pk, fl):
    o = []
    for (x, y) in ((0, b+8), (16, b+24), (0, hx), (0, b+16)):
        if pk:
            for i in range(4): o.append(f" v_pk_add_f32 {vr(b+x+2*i,2)}, {vr(b+x+2*i,2)}, {vr(y+2*i,2)}")
        else:
            for i in range(8): o.append(f" v_add_f32 v{b+x+i}, v{b+x+i}, v{y+i}")
    for i in range(4): o.append(f" v_cvt_pk_bf16_f32 v{b+16+i}, v{b+2*i}, v{b+2*i+1}")
    o.append(f" buffer_store_dwordx4 {vr(b+16,4)}, v{vOUT}, {srd('OUT')}, {sO0 if ups == 0 else sO1} offen {fl}")
    return o
def gemm2(P, cfg):
    order = [(0, i) for i in range(7)] + [(1, i) for i in range(7)]
    MB = cfg["wd_big"]; n0 = len(cfg["hh_at"])
    issued = order[:n0]
    def chk(pos):
        u, i = order[pos]
        later = []
        for x in order[pos+1:]:
            if x in issued and x[0] == u: later += hh_loads(*x)
        return [f"WAIT:hh{u}_{i}"] + retry_check(P, hashchain(HREG[(u,i)], CHH[(u,i)]), hh_loads(u, i), later, f"hh{u}_{i}", cfg["bo"])
    vq = []
    def grp(x, g0): return [(t, g0) for t in hh_loads(*x)] + [(f"MARK:hh{x[0]}_{x[1]}", g0), (("ISS", x), g0)]
    bigq = []; bigrd = []
    if MB < 56:
        P([f" s_sub_u32 s3, {sBIG}, {sRING}", f" v_add_u32 v{vWr[0]}, s3, v{vWr[0]}", f" v_add_u32 v{vWr[1]}, s3, v{vWr[1]}"])
        bigq.append((" s_barrier", cfg["bar_g"]))
        for m in range(MB, 56):
            bigq += [(t, 0) for t in wd_dma(m, sBIG, m - MB)]; bigrd += ([f'WAIT:wd{min(55, m+3)}'] if (m - MB) % 4 == 0 else []) + wd_read(m, m - MB)
    rest0 = [grp(x, 0) for x in order[n0:7]]
    if cfg["big_first"]: vq += bigq + [t for g in rest0 for t in g]
    elif rest0: vq += rest0[0] + bigq + [t for g in rest0[1:] for t in g]
    else: vq += bigq
    P.tail += hint_spin("ip1", sPH1, "L_ip1b") + [" s_branch L_ip1b"]
    vq.append((f" s_cmp_ge_u32 {sJL}, 7\n s_cbranch_scc1 L_ip1\nL_ip1b:", cfg["b1_g"]))
    for i in range(7):
        x = (1, i)
        prev = [order.index(y) for y in order[:7] if HREG[y] == HREG[x] or CHH[y] == CHH[x]]
        vq += grp(x, max([cfg["b1_g"]] + [8*(p+1) + 1 for p in prev]))
        if i == cfg["hres_i"]: vq += [(t, 0) for t in ["WAIT:flag"] + retry_check(P, pollcmp(3, 3), FLAGLD[2:], [], "flag", cfg["bo"]) + HRESLD]
    def emit_v(x):
        if isinstance(x, tuple): issued.append(x[1])
        else: P(x)
    def flush_to(mark):
        if mark in P.marks and not any(t == "MARK:" + mark for t, _ in vq): return
        while True:
            t, _ = vq.pop(0); emit_v(t)
            if t == "MARK:" + mark: break
        while vq and isinstance(vq[0][0], tuple): emit_v(vq.pop(0)[0])
    P(chk(0))
    T0 = 112; HX = 48
    fin0 = red_fin(0, T0, HX, False, cfg["outf"])
    rw = cfg["rw_g"]
    ev = {}
    def at(g, l): ev.setdefault(g, []).extend(l)
    rc = red_consts()
    for k in range(0, len(rc), 2): at(44 + k//2, rc[k:k+2])
    at(56, [" s_barrier"])
    for k, x in enumerate(red_write(0)): at(rw + 2*k, [x])
    at(rw + 18, [" s_waitcnt lgkmcnt(0)", " s_barrier"])
    for k, x in enumerate(red_read(0, T0)): at(rw + 19 + k//2, [x])
    up = [y for k in range(8) for y in unpack(HX+2*k, vE+k)]
    at(rw + 23, ["NEED:hres", "WAIT:hres"])
    work = up + [" s_waitcnt lgkmcnt(0)"] + fin0
    gap = 0; credit = cfg["v_burst"]; fill = []; vccbusy = False
    for pos, (u, i) in enumerate(order):
        late = None
        for n in range(8):
            t, tau = n >> 1, n & 1
            if u == 0 and MB < 56 and gap == 4*(MB//2)//2*1 - cfg["brd_lead"]:
                flush_to("wd55"); fill += bigrd
            if u == 0 and MB < 56 and (i*4+t) == MB//2 and tau == 0:
                P(fill); fill = []; P(" s_waitcnt lgkmcnt(0)")
            a = ACC2[u]+16*tau
            P(f" v_mfma_f32_32x32x16_bf16 {vr(a,16)}, {ar(((i*4+t)*2+tau)*4,4)}, {vr(HREG[(u,i)]+4*t,4)}, {'0' if (i == 0 and t == 0) else vr(a,16)}")
            b = 5
            if n == cfg["g2_chk"] and pos + 1 < 14:
                nu, ni = order[pos+1]
                flush_to(f"hh{nu}_{ni}")
                if pos >= cfg["la_from"]:
                    y = order[min(13, pos + 1 + cfg["la2"])]; flush_to(f"hh{y[0]}_{y[1]}")
                late = chk(pos+1)
            for x in ev.pop(gap, []):
                if x == "NEED:hres": flush_to("hres"); continue
                b -= P.cost(x); P(x)
            if gap == rw + 23: fill += work
            if late and late[0] != "GAP":
                while late[0] != "GAP" and b > 0: b -= P.cost(late[0]); P(late.pop(0))
            credit = min(credit + cfg["v_rate"], cfg["v_cap"])
            while vq and b > 0 and vq[0][1] <= gap:
                x = vq[0][0]
                if isinstance(x, tuple): emit_v(vq.pop(0)[0]); continue
                if late and ("vcc" in x or "L_ip1" in x): break
                if x.lstrip().startswith("v_cmp"):
                    while True:
                        y = vq.pop(0)[0]; P(y)
                        if "s_cbranch" in y: break
                    b = 0; continue
                if x.lstrip().startswith("buffer_"):
                    c = 0.5 if "dword " in x else 1.0
                    if credit < c: break
                    credit -= c
                b -= P.cost(x); vq.pop(0); P(x)
            while fill and b >= P.cost(fill[0]): b -= P.cost(fill[0]); P(fill.pop(0))
            gap += 1
        if late: P(late)
        P.st(f"q{pos}")
        if pos == 6: P.st("b0")
    assert not vq and not ev, (vq, ev)
    print("g2 fill left", len(fill), end=" ")
    P(fill)
    P.st("g2")
    P(red_write(1))
    P(" s_waitcnt lgkmcnt(0)\n s_barrier")
    P(red_read(1, 144))
    P(" s_waitcnt lgkmcnt(0)")
    P(red_fin(1, 144, HX+8, True, cfg["outf"]))

DOC = """; One persistent launch, 256 workgroups (one per CU), generated by gen/mega16.py. Phases of every workgroup:
;  P0   8 rows: short conv * v -> kv, published as {data,tag} granules (tag = word kept in d_ws + constant)
;  LN   8 rows: h = x + LN(x)*(y + kv*D), LN(h) published as MFMA fragments (check words + ordered flags)
;  G1   256 rows x 64 f gate/up GEMM (weights in LDS) + sigmoid gate, fragments published with check words
"""
def build(cfg, stamps=False):
    P = G(stamps); P.cfg = cfg; WARM[0] = cfg['warm']; ROTX[0] = cfg['rotx']; NOCHK[0] = cfg.get('nochk', 0); M8[0] = cfg.get('m8', 0); NCHK[0] = cfg['nchk']; globals()['OB'] = cfg['ob']
    if cfg.get("dbg"): P.only = cfg["dbg"].split(",")
    entry(P, cfg)
    setupB = a_consts() + roles()
    P(take(setupB, cfg["nsetB"]))
    if cfg["f_at"] == 0: P(filter_dma(cfg))
    else: P(f""" v_and_b32 v4, 79, v0
 v_lshrrev_b32 v5, 2, v4
 v_and_or_b32 v4, v5, 16, v4
 v_and_b32 v4, 31, v4
 v_lshlrev_b32 v4, 7, v4
 buffer_load_dword v{vDUM}, v4, {srd('SSMK')}, {sF0} offen {cfg['fnt']}""")
    if cfg["x_at"] == 0: P(x_loads())
    if cfg["wt"] == 0: P(w_touch(cfg["wtnt"], cfg["wth"]))
    raw = []
    for m in range(cfg["nraw"]): raw += wd_raw(m)
    if cfg["wdc_at"] == -1: P(wd_consts(cfg['a8'])); P(take(raw, 2*cfg["rawE"]))
    P(tag_setup())
    P.st("pre")
    if cfg["ksplit"]:
        assert cfg["lord"][-2:] == [5, 6]
        P.marks["LK"] = P.marks["L1"] - 2; P.vmwait("LK")
    else: P.vmwait("L1")
    P.st("L1")
    p0_kv(P)
    P.mark("KV")
    P.st("kvst")
    if cfg["f_at"] == 1:
        if cfg["kbar"]: P(" s_barrier")
        P(filter_dma(dict(fnt="")))
    if cfg["x_at"] == 1: P(x_loads())
    P(take(raw, 2*cfg["raw0"]))
    P(setupB)
    P(conv_setup() + h1_addr() + w_table() + (wd_consts(cfg['a8']) if cfg["wdc_at"] != -1 else []))
    ng = cfg["g1"]
    early = []
    gp = cfg["gp"]
    for i in range(ng): early += w_pair(i, cfg["wnt"])[:(4 if i < gp else 2)]
    P(take(early, 2*cfg["w0"]))
    early += take(raw, 2*cfg["raw1"])
    if cfg["x_at"] == 2: early += x_loads()
    ap = ["WAIT:A", " s_barrier"] + a_prep(cfg['lazy'])
    P(take(ap, cfg["ap_pre"]))
    if cfg.get("kvw"): P(["WAIT:KV"] + ([" s_barrier"] if cfg["kvw"] == 2 else []))
    if cfg.get("dly1"): P(f" s_sleep {cfg['dly1']}")
    P.st("aprep")
    if cfg["ap_pre"] < 2: sh = take(ap, 2 - cfg["ap_pre"]) + early + ap
    else: sh = [" s_barrier"] + early + ap
    box_recv(P, vIN, "h1", cfg["bo"], sh, kv_per, [" s_waitcnt lgkmcnt(0)"])
    P(" s_barrier")
    P.st("h1")
    wq = []
    for i in range(16):
        p = w_pair(i, cfg["wnt"])
        if i < gp: continue
        if i < ng: wq += [p[0] + "\n" + p[2], p[3]]
        else: wq += p
    nraw = cfg["nraw"]
    nwc = 2*cfg["wsched"][0][1]
    raw2 = raw[2*cfg["raw_c"]:]; raw = raw[:2*cfg["raw_c"]]
    wq = wq[:nwc] + raw + wq[nwc:]
    conv_mfma(P, wq, cfg["wsched"])
    assert not any("a[" in x for x in wq)
    print("W ops left after conv:", len(wq)//2)
    P.mark("RAWC")
    P.st("mfma")
    conv_epilogue(P)
    P.st("yst")
    P(" s_barrier")
    b3 = take(wq, 2*cfg["w3"]) + take(raw2, 2*cfg["raw3"])
    P.vmwait("X")
    interleave(P, stat_consts() + ln1(), b3, cfg["w3_every"])
    P(b3)
    P(h2_consts() + wd_rconsts(48))
    hc = hn_consts()
    if cfg["hc_at"] == 0: P(hc); hc = []
    nb1 = cfg["nb1"]
    assert 2*nb1 <= cfg["raw_c"] + cfg["rawE"] + cfg["raw0"] + cfg["raw1"]
    if nb1:
        P([f" v_add_u32 v48, {sRING}, v6", "WAIT:RAWC"])
        for u in range(nb1): P(bounce(u, 48))
    if cfg.get("dly2"): P(f" s_sleep {cfg['dly2']}")
    P.st("ln1")
    q4 = take(wq, 2*cfg["w4"]) + take(raw2, 2*cfg["raw4"])
    box_recv(P, vY, "h2", cfg["bo"], [" s_barrier"] + q4 + hc, ln2_per)
    P.st("h2")
    ln2(P, take(wq, 2*cfg["w5"]), cfg["w5_every"])
    P(HST[2:] if cfg["h_sh"] else HST)
    P.st("hnst")
    assert not raw2
    gs = g_sconsts(56 - cfg["wd_big"])
    bn = [f" v_add_u32 v4, {sRING}, v6", "WAIT:RAWC"]
    for u in range(nb1, nraw//2): bn += bounce(u, 4)
    mid = g_vconsts() + (bn + [" s_waitcnt lgkmcnt(0)"] if nraw//2 > nb1 else [])
    mid += L(f"""
 s_or_b32 s3, s2, {sW}
 s_cmp_lg_u32 s3, 0""")
    P(take(wq, 2*cfg["w6"]))
    P(mid)
    P(f""" s_cbranch_scc1 L_notag
 v_lshlrev_b32 v4, 21, v6
 buffer_store_dword v{vTG}, v4, {WS}, 0 offen sc1
L_notag:
""")
    P.nvm -= 1
    P(wq); P.mark("WALL")
    if not cfg["gs_late"]: P(take(gs, cfg["gs_n"]))
    if cfg.get("dly3"): P(f" s_sleep {cfg['dly3']}")
    P(["WAIT:HST", FLAGST])
    P.st("g1go")
    hn3 = []
    for g in range(cfg["hn_n0"]): hn3 += hn_loads(g) + [f"MARK:hn{g}"]
    P([f" s_cmp_ge_u32 {sJL}, 7", " s_cbranch_scc1 L_sia_i"] + hn3 + ["L_sia:"])
    P.tail += ["L_sia_i:", " s_waitcnt vmcnt(0)", " s_branch L_sia"]
    if not cfg["gs_late"]: P(gs); gs = []
    P(["WAIT:WALL", " s_barrier"])
    P.gs = gs
    d = rd = nraw
    for m in range(nraw): P.dmarks[f"wd{m}"] = 0
    P(f" s_cmp_ge_u32 {sJL}, 7\n s_cbranch_scc1 L_idle")
    save = (P.nvm, P.nds, P.vmdone, P.dsdone, dict(P.marks), dict(P.dmarks))
    MB = cfg["wd_big"]
    if cfg.get("nowd"): cfg["wd_big"] = MB = 56; d = rd = 56
    gemm1(P, cfg, wd_stream(d, rd, MB, cfg['adep']))
    P(" s_waitcnt lgkmcnt(0)\nL_join:")
    gemm2(P, cfg)
    if stamps:
        P(" s_waitcnt vmcnt(0)"); P.st("end")
        P(f" v_writelane_b32 v11, {sSPIN}, 63\n s_lshl_b32 s3, s2, 10\n s_add_u32 s3, s3, {STAMPS}\n v_lshlrev_b32 v1, 2, v0\n buffer_store_dword v11, v1, {WS}, s3 offen")
    P("L_end:\n s_endpgm")
    P.nvm, P.nds, P.vmdone, P.dsdone, P.marks, P.dmarks = save
    P("L_idle:")
    P([" s_waitcnt vmcnt(0)"] + P.gs)
    if cfg["warm"] == 3 and cfg["dowarm"]: P(warm3_ops())
    iw = wd_stream(d, rd, MB, cfg['idep'])
    P(take(iw, cfg["hw_at"]))
    if cfg["hwarm"]:
        P(f" v_lshlrev_b32 v16, 3, v6\n s_add_u32 s4, s{sHN+1}, 32768")
        for i in range(4): P(f" buffer_load_dword v17, v16, {WS}, s4 offen sc1\n s_add_u32 s4, s4, 8192")
    P(iw)
    for m in range(MB, min(56, MB + cfg["big_pre"])): P(wd_dma(m, sBIG, m - MB))
    for nm in ["hn0","p0","e0","p1","epi"] + [f"G{i}" for i in range(1,16)]: P.st(nm)
    P(hint_spin("ip0", sPH0, "L_ip0b") + ["L_ip0b:"])
    for i in range(len(cfg['hh_at'])): P(hh_loads(0, i))
    P(FLAGLD)
    P(" s_waitcnt vmcnt(0) lgkmcnt(0)")
    P.st("ld0")
    P(" s_branch L_join")
    P(P.tail)
    P("L_codeend:")
    if os.environ.get("STAMP") == "2": P.lines = [l.replace("s_memrealtime", "s_memtime") for l in P.lines]
    if cfg.get("hack16"):
        out_ = []; i = 0; Ls = P.lines; cnt = {}
        while i < len(Ls):
            l = Ls[i]
            m = re.match(r" v_mfma_f32_32x32x16_bf16 v\[(\d+):\d+\], (\S+), (\S+), (\S+)", l)
            if not m or (cfg["hack16"] == 2 and int(m.group(1)) >= 80): out_.append(l); i += 1; continue
            d = int(m.group(1)); z = m.group(4) == "0"
            if z: cnt[d] = 0
            c = cnt[d]; cnt[d] = c + 1
            j = i + 1
            while j < len(Ls) and j - i <= 8 and "v_mfma" not in Ls[j]: j += 1
            fl = Ls[i+1:j]; h = (len(fl) + 1)//2 if len(fl) < 8 else 0
            b0 = int(re.match(r"v\[(\d+)", m.group(3)).group(1)) & ~7
            def mm(o, bb): return f" v_mfma_f32_16x16x32_bf16 v[{o}:{o+3}], {m.group(2)}, v[{bb}:{bb+3}], " + ("0" if c < 2 else f"v[{o}:{o+3}]")
            o = d + 8*(c & 1)
            out_ += [mm(o, b0)] + fl[:h] + [mm(o+4, b0+4)] + fl[h:]; i = j
        P.lines = out_
    if cfg.get("nont"): P.lines = [l.replace(" nt", "") if l.lstrip().startswith("buffer_load") else l for l in P.lines]
    body = P.fix()
    head = open("sequential_preLN__ssm_conv_h3__glu_gated_glu__prompt.s.ref").read().split("; Override launch")[0]
    out = head + f"; @launch grid=(256,1,1) block=(256,1,1) lds={LDS_BYTES}\n"
    out += DOC
    out += f'.amdgcn_target "amdgcn-amd-amdhsa--gfx950"\n.text\n.globl {NAME}\n.p2align 8\n.type {NAME},@function\n{NAME}:\n' + body
    out += f""" s_endpgm
.section .rodata,"a"
.p2align 6
.amdhsa_kernel {NAME}
  .amdhsa_next_free_vgpr 512
  .amdhsa_next_free_sgpr 102
  .amdhsa_accum_offset 256
  .amdhsa_group_segment_fixed_size 0
  .amdhsa_kernarg_size 104
  .amdhsa_user_sgpr_count 2
  .amdhsa_user_sgpr_kernarg_segment_ptr 1
  .amdhsa_system_sgpr_workgroup_id_x 1
.end_amdhsa_kernel
"""
    if cfg.get("probe"):
        idx = P.stn.index(cfg["probe"])
        Q = G()
        Q(f"""
 s_cmp_ge_u32 s2, 1
 s_cbranch_scc1 L_pend
 s_load_dwordx2 s[48:49], s[0:1], 96
 s_mov_b32 s50, {WS_BYTES}
 s_mov_b32 s51, 0x20000
 v_lshlrev_b32 v1, 8, v0
 v_mov_b32 v2, 0
 s_waitcnt lgkmcnt(0)
 s_mov_b32 s3, {STAMPS}
 buffer_load_dword v3, v2, s[48:51], s3 offen
 v_mov_b32 v4, 0x7fffffff
 v_mov_b32 v5, {0 if cfg.get('pmean') else 0x80000000}
 s_mov_b32 s4, {16 if (cfg['probe'] == 'end' and not cfg.get('pmean')) else 14}
L_pl:
 buffer_load_dword v6, v1, s[48:51], s3 offen
 buffer_load_dword v7, v1, s[48:51], s3 offen offset:{4*idx}
 s_waitcnt vmcnt(0)
 v_sub_u32 v6, v6, v3
 v_sub_u32 v7, v7, v3
 v_min_i32 v4, v4, v6
 {'v_add_u32' if cfg.get('pmean') else 'v_max_i32'} v5, v5, v7
 s_add_u32 s3, s3, 16384
 s_sub_u32 s4, s4, 1
 s_cmp_lg_u32 s4, 0
 s_cbranch_scc1 L_pl
 s_mov_b32 s5, 0x7fffffff
 s_mov_b32 s6, {0 if cfg.get('pmean') else 0x80000000}
 s_mov_b32 s4, 0
L_pr:
 v_readlane_b32 s7, v4, s4
 v_readlane_b32 s8, v5, s4
 s_nop 1
 s_min_i32 s5, s5, s7
 {'s_add_u32' if cfg.get('pmean') else 's_max_i32'} s6, s6, s8
 s_add_u32 s4, s4, 1
 s_cmp_lg_u32 s4, 64
 s_cbranch_scc1 L_pr
 {'s_mul_hi_u32 s6, s6, 4793490' if cfg.get('pmean') else 's_nop 0'}
 s_sub_u32 s6, s6, s5
 s_min_u32 s6, s6, 10000
 s_mul_i32 s6, s6, {cfg.get('pmul', 10)}
 s_memrealtime s[10:11]
 s_waitcnt lgkmcnt(0)
L_ps:
 s_memrealtime s[12:13]
 s_waitcnt lgkmcnt(0)
 s_sub_u32 s7, s12, s10
 s_cmp_lt_u32 s7, s6
 s_cbranch_scc1 L_ps
L_pend:
 s_endpgm
""")
        out = out.replace(f"; @launch grid=(256,1,1) block=(256,1,1) lds={LDS_BYTES}\n", f"; @launch kernel={NAME} grid=(256,1,1) block=(256,1,1) lds={LDS_BYTES}\n; @launch kernel=probe_kernel grid=(1,1,1) block=(64,1,1) lds=0\n")
        out = out.replace('.section .rodata,"a"', '.globl probe_kernel\n.p2align 8\n.type probe_kernel,@function\nprobe_kernel:\n' + Q.fix() + '.section .rodata,"a"')
        kd = out[out.index(".p2align 6\n.amdhsa_kernel"):]
        out += kd.replace(NAME, "probe_kernel").replace("vgpr 512", "vgpr 16").replace("offset 256", "offset 16")
    return out, P
CFG = dict(bar_late=1, raw0=0, raw1=0, nraw=8, raw_c=8, nb1=4, h_early=1, pre_late=1, big_per=6, v2=2, g1=4, w4=4, mw_at=4, nwarm=6, warm=0, lazy=4, vgap=1, wt=9, wtnt="", wth=0, a8=0, can1=0, can2=0, cmask=0x00010001, cbo=6, hnh=0, hn_nh=16, hn_hint_at=999, hbo=8, ap_pre=120, wsched=[(1,2,1),(20,8,5)],
           f_at=0, kbar=1, fnt2="", pf_after="SHK", nsetB=0, fnt="nt", x_at=0, wdm=0, wdc_at=0, bo=4, wnt="", w3=4, w3_every=4, wd3=0, wd_pre=0, wd_first=1, im=0,
           w5=0, w5_every=2, wd_rate=(0.8,0.9), wd_big=44, slots=(6,6), big_pre=0, big_every=8, outf="", dly3=0, dly2=0, hold=0,
           e0_exp=4, hhh=0, h0_k=12, hh_at={17:0, 20:1, 23:2, 26:3, 29:4}, hh1=0, h1_lead=2, b1_at={5:[0,1],6:[2,3],7:[4],8:[5],9:[6]}, hres_at=3)
if __name__ == "__main__":
    cfg = dict(CFG)
    for a in sys.argv[2:]:
        k, v = a.split("=", 1); cfg[k] = eval(v)
    out, P = build(cfg, bool(os.environ.get("STAMP")))
    open(sys.argv[1], "w").write(out)
    if os.environ.get("STAMP"): open(sys.argv[1] + ".names", "w").write(" ".join(P.stn))
    print("lines", len(P.lines), "nops", P.nops)
```
